```python
import torch

def _softmax(x, axis=-1):
    return torch.softmax(x, dim=axis)
def _gelu(x):
    return torch.nn.functional.gelu(x, approximate="tanh")
def _silu(x):
    return torch.nn.functional.silu(x)
def _sigmoid(x):
    return torch.sigmoid(x)
def _layernorm(x, axis=-1, eps=1e-5):
    m = x.mean(dim=axis, keepdim=True)
    v = x.var(dim=axis, keepdim=True, unbiased=False)
    return (x - m) / torch.sqrt(v + eps)
def _scatter_add(tgt, idx, src, axis=0):
    return tgt.clone().index_add_(axis, idx, src)
def _segment_sum(src, seg, n):
    out = torch.zeros((n,) + src.shape[1:], dtype=src.dtype)
    return out.index_add_(0, seg, src)
def _pad(x, pw):
    flat = tuple(v for pair in reversed(pw) for v in pair)
    return torch.nn.functional.pad(x, flat)

kernel_name = 'recurrent_scan__softmax_full_mha__glu_gated_swiglu__prompt'

def setup_inputs():

    _w = (lambda a: (lambda t: t.to(torch.bfloat16) if t.is_floating_point() else t)(torch.as_tensor(a)))
    def _A_setup():
        B, S, D = 1, 2048, 448
        return {
            "x": _w((lambda *s: torch.randn(*s, dtype=torch.bfloat16) * 0.05)(B, S, D)),
            "wqkv": _w((lambda *s: torch.randn(*s, dtype=torch.bfloat16) * 0.2)(D, 3 * D)),
            "wo": _w((lambda *s: torch.randn(*s, dtype=torch.bfloat16) * 0.2)(D, D)),
        }
    _A_in = _A_setup()

    def _B_setup():
        B, S, D, F = 1, 2048, 448, 1792
        return {
            "x": _w((lambda *s: torch.randn(*s, dtype=torch.bfloat16) * 0.05)(B, S, D)),
            "w1": _w((lambda *s: torch.randn(*s, dtype=torch.bfloat16) * 0.1)(D, F) * (2.0 / D) ** 0.5),
            "w3": _w((lambda *s: torch.randn(*s, dtype=torch.bfloat16) * 0.1)(D, F) * (2.0 / D) ** 0.5),
            "w2": _w((lambda *s: torch.randn(*s, dtype=torch.bfloat16) * 0.1)(F, D) * (2.0 / F) ** 0.5),
        }
    _B_in = _B_setup()

    return {
        "A_x": _A_in["x"],
        "A_wqkv": _A_in["wqkv"],
        "A_wo": _A_in["wo"],
        "B_x": _B_in["x"],
        "B_w1": _B_in["w1"],
        "B_w3": _B_in["w3"],
        "B_w2": _B_in["w2"],
    }

def reference(A_x, A_wqkv, A_wo, B_x, B_w1, B_w3, B_w2):
    def _A_ref(x, wqkv, wo):
        B, S, D = x.shape
        H = 16; Dh = D // H
        qkv = (lambda x, *d: x.permute(*d))((x @ wqkv).reshape(B, S, 3, H, Dh), 2, 0, 3, 1, 4)
        q, k, v = qkv[0], qkv[1], qkv[2]
        scale = Dh ** -0.5
        scores = torch.einsum("bhqd,bhkd->bhqk", q, k) * scale
        p = _softmax(scores, axis=-1)
        o = torch.einsum("bhqk,bhkd->bhqd", p, v)
        return (lambda x, *d: x.permute(*d))(o, 0, 2, 1, 3).reshape(B, S, D) @ wo

    def _B_ref(x, w1, w3, w2):
        gate = torch.einsum("bsd,df->bsf", x, w1)
        up = torch.einsum("bsd,df->bsf", x, w3)
        h = _silu(gate) * up
        out = torch.einsum("bsf,fd->bsd", h, w2)
        return out

    x = A_x
    xn = _layernorm(x, axis=-1)
    s = _A_ref(xn, A_wqkv, A_wo)
    g = _silu(_B_ref(xn, B_w1, B_w3, B_w2))
    return x + s * g
```

```python
import re

def vr(b, n=1):
    return f"v{b}" if n == 1 else f"v[{b}:{b+n-1}]"
def sr(b, n=1):
    return f"s{b}" if n == 1 else f"s[{b}:{b+n-1}]"

_REG = re.compile(r"\b([vsa])(\d+)\b|\b([vsa])\[(\d+):(\d+)\]|\b(vcc|exec|m0|scc)\b")
def regs_of(op):
    out = set()
    for m in _REG.finditer(op):
        if m.group(1): out.add((m.group(1), int(m.group(2))))
        elif m.group(3):
            for i in range(int(m.group(4)), int(m.group(5)) + 1): out.add((m.group(3), i))
        else: out.add((m.group(6), 0))
    return out

TRANS = ("v_exp_f32", "v_log_f32", "v_rcp_f32", "v_rsq_f32", "v_sqrt_f32", "v_sin_f32", "v_cos_f32")

class Ins:
    __slots__ = ("text", "op", "dst", "src", "kind", "srcC", "srcAB", "states", "passes")
    def __init__(self, text):
        self.text = text
        t = text.split(";")[0].strip()
        parts = t.split(None, 1)
        self.op = parts[0]
        ops = []
        if len(parts) > 1:
            cur = ""; depth = 0
            for ch in parts[1]:
                if ch == "[": depth += 1
                if ch == "]": depth -= 1
                if ch == "," and depth == 0: ops.append(cur.strip()); cur = ""
                else: cur += ch
            ops.append(cur.strip())
        op = self.op
        self.srcC = set(); self.srcAB = set(); self.states = 1; self.passes = 0
        self.dst = set(); self.src = set()
        if op == "s_nop":
            self.kind = "nop"; self.states = int(ops[0], 0) + 1
        elif op.startswith("v_mfma"):
            self.kind = "mfma"
            self.passes = 8 if "32x32" in op else 4
            self.dst = regs_of(ops[0]); self.srcAB = regs_of(ops[1]) | regs_of(ops[2]); self.srcC = regs_of(ops[3])
            self.src = self.srcAB | self.srcC
        elif op.startswith("v_"):
            self.kind = "valu"
            if op.startswith("v_cmp"):
                self.dst = regs_of(ops[0]); self.src = set().union(*[regs_of(o) for o in ops[1:]])
            elif op.startswith("v_permlane32_swap") or op.startswith("v_permlane16_swap"):
                self.dst = regs_of(ops[0]) | regs_of(ops[1]); self.src = set(self.dst)
            elif op.startswith("v_readfirstlane") or op.startswith("v_readlane"):
                self.dst = regs_of(ops[0]); self.src = set().union(*[regs_of(o) for o in ops[1:]])
            else:
                self.dst = regs_of(ops[0]); self.src = set().union(*[regs_of(o) for o in ops[1:]]) if len(ops) > 1 else set()
                if op.startswith(("v_fmac", "v_dot2c", "v_mac")) or "_dpp" in op or "sdwa" in op: self.src |= self.dst
                if op.startswith(("v_add_co", "v_sub_co", "v_addc_co")):
                    self.dst |= regs_of(ops[1]);
                if op.startswith("v_cndmask") and len(ops) == 3: self.src.add(("vcc", 0))
        elif op.startswith(("buffer_", "global_", "flat_")):
            self.kind = "vmem"
            allr = set().union(*[regs_of(o) for o in ops]) if ops else set()
            if "load" in op and " lds" not in (" " + t):
                self.dst = regs_of(ops[0]); self.src = set().union(*[regs_of(o) for o in ops[1:]])
            elif "atomic" in op and " sc0" in t:
                self.dst = regs_of(ops[0]); self.src = allr
            else:
                self.src = allr
                if " lds" in (" " + t): self.src.add(("m0", 0))
        elif op.startswith("ds_"):
            self.kind = "ds"
            if op.startswith(("ds_read", "ds_bpermute", "ds_permute", "ds_swizzle")) or "_rtn" in op:
                self.dst = regs_of(ops[0]); self.src = set().union(*[regs_of(o) for o in ops[1:]])
            else:
                self.src = set().union(*[regs_of(o) for o in ops])
        elif op.startswith("s_"):
            self.kind = "salu"
            if op.startswith(("s_cmp", "s_cbranch", "s_branch", "s_waitcnt", "s_barrier", "s_endpgm", "s_setprio", "s_sleep", "s_bitcmp")):
                self.src = set().union(*[regs_of(o) for o in ops]) if ops else set()
            else:
                self.dst = regs_of(ops[0]) if ops else set()
                self.src = set().union(*[regs_of(o) for o in ops[1:]]) if len(ops) > 1 else set()
                if "saveexec" in op: self.dst.add(("exec", 0))
        else:
            self.kind = "other"
    def is_trans(self): return self.op.startswith(TRANS)
    def is_dot(self): return self.op.startswith("v_dot")
    def is_dpp(self): return "_dpp" in self.op
    def is_perml(self): return self.op.startswith("v_permlane")
    def is_rdlane(self): return self.op.startswith(("v_readfirstlane", "v_readlane"))
    def wide_store(self):
        return self.kind == "vmem" and "store" in self.op and ("x4" in self.op or "x3" in self.op)

def need_states(p, c):
    n = 0
    vd = {r for r in p.dst if r[0] in "va"}
    sd = {r for r in p.dst if r[0] in ("s", "vcc")}
    if p.kind == "valu":
        if c.kind == "mfma" and vd & c.src: n = max(n, 3 if p.is_dot() else 2)
        if c.kind == "valu":
            if p.is_trans() and not c.is_trans() and vd & c.src: n = max(n, 1)
            if p.is_trans() and c.is_trans() and vd & c.src: n = max(n, 1)
            if (c.is_perml() or c.is_dpp()) and vd & c.src: n = max(n, 2)
            if c.is_rdlane() and vd & c.src: n = max(n, 1)
            if sd & c.src: n = max(n, 4 if c.is_rdlane() else 2)
            if p.is_dot():
                if vd & (c.src | c.dst):
                    if c.op == p.op:
                        t = c.text.split(";")[0]
                        ops = [o.strip() for o in t.split(None, 1)[1].split(",")]
                        ab = regs_of(ops[1]) | regs_of(ops[2])
                        if vd & ab: n = max(n, 3)
                    else: n = max(n, 3)
            if ("exec", 0) in p.dst and (c.is_dpp()): n = max(n, 5)
        if c.kind in ("vmem",) and sd & c.src: n = max(n, 5)
        if c.kind in ("vmem", "ds") and p.is_dot() and vd & c.src: n = max(n, 3)
        if c.kind in ("vmem", "ds") and p.is_trans() and vd & c.src: n = max(n, 1)
        if c.kind == "salu" and sd & c.src: n = max(n, 1)
    if p.kind == "mfma":
        big = {8: 12, 4: 8}[p.passes]
        if c.kind == "mfma":
            if vd & c.srcAB: n = max(n, big)
            if vd & c.srcC:
                if not (c.srcC == vd and c.passes == p.passes): n = max(n, big - 2)
            elif vd & c.dst and not (c.dst == vd):
                n = max(n, big - 2)
        elif c.kind == "valu":
            if vd & (c.src | c.dst): n = max(n, big)
            if p.srcC & c.dst: n = max(n, {8: 7, 4: 3}[p.passes])
        elif c.kind in ("vmem", "ds"):
            if vd & (c.src | c.dst): n = max(n, big)
    if p.kind == "salu":
        if ("m0", 0) in p.dst and c.kind == "vmem" and ("m0", 0) in c.src: n = max(n, 1)
    if p.wide_store() and c.kind == "valu":
        t = p.text.split(";")[0].split(None, 1)[1]
        data = regs_of(t.split(",")[0]) if p.op.startswith("buffer") else regs_of(t.split(",")[1])
        if data & c.dst: n = max(n, 2)
    if p.kind == "ds" and p.op.startswith("ds_write") and ("b128" in p.op or "b96" in p.op) and c.kind == "valu":
        pass
    return n

MAXLOOK = 14

class Asm:
    def __init__(self):
        self.lines = []
        self.hist = []
        self.vm = []
        self.lg = []
        self.nops = 0
    def raw(self, t): self.lines.append(t)
    def label(self, name):
        self.lines.append(f"{name}:")
    def comment(self, t): self.lines.append(f"    ; {t}")
    def reset_hist(self): self.hist = []
    def e(self, text):
        ins = Ins(text)
        dist = 0; need = 0
        for p in reversed(self.hist):
            n = need_states(p, ins)
            if n - dist > need: need = n - dist
            dist += p.states
            if dist >= MAXLOOK: break
        while need > 0:
            k = min(need, 16)
            nop = Ins(f"s_nop {k-1}")
            self.lines.append(f"    s_nop {k-1}")
            self.hist.append(nop); self.nops += 1
            need -= k
        self.lines.append("    " + text)
        self.hist.append(ins)
        if len(self.hist) > 64: self.hist = self.hist[-32:]
        return ins
    def vm_op(self, text, tag=None):
        self.e(text); self.vm.append(tag)
    def vm_wait(self, tag):
        idx = [i for i, t in enumerate(self.vm) if t == tag]
        if not idx: return
        last = idx[-1]
        n = len(self.vm) - 1 - last
        assert n <= 63, n
        self.e(f"s_waitcnt vmcnt({n})")
        self.vm = self.vm[last + 1:]
    def vm_wait_all(self):
        self.e("s_waitcnt vmcnt(0)"); self.vm = []
    def ds_op(self, text, tag=None):
        self.e(text); self.lg.append(tag)
    def ds_wait(self, tag):
        idx = [i for i, t in enumerate(self.lg) if t == tag]
        if not idx: return
        last = idx[-1]
        n = len(self.lg) - 1 - last
        if n > 15: n = 15
        self.e(f"s_waitcnt lgkmcnt({n})")
        self.lg = self.lg[len(self.lg) - n:] if n else []
    def ds_done(self, tag):
        return tag not in self.lg
    def ds_wait_all(self):
        self.e("s_waitcnt lgkmcnt(0)"); self.lg = []
    def text(self): return "\n".join(self.lines) + "\n"

def check_loop(lines):
    ins = [Ins(l.strip()) for l in lines if l.strip() and not l.strip().startswith(";") and not l.strip().endswith(":")]
    seq = ins + ins
    for i in range(len(ins), len(seq)):
        dist = 0
        for j in range(i - 1, -1, -1):
            n = need_states(seq[j], seq[i])
            if n > dist:
                raise AssertionError(f"hazard across back edge: {seq[j].text} -> {seq[i].text} need {n} have {dist}")
            dist += seq[j].states
            if dist >= MAXLOOK: break
```

```python
from asmlib import *
Q_OFF  = 0
KV_OFF = 2 << 20
H_OFF  = 6 << 20
O_OFF  = 13 << 20
G_OFF  = 15 << 20
ST_OFF = 17 << 20
WS_USED = 18 << 20
X_BYTES = 2048 * 448 * 2
WQ_BYTES = 448 * 1344 * 2
WO_BYTES = 448 * 448 * 2
W1_BYTES = 448 * 1792 * 2
W2_BYTES = 1792 * 448 * 2
LOG2E = 1.4426950408889634
import struct
def f2u(x): return struct.unpack("<I", struct.pack("<f", x))[0]
def hexf(x): return hex(f2u(x))

def srd(a, d, base, nbytes):
    a.e(f"s_mov_b32 s{d}, s{base}")
    a.e(f"s_mov_b32 s{d+1}, s{base+1}")
    a.e(f"s_mov_b32 s{d+2}, {hex(nbytes)}")
    a.e(f"s_mov_b32 s{d+3}, 0x20000")

def kernel_head(a, name):
    a.raw(f".globl {name}")
    a.raw(".p2align 8")
    a.raw(f".type {name},@function")
    a.label(name)
    a.reset_hist()

def kd(name, vgpr, sgpr=96):
    acc = (vgpr + 3) // 4 * 4
    return f""".p2align 6
.amdhsa_kernel {name}
  .amdhsa_next_free_vgpr {vgpr}
  .amdhsa_next_free_sgpr {sgpr}
  .amdhsa_accum_offset {acc}
  .amdhsa_group_segment_fixed_size 0
  .amdhsa_kernarg_size 80
  .amdhsa_user_sgpr_count 2
  .amdhsa_user_sgpr_kernarg_segment_ptr 1
  .amdhsa_system_sgpr_workgroup_id_x 1
.end_amdhsa_kernel
"""

def code_prefetch(a, start_label, here, nbytes, nthreads, vtmp, vdst, spair, end_label="L_code_end"):
    a.e(f"s_getpc_b64 s[{spair}:{spair+1}]")
    a.label(here)
    a.e(f"s_add_u32 s{spair}, s{spair}, {start_label}-{here}")
    a.e(f"s_addc_u32 s{spair+1}, s{spair+1}, ({start_label}-{here})>>32")
    a.e(f"v_lshlrev_b32 v{vtmp}, 7, v0")
    n = (nbytes + nthreads * 128 - 1) // (nthreads * 128)
    for i in range(n):
        if i: a.e(f"v_add_u32 v{vtmp}, {nthreads*128}, v{vtmp}")
        a.e(f"v_min_u32 v{vdst}, {end_label}-{start_label}-4, v{vtmp}")
        a.vm_op(f"global_load_dword v{vdst}, v{vdst}, s[{spair}:{spair+1}]", "pf")
```

```python
from common import *

def tr_addr(a, vLane, d0, d1, t0, t1, t2, sBase, xor=False):
    e = a.e
    e(f"v_and_b32 v{t0}, 15, v{vLane}")
    e(f"v_lshrrev_b32 v{t1}, 5, v{vLane}")
    e(f"v_lshrrev_b32 v{t2}, 2, v{t0}")
    e(f"v_lshl_add_u32 v{t1}, v{t1}, 2, v{t2}")
    e(f"v_lshlrev_b32 v{t1}, 7, v{t1}")
    e(f"v_lshrrev_b32 v{t2}, 3, v{t0}")
    e(f"v_lshl_add_u32 v{t1}, v{t2}, 6, v{t1}")
    e(f"v_and_b32 v{t0}, 3, v{t0}")
    e(f"v_lshl_add_u32 v{t1}, v{t0}, 3, v{t1}")
    e(f"v_and_b32 v{t0}, 16, v{vLane}")
    e(f"v_lshl_add_u32 v{t1}, v{t0}, 1, v{t1}")
    e(f"v_{'xor_b32' if xor else 'add_u32'} v{d0}, s{sBase}, v{t1}")
    e(f"v_xor_b32 v{d1}, 64, v{d0}")

def dma_voff(a, vLane, d, t0, t1):
    e = a.e
    e(f"v_lshrrev_b32 v{t0}, 4, v{vLane}")
    e(f"v_and_b32 v{t0}, 1, v{t0}")
    e(f"v_lshlrev_b32 v{t0}, 2, v{t0}")
    e(f"v_and_b32 v{t1}, 7, v{vLane}")
    e(f"v_xor_b32 v{t0}, v{t0}, v{t1}")
    e(f"v_lshrrev_b32 v{t1}, 3, v{vLane}")
    e(f"v_mul_u32_u24 v{t1}, 896, v{t1}")
    e(f"v_lshl_add_u32 v{d}, v{t0}, 4, v{t1}")

def write_partials(a, vLane, ACC, sBase, t0, t1):
    e = a.e
    e(f"v_and_b32 v{t0}, 15, v{vLane}")
    e(f"v_lshrrev_b32 v{t1}, 5, v{vLane}")
    e(f"v_xor_b32 v{t0}, v{t0}, v{t1}")
    e(f"v_and_b32 v{t1}, 31, v{vLane}")
    e(f"v_lshlrev_b32 v{t1}, 8, v{t1}")
    e(f"v_lshl_add_u32 v{t0}, v{t0}, 4, v{t1}")
    e(f"v_add_u32 v{t0}, s{sBase}, v{t0}")
    for ct in range(2):
        for q in range(4):
            e(f"v_xor_b32 v{t1}, {(8*ct+2*q) << 4}, v{t0}")
            for tt in range(2):
                r = ACC + (2*ct+tt)*16 + 4*q
                a.ds_op(f"ds_write_b128 v{t1}, v[{r}:{r+3}] offset:{tt*8192}")

def read_reduce(a, vLane, sWq, lds_base, R, t0, t1, sT):
    e = a.e
    e(f"v_lshrrev_b32 v{t0}, 3, v{vLane}")
    e(f"v_and_b32 v{t1}, 7, v{vLane}")
    e(f"v_lshlrev_b32 v{t1}, 1, v{t1}")
    e(f"v_xor_b32 v{t1}, v{t1}, v{t0}")
    e(f"v_lshlrev_b32 v{t0}, 8, v{t0}")
    e(f"v_lshl_add_u32 v{t0}, v{t1}, 4, v{t0}")
    e(f"s_lshl_b32 s{sT}, s{sWq}, 12")
    e(f"s_add_u32 s{sT}, s{sT}, {lds_base}")
    e(f"v_add_u32 v{t0}, s{sT}, v{t0}")
    return

def read_reduce2(a, R, t0, t1):
    e = a.e
    for rep in range(2):
        for ee in range(2):
            x = (ee << 4) ^ (rep << 7)
            if x: e(f"v_xor_b32 v{t1}, {x}, v{t0}")
            ad = t1 if x else t0
            for p in range(4):
                r = R + p*16 + rep*8 + ee*4
                a.ds_op(f"ds_read_b128 v[{r}:{r+3}], v{ad} offset:{p*16384 + rep*2048}", f"r{rep}")
    for rep in range(2):
        a.ds_wait(f"r{rep}")
        for k in range(8):
            r = R + rep*8 + k
            e(f"v_add_f32 v{r}, v{r}, v{r+16}")
            e(f"v_add_f32 v{r+32}, v{r+32}, v{r+48}")
        for k in range(8):
            r = R + rep*8 + k
            e(f"v_add_f32 v{r}, v{r}, v{r+32}")
```

```python
from common import *

def gen_k1(a, opt):
    ST = opt.get("st1", "")
    name = "k1_kernel"
    kernel_head(a, name)
    X0, AA, AB, WF = 16, 128, 160, 192
    T0 = 216
    vLane, vSt, vD01, vD2 = 1, 2, 3, 4
    vTB = [[5, 6], [7, 8], [9]]
    vTW = [10, 11]
    vXR = [12, 13, 14, 15]
    vK, vC1, vScA, vScT, vPA6, vPA7, vPT6, vPT7 = 232, 233, 234, 235, 236, 237, 238, 239
    vXW = [240, 241]; vStat = 242; vNM = 243; vAcc = [244, 245, 246, 247]; vV1, vV2 = 248, 249
    RAW = 128
    sW, sTT, sG, sRB, sCOL, sTTG = 36, 37, 38, 39, 40, 41
    sSO = [[42, 43], [44, 45], [46, 47]]
    sP64, sM0, sCurA, sCurB = 48, 49, 50, 51
    sOnes, sLo, sHi = 52, 53, 54
    sHoff, sTailOff, sQKoff0, sKind, sT1, sT2, sT3, sStat = 55, 56, 57, 58, 59, 60, 61, 62
    sTc = [[64, 65], [66, 67], [68]]
    sQKstep = 69
    e = a.e
    e("s_cmp_ge_u32 s2, 256")
    e("s_cbranch_scc1 L1_end")
    e("s_load_dwordx4 s[4:7], s[0:1], 0")
    e("s_load_dwordx4 s[8:11], s[0:1], 32")
    e("s_load_dwordx2 s[12:13], s[0:1], 72")
    if opt.get("pf", 1):
        code_prefetch(a, name, "L1_pc", opt.get("pf_bytes", 32768), 512, 20, 21, 14)
    e(f"v_and_b32 v{vLane}, 63, v0")
    e(f"v_lshrrev_b32 v22, 6, v0")
    e(f"v_readfirstlane_b32 s{sW}, v22")
    e(f"s_and_b32 s3, s2, 7")
    e(f"s_lshr_b32 s{sT1}, s2, 3")
    e(f"s_and_b32 s{sRB}, s3, 1")
    e(f"s_lshl_b32 s{sRB}, s{sRB}, 3")
    e(f"s_and_b32 s{sT2}, s{sT1}, 7")
    e(f"s_add_u32 s{sRB}, s{sRB}, s{sT2}")
    e(f"s_lshr_b32 s{sCOL}, s3, 1")
    e(f"s_lshl_b32 s{sCOL}, s{sCOL}, 2")
    e(f"s_lshr_b32 s{sT2}, s{sT1}, 3")
    e(f"s_add_u32 s{sCOL}, s{sCOL}, s{sT2}")
    e(f"s_and_b32 s{sTT}, s{sW}, 3")
    e(f"s_lshr_b32 s{sG}, s{sW}, 2")
    e(f"s_lshl_b32 s{sTTG}, s{sRB}, 2")
    e(f"s_add_u32 s{sTTG}, s{sTTG}, s{sTT}")
    e(f"s_lshl_b32 s{sM0}, s{sW}, 10")
    e(f"v_lshrrev_b32 v22, 3, v{vLane}")
    e(f"v_and_b32 v23, 7, v{vLane}")
    e(f"s_lshl_b32 s{sT1}, s{sRB}, 7")
    e(f"s_lshl_b32 s{sT2}, s{sW}, 4")
    e(f"s_add_u32 s{sT1}, s{sT1}, s{sT2}")
    e(f"s_mul_i32 s{sT1}, s{sT1}, 896")
    e(f"s_add_u32 s{sT2}, s{sT1}, {8*896}")
    e(f"v_mul_u32_u24 v24, 896, v22")
    e(f"v_lshl_add_u32 v24, v23, 4, v24")
    e("s_waitcnt lgkmcnt(0)")
    srd(a, 16, 4, X_BYTES)
    for gi in range(2):
        for i in range(7):
            r = RAW + (gi * 7 + i) * 4
            a.vm_op(f"buffer_load_dwordx4 v[{r}:{r+3}], v24, s[16:19], s{sT1 if gi == 0 else sT2} offen offset:{i*128}", f"x{gi}")
    srd(a, 20, 6, WQ_BYTES)
    srd(a, 32, 12, WS_USED)
    e(f"s_cmp_lt_u32 s{sCOL}, 8")
    e(f"s_cbranch_scc1 L1_pqk")
    e(f"s_mov_b32 s{sKind}, 2")
    e(f"s_sub_u32 s{sT1}, s{sCOL}, 8")
    e(f"s_lshl_b32 s{sT1}, s{sT1}, 1")
    e(f"s_branch L1_pj")
    a.label("L1_pqk")
    e(f"s_lshr_b32 s{sKind}, s{sCOL}, 2")
    e(f"s_and_b32 s{sT1}, s{sCOL}, 3")
    e(f"s_lshl_b32 s{sT1}, s{sT1}, 1")
    e(f"s_add_u32 s{sT1}, s{sT1}, 4")
    a.label("L1_pj")
    e(f"s_mul_i32 s{sT2}, s{sKind}, 896")
    e(f"s_mul_i32 s{sT3}, s{sT1}, 56")
    e(f"s_add_u32 s{sT2}, s{sT2}, s{sT3}")
    e(f"s_lshr_b32 s{sT3}, s{sT2}, 7")
    e(f"s_min_u32 s{sT3}, s{sT3}, 19")
    e(f"s_lshl_b32 s{sSO[2][0]}, s{sT3}, 7")
    e(f"s_add_u32 s{sSO[2][1]}, s{sSO[2][0]}, 128")
    e(f"s_sub_u32 s{sT2}, s{sT2}, s{sSO[2][0]}")
    e(f"s_mul_i32 s{sT3}, s{sG}, 56")
    e(f"s_add_u32 s{sTc[2][0]}, s{sT2}, s{sT3}")
    e(f"s_add_u32 s{sT1}, s{sT1}, s{sG}")
    e(f"s_lshl_b32 s{sT1}, s{sT1}, 6")
    e(f"s_add_u32 s{sT1}, s{sT1}, s{sTTG}")
    e(f"s_lshl_b32 s{sT2}, s{sT1}, 11")
    e(f"s_lshl_b32 s{sT3}, s{sT1}, 12")
    e(f"s_add_u32 s{sT3}, s{sT3}, {KV_OFF}")
    e(f"s_cmp_eq_u32 s{sKind}, 0")
    e(f"s_cselect_b32 s{sTailOff}, s{sT2}, s{sT3}")
    e(f"s_cmp_eq_u32 s{sKind}, 2")
    e(f"s_cselect_b32 s{sT2}, 2048, 0")
    e(f"s_add_u32 s{sTailOff}, s{sTailOff}, s{sT2}")
    e(f"s_cmp_ge_u32 s{sCOL}, 14")
    e(f"s_cbranch_scc1 L1_qonly")
    srd(a, 24, 8, W1_BYTES)
    srd(a, 28, 10, W1_BYTES)
    e(f"s_lshl_b32 s{sSO[0][0]}, s{sCOL}, 8")
    e(f"s_mov_b32 s{sSO[0][1]}, s{sSO[0][0]}")
    e(f"s_add_u32 s{sSO[1][0]}, s{sSO[0][0]}, 128")
    e(f"s_mov_b32 s{sSO[1][1]}, s{sSO[1][0]}")
    e(f"s_mov_b32 s{sP64}, 3584")
    e(f"s_lshl_b32 s{sTc[0][0]}, s{sG}, 6")
    e(f"s_add_u32 s{sTc[0][1]}, s{sTc[0][0]}, 128")
    e(f"s_mov_b32 s{sTc[1][0]}, s{sTc[0][0]}")
    e(f"s_mov_b32 s{sTc[1][1]}, s{sTc[0][1]}")
    e(f"s_branch L1_rj")
    a.label("L1_qonly")
    srd(a, 24, 6, WQ_BYTES)
    srd(a, 28, 6, WQ_BYTES)
    e(f"s_sub_u32 s{sT1}, s{sCOL}, 14")
    e(f"s_mul_i32 s{sSO[0][0]}, s{sT1}, 896")
    e(f"s_add_u32 s{sSO[0][1]}, s{sSO[0][0]}, 128")
    e(f"s_add_u32 s{sSO[1][0]}, s{sSO[0][0]}, 640")
    e(f"s_add_u32 s{sSO[1][1]}, s{sSO[0][0]}, 768")
    e(f"s_mov_b32 s{sP64}, 2688")
    e(f"s_mul_i32 s{sTc[0][0]}, s{sG}, 112")
    e(f"s_add_u32 s{sTc[0][1]}, s{sTc[0][0]}, 56")
    e(f"s_add_u32 s{sTc[1][0]}, s{sTc[0][0]}, 32")
    e(f"s_add_u32 s{sTc[1][1]}, s{sTc[0][0]}, 88")
    a.label("L1_rj")
    a.reset_hist()
    e(f"v_lshrrev_b32 v25, 4, v{vLane}")
    e(f"v_and_b32 v25, 1, v25")
    e(f"v_lshlrev_b32 v25, 2, v25")
    e(f"v_xor_b32 v25, v25, v23")
    e(f"v_lshlrev_b32 v25, 4, v25")
    e(f"s_lshl_b32 s{sT1}, s{sW}, 3")
    e(f"v_add_u32 v26, s{sT1}, v22")
    e(f"v_mul_lo_u32 v{vD01}, v26, s{sP64}")
    e(f"v_add_u32 v{vD01}, v{vD01}, v25")
    e(f"v_mul_u32_u24 v{vD2}, 2688, v26")
    e(f"v_add_u32 v{vD2}, v{vD2}, v25")
    e(f"s_lshl_b32 s{sP64}, s{sP64}, 6")
    NS = 10
    slot = lambda c: (c + 7) % NS
    dma_next = [0]
    def dma(c):
        assert c == dma_next[0]; dma_next[0] += 1
        r, cc = divmod(c, 7)
        if cc == 0:
            e(f"s_mov_b32 s{sCurA}, s{sSO[r][0]}")
            e(f"s_mov_b32 s{sCurB}, s{sSO[r][1]}")
        else:
            inc = f"s{sP64}" if r < 2 else f"{64*2688}"
            e(f"s_add_u32 s{sCurA}, s{sCurA}, {inc}")
            e(f"s_add_u32 s{sCurB}, s{sCurB}, {inc}")
        vd = vD01 if r < 2 else vD2
        sa, sb = ("s[24:27]", "s[28:31]") if r < 2 else ("s[20:23]", "s[20:23]")
        e(f"s_add_u32 m0, s{sM0}, {slot(c)*16384}")
        a.vm_op(f"buffer_load_dwordx4 v{vd}, {sa}, s{sCurA} offen lds", f"c{c}")
        e(f"s_add_u32 m0, s{sM0}, {slot(c)*16384+8192}")
        a.vm_op(f"buffer_load_dwordx4 v{vd}, {sb}, s{sCurB} offen lds", f"c{c}")
    for c in range(3): dma(c)
    e(f"v_lshlrev_b32 v{vSt}, 4, v{vLane}")
    e(f"v_and_b32 v25, 15, v{vLane}")
    e(f"v_lshrrev_b32 v26, 5, v{vLane}")
    e(f"v_lshrrev_b32 v27, 2, v25")
    e(f"v_lshl_add_u32 v27, v26, 3, v27")
    e(f"v_lshlrev_b32 v27, 7, v27")
    e(f"v_lshrrev_b32 v28, 3, v25")
    e(f"v_lshlrev_b32 v28, 6, v28")
    e(f"v_and_b32 v29, 3, v25")
    e(f"v_lshlrev_b32 v29, 3, v29")
    e(f"v_and_b32 v30, 16, v{vLane}")
    e(f"v_lshl_add_u32 v29, v30, 1, v29")
    for r in range(3):
        for t in range(len(vTB[r])):
            d = vTB[r][t]
            e(f"v_add_u32 v30, s{sTc[r][t]}, v29")
            e(f"v_and_b32 v31, 127, v30")
            e(f"v_xor_b32 v31, v31, v28")
            e(f"v_and_b32 v30, 128, v30")
            e(f"v_lshl_add_u32 v30, v30, 6, v31")
            e(f"v_add_u32 v{d}, v30, v27")
    e(f"s_and_b32 s{sT1}, s{sW}, 1")
    e(f"s_lshl_b32 s{sT1}, s{sT1}, 4")
    e(f"v_add_u32 v30, s{sT1}, v22")
    e(f"v_xor_b32 v30, v30, v23")
    e(f"v_lshlrev_b32 v30, 4, v30")
    e(f"v_lshrrev_b32 v31, 1, v23")
    e(f"v_lshl_add_u32 v30, v31, 12, v30")
    e(f"v_and_b32 v31, 1, v23")
    e(f"v_lshl_add_u32 v30, v31, 9, v30")
    e(f"s_lshr_b32 s{sT1}, s{sW}, 1")
    e(f"s_lshl_b32 s{sT1}, s{sT1}, 10")
    e(f"v_add_u32 v{vXW[0]}, s{sT1}, v30")
    e(f"v_add_u32 v{vXW[1]}, 0x10000, v{vXW[0]}")
    e(f"v_and_b32 v30, 31, v{vLane}")
    e(f"v_xor_b32 v30, v30, v26")
    e(f"s_lshl_b32 s{sT1}, s{sTT}, 10")
    for q in range(4):
        e(f"v_xor_b32 v31, {2*q}, v30")
        e(f"v_lshlrev_b32 v31, 4, v31")
        e(f"v_lshl_add_u32 v31, v26, 9, v31")
        e(f"v_add_u32 v31, s{sT1}, v31")
        e(f"v_add_u32 v{vXR[q]}, {q*4096}, v31")
    e(f"s_lshl_b32 s{sT1}, s{sW}, 4")
    e(f"v_add_u32 v{vStat}, s{sT1}, v22")
    e(f"v_lshlrev_b32 v{vStat}, 2, v{vStat}")
    e(f"s_lshl_b32 s{sStat}, s2, 9")
    e(f"s_add_u32 s{sStat}, s{sStat}, {ST_OFF}")
    e(f"s_mov_b32 s{sOnes}, 0x3f803f80")
    e(f"s_mov_b32 s{sLo}, 0x3f80")
    e(f"s_mov_b32 s{sHi}, 0x3f800000")
    e(f"s_mul_i32 s{sHoff}, s{sTTG}, 112")
    e(f"s_lshl_b32 s{sT1}, s{sCOL}, 3")
    e(f"s_add_u32 s{sHoff}, s{sHoff}, s{sT1}")
    e(f"s_lshl_b32 s{sT1}, s{sG}, 1")
    e(f"s_add_u32 s{sHoff}, s{sHoff}, s{sT1}")
    e(f"s_lshl_b32 s{sHoff}, s{sHoff}, 10")
    e(f"s_add_u32 s{sHoff}, s{sHoff}, {H_OFF}")
    e(f"s_lshl_b32 s{sT1}, s{sG}, 7")
    e(f"s_add_u32 s{sT1}, s{sT1}, s{sTTG}")
    e(f"s_lshl_b32 s{sT2}, s{sT1}, 11")
    e(f"s_lshl_b32 s{sT3}, s{sT1}, 12")
    e(f"s_add_u32 s{sT3}, s{sT3}, {KV_OFF}")
    e(f"s_cmp_eq_u32 s{sCOL}, 14")
    e(f"s_cselect_b32 s{sQKoff0}, s{sT2}, s{sT3}")
    e(f"s_mov_b32 s{sQKstep}, {64*4096}")
    e(f"s_cselect_b32 s{sQKstep}, {64*2048}, s{sQKstep}")
    e(f"s_cselect_b32 s{sT1}, 0, 0x3f803f80")
    e(f"s_cselect_b32 s{sT2}, 0, 0x3f80")
    e(f"v_mov_b32 v{vPA6}, s{sT1}")
    e(f"v_mov_b32 v{vPA7}, s{sT2}")
    e(f"s_cmp_eq_u32 s{sKind}, 1")
    e(f"s_cselect_b32 s{sT1}, 0x3f803f80, 0")
    e(f"s_cselect_b32 s{sT2}, 0x3f80, 0")
    e(f"s_cmp_eq_u32 s{sKind}, 2")
    e(f"s_cselect_b32 s{sT1}, 0x3f80, s{sT1}")
    e(f"v_mov_b32 v{vPT6}, s{sT1}")
    e(f"v_mov_b32 v{vPT7}, s{sT2}")
    e(f"s_mov_b32 vcc_lo, -1")
    e(f"s_mov_b32 vcc_hi, 0")
    def dpp_reduce(v):
        e(f"v_add_f32_dpp v{v}, v{v}, v{v} quad_perm:[1,0,3,2] row_mask:0xf bank_mask:0xf")
        e(f"v_add_f32_dpp v{v}, v{v}, v{v} quad_perm:[2,3,0,1] row_mask:0xf bank_mask:0xf")
        e(f"v_add_f32_dpp v{v}, v{v}, v{v} row_half_mirror row_mask:0xf bank_mask:0xf")
    for gi in range(2):
        for q in range(4): e(f"v_mov_b32 v{vAcc[q]}, 0")
        a.vm_wait(f"x{gi}")
        for i in range(28):
            e(f"v_dot2c_f32_bf16 v{vAcc[i%4]}, s{sOnes}, v{RAW+gi*28+i}")
        e(f"v_add_f32 v{vAcc[0]}, v{vAcc[0]}, v{vAcc[1]}")
        e(f"v_add_f32 v{vAcc[2]}, v{vAcc[2]}, v{vAcc[3]}")
        e(f"v_add_f32 v{vNM}, v{vAcc[0]}, v{vAcc[2]}")
        dpp_reduce(vNM)
        e(f"v_mul_f32 v{vNM}, {hexf(-1.0/448)}, v{vNM}")
        for i in range(7):
            r = RAW + gi * 28 + i * 4
            for k in range(4):
                e(f"v_dot2_f32_bf16 v{T0+2*k}, v{r+k}, s{sLo}, v{vNM}")
                e(f"v_dot2_f32_bf16 v{T0+2*k+1}, v{r+k}, s{sHi}, v{vNM}")
            for k in range(4):
                e(f"v_cvt_pk_bf16_f32 v{r+k}, v{T0+2*k}, v{T0+2*k+1}")
            off = gi * 128 + i * 16384
            a.ds_op(f"ds_write_b128 v{vXW[off >> 16]}, v[{r}:{r+3}] offset:{off & 0xffff}", "xw")
    for gi in range(2):
        for q in range(4): e(f"v_mov_b32 v{vAcc[q]}, 0")
        for i in range(28):
            e(f"v_dot2c_f32_bf16 v{vAcc[i%4]}, v{RAW+gi*28+i}, v{RAW+gi*28+i}")
        e(f"v_add_f32 v{vAcc[0]}, v{vAcc[0]}, v{vAcc[1]}")
        e(f"v_add_f32 v{vAcc[2]}, v{vAcc[2]}, v{vAcc[3]}")
        e(f"v_add_f32 v{vNM}, v{vAcc[0]}, v{vAcc[2]}")
        dpp_reduce(vNM)
        e(f"v_mov_b32 v{T0}, {hexf(1e-5)}")
        e(f"v_fmac_f32 v{T0}, {hexf(1.0/448)}, v{vNM}")
        a.vm_op(f"buffer_store_dword v{T0}, v{vStat}, s[32:35], s{sStat} offen offset:{gi*32}", "stat")
        if gi == 0: e(f"s_nop 0")
    a.ds_wait_all()
    a.vm_wait("c1")
    e("s_barrier")
    NT = [2, 2, 1]
    ACC = [AA, AB, AA]
    tw_state = [None, None]
    def wread(G):
        r, s = divmod(G, 28)
        c = r * 7 + s // 4
        base = slot(c) * 16384 + (s % 4) * 2048
        hi, lo = base >> 16, base & 0xffff
        for t in range(NT[r]):
            if tw_state[t] != (r, hi):
                e(f"v_add_u32 v{vTW[t]}, {hex(hi << 16)}, v{vTB[r][t]}")
                tw_state[t] = (r, hi)
            d = WF + (G % 3) * 8 + t * 4
            a.ds_op(f"ds_read_b64_tr_b16 v[{d}:{d+1}], v{vTW[t]} offset:{lo}", f"w{G}")
            a.ds_op(f"ds_read_b64_tr_b16 v[{d+2}:{d+3}], v{vTW[t]} offset:{lo+512}", f"w{G}")
    xr_next = [0]
    def xread(n):
        for _ in range(n):
            s = xr_next[0]
            if s >= 28: return
            xr_next[0] += 1
            if s == 16:
                for q in range(4): e(f"v_add_u32 v{vXR[q]}, 0x10000, v{vXR[q]}")
            off = ((s // 4) * 16384) & 0xffff
            a.ds_op(f"ds_read_b128 v[{X0+4*s}:{X0+4*s+3}], v{vXR[s%4]} offset:{off}", f"x{s}")
    def period_barrier(i):
        if i + 1 <= 20:
            a.vm_wait(f"c{i+1}")
            if i == 1: a.vm_wait("stat")
            e("s_barrier")
            if i == 1:
                e(f"v_and_b32 v{vK}, 31, v{vLane}")
                e(f"v_lshlrev_b32 v{vK}, 2, v{vK}")
                e(f"s_lshl_b32 s{sT1}, s{sTT}, 7")
                e(f"s_add_u32 s{sT1}, s{sT1}, s{sStat}")
                a.vm_op(f"buffer_load_dword v{vK}, v{vK}, s[32:35], s{sT1} offen sc1", "kld")
            while dma_next[0] <= 20:
                c = dma_next[0]
                if c < 10:
                    sl = slot(c)
                    if not all(xr_next[0] > s and a.ds_done(f"x{s}") for s in range(4*sl, 4*sl+4)): break
                elif c - 10 > i - 1: break
                dma(c)
    def kloop(r, extra):
        nslots = 28 * NT[r]
        first = 3
        done = 0
        for s in range(28):
            G = r * 28 + s
            Gn = G + 2
            if Gn < 84:
                if Gn % 4 == 0 and (Gn % 28) % 4 == 0:
                    period_barrier((Gn // 28) * 7 + (Gn % 28) // 4 - 1)
                wread(Gn)
            if r == 0: xread(3)
            a.ds_wait(f"w{G}")
            if r == 0: a.ds_wait(f"x{s}")
            for t in range(NT[r]):
                d = ACC[r] + 16 * t
                w = WF + (G % 3) * 8 + t * 4
                c = "0" if s == 0 else f"v[{d}:{d+15}]"
                e(f"v_mfma_f32_32x32x16_bf16 v[{d}:{d+15}], v[{w}:{w+3}], v[{X0+4*s}:{X0+4*s+3}], {c}")
                k = s * NT[r] + t + 1
                if k > first:
                    tgt = (len(extra) * (k - first) + (nslots - first - 2) - 1) // (nslots - first - 2)
                    while done < min(tgt, len(extra)):
                        extra[done](); done += 1
        while done < len(extra):
            extra[done](); done += 1
    def I(t): return lambda: e(t)
    def consts():
        L = []
        L.append(lambda: a.vm_wait("kld"))
        L.append(I(f"v_rsq_f32 v{vScT}, v{vK}"))
        L.append(I(f"s_cmp_eq_u32 s{sCOL}, 14"))
        L.append(I(f"s_cselect_b32 s{sT1}, {hexf(28**-0.5*LOG2E)}, 1.0"))
        L.append(I(f"s_cmp_eq_u32 s{sKind}, 0"))
        L.append(I(f"s_cselect_b32 s{sT2}, {hexf(28**-0.5*LOG2E)}, 1.0"))
        L.append(I(f"v_mul_f32 v{vC1}, {hexf(-LOG2E)}, v{vScT}"))
        L.append(I(f"v_mul_f32 v{vScA}, s{sT1}, v{vScT}"))
        L.append(I(f"v_mul_f32 v{vScT}, s{sT2}, v{vScT}"))
        return L
    def epiF(acc, rnd):
        Gt, U = acc, acc + 16
        L = []
        for q in range(4):
            t = T0 + (q % 2) * 4
            for k in range(4): L.append(I(f"v_mul_f32 v{t+k}, v{vC1}, v{Gt+4*q+k}"))
            for k in range(4): L.append(I(f"v_exp_f32 v{t+k}, v{t+k}"))
            for k in range(4): L.append(I(f"v_mul_f32 v{Gt+4*q+k}, v{Gt+4*q+k}, v{U+4*q+k}"))
            for k in range(4): L.append(I(f"v_fma_f32 v{t+k}, v{t+k}, v{vK}, v{vK}"))
            for k in range(4): L.append(I(f"v_rcp_f32 v{t+k}, v{t+k}"))
            for k in range(4): L.append(I(f"v_mul_f32 v{Gt+4*q+k}, v{Gt+4*q+k}, v{t+k}"))
            p = U + (q // 2) * 8 + (q % 2) * 2
            for k in range(2): L.append(I(f"v_cvt_pk_bf16_f32 v{p+k}, v{Gt+4*q+2*k}, v{Gt+4*q+2*k+1}"))
            if q % 2 == 1:
                pp = U + (q // 2) * 8
                L.append(lambda pp=pp, q=q: a.vm_op(f"buffer_store_dwordx4 v[{pp}:{pp+3}], v{vSt}, s[32:35], s{sHoff} offen offset:{(q//2)*1024}{ST}", "st"))
        L.append(I(f"s_add_u32 s{sHoff}, s{sHoff}, 4096"))
        return L
    def epiQK(acc, sc, p6, p7, soff, store=True):
        L = []
        P = T0 + 8
        for q in range(4):
            for k in range(4): L.append(I(f"v_mul_f32 v{acc+4*q+k}, v{sc}, v{acc+4*q+k}"))
            for k in range(2): L.append(I(f"v_cvt_pk_bf16_f32 v{P+2*q+k}, v{acc+4*q+2*k}, v{acc+4*q+2*k+1}"))
            if q == 1 and store:
                L.append(lambda: a.vm_op(f"buffer_store_dwordx4 v[{P}:{P+3}], v{vSt}, s[32:35], s{soff} offen{ST}", "st"))
        L.append(I(f"v_cndmask_b32 v{P+6}, v{p6}, v{P+6}, vcc"))
        L.append(I(f"v_cndmask_b32 v{P+7}, v{p7}, v{P+7}, vcc"))
        if store:
            L.append(lambda: a.vm_op(f"buffer_store_dwordx4 v[{P+4}:{P+7}], v{vSt}, s[32:35], s{soff} offen offset:1024{ST}", "st"))
        return L
    xread(4)
    wread(0); wread(1)
    kloop(0, [])
    e(f"s_cmp_ge_u32 s{sCOL}, 14")
    e(f"s_cbranch_scc1 L1_pathq")
    import copy
    saved = (list(a.vm), list(a.lg), list(tw_state), dma_next[0], list(a.hist))
    kloop(1, consts() + epiF(AA, 0))
    kloop(2, epiF(AB, 1))
    e("s_branch L1_tail")
    a.label("L1_pathq")
    a.vm, a.lg = list(saved[0]), list(saved[1]); tw_state[:] = saved[2]; dma_next[0] = saved[3]; a.hist = list(saved[4])
    def qk2(acc, rnd):
        L = epiQK(acc, vScA, vPA6, vPA7, sQKoff0)
        L.append(I(f"s_add_u32 s{sQKoff0}, s{sQKoff0}, s{sQKstep}"))
        L += epiQK(acc + 16, vScA, vPA6, vPA7, sQKoff0)
        if rnd == 0:
            L.append(I(f"s_mul_i32 s{sT3}, s{sQKstep}, 11"))
            L.append(I(f"s_add_u32 s{sQKoff0}, s{sQKoff0}, s{sT3}"))
        return L
    kloop(1, consts() + qk2(AA, 0))
    kloop(2, qk2(AB, 1))
    a.label("L1_tail")
    e("s_nop 11")
    a.lg = []; a.vm = []
    P = T0 + 8
    e(f"s_cmp_eq_u32 s{sKind}, 2")
    e(f"s_cbranch_scc1 L1_tailv")
    for f in epiQK(AA, vScT, vPT6, vPT7, sTailOff): f()
    e("s_endpgm")
    a.label("L1_tailv")
    a.reset_hist()
    for f in epiQK(AA, vScT, vPT6, vPT7, sTailOff, store=False): f()
    e(f"v_and_b32 v{vV1}, 31, v{vLane}")
    e(f"v_lshlrev_b32 v{vV1}, 6, v{vV1}")
    e(f"v_lshrrev_b32 v{vV2}, 5, v{vLane}")
    e(f"v_lshl_add_u32 v{vV1}, v{vV2}, 3, v{vV1}")
    e(f"s_lshl_b32 s{sT1}, s{sW}, 11")
    e(f"v_add_u32 v{vV1}, s{sT1}, v{vV1}")
    for q in range(4):
        a.ds_op(f"ds_write_b64 v{vV1}, v[{P+2*q}:{P+2*q+1}] offset:{16*q}")
    e(f"v_and_b32 v{T0}, 15, v{vLane}")
    e(f"v_lshrrev_b32 v{T0+1}, 2, v{T0}")
    e(f"v_lshl_add_u32 v{T0+1}, v{vV2}, 2, v{T0+1}")
    e(f"v_lshlrev_b32 v{T0+1}, 6, v{T0+1}")
    e(f"v_and_b32 v{T0}, 3, v{T0}")
    e(f"v_lshl_add_u32 v{T0+1}, v{T0}, 3, v{T0+1}")
    e(f"v_and_b32 v{T0}, 16, v{vLane}")
    e(f"v_lshl_add_u32 v{T0+1}, v{T0}, 1, v{T0+1}")
    e(f"v_add_u32 v{vV2}, s{sT1}, v{T0+1}")
    a.ds_wait_all()
    for q in range(4):
        a.ds_op(f"ds_read_b64_tr_b16 v[{AA+2*q}:{AA+2*q+1}], v{vV2} offset:{512*q}")
    a.ds_wait_all()
    a.vm_op(f"buffer_store_dwordx4 v[{AA}:{AA+3}], v{vSt}, s[32:35], s{sTailOff} offen{ST}")
    a.vm_op(f"buffer_store_dwordx4 v[{AA+4}:{AA+7}], v{vSt}, s[32:35], s{sTailOff} offen offset:1024{ST}")
    a.label("L1_end")
    e("s_endpgm")
    return kd(name, 256)
```

```python
from common import *
from gemm64 import *
BIAS = 32.0

def gen_k2(a, opt):
    ST = opt.get("st2", "")
    name = "k2_kernel"
    kernel_head(a, name)
    e = a.e
    vLane, vSt = 1, 2
    sW, sHead, sQB, sT1, sT2, sT3, sKV, sFlag, sIt, sOoff, sJ, sX = 36, 37, 38, 39, 40, 41, 42, 43, 44, 45, 46, 47
    e("s_cmp_ge_u32 s2, 256")
    e("s_cbranch_scc1 L2_end")
    e("s_load_dwordx2 s[4:5], s[0:1], 72")
    e("s_load_dwordx2 s[6:7], s[0:1], 48")
    if opt.get("pf", 1):
        code_prefetch(a, name, "L2_pc", opt.get("pf2_bytes", 16384), 512, 20, 21, 14, "L2_end")
    e(f"v_and_b32 v{vLane}, 63, v0")
    e(f"v_lshrrev_b32 v22, 6, v0")
    e(f"v_readfirstlane_b32 s{sW}, v22")
    e(f"v_lshlrev_b32 v{vSt}, 4, v{vLane}")
    e(f"s_and_b32 s{sX}, s2, 7")
    e(f"s_lshr_b32 s{sJ}, s2, 3")
    e("s_waitcnt lgkmcnt(0)")
    srd(a, 16, 4, WS_USED)
    e(f"s_cmp_ge_u32 s{sW}, 4")
    e(f"s_cbranch_scc1 L2_gemm")
    Q, O, S, P, KV, T = 16, 48, 112, 144, 160, 224
    e(f"s_setprio {opt.get('attprio', 1)}")
    e(f"s_lshl_b32 s{sHead}, s{sX}, 1")
    e(f"s_and_b32 s{sT1}, s{sJ}, 1")
    e(f"s_add_u32 s{sHead}, s{sHead}, s{sT1}")
    e(f"s_lshr_b32 s{sQB}, s{sJ}, 1")
    e(f"s_lshl_b32 s{sKV}, s{sHead}, 18")
    e(f"s_add_u32 s{sKV}, s{sKV}, {KV_OFF}")
    a.vm_op(f"buffer_load_dwordx4 v[{T}:{T+3}], v{vSt}, s[16:19], s{sKV} offen", "k0")
    a.vm_op(f"buffer_load_dwordx4 v[{T+4}:{T+7}], v{vSt}, s[16:19], s{sKV} offen offset:1024", "k0")
    e(f"s_lshl_b32 s{sT1}, s{sHead}, 6")
    e(f"s_lshl_b32 s{sT2}, s{sQB}, 2")
    e(f"s_add_u32 s{sT1}, s{sT1}, s{sT2}")
    for jj in range(4):
        e(f"s_add_u32 s{sT2}, s{sW}, {jj}")
        e(f"s_and_b32 s{sT2}, s{sT2}, 3")
        e(f"s_add_u32 s{sT2}, s{sT2}, s{sT1}")
        e(f"s_lshl_b32 s{sT2}, s{sT2}, 11")
        a.vm_op(f"buffer_load_dwordx4 v[{Q+8*jj}:{Q+8*jj+3}], v{vSt}, s[16:19], s{sT2} offen", f"q{jj}")
        a.vm_op(f"buffer_load_dwordx4 v[{Q+8*jj+4}:{Q+8*jj+7}], v{vSt}, s[16:19], s{sT2} offen offset:1024", f"q{jj}")
    e(f"s_lshl_b32 s{sT1}, s{sW}, 16")
    e(f"s_add_u32 s{sT3}, s{sKV}, s{sT1}")
    def kvload(buf, tag):
        for k in range(4):
            r = KV + 16 * buf + 4 * k
            a.vm_op(f"buffer_load_dwordx4 v[{r}:{r+3}], v{vSt}, s[16:19], s{sT3} offen offset:{1024*k}", tag)
    for i in range(3):
        kvload(i, f"t{i}")
        e(f"s_add_u32 s{sT3}, s{sT3}, 4096")
    for r in range(64): e(f"v_mov_b32 v{O+r}, 0")
    e(f"s_mov_b32 vcc_lo, -1")
    e(f"s_mov_b32 vcc_hi, 0")
    e(f"s_mov_b32 s{sFlag}, 0")
    e(f"s_lshl_b32 s{sOoff}, s{sQB}, 2")
    e(f"s_add_u32 s{sOoff}, s{sOoff}, s{sW}")
    e(f"s_lshl_b32 s{sOoff}, s{sOoff}, 4")
    e(f"s_add_u32 s{sOoff}, s{sOoff}, s{sHead}")
    e(f"s_lshl_b32 s{sOoff}, s{sOoff}, 11")
    e(f"s_add_u32 s{sOoff}, s{sOoff}, {O_OFF}")
    SB = [S, S + 16, P, KV + 48]
    for jj in range(4):
        a.vm_wait(f"q{jj}")
        e(f"v_mfma_f32_32x32x16_bf16 v[{SB[jj]}:{SB[jj]+15}], v[{T}:{T+3}], v[{Q+8*jj}:{Q+8*jj+3}], 0")
        e(f"v_mfma_f32_32x32x16_bf16 v[{SB[jj]}:{SB[jj]+15}], v[{T+4}:{T+7}], v[{Q+8*jj+4}:{Q+8*jj+7}], v[{SB[jj]}:{SB[jj]+15}]")
    M = T + 8
    def patch(jjs, bias, M=M):
        U = M + 4
        for jj in jjs: e(f"v_mov_b32 v{U+jj}, v{M+jj}")
        for jj in jjs: e(f"v_permlane32_swap_b32 v{M+jj}, v{U+jj}")
        for jj in jjs: e(f"v_max_f32 v{M+jj}, v{M+jj}, v{U+jj}")
        for jj in jjs: e(f"v_sub_f32 v{M+jj}, {hexf(-bias) if bias else 0}, v{M+jj}")
        for jj in jjs: e(f"v_cvt_pk_bf16_f32 v{U+jj}, v{M+jj}, v{M+jj}")
        for jj in jjs: e(f"v_and_b32 v{U+jj}, 0xffff0000, v{U+jj}")
        for jj in jjs: e(f"v_sub_f32 v{U+jj}, v{M+jj}, v{U+jj}")
        for jj in jjs: e(f"v_cvt_pk_bf16_f32 v{M+jj}, v{M+jj}, v{U+jj}")
        for jj in jjs: e(f"v_cndmask_b32 v{Q+8*jj+6}, v{M+jj}, v{Q+8*jj+6}, vcc")
        for jj in jjs: e(f"v_and_b32 v{M+jj}, 0xffff0000, v{M+jj}")
        for jj in jjs: e(f"v_sub_f32 v{U+jj}, v{U+jj}, v{M+jj}")
        for jj in jjs: e(f"v_cvt_pk_bf16_f32 v{U+jj}, v{U+jj}, 0")
        for jj in jjs: e(f"v_cndmask_b32 v{Q+8*jj+7}, v{U+jj}, v{Q+8*jj+7}, vcc")
    for jj in range(4): e(f"v_max3_f32 v{M+jj}, v{SB[jj]}, v{SB[jj]+1}, v{SB[jj]+2}")
    for k in range(6):
        for jj in range(4): e(f"v_max3_f32 v{M+jj}, v{M+jj}, v{SB[jj]+3+2*k}, v{SB[jj]+4+2*k}")
    for jj in range(4): e(f"v_max_f32 v{M+jj}, v{M+jj}, v{SB[jj]+15}")
    patch(range(4), BIAS)
    for r in range(8): e(f"v_mov_b32 v{P+8+r}, 0")
    for r in range(8): e(f"v_mov_b32 v{KV+48+8+r}, 0")
    a.vm_wait("t0")
    def qk(n, half):
        i, j = (n // 4) % 4, n % 4
        d = S + 16 * (n % 2); k = KV + 16 * i + 4 * half; q = Q + 8 * j + 4 * half
        c = "0" if half == 0 else f"v[{d}:{d+15}]"
        e(f"v_mfma_f32_32x32x16_bf16 v[{d}:{d+15}], v[{k}:{k+3}], v[{q}:{q+3}], {c}")
    def pv(n, half):
        i, j = (n // 4) % 4, n % 4
        d = O + 16 * j; v = KV + 16 * i + 8 + 4 * half; p = P + 8 * (n % 2) + 4 * half
        e(f"v_mfma_f32_32x32x16_bf16 v[{d}:{d+15}], v[{v}:{v+3}], v[{p}:{p+3}], v[{d}:{d+15}]")
    def sm(n, g):
        s = S + 16 * (n % 2) + 4 * g; p = P + 8 * (n % 2) + 2 * g
        for k in range(4): e(f"v_exp_f32 v{s+k}, v{s+k}")
        e(f"v_cvt_pk_bf16_f32 v{p}, v{s}, v{s+1}")
        e(f"v_cvt_pk_bf16_f32 v{p+1}, v{s+2}, v{s+3}")
    qk(0, 0); qk(0, 1)
    e(f"s_mov_b32 s{sIt}, 13")
    e("s_nop 7")
    a.raw(".p2align 6")
    a.label("L2_loop")
    start = len(a.lines)
    for n in range(16, 32):
        i, j = (n // 4) % 4, n % 4
        if j == 3: e("s_waitcnt vmcnt(8)")
        qk(n + 1, 0); sm(n, 0)
        qk(n + 1, 1); sm(n, 1)
        pv(n - 1, 0); sm(n, 2)
        pv(n - 1, 1)
        if j == 0:
            e(f"s_cmp_gt_i32 s{sIt}, 0")
            e(f"s_cselect_b32 s{sT2}, s{sT3}, {WS_USED}")
            for k in range(4):
                r = KV + 16 * ((i + 3) % 4) + 4 * k
                e(f"buffer_load_dwordx4 v[{r}:{r+3}], v{vSt}, s[16:19], s{sT2} offen offset:{1024*k}")
            e(f"s_add_u32 s{sT3}, s{sT3}, 4096")
            e(f"s_sub_u32 s{sIt}, s{sIt}, 1")
        sm(n, 3)
    e(f"s_cmp_gt_i32 s{sIt}, -3")
    e("s_cbranch_scc1 L2_loop")
    check_loop(a.lines[start:])
    pv(31, 0); pv(31, 1)
    a.vm = []
    e(f"s_setprio 0")
    for jj in range(1, 4):
        e(f"s_add_u32 s{sT1}, s{sW}, {jj}")
        e(f"s_and_b32 s{sT1}, s{sT1}, 3")
        e(f"s_mul_i32 s{sT1}, s{sT1}, 12288")
        e(f"v_add_u32 v{T+jj}, s{sT1}, v{vSt}")
        for q in range(4):
            r = O + 16 * jj + 4 * q
            a.ds_op(f"ds_write_b128 v{T+jj}, v[{r}:{r+3}] offset:{(jj-1)*4096 + q*1024}")
    e(f"s_mul_i32 s{sT1}, s{sW}, 12288")
    e(f"v_add_u32 v{T}, s{sT1}, v{vSt}")
    a.ds_wait_all()
    e("s_barrier")
    for p in range(3):
        for q in range(4):
            r = O + 16 + 16 * p + 4 * q
            a.ds_op(f"ds_read_b128 v[{r}:{r+3}], v{T} offset:{p*4096 + q*1024}", f"p{p}")
    for p in range(3):
        a.ds_wait(f"p{p}")
        for k in range(16): e(f"v_add_f32 v{O+k}, v{O+k}, v{O+16+16*p+k}")
    a.label("L2_norm")
    e(f"v_mov_b32 v{T}, v{O+12}")
    e(f"v_mov_b32 v{T+1}, v{O+12}")
    e(f"v_permlane32_swap_b32 v{T}, v{T+1}")
    e(f"v_rcp_f32 v{T}, v{T+1}")
    e(f"v_mov_b32 v{T+2}, 0")
    for k in range(16): e(f"v_mul_f32 v{O+k}, v{O+k}, v{T}")
    for k in range(16): e(f"v_fmac_f32 v{T+2}, 0, v{O+k}")
    for k in range(8): e(f"v_cvt_pk_bf16_f32 v{P+k}, v{O+2*k}, v{O+2*k+1}")
    e(f"v_cndmask_b32 v{P+6}, 0, v{P+6}, vcc")
    e(f"v_cndmask_b32 v{P+7}, 0, v{P+7}, vcc")
    e(f"v_cmp_u_f32 s[48:49], v{T+2}, v{T+2}")
    e(f"v_mov_b32 v{T+3}, {hexf(2.0**-(BIAS+8))}")
    e(f"v_cmp_lt_f32 s[50:51], v{T+1}, v{T+3}")
    e(f"s_or_b64 s[48:49], s[48:49], s[50:51]")
    e(f"s_cmp_eq_u64 s[48:49], 0")
    e(f"s_cselect_b32 s{sT1}, 1, s{sFlag}")
    e(f"s_cmp_eq_u32 s{sT1}, 0")
    e(f"s_cbranch_scc1 L2_slow")
    e(f"buffer_store_dwordx4 v[{P}:{P+3}], v{vSt}, s[16:19], s{sOoff} offen{ST}")
    e(f"buffer_store_dwordx4 v[{P+4}:{P+7}], v{vSt}, s[16:19], s{sOoff} offen offset:1024{ST}")
    e("s_endpgm")
    a.label("L2_slow")
    a.reset_hist()
    e(f"s_mov_b32 s{sFlag}, 1")
    e(f"v_cndmask_b32 v{Q+6}, 0, v{Q+6}, vcc")
    e(f"v_cndmask_b32 v{Q+7}, 0, v{Q+7}, vcc")
    e(f"v_mov_b32 v{M}, 0xff800000")
    e(f"s_mov_b32 s{sT3}, s{sKV}")
    e(f"s_mov_b32 s{sIt}, 64")
    a.label("L2_s1")
    start = len(a.lines)
    e(f"buffer_load_dwordx4 v[{KV}:{KV+3}], v{vSt}, s[16:19], s{sT3} offen")
    e(f"buffer_load_dwordx4 v[{KV+4}:{KV+7}], v{vSt}, s[16:19], s{sT3} offen offset:1024")
    e("s_waitcnt vmcnt(0)")
    e(f"v_mfma_f32_32x32x16_bf16 v[{S}:{S+15}], v[{KV}:{KV+3}], v[{Q}:{Q+3}], 0")
    e(f"v_mfma_f32_32x32x16_bf16 v[{S}:{S+15}], v[{KV+4}:{KV+7}], v[{Q+4}:{Q+7}], v[{S}:{S+15}]")
    for k in range(8): e(f"v_max3_f32 v{M}, v{M}, v{S+2*k}, v{S+2*k+1}")
    e(f"s_add_u32 s{sT3}, s{sT3}, 4096")
    e(f"s_sub_u32 s{sIt}, s{sIt}, 1")
    e(f"s_cmp_lg_u32 s{sIt}, 0")
    e("s_cbranch_scc1 L2_s1")
    check_loop(a.lines[start:])
    patch([0], 0.0)
    for r in range(16): e(f"v_mov_b32 v{O+r}, 0")
    e(f"s_mov_b32 s{sT3}, s{sKV}")
    e(f"s_mov_b32 s{sIt}, 64")
    a.label("L2_s2")
    start = len(a.lines)
    for k in range(4):
        e(f"buffer_load_dwordx4 v[{KV+4*k}:{KV+4*k+3}], v{vSt}, s[16:19], s{sT3} offen offset:{1024*k}")
    e("s_waitcnt vmcnt(0)")
    qk(0, 0); qk(0, 1)
    for g in range(4): sm(0, g)
    pv(0, 0); pv(0, 1)
    e(f"s_add_u32 s{sT3}, s{sT3}, 4096")
    e(f"s_sub_u32 s{sIt}, s{sIt}, 1")
    e(f"s_cmp_lg_u32 s{sIt}, 0")
    e("s_nop 11")
    e("s_cbranch_scc1 L2_s2")
    check_loop(a.lines[start:])
    e("s_branch L2_norm")
    a.label("L2_gemm")
    a.reset_hist(); a.vm = ["pf"]; a.lg = []
    GL = 49152
    ACC, HR, WFR, T = 16, 80, 136, 152
    vD, vA0, vA1 = 3, 4, 5
    sWq, sTB, sCB, sH0, sH1, sWo, sLB = 48, 49, 50, 51, 52, 53, 54
    e(f"s_cmp_ge_u32 s{sJ}, 28")
    e(f"s_cbranch_scc1 L2_end")
    srd(a, 20, 6, W2_BYTES)
    e(f"s_sub_u32 s{sWq}, s{sW}, 4")
    e(f"s_mul_i32 s{sT1}, s{sJ}, 37")
    e(f"s_lshr_b32 s{sT1}, s{sT1}, 8")
    e(f"s_mul_i32 s{sT2}, s{sT1}, 7")
    e(f"s_sub_u32 s{sCB}, s{sJ}, s{sT2}")
    e(f"s_lshl_b32 s{sTB}, s{sX}, 2")
    e(f"s_add_u32 s{sTB}, s{sTB}, s{sT1}")
    e(f"s_mul_i32 s{sH0}, s{sTB}, 224")
    e(f"s_mul_i32 s{sT1}, s{sWq}, 28")
    e(f"s_add_u32 s{sH0}, s{sH0}, s{sT1}")
    e(f"s_lshl_b32 s{sH0}, s{sH0}, 10")
    e(f"s_add_u32 s{sH0}, s{sH0}, {H_OFF}")
    e(f"s_add_u32 s{sH1}, s{sH0}, {112*1024}")
    e(f"s_mul_i32 s{sWo}, s{sWq}, {448*896}")
    e(f"s_lshl_b32 s{sT1}, s{sCB}, 7")
    e(f"s_add_u32 s{sWo}, s{sWo}, s{sT1}")
    e(f"s_lshl_b32 s{sLB}, s{sWq}, 14")
    e(f"s_add_u32 s{sLB}, s{sLB}, {GL}")
    dma_voff(a, vLane, vD, T, T + 1)
    def issue(s):
        st = s % 7
        e(f"s_add_u32 m0, s{sLB}, {st*2048}")
        a.vm_op(f"buffer_load_dwordx4 v{vD}, s[20:23], s{sWo} offen lds", f"s{s}")
        e(f"s_add_u32 s{sT1}, s{sWo}, {8*896}")
        e(f"s_add_u32 m0, s{sLB}, {st*2048+1024}")
        a.vm_op(f"buffer_load_dwordx4 v{vD}, s[20:23], s{sT1} offen lds", f"s{s}")
        e(f"s_add_u32 s{sWo}, s{sWo}, {16*896}")
        off = (s % 4) * 1024
        a.vm_op(f"buffer_load_dwordx4 v[{HR+8*st}:{HR+8*st+3}], v{vSt}, s[16:19], s{sH0} offen offset:{off}", f"s{s}")
        a.vm_op(f"buffer_load_dwordx4 v[{HR+8*st+4}:{HR+8*st+7}], v{vSt}, s[16:19], s{sH1} offen offset:{off}", f"s{s}")
        if s % 4 == 3:
            e(f"s_add_u32 s{sH0}, s{sH0}, 4096")
            e(f"s_add_u32 s{sH1}, s{sH1}, 4096")
    for s in range(7): issue(s)
    tr_addr(a, vLane, vA0, vA1, T, T + 1, T + 2, sLB)
    def wr(s):
        a.vm_wait(f"s{s}")
        for ct in range(2):
            d = WFR + (s % 2) * 8 + ct * 4
            ad = vA0 if ct == 0 else vA1
            a.ds_op(f"ds_read_b64_tr_b16 v[{d}:{d+1}], v{ad} offset:{(s%7)*2048}", f"w{s}")
            a.ds_op(f"ds_read_b64_tr_b16 v[{d+2}:{d+3}], v{ad} offset:{(s%7)*2048+1024}", f"w{s}")
    wr(0)
    for s in range(28):
        if s + 1 < 28: wr(s + 1)
        a.ds_wait(f"w{s}")
        for ct in range(2):
            for tt in range(2):
                d = ACC + (2*ct+tt) * 16; w = WFR + (s % 2) * 8 + ct * 4; h = HR + 8 * (s % 7) + 4 * tt
                c = "0" if s == 0 else f"v[{d}:{d+15}]"
                e(f"v_mfma_f32_32x32x16_bf16 v[{d}:{d+15}], v[{w}:{w+3}], v[{h}:{h+3}], {c}")
        if s + 7 < 28: issue(s + 7)
    write_partials(a, vLane, ACC, sLB, T, T + 1)
    read_reduce(a, vLane, sWq, GL, ACC, T + 2, T + 3, sT1)
    e(f"v_lshrrev_b32 v{T+4}, 3, v{vLane}")
    e(f"v_mul_u32_u24 v{T+4}, 896, v{T+4}")
    e(f"v_and_b32 v{T+5}, 7, v{vLane}")
    e(f"v_lshl_add_u32 v{T+4}, v{T+5}, 4, v{T+4}")
    e(f"s_lshl_b32 s{sT1}, s{sTB}, 2")
    e(f"s_add_u32 s{sT1}, s{sT1}, s{sWq}")
    e(f"s_mul_i32 s{sT1}, s{sT1}, {16*896}")
    e(f"s_lshl_b32 s{sT2}, s{sCB}, 7")
    e(f"s_add_u32 s{sT1}, s{sT1}, s{sT2}")
    e(f"s_add_u32 s{sT1}, s{sT1}, {G_OFF}")
    e(f"s_add_u32 s{sT2}, s{sT1}, {8*896}")
    a.ds_wait_all()
    e("s_barrier")
    read_reduce2(a, ACC, T + 2, T + 3)
    U = ACC + 16
    for k in range(16): e(f"v_mul_f32 v{U+k}, {hexf(-LOG2E)}, v{ACC+k}")
    for k in range(16): e(f"v_exp_f32 v{U+k}, v{U+k}")
    for k in range(16): e(f"v_add_f32 v{U+k}, 1.0, v{U+k}")
    for k in range(16): e(f"v_rcp_f32 v{U+k}, v{U+k}")
    for k in range(16): e(f"v_mul_f32 v{ACC+k}, v{ACC+k}, v{U+k}")
    for k in range(8): e(f"v_cvt_pk_bf16_f32 v{U+k}, v{ACC+2*k}, v{ACC+2*k+1}")
    e(f"buffer_store_dwordx4 v[{U}:{U+3}], v{T+4}, s[16:19], s{sT1} offen{ST}")
    e(f"buffer_store_dwordx4 v[{U+4}:{U+7}], v{T+4}, s[16:19], s{sT2} offen{ST}")
    a.label("L2_end")
    e("s_endpgm")
    return kd(name, 240)
```

```python
from common import *
from gemm64 import *

def gen_k3(a, opt):
    name = "k3_kernel"
    kernel_head(a, name)
    e = a.e
    vLane, vSt, vD, vA0, vA1, vIO = 1, 2, 3, 4, 5, 6
    ACC, OF, WFR, XG, T = 16, 80, 144, 160, 176
    sWq, sX, sJ, sTB, sCB, sT1, sT2, sLB, sO0, sO1, sWo, sI0, sI1 = 36, 37, 38, 39, 40, 41, 42, 43, 44, 45, 46, 47, 48
    e("s_cmp_ge_u32 s2, 224")
    e("s_cbranch_scc1 L3_end")
    e("s_load_dwordx2 s[4:5], s[0:1], 72")
    e("s_load_dwordx2 s[6:7], s[0:1], 16")
    e("s_load_dwordx2 s[8:9], s[0:1], 0")
    e("s_load_dwordx2 s[10:11], s[0:1], 56")
    if opt.get("pf", 1):
        code_prefetch(a, name, "L3_pc", opt.get("pf3_bytes", 4096), 256, 20, 21, 14)
    e(f"v_and_b32 v{vLane}, 63, v0")
    e(f"v_lshrrev_b32 v22, 6, v0")
    e(f"v_readfirstlane_b32 s{sWq}, v22")
    e(f"v_lshlrev_b32 v{vSt}, 4, v{vLane}")
    e(f"s_and_b32 s{sX}, s2, 7")
    e(f"s_lshr_b32 s{sJ}, s2, 3")
    e(f"s_mul_i32 s{sT1}, s{sJ}, 37")
    e(f"s_lshr_b32 s{sT1}, s{sT1}, 8")
    e(f"s_mul_i32 s{sT2}, s{sT1}, 7")
    e(f"s_sub_u32 s{sCB}, s{sJ}, s{sT2}")
    e(f"s_lshl_b32 s{sTB}, s{sX}, 2")
    e(f"s_add_u32 s{sTB}, s{sTB}, s{sT1}")
    e(f"s_lshl_b32 s{sO0}, s{sTB}, 16")
    e(f"s_lshl_b32 s{sT1}, s{sWq}, 13")
    e(f"s_add_u32 s{sO0}, s{sO0}, s{sT1}")
    e(f"s_add_u32 s{sO0}, s{sO0}, {O_OFF}")
    e(f"s_add_u32 s{sO1}, s{sO0}, 32768")
    e(f"s_mul_i32 s{sWo}, s{sWq}, {112*896}")
    e(f"s_lshl_b32 s{sT1}, s{sCB}, 7")
    e(f"s_add_u32 s{sWo}, s{sWo}, s{sT1}")
    e(f"s_lshl_b32 s{sLB}, s{sWq}, 14")
    dma_voff(a, vLane, vD, T, T + 1)
    e(f"v_lshrrev_b32 v{T}, 3, v{vLane}")
    e(f"v_mul_u32_u24 v{T}, 896, v{T}")
    e(f"v_and_b32 v{T+1}, 7, v{vLane}")
    e(f"v_lshl_add_u32 v{vIO}, v{T+1}, 4, v{T}")
    e(f"s_lshl_b32 s{sI0}, s{sTB}, 2")
    e(f"s_add_u32 s{sI0}, s{sI0}, s{sWq}")
    e(f"s_mul_i32 s{sI0}, s{sI0}, {16*896}")
    e(f"s_lshl_b32 s{sT2}, s{sCB}, 7")
    e(f"s_add_u32 s{sI0}, s{sI0}, s{sT2}")
    e(f"s_add_u32 s{sI1}, s{sI0}, {8*896}")
    e("s_waitcnt lgkmcnt(0)")
    srd(a, 16, 4, WS_USED)
    srd(a, 20, 6, WO_BYTES)
    def dma(i):
        e(f"s_add_u32 m0, s{sLB}, {i*1024}")
        a.vm_op(f"buffer_load_dwordx4 v{vD}, s[20:23], s{sWo} offen lds", f"d{i}")
        e(f"s_add_u32 s{sWo}, s{sWo}, {8*896}")
    nd = 0
    for hh in range(4):
        need = (28 * hh + 32 + 7) // 8
        while nd < need: dma(nd); nd += 1
        for ks in range(2):
            s = 2 * hh + ks
            if s == 4:
                e(f"s_add_u32 s{sO0}, s{sO0}, 4096")
                e(f"s_add_u32 s{sO1}, s{sO1}, 4096")
            a.vm_op(f"buffer_load_dwordx4 v[{OF+8*s}:{OF+8*s+3}], v{vSt}, s[16:19], s{sO0} offen offset:{(s%4)*1024}", f"s{s}")
            a.vm_op(f"buffer_load_dwordx4 v[{OF+8*s+4}:{OF+8*s+7}], v{vSt}, s[16:19], s{sO1} offen offset:{(s%4)*1024}", f"s{s}")
    srd(a, 24, 8, X_BYTES)
    srd(a, 28, 10, X_BYTES)
    a.vm_op(f"buffer_load_dwordx4 v[{XG}:{XG+3}], v{vIO}, s[24:27], s{sI0} offen", "xg")
    a.vm_op(f"buffer_load_dwordx4 v[{XG+4}:{XG+7}], v{vIO}, s[24:27], s{sI1} offen", "xg")
    e(f"s_add_u32 s{sT1}, s{sI0}, {G_OFF}")
    e(f"s_add_u32 s{sT2}, s{sI1}, {G_OFF}")
    a.vm_op(f"buffer_load_dwordx4 v[{XG+8}:{XG+11}], v{vIO}, s[16:19], s{sT1} offen", "xg")
    a.vm_op(f"buffer_load_dwordx4 v[{XG+12}:{XG+15}], v{vIO}, s[16:19], s{sT2} offen", "xg")
    tr_addr(a, vLane, vA0, vA1, T, T + 1, T + 2, sLB)
    def wr(s):
        a.vm_wait(f"s{s}")
        off = (28 * (s // 2) + 16 * (s % 2)) * 128
        for ct in range(2):
            d = WFR + (s % 2) * 8 + ct * 4
            ad = vA0 if ct == 0 else vA1
            a.ds_op(f"ds_read_b64_tr_b16 v[{d}:{d+1}], v{ad} offset:{off}", f"w{s}")
            a.ds_op(f"ds_read_b64_tr_b16 v[{d+2}:{d+3}], v{ad} offset:{off+1024}", f"w{s}")
    wr(0)
    for s in range(8):
        if s + 1 < 8: wr(s + 1)
        a.ds_wait(f"w{s}")
        for ct in range(2):
            for tt in range(2):
                d = ACC + (2*ct+tt) * 16; w = WFR + (s % 2) * 8 + ct * 4; h = OF + 8 * s + 4 * tt
                c = "0" if s == 0 else f"v[{d}:{d+15}]"
                e(f"v_mfma_f32_32x32x16_bf16 v[{d}:{d+15}], v[{w}:{w+3}], v[{h}:{h+3}], {c}")
    write_partials(a, vLane, ACC, sLB, T, T + 1)
    read_reduce(a, vLane, sWq, 0, ACC, T + 2, T + 3, sT1)
    a.vm_wait("xg")
    XF, GF = 80, 96
    for k in range(8):
        e(f"v_lshlrev_b32 v{XF+2*k}, 16, v{XG+k}")
        e(f"v_and_b32 v{XF+2*k+1}, 0xffff0000, v{XG+k}")
        e(f"v_lshlrev_b32 v{GF+2*k}, 16, v{XG+8+k}")
        e(f"v_and_b32 v{GF+2*k+1}, 0xffff0000, v{XG+8+k}")
    a.ds_wait_all()
    e("s_barrier")
    read_reduce2(a, ACC, T + 2, T + 3)
    for k in range(16): e(f"v_fma_f32 v{ACC+k}, v{ACC+k}, v{GF+k}, v{XF+k}")
    U = ACC + 16
    for k in range(8): e(f"v_cvt_pk_bf16_f32 v{U+k}, v{ACC+2*k}, v{ACC+2*k+1}")
    e(f"buffer_store_dwordx4 v[{U}:{U+3}], v{vIO}, s[28:31], s{sI0} offen")
    e(f"buffer_store_dwordx4 v[{U+4}:{U+7}], v{vIO}, s[28:31], s{sI1} offen")
    a.label("L3_end")
    e("s_endpgm")
    return kd(name, 184)
```

```python
import sys, json
from common import *
from k1 import gen_k1
from k2 import gen_k2
from k3 import gen_k3
def build(opt):
    a = Asm()
    a.raw("; @launch kernel=k1_kernel grid=(256,1,1) block=(512,1,1) lds=163840")
    a.raw("; @launch kernel=k2_kernel grid=(256,1,1) block=(512,1,1) lds=114688")
    a.raw("; @launch kernel=k3_kernel grid=(224,1,1) block=(256,1,1) lds=65536")
    a.raw('.amdgcn_target "amdgcn-amd-amdhsa--gfx950"')
    a.raw(".text")
    kds = []
    for g in (gen_k1, gen_k2, gen_k3):
        a.vm = []; a.lg = []
        kds.append(g(a, opt))
    a.raw("L_code_end:")
    a.raw(".fill 64, 4, 0xbf800000")
    a.raw("    s_endpgm")
    a.raw('.section .rodata,"a"')
    for k in kds: a.raw(k)
    return a
if __name__ == "__main__":
    opt = json.loads(sys.argv[2]) if len(sys.argv) > 2 else {}
    a = build(opt)
    open(sys.argv[1], "w").write(a.text())
    print("nops inserted:", a.nops, "lines:", len(a.lines))
```

```python
import re

def vr(b, n=1):
    return f"v{b}" if n == 1 else f"v[{b}:{b+n-1}]"
def sr(b, n=1):
    return f"s{b}" if n == 1 else f"s[{b}:{b+n-1}]"

_REG = re.compile(r"\b([vsa])(\d+)\b|\b([vsa])\[(\d+):(\d+)\]|\b(vcc|exec|m0|scc)\b")
def regs_of(op):
    out = set()
    for m in _REG.finditer(op):
        if m.group(1): out.add((m.group(1), int(m.group(2))))
        elif m.group(3):
            for i in range(int(m.group(4)), int(m.group(5)) + 1): out.add((m.group(3), i))
        else: out.add((m.group(6), 0))
    return out

TRANS = ("v_exp_f32", "v_log_f32", "v_rcp_f32", "v_rsq_f32", "v_sqrt_f32", "v_sin_f32", "v_cos_f32")

class Ins:
    __slots__ = ("text", "op", "dst", "src", "kind", "srcC", "srcAB", "states", "passes")
    def __init__(self, text):
        self.text = text
        t = text.split(";")[0].strip()
        parts = t.split(None, 1)
        self.op = parts[0]
        ops = []
        if len(parts) > 1:
            cur = ""; depth = 0
            for ch in parts[1]:
                if ch == "[": depth += 1
                if ch == "]": depth -= 1
                if ch == "," and depth == 0: ops.append(cur.strip()); cur = ""
                else: cur += ch
            ops.append(cur.strip())
        op = self.op
        self.srcC = set(); self.srcAB = set(); self.states = 1; self.passes = 0
        self.dst = set(); self.src = set()
        if op == "s_nop":
            self.kind = "nop"; self.states = int(ops[0], 0) + 1
        elif op.startswith("v_mfma"):
            self.kind = "mfma"
            self.passes = 8 if "32x32" in op else 4
            self.dst = regs_of(ops[0]); self.srcAB = regs_of(ops[1]) | regs_of(ops[2]); self.srcC = regs_of(ops[3])
            self.src = self.srcAB | self.srcC
        elif op.startswith("v_"):
            self.kind = "valu"
            if op.startswith("v_cmp"):
                self.dst = regs_of(ops[0]); self.src = set().union(*[regs_of(o) for o in ops[1:]])
            elif op.startswith("v_permlane32_swap") or op.startswith("v_permlane16_swap"):
                self.dst = regs_of(ops[0]) | regs_of(ops[1]); self.src = set(self.dst)
            elif op.startswith("v_readfirstlane") or op.startswith("v_readlane"):
                self.dst = regs_of(ops[0]); self.src = set().union(*[regs_of(o) for o in ops[1:]])
            else:
                self.dst = regs_of(ops[0]); self.src = set().union(*[regs_of(o) for o in ops[1:]]) if len(ops) > 1 else set()
                if op.startswith(("v_fmac", "v_dot2c", "v_mac")) or "_dpp" in op or "sdwa" in op: self.src |= self.dst
                if op.startswith(("v_add_co", "v_sub_co", "v_addc_co")):
                    self.dst |= regs_of(ops[1]);
                if op.startswith("v_cndmask") and len(ops) == 3: self.src.add(("vcc", 0))
        elif op.startswith(("buffer_", "global_", "flat_")):
            self.kind = "vmem"
            allr = set().union(*[regs_of(o) for o in ops]) if ops else set()
            if "load" in op and " lds" not in (" " + t):
                self.dst = regs_of(ops[0]); self.src = set().union(*[regs_of(o) for o in ops[1:]])
            elif "atomic" in op and " sc0" in t:
                self.dst = regs_of(ops[0]); self.src = allr
            else:
                self.src = allr
                if " lds" in (" " + t): self.src.add(("m0", 0))
        elif op.startswith("ds_"):
            self.kind = "ds"
            if op.startswith(("ds_read", "ds_bpermute", "ds_permute", "ds_swizzle")) or "_rtn" in op:
                self.dst = regs_of(ops[0]); self.src = set().union(*[regs_of(o) for o in ops[1:]])
            else:
                self.src = set().union(*[regs_of(o) for o in ops])
        elif op.startswith("s_"):
            self.kind = "salu"
            if op.startswith(("s_cmp", "s_cbranch", "s_branch", "s_waitcnt", "s_barrier", "s_endpgm", "s_setprio", "s_sleep", "s_bitcmp")):
                self.src = set().union(*[regs_of(o) for o in ops]) if ops else set()
            else:
                self.dst = regs_of(ops[0]) if ops else set()
                self.src = set().union(*[regs_of(o) for o in ops[1:]]) if len(ops) > 1 else set()
                if "saveexec" in op: self.dst.add(("exec", 0))
        else:
            self.kind = "other"
    def is_trans(self): return self.op.startswith(TRANS)
    def is_dot(self): return self.op.startswith("v_dot")
    def is_dpp(self): return "_dpp" in self.op
    def is_perml(self): return self.op.startswith("v_permlane")
    def is_rdlane(self): return self.op.startswith(("v_readfirstlane", "v_readlane"))
    def wide_store(self):
        return self.kind == "vmem" and "store" in self.op and ("x4" in self.op or "x3" in self.op)

def need_states(p, c):
    n = 0
    vd = {r for r in p.dst if r[0] in "va"}
    sd = {r for r in p.dst if r[0] in ("s", "vcc")}
    if p.kind == "valu":
        if c.kind == "mfma" and vd & c.src: n = max(n, 3 if p.is_dot() else 2)
        if c.kind == "valu":
            if p.is_trans() and not c.is_trans() and vd & c.src: n = max(n, 1)
            if p.is_trans() and c.is_trans() and vd & c.src: n = max(n, 1)
            if (c.is_perml() or c.is_dpp()) and vd & c.src: n = max(n, 2)
            if c.is_rdlane() and vd & c.src: n = max(n, 1)
            if sd & c.src: n = max(n, 4 if c.is_rdlane() else 2)
            if p.is_dot():
                if vd & (c.src | c.dst):
                    if c.op == p.op:
                        t = c.text.split(";")[0]
                        ops = [o.strip() for o in t.split(None, 1)[1].split(",")]
                        ab = regs_of(ops[1]) | regs_of(ops[2])
                        if vd & ab: n = max(n, 3)
                    else: n = max(n, 3)
            if ("exec", 0) in p.dst and (c.is_dpp()): n = max(n, 5)
        if c.kind in ("vmem",) and sd & c.src: n = max(n, 5)
        if c.kind in ("vmem", "ds") and p.is_dot() and vd & c.src: n = max(n, 3)
        if c.kind in ("vmem", "ds") and p.is_trans() and vd & c.src: n = max(n, 1)
        if c.kind == "salu" and sd & c.src: n = max(n, 1)
    if p.kind == "mfma":
        big = {8: 12, 4: 8}[p.passes]
        if c.kind == "mfma":
            if vd & c.srcAB: n = max(n, big)
            if vd & c.srcC:
                if not (c.srcC == vd and c.passes == p.passes): n = max(n, big - 2)
            elif vd & c.dst and not (c.dst == vd):
                n = max(n, big - 2)
        elif c.kind == "valu":
            if vd & (c.src | c.dst): n = max(n, big)
            if p.srcC & c.dst: n = max(n, {8: 7, 4: 3}[p.passes])
        elif c.kind in ("vmem", "ds"):
            if vd & (c.src | c.dst): n = max(n, big)
    if p.kind == "salu":
        if ("m0", 0) in p.dst and c.kind == "vmem" and ("m0", 0) in c.src: n = max(n, 1)
    if p.wide_store() and c.kind == "valu":
        t = p.text.split(";")[0].split(None, 1)[1]
        data = regs_of(t.split(",")[0]) if p.op.startswith("buffer") else regs_of(t.split(",")[1])
        if data & c.dst: n = max(n, 2)
    if p.kind == "ds" and p.op.startswith("ds_write") and ("b128" in p.op or "b96" in p.op) and c.kind == "valu":
        pass
    return n

MAXLOOK = 14
import copy as _copy
def _Zero(i):
    j = _copy.copy(i); j.states = 0; return j

class Tag(str):
    def __new__(cls, t): return super().__new__(cls, str(t))

class Asm:
    def __init__(self):
        self.lines = []
        self.hist = []
        self.vm = []
        self.lg = []
        self.nops = 0
        self.vmd = {}; self.lgd = {}
    def raw(self, t): self.lines.append(t)
    def label(self, name):
        self.lines.append(f"{name}:")
    def comment(self, t): self.lines.append(f"    ; {t}")
    def reset_hist(self): self.hist = []
    def e(self, text):
        ins = Ins(text)
        for lst, dm in ((self.vm, self.vmd), (self.lg, self.lgd)):
            live = set(id(t) for t in lst)
            for k in [k for k in dm if k not in live]: del dm[k]
            for k, (t, regs) in dm.items():
                hit = regs & (ins.src | ins.dst)
                if hit and not (ins.kind in ("vmem",) and not (regs & ins.src) and str(t) == "pf"):
                    raise AssertionError(f"register {sorted(hit)} touched while load '{t}' is in flight: {text}")
        dist = 0; need = 0
        for p in reversed(self.hist):
            n = need_states(p, ins)
            if n - dist > need: need = n - dist
            dist += p.states
            if dist >= MAXLOOK: break
        while need > 0:
            k = min(need, 16)
            nop = Ins(f"s_nop {k-1}")
            self.lines.append(f"    s_nop {k-1}")
            self.hist.append(nop); self.nops += 1
            need -= k
        self.lines.append("    " + text)
        self.hist.append(ins)
        if len(self.hist) > 64: self.hist = self.hist[-32:]
        return ins
    def vm_op(self, text, tag=None):
        ins = self.e(text); tag = Tag(tag); self.vm.append(tag)
        if ins.dst: self.vmd[id(tag)] = (tag, {r for r in ins.dst if r[0] in "va"})
    def vm_mark(self, tag):
        self.vm.append("#" + tag)
    def vm_wait(self, tag):
        idx = [i for i, t in enumerate(self.vm) if t == tag or (not str(tag).startswith("#") and t == "#" + str(tag) and tag != "st")]
        if not idx: return
        last = idx[-1]
        n = sum(1 for t in self.vm[last + 1:] if not (isinstance(t, str) and t.startswith("#")))
        assert n <= 63, n
        self.e(f"s_waitcnt vmcnt({n})")
        self.vm = self.vm[last + 1:]
    def skip_begin(self):
        self._saved_hist = list(self.hist)
    def skip_end(self):
        inside = self.hist[-16:]
        self.hist = self._saved_hist + [_Zero(i) for i in inside if i not in self._saved_hist]
    def vm_wait_all(self):
        self.e("s_waitcnt vmcnt(0)"); self.vm = []
    def ds_op(self, text, tag=None):
        ins = self.e(text); tag = Tag(tag); self.lg.append(tag)
        if ins.dst: self.lgd[id(tag)] = (tag, {r for r in ins.dst if r[0] in "va"})
    def ds_wait(self, tag):
        idx = [i for i, t in enumerate(self.lg) if t == tag]
        if not idx: return
        last = idx[-1]
        n = len(self.lg) - 1 - last
        if n > 15: n = 15
        self.e(f"s_waitcnt lgkmcnt({n})")
        self.lg = self.lg[len(self.lg) - n:] if n else []
    def ds_done(self, tag):
        return tag not in self.lg
    def ds_wait_all(self):
        self.e("s_waitcnt lgkmcnt(0)"); self.lg = []
    def text(self): return "\n".join(self.lines) + "\n"

def check_loop(lines):
    ins = [Ins(l.strip()) for l in lines if l.strip() and not l.strip().startswith(";") and not l.strip().endswith(":")]
    seq = ins + ins
    for i in range(len(ins), len(seq)):
        dist = 0
        for j in range(i - 1, -1, -1):
            n = need_states(seq[j], seq[i])
            if n > dist:
                raise AssertionError(f"hazard across back edge: {seq[j].text} -> {seq[i].text} need {n} have {dist}")
            dist += seq[j].states
            if dist >= MAXLOOK: break
```

```python
from asmlib import *
Q_OFF  = 0
KV_OFF = 2 << 20
H_OFF  = 6 << 20
O_OFF  = 13 << 20
G_OFF  = 15 << 20
ST_OFF = 17 << 20
CNT_OFF = (17 << 20) + (512 << 10)
WS_USED = 18 << 20
X_BYTES = 2048 * 448 * 2
WQ_BYTES = 448 * 1344 * 2
WO_BYTES = 448 * 448 * 2
W1_BYTES = 448 * 1792 * 2
W2_BYTES = 1792 * 448 * 2
LOG2E = 1.4426950408889634
import struct
def f2u(x): return struct.unpack("<I", struct.pack("<f", x))[0]
def hexf(x): return hex(f2u(x))

def srd(a, d, base, nbytes):
    a.e(f"s_mov_b32 s{d}, s{base}")
    a.e(f"s_mov_b32 s{d+1}, s{base+1}")
    a.e(f"s_mov_b32 s{d+2}, {hex(nbytes)}")
    a.e(f"s_mov_b32 s{d+3}, 0x20000")

def kernel_head(a, name):
    a.raw(f".globl {name}")
    a.raw(".p2align 8")
    a.raw(f".type {name},@function")
    a.label(name)
    a.reset_hist()

def kd(name, vgpr, sgpr=102):
    acc = (vgpr + 3) // 4 * 4
    return f""".p2align 6
.amdhsa_kernel {name}
  .amdhsa_next_free_vgpr {vgpr}
  .amdhsa_next_free_sgpr {sgpr}
  .amdhsa_accum_offset {acc}
  .amdhsa_group_segment_fixed_size 0
  .amdhsa_kernarg_size 80
  .amdhsa_user_sgpr_count 2
  .amdhsa_user_sgpr_kernarg_segment_ptr 1
  .amdhsa_system_sgpr_workgroup_id_x 1
.end_amdhsa_kernel
"""

def code_prefetch(a, start_label, here, nbytes, nthreads, vtmp, vdst, spair, end_label="L_code_end"):
    a.e(f"s_getpc_b64 s[{spair}:{spair+1}]")
    a.label(here)
    a.e(f"s_add_u32 s{spair}, s{spair}, {start_label}-{here}")
    a.e(f"s_addc_u32 s{spair+1}, s{spair+1}, ({start_label}-{here})>>32")
    a.e(f"v_lshlrev_b32 v{vtmp}, 7, v0")
    n = (nbytes + nthreads * 128 - 1) // (nthreads * 128)
    for i in range(n):
        if i: a.e(f"v_add_u32 v{vtmp}, {nthreads*128}, v{vtmp}")
        a.e(f"v_min_u32 v{vdst}, {end_label}-{start_label}-4, v{vtmp}")
        a.vm_op(f"global_load_dword v{vdst}, v{vdst}, s[{spair}:{spair+1}]", "pf")

STAMP_OFF = 32 << 20
class Stamper:
    def __init__(self, a, on, kidx):
        self.a = a; self.on = on; self.n = 0; self.kidx = kidx; self.names = []
    def stamp(self, name, real=False, lvl=1, nowait=False):
        if not self.on: return
        if name not in ("rt", "start") and self.on != lvl: return
        if nowait:
            r = 76 + 2 * self.n
            assert r + 1 < 102
            self.a.e(f"s_{'memrealtime' if getattr(self, 'allreal', False) else 'memtime'} s[{r}:{r+1}]"); self.n += 1; return
        a = self.a
        real = real or getattr(self, "allreal", False)
        r = 76 + 2 * self.n
        assert r + 1 < 102
        a.e(f"s_{'memrealtime' if real else 'memtime'} s[{r}:{r+1}]")
        a.e("s_waitcnt lgkmcnt(0)"); a.lg = []
        self.n += 1; self.names.append(name)
    def set(self, n): self.n = n
    def dump(self, wsptr, swave, nmax=13):
        if not self.on: return
        a = self.a
        a.e("s_memrealtime s[24:25]")
        a.e("s_waitcnt vmcnt(0) lgkmcnt(0)")
        a.e(f"s_mov_b32 s26, s{wsptr}") ; a.e(f"s_mov_b32 s27, s{wsptr+1}")
        a.e(f"s_lshl_b32 s3, s2, 3")
        a.e(f"s_add_u32 s3, s3, s{swave}")
        a.e(f"s_lshl_b32 s3, s3, 6")
        a.e(f"s_add_u32 s3, s3, {STAMP_OFF + self.kidx * (1 << 20)}")
        a.e(f"s_add_u32 s26, s26, s3")
        a.e(f"s_addc_u32 s27, s27, 0")
        a.e("v_mov_b32 v0, 0")
        for i in range(nmax):
            a.e(f"v_mov_b32 v1, s{76+2*i}")
            a.e(f"global_store_dword v0, v1, s[26:27] offset:{4*i}")
        a.e(f"v_mov_b32 v1, s24")
        a.e(f"global_store_dword v0, v1, s[26:27] offset:{60}")
```

```python
import sys, json
from common import *
from gemm64 import *
BIAS = 32.0
NAME = "recurrent_scan__softmax_full_mha__glu_gated_swiglu__prompt_kernel"

def gen(a, opt):
    ST = opt.get("st", " sc1")
    LD = " sc1"
    NPH = opt.get("nph", 2)
    kernel_head(a, NAME)
    e = a.e
    uid = [0]
    def lab(p):
        uid[0] += 1; return f"L_{p}{uid[0]}"
    pX, pWQ, pWO, pW1, pW3, pW2, pOUT, pDBG, pWS = 4, 6, 8, 12, 14, 16, 18, 20, 22
    rX, rW1, rW3, rA, rB, rWS = 24, 28, 32, 36, 40, 44
    S = lambda r: f"s[{r}:{r+3}]"
    sW, sTT, sG, sRB, sCOL, sTTG = 48, 49, 50, 51, 52, 53
    sSO = [[54, 55], [56, 56], [57, 57]]
    sP64, sM0, sCurA, sCurB, sOnes, sLo, sHi, sHoff, sQKoff, sQKstep = 58, 59, 60, 61, 62, 63, 64, 65, 66, 67
    sT1, sT2, sT3, sStat, sPh, sHoff2 = 68, 69, 70, 71, 72, 73
    X0, AA, AB, WF, T0 = 16, 128, 160, 192, 216
    vLane, vSt, vD0, vD1, vD2B = 1, 2, 3, 4, 250
    vTB = [[5, 6], [7, 8], [9]]
    vTW = [10, 11]
    vXR = [12, 13, 14, 15]
    vK, vC1, vSc, vP6, vP7, vFlag, vV3, vV4 = 232, 233, 234, 236, 237, 238, 239, 235
    vXW = [240, 241]; vStat = 242; vNM = 243; vAcc = [244, 245, 246, 247]; vV1, vV2 = 248, 249
    vDum = 251
    RAW = 128
    SCR = 7 * 16384
    e("s_cmp_ge_u32 s2, 256")
    e("s_cbranch_scc1 L_end")
    sp = Stamper(a, opt.get("stamp"), 0)
    sp.stamp("rt", True); sp.stamp("start")
    e("s_load_dwordx16 s[4:19], s[0:1], 0")
    e("s_load_dwordx4 s[20:23], s[0:1], 64")
    e(f"s_getpc_b64 s[74:75]")
    a.label("L_pc")
    e(f"s_add_u32 s74, s74, {NAME}-L_pc")
    e(f"s_addc_u32 s75, s75, -1")
    e(f"s_lshr_b32 s3, s2, 3")
    e(f"s_lshl_b32 s3, s3, 7")
    e(f"v_lshlrev_b32 v20, 12, v0")
    e(f"v_add_u32 v20, s3, v20")
    e(f"v_min_u32 v{vDum}, L_code_end-{NAME}-4, v20")
    a.vm_op(f"global_load_dword v{vDum}, v{vDum}, s[74:75]", "pf")
    e(f"v_and_b32 v{vLane}, 63, v0")
    e(f"v_lshrrev_b32 v22, 6, v0")
    e(f"v_readfirstlane_b32 s{sW}, v22")
    e(f"s_and_b32 s3, s2, 7")
    e(f"s_lshr_b32 s{sT1}, s2, 3")
    e(f"s_and_b32 s{sRB}, s3, 1")
    e(f"s_lshl_b32 s{sRB}, s{sRB}, 3")
    e(f"s_and_b32 s{sT2}, s{sT1}, 7")
    e(f"s_add_u32 s{sRB}, s{sRB}, s{sT2}")
    e(f"s_lshr_b32 s{sCOL}, s3, 1")
    e(f"s_lshl_b32 s{sCOL}, s{sCOL}, 2")
    e(f"s_lshr_b32 s{sT2}, s{sT1}, 3")
    e(f"s_add_u32 s{sCOL}, s{sCOL}, s{sT2}")
    e(f"v_lshrrev_b32 v22, 3, v{vLane}")
    e(f"v_and_b32 v23, 7, v{vLane}")
    e(f"s_lshl_b32 s{sT1}, s{sRB}, 7")
    e(f"s_lshl_b32 s{sT2}, s{sW}, 4")
    e(f"s_add_u32 s{sT1}, s{sT1}, s{sT2}")
    e(f"s_mul_i32 s{sT1}, s{sT1}, 896")
    e(f"s_add_u32 s{sT2}, s{sT1}, {8*896}")
    e(f"v_mul_u32_u24 v24, 896, v22")
    e(f"v_lshl_add_u32 v24, v23, 4, v24")
    e(f"s_or_b32 s{sT3}, s2, s{sW}")
    e("s_waitcnt lgkmcnt(0)")
    srd(a, rX, pX, X_BYTES)
    srd(a, rWS, pWS, WS_USED)
    e(f"s_cmp_lg_u32 s{sT3}, 0")
    e(f"s_cbranch_scc1 L_noinit")
    a.skip_begin()
    e(f"v_lshlrev_b32 v25, 7, v{vLane}")
    e(f"v_mov_b32 v26, 0")
    e(f"s_mov_b32 s3, {CNT_OFF}")
    e(f"buffer_store_dword v26, v25, {S(rWS)}, s3 offen sc1")
    a.skip_end()
    a.label("L_noinit")
    for gi in range(2):
        for i in range(7):
            r = RAW + (gi * 7 + i) * 4
            a.vm_op(f"buffer_load_dwordx4 v[{r}:{r+3}], v24, {S(rX)}, s{sT1 if gi == 0 else sT2} offen offset:{i*128}", f"x{gi}")
    if opt.get("touch", 0):
        sk = lab("t")
        e(f"s_cmp_lg_u32 s{sW}, {opt.get('touchw', 7)}")
        e(f"s_cbranch_scc1 {sk}")
        a.skip_begin()
        e(f"v_min_u32 v25, 8, v{vLane}")
        e(f"v_lshlrev_b32 v25, 21, v25")
        e(f"buffer_load_dword v{vDum+1}, v25, {S(rWS)}, 0 offen")
        e(f"v_mov_b32 v25, 0")
        for p in (pW1, pW3, pWQ, pW2, pWO, pOUT):
            e(f"global_load_dword v{vDum+1}, v25, s[{p}:{p+1}]")
        a.skip_end()
        a.label(sk)
    if opt.get("xbar", 0): e("s_barrier")
    srd(a, rW1, pW1, W1_BYTES)
    srd(a, rW3, pW3, W1_BYTES)
    e(f"s_and_b32 s{sTT}, s{sW}, 3")
    e(f"s_lshr_b32 s{sG}, s{sW}, 2")
    e(f"s_lshl_b32 s{sTTG}, s{sRB}, 2")
    e(f"s_add_u32 s{sTTG}, s{sTTG}, s{sTT}")
    e(f"s_lshl_b32 s{sM0}, s{sW}, 10")
    if NPH == 2: e(f"s_lshl_b32 s{sPh}, s{sG}, 1")
    else:
        e(f"s_lshl_b32 s{sPh}, s{sG}, 1")
        e(f"s_add_u32 s{sPh}, s{sPh}, s{sTT}")
        e(f"s_and_b32 s{sPh}, s{sPh}, 3")
    e(f"s_lshl_b32 s{sSO[1][0]}, s{sCOL}, 7")
    e(f"s_lshr_b32 s{sT1}, s{sCOL}, 1")
    e(f"s_add_u32 s{sT1}, s{sT1}, 16")
    e(f"s_lshl_b32 s{sSO[2][0]}, s{sT1}, 7")
    e(f"s_mul_i32 s{sT2}, s{sTTG}, 112")
    e(f"s_lshl_b32 s{sT1}, s{sT1}, 2")
    e(f"s_add_u32 s{sHoff2}, s{sT2}, s{sT1}")
    e(f"s_and_b32 s{sT1}, s{sCOL}, 1")
    e(f"s_lshl_b32 s{sT1}, s{sT1}, 1")
    e(f"s_add_u32 s{sHoff2}, s{sHoff2}, s{sT1}")
    e(f"s_add_u32 s{sHoff2}, s{sHoff2}, s{sG}")
    e(f"s_lshl_b32 s{sHoff2}, s{sHoff2}, 10")
    e(f"s_add_u32 s{sHoff2}, s{sHoff2}, {H_OFF}")
    e(f"s_lshl_b32 s{sT1}, s{sG}, 1")
    e(f"s_add_u32 s{sT2}, s{sT2}, s{sT1}")
    e(f"s_lshl_b32 s{sT1}, s{sCOL}, 2")
    e(f"s_add_u32 s{sHoff}, s{sT2}, s{sT1}")
    e(f"s_lshl_b32 s{sHoff}, s{sHoff}, 10")
    e(f"s_add_u32 s{sHoff}, s{sHoff}, {H_OFF}")
    sTc0a, sTc0b = sCurA, sCurB
    e(f"s_cmp_ge_u32 s{sCOL}, 12")
    e(f"s_cbranch_scc1 L_r0f")
    srd(a, rA, pWQ, WQ_BYTES)
    srd(a, rB, pWQ, WQ_BYTES)
    e(f"s_lshr_b32 s{sT1}, s{sCOL}, 2")
    e(f"s_and_b32 s{sT2}, s{sCOL}, 3")
    e(f"s_mul_i32 s{sSO[0][0]}, s{sT1}, 896")
    e(f"s_mul_i32 s{sT3}, s{sT2}, 224")
    e(f"s_add_u32 s{sSO[0][0]}, s{sSO[0][0]}, s{sT3}")
    e(f"s_cmp_eq_u32 s{sT2}, 3")
    e(f"s_cselect_b32 s{sT3}, 32, 0")
    e(f"s_sub_u32 s{sSO[0][0]}, s{sSO[0][0]}, s{sT3}")
    e(f"s_add_u32 s{sSO[0][1]}, s{sSO[0][0]}, 128")
    e(f"s_mul_i32 s{sTc0a}, s{sG}, 112")
    e(f"s_add_u32 s{sTc0a}, s{sTc0a}, s{sT3}")
    e(f"s_add_u32 s{sTc0b}, s{sTc0a}, 56")
    e(f"s_mov_b32 s{sP64}, 2688")
    e(f"s_lshl_b32 s{sT2}, s{sT2}, 1")
    e(f"s_add_u32 s{sT2}, s{sT2}, s{sG}")
    e(f"s_lshl_b32 s{sT2}, s{sT2}, 7")
    e(f"s_add_u32 s{sT2}, s{sT2}, s{sTTG}")
    e(f"s_lshl_b32 s{sQKoff}, s{sT2}, 11")
    e(f"s_lshl_b32 s{sT1}, s{sT1}, 21")
    e(f"s_add_u32 s{sQKoff}, s{sQKoff}, s{sT1}")
    e(f"s_mov_b32 s{sQKstep}, {64*2048}")
    e(f"s_branch L_r0j")
    a.label("L_r0f")
    srd(a, rA, pW1, W1_BYTES)
    srd(a, rB, pW3, W1_BYTES)
    e(f"s_add_u32 s{sT1}, s{sCOL}, 12")
    e(f"s_lshl_b32 s{sSO[0][0]}, s{sT1}, 7")
    e(f"s_mov_b32 s{sSO[0][1]}, s{sSO[0][0]}")
    e(f"s_lshl_b32 s{sTc0a}, s{sG}, 6")
    e(f"s_add_u32 s{sTc0b}, s{sTc0a}, 128")
    e(f"s_mov_b32 s{sP64}, 3584")
    e(f"s_add_u32 s{sQKoff}, s{sHoff}, {12*4096}")
    e(f"s_mov_b32 s{sQKstep}, 0")
    a.label("L_r0j")
    a.reset_hist()
    e(f"v_lshrrev_b32 v25, 4, v{vLane}")
    e(f"v_and_b32 v25, 1, v25")
    e(f"v_lshlrev_b32 v25, 2, v25")
    e(f"v_xor_b32 v25, v25, v23")
    e(f"v_lshlrev_b32 v25, 4, v25")
    e(f"s_lshl_b32 s{sT1}, s{sW}, 3")
    e(f"v_add_u32 v26, s{sT1}, v22")
    e(f"v_mul_lo_u32 v{vD0}, v26, s{sP64}")
    e(f"v_add_u32 v{vD0}, v{vD0}, v25")
    e(f"v_mul_u32_u24 v{vD1}, 3584, v26")
    e(f"v_add_u32 v{vD1}, v{vD1}, v25")
    e(f"v_xor_b32 v{vD2B}, 32, v{vD1}")
    e(f"v_lshlrev_b32 v{vSt}, 4, v{vLane}")
    e(f"v_and_b32 v25, 15, v{vLane}")
    e(f"v_lshrrev_b32 v26, 5, v{vLane}")
    e(f"v_lshrrev_b32 v27, 2, v25")
    e(f"v_lshl_add_u32 v27, v26, 3, v27")
    e(f"v_lshlrev_b32 v27, 7, v27")
    e(f"v_lshrrev_b32 v28, 3, v25")
    e(f"v_lshlrev_b32 v28, 6, v28")
    e(f"v_and_b32 v29, 3, v25")
    e(f"v_lshlrev_b32 v29, 3, v29")
    e(f"v_and_b32 v32, 16, v{vLane}")
    e(f"v_lshl_add_u32 v33, v32, 1, v29")
    def traddr(d, stc):
        e(f"v_add_u32 v30, s{stc}, v33")
        e(f"v_and_b32 v31, 127, v30")
        e(f"v_xor_b32 v31, v31, v28")
        e(f"v_and_b32 v30, 128, v30")
        e(f"v_lshl_add_u32 v30, v30, 6, v31")
        e(f"v_add_u32 v{d}, v30, v27")
    traddr(vTB[0][0], sTc0a); traddr(vTB[0][1], sTc0b)
    e(f"s_lshl_b32 s{sT1}, s{sG}, 6")
    traddr(vTB[1][0], sT1)
    e(f"v_add_u32 v{vTB[1][1]}, 8192, v{vTB[1][0]}")
    e(f"s_and_b32 s{sT1}, s{sCOL}, 1")
    e(f"s_lshl_b32 s{sT1}, s{sT1}, 6")
    e(f"s_lshl_b32 s{sT2}, s{sG}, 5")
    e(f"s_add_u32 s{sT1}, s{sT1}, s{sT2}")
    e(f"v_add_u32 v30, s{sT1}, v29")
    e(f"v_xor_b32 v30, v30, v28")
    e(f"v_lshlrev_b32 v31, 1, v32")
    e(f"v_xor_b32 v30, v30, v31")
    e(f"v_lshl_add_u32 v30, v32, 9, v30")
    e(f"v_add_u32 v{vTB[2][0]}, v30, v27")
    e(f"s_and_b32 s{sT1}, s{sW}, 1")
    e(f"s_lshl_b32 s{sT1}, s{sT1}, 4")
    e(f"v_add_u32 v30, s{sT1}, v22")
    e(f"v_xor_b32 v30, v30, v23")
    e(f"v_lshlrev_b32 v30, 4, v30")
    e(f"v_lshrrev_b32 v31, 1, v23")
    e(f"v_lshl_add_u32 v30, v31, 12, v30")
    e(f"v_and_b32 v31, 1, v23")
    e(f"v_lshl_add_u32 v30, v31, 9, v30")
    e(f"s_lshr_b32 s{sT1}, s{sW}, 1")
    e(f"s_lshl_b32 s{sT1}, s{sT1}, 10")
    e(f"v_add_u32 v{vXW[0]}, s{sT1}, v30")
    e(f"v_add_u32 v{vXW[1]}, 0x10000, v{vXW[0]}")
    e(f"v_and_b32 v30, 31, v{vLane}")
    e(f"v_xor_b32 v30, v30, v26")
    e(f"s_lshl_b32 s{sT1}, s{sTT}, 10")
    for q in range(4):
        e(f"v_xor_b32 v31, {2*q}, v30")
        e(f"v_lshlrev_b32 v31, 4, v31")
        e(f"v_lshl_add_u32 v31, v26, 9, v31")
        e(f"v_add_u32 v31, s{sT1}, v31")
        e(f"v_add_u32 v{vXR[q]}, {q*4096}, v31")
    e(f"v_and_b32 v30, 31, v{vLane}")
    e(f"v_lshrrev_b32 v31, 1, v30")
    e(f"v_and_b32 v31, 7, v31")
    e(f"v_xor_b32 v31, v31, v26")
    e(f"v_lshlrev_b32 v30, 6, v30")
    e(f"v_lshl_add_u32 v30, v31, 3, v30")
    e(f"s_lshl_b32 s{sT1}, s{sW}, 11")
    e(f"s_add_u32 s{sT1}, s{sT1}, {SCR}")
    e(f"v_add_u32 v{vV1}, s{sT1}, v30")
    e(f"v_lshrrev_b32 v30, 2, v25")
    e(f"v_lshl_add_u32 v30, v26, 2, v30")
    e(f"v_lshrrev_b32 v31, 1, v30")
    e(f"v_lshlrev_b32 v31, 3, v31")
    e(f"v_xor_b32 v31, v31, v33")
    e(f"v_lshl_add_u32 v30, v30, 6, v31")
    e(f"v_add_u32 v{vV2}, s{sT1}, v30")
    e(f"v_xor_b32 v{vV3}, 32, v{vV2}")
    e(f"s_lshl_b32 s{sT1}, s{sW}, 4")
    e(f"v_add_u32 v{vStat}, s{sT1}, v22")
    e(f"v_lshlrev_b32 v{vStat}, 2, v{vStat}")
    e(f"s_lshl_b32 s{sStat}, s2, 9")
    e(f"s_add_u32 s{sStat}, s{sStat}, {ST_OFF}")
    e(f"s_mov_b32 s{sOnes}, 0x3f803f80")
    e(f"s_mov_b32 s{sLo}, 0x3f80")
    e(f"s_mov_b32 s{sHi}, 0x3f800000")
    e(f"s_lshr_b32 s{sT3}, s{sCOL}, 2")
    e(f"s_cmp_eq_u32 s{sT3}, 1")
    e(f"s_cselect_b32 s{sT1}, s{sOnes}, 0")
    e(f"s_cselect_b32 s{sT2}, s{sLo}, 0")
    e(f"s_cmp_eq_u32 s{sT3}, 2")
    e(f"s_cselect_b32 s{sT1}, s{sLo}, s{sT1}")
    e(f"v_mov_b32 v{vP6}, s{sT1}")
    e(f"v_mov_b32 v{vP7}, s{sT2}")
    e(f"s_mov_b32 vcc_lo, -1")
    e(f"s_mov_b32 vcc_hi, 0")
    def slot(c):
        if c < 3: return 7 + c
        if c < 10: return c - 3
        return slot(c - 9)
    dma_next = [0]
    def dma(c, track=True):
        r, cc = divmod(c, 7)
        if cc == 0:
            e(f"s_mov_b32 s{sCurA}, s{sSO[r][0]}")
            if r == 0: e(f"s_mov_b32 s{sCurB}, s{sSO[r][1]}")
        else:
            inc = f"s{sP64}" if r == 0 else f"{64*3584}"
            e(f"s_add_u32 s{sCurA}, s{sCurA}, {inc}")
            if r == 0: e(f"s_add_u32 s{sCurB}, s{sCurB}, {inc}")
        va, vb = [(vD0, vD0), (vD1, vD1), (vD1, vD2B)][r]
        sa, sb = (rA, rB) if r == 0 else (rW1, rW3)
        if opt.get("x_nodma") and c >= 3: return
        e(f"s_add_u32 m0, s{sM0}, {slot(c)*16384}")
        e(f"buffer_load_dwordx4 v{va}, {S(sa)}, s{sCurA} offen lds")
        e(f"s_add_u32 m0, s{sM0}, {slot(c)*16384+8192}")
        e(f"buffer_load_dwordx4 v{vb}, {S(sb)}, s{sCurB if r == 0 else sCurA} offen lds")
        if track: a.vm += [f"c{c}", f"c{c}"]
    if opt.get("wpf", 1):
        e(f"s_and_b32 s{sT1}, s{sRB}, 7")
        e(f"s_mul_i32 s{sT1}, s{sT1}, 56")
        e(f"s_mul_i32 s{sT2}, s{sW}, 7")
        e(f"s_add_u32 s{sT1}, s{sT1}, s{sT2}")
        e(f"v_min_u32 v30, 6, v{vLane}")
        e(f"v_add_u32 v30, s{sT1}, v30")
        e(f"v_mul_lo_u32 v31, v30, s{sP64}")
        e(f"v_mul_u32_u24 v30, 3584, v30")
    e(f"s_lshl_b32 s{sP64}, s{sP64}, 6")
    for c in range(3): dma(c)
    dma_next[0] = 3
    def wpf():
        a.vm_op(f"buffer_load_dword v{vDum+1}, v31, {S(rA)}, s{sSO[0][0]} offen", "pf")
        a.vm_op(f"buffer_load_dword v{vDum+1}, v31, {S(rB)}, s{sSO[0][1]} offen", "pf")
        for r in (1, 2):
            a.vm_op(f"buffer_load_dword v{vDum+1}, v30, {S(rW1)}, s{sSO[r][0]} offen", "pf")
            a.vm_op(f"buffer_load_dword v{vDum+1}, v30, {S(rW3)}, s{sSO[r][0]} offen", "pf")
    if opt.get("wpf", 1) == 2: wpf()
    def dpp_reduce(v):
        e(f"v_add_f32_dpp v{v}, v{v}, v{v} quad_perm:[1,0,3,2] row_mask:0xf bank_mask:0xf")
        e(f"v_add_f32_dpp v{v}, v{v}, v{v} quad_perm:[2,3,0,1] row_mask:0xf bank_mask:0xf")
        e(f"v_add_f32_dpp v{v}, v{v}, v{v} row_half_mirror row_mask:0xf bank_mask:0xf")
    for gi in range(2):
        for q in range(4): e(f"v_mov_b32 v{vAcc[q]}, 0")
        a.vm_wait(f"x{gi}")
        if gi == 0: sp.stamp(f"x{gi}")
        if gi == 1 and opt.get("wpf", 1) == 1: wpf()
        if gi == 0:
            e(f"s_or_b32 s{sT3}, s2, s{sW}")
            e(f"s_cmp_lg_u32 s{sT3}, 0")
            e(f"s_cbranch_scc1 L_noflag")
            a.skip_begin()
            e(f"v_mov_b32 v25, 0")
            e(f"v_mov_b32 v26, 1")
            e(f"global_store_dword v25, v26, s[{pDBG}:{pDBG+1}] sc1")
            a.skip_end()
            a.label("L_noflag")
        for i in range(28):
            e(f"v_dot2c_f32_bf16 v{vAcc[i%4]}, s{sOnes}, v{RAW+gi*28+i}")
        e(f"v_add_f32 v{vAcc[0]}, v{vAcc[0]}, v{vAcc[1]}")
        e(f"v_add_f32 v{vAcc[2]}, v{vAcc[2]}, v{vAcc[3]}")
        e(f"v_add_f32 v{vNM}, v{vAcc[0]}, v{vAcc[2]}")
        dpp_reduce(vNM)
        e(f"v_mul_f32 v{vNM}, {hexf(-1.0/448)}, v{vNM}")
        for i in range(7):
            r = RAW + gi * 28 + i * 4
            for k in range(4):
                e(f"v_dot2_f32_bf16 v{T0+2*k}, v{r+k}, s{sLo}, v{vNM}")
                e(f"v_dot2_f32_bf16 v{T0+2*k+1}, v{r+k}, s{sHi}, v{vNM}")
            for k in range(4):
                e(f"v_cvt_pk_bf16_f32 v{r+k}, v{T0+2*k}, v{T0+2*k+1}")
            off = gi * 128 + i * 16384
            a.ds_op(f"ds_write_b128 v{vXW[off >> 16]}, v[{r}:{r+3}] offset:{off & 0xffff}", "xw")
    for gi in range(2):
        for q in range(4): e(f"v_mov_b32 v{vAcc[q]}, 0")
        for i in range(28):
            e(f"v_dot2c_f32_bf16 v{vAcc[i%4]}, v{RAW+gi*28+i}, v{RAW+gi*28+i}")
        e(f"v_add_f32 v{vAcc[0]}, v{vAcc[0]}, v{vAcc[1]}")
        e(f"v_add_f32 v{vAcc[2]}, v{vAcc[2]}, v{vAcc[3]}")
        e(f"v_add_f32 v{vNM}, v{vAcc[0]}, v{vAcc[2]}")
        dpp_reduce(vNM)
        e(f"v_mov_b32 v{T0+gi}, {hexf(1e-5)}")
        e(f"v_fmac_f32 v{T0+gi}, {hexf(1.0/448)}, v{vNM}")
        a.vm_op(f"buffer_store_dword v{T0+gi}, v{vStat}, {S(rWS)}, s{sStat} offen offset:{gi*32}", "stat")
    a.ds_wait_all()
    sp.stamp("ln")
    a.vm_wait("c1")
    e("s_barrier")
    sp.stamp("b1")
    def check_flag(vtmp):
        done = lab("fl")
        e(f"v_readfirstlane_b32 s{sT1}, v{vFlag}")
        e(f"s_cmp_lg_u32 s{sT1}, 0")
        e(f"s_cbranch_scc1 {done}")
        e(f"s_mov_b32 s{sT2}, 0x40000")
        lp = lab("fs"); a.label(lp)
        e(f"v_mov_b32 v{vtmp}, 0")
        e(f"global_load_dword v{vFlag}, v{vtmp}, s[{pDBG}:{pDBG+1}] sc1")
        e(f"s_waitcnt vmcnt(0)")
        e(f"v_readfirstlane_b32 s{sT1}, v{vFlag}")
        e(f"s_sub_u32 s{sT2}, s{sT2}, 1")
        e(f"s_cselect_b32 s{sT1}, 1, s{sT1}")
        e(f"s_cmp_eq_u32 s{sT1}, 0")
        e(f"s_cbranch_scc1 {lp}")
        a.label(done)
    def signal(sIdx, add, va, vb):
        e(f"s_add_u32 s{sT1}, s{sIdx}, {add}")
        e(f"s_lshl_b32 s{sT1}, s{sT1}, 7")
        e(f"s_add_u32 s{sT1}, s{sT1}, {CNT_OFF}")
        e(f"v_mov_b32 v{va}, 0")
        e(f"v_mov_b32 v{vb}, 1")
        e(f"s_mov_b64 exec, 1")
        e(f"buffer_atomic_add v{vb}, v{va}, {S(rWS)}, s{sT1} offen sc1")
        e(f"s_mov_b64 exec, -1")
    def poll(vaddr, vval, target, sleep):
        lp = lab("po"); done = lab("pd")
        e(f"s_mov_b32 s{sT2}, 0x40000")
        e(f"s_mov_b32 s{sT3}, {CNT_OFF}")
        a.label(lp)
        e(f"buffer_load_dword v{vval}, v{vaddr}, {S(rWS)}, s{sT3} offen sc1")
        e(f"s_waitcnt vmcnt(0)")
        e(f"v_cmp_gt_u32 s[74:75], {target}, v{vval}")
        e(f"s_cmp_eq_u64 s[74:75], 0")
        e(f"s_cbranch_scc1 {done}")
        e(f"s_sleep {sleep}")
        e(f"s_sub_u32 s{sT2}, s{sT2}, 1")
        e(f"s_cbranch_scc0 {lp}")
        a.label(done)
        a.vm = []
    def lds_arrive(k, va, vb, rtn=False):
        e(f"v_mov_b32 v{va}, {SCR + 4*k}")
        e(f"v_mov_b32 v{vb}, 1")
        e(f"s_mov_b64 exec, 1")
        e(f"ds_add_rtn_u32 v{vb}, v{va}, v{vb}" if rtn else f"ds_add_u32 v{va}, v{vb}")
        e(f"s_mov_b64 exec, -1")
    def lds_sync(k, n, va, vb):
        a.ds_wait_all()
        lds_arrive(k, va, vb)
        lp = lab("ls")
        e(f"s_mov_b32 s{sT2}, 0x400000")
        a.label(lp)
        e(f"ds_read_b32 v{vb}, v{va}")
        e(f"s_waitcnt lgkmcnt(0)")
        e(f"v_readfirstlane_b32 s{sT1}, v{vb}")
        e(f"s_sub_u32 s{sT2}, s{sT2}, 1")
        e(f"s_cselect_b32 s{sT1}, {n}, s{sT1}")
        e(f"s_cmp_lt_u32 s{sT1}, {n}")
        e(f"s_cbranch_scc1 {lp}")
    def last_signals(k, n, sIdx, add, va, vb):
        lds_arrive(k, va, vb, rtn=True)
        e(f"s_waitcnt lgkmcnt(0)"); a.lg = []
        e(f"v_readfirstlane_b32 s{sT1}, v{vb}")
        sk = lab("ns")
        e(f"s_cmp_lg_u32 s{sT1}, {n-1}")
        e(f"s_cbranch_scc1 {sk}")
        a.skip_begin()
        signal(sIdx, add, va, vb)
        a.skip_end()
        a.label(sk)
    NT = [2, 2, 1]
    ACC = [AA, AB, AA]
    tw_state = [None, None]
    def wreads(G):
        r, s = divmod(G, 28)
        base = slot(G // 4) * 16384 + (s % 4) * 2048
        hi, lo = base >> 16, base & 0xffff
        L = []
        for t in range(NT[r]):
            d = WF + (G % 3) * 8 + t * 4
            def f0(t=t, d=d):
                if tw_state[t] != (r, hi):
                    e(f"v_add_u32 v{vTW[t]}, {hex(hi << 16)}, v{vTB[r][t]}")
                    tw_state[t] = (r, hi)
                a.ds_op(f"ds_read_b64_tr_b16 v[{d}:{d+1}], v{vTW[t]} offset:{lo}", f"w{G}")
            def f1(t=t, d=d):
                a.ds_op(f"ds_read_b64_tr_b16 v[{d+2}:{d+3}], v{vTW[t]} offset:{lo+512}", f"w{G}")
            L += [f0, f1]
        return L
    xr_next = [0]
    def xread(n):
        for _ in range(n):
            s = xr_next[0]
            if s >= 28: return
            xr_next[0] += 1
            if s == 16:
                for q in range(4): e(f"v_add_u32 v{vXR[q]}, 0x10000, v{vXR[q]}")
            off = ((s // 4) * 16384) & 0xffff
            a.ds_op(f"ds_read_b128 v[{X0+4*s}:{X0+4*s+3}], v{vXR[s%4]} offset:{off}", f"x{s}")
    BARS = opt.get("bars", [0, 1, 2, 3, 5, 7, 9, 11, 13, 15, 17, 19])
    PQ = opt.get("pq", 13)
    PZ = opt.get("pz", 15)
    PW = opt.get("pw", 15)
    window = []; pending = []
    def period_barrier(i):
        for c in window: a.vm.extend([f"c{c}", f"c{c}"])
        assert not pending, pending
        window.clear()
        nxt = min([b for b in BARS if b > i] + [20])
        a.vm_wait(f"c{nxt}")
        assert dma_next[0] > nxt, (i, nxt, dma_next[0])
        if i == 1: a.vm_wait("stat")
        if i == PQ: a.vm_wait("st")
        if i in opt.get("sb", []): sp.stamp("pre", lvl=2, nowait=True)
        e("s_barrier")
        if i in opt.get("sb", []): sp.stamp("post", lvl=2, nowait=True)
        if i == 1:
            e(f"v_and_b32 v{vK}, 31, v{vLane}")
            e(f"v_lshlrev_b32 v{vK}, 2, v{vK}")
            e(f"s_lshl_b32 s{sT1}, s{sTT}, 7")
            e(f"s_add_u32 s{sT1}, s{sT1}, s{sStat}")
            e(f"v_mov_b32 v{vFlag}, 0")
            a.vm_op(f"buffer_load_dword v{vK}, v{vK}, {S(rWS)}, s{sT1} offen sc1", "kld")
            a.vm_op(f"global_load_dword v{vFlag}, v{vFlag}, s[{pDBG}:{pDBG+1}] sc1", "kld")
        if i == PW and opt.get("w2pf", 1):
            sk = lab("pf")
            e(f"s_cmp_lt_u32 s{sW}, 4")
            e(f"s_cbranch_scc1 {sk}")
            a.skip_begin()
            e(f"s_lshr_b32 s{sT1}, s2, 3")
            e(f"s_lshl_b32 s{sT1}, s{sT1}, 2")
            e(f"s_add_u32 s{sT1}, s{sT1}, s{sTT}")
            e(f"s_mul_i32 s{sT2}, s{sT1}, {98*128}")
            e(f"s_mul_i32 s{sT1}, s{sT1}, {25*128}")
            e(f"v_min_u32 v{vDum+2}, 48, v{vLane}")
            e(f"v_lshlrev_b32 v{vDum+2}, 7, v{vDum+2}")
            e(f"v_add_u32 v{vDum+2}, s{sT2}, v{vDum+2}")
            e(f"v_min_u32 v{vDum+3}, 24, v{vLane}")
            e(f"v_lshlrev_b32 v{vDum+3}, 7, v{vDum+3}")
            e(f"v_add_u32 v{vDum+3}, s{sT1}, v{vDum+3}")
            e(f"v_min_u32 v{vDum+3}, {WO_BYTES-4}, v{vDum+3}")
            e(f"global_load_dword v{vDum+1}, v{vDum+2}, s[{pW2}:{pW2+1}]")
            e(f"v_add_u32 v{vDum+2}, {49*128}, v{vDum+2}")
            e(f"global_load_dword v{vDum+1}, v{vDum+2}, s[{pW2}:{pW2+1}]")
            e(f"global_load_dword v{vDum+1}, v{vDum+3}, s[{pWO}:{pWO+1}]")
            a.skip_end()
            a.label(sk)
        if i == PZ:
            e(f"v_lshrrev_b32 v{vV1}, 2, v{vSt}")
            e(f"v_add_u32 v{vV1}, {SCR}, v{vV1}")
            e(f"v_mov_b32 v{vV2}, 0")
            a.ds_op(f"ds_write_b32 v{vV1}, v{vV2}", "z")
        if i == PQ and sigq[0]:
            sk = lab("q")
            e(f"s_cmp_lg_u32 s{sW}, 0")
            e(f"s_cbranch_scc1 {sk}")
            a.skip_begin()
            check_flag(vDum + 2)
            signal(sCOL, 0, vDum + 2, vDum + 3)
            a.skip_end()
            a.label(sk)
        while dma_next[0] <= 20:
            c = dma_next[0]
            if c < 10:
                sl = slot(c)
                if not all(xr_next[0] > s and a.ds_done(f"x{s}") for s in range(4*sl, 4*sl+4)): break
            elif c - 9 > i - 1: break
            window.append(c); dma_next[0] += 1
        nq = nxt - i
        per = -(-len(window) // nq)
        pending[:] = [window[k*per:(k+1)*per] for k in range(nq)]
    sigq = [False]
    XR = opt.get("xrate", 2)
    def kloop(r, extra, budget, hooks={}):
        extra = list(extra)
        if opt.get("x_noepi"): extra = [x for x in extra if x[1] == 0]
        gap = 0
        for s in range(28):
            G = r * 28 + s
            Gn = G + 2
            rd = wreads(Gn) if Gn < 84 else []
            a.ds_wait(f"w{G}")
            if r == 0: a.ds_wait(f"x{s}")
            ph = Gn % 4
            for t in range(NT[r]):
                d = ACC[r] + 16 * t
                w = WF + (G % 3) * 8 + t * 4
                c = "0" if s == 0 else f"v[{d}:{d+15}]"
                e(f"v_mfma_f32_32x32x16_bf16 v[{d}:{d+15}], v[{w}:{w+3}], v[{X0+4*s}:{X0+4*s+3}], {c}")
                gap += 1
                if t == 0 and Gn < 84 and ph == 0 and (Gn // 4 - 1) in BARS: period_barrier(Gn // 4 - 1)
                n = -(-len(rd) // (NT[r] - t))
                for f in rd[:n]: f()
                rd = rd[n:]
                if r == 0: xread((XR + 1 - t) // 2)
                left = budget
                if t == NT[r] - 1 and pending and pending[0] and ph % 2 == 0:
                    sk = lab("d")
                    e(f"s_cmp_lg_u32 s{sPh}, {ph}")
                    e(f"s_cbranch_scc1 {sk}")
                    a.skip_begin()
                    for c in pending[0]: dma(c, track=False)
                    a.skip_end()
                    a.label(sk)
                    left = opt.get("dmabud", 4)
                if t == NT[r] - 1 and s in hooks: hooks[s](); left = 0
                while extra and gap > 3 and extra[0][1] <= left:
                    f, cst = extra.pop(0); f(); left -= cst
            if ph == 3 and pending: pending.pop(0)
        return extra
    def I(t):
        op = t.split()[0]
        return (lambda: e(t), 8 if op.startswith(TRANS) else (2 if op.startswith("s_") else 4))
    def consts():
        def sel():
            e(f"s_cmp_lt_u32 s{sCOL}, 4")
            e(f"s_cselect_b32 s{sT1}, {hexf(28**-0.5*LOG2E)}, 1.0")
            e(f"v_mul_f32 v{vSc}, s{sT1}, v{vSc}")
        return [(lambda: a.vm_wait("kld"), 0), I(f"v_rsq_f32 v{vSc}, v{vK}"),
                I(f"v_mul_f32 v{vC1}, {hexf(-LOG2E)}, v{vSc}"), (sel, 8)]
    def silu4(Gt, U, t, p):
        L = []
        for k in range(4): L.append(I(f"v_mul_f32 v{t+k}, v{vC1}, v{Gt+k}"))
        for k in range(4):
            L.append(I(f"v_exp_f32 v{t+k}, v{t+k}"))
            L.append(I(f"v_mul_f32 v{Gt+k}, v{Gt+k}, v{U+k}"))
        for k in range(4): L.append(I(f"v_fma_f32 v{t+k}, v{t+k}, v{vK}, v{vK}"))
        for k in range(4): L.append(I(f"v_rcp_f32 v{t+k}, v{t+k}"))
        for k in range(4): L.append(I(f"v_mul_f32 v{Gt+k}, v{Gt+k}, v{t+k}"))
        for k in range(2): L.append(I(f"v_cvt_pk_bf16_f32 v{p+k}, v{Gt+2*k}, v{Gt+2*k+1}"))
        return L
    def store(r, soff, off):
        if opt.get("x_nost"): return (lambda: None, 8)
        return (lambda: a.vm_op(f"buffer_store_dwordx4 v[{r}:{r+3}], v{vSt}, {S(rWS)}, s{soff} offen offset:{off}{ST}", "st"), 8)
    def epiF(acc, soff):
        Gt, U = acc, acc + 16
        L = []
        for q in range(4):
            L += silu4(Gt + 4*q, U + 4*q, T0 + (q % 2) * 4, U + (q // 2) * 8 + (q % 2) * 2)
            if q % 2 == 1: L.append(store(U + (q // 2) * 8, soff, (q // 2) * 1024))
        return L
    def epiQKV(acc, isv):
        L = []
        P = T0 + 8
        for q in range(4):
            for k in range(4): L.append(I(f"v_mul_f32 v{acc+4*q+k}, v{vSc}, v{acc+4*q+k}"))
            for k in range(2): L.append(I(f"v_cvt_pk_bf16_f32 v{P+2*q+k}, v{acc+4*q+2*k}, v{acc+4*q+2*k+1}"))
            if q == 1 and not isv: L.append(store(P, sQKoff, 0))
        L.append(I(f"v_cndmask_b32 v{P+6}, v{vP6}, v{P+6}, vcc"))
        L.append(I(f"v_cndmask_b32 v{P+7}, v{vP7}, v{P+7}, vcc"))
        if not isv: L.append(store(P + 4, sQKoff, 1024))
        else:
            for q in range(4):
                if q: L.append(I(f"v_xor_b32 v{vV4}, {16*q}, v{vV1}"))
                L.append((lambda q=q: a.ds_op(f"ds_write_b64 v{vV4 if q else vV1}, v[{P+2*q}:{P+2*q+1}]", "vw"), 4))
            L += [(lambda: None, 8)] * 2
            L.append((lambda: a.ds_wait("vw"), 0))
            for q in range(4):
                L.append((lambda q=q: a.ds_op(f"ds_read_b64_tr_b16 v[{acc+2*q}:{acc+2*q+1}], v{vV3 if q % 2 else vV2} offset:{512*q}", "vr"), 4))
            L += [(lambda: None, 8)] * 2
            L.append((lambda: a.ds_wait("vr"), 0))
            L.append(store(acc, sQKoff, 0))
            L.append(store(acc + 4, sQKoff, 1024))
        L.append(I(f"s_add_u32 s{sQKoff}, s{sQKoff}, s{sQKstep}"))
        return L
    B1, B2 = opt.get("b1", 12), opt.get("b2", 12)
    xread(4)
    for f in wreads(0) + wreads(1): f()
    kloop(0, [], 0)
    sp.stamp("r0")
    e(f"s_cmp_lt_u32 s{sCOL}, 8")
    e(f"s_cbranch_scc1 L_pqk")
    e(f"s_cmp_lt_u32 s{sCOL}, 12")
    e(f"s_cbranch_scc1 L_pv")
    saved = (list(a.vm), list(a.lg), list(tw_state), dma_next[0], list(a.hist), list(window), [list(p) for p in pending], sp.n)
    ends = []
    for nm, ex in (("f", lambda: epiF(AA, sQKoff)), ("L_pqk", lambda: epiQKV(AA, False) + epiQKV(AA + 16, False)),
                   ("L_pv", lambda: epiQKV(AA, True) + epiQKV(AA + 16, True))):
        if nm != "f": a.label(nm)
        a.vm, a.lg = list(saved[0]), list(saved[1]); tw_state[:] = saved[2]; dma_next[0] = saved[3]; a.hist = list(saved[4])
        window[:] = saved[5]; pending[:] = [list(p) for p in saved[6]]; sp.set(saved[7])
        sigq[0] = nm != "f"
        nst0 = [0]
        exl = consts() + ex()
        if nm != "f":
            exl.append((lambda: nst0.__setitem__(0, 1), 0))
            _pb = period_barrier
        rest = kloop(1, exl, {"f": B1, "L_pqk": opt.get("b1q", 12), "L_pv": opt.get("b1v", 16)}[nm], hooks={(PQ + 1) * 4 - 2 - 28 - 1: (lambda: None) if nm == "f" else (lambda: (_ for _ in ()).throw(AssertionError("qkv epilogue too late")) if not nst0[0] else None)})
        for f, c in rest: f()
        ends.append(([t for t in a.vm if t != "st"], list(a.lg), list(tw_state), dma_next[0], list(window), [list(p) for p in pending]))
        if nm != "L_pv": e("s_branch L_r2")
    assert ends[0][1:] == ends[1][1:] == ends[2][1:], ends
    a.vm = min((x[0] for x in ends), key=len)
    assert all(x[0][len(x[0])-len(a.vm):] == a.vm for x in ends)
    a.label("L_r2")
    e("s_nop 1")
    sp.stamp("r1")
    K0, Q, KV, O, Sx, P, T = 16, 24, 56, 128, 192, 224, 240
    ATT_LDS, GL = 65536, 0
    sX, sJ = 54, 55
    sHead, sQB, sKV, sRun = 62, 63, 64, 58
    sWq, sTB, sCB, sWo, sLB = 62, 63, 64, 58, 66
    vD, vPoll, vStV = vD0, vDum + 4, vD0
    rW = rA
    def early1():
        e(f"s_and_b32 s{sX}, s2, 7")
        e(f"s_lshr_b32 s{sJ}, s2, 3")
        e(f"s_lshl_b32 s{sHead}, s{sX}, 1")
        e(f"s_and_b32 s{sT1}, s{sJ}, 1")
        e(f"s_add_u32 s{sHead}, s{sHead}, s{sT1}")
        e(f"v_min_u32 v{vPoll}, 2, v{vLane}")
        e(f"v_lshlrev_b32 v{vPoll}, 9, v{vPoll}")
        e(f"s_lshr_b32 s{sT1}, s{sHead}, 2")
        e(f"s_lshl_b32 s{sT1}, s{sT1}, 7")
        e(f"v_add_u32 v{vPoll}, s{sT1}, v{vPoll}")
        check_flag(vDum + 2)
        e(f"s_mov_b32 s{sT3}, {CNT_OFF}")
        a.vm_op(f"buffer_load_dword v{vDum+3}, v{vPoll}, {S(rWS)}, s{sT3} offen sc1", "poll")
    def issue_w(s, track=True):
        st = s % 7
        e(f"s_add_u32 m0, s{sLB}, {st*2048}")
        e(f"s_add_u32 s{sT1}, s{sWo}, {8*896}")
        e(f"buffer_load_dwordx4 v{vD}, {S(rW)}, s{sWo} offen lds")
        e(f"s_add_u32 m0, s{sLB}, {st*2048+1024}")
        e(f"s_add_u32 s{sWo}, s{sWo}, {16*896}")
        e(f"buffer_load_dwordx4 v{vD}, {S(rW)}, s{sT1} offen lds")
        if track: a.vm += [f"s{s}", f"s{s}"]
    def early2():
        a.vm_wait("poll")
        e(f"s_cmp_ge_u32 s{sW}, 4")
        e(f"s_cbranch_scc1 L_e2g")
        a.skip_begin()
        e(f"v_cmp_gt_u32 s[74:75], 16, v{vDum+3}")
        e(f"s_cmp_eq_u64 s[74:75], 0")
        e(f"s_cbranch_scc1 L_e2ok")
        sv = list(a.vm)
        poll(vPoll, vDum + 3, 16, 1)
        a.vm = sv
        a.label("L_e2ok")
        e(f"s_lshr_b32 s{sQB}, s{sJ}, 1")
        e(f"s_lshl_b32 s{sKV}, s{sHead}, 17")
        e(f"s_add_u32 s{sKV}, s{sKV}, {KV_OFF}")
        e(f"buffer_load_dwordx4 v[{K0}:{K0+3}], v{vSt}, {S(rWS)}, s{sKV} offen{LD}")
        e(f"buffer_load_dwordx4 v[{K0+4}:{K0+7}], v{vSt}, {S(rWS)}, s{sKV} offen offset:1024{LD}")
        e(f"s_lshl_b32 s{sT1}, s{sHead}, 6")
        e(f"s_lshl_b32 s{sT2}, s{sQB}, 2")
        e(f"s_add_u32 s{sT1}, s{sT1}, s{sT2}")
        for jj in range(4):
            e(f"s_add_u32 s{sT2}, s{sW}, {jj}")
            e(f"s_and_b32 s{sT2}, s{sT2}, 3")
            e(f"s_add_u32 s{sT2}, s{sT2}, s{sT1}")
            e(f"s_lshl_b32 s{sT2}, s{sT2}, 11")
            e(f"buffer_load_dwordx4 v[{Q+8*jj}:{Q+8*jj+3}], v{vSt}, {S(rWS)}, s{sT2} offen{LD}")
            e(f"buffer_load_dwordx4 v[{Q+8*jj+4}:{Q+8*jj+7}], v{vSt}, {S(rWS)}, s{sT2} offen offset:1024{LD}")
        e(f"s_lshl_b32 s{sT1}, s{sW}, 15")
        e(f"s_add_u32 s{sRun}, s{sKV}, s{sT1}")
        e(f"v_add_u32 v{vStV}, {2 << 20}, v{vSt}")
        for i in range(3):
            for k in range(4):
                r = KV + 16 * i + 4 * k
                e(f"buffer_load_dwordx4 v[{r}:{r+3}], v{vSt if k < 2 else vStV}, {S(rWS)}, s{sRun} offen offset:{1024*(k%2)}{LD}")
            e(f"s_add_u32 s{sRun}, s{sRun}, 2048")
        e(f"s_branch L_e2j")
        a.label("L_e2g")
        e(f"s_cmp_ge_u32 s{sJ}, 28")
        e(f"s_cbranch_scc1 L_e2j")
        srd(a, rW, pW2, W2_BYTES)
        e(f"s_sub_u32 s{sWq}, s{sW}, 4")
        e(f"s_mul_i32 s{sT1}, s{sJ}, 37")
        e(f"s_lshr_b32 s{sT1}, s{sT1}, 8")
        e(f"s_mul_i32 s{sT2}, s{sT1}, 7")
        e(f"s_sub_u32 s{sCB}, s{sJ}, s{sT2}")
        e(f"s_lshl_b32 s{sTB}, s{sX}, 2")
        e(f"s_add_u32 s{sTB}, s{sTB}, s{sT1}")
        e(f"s_mul_i32 s{sWo}, s{sWq}, {448*896}")
        e(f"s_lshl_b32 s{sT1}, s{sCB}, 7")
        e(f"s_add_u32 s{sWo}, s{sWo}, s{sT1}")
        e(f"s_lshl_b32 s{sLB}, s{sWq}, 14")
        dma_voff(a, vLane, vD, vDum + 2, vDum + 3)
        for s in range(7): issue_w(s, track=False)
        a.skip_end()
        a.label("L_e2j")
        a.vm_mark("early")
    rest = kloop(2, epiF(AB, sHoff), B2, hooks={opt.get("e1", 19): early1, opt.get("e2", 24): early2})
    e("s_barrier")
    sp.stamp("r2")
    for f, c in rest: f()
    for q in range(2):
        for f, c in silu4(AA + 4*q, AA + 8 + 4*q, T0 + 4*q, T0 + 8 + 2*q): f()
    store(T0 + 8, sHoff2, 0)[0]()
    e(f"s_cmp_ge_u32 s{sW}, 4")
    e(f"s_cbranch_scc1 L_gemm")
    nst = sp.n
    sFlag, sIt, sOoff = 59, 60, 61
    for r in range(64): e(f"v_mov_b32 v{O+r}, 0")
    e(f"s_mov_b32 s{sFlag}, 0")
    e(f"s_lshl_b32 s{sOoff}, s{sQB}, 2")
    e(f"s_add_u32 s{sOoff}, s{sOoff}, s{sW}")
    e(f"s_lshl_b32 s{sOoff}, s{sOoff}, 4")
    e(f"s_add_u32 s{sOoff}, s{sOoff}, s{sHead}")
    e(f"s_lshl_b32 s{sOoff}, s{sOoff}, 11")
    e(f"s_add_u32 s{sOoff}, s{sOoff}, {O_OFF}")
    a.vm_wait("early")
    SB = [Sx, Sx + 16, P, KV + 48]
    for jj in range(4):
        e(f"v_mfma_f32_32x32x16_bf16 v[{SB[jj]}:{SB[jj]+15}], v[{K0}:{K0+3}], v[{Q+8*jj}:{Q+8*jj+3}], 0")
        e(f"v_mfma_f32_32x32x16_bf16 v[{SB[jj]}:{SB[jj]+15}], v[{K0+4}:{K0+7}], v[{Q+8*jj+4}:{Q+8*jj+7}], v[{SB[jj]}:{SB[jj]+15}]")
    sp.stamp("qkv")
    M = T + 8
    def patch(jjs, bias):
        U = M + 4
        for jj in jjs: e(f"v_mov_b32 v{U+jj}, v{M+jj}")
        for jj in jjs: e(f"v_permlane32_swap_b32 v{M+jj}, v{U+jj}")
        for jj in jjs: e(f"v_max_f32 v{M+jj}, v{M+jj}, v{U+jj}")
        for jj in jjs: e(f"v_sub_f32 v{M+jj}, {hexf(-bias) if bias else 0}, v{M+jj}")
        for jj in jjs: e(f"v_cvt_pk_bf16_f32 v{U+jj}, v{M+jj}, v{M+jj}")
        for jj in jjs: e(f"v_and_b32 v{U+jj}, 0xffff0000, v{U+jj}")
        for jj in jjs: e(f"v_sub_f32 v{U+jj}, v{M+jj}, v{U+jj}")
        for jj in jjs: e(f"v_cvt_pk_bf16_f32 v{M+jj}, v{M+jj}, v{U+jj}")
        for jj in jjs: e(f"v_cndmask_b32 v{Q+8*jj+6}, v{M+jj}, v{Q+8*jj+6}, vcc")
        for jj in jjs: e(f"v_and_b32 v{M+jj}, 0xffff0000, v{M+jj}")
        for jj in jjs: e(f"v_sub_f32 v{U+jj}, v{U+jj}, v{M+jj}")
        for jj in jjs: e(f"v_cvt_pk_bf16_f32 v{U+jj}, v{U+jj}, 0")
        for jj in jjs: e(f"v_cndmask_b32 v{Q+8*jj+7}, v{U+jj}, v{Q+8*jj+7}, vcc")
    for jj in range(4): e(f"v_max3_f32 v{M+jj}, v{SB[jj]}, v{SB[jj]+1}, v{SB[jj]+2}")
    for k in range(6):
        for jj in range(4): e(f"v_max3_f32 v{M+jj}, v{M+jj}, v{SB[jj]+3+2*k}, v{SB[jj]+4+2*k}")
    for jj in range(4): e(f"v_max_f32 v{M+jj}, v{M+jj}, v{SB[jj]+15}")
    patch(range(4), BIAS)
    for r in range(8): e(f"v_mov_b32 v{P+8+r}, 0")
    for r in range(8): e(f"v_mov_b32 v{KV+48+8+r}, 0")
    a.vm_wait_all()
    last_signals(0, 8, sRB, 12, T, T + 1)
    e(f"s_setprio {opt.get('attprio', 1)}")
    def qk(n, half):
        i, j = (n // 4) % 4, n % 4
        d = Sx + 16 * (n % 2); k = KV + 16 * i + 4 * half; q = Q + 8 * j + 4 * half
        c = "0" if half == 0 else f"v[{d}:{d+15}]"
        e(f"v_mfma_f32_32x32x16_bf16 v[{d}:{d+15}], v[{k}:{k+3}], v[{q}:{q+3}], {c}")
    def pv(n, half):
        i, j = (n // 4) % 4, n % 4
        d = O + 16 * j; v = KV + 16 * i + 8 + 4 * half; p = P + 8 * (n % 2) + 4 * half
        e(f"v_mfma_f32_32x32x16_bf16 v[{d}:{d+15}], v[{v}:{v+3}], v[{p}:{p+3}], v[{d}:{d+15}]")
    def sm(n, g):
        s = Sx + 16 * (n % 2) + 4 * g; p = P + 8 * (n % 2) + 2 * g
        for k in range(4): e(f"v_exp_f32 v{s+k}, v{s+k}")
        e(f"v_cvt_pk_bf16_f32 v{p}, v{s}, v{s+1}")
        e(f"v_cvt_pk_bf16_f32 v{p+1}, v{s+2}, v{s+3}")
    sp.stamp("preloop")
    qk(0, 0); qk(0, 1)
    e(f"s_mov_b32 s{sIt}, 13")
    e("s_nop 7")
    a.raw(".p2align 6")
    a.label("L_loop")
    start = len(a.lines)
    for n in range(16, 32):
        i, j = (n // 4) % 4, n % 4
        if j == 3: e("s_waitcnt vmcnt(8)")
        qk(n + 1, 0); sm(n, 0)
        qk(n + 1, 1); sm(n, 1)
        pv(n - 1, 0); sm(n, 2)
        pv(n - 1, 1)
        if j == 0:
            e(f"s_cmp_gt_i32 s{sIt}, 0")
            e(f"s_cselect_b32 s{sT2}, s{sRun}, {WS_USED}")
            for k in range(4):
                r = KV + 16 * ((i + 3) % 4) + 4 * k
                e(f"buffer_load_dwordx4 v[{r}:{r+3}], v{vSt if k < 2 else vStV}, {S(rWS)}, s{sT2} offen offset:{1024*(k%2)}{LD}")
            e(f"s_add_u32 s{sRun}, s{sRun}, 2048")
            e(f"s_sub_u32 s{sIt}, s{sIt}, 1")
        sm(n, 3)
    e(f"s_cmp_gt_i32 s{sIt}, -3")
    e("s_cbranch_scc1 L_loop")
    check_loop(a.lines[start:])
    pv(31, 0); pv(31, 1)
    sp.stamp("loop")
    a.vm = []
    for jj in range(1, 4):
        e(f"s_add_u32 s{sT1}, s{sW}, {jj}")
        e(f"s_and_b32 s{sT1}, s{sT1}, 3")
        e(f"s_mul_i32 s{sT1}, s{sT1}, 12288")
        e(f"s_add_u32 s{sT1}, s{sT1}, {ATT_LDS}")
        e(f"v_add_u32 v{T+jj}, s{sT1}, v{vSt}")
        for q in range(4):
            r = O + 16 * jj + 4 * q
            a.ds_op(f"ds_write_b128 v{T+jj}, v[{r}:{r+3}] offset:{(jj-1)*4096 + q*1024}")
    e(f"s_mul_i32 s{sT1}, s{sW}, 12288")
    e(f"s_add_u32 s{sT1}, s{sT1}, {ATT_LDS}")
    e(f"v_add_u32 v{T}, s{sT1}, v{vSt}")
    lds_sync(1, 4, T + 4, T + 5)
    for p in range(3):
        for q in range(4):
            r = O + 16 + 16 * p + 4 * q
            a.ds_op(f"ds_read_b128 v[{r}:{r+3}], v{T} offset:{p*4096 + q*1024}", f"p{p}")
    for p in range(3):
        a.ds_wait(f"p{p}")
        for k in range(16): e(f"v_add_f32 v{O+k}, v{O+k}, v{O+16+16*p+k}")
    a.label("L_norm")
    e(f"v_mov_b32 v{T}, v{O+12}")
    e(f"v_mov_b32 v{T+1}, v{O+12}")
    e(f"v_permlane32_swap_b32 v{T}, v{T+1}")
    e(f"v_rcp_f32 v{T}, v{T+1}")
    e(f"v_mov_b32 v{T+2}, 0")
    for k in range(16): e(f"v_mul_f32 v{O+k}, v{O+k}, v{T}")
    for k in range(8): e(f"v_cvt_pk_bf16_f32 v{P+k}, v{O+2*k}, v{O+2*k+1}")
    e(f"v_cndmask_b32 v{P+6}, 0, v{P+6}, vcc")
    e(f"v_cndmask_b32 v{P+7}, 0, v{P+7}, vcc")
    e(f"buffer_store_dwordx4 v[{P}:{P+3}], v{vSt}, {S(rWS)}, s{sOoff} offen{ST}")
    e(f"buffer_store_dwordx4 v[{P+4}:{P+7}], v{vSt}, {S(rWS)}, s{sOoff} offen offset:1024{ST}")
    for k in range(16): e(f"v_fmac_f32 v{T+2}, 0, v{O+k}")
    e(f"v_mov_b32 v{T+3}, {hexf(2.0**-(BIAS+8))}")
    e(f"v_cmp_u_f32 s[66:67], v{T+2}, v{T+2}")
    e(f"v_cmp_lt_f32 s[74:75], v{T+1}, v{T+3}")
    e(f"s_or_b64 s[66:67], s[66:67], s[74:75]")
    e(f"s_cmp_eq_u64 s[66:67], 0")
    e(f"s_cselect_b32 s{sT1}, 1, s{sFlag}")
    e(f"s_cmp_eq_u32 s{sT1}, 0")
    e(f"s_cbranch_scc1 L_slow")
    e(f"s_waitcnt vmcnt(0)")
    sp.stamp("ost")
    last_signals(2, 4, sQB, 28, T + 4, T + 5)
    sp.dump(pWS, sW)
    e("s_endpgm")
    a.label("L_slow")
    a.reset_hist()
    e(f"s_waitcnt vmcnt(0)")
    e(f"s_mov_b32 s{sFlag}, 1")
    e(f"v_cndmask_b32 v{Q+6}, 0, v{Q+6}, vcc")
    e(f"v_cndmask_b32 v{Q+7}, 0, v{Q+7}, vcc")
    e(f"v_mov_b32 v{M}, 0xff800000")
    e(f"s_mov_b32 s{sRun}, s{sKV}")
    e(f"s_mov_b32 s{sIt}, 64")
    a.label("L_s1")
    start = len(a.lines)
    e(f"buffer_load_dwordx4 v[{KV}:{KV+3}], v{vSt}, {S(rWS)}, s{sRun} offen{LD}")
    e(f"buffer_load_dwordx4 v[{KV+4}:{KV+7}], v{vSt}, {S(rWS)}, s{sRun} offen offset:1024{LD}")
    e("s_waitcnt vmcnt(0)")
    e(f"v_mfma_f32_32x32x16_bf16 v[{Sx}:{Sx+15}], v[{KV}:{KV+3}], v[{Q}:{Q+3}], 0")
    e(f"v_mfma_f32_32x32x16_bf16 v[{Sx}:{Sx+15}], v[{KV+4}:{KV+7}], v[{Q+4}:{Q+7}], v[{Sx}:{Sx+15}]")
    for k in range(8): e(f"v_max3_f32 v{M}, v{M}, v{Sx+2*k}, v{Sx+2*k+1}")
    e(f"s_add_u32 s{sRun}, s{sRun}, 2048")
    e(f"s_sub_u32 s{sIt}, s{sIt}, 1")
    e(f"s_cmp_lg_u32 s{sIt}, 0")
    e("s_cbranch_scc1 L_s1")
    check_loop(a.lines[start:])
    patch([0], 0.0)
    for r in range(16): e(f"v_mov_b32 v{O+r}, 0")
    e(f"s_mov_b32 s{sRun}, s{sKV}")
    e(f"s_mov_b32 s{sIt}, 64")
    a.label("L_s2")
    start = len(a.lines)
    for k in range(4):
        e(f"buffer_load_dwordx4 v[{KV+4*k}:{KV+4*k+3}], v{vSt if k < 2 else vStV}, {S(rWS)}, s{sRun} offen offset:{1024*(k%2)}{LD}")
    e("s_waitcnt vmcnt(0)")
    qk(0, 0); qk(0, 1)
    for g in range(4): sm(0, g)
    pv(0, 0); pv(0, 1)
    e(f"s_add_u32 s{sRun}, s{sRun}, 2048")
    e(f"s_sub_u32 s{sIt}, s{sIt}, 1")
    e(f"s_cmp_lg_u32 s{sIt}, 0")
    e("s_nop 11")
    e("s_cbranch_scc1 L_s2")
    check_loop(a.lines[start:])
    e("s_branch L_norm")
    a.label("L_gemm")
    a.reset_hist(); a.vm = []; a.lg = []; sp.set(nst)
    ACCG, HR, WFR, T = 16, 80, 136, 152
    vA0, vA1, vIO = 4, 5, 6
    sH0, sH1, sI0, sI1 = 59, 60, 61, 65
    e(f"s_setprio 2")
    e(f"s_waitcnt vmcnt(0)")
    last_signals(0, 8, sRB, 12, T, T + 1)
    e(f"s_cmp_ge_u32 s{sJ}, 28")
    e(f"s_cbranch_scc1 L_end")
    def issue_h(s):
        st = s % 7
        off = (s % 4) * 1024
        a.vm_op(f"buffer_load_dwordx4 v[{HR+8*st}:{HR+8*st+3}], v{vSt}, {S(rWS)}, s{sH0} offen offset:{off}{LD}", f"s{s}")
        a.vm_op(f"buffer_load_dwordx4 v[{HR+8*st+4}:{HR+8*st+7}], v{vSt}, {S(rWS)}, s{sH1} offen offset:{off}{LD}", f"s{s}")
        if s % 4 == 3:
            e(f"s_add_u32 s{sH0}, s{sH0}, 4096")
            e(f"s_add_u32 s{sH1}, s{sH1}, 4096")
    e(f"s_mul_i32 s{sH0}, s{sTB}, 224")
    e(f"s_mul_i32 s{sT1}, s{sWq}, 28")
    e(f"s_add_u32 s{sH0}, s{sH0}, s{sT1}")
    e(f"s_lshl_b32 s{sH0}, s{sH0}, 10")
    e(f"s_add_u32 s{sH0}, s{sH0}, {H_OFF}")
    e(f"s_add_u32 s{sH1}, s{sH0}, {112*1024}")
    tr_addr(a, vLane, vA0, vA1, T, T + 1, T + 2, sLB)
    e(f"v_lshrrev_b32 v{T}, 3, v{vLane}")
    e(f"v_mul_u32_u24 v{T}, 896, v{T}")
    e(f"v_and_b32 v{T+1}, 7, v{vLane}")
    e(f"v_lshl_add_u32 v{vIO}, v{T+1}, 4, v{T}")
    e(f"s_lshl_b32 s{sI0}, s{sTB}, 2")
    e(f"s_add_u32 s{sI0}, s{sI0}, s{sWq}")
    e(f"s_mul_i32 s{sI0}, s{sI0}, {16*896}")
    e(f"s_lshl_b32 s{sT2}, s{sCB}, 7")
    e(f"s_add_u32 s{sI0}, s{sI0}, s{sT2}")
    e(f"s_add_u32 s{sI1}, s{sI0}, {8*896}")
    e(f"s_lshr_b32 s{sT1}, s{sTB}, 1")
    e(f"s_lshl_b32 s{sT1}, s{sT1}, 7")
    e(f"v_mov_b32 v7, s{sT1}")
    e(f"v_add_u32 v{T}, {12*128}, v7")
    poll(T, T + 1, 16, 2)
    sp.stamp("hrdy")
    for s in range(7): issue_h(s)
    e(f"s_setprio {opt.get('gprio', 0)}")
    def wr(s, d0, off, wait=True):
        if wait: a.vm_wait(f"s{s}")
        for ct in range(2):
            d = d0 + ct * 4
            ad = vA0 if ct == 0 else vA1
            a.ds_op(f"ds_read_b64_tr_b16 v[{d}:{d+1}], v{ad} offset:{off}", f"w{s}")
            a.ds_op(f"ds_read_b64_tr_b16 v[{d+2}:{d+3}], v{ad} offset:{off+1024}", f"w{s}")
    wr(0, WFR, 0)
    for s in range(28):
        if s + 1 < 28: wr(s + 1, WFR + ((s + 1) % 2) * 8, ((s + 1) % 7) * 2048)
        a.ds_wait(f"w{s}")
        for ct in range(2):
            for tt in range(2):
                d = ACCG + (2*ct+tt) * 16; w = WFR + (s % 2) * 8 + ct * 4; h = HR + 8 * (s % 7) + 4 * tt
                c = "0" if s == 0 else f"v[{d}:{d+15}]"
                e(f"v_mfma_f32_32x32x16_bf16 v[{d}:{d+15}], v[{w}:{w+3}], v[{h}:{h+3}], {c}")
        if s + 7 < 28: issue_w(s + 7); issue_h(s + 7)
    sp.stamp("w2")
    e(f"s_setprio 2")
    write_partials(a, vLane, ACCG, sLB, T, T + 1)
    read_reduce(a, vLane, sWq, GL, ACCG, 8, T + 3, sT1)
    lds_sync(3, 4, T, T + 1)
    read_reduce2(a, ACCG, 8, T + 3)
    lds_sync(4, 4, T, T + 1)
    srd(a, rW, pWO, WO_BYTES)
    e(f"s_mul_i32 s{sWo}, s{sWq}, {112*896}")
    e(f"s_lshl_b32 s{sT1}, s{sCB}, 7")
    e(f"s_add_u32 s{sWo}, s{sWo}, s{sT1}")
    for i in range(15):
        e(f"s_add_u32 m0, s{sLB}, {i*1024}")
        if i: e(f"s_add_u32 s{sWo}, s{sWo}, {8*896}")
        a.vm_op(f"buffer_load_dwordx4 v{vD}, {S(rW)}, s{sWo} offen lds", "wo")
    GF, XF, XG, WO_F, OF = 224, 208, 200, 136, 80
    a.vm_op(f"buffer_load_dwordx4 v[{XG}:{XG+3}], v{vIO}, {S(rX)}, s{sI0} offen", "xg")
    a.vm_op(f"buffer_load_dwordx4 v[{XG+4}:{XG+7}], v{vIO}, {S(rX)}, s{sI1} offen", "xg")
    U = ACCG + 16
    for k in range(16): e(f"v_mul_f32 v{U+k}, {hexf(-LOG2E)}, v{ACCG+k}")
    for k in range(16): e(f"v_exp_f32 v{U+k}, v{U+k}")
    for k in range(16): e(f"v_add_f32 v{U+k}, 1.0, v{U+k}")
    for k in range(16): e(f"v_rcp_f32 v{U+k}, v{U+k}")
    for k in range(16): e(f"v_mul_f32 v{GF+k}, v{ACCG+k}, v{U+k}")
    a.vm_wait("xg")
    for k in range(8):
        e(f"v_lshlrev_b32 v{XF+2*k}, 16, v{XG+k}")
        e(f"v_and_b32 v{XF+2*k+1}, 0xffff0000, v{XG+k}")
    WO_F = 144
    for s in range(8):
        wr(100 + s, WO_F + 8 * s, (28 * (s // 2) + 16 * (s % 2)) * 128, wait=False)
    srd(a, rW3, pOUT, X_BYTES)
    e(f"s_lshl_b32 s{sH0}, s{sTB}, 16")
    e(f"s_lshl_b32 s{sT1}, s{sWq}, 13")
    e(f"s_add_u32 s{sH0}, s{sH0}, s{sT1}")
    e(f"s_add_u32 s{sH0}, s{sH0}, {O_OFF}")
    e(f"s_add_u32 s{sH1}, s{sH0}, 32768")
    e(f"v_add_u32 v9, {28*128}, v7")
    a.ds_wait_all()
    sp.stamp("grdy")
    poll(9, 10, 16, 2)
    sp.stamp("ordy")
    for s in range(8):
        if s == 4:
            e(f"s_add_u32 s{sH0}, s{sH0}, 4096")
            e(f"s_add_u32 s{sH1}, s{sH1}, 4096")
        a.vm_op(f"buffer_load_dwordx4 v[{OF+8*s}:{OF+8*s+3}], v{vSt}, {S(rWS)}, s{sH0} offen offset:{(s%4)*1024}{LD}", f"o{s}")
        a.vm_op(f"buffer_load_dwordx4 v[{OF+8*s+4}:{OF+8*s+7}], v{vSt}, {S(rWS)}, s{sH1} offen offset:{(s%4)*1024}{LD}", f"o{s}")
    for s in range(8):
        a.vm_wait(f"o{s}")
        for ct in range(2):
            for tt in range(2):
                d = ACCG + (2*ct+tt) * 16; w = WO_F + 8 * s + ct * 4; h = OF + 8 * s + 4 * tt
                c = "0" if s == 0 else f"v[{d}:{d+15}]"
                e(f"v_mfma_f32_32x32x16_bf16 v[{d}:{d+15}], v[{w}:{w+3}], v[{h}:{h+3}], {c}")
    write_partials(a, vLane, ACCG, sLB, 9, 10)
    lds_sync(5, 4, 9, 10)
    read_reduce2(a, ACCG, 8, 9)
    for k in range(16): e(f"v_fma_f32 v{ACCG+k}, v{ACCG+k}, v{GF+k}, v{XF+k}")
    for k in range(8): e(f"v_cvt_pk_bf16_f32 v{U+k}, v{ACCG+2*k}, v{ACCG+2*k+1}")
    e(f"buffer_store_dwordx4 v[{U}:{U+3}], v{vIO}, {S(rW3)}, s{sI0} offen")
    e(f"buffer_store_dwordx4 v[{U+4}:{U+7}], v{vIO}, {S(rW3)}, s{sI1} offen")
    sp.stamp("end")
    sp.dump(pWS, sW)
    a.label("L_end")
    e("s_endpgm")
    return kd(NAME, 256)

if __name__ == "__main__":
    opt = json.loads(sys.argv[2]) if len(sys.argv) > 2 else {}
    a = Asm()
    a.raw("; one workgroup per CU; workgroups hand data over through d_ws (write-through stores + counters)")
    a.raw("; @launch grid=(256,1,1) block=(512,1,1) lds=163840")
    a.raw('.amdgcn_target "amdgcn-amd-amdhsa--gfx950"')
    a.raw(".text")
    k = gen(a, opt)
    a.raw("L_code_end:")
    a.raw(".fill 64, 4, 0xbf800000")
    a.raw("    s_endpgm")
    a.raw('.section .rodata,"a"')
    a.raw(k)
    open(sys.argv[1], "w").write(a.text())
    print("nops inserted:", a.nops, "lines:", len(a.lines))
```

```python
import sys, json
from common import *
from gemm64 import *
BIAS = 32.0
NAME = "recurrent_scan__softmax_full_mha__glu_gated_swiglu__prompt_kernel"

def gen(a, opt):
    ST = opt.get("st", " sc1")
    LD = " sc1"
    NPH = opt.get("nph", 2)
    kernel_head(a, NAME)
    e = a.e
    uid = [0]
    def lab(p):
        uid[0] += 1; return f"L_{p}{uid[0]}"
    pX, pWQ, pWO, pW1, pW3, pW2, pOUT, pDBG, pWS = 4, 6, 8, 12, 14, 16, 18, 20, 22
    rX, rW1, rW3, rA, rB, rWS = 24, 28, 32, 36, 40, 44
    S = lambda r: f"s[{r}:{r+3}]"
    sW, sTT, sG, sRB, sCOL, sTTG = 48, 49, 50, 51, 52, 53
    sSO = [[54, 55], [56, 56], [57, 57]]
    sP64, sM0, sCurA, sCurB, sOnes, sLo, sHi, sHoff, sQKoff, sQKstep = 58, 59, 60, 61, 62, 63, 64, 65, 66, 67
    sT1, sT2, sT3, sStat, sPh, sHoff2 = 68, 69, 70, 71, 72, 73
    X0, AA, AB, WF, T0 = 16, 128, 160, 192, 216
    vLane, vSt, vD0, vD1, vD2B = 1, 2, 3, 4, 250
    vTB = [[5, 6], [7, 8], [9]]
    vTW = [10, 11]
    vXR = [12, 13, 14, 15]
    vK, vC1, vSc, vP6, vP7, vFlag, vV3, vV4 = 232, 233, 234, 236, 237, 238, 239, 235
    vXW = [240, 241]; vStat = 242; vNM = 243; vAcc = [244, 245, 246, 247]; vV1, vV2 = 248, 249
    vDum = 251
    RAW = 128
    SCR = 7 * 16384
    SYNC = 163840 - 256
    e("s_cmp_ge_u32 s2, 256")
    e("s_cbranch_scc1 L_end")
    sp = Stamper(a, opt.get("stamp"), 0)
    sp.stamp("rt", True); sp.stamp("start")
    e("s_load_dwordx16 s[4:19], s[0:1], 0")
    e("s_load_dwordx4 s[20:23], s[0:1], 64")
    RL = 3
    sWR, sXa, sXb, sGS = sStat, sOnes, sLo, sHi
    e(f"v_lshrrev_b32 v22, 6, v0")
    e(f"v_and_b32 v{vLane}, 63, v0")
    e(f"v_readfirstlane_b32 s{sW}, v22")
    e(f"s_and_b32 s{sT1}, s2, 1")
    e(f"s_bfe_u32 s{sT2}, s2, 0x30003")
    e(f"s_lshl3_add_u32 s{sRB}, s{sT1}, s{sT2}")
    e(f"s_bfe_u32 s{sT1}, s2, 0x20001")
    e(f"s_lshr_b32 s{sT2}, s2, 6")
    e(f"s_lshl2_add_u32 s{sCOL}, s{sT1}, s{sT2}")
    e(f"v_bfe_u32 v22, v0, 3, 3")
    e(f"v_and_b32 v23, 7, v0")
    e(f"s_lshl_b32 s{sT1}, s{sT2}, 2")
    e(f"s_and_b32 s{sWR}, s{sT1}, 4")
    e(f"s_xor_b32 s{sWR}, s{sWR}, s{sW}")
    e(f"s_and_b32 s{sGS}, s{sT1}, 8")
    e(f"s_lshl3_add_u32 s{sT1}, s{sRB}, s{sWR}")
    e(f"s_lshl4_add_u32 s{sT2}, s{sT1}, s{sGS}")
    e(f"s_xor_b32 s{sT1}, s{sT2}, 8")
    e(f"s_mulk_i32 s{sT2}, 896")
    e(f"s_mulk_i32 s{sT1}, 896")
    e(f"v_mul_u32_u24 v24, 896, v22")
    e(f"v_lshl_add_u32 v24, v23, 4, v24")
    e(f"s_mov_b32 s{rX+2}, {hex(X_BYTES)}")
    e(f"s_mov_b32 s{rX+3}, 0x20000")
    e(f"s_cmp_ge_u32 s{sW}, 4")
    e("s_waitcnt lgkmcnt(0)")
    e(f"s_mov_b64 s[{rX}:{rX+1}], s[{pX}:{pX+1}]")
    def xloads(lo, hi, sa, sb):
        for k in range(lo, hi):
            gi, i = divmod(k, 7)
            r = RAW + k * 4
            e(f"buffer_load_dwordx4 v[{r}:{r+3}], v24, {S(rX)}, s{sa if gi == 0 else sb} offen offset:{i*128}")
    XE = opt.get("xe", 10)
    e(f"s_cbranch_scc1 L_x0")
    a.skip_begin(); xloads(0, XE, sT2, sT1)
    e(f"s_branch L_x1")
    a.label("L_x0")
    e(f"s_getpc_b64 s[74:75]")
    a.label("L_pc")
    e(f"s_add_u32 s74, s74, {NAME}-L_pc")
    e(f"s_addc_u32 s75, s75, -1")
    e(f"s_lshr_b32 s3, s2, 3")
    e(f"s_lshl_b32 s3, s3, 7")
    e(f"v_and_b32 v20, 255, v0")
    e(f"v_lshl_add_u32 v20, v20, 12, s3")
    e(f"v_min_u32 v{vDum}, L_code_end-{NAME}-4, v20")
    e(f"global_load_dword v{vDum}, v{vDum}, s[74:75]")
    a.skip_end()
    a.label("L_x1")
    sp.stamp("xiss", lvl=3)
    e(f"s_mov_b32 s{sXa}, s{sT2}")
    e(f"s_mov_b32 s{sXb}, s{sT1}")
    def srd2(d, base, nbytes):
        e(f"s_mov_b64 s[{d}:{d+1}], s[{base}:{base+1}]")
        e(f"s_mov_b32 s{d+2}, {hex(nbytes)}")
        e(f"s_mov_b32 s{d+3}, 0x20000")
    srd2(rWS, pWS, WS_USED)
    e(f"s_or_b32 s{sT3}, s2, s{sW}")
    e(f"s_cbranch_scc1 L_noinit")
    a.skip_begin()
    e(f"v_lshlrev_b32 v25, 7, v{vLane}")
    e(f"v_mov_b32 v26, 0")
    e(f"s_mov_b32 s3, {CNT_OFF}")
    e(f"buffer_store_dword v26, v25, {S(rWS)}, s3 offen sc1")
    e(f"s_add_u32 s3, s3, 8192")
    e(f"buffer_store_dword v26, v25, {S(rWS)}, s3 offen sc1")
    a.skip_end()
    a.label("L_noinit")
    e(f"s_and_b32 s{sTT}, s{sW}, 3")
    e(f"s_lshr_b32 s{sG}, s{sW}, 2")
    e(f"s_lshl_b32 s{sM0}, s{sW}, 10")
    e(f"s_lshl_b32 s{sPh}, s{sG}, 1")
    sTc0a, sTc0b = sCurA, sCurB
    e(f"s_cmp_ge_u32 s{sCOL}, 12")
    e(f"s_cbranch_scc1 L_r0f")
    srd2(rA, pWQ, WQ_BYTES)
    e(f"s_mov_b64 s[{rB}:{rB+1}], s[{pWQ}:{pWQ+1}]")
    e(f"s_and_b32 s{sT2}, s{sCOL}, 3")
    e(f"s_mul_i32 s{sSO[0][0]}, s{sCOL}, 224")
    e(f"s_cmp_eq_u32 s{sT2}, 3")
    e(f"s_cselect_b32 s{sT3}, 32, 0")
    e(f"s_sub_u32 s{sSO[0][0]}, s{sSO[0][0]}, s{sT3}")
    e(f"s_add_u32 s{sSO[0][1]}, s{sSO[0][0]}, 128")
    e(f"s_mul_i32 s{sTc0a}, s{sG}, 112")
    e(f"s_add_u32 s{sTc0a}, s{sTc0a}, s{sT3}")
    e(f"s_add_u32 s{sTc0b}, s{sTc0a}, 56")
    e(f"s_movk_i32 s{sP64}, 2688")
    e(f"s_branch L_r0j")
    a.label("L_r0f")
    srd2(rA, pW1, W1_BYTES)
    e(f"s_mov_b64 s[{rB}:{rB+1}], s[{pW3}:{pW3+1}]")
    e(f"s_add_u32 s{sT1}, s{sCOL}, 12")
    e(f"s_lshl_b32 s{sSO[0][0]}, s{sT1}, 7")
    e(f"s_mov_b32 s{sSO[0][1]}, s{sSO[0][0]}")
    e(f"s_lshl_b32 s{sTc0a}, s{sG}, 6")
    e(f"s_add_u32 s{sTc0b}, s{sTc0a}, 128")
    e(f"s_movk_i32 s{sP64}, 3584")
    a.label("L_r0j")
    a.reset_hist()
    e(f"s_mov_b32 s{rB+2}, s{rA+2}")
    e(f"s_mov_b32 s{rB+3}, 0x20000")
    e(f"s_and_b32 s{sT3}, s{sRB}, 7")
    if opt.get("wpf0", 1):
        e(f"s_cmp_{'lt' if opt.get('wpf0', 1) == 1 else 'ge'}_u32 s{sW}, 4")
        e(f"s_cbranch_scc1 L_w0")
        a.skip_begin()
        e(f"s_mul_i32 s{sT2}, s{sTT}, 48")
        e(f"s_add_u32 s{sT2}, s{sT2}, s{sT3}")
        e(f"v_min_u32 v30, 5, v{vLane}")
        e(f"v_lshl_add_u32 v30, v30, 3, s{sT2}")
        e(f"v_mul_lo_u32 v30, v30, s{sP64}")
        e(f"buffer_load_dword v{vDum+1}, v30, {S(rA)}, s{sSO[0][0]} offen")
        e(f"buffer_load_dword v{vDum+1}, v30, {S(rB)}, s{sSO[0][1]} offen")
        a.skip_end()
        a.label("L_w0")
    e(f"v_lshrrev_b32 v25, 2, v{vLane}")
    e(f"v_and_b32 v25, 4, v25")
    e(f"v_xor_b32 v25, v25, v23")
    e(f"v_lshl_add_u32 v26, s{sW}, 3, v22")
    e(f"v_mul_lo_u32 v{vD0}, v26, s{sP64}")
    e(f"v_lshl_add_u32 v{vD0}, v25, 4, v{vD0}")
    e(f"v_mul_u32_u24 v{vD1}, 3584, v26")
    e(f"v_lshl_add_u32 v{vD1}, v25, 4, v{vD1}")
    e(f"s_lshl_b32 s{sT1}, s{sP64}, 5")
    e(f"v_subrev_u32 v32, s{sT1}, v{vD0}")
    vRow, vSwz, vCol = vV1, vV2, vV3
    e(f"v_lshrrev_b32 v26, 5, v{vLane}")
    e(f"v_bfe_u32 v27, v{vLane}, 2, 2")
    e(f"v_lshl_add_u32 v27, v26, 3, v27")
    e(f"v_lshlrev_b32 v{vRow}, 7, v27")
    e(f"v_and_b32 v28, 8, v{vLane}")
    e(f"v_lshlrev_b32 v{vSwz}, 3, v28")
    e(f"v_and_b32 v29, 3, v{vLane}")
    e(f"v_and_b32 v30, 16, v{vLane}")
    e(f"v_lshlrev_b32 v30, 1, v30")
    e(f"v_lshl_add_u32 v{vCol}, v29, 3, v30")
    def traddr(d, stc, t0, t1):
        return [f"v_add_u32 v{t0}, s{stc}, v{vCol}", f"v_and_b32 v{t1}, 127, v{t0}", f"v_xor_b32 v{t1}, v{t1}, v{vSwz}",
                f"v_and_b32 v{t0}, 128, v{t0}", f"v_lshl_add_u32 v{t0}, v{t0}, 6, v{t1}", f"v_add_u32 v{d}, v{t0}, v{vRow}"]
    for t in traddr(vTB[0][0], sTc0a, 30, 31) + traddr(vTB[0][1], sTc0b, 30, 31): e(t)
    e(f"s_and_b32 s{sT1}, s{sWR}, 1")
    e(f"s_lshl4_add_u32 s{sT1}, s{sT1}, s{sGS}")
    e(f"v_add_u32 v30, s{sT1}, v22")
    e(f"v_xor_b32 v30, v30, v23")
    e(f"v_lshlrev_b32 v30, 4, v30")
    e(f"v_lshrrev_b32 v31, 1, v23")
    e(f"v_lshl_add_u32 v30, v31, 12, v30")
    e(f"v_and_b32 v31, 1, v23")
    e(f"v_lshl_add_u32 v30, v31, 9, v30")
    e(f"s_lshr_b32 s{sT1}, s{sWR}, 1")
    e(f"v_lshl_add_u32 v{vXW[0]}, s{sT1}, 10, v30")
    e(f"v_add_u32 v{vXW[1]}, 0x10000, v{vXW[0]}")
    e(f"v_and_b32 v30, 31, v{vLane}")
    e(f"v_xor_b32 v30, v30, v26")
    e(f"v_lshlrev_b32 v30, 4, v30")
    e(f"v_lshl_add_u32 v30, v26, 9, v30")
    e(f"v_lshl_add_u32 v{vXR[0]}, s{sTT}, 10, v30")
    for q in range(1, 4):
        e(f"v_xor_b32 v{vXR[q]}, {q*4096 + q*32}, v{vXR[0]}")
    e(f"s_lshl4_add_u32 s{sT1}, s{sWR}, s{sGS}")
    e(f"v_add_lshl_u32 v{vStat}, v22, s{sT1}, 2")
    e(f"s_mul_i32 s{sT2}, s{sTT}, 112")
    e(f"s_add_u32 s{sT1}, s{sT3}, s{sT2}")
    e(f"v_min_u32 v30, 13, v{vLane}")
    e(f"v_lshl_add_u32 v30, v30, 3, s{sT1}")
    e(f"v_mul_u32_u24 v{vDum+3}, 3584, v30")
    e(f"s_lshl_b32 s{sT2}, s{sTT}, 6")
    e(f"s_add_u32 s{sT1}, s{sT3}, s{sT2}")
    e(f"s_add_u32 s{sT1}, s{sT1}, 192")
    e(f"v_min_u32 v31, 7, v{vLane}")
    e(f"v_lshl_add_u32 v31, v31, 3, s{sT1}")
    e(f"v_mul_lo_u32 v{vDum+2}, v31, s{sP64}")
    e(f"s_lshl_b32 s{sP64}, s{sP64}, 6")
    srd2(rW1, pW1, W1_BYTES)
    srd2(rW3, pW3, W1_BYTES)
    e(f"s_lshl_b32 s{sSO[1][0]}, s{sCOL}, 7")
    e(f"s_lshr_b32 s{sT1}, s{sCOL}, 1")
    e(f"s_add_u32 s{sT1}, s{sT1}, 16")
    e(f"s_lshl_b32 s{sSO[2][0]}, s{sT1}, 7")
    e(f"s_cmp_lt_u32 s{sW}, 4")
    e(f"s_cbranch_scc1 L_x2")
    a.skip_begin(); xloads(0, XE, sXa, sXb); a.skip_end()
    a.label("L_x2")
    xloads(XE, 14, sXa, sXb)
    e(f"s_lshl_b32 s{sStat}, s2, 9")
    e(f"s_add_u32 s{sStat}, s{sStat}, {ST_OFF}")
    e(f"s_mov_b32 s{sOnes}, 0x3f803f80")
    e(f"s_movk_i32 s{sLo}, 0x3f80")
    e(f"s_mov_b32 s{sHi}, 1.0")
    def slot(c):
        if c < 3: return 7 + c
        if c < 10: return c - 3
        if c == 20: return 7
        return slot(c - 9)
    dma_next = [3]
    def dma(c, track=True):
        r, cc = divmod(c, 7)
        if cc == 0:
            e(f"s_mov_b32 s{sCurA}, s{sSO[r][0]}")
            if r == 0: e(f"s_mov_b32 s{sCurB}, s{sSO[r][1]}")
        va, vb = [(vD0, vD0), (vD1, vD1), (vD1, vD2B)][r]
        sa, sb = (rA, rB) if r == 0 else (rW1, rW3)
        inc = f"s{sP64}" if r == 0 else f"{64*3584}"
        e(f"s_add_u32 m0, s{sM0}, {slot(c)*16384}")
        if cc: e(f"s_add_u32 s{sCurA}, s{sCurA}, {inc}")
        e(f"buffer_load_dwordx4 v{va}, {S(sa)}, s{sCurA} offen lds")
        e(f"s_add_u32 m0, s{sM0}, {slot(c)*16384+8192}")
        if cc and r == 0: e(f"s_add_u32 s{sCurB}, s{sCurB}, {inc}")
        e(f"buffer_load_dwordx4 v{vb}, {S(sb)}, s{sCurB if r == 0 else sCurA} offen lds")
        if track: a.vm += [f"c{c}", f"c{c}"]
    for q in range(8): e(f"v_mov_b32 v{T0+8+q}, 0")
    e(f"s_cmp_lt_u32 s{sW}, 4")
    e(f"s_cbranch_scc1 L_lnA")
    e(f"s_waitcnt vmcnt(0)")
    def dma4(c):
        dma(c, track=False)
        e(f"s_add_u32 m0, s{sM0}, {slot(c)*16384 - 4096}")
        e(f"buffer_load_dwordx4 v32, {S(rA)}, s{sCurA} offen lds")
        e(f"s_add_u32 m0, s{sM0}, {slot(c)*16384 + 8192 - 4096}")
        e(f"buffer_load_dwordx4 v32, {S(rB)}, s{sCurB} offen lds")
        a.vm += [f"c{c}"] * 4
    C2 = opt.get("c2pos", 0)
    for c in range(3 if C2 == 0 else 2): dma4(c)
    e(f"s_branch L_lnB")
    a.label("L_lnA")
    e(f"s_lshl1_add_u32 s{sCurA}, s{sP64}, s{sSO[0][0]}")
    e(f"s_lshl1_add_u32 s{sCurB}, s{sP64}, s{sSO[0][1]}")
    e(f"s_waitcnt vmcnt(0)")
    a.label("L_lnB")
    a.reset_hist()
    sp.stamp("x0"); sp.stamp("x0", lvl=3)
    AC = T0 + 8
    def reduce2(d0, d1):
        for g in range(2): e(f"v_add_f32 v{AC+4*g}, v{AC+4*g}, v{AC+4*g+1}")
        for g in range(2): e(f"v_add_f32 v{AC+4*g+2}, v{AC+4*g+2}, v{AC+4*g+3}")
        for g, d in enumerate((d0, d1)): e(f"v_add_f32 v{d}, v{AC+4*g}, v{AC+4*g+2}")
        for m in ("quad_perm:[1,0,3,2]", "quad_perm:[2,3,0,1]", "row_half_mirror"):
            for d in (d0, d1): e(f"v_add_f32_dpp v{d}, v{d}, v{d} {m} row_mask:0xf bank_mask:0xf")
    for i in range(28):
        for g in range(2): e(f"v_dot2c_f32_bf16 v{AC+4*g+i%4}, s{sOnes}, v{RAW+g*28+i}")
    reduce2(vAcc[0], vAcc[1])
    for q in range(8): e(f"v_mov_b32 v{AC+q}, 0")
    for g in range(2): e(f"v_mul_f32 v{vAcc[g]}, {hexf(-1.0/448)}, v{vAcc[g]}")
    if C2 == 1:
        e(f"s_cmp_lt_u32 s{sW}, 4")
        e(f"s_cbranch_scc1 L_c2")
        a.skip_begin(); dma4(2); a.skip_end()
        a.label("L_c2")
    sp.stamp("pre", lvl=3)
    pend = None
    for gi in range(2):
        for i in range(7):
            r = RAW + gi * 28 + i * 4
            for k in range(4):
                e(f"v_dot2_f32_bf16 v{T0+2*k}, v{r+k}, s{sLo}, v{vAcc[gi]}")
                e(f"v_dot2_f32_bf16 v{T0+2*k+1}, v{r+k}, s{sHi}, v{vAcc[gi]}")
            if pend: pend()
            for k in range(4):
                e(f"v_cvt_pk_bf16_f32 v{r+k}, v{T0+2*k}, v{T0+2*k+1}")
            def pend(r=r, gi=gi, i=i):
                off = i * 16384
                a.ds_op(f"ds_write_b128 v{vXW[off >> 16]}, v[{r}:{r+3}] offset:{off & 0xffff}", "xw")
                if i == 6 and gi == 0:
                    e(f"v_xor_b32 v{vXW[0]}, 128, v{vXW[0]}")
                    e(f"v_xor_b32 v{vXW[1]}, 128, v{vXW[1]}")
    pend()
    if C2 == 2:
        e(f"s_cmp_lt_u32 s{sW}, 4")
        e(f"s_cbranch_scc1 L_c2")
        a.skip_begin(); dma4(2); a.skip_end()
        a.label("L_c2")
    sp.stamp("post", lvl=3)
    for i in range(28):
        for g in range(2): e(f"v_dot2c_f32_bf16 v{AC+4*g+i%4}, v{RAW+g*28+i}, v{RAW+g*28+i}")
    e(f"v_mov_b32 v{T0}, {hexf(1e-5)}")
    e(f"v_mov_b32 v{T0+1}, {hexf(1e-5)}")
    e(f"v_xor_b32 v{T0+2}, 32, v{vStat}")
    reduce2(vAcc[0], vAcc[1])
    for g in range(2): e(f"v_fmac_f32 v{T0+g}, {hexf(1.0/448)}, v{vAcc[g]}")
    def wpf():
        e(f"buffer_load_dword v{vDum+1}, v{vDum+2}, {S(rA)}, s{sSO[0][0]} offen")
        e(f"buffer_load_dword v{vDum+1}, v{vDum+2}, {S(rB)}, s{sSO[0][1]} offen")
        for r in (1, 2):
            e(f"buffer_load_dword v{vDum+1}, v{vDum+3}, {S(rW1)}, s{sSO[r][0]} offen")
            e(f"buffer_load_dword v{vDum+1}, v{vDum+3}, {S(rW3)}, s{sSO[r][0]} offen")
        if opt.get("w2pf", 3) == 3:
            e(f"s_lshl2_add_u32 s{sT1}, s2, s{sW}")
            e(f"s_mul_i32 s{sT2}, s{sT1}, {13*128}")
            e(f"s_lshl_b32 s{sT1}, s{sT1}, 9")
            e(f"v_min_u32 v{vDum+2}, 12, v{vLane}")
            e(f"v_lshl_add_u32 v{vDum+2}, v{vDum+2}, 7, s{sT2}")
            e(f"v_min_u32 v{vDum+2}, {W2_BYTES-4}, v{vDum+2}")
            e(f"v_min_u32 v{vDum+3}, 3, v{vLane}")
            e(f"v_lshl_add_u32 v{vDum+3}, v{vDum+3}, 7, s{sT1}")
            e(f"v_min_u32 v{vDum+3}, {WO_BYTES-4}, v{vDum+3}")
            e(f"global_load_dword v{vDum+1}, v{vDum+2}, s[{pW2}:{pW2+1}]")
            e(f"global_load_dword v{vDum+1}, v{vDum+3}, s[{pWO}:{pWO+1}]")
    e(f"s_cmp_ge_u32 s{sW}, 4")
    e(f"s_cbranch_scc1 L_lnD")
    a.skip_begin()
    e(f"s_or_b32 s{sT3}, s2, s{sW}")
    e(f"s_cbranch_scc1 L_noflag")
    e(f"v_mov_b32 v25, 0")
    e(f"v_mov_b32 v26, 1")
    e(f"global_store_dword v25, v26, s[{pDBG}:{pDBG+1}] sc1")
    a.label("L_noflag")
    if opt.get("wpf", 1) == 1: wpf()
    e(f"s_branch L_lnE")
    a.skip_end()
    a.label("L_lnD")
    sp.stamp("ln", lvl=3, nowait=True)
    a.vm_wait("c1")
    a.label("L_lnE")
    a.ds_wait_all()
    sp.stamp("ln")
    sp.stamp("c1", lvl=3)
    e("s_barrier")
    sp.stamp("b1"); sp.stamp("b1", lvl=3)
    def deferred():
        t0, t1, t2 = AB, AB + 1, AB + 2
        G = lambda *ins: (lambda: [e(x) for x in ins], sum(2 if x.startswith("s_") else 4 for x in ins))
        L = []
        L.append(G(f"v_xor_b32 v{vD2B}, 32, v{vD1}", f"v_lshlrev_b32 v{vSt}, 4, v{vLane}", f"s_mov_b32 vcc_lo, -1", f"s_mov_b32 vcc_hi, 0"))
        L.append(G(f"s_lshl2_add_u32 s{sTTG}, s{sRB}, s{sTT}", f"s_lshl_b32 s{sHoff}, s{sG}, 6"))
        L += [G(x) for x in traddr(vTB[1][0], sHoff, t0, t1)]
        L.append(G(f"v_add_u32 v{vTB[1][1]}, 8192, v{vTB[1][0]}"))
        L.append(G(f"s_and_b32 s{sHoff}, s{sCOL}, 1", f"s_lshl1_add_u32 s{sHoff2}, s{sHoff}, s{sG}", f"s_lshl_b32 s{sHoff}, s{sHoff2}, 5",
                   f"v_xor_b32 v{t0}, s{sHoff}, v{vCol}"))
        L.append(G(f"v_xor_b32 v{t0}, v{t0}, v{vSwz}", f"v_and_b32 v{t1}, 16, v{vLane}"))
        L.append(G(f"v_lshl_add_u32 v{t0}, v{t1}, 9, v{t0}", f"v_add_u32 v{vTB[2][0]}, v{t0}, v{vRow}"))
        L.append(G(f"s_mul_i32 s{sHoff}, s{sTTG}, 112", f"s_add_u32 s{sHoff2}, s{sHoff2}, s{sHoff}", f"s_lshr_b32 s{sQKoff}, s{sSO[2][0]}, 5",
                   f"s_add_u32 s{sHoff2}, s{sHoff2}, s{sQKoff}", f"s_lshl_b32 s{sHoff2}, s{sHoff2}, 10", f"s_add_u32 s{sHoff2}, s{sHoff2}, {H_OFF}"))
        L.append(G(f"s_lshl1_add_u32 s{sHoff}, s{sG}, s{sHoff}", f"s_lshl2_add_u32 s{sHoff}, s{sCOL}, s{sHoff}", f"s_lshl_b32 s{sHoff}, s{sHoff}, 10",
                   f"s_add_u32 s{sHoff}, s{sHoff}, {H_OFF}"))
        L.append(G(f"s_lshl1_add_u32 s{sQKoff}, s{sCOL}, s{sG}", f"s_lshl_b32 s{sQKoff}, s{sQKoff}, 7", f"s_add_u32 s{sQKoff}, s{sQKoff}, s{sTTG}",
                   f"s_lshl_b32 s{sQKoff}, s{sQKoff}, 11", f"s_add_u32 s{sQKstep}, s{sHoff}, {12*4096}", f"s_cmp_ge_u32 s{sCOL}, 12",
                   f"s_cselect_b32 s{sQKoff}, s{sQKstep}, s{sQKoff}"))
        L.append(G(f"s_lshr_b32 s{sQKstep}, s{sCOL}, 2", f"s_cmp_eq_u32 s{sQKstep}, 1", f"s_cselect_b32 s{sOnes}, s{sOnes}, 0", f"s_cselect_b32 s{sHi}, s{sLo}, 0",
                   f"s_cmp_eq_u32 s{sQKstep}, 2", f"s_cselect_b32 s{sOnes}, s{sLo}, s{sOnes}"))
        L.append(G(f"v_mov_b32 v{vP6}, s{sOnes}", f"v_mov_b32 v{vP7}, s{sHi}"))
        L.append(G(f"v_lshrrev_b32 v{t2}, 5, v{vLane}", f"v_bfe_u32 v{t0}, v{vLane}, 2, 2", f"v_lshl_add_u32 v{t0}, v{t2}, 2, v{t0}"))
        L.append(G(f"v_lshrrev_b32 v{t1}, 1, v{t0}", f"v_lshlrev_b32 v{t1}, 3, v{t1}", f"v_xor_b32 v{t1}, v{t1}, v{vCol}"))
        L.append(G(f"s_lshl_b32 s{sQKstep}, s{sW}, 11", f"s_add_u32 s{sQKstep}, s{sQKstep}, {SCR}", f"v_lshl_add_u32 v{t0}, v{t0}, 6, v{t1}",
                   f"v_add_u32 v{vV2}, s{sQKstep}, v{t0}"))
        L.append(G(f"v_xor_b32 v{vV3}, 32, v{vV2}", f"v_bfe_u32 v{t0}, v{vLane}, 1, 3", f"v_xor_b32 v{t0}, v{t0}, v{t2}"))
        L.append(G(f"v_and_b32 v{t1}, 31, v{vLane}", f"v_lshlrev_b32 v{t1}, 6, v{t1}", f"v_lshl_add_u32 v{t0}, v{t0}, 3, v{t1}"))
        L.append(G(f"v_add_u32 v{vV1}, s{sQKstep}, v{t0}"))
        return L
    def check_flag(vtmp):
        done = lab("fl")
        e(f"v_readfirstlane_b32 s{sT1}, v{vFlag}")
        e(f"s_cmp_lg_u32 s{sT1}, 0")
        e(f"s_cbranch_scc1 {done}")
        e(f"s_mov_b32 s{sT2}, 0x40000")
        lp = lab("fs"); a.label(lp)
        e(f"v_mov_b32 v{vtmp}, 0")
        e(f"global_load_dword v{vFlag}, v{vtmp}, s[{pDBG}:{pDBG+1}] sc1")
        e(f"s_waitcnt vmcnt(0)")
        e(f"v_readfirstlane_b32 s{sT1}, v{vFlag}")
        e(f"s_sub_u32 s{sT2}, s{sT2}, 1")
        e(f"s_cselect_b32 s{sT1}, 1, s{sT1}")
        e(f"s_cmp_eq_u32 s{sT1}, 0")
        e(f"s_cbranch_scc1 {lp}")
        a.label(done)
    def signal(sIdx, add, va, vb):
        e(f"s_add_u32 s{sT1}, s{sIdx}, {add}")
        e(f"s_lshl_b32 s{sT1}, s{sT1}, 7")
        e(f"s_add_u32 s{sT1}, s{sT1}, {CNT_OFF}")
        e(f"v_mov_b32 v{va}, 0")
        e(f"v_mov_b32 v{vb}, 1")
        e(f"s_mov_b64 exec, 1")
        e(f"buffer_atomic_add v{vb}, v{va}, {S(rWS)}, s{sT1} offen sc1")
        e(f"s_mov_b64 exec, -1")
    def poll(vaddr, vval, target, sleep):
        lp = lab("po"); done = lab("pd")
        e(f"s_mov_b32 s{sT2}, 0x40000")
        e(f"s_mov_b32 s{sT3}, {CNT_OFF}")
        a.label(lp)
        e(f"buffer_load_dword v{vval}, v{vaddr}, {S(rWS)}, s{sT3} offen sc1")
        e(f"s_waitcnt vmcnt(0)")
        e(f"v_cmp_gt_u32 s[74:75], {target}, v{vval}")
        e(f"s_cmp_eq_u64 s[74:75], 0")
        e(f"s_cbranch_scc1 {done}")
        e(f"s_sleep {sleep}")
        e(f"s_sub_u32 s{sT2}, s{sT2}, 1")
        e(f"s_cbranch_scc0 {lp}")
        a.label(done)
        a.vm = []
    def lds_arrive(k, va, vb, rtn=False):
        e(f"v_mov_b32 v{va}, {SYNC + 4*k}")
        e(f"v_mov_b32 v{vb}, 1")
        e(f"s_mov_b64 exec, 1")
        e(f"ds_add_rtn_u32 v{vb}, v{va}, v{vb}" if rtn else f"ds_add_u32 v{va}, v{vb}")
        e(f"s_mov_b64 exec, -1")
    def lds_sync(k, n, va, vb):
        a.ds_wait_all()
        lds_arrive(k, va, vb)
        lp = lab("ls")
        e(f"s_mov_b32 s{sT2}, 0x400000")
        a.label(lp)
        e(f"ds_read_b32 v{vb}, v{va}")
        e(f"s_waitcnt lgkmcnt(0)")
        e(f"v_readfirstlane_b32 s{sT1}, v{vb}")
        e(f"s_sub_u32 s{sT2}, s{sT2}, 1")
        e(f"s_cselect_b32 s{sT1}, {n}, s{sT1}")
        e(f"s_cmp_lt_u32 s{sT1}, {n}")
        e(f"s_cbranch_scc1 {lp}")
    def lds_spin(k, n, va, vb, sleep):
        lp = lab("ls"); ok = lab("lk")
        e(f"v_mov_b32 v{va}, {SYNC + 4*k}")
        e(f"s_mov_b32 s{sT2}, 0x100000")
        a.label(lp)
        e(f"ds_read_b32 v{vb}, v{va}")
        e(f"s_waitcnt lgkmcnt(0)")
        e(f"v_readfirstlane_b32 s{sT1}, v{vb}")
        e(f"s_cmp_ge_u32 s{sT1}, {n}")
        e(f"s_cbranch_scc1 {ok}")
        e(f"s_sleep {sleep}")
        e(f"s_sub_u32 s{sT2}, s{sT2}, 1")
        e(f"s_cbranch_scc0 {lp}")
        a.label(ok)
    def lds_wait(k, n, va, vb, meanwhile):
        lp = lab("lw"); ok = lab("lo")
        e(f"v_mov_b32 v{va}, {SYNC + 4*k}")
        e(f"ds_read_b32 v{vb}, v{va}")
        meanwhile()
        e(f"s_mov_b32 s{sT2}, 0x400000")
        a.label(lp)
        e(f"s_waitcnt lgkmcnt(0)")
        e(f"v_readfirstlane_b32 s{sT1}, v{vb}")
        e(f"s_cmp_ge_u32 s{sT1}, {n}")
        e(f"s_cbranch_scc1 {ok}")
        e(f"ds_read_b32 v{vb}, v{va}")
        e(f"s_sub_u32 s{sT2}, s{sT2}, 1")
        e(f"s_cbranch_scc0 {lp}")
        a.label(ok)
    def last_signals(k, n, sIdx, add, va, vb):
        lds_arrive(k, va, vb, rtn=True)
        e(f"s_waitcnt lgkmcnt(0)"); a.lg = []
        e(f"v_readfirstlane_b32 s{sT1}, v{vb}")
        sk = lab("ns")
        e(f"s_cmp_lg_u32 s{sT1}, {n-1}")
        e(f"s_cbranch_scc1 {sk}")
        a.skip_begin()
        signal(sIdx, add, va, vb)
        a.skip_end()
        a.label(sk)
    NT = [2, 2, 1]
    ACC = [AA, AB, AA]
    tw_state = [None, None]
    def wreads(G):
        r, s = divmod(G, 28)
        base = slot(G // 4) * 16384 + (s % 4) * 2048
        hi, lo = base >> 16, base & 0xffff
        L = []
        for t in range(NT[r]):
            d = WF + (G % 3) * 8 + t * 4
            def f0(t=t, d=d):
                if tw_state[t] != (r, hi):
                    e(f"v_add_u32 v{vTW[t]}, {hex(hi << 16)}, v{vTB[r][t]}")
                    tw_state[t] = (r, hi)
                a.ds_op(f"ds_read_b64_tr_b16 v[{d}:{d+1}], v{vTW[t]} offset:{lo}", f"w{G}")
            def f1(t=t, d=d):
                a.ds_op(f"ds_read_b64_tr_b16 v[{d+2}:{d+3}], v{vTW[t]} offset:{lo+512}", f"w{G}")
            L += [f0, f1]
        return L
    xr_next = [0]
    def xread(n):
        for _ in range(n):
            s = xr_next[0]
            if s >= 28: return
            xr_next[0] += 1
            if s == 16:
                for q in range(4): e(f"v_add_u32 v{vXR[q]}, 0x10000, v{vXR[q]}")
            off = ((s // 4) * 16384) & 0xffff
            a.ds_op(f"ds_read_b128 v[{X0+4*s}:{X0+4*s+3}], v{vXR[s%4]} offset:{off}", f"x{s}")
    BARS = opt.get("bars", [0, 1, 2, 3, 5, 7, 9, 11, 13, 15, 17, 19])
    PQ = opt.get("pq", 13)
    PZ = opt.get("pz", 15)
    L2P = {int(k): v for k, v in opt.get("l2p", {}).items()}
    window = []; pending = []
    def period_barrier(i):
        for c in window: a.vm.extend([f"c{c}", f"c{c}"])
        assert not pending, pending
        window.clear()
        nxt = min([b for b in BARS if b > i] + [20])
        a.vm_wait(f"c{nxt}")
        assert dma_next[0] > nxt, (i, nxt, dma_next[0])
        if i == 3: a.vm_wait("stat")
        if i == PQ: a.vm_wait("st")
        if i in opt.get("sb", []): sp.stamp("pre", lvl=2, nowait=True)
        e("s_barrier")
        if i in opt.get("sb", []): sp.stamp("post", lvl=2, nowait=True)
        if i == 3:
            e(f"v_and_b32 v{vK}, 31, v{vLane}")
            e(f"v_lshlrev_b32 v{vK}, 2, v{vK}")
            e(f"s_lshl_b32 s{sT1}, s{sTT}, 7")
            e(f"s_add_u32 s{sT1}, s{sT1}, s{sStat}")
            e(f"v_mov_b32 v{vFlag}, 0")
            a.vm_op(f"buffer_load_dword v{vK}, v{vK}, {S(rWS)}, s{sT1} offen sc1", "kld")
            a.vm_op(f"global_load_dword v{vFlag}, v{vFlag}, s[{pDBG}:{pDBG+1}] sc1", "kld")
        if i in L2P:
            for k in L2P[i]:
                sk = lab("pf")
                e(f"s_cmp_lg_u32 s{sW}, {k}")
                e(f"s_cbranch_scc1 {sk}")
                a.skip_begin()
                e(f"s_lshr_b32 s{sT1}, s2, 3")
                nl, ptr, nb = (56, pW2, W2_BYTES) if k < 7 else (98, pWO, WO_BYTES)
                if k < 7:
                    e(f"s_mul_i32 s{sT1}, s{sT1}, {7*56*128}")
                    e(f"s_add_u32 s{sT1}, s{sT1}, {k*56*128}")
                else:
                    e(f"s_mul_i32 s{sT1}, s{sT1}, {98*128}")
                e(f"v_min_u32 v{vDum+2}, {min(nl, 64) - 1 if k < 7 else 48}, v{vLane}")
                e(f"v_lshl_add_u32 v{vDum+2}, v{vDum+2}, 7, s{sT1}")
                e(f"global_load_dword v{vDum+1}, v{vDum+2}, s[{ptr}:{ptr+1}]")
                if k == 7:
                    e(f"v_add_u32 v{vDum+2}, {49*128}, v{vDum+2}")
                    e(f"global_load_dword v{vDum+1}, v{vDum+2}, s[{ptr}:{ptr+1}]")
                a.skip_end()
                a.label(sk)
        if i == PZ:
            e(f"v_lshrrev_b32 v{vV1}, 2, v{vSt}")
            e(f"v_add_u32 v{vV1}, {SYNC}, v{vV1}")
            e(f"v_mov_b32 v{vV2}, 0")
            a.ds_op(f"ds_write_b32 v{vV1}, v{vV2}", "z")
        if i == PQ and sigq[0]:
            sk = lab("q")
            e(f"s_cmp_lg_u32 s{sW}, 0")
            e(f"s_cbranch_scc1 {sk}")
            a.skip_begin()
            check_flag(vDum + 2)
            signal(sCOL, 0, vDum + 2, vDum + 3)
            a.skip_end()
            a.label(sk)
        while dma_next[0] <= 20:
            c = dma_next[0]
            if c < 10:
                sl = slot(c)
                if not all(xr_next[0] > s and a.ds_done(f"x{s}") for s in range(4*sl, 4*sl+4)): break
            elif c - 9 > i - 1: break
            window.append(c); dma_next[0] += 1
        nq = nxt - i
        per = -(-len(window) // nq)
        pending[:] = [window[k*per:(k+1)*per] for k in range(nq)]
    sigq = [False]
    XR = opt.get("xrate", 2)
    def kloop(r, extra, budget, hooks={}):
        extra = list(extra)
        if opt.get("x_noepi"): extra = [x for x in extra if x[1] == 0]
        gap = 0
        for s in range(28):
            G = r * 28 + s
            Gn = G + 2
            rd = wreads(Gn) if Gn < 84 else []
            a.ds_wait(f"w{G}")
            if r == 0: a.ds_wait(f"x{s}")
            ph = Gn % 4
            for t in range(NT[r]):
                d = ACC[r] + 16 * t
                w = WF + (G % 3) * 8 + t * 4
                c = "0" if s == 0 else f"v[{d}:{d+15}]"
                e(f"v_mfma_f32_32x32x16_bf16 v[{d}:{d+15}], v[{w}:{w+3}], v[{X0+4*s}:{X0+4*s+3}], {c}")
                gap += 1
                if t == 0 and Gn < 84 and ph == 0 and (Gn // 4 - 1) in BARS: period_barrier(Gn // 4 - 1)
                n = -(-len(rd) // (NT[r] - t))
                for f in rd[:n]: f()
                rd = rd[n:]
                if r == 0: xread((XR + 1 - t) // 2)
                left = budget
                if t == NT[r] - 1 and pending and pending[0] and ph % 2 == 0:
                    sk = lab("d")
                    e(f"s_cmp_lg_u32 s{sPh}, {ph}")
                    e(f"s_cbranch_scc1 {sk}")
                    a.skip_begin()
                    for c in pending[0]: dma(c, track=False)
                    a.skip_end()
                    a.label(sk)
                    left = opt.get("dmabud", 4)
                if t == NT[r] - 1 and s in hooks: hooks[s](); left = 0
                while extra and gap > 3 and extra[0][1] <= left:
                    f, cst = extra.pop(0); f(); left -= cst
            if ph == 3 and pending: pending.pop(0)
        return extra
    def I(t):
        op = t.split()[0]
        return (lambda: e(t), 8 if op.startswith(TRANS) else (2 if op.startswith("s_") else 4))
    def consts():
        def sel():
            e(f"s_cmp_lt_u32 s{sCOL}, 4")
            e(f"s_cselect_b32 s{sT1}, {hexf(28**-0.5*LOG2E)}, 1.0")
            e(f"v_mul_f32 v{vSc}, s{sT1}, v{vSc}")
        return [(lambda: a.vm_wait("kld"), 0), I(f"v_rsq_f32 v{vSc}, v{vK}"),
                I(f"v_mul_f32 v{vC1}, {hexf(-LOG2E)}, v{vSc}"), (sel, 8)]
    def silu4(Gt, U, t, p):
        L = []
        for k in range(4): L.append(I(f"v_mul_f32 v{t+k}, v{vC1}, v{Gt+k}"))
        for k in range(4):
            L.append(I(f"v_exp_f32 v{t+k}, v{t+k}"))
            L.append(I(f"v_mul_f32 v{Gt+k}, v{Gt+k}, v{U+k}"))
        for k in range(4): L.append(I(f"v_fma_f32 v{t+k}, v{t+k}, v{vK}, v{vK}"))
        for k in range(4): L.append(I(f"v_rcp_f32 v{t+k}, v{t+k}"))
        for k in range(4): L.append(I(f"v_mul_f32 v{Gt+k}, v{Gt+k}, v{t+k}"))
        for k in range(2): L.append(I(f"v_cvt_pk_bf16_f32 v{p+k}, v{Gt+2*k}, v{Gt+2*k+1}"))
        return L
    def store(r, soff, off):
        if opt.get("x_nost"): return (lambda: None, 8)
        return (lambda: a.vm_op(f"buffer_store_dwordx4 v[{r}:{r+3}], v{vSt}, {S(rWS)}, s{soff} offen offset:{off}{ST}", "st"), 8)
    def epiF(acc, soff):
        Gt, U = acc, acc + 16
        L = []
        for q in range(4):
            L += silu4(Gt + 4*q, U + 4*q, T0 + (q % 2) * 4, U + (q // 2) * 8 + (q % 2) * 2)
            if q % 2 == 1: L.append(store(U + (q // 2) * 8, soff, (q // 2) * 1024))
        return L
    def epiQKV(acc, isv):
        L = []
        P = T0 + 8
        for q in range(4):
            for k in range(4): L.append(I(f"v_mul_f32 v{acc+4*q+k}, v{vSc}, v{acc+4*q+k}"))
            for k in range(2): L.append(I(f"v_cvt_pk_bf16_f32 v{P+2*q+k}, v{acc+4*q+2*k}, v{acc+4*q+2*k+1}"))
            if q == 1 and not isv: L.append(store(P, sQKoff, 0))
        L.append(I(f"v_cndmask_b32 v{P+6}, v{vP6}, v{P+6}, vcc"))
        L.append(I(f"v_cndmask_b32 v{P+7}, v{vP7}, v{P+7}, vcc"))
        if not isv: L.append(store(P + 4, sQKoff, 1024))
        else:
            for q in range(4):
                if q: L.append(I(f"v_xor_b32 v{vV4}, {16*q}, v{vV1}"))
                L.append((lambda q=q: a.ds_op(f"ds_write_b64 v{vV4 if q else vV1}, v[{P+2*q}:{P+2*q+1}]", "vw"), 4))
            L += [(lambda: None, 8)] * 2
            L.append((lambda: a.ds_wait("vw"), 0))
            for q in range(4):
                L.append((lambda q=q: a.ds_op(f"ds_read_b64_tr_b16 v[{acc+2*q}:{acc+2*q+1}], v{vV3 if q % 2 else vV2} offset:{512*q}", "vr"), 4))
            L += [(lambda: None, 8)] * 2
            L.append((lambda: a.ds_wait("vr"), 0))
            L.append(store(acc, sQKoff, 0))
            L.append(store(acc + 4, sQKoff, 1024))
        L.append(I(f"s_add_u32 s{sQKoff}, s{sQKoff}, {64*2048}"))
        return L
    B1, B2 = opt.get("b1", 12), opt.get("b2", 12)
    xread(4)
    for f in wreads(0) + wreads(1): f()
    if opt.get("wpf", 1) == 2:
        e(f"s_cmp_ge_u32 s{sW}, 4")
        e(f"s_cbranch_scc1 L_wp")
        a.skip_begin(); wpf(); a.skip_end()
        a.label("L_wp")
    a.vm_op(f"buffer_store_dword v{T0}, v{vStat}, {S(rWS)}, s{sStat} offen", "stat")
    a.vm_op(f"buffer_store_dword v{T0+1}, v{T0+2}, {S(rWS)}, s{sStat} offen", "stat")
    assert not kloop(0, deferred(), 16)
    sp.stamp("r0")
    e(f"s_cmp_lt_u32 s{sCOL}, 8")
    e(f"s_cbranch_scc1 L_pqk")
    e(f"s_cmp_lt_u32 s{sCOL}, 12")
    e(f"s_cbranch_scc1 L_pv")
    saved = (list(a.vm), list(a.lg), list(tw_state), dma_next[0], list(a.hist), list(window), [list(p) for p in pending], sp.n)
    ends = []
    for nm, ex in (("f", lambda: epiF(AA, sQKoff)), ("L_pqk", lambda: epiQKV(AA, False) + epiQKV(AA + 16, False)),
                   ("L_pv", lambda: epiQKV(AA, True) + epiQKV(AA + 16, True))):
        if nm != "f": a.label(nm)
        a.vm, a.lg = list(saved[0]), list(saved[1]); tw_state[:] = saved[2]; dma_next[0] = saved[3]; a.hist = list(saved[4])
        window[:] = saved[5]; pending[:] = [list(p) for p in saved[6]]; sp.set(saved[7])
        sigq[0] = nm != "f"
        nst0 = [0]
        exl = consts() + ex()
        if nm != "f":
            exl.append((lambda: nst0.__setitem__(0, 1), 0))
            _pb = period_barrier
        rest = kloop(1, exl, {"f": B1, "L_pqk": opt.get("b1q", 12), "L_pv": opt.get("b1v", 16)}[nm], hooks={(PQ + 1) * 4 - 2 - 28 - 1: (lambda: None) if nm == "f" else (lambda: (_ for _ in ()).throw(AssertionError("qkv epilogue too late")) if not nst0[0] else None)})
        for f, c in rest: f()
        ends.append(([t for t in a.vm if t != "st"], list(a.lg), list(tw_state), dma_next[0], list(window), [list(p) for p in pending]))
        if nm != "L_pv": e("s_branch L_r2")
    assert ends[0][1:] == ends[1][1:] == ends[2][1:], ends
    a.vm = min((x[0] for x in ends), key=len)
    assert all(x[0][len(x[0])-len(a.vm):] == a.vm for x in ends)
    a.label("L_r2")
    e("s_nop 1")
    sp.stamp("r1")
    K0, Q, KV, O, Sx, P, T = 16, 24, 56, 128, 192, 224, 240
    ATT_LDS, WO_LDS = 49152, 98304
    sX, sJ = 54, 55
    sHead, sQB, sKV, sRun = 62, 63, 64, 58
    sWq, sTB, sCB, sWo, sLB = 62, 63, 64, 58, 66
    vD, vPoll, vStV = vD0, vDum + 4, vD0
    rW = rA
    rK, rV = rA, rB
    def early1():
        e(f"s_and_b32 s{sX}, s2, 7")
        e(f"s_lshr_b32 s{sJ}, s2, 3")
        e(f"s_lshl_b32 s{sHead}, s{sX}, 1")
        e(f"s_and_b32 s{sT1}, s{sJ}, 1")
        e(f"s_add_u32 s{sHead}, s{sHead}, s{sT1}")
        e(f"v_min_u32 v{vPoll}, 2, v{vLane}")
        e(f"v_lshlrev_b32 v{vPoll}, 9, v{vPoll}")
        e(f"s_lshr_b32 s{sT1}, s{sHead}, 2")
        e(f"s_lshl_b32 s{sT1}, s{sT1}, 7")
        e(f"v_add_u32 v{vPoll}, s{sT1}, v{vPoll}")
        check_flag(vDum + 2)
        e(f"s_mov_b32 s{sT3}, {CNT_OFF}")
        a.vm_op(f"buffer_load_dword v{vDum+3}, v{vPoll}, {S(rWS)}, s{sT3} offen sc1", "poll")
    NE = opt.get("ne", 1)
    def kvload(i):
        for k in range(4):
            r = KV + 16 * i + 4 * k
            e(f"buffer_load_dwordx4 v[{r}:{r+3}], v{vSt}, {S(rK if k < 2 else rV)}, s{sRun} offen offset:{1024*(k%2)}{LD}")
        e(f"s_add_u32 s{sRun}, s{sRun}, 2048")
        e(f"s_and_b32 s{sRun}, s{sRun}, 0x1ffff")
    def early2():
        a.vm_wait("poll")
        e(f"s_cmp_ge_u32 s{sW}, 4")
        e(f"s_cbranch_scc1 L_e2j")
        a.skip_begin()
        e(f"v_cmp_gt_u32 s[74:75], 16, v{vDum+3}")
        e(f"s_cmp_eq_u64 s[74:75], 0")
        e(f"s_cbranch_scc1 L_e2ok")
        sv = list(a.vm)
        poll(vPoll, vDum + 3, 16, 1)
        a.vm = sv
        a.label("L_e2ok")
        e(f"s_lshr_b32 s{sQB}, s{sJ}, 1")
        e(f"s_lshl_b32 s{sKV}, s{sHead}, 17")
        e(f"s_add_u32 s{sKV}, s{sKV}, {KV_OFF}")
        e(f"s_lshl_b32 s{sT1}, s{sHead}, 6")
        e(f"s_lshl2_add_u32 s{sT1}, s{sQB}, s{sT1}")
        e(f"s_add_u32 s{sT1}, s{sT1}, s{sW}")
        e(f"s_lshl_b32 s{sT1}, s{sT1}, 11")
        e(f"buffer_load_dwordx4 v[{Q}:{Q+3}], v{vSt}, {S(rWS)}, s{sT1} offen{LD}")
        e(f"buffer_load_dwordx4 v[{Q+4}:{Q+7}], v{vSt}, {S(rWS)}, s{sT1} offen offset:1024{LD}")
        e(f"s_and_b32 s{sT1}, s{sQB}, {7 if opt.get('rot', 0) else 0}")
        e(f"s_lshl3_add_u32 s{sT1}, s{sW}, s{sT1}")
        e(f"s_lshl1_add_u32 s{sT1}, s{sT1}, 1")
        e(f"s_lshl_b32 s{sRun}, s{sT1}, 11")
        e(f"s_add_u32 s{rK}, s{pWS}, s{sKV}")
        e(f"s_addc_u32 s{rK+1}, s{pWS+1}, 0")
        e(f"s_mov_b32 s{rK+2}, 0x20000")
        e(f"s_mov_b32 s{rK+3}, 0x20000")
        e(f"s_add_u32 s{rV}, s{rK}, {2 << 20}")
        e(f"s_addc_u32 s{rV+1}, s{rK+1}, 0")
        e(f"s_mov_b32 s{rV+2}, 0x20000")
        e(f"s_mov_b32 s{rV+3}, 0x20000")
        for i in range(NE): kvload(i)
        a.skip_end()
        a.label("L_e2j")
        a.vm_mark("early")
    rest = kloop(2, epiF(AB, sHoff), B2, hooks={opt.get("e1", 19): early1, opt.get("e2", 24): early2})
    e("s_barrier")
    sp.stamp("r2")
    for f, c in rest: f()
    for q in range(2):
        for f, c in silu4(AA + 4*q, AA + 8 + 4*q, T0 + 4*q, T0 + 8 + 2*q): f()
    store(T0 + 8, sHoff2, 0)[0]()
    e(f"s_cmp_ge_u32 s{sW}, 4")
    e(f"s_cbranch_scc1 L_gemm")
    nst = sp.n
    sFlag, sIt, sOoff = 59, 60, 61
    for i in range(NE, 3):
        kvload(i); a.vm += [f"kv{i}"] * 4
    assert NE >= 1
    a.vm_wait("early")
    e(f"v_mfma_f32_32x32x16_bf16 v[{Sx}:{Sx+15}], v[{KV}:{KV+3}], v[{Q}:{Q+3}], 0")
    e(f"v_mfma_f32_32x32x16_bf16 v[{Sx}:{Sx+15}], v[{KV+4}:{KV+7}], v[{Q+4}:{Q+7}], v[{Sx}:{Sx+15}]")
    for r in range(16): e(f"v_mov_b32 v{O+r}, 0")
    e(f"s_lshl_b32 s{sT1}, s{sW}, 11")
    e(f"s_add_u32 s{sT1}, s{sT1}, {ATT_LDS}")
    e(f"v_add_u32 v{T+2}, s{sT1}, v{vSt}")
    sp.stamp("qkv")
    M = T + 8
    def patch(jjs, bias):
        U = M + 4
        for jj in jjs: e(f"v_mov_b32 v{U+jj}, v{M+jj}")
        for jj in jjs: e(f"v_permlane32_swap_b32 v{M+jj}, v{U+jj}")
        for jj in jjs: e(f"v_max_f32 v{M+jj}, v{M+jj}, v{U+jj}")
        for jj in jjs: e(f"v_sub_f32 v{M+jj}, {hexf(-bias) if bias else 0}, v{M+jj}")
        for jj in jjs: e(f"v_cvt_pk_bf16_f32 v{U+jj}, v{M+jj}, v{M+jj}")
        for jj in jjs: e(f"v_and_b32 v{U+jj}, 0xffff0000, v{U+jj}")
        for jj in jjs: e(f"v_sub_f32 v{U+jj}, v{M+jj}, v{U+jj}")
        for jj in jjs: e(f"v_cvt_pk_bf16_f32 v{M+jj}, v{M+jj}, v{U+jj}")
        for jj in jjs: e(f"v_cndmask_b32 v{Q+8*jj+6}, v{M+jj}, v{Q+8*jj+6}, vcc")
        for jj in jjs: e(f"v_and_b32 v{M+jj}, 0xffff0000, v{M+jj}")
        for jj in jjs: e(f"v_sub_f32 v{U+jj}, v{U+jj}, v{M+jj}")
        for jj in jjs: e(f"v_cvt_pk_bf16_f32 v{U+jj}, v{U+jj}, 0")
        for jj in jjs: e(f"v_cndmask_b32 v{Q+8*jj+7}, v{U+jj}, v{Q+8*jj+7}, vcc")
    for k in range(4): e(f"v_max3_f32 v{M+4+k}, v{Sx+4*k}, v{Sx+4*k+1}, v{Sx+4*k+2}")
    for k in range(2): e(f"v_max3_f32 v{M+4+2*k}, v{M+4+2*k}, v{M+5+2*k}, v{Sx+8*k+3}")
    e(f"v_max3_f32 v{M}, v{Sx+7}, v{Sx+15}, v{M+4}")
    e(f"v_max_f32 v{M}, v{M}, v{M+6}")
    patch([0], BIAS)
    a.ds_op(f"ds_write_b128 v{T+2}, v[{Q}:{Q+3}]")
    a.ds_op(f"ds_write_b128 v{T+2}, v[{Q+4}:{Q+7}] offset:1024")
    for r in range(16, 40): e(f"v_mov_b32 v{O+r}, 0")
    lds_sync(1, 4, T, T + 1)
    for jj in range(1, 4):
        e(f"s_add_u32 s{sT1}, s{sW}, {jj}")
        e(f"s_and_b32 s{sT1}, s{sT1}, 3")
        e(f"s_lshl_b32 s{sT1}, s{sT1}, 11")
        e(f"s_add_u32 s{sT1}, s{sT1}, {ATT_LDS}")
        e(f"v_add_u32 v{T+2}, s{sT1}, v{vSt}")
        a.ds_op(f"ds_read_b128 v[{Q+8*jj}:{Q+8*jj+3}], v{T+2}")
        a.ds_op(f"ds_read_b128 v[{Q+8*jj+4}:{Q+8*jj+7}], v{T+2} offset:1024")
    for r in range(40, 64): e(f"v_mov_b32 v{O+r}, 0")
    for r in range(8): e(f"v_mov_b32 v{P+8+r}, 0")
    for r in range(8): e(f"v_mov_b32 v{KV+48+8+r}, 0")
    e(f"s_mov_b32 s{sFlag}, 0")
    e(f"s_lshl2_add_u32 s{sOoff}, s{sQB}, s{sW}")
    e(f"s_lshl4_add_u32 s{sOoff}, s{sOoff}, s{sHead}")
    e(f"s_lshl_b32 s{sOoff}, s{sOoff}, 11")
    e(f"s_add_u32 s{sOoff}, s{sOoff}, {O_OFF}")
    a.ds_wait_all()
    lds_arrive(2, T, T + 1)
    a.vm_wait("st")
    last_signals(0, 8, sRB, 12, T, T + 1)
    e(f"s_setprio {opt.get('attprio', 1)}")
    def qk(n, half):
        i, j = (n // 4) % 4, n % 4
        d = Sx + 16 * (n % 2); k = KV + 16 * i + 4 * half; q = Q + 8 * j + 4 * half
        c = "0" if half == 0 else f"v[{d}:{d+15}]"
        e(f"v_mfma_f32_32x32x16_bf16 v[{d}:{d+15}], v[{k}:{k+3}], v[{q}:{q+3}], {c}")
    def pv(n, half):
        i, j = (n // 4) % 4, n % 4
        d = O + 16 * j; v = KV + 16 * i + 8 + 4 * half; p = P + 8 * (n % 2) + 4 * half
        e(f"v_mfma_f32_32x32x16_bf16 v[{d}:{d+15}], v[{v}:{v+3}], v[{p}:{p+3}], v[{d}:{d+15}]")
    def sm(n, g):
        s = Sx + 16 * (n % 2) + 4 * g; p = P + 8 * (n % 2) + 2 * g
        for k in range(4): e(f"v_exp_f32 v{s+k}, v{s+k}")
        e(f"v_cvt_pk_bf16_f32 v{p}, v{s}, v{s+1}")
        e(f"v_cvt_pk_bf16_f32 v{p+1}, v{s+2}, v{s+3}")
    a.vm_wait("kv0")
    sp.stamp("preloop")
    qk(0, 0); qk(0, 1)
    e(f"s_mov_b32 s{sIt}, 3")
    e("s_nop 7")
    a.raw(".p2align 6")
    a.label("L_loop")
    start = len(a.lines)
    for n in range(16, 32):
        i, j = (n // 4) % 4, n % 4
        if j == 3: e("s_waitcnt vmcnt(8)")
        qk(n + 1, 0); sm(n, 0)
        qk(n + 1, 1); sm(n, 1)
        pv(n - 1, 0); sm(n, 2)
        pv(n - 1, 1)
        if j == 0:
            for k in range(0 if opt.get("x_nokv") else 4):
                r = KV + 16 * ((i + 3) % 4) + 4 * k
                e(f"buffer_load_dwordx4 v[{r}:{r+3}], v{vSt}, {S(rK if k < 2 else rV)}, s{sRun} offen offset:{2048*(i%2) + 1024*(k%2)}{LD}")
            if i % 2:
                e(f"s_add_u32 s{sRun}, s{sRun}, 4096")
                e(f"s_and_b32 s{sRun}, s{sRun}, 0x1ffff")
            if i == 0:
                e(f"s_cmp_eq_u32 s{sIt}, 0")
                e(f"s_cselect_b32 s{rK+2}, 0, s{rK+2}")
                e(f"s_cselect_b32 s{rV+2}, 0, s{rV+2}")
        sm(n, 3)
    e(f"s_sub_u32 s{sIt}, s{sIt}, 1")
    e("s_cbranch_scc0 L_loop")
    check_loop(a.lines[start:])
    lds_wait(2, 4, T + 4, T + 5, lambda: (pv(31, 0), pv(31, 1)))
    sp.stamp("loop")
    a.vm = []
    for jj in range(1, 4):
        e(f"s_add_u32 s{sT1}, s{sW}, {jj}")
        e(f"s_and_b32 s{sT1}, s{sT1}, 3")
        e(f"s_mul_i32 s{sT1}, s{sT1}, 12288")
        e(f"s_add_u32 s{sT1}, s{sT1}, {ATT_LDS}")
        e(f"v_add_u32 v{T+jj}, s{sT1}, v{vSt}")
        for q in range(4):
            r = O + 16 * jj + 4 * q
            a.ds_op(f"ds_write_b128 v{T+jj}, v[{r}:{r+3}] offset:{(jj-1)*4096 + q*1024}")
    e(f"s_mul_i32 s{sT1}, s{sW}, 12288")
    e(f"s_add_u32 s{sT1}, s{sT1}, {ATT_LDS}")
    e(f"v_add_u32 v{T}, s{sT1}, v{vSt}")
    lds_sync(7, 4, T + 4, T + 5)
    for p in range(3):
        for q in range(4):
            r = O + 16 + 16 * p + 4 * q
            a.ds_op(f"ds_read_b128 v[{r}:{r+3}], v{T} offset:{p*4096 + q*1024}", f"p{p}")
    for p in range(3):
        a.ds_wait(f"p{p}")
        for k in range(16): e(f"v_add_f32 v{O+k}, v{O+k}, v{O+16+16*p+k}")
    a.label("L_norm")
    e(f"v_mov_b32 v{T}, v{O+12}")
    e(f"v_mov_b32 v{T+1}, v{O+12}")
    e(f"v_permlane32_swap_b32 v{T}, v{T+1}")
    e(f"v_rcp_f32 v{T}, v{T+1}")
    e(f"v_mov_b32 v{T+2}, 0")
    for k in range(16): e(f"v_mul_f32 v{O+k}, v{O+k}, v{T}")
    for k in range(8): e(f"v_cvt_pk_bf16_f32 v{P+k}, v{O+2*k}, v{O+2*k+1}")
    e(f"v_cndmask_b32 v{P+6}, 0, v{P+6}, vcc")
    e(f"v_cndmask_b32 v{P+7}, 0, v{P+7}, vcc")
    e(f"buffer_store_dwordx4 v[{P}:{P+3}], v{vSt}, {S(rWS)}, s{sOoff} offen{ST}")
    e(f"buffer_store_dwordx4 v[{P+4}:{P+7}], v{vSt}, {S(rWS)}, s{sOoff} offen offset:1024{ST}")
    for k in range(16): e(f"v_fmac_f32 v{T+2}, 0, v{O+k}")
    e(f"v_mov_b32 v{T+3}, {hexf(2.0**-(BIAS+8))}")
    e(f"v_cmp_u_f32 s[66:67], v{T+2}, v{T+2}")
    e(f"v_cmp_lt_f32 s[74:75], v{T+1}, v{T+3}")
    e(f"s_or_b64 s[66:67], s[66:67], s[74:75]")
    e(f"s_cmp_eq_u64 s[66:67], 0")
    e(f"s_cselect_b32 s{sT1}, 1, s{sFlag}")
    e(f"s_cmp_eq_u32 s{sT1}, 0")
    e(f"s_cbranch_scc1 L_slow")
    e(f"s_waitcnt vmcnt(0)")
    sp.stamp("ost")
    e(f"s_lshl2_add_u32 s{sT2}, s{sQB}, s{sW}")
    signal(sT2, 28, T + 4, T + 5)
    lds_arrive(9, T + 6, T + 7)
    sp.dump(pWS, sW)
    e("s_endpgm")
    a.label("L_slow")
    a.reset_hist()
    e(f"s_waitcnt vmcnt(0)")
    e(f"s_mov_b32 s{sFlag}, 1")
    e(f"s_mov_b32 s{rK+2}, 0x20000")
    e(f"s_mov_b32 s{rV+2}, 0x20000")
    e(f"v_cndmask_b32 v{Q+6}, 0, v{Q+6}, vcc")
    e(f"v_cndmask_b32 v{Q+7}, 0, v{Q+7}, vcc")
    e(f"v_mov_b32 v{M}, 0xff800000")
    e(f"s_mov_b32 s{sRun}, 0")
    e(f"s_mov_b32 s{sIt}, 64")
    a.label("L_s1")
    start = len(a.lines)
    e(f"buffer_load_dwordx4 v[{KV}:{KV+3}], v{vSt}, {S(rK)}, s{sRun} offen{LD}")
    e(f"buffer_load_dwordx4 v[{KV+4}:{KV+7}], v{vSt}, {S(rK)}, s{sRun} offen offset:1024{LD}")
    e("s_waitcnt vmcnt(0)")
    e(f"v_mfma_f32_32x32x16_bf16 v[{Sx}:{Sx+15}], v[{KV}:{KV+3}], v[{Q}:{Q+3}], 0")
    e(f"v_mfma_f32_32x32x16_bf16 v[{Sx}:{Sx+15}], v[{KV+4}:{KV+7}], v[{Q+4}:{Q+7}], v[{Sx}:{Sx+15}]")
    for k in range(8): e(f"v_max3_f32 v{M}, v{M}, v{Sx+2*k}, v{Sx+2*k+1}")
    e(f"s_add_u32 s{sRun}, s{sRun}, 2048")
    e(f"s_sub_u32 s{sIt}, s{sIt}, 1")
    e(f"s_cmp_lg_u32 s{sIt}, 0")
    e("s_cbranch_scc1 L_s1")
    check_loop(a.lines[start:])
    patch([0], 0.0)
    for r in range(16): e(f"v_mov_b32 v{O+r}, 0")
    e(f"s_mov_b32 s{sRun}, 0")
    e(f"s_mov_b32 s{sIt}, 64")
    a.label("L_s2")
    start = len(a.lines)
    for k in range(4):
        e(f"buffer_load_dwordx4 v[{KV+4*k}:{KV+4*k+3}], v{vSt}, {S(rK if k < 2 else rV)}, s{sRun} offen offset:{1024*(k%2)}{LD}")
    e("s_waitcnt vmcnt(0)")
    qk(0, 0); qk(0, 1)
    for g in range(4): sm(0, g)
    pv(0, 0); pv(0, 1)
    e(f"s_add_u32 s{sRun}, s{sRun}, 2048")
    e(f"s_sub_u32 s{sIt}, s{sIt}, 1")
    e(f"s_cmp_lg_u32 s{sIt}, 0")
    e("s_nop 11")
    e("s_cbranch_scc1 L_s2")
    check_loop(a.lines[start:])
    e("s_branch L_norm")
    a.label("L_gemm")
    a.reset_hist(); a.vm = []; a.lg = []; sp.set(nst)
    ACCG, HR, WFR, T, WO_F, XF, GF = 16, 80, 136, 152, 160, 224, 136
    OF = HR
    GF = 240
    vA0, vA1, vIO, vCt = 4, 5, 6, 7
    sH0, sH1, sI0 = 59, 60, 61
    DP = opt.get("gdepth", 5)
    PACE = opt.get("pace", 4)
    def pace():
        nonlocal PACE
        if PACE and len(a.vm) > PACE:
            e(f"s_waitcnt vmcnt({PACE})"); a.vm = a.vm[-PACE:]
    e(f"s_setprio 2")
    e(f"s_waitcnt vmcnt(0)")
    last_signals(0, 8, sRB, 12, T, T + 1)
    e(f"s_cmp_ge_u32 s{sJ}, 28")
    e(f"s_cbranch_scc1 L_end")
    e(f"s_setprio {opt.get('gprio0', 2)}")
    srd(a, rW, pWO, WO_BYTES)
    e(f"s_sub_u32 s{sWq}, s{sW}, 4")
    e(f"s_mul_i32 s{sT1}, s{sJ}, 37")
    e(f"s_lshr_b32 s{sT1}, s{sT1}, 8")
    e(f"s_mul_i32 s{sT2}, s{sT1}, 7")
    e(f"s_sub_u32 s{sCB}, s{sJ}, s{sT2}")
    e(f"s_lshl2_add_u32 s{sTB}, s{sX}, s{sT1}")
    e(f"s_lshl_b32 s{sCB}, s{sCB}, 7")
    e(f"s_mul_i32 s{sLB}, s{sWq}, 12288")
    dma_voff(a, vLane, vD, T, T + 1)
    e(f"v_and_b32 v{T}, 31, v{vLane}")
    e(f"v_mul_u32_u24 v{T}, 896, v{T}")
    e(f"v_lshrrev_b32 v{T+1}, 5, v{vLane}")
    e(f"v_lshl_add_u32 v{vIO}, v{T+1}, 3, v{T}")
    e(f"s_and_b32 s{sT1}, s{sWq}, 1")
    e(f"s_lshl1_add_u32 s{sT3}, s{sTB}, s{sT1}")
    e(f"s_mul_i32 s{sI0}, s{sT3}, {32*896}")
    e(f"s_add_u32 s{sI0}, s{sI0}, s{sCB}")
    e(f"s_lshr_b32 s{sT2}, s{sWq}, 1")
    e(f"s_lshl_b32 s{sT2}, s{sT2}, 6")
    e(f"s_add_u32 s{sI0}, s{sI0}, s{sT2}")
    def issue_w(s):
        st = s % 6
        e(f"s_add_u32 m0, s{sLB}, {st*2048}")
        e(f"s_add_u32 s{sT1}, s{sWo}, {8*896}")
        a.vm_op(f"buffer_load_dwordx4 v{vD}, {S(rB)}, s{sWo} offen lds", f"s{s}")
        e(f"s_add_u32 m0, s{sLB}, {st*2048+1024}")
        e(f"s_add_u32 s{sWo}, s{sWo}, {16*896}")
        a.vm_op(f"buffer_load_dwordx4 v{vD}, {S(rB)}, s{sT1} offen lds", f"s{s}")
    srd(a, rB, pW2, W2_BYTES)
    e(f"s_mul_i32 s{sWo}, s{sWq}, {448*896}")
    e(f"s_add_u32 s{sWo}, s{sWo}, s{sCB}")
    for s in range(6): issue_w(s); pace()
    e(f"s_mul_i32 s{sH0}, s{sT3}, 112")
    e(f"s_xor_b32 s{sT3}, s{sT3}, 1")
    e(f"s_mul_i32 s{sH1}, s{sT3}, 112")
    e(f"s_mul_i32 s{sT1}, s{sWq}, 28")
    e(f"s_add_u32 s{sT1}, s{sT1}, {H_OFF >> 10}")
    e(f"s_add_u32 s{sH0}, s{sH0}, s{sT1}")
    e(f"s_add_u32 s{sH1}, s{sH1}, s{sT1}")
    e(f"s_lshl_b32 s{sH0}, s{sH0}, 10")
    e(f"s_lshl_b32 s{sH1}, s{sH1}, 10")
    e(f"s_xor_b32 s{sT2}, s{sT2}, s{sLB}")
    tr_addr(a, vLane, vA0, vA1, T, T + 1, T + 2, sT2, xor=True)
    def wr(s, d0, off, wait=True):
        if wait: a.vm_wait(f"s{s}")
        for ct in range(2):
            d = d0 + ct * 4
            ad = vA0 if ct == 0 else vA1
            a.ds_op(f"ds_read_b64_tr_b16 v[{d}:{d+1}], v{ad} offset:{off}", f"w{s}")
            a.ds_op(f"ds_read_b64_tr_b16 v[{d+2}:{d+3}], v{ad} offset:{off+1024}", f"w{s}")
    e(f"s_lshr_b32 s{sT1}, s{sTB}, 1")
    e(f"s_lshl_b32 s{sT1}, s{sT1}, 7")
    e(f"s_add_u32 s{sT1}, s{sT1}, {12*128}")
    e(f"v_mov_b32 v{vCt}, s{sT1}")
    def issue_h(s):
        st = s % 6
        off = (s % 4) * 1024
        a.vm_op(f"buffer_load_dwordx4 v[{HR+8*st}:{HR+8*st+3}], v{vSt}, {S(rWS)}, s{sH0} offen offset:{off}{LD}", f"s{s}")
        a.vm_op(f"buffer_load_dwordx4 v[{HR+8*st+4}:{HR+8*st+7}], v{vSt}, {S(rWS)}, s{sH1} offen offset:{off}{LD}", f"s{s}")
        if s % 4 == 3:
            e(f"s_add_u32 s{sH0}, s{sH0}, 4096")
            e(f"s_add_u32 s{sH1}, s{sH1}, 4096")
    e(f"s_cmp_lg_u32 s{sWq}, 0")
    e(f"s_cbranch_scc1 L_hw")
    poll(vCt, T + 1, 16, opt.get("hsleep", 12))
    lds_arrive(8, T, T + 1)
    a.label("L_hw")
    lds_spin(8, 1, T, T + 1, 3)
    e(f"s_waitcnt vmcnt(0)")
    sp.stamp("hrdy")
    for s in range(DP): issue_h(s)
    e(f"s_setprio {opt.get('gprio', 0)}")
    def mm(s, w, h):
        for ct in range(2):
            for tt in range(2):
                d = ACCG + (2*ct+tt) * 16
                c = "0" if s == 0 else f"v[{d}:{d+15}]"
                e(f"v_mfma_f32_32x32x16_bf16 v[{d}:{d+15}], v[{w+4*ct}:{w+4*ct+3}], v[{h+4*tt}:{h+4*tt+3}], {c}")
    wr(0, WFR, 0)
    TOP = opt.get("gtop", 0)
    for s in range(28):
        if TOP and s > 0:
            if s + 1 < 28: a.vm_wait(f"s{s+1}")
            if 6 <= s + DP - 1 < 28: issue_w(s + DP - 1)
            if s + DP - 1 < 28: issue_h(s + DP - 1)
        if s + 1 < 28: wr(s + 1, WFR + ((s + 1) % 2) * 8, ((s + 1) % 6) * 2048)
        a.ds_wait(f"w{s}")
        if not opt.get("x_nogm") or s == 0: mm(s, WFR + (s % 2) * 8, HR + 8 * (s % 6))
        if opt.get("x_nogl") or TOP: continue
        if 6 <= s + DP < 28: issue_w(s + DP)
        if s + DP < 28: issue_h(s + DP)
    sp.stamp("w2")
    e(f"s_setprio {opt.get('gprio2', 2)}")
    e(f"s_mul_i32 s{sH0}, s{sWq}, 15360")
    PACE = opt.get("pace2", 6)
    e(f"s_mul_i32 s{sWo}, s{sWq}, {112*896}")
    e(f"s_add_u32 s{sWo}, s{sWo}, s{sCB}")
    for i in range(15):
        e(f"s_add_u32 m0, s{sH0}, {WO_LDS + i*1024}")
        if i: e(f"s_add_u32 s{sWo}, s{sWo}, {8*896}")
        a.vm_op(f"buffer_load_dwordx4 v{vD}, {S(rW)}, s{sWo} offen lds", "wo")
        pace()
    XG = HR
    for q in range(4):
        a.vm_op(f"buffer_load_dwordx2 v[{XG+2*q}:{XG+2*q+1}], v{vIO}, {S(rX)}, s{sI0} offen offset:{16*q}", "xg")
        pace()
    e(f"s_setprio {opt.get('gprio3', 0)}")
    def exchange(k):
        for sl in range(1, 4):
            x = (sl >> 1) * 2 + (sl & 1)
            e(f"s_xor_b32 s{sT1}, s{sWq}, {((sl >> 1) << 1) | (sl & 1)}")
            e(f"s_mul_i32 s{sT1}, s{sT1}, 12288")
            e(f"v_add_u32 v{T+sl}, s{sT1}, v{vSt}")
            for q in range(4):
                r = ACCG + 16 * sl + 4 * q
                a.ds_op(f"ds_write_b128 v{T+sl}, v[{r}:{r+3}] offset:{(sl-1)*4096 + q*1024}")
        e(f"v_add_u32 v{T}, s{sLB}, v{vSt}")
        lds_sync(k, 4, T + 1, T + 2)
        for p in range(3):
            for q in range(4):
                r = ACCG + 16 + 16 * p + 4 * q
                a.ds_op(f"ds_read_b128 v[{r}:{r+3}], v{T} offset:{p*4096 + q*1024}", f"p{p}")
        for p in range(3):
            a.ds_wait(f"p{p}")
            for kk in range(16): e(f"v_add_f32 v{ACCG+kk}, v{ACCG+kk}, v{ACCG+16+16*p+kk}")
    lds_sync(3, 4, T + 1, T + 2)
    exchange(4)
    U = ACCG + 16
    for k in range(16): e(f"v_mul_f32 v{U+k}, {hexf(-LOG2E)}, v{ACCG+k}")
    for k in range(16): e(f"v_exp_f32 v{U+k}, v{U+k}")
    for k in range(16): e(f"v_add_f32 v{U+k}, 1.0, v{U+k}")
    for k in range(16): e(f"v_rcp_f32 v{U+k}, v{U+k}")
    for k in range(16): e(f"v_mul_f32 v{GF+k}, v{ACCG+k}, v{U+k}")
    e(f"s_mul_i32 s{sT2}, s{sWq}, 15360 - 12288")
    e(f"s_add_u32 s{sT2}, s{sT2}, {WO_LDS}")
    e(f"v_add_u32 v{vA0}, s{sT2}, v{vA0}")
    e(f"v_add_u32 v{vA1}, s{sT2}, v{vA1}")
    a.vm_wait("xg")
    for s in range(8):
        wr(100 + s, WO_F + 8 * s, (28 * (s // 2) + 16 * (s % 2)) * 128, wait=False)
    for k in range(8):
        e(f"v_lshlrev_b32 v{XF+2*k}, 16, v{XG+k}")
        e(f"v_and_b32 v{XF+2*k+1}, 0xffff0000, v{XG+k}")
    a.ds_wait_all()
    lds_sync(5, 4, T + 1, T + 2)
    srd(a, rW3, pOUT, X_BYTES)
    e(f"s_and_b32 s{sT1}, s{sWq}, 1")
    e(f"s_lshl1_add_u32 s{sT1}, s{sTB}, s{sT1}")
    e(f"s_lshl_b32 s{sH0}, s{sT1}, 15")
    e(f"s_lshl_b32 s{sT1}, s{sWq}, 13")
    e(f"s_add_u32 s{sH0}, s{sH0}, s{sT1}")
    e(f"s_add_u32 s{sH0}, s{sH0}, {O_OFF}")
    e(f"s_xor_b32 s{sH1}, s{sH0}, 32768")
    e(f"v_min_u32 v{T}, 1, v{vLane}")
    e(f"s_lshl1_add_u32 s{sT1}, s{sTB}, 28")
    e(f"v_add_lshl_u32 v{vCt}, v{T}, s{sT1}, 7")
    e(f"v_lshrrev_b32 v{T}, 5, v{vLane}")
    e(f"v_lshl_add_u32 v{vIO}, v{T}, 3, v{vIO}")
    sp.stamp("grdy")
    lds_spin(9, 4, T, T + 1, 3)
    e(f"s_setprio 2")
    poll(vCt, T + 1, 16, opt.get("osleep", 1))
    sp.stamp("ordy")
    for s in range(8):
        if s == 4:
            e(f"s_add_u32 s{sH0}, s{sH0}, 4096")
            e(f"s_add_u32 s{sH1}, s{sH1}, 4096")
        a.vm_op(f"buffer_load_dwordx4 v[{OF+8*s}:{OF+8*s+3}], v{vSt}, {S(rWS)}, s{sH0} offen offset:{(s%4)*1024}{LD}", f"o{s}")
        a.vm_op(f"buffer_load_dwordx4 v[{OF+8*s+4}:{OF+8*s+7}], v{vSt}, {S(rWS)}, s{sH1} offen offset:{(s%4)*1024}{LD}", f"o{s}")
    for s in range(8):
        a.vm_wait(f"o{s}")
        mm(s, WO_F + 8 * s, OF + 8 * s)
    exchange(6)
    for k in range(16): e(f"v_fma_f32 v{ACCG+k}, v{ACCG+k}, v{GF+k}, v{XF+k}")
    for k in range(8): e(f"v_cvt_pk_bf16_f32 v{U+k}, v{ACCG+2*k}, v{ACCG+2*k+1}")
    for pr in range(2):
        e(f"v_permlane32_swap_b32 v{U+4*pr}, v{U+4*pr+2}")
        e(f"v_permlane32_swap_b32 v{U+4*pr+1}, v{U+4*pr+3}")
    e(f"buffer_store_dwordx4 v[{U}:{U+3}], v{vIO}, {S(rW3)}, s{sI0} offen{opt.get('ost', '')}")
    e(f"buffer_store_dwordx4 v[{U+4}:{U+7}], v{vIO}, {S(rW3)}, s{sI0} offen offset:32{opt.get('ost', '')}")
    sp.stamp("end")
    sp.dump(pWS, sW)
    a.label("L_end")
    e("s_endpgm")
    return kd(NAME, 256)

if __name__ == "__main__":
    opt = json.loads(sys.argv[2]) if len(sys.argv) > 2 else {}
    a = Asm()
    a.raw("; one workgroup per CU; workgroups hand data over through d_ws (write-through stores + counters)")
    a.raw("; @launch grid=(256,1,1) block=(512,1,1) lds=163840")
    a.raw('.amdgcn_target "amdgcn-amd-amdhsa--gfx950"')
    a.raw(".text")
    k = gen(a, opt)
    a.raw("L_code_end:")
    a.raw(".fill 64, 4, 0xbf800000")
    a.raw("    s_endpgm")
    a.raw('.section .rodata,"a"')
    a.raw(k)
    open(sys.argv[1], "w").write(a.text())
    print("nops inserted:", a.nops, "lines:", len(a.lines))
```

```python
import sys, json
from common import *
from gemm64 import *
BIAS = 32.0
NAME = "recurrent_scan__softmax_full_mha__glu_gated_swiglu__prompt_kernel"

def gen(a, opt):
    ST = opt.get("st", " sc1")
    LD = " sc1"
    NPH = opt.get("nph", 2)
    kernel_head(a, NAME)
    e = a.e
    uid = [0]
    def lab(p):
        uid[0] += 1; return f"L_{p}{uid[0]}"
    pX, pWQ, pWO, pW1, pW3, pW2, pOUT, pDBG, pWS = 4, 6, 8, 12, 14, 16, 18, 20, 22
    rX, rW1, rW3, rA, rB, rWS = 24, 28, 32, 36, 40, 44
    S = lambda r: f"s[{r}:{r+3}]"
    sW, sTT, sG, sRB, sCOL, sTTG = 48, 49, 50, 51, 52, 53
    sSO = [[54, 55], [56, 56], [57, 57]]
    sP64, sM0, sCurA, sCurB, sOnes, sLo, sHi, sHoff, sQKoff, sQKstep = 58, 59, 60, 61, 62, 63, 64, 65, 66, 67
    sT1, sT2, sT3, sStat, sPh, sHoff2 = 68, 69, 70, 71, 72, 73
    X0, AA, AB, WF, T0 = 16, 128, 160, 192, 216
    vLane, vSt, vD0, vD1, vD2B = 1, 2, 3, 4, 250
    vTB = [[5, 6], [7, 8], [9]]
    vTW = [10, 11]
    vXR = [12, 13, 14, 15]
    vK, vC1, vSc, vP6, vP7, vFlag, vV3, vV4 = 232, 233, 234, 236, 237, 238, 239, 235
    vXW = [240, 241]; vStat = 242; vNM = 243; vAcc = [244, 245, 246, 247]; vV1, vV2 = 248, 249
    vDum = 251
    RAW = 128
    SCR = 7 * 16384
    SYNC = 163840 - 256
    e("s_cmp_ge_u32 s2, 256")
    e("s_cbranch_scc1 L_end")
    sp = Stamper(a, opt.get("stamp"), 0)
    sp.stamp("rt", True); sp.stamp("start")
    if opt.get("hdiag"): e("s_memrealtime s[76:77]"); e("s_memtime s[78:79]")
    e("s_load_dwordx16 s[4:19], s[0:1], 0")
    e("s_load_dwordx4 s[20:23], s[0:1], 64")
    RL = 3
    sWR, sXa, sXb, sGS = sStat, sOnes, sLo, sHi
    e(f"v_lshrrev_b32 v22, 6, v0")
    e(f"v_and_b32 v{vLane}, 63, v0")
    e(f"v_readfirstlane_b32 s{sW}, v22")
    e(f"s_and_b32 s{sT1}, s2, 1")
    e(f"s_bfe_u32 s{sT2}, s2, 0x30003")
    e(f"s_lshl3_add_u32 s{sRB}, s{sT1}, s{sT2}")
    e(f"s_bfe_u32 s{sT1}, s2, 0x20001")
    e(f"s_lshr_b32 s{sT2}, s2, 6")
    e(f"s_lshl2_add_u32 s{sCOL}, s{sT1}, s{sT2}")
    e(f"v_bfe_u32 v22, v0, 3, 3")
    e(f"v_and_b32 v23, 7, v0")
    e(f"s_lshl_b32 s{sT1}, s{sT2}, 2")
    e(f"s_and_b32 s{sWR}, s{sT1}, 4")
    e(f"s_xor_b32 s{sWR}, s{sWR}, s{sW}")
    e(f"s_and_b32 s{sGS}, s{sT1}, 8")
    e(f"s_lshl3_add_u32 s{sT1}, s{sRB}, s{sWR}")
    e(f"s_lshl4_add_u32 s{sT2}, s{sT1}, s{sGS}")
    e(f"s_xor_b32 s{sT1}, s{sT2}, 8")
    e(f"s_mulk_i32 s{sT2}, 896")
    e(f"s_mulk_i32 s{sT1}, 896")
    e(f"v_mul_u32_u24 v24, 896, v22")
    e(f"v_lshl_add_u32 v24, v23, 4, v24")
    e(f"s_mov_b32 s{rX+2}, {hex(X_BYTES)}")
    e(f"s_mov_b32 s{rX+3}, 0x20000")
    e(f"s_cmp_ge_u32 s{sW}, 4")
    e("s_waitcnt lgkmcnt(0)")
    e(f"s_mov_b64 s[{rX}:{rX+1}], s[{pX}:{pX+1}]")
    def xloads(lo, hi, sa, sb):
        for k in range(lo, hi):
            gi, i = divmod(k, 7)
            r = RAW + k * 4
            e(f"buffer_load_dwordx4 v[{r}:{r+3}], v24, {S(rX)}, s{sa if gi == 0 else sb} offen offset:{i*128}")
    XE = opt.get("xe", 10)
    e(f"s_cbranch_scc1 L_x0")
    a.skip_begin(); xloads(0, XE, sT2, sT1)
    e(f"s_branch L_x1")
    a.label("L_x0")
    e(f"s_getpc_b64 s[74:75]")
    a.label("L_pc")
    e(f"s_add_u32 s74, s74, {NAME}-L_pc")
    e(f"s_addc_u32 s75, s75, -1")
    e(f"s_lshr_b32 s3, s2, 3")
    e(f"s_lshl_b32 s3, s3, 7")
    e(f"v_and_b32 v20, 255, v0")
    e(f"v_lshl_add_u32 v20, v20, 12, s3")
    e(f"v_min_u32 v{vDum}, L_code_end-{NAME}-4, v20")
    e(f"global_load_dword v{vDum}, v{vDum}, s[74:75]")
    a.skip_end()
    a.label("L_x1")
    sp.stamp("xiss", lvl=3)
    e(f"s_mov_b32 s{sXa}, s{sT2}")
    e(f"s_mov_b32 s{sXb}, s{sT1}")
    def srd2(d, base, nbytes):
        e(f"s_mov_b64 s[{d}:{d+1}], s[{base}:{base+1}]")
        e(f"s_mov_b32 s{d+2}, {hex(nbytes)}")
        e(f"s_mov_b32 s{d+3}, 0x20000")
    srd2(rWS, pWS, WS_USED)
    e(f"s_or_b32 s{sT3}, s2, s{sW}")
    e(f"s_cbranch_scc1 L_noinit")
    a.skip_begin()
    e(f"v_lshlrev_b32 v25, 7, v{vLane}")
    e(f"v_mov_b32 v26, 0")
    e(f"s_mov_b32 s3, {CNT_OFF}")
    e(f"buffer_store_dword v26, v25, {S(rWS)}, s3 offen sc1")
    e(f"s_add_u32 s3, s3, 8192")
    e(f"buffer_store_dword v26, v25, {S(rWS)}, s3 offen sc1")
    a.skip_end()
    a.label("L_noinit")
    e(f"s_and_b32 s{sTT}, s{sW}, 3")
    e(f"s_lshr_b32 s{sG}, s{sW}, 2")
    e(f"s_lshl_b32 s{sM0}, s{sW}, 10")
    e(f"s_lshl_b32 s{sPh}, s{sG}, 1")
    sTc0a, sTc0b = sCurA, sCurB
    e(f"s_cmp_ge_u32 s{sCOL}, 12")
    e(f"s_cbranch_scc1 L_r0f")
    srd2(rA, pWQ, WQ_BYTES)
    e(f"s_mov_b64 s[{rB}:{rB+1}], s[{pWQ}:{pWQ+1}]")
    e(f"s_and_b32 s{sT2}, s{sCOL}, 3")
    e(f"s_mul_i32 s{sSO[0][0]}, s{sCOL}, 224")
    e(f"s_cmp_eq_u32 s{sT2}, 3")
    e(f"s_cselect_b32 s{sT3}, 32, 0")
    e(f"s_sub_u32 s{sSO[0][0]}, s{sSO[0][0]}, s{sT3}")
    e(f"s_add_u32 s{sSO[0][1]}, s{sSO[0][0]}, 128")
    e(f"s_mul_i32 s{sTc0a}, s{sG}, 112")
    e(f"s_add_u32 s{sTc0a}, s{sTc0a}, s{sT3}")
    e(f"s_add_u32 s{sTc0b}, s{sTc0a}, 56")
    e(f"s_movk_i32 s{sP64}, 2688")
    e(f"s_branch L_r0j")
    a.label("L_r0f")
    srd2(rA, pW1, W1_BYTES)
    e(f"s_mov_b64 s[{rB}:{rB+1}], s[{pW3}:{pW3+1}]")
    e(f"s_add_u32 s{sT1}, s{sCOL}, 12")
    e(f"s_lshl_b32 s{sSO[0][0]}, s{sT1}, 7")
    e(f"s_mov_b32 s{sSO[0][1]}, s{sSO[0][0]}")
    e(f"s_lshl_b32 s{sTc0a}, s{sG}, 6")
    e(f"s_add_u32 s{sTc0b}, s{sTc0a}, 128")
    e(f"s_movk_i32 s{sP64}, 3584")
    a.label("L_r0j")
    a.reset_hist()
    e(f"s_mov_b32 s{rB+2}, s{rA+2}")
    e(f"s_mov_b32 s{rB+3}, 0x20000")
    e(f"s_and_b32 s{sT3}, s{sRB}, 7")
    if opt.get("wpf0", 1):
        e(f"s_cmp_{'lt' if opt.get('wpf0', 2) == 1 else 'ge'}_u32 s{sW}, 4")
        e(f"s_cbranch_scc1 L_w0")
        a.skip_begin()
        e(f"s_mul_i32 s{sT2}, s{sTT}, 48")
        e(f"s_add_u32 s{sT2}, s{sT2}, s{sT3}")
        e(f"v_min_u32 v30, 5, v{vLane}")
        e(f"v_lshl_add_u32 v30, v30, 3, s{sT2}")
        e(f"v_mul_lo_u32 v30, v30, s{sP64}")
        e(f"buffer_load_dword v{vDum+1}, v30, {S(rA)}, s{sSO[0][0]} offen")
        e(f"buffer_load_dword v{vDum+1}, v30, {S(rB)}, s{sSO[0][1]} offen")
        a.skip_end()
        a.label("L_w0")
    e(f"v_lshrrev_b32 v25, 2, v{vLane}")
    e(f"v_and_b32 v25, 4, v25")
    e(f"v_xor_b32 v25, v25, v23")
    e(f"v_lshl_add_u32 v26, s{sW}, 3, v22")
    e(f"v_mul_lo_u32 v{vD0}, v26, s{sP64}")
    e(f"v_lshl_add_u32 v{vD0}, v25, 4, v{vD0}")
    e(f"v_mul_u32_u24 v{vD1}, 3584, v26")
    e(f"v_lshl_add_u32 v{vD1}, v25, 4, v{vD1}")
    e(f"s_lshl_b32 s{sT1}, s{sP64}, 5")
    e(f"v_subrev_u32 v32, s{sT1}, v{vD0}")
    vRow, vSwz, vCol = vV1, vV2, vV3
    e(f"v_lshrrev_b32 v26, 5, v{vLane}")
    e(f"v_bfe_u32 v27, v{vLane}, 2, 2")
    e(f"v_lshl_add_u32 v27, v26, 3, v27")
    e(f"v_lshlrev_b32 v{vRow}, 7, v27")
    e(f"v_and_b32 v28, 8, v{vLane}")
    e(f"v_lshlrev_b32 v{vSwz}, 3, v28")
    e(f"v_and_b32 v29, 3, v{vLane}")
    e(f"v_and_b32 v30, 16, v{vLane}")
    e(f"v_lshlrev_b32 v30, 1, v30")
    e(f"v_lshl_add_u32 v{vCol}, v29, 3, v30")
    def traddr(d, stc, t0, t1):
        return [f"v_add_u32 v{t0}, s{stc}, v{vCol}", f"v_and_b32 v{t1}, 127, v{t0}", f"v_xor_b32 v{t1}, v{t1}, v{vSwz}",
                f"v_and_b32 v{t0}, 128, v{t0}", f"v_lshl_add_u32 v{t0}, v{t0}, 6, v{t1}", f"v_add_u32 v{d}, v{t0}, v{vRow}"]
    for t in traddr(vTB[0][0], sTc0a, 30, 31) + traddr(vTB[0][1], sTc0b, 30, 31): e(t)
    e(f"s_and_b32 s{sT1}, s{sWR}, 1")
    e(f"s_lshl4_add_u32 s{sT1}, s{sT1}, s{sGS}")
    e(f"v_add_u32 v30, s{sT1}, v22")
    e(f"v_xor_b32 v30, v30, v23")
    e(f"v_lshlrev_b32 v30, 4, v30")
    e(f"v_lshrrev_b32 v31, 1, v23")
    e(f"v_lshl_add_u32 v30, v31, 12, v30")
    e(f"v_and_b32 v31, 1, v23")
    e(f"v_lshl_add_u32 v30, v31, 9, v30")
    e(f"s_lshr_b32 s{sT1}, s{sWR}, 1")
    e(f"v_lshl_add_u32 v{vXW[0]}, s{sT1}, 10, v30")
    e(f"v_add_u32 v{vXW[1]}, 0x10000, v{vXW[0]}")
    e(f"v_and_b32 v30, 31, v{vLane}")
    e(f"v_xor_b32 v30, v30, v26")
    e(f"v_lshlrev_b32 v30, 4, v30")
    e(f"v_lshl_add_u32 v30, v26, 9, v30")
    e(f"v_lshl_add_u32 v{vXR[0]}, s{sTT}, 10, v30")
    for q in range(1, 4):
        e(f"v_xor_b32 v{vXR[q]}, {q*4096 + q*32}, v{vXR[0]}")
    e(f"s_lshl4_add_u32 s{sT1}, s{sWR}, s{sGS}")
    e(f"v_add_lshl_u32 v{vStat}, v22, s{sT1}, 2")
    e(f"s_mul_i32 s{sT2}, s{sTT}, 112")
    e(f"s_add_u32 s{sT1}, s{sT3}, s{sT2}")
    e(f"v_min_u32 v30, 13, v{vLane}")
    e(f"v_lshl_add_u32 v30, v30, 3, s{sT1}")
    e(f"v_mul_u32_u24 v{vDum+3}, 3584, v30")
    e(f"s_lshl_b32 s{sT2}, s{sTT}, 6")
    e(f"s_add_u32 s{sT1}, s{sT3}, s{sT2}")
    e(f"s_add_u32 s{sT1}, s{sT1}, 192")
    e(f"v_min_u32 v31, 7, v{vLane}")
    e(f"v_lshl_add_u32 v31, v31, 3, s{sT1}")
    e(f"v_mul_lo_u32 v{vDum+2}, v31, s{sP64}")
    e(f"s_lshl_b32 s{sP64}, s{sP64}, 6")
    srd2(rW1, pW1, W1_BYTES)
    srd2(rW3, pW3, W1_BYTES)
    e(f"s_lshl_b32 s{sSO[1][0]}, s{sCOL}, 7")
    e(f"s_lshr_b32 s{sT1}, s{sCOL}, 1")
    e(f"s_add_u32 s{sT1}, s{sT1}, 16")
    e(f"s_lshl_b32 s{sSO[2][0]}, s{sT1}, 7")
    e(f"s_cmp_lt_u32 s{sW}, 4")
    e(f"s_cbranch_scc1 L_x2")
    a.skip_begin(); xloads(0, XE, sXa, sXb); a.skip_end()
    a.label("L_x2")
    xloads(XE, 14, sXa, sXb)
    e(f"s_lshl_b32 s{sStat}, s2, 9")
    e(f"s_add_u32 s{sStat}, s{sStat}, {ST_OFF}")
    e(f"s_mov_b32 s{sOnes}, 0x3f803f80")
    e(f"s_movk_i32 s{sLo}, 0x3f80")
    e(f"s_mov_b32 s{sHi}, 1.0")
    def slot(c):
        if c < 3: return 7 + c
        if c < 10: return c - 3
        if c == 20: return 7
        return slot(c - 9)
    dma_next = [3]
    def dma(c, track=True):
        r, cc = divmod(c, 7)
        if cc == 0:
            e(f"s_mov_b32 s{sCurA}, s{sSO[r][0]}")
            if r == 0: e(f"s_mov_b32 s{sCurB}, s{sSO[r][1]}")
        va, vb = [(vD0, vD0), (vD1, vD1), (vD1, vD2B)][r]
        sa, sb = (rA, rB) if r == 0 else (rW1, rW3)
        inc = f"s{sP64}" if r == 0 else f"{64*3584}"
        e(f"s_add_u32 m0, s{sM0}, {slot(c)*16384}")
        if cc: e(f"s_add_u32 s{sCurA}, s{sCurA}, {inc}")
        e(f"buffer_load_dwordx4 v{va}, {S(sa)}, s{sCurA} offen lds")
        e(f"s_add_u32 m0, s{sM0}, {slot(c)*16384+8192}")
        if cc and r == 0: e(f"s_add_u32 s{sCurB}, s{sCurB}, {inc}")
        e(f"buffer_load_dwordx4 v{vb}, {S(sb)}, s{sCurB if r == 0 else sCurA} offen lds")
        if track: a.vm += [f"c{c}", f"c{c}"]
    for q in range(8): e(f"v_mov_b32 v{T0+8+q}, 0")
    e(f"s_cmp_lt_u32 s{sW}, 4")
    e(f"s_cbranch_scc1 L_lnA")
    e(f"s_waitcnt vmcnt(0)")
    def dma4(c):
        dma(c, track=False)
        e(f"s_add_u32 m0, s{sM0}, {slot(c)*16384 - 4096}")
        e(f"buffer_load_dwordx4 v32, {S(rA)}, s{sCurA} offen lds")
        e(f"s_add_u32 m0, s{sM0}, {slot(c)*16384 + 8192 - 4096}")
        e(f"buffer_load_dwordx4 v32, {S(rB)}, s{sCurB} offen lds")
        a.vm += [f"c{c}"] * 4
    C2 = opt.get("c2pos", 1)
    for c in range(3 if C2 == 0 else 2): dma4(c)
    e(f"s_branch L_lnB")
    a.label("L_lnA")
    e(f"s_lshl1_add_u32 s{sCurA}, s{sP64}, s{sSO[0][0]}")
    e(f"s_lshl1_add_u32 s{sCurB}, s{sP64}, s{sSO[0][1]}")
    e(f"s_waitcnt vmcnt(0)")
    a.label("L_lnB")
    a.reset_hist()
    sp.stamp("x0"); sp.stamp("x0", lvl=3)
    AC = T0 + 8
    def reduce2(d0, d1):
        for g in range(2): e(f"v_add_f32 v{AC+4*g}, v{AC+4*g}, v{AC+4*g+1}")
        for g in range(2): e(f"v_add_f32 v{AC+4*g+2}, v{AC+4*g+2}, v{AC+4*g+3}")
        for g, d in enumerate((d0, d1)): e(f"v_add_f32 v{d}, v{AC+4*g}, v{AC+4*g+2}")
        for m in ("quad_perm:[1,0,3,2]", "quad_perm:[2,3,0,1]", "row_half_mirror"):
            for d in (d0, d1): e(f"v_add_f32_dpp v{d}, v{d}, v{d} {m} row_mask:0xf bank_mask:0xf")
    for i in range(28):
        for g in range(2): e(f"v_dot2c_f32_bf16 v{AC+4*g+i%4}, s{sOnes}, v{RAW+g*28+i}")
    reduce2(vAcc[0], vAcc[1])
    for q in range(8): e(f"v_mov_b32 v{AC+q}, 0")
    for g in range(2): e(f"v_mul_f32 v{vAcc[g]}, {hexf(-1.0/448)}, v{vAcc[g]}")
    if C2 == 1:
        e(f"s_cmp_lt_u32 s{sW}, 4")
        e(f"s_cbranch_scc1 L_c2")
        a.skip_begin(); dma4(2); a.skip_end()
        a.label("L_c2")
    sp.stamp("pre", lvl=3)
    pend = None
    for gi in range(2):
        for i in range(7):
            r = RAW + gi * 28 + i * 4
            for k in range(4):
                e(f"v_dot2_f32_bf16 v{T0+2*k}, v{r+k}, s{sLo}, v{vAcc[gi]}")
                e(f"v_dot2_f32_bf16 v{T0+2*k+1}, v{r+k}, s{sHi}, v{vAcc[gi]}")
            if pend: pend()
            for k in range(4):
                e(f"v_cvt_pk_bf16_f32 v{r+k}, v{T0+2*k}, v{T0+2*k+1}")
            def pend(r=r, gi=gi, i=i):
                off = i * 16384
                a.ds_op(f"ds_write_b128 v{vXW[off >> 16]}, v[{r}:{r+3}] offset:{off & 0xffff}", "xw")
                if i == 6 and gi == 0:
                    e(f"v_xor_b32 v{vXW[0]}, 128, v{vXW[0]}")
                    e(f"v_xor_b32 v{vXW[1]}, 128, v{vXW[1]}")
    pend()
    if C2 == 2:
        e(f"s_cmp_lt_u32 s{sW}, 4")
        e(f"s_cbranch_scc1 L_c2")
        a.skip_begin(); dma4(2); a.skip_end()
        a.label("L_c2")
    sp.stamp("post", lvl=3)
    for i in range(28):
        for g in range(2): e(f"v_dot2c_f32_bf16 v{AC+4*g+i%4}, v{RAW+g*28+i}, v{RAW+g*28+i}")
    e(f"v_mov_b32 v{T0}, {hexf(1e-5)}")
    e(f"v_mov_b32 v{T0+1}, {hexf(1e-5)}")
    e(f"v_xor_b32 v{T0+2}, 32, v{vStat}")
    reduce2(vAcc[0], vAcc[1])
    for g in range(2): e(f"v_fmac_f32 v{T0+g}, {hexf(1.0/448)}, v{vAcc[g]}")
    def wpf():
        e(f"buffer_load_dword v{vDum+1}, v{vDum+2}, {S(rA)}, s{sSO[0][0]} offen")
        e(f"buffer_load_dword v{vDum+1}, v{vDum+2}, {S(rB)}, s{sSO[0][1]} offen")
        for r in (1, 2):
            e(f"buffer_load_dword v{vDum+1}, v{vDum+3}, {S(rW1)}, s{sSO[r][0]} offen")
            e(f"buffer_load_dword v{vDum+1}, v{vDum+3}, {S(rW3)}, s{sSO[r][0]} offen")
        if opt.get("w2pf", 3) == 3:
            e(f"s_lshl2_add_u32 s{sT1}, s2, s{sW}")
            e(f"s_mul_i32 s{sT2}, s{sT1}, {13*128}")
            e(f"s_lshl_b32 s{sT1}, s{sT1}, 9")
            e(f"v_min_u32 v{vDum+2}, 12, v{vLane}")
            e(f"v_lshl_add_u32 v{vDum+2}, v{vDum+2}, 7, s{sT2}")
            e(f"v_min_u32 v{vDum+2}, {W2_BYTES-4}, v{vDum+2}")
            e(f"v_min_u32 v{vDum+3}, 3, v{vLane}")
            e(f"v_lshl_add_u32 v{vDum+3}, v{vDum+3}, 7, s{sT1}")
            e(f"v_min_u32 v{vDum+3}, {WO_BYTES-4}, v{vDum+3}")
            e(f"global_load_dword v{vDum+1}, v{vDum+2}, s[{pW2}:{pW2+1}]")
            e(f"global_load_dword v{vDum+1}, v{vDum+3}, s[{pWO}:{pWO+1}]")
    e(f"s_cmp_ge_u32 s{sW}, 4")
    e(f"s_cbranch_scc1 L_lnD")
    a.skip_begin()
    e(f"s_or_b32 s{sT3}, s2, s{sW}")
    e(f"s_cbranch_scc1 L_noflag")
    e(f"v_mov_b32 v25, 0")
    e(f"v_mov_b32 v26, 1")
    e(f"global_store_dword v25, v26, s[{pDBG}:{pDBG+1}] sc1")
    a.label("L_noflag")
    if opt.get("wpf", 1) == 1: wpf()
    e(f"s_branch L_lnE")
    a.skip_end()
    a.label("L_lnD")
    sp.stamp("ln", lvl=3, nowait=True)
    a.vm_wait("c1")
    a.label("L_lnE")
    a.ds_wait_all()
    sp.stamp("ln")
    sp.stamp("c1", lvl=3)
    e("s_barrier")
    sp.stamp("b1"); sp.stamp("b1", lvl=3)
    def deferred():
        t0, t1, t2 = AB, AB + 1, AB + 2
        G = lambda *ins: (lambda: [e(x) for x in ins], sum(2 if x.startswith("s_") else 4 for x in ins))
        L = []
        L.append(G(f"v_xor_b32 v{vD2B}, 32, v{vD1}", f"v_lshlrev_b32 v{vSt}, 4, v{vLane}", f"s_mov_b32 vcc_lo, -1", f"s_mov_b32 vcc_hi, 0"))
        L.append(G(f"s_lshl2_add_u32 s{sTTG}, s{sRB}, s{sTT}", f"s_lshl_b32 s{sHoff}, s{sG}, 6"))
        L += [G(x) for x in traddr(vTB[1][0], sHoff, t0, t1)]
        L.append(G(f"v_add_u32 v{vTB[1][1]}, 8192, v{vTB[1][0]}"))
        L.append(G(f"s_and_b32 s{sHoff}, s{sCOL}, 1", f"s_lshl1_add_u32 s{sHoff2}, s{sHoff}, s{sG}", f"s_lshl_b32 s{sHoff}, s{sHoff2}, 5",
                   f"v_xor_b32 v{t0}, s{sHoff}, v{vCol}"))
        L.append(G(f"v_xor_b32 v{t0}, v{t0}, v{vSwz}", f"v_and_b32 v{t1}, 16, v{vLane}"))
        L.append(G(f"v_lshl_add_u32 v{t0}, v{t1}, 9, v{t0}", f"v_add_u32 v{vTB[2][0]}, v{t0}, v{vRow}"))
        L.append(G(f"s_mul_i32 s{sHoff}, s{sTTG}, 112", f"s_add_u32 s{sHoff2}, s{sHoff2}, s{sHoff}", f"s_lshr_b32 s{sQKoff}, s{sSO[2][0]}, 5",
                   f"s_add_u32 s{sHoff2}, s{sHoff2}, s{sQKoff}", f"s_lshl_b32 s{sHoff2}, s{sHoff2}, 10", f"s_add_u32 s{sHoff2}, s{sHoff2}, {H_OFF}"))
        L.append(G(f"s_lshl1_add_u32 s{sHoff}, s{sG}, s{sHoff}", f"s_lshl2_add_u32 s{sHoff}, s{sCOL}, s{sHoff}", f"s_lshl_b32 s{sHoff}, s{sHoff}, 10",
                   f"s_add_u32 s{sHoff}, s{sHoff}, {H_OFF}"))
        L.append(G(f"s_lshl1_add_u32 s{sQKoff}, s{sCOL}, s{sG}", f"s_lshl_b32 s{sQKoff}, s{sQKoff}, 7", f"s_add_u32 s{sQKoff}, s{sQKoff}, s{sTTG}",
                   f"s_lshl_b32 s{sQKoff}, s{sQKoff}, 11", f"s_add_u32 s{sQKstep}, s{sHoff}, {12*4096}", f"s_cmp_ge_u32 s{sCOL}, 12",
                   f"s_cselect_b32 s{sQKoff}, s{sQKstep}, s{sQKoff}"))
        L.append(G(f"s_lshr_b32 s{sQKstep}, s{sCOL}, 2", f"s_cmp_eq_u32 s{sQKstep}, 1", f"s_cselect_b32 s{sOnes}, s{sOnes}, 0", f"s_cselect_b32 s{sHi}, s{sLo}, 0",
                   f"s_cmp_eq_u32 s{sQKstep}, 2", f"s_cselect_b32 s{sOnes}, s{sLo}, s{sOnes}"))
        L.append(G(f"v_mov_b32 v{vP6}, s{sOnes}", f"v_mov_b32 v{vP7}, s{sHi}"))
        L.append(G(f"v_lshrrev_b32 v{t2}, 5, v{vLane}", f"v_bfe_u32 v{t0}, v{vLane}, 2, 2", f"v_lshl_add_u32 v{t0}, v{t2}, 2, v{t0}"))
        L.append(G(f"v_lshrrev_b32 v{t1}, 1, v{t0}", f"v_lshlrev_b32 v{t1}, 3, v{t1}", f"v_xor_b32 v{t1}, v{t1}, v{vCol}"))
        L.append(G(f"s_lshl_b32 s{sQKstep}, s{sW}, 11", f"s_add_u32 s{sQKstep}, s{sQKstep}, {SCR}", f"v_lshl_add_u32 v{t0}, v{t0}, 6, v{t1}",
                   f"v_add_u32 v{vV2}, s{sQKstep}, v{t0}"))
        L.append(G(f"v_xor_b32 v{vV3}, 32, v{vV2}", f"v_bfe_u32 v{t0}, v{vLane}, 1, 3", f"v_xor_b32 v{t0}, v{t0}, v{t2}"))
        L.append(G(f"v_and_b32 v{t1}, 31, v{vLane}", f"v_lshlrev_b32 v{t1}, 6, v{t1}", f"v_lshl_add_u32 v{t0}, v{t0}, 3, v{t1}"))
        L.append(G(f"v_add_u32 v{vV1}, s{sQKstep}, v{t0}"))
        return L
    def hdiag(k):
        if not opt.get("hdiag"): return
        e("s_memrealtime s[80:81]"); e("s_memtime s[82:83]")
        e("s_waitcnt vmcnt(0) lgkmcnt(0)")
        e("s_mov_b64 exec, 1")
        e("s_and_b32 s3, s2, 7")
        e("s_lshl_b32 s3, s3, 2")
        e("v_mov_b32 v0, 0")
        e("s_not_b32 s84, s76")
        e("v_mov_b32 v1, s84"); e(f"global_atomic_umax v0, v1, s[{pDBG}:{pDBG+1}] offset:4 sc1")
        e("v_mov_b32 v1, s76"); e(f"global_atomic_umax v0, v1, s[{pDBG}:{pDBG+1}] offset:8 sc1")
        e("v_mov_b32 v1, s80"); e(f"global_atomic_umax v0, v1, s[{pDBG}:{pDBG+1}] offset:{12+4*k} sc1")
        e("s_sub_u32 s84, s82, s78")
        e("v_mov_b32 v1, s84"); e(f"global_atomic_umax v0, v1, s[{pDBG}:{pDBG+1}] offset:{20+4*k} sc1")
        if k == 1:
            e("v_mov_b32 v0, s3")
            e("v_mov_b32 v1, s76"); e(f"global_atomic_umax v0, v1, s[{pDBG}:{pDBG+1}] offset:32 sc1")
    def check_flag(vtmp):
        done = lab("fl")
        e(f"v_readfirstlane_b32 s{sT1}, v{vFlag}")
        e(f"s_cmp_lg_u32 s{sT1}, 0")
        e(f"s_cbranch_scc1 {done}")
        e(f"s_mov_b32 s{sT2}, 0x40000")
        lp = lab("fs"); a.label(lp)
        e(f"v_mov_b32 v{vtmp}, 0")
        e(f"global_load_dword v{vFlag}, v{vtmp}, s[{pDBG}:{pDBG+1}] sc1")
        e(f"s_waitcnt vmcnt(0)")
        e(f"v_readfirstlane_b32 s{sT1}, v{vFlag}")
        e(f"s_sub_u32 s{sT2}, s{sT2}, 1")
        e(f"s_cselect_b32 s{sT1}, 1, s{sT1}")
        e(f"s_cmp_eq_u32 s{sT1}, 0")
        e(f"s_cbranch_scc1 {lp}")
        a.label(done)
    def signal(sIdx, add, va, vb):
        e(f"s_add_u32 s{sT1}, s{sIdx}, {add}")
        e(f"s_lshl_b32 s{sT1}, s{sT1}, 7")
        e(f"s_add_u32 s{sT1}, s{sT1}, {CNT_OFF}")
        e(f"v_mov_b32 v{va}, 0")
        e(f"v_mov_b32 v{vb}, 1")
        e(f"s_mov_b64 exec, 1")
        e(f"buffer_atomic_add v{vb}, v{va}, {S(rWS)}, s{sT1} offen sc1")
        e(f"s_mov_b64 exec, -1")
    def poll(vaddr, vval, target, sleep):
        lp = lab("po"); done = lab("pd")
        e(f"s_mov_b32 s{sT2}, 0x40000")
        e(f"s_mov_b32 s{sT3}, {CNT_OFF}")
        a.label(lp)
        e(f"buffer_load_dword v{vval}, v{vaddr}, {S(rWS)}, s{sT3} offen sc1")
        e(f"s_waitcnt vmcnt(0)")
        e(f"v_cmp_gt_u32 s[74:75], {target}, v{vval}")
        e(f"s_cmp_eq_u64 s[74:75], 0")
        e(f"s_cbranch_scc1 {done}")
        e(f"s_sleep {sleep}")
        e(f"s_sub_u32 s{sT2}, s{sT2}, 1")
        e(f"s_cbranch_scc0 {lp}")
        a.label(done)
        a.vm = []
    def lds_arrive(k, va, vb, rtn=False):
        e(f"v_mov_b32 v{va}, {SYNC + 4*k}")
        e(f"v_mov_b32 v{vb}, 1")
        e(f"s_mov_b64 exec, 1")
        e(f"ds_add_rtn_u32 v{vb}, v{va}, v{vb}" if rtn else f"ds_add_u32 v{va}, v{vb}")
        e(f"s_mov_b64 exec, -1")
    def lds_sync(k, n, va, vb):
        a.ds_wait_all()
        lds_arrive(k, va, vb)
        lp = lab("ls")
        e(f"s_mov_b32 s{sT2}, 0x400000")
        a.label(lp)
        e(f"ds_read_b32 v{vb}, v{va}")
        e(f"s_waitcnt lgkmcnt(0)")
        e(f"v_readfirstlane_b32 s{sT1}, v{vb}")
        e(f"s_sub_u32 s{sT2}, s{sT2}, 1")
        e(f"s_cselect_b32 s{sT1}, {n}, s{sT1}")
        e(f"s_cmp_lt_u32 s{sT1}, {n}")
        e(f"s_cbranch_scc1 {lp}")
    def lds_spin(k, n, va, vb, sleep):
        lp = lab("ls"); ok = lab("lk")
        e(f"v_mov_b32 v{va}, {SYNC + 4*k}")
        e(f"s_mov_b32 s{sT2}, 0x100000")
        a.label(lp)
        e(f"ds_read_b32 v{vb}, v{va}")
        e(f"s_waitcnt lgkmcnt(0)")
        e(f"v_readfirstlane_b32 s{sT1}, v{vb}")
        e(f"s_cmp_ge_u32 s{sT1}, {n}")
        e(f"s_cbranch_scc1 {ok}")
        e(f"s_sleep {sleep}")
        e(f"s_sub_u32 s{sT2}, s{sT2}, 1")
        e(f"s_cbranch_scc0 {lp}")
        a.label(ok)
    def lds_wait(k, n, va, vb, meanwhile):
        lp = lab("lw"); ok = lab("lo")
        e(f"v_mov_b32 v{va}, {SYNC + 4*k}")
        e(f"ds_read_b32 v{vb}, v{va}")
        meanwhile()
        e(f"s_mov_b32 s{sT2}, 0x400000")
        a.label(lp)
        e(f"s_waitcnt lgkmcnt(0)")
        e(f"v_readfirstlane_b32 s{sT1}, v{vb}")
        e(f"s_cmp_ge_u32 s{sT1}, {n}")
        e(f"s_cbranch_scc1 {ok}")
        e(f"ds_read_b32 v{vb}, v{va}")
        e(f"s_sub_u32 s{sT2}, s{sT2}, 1")
        e(f"s_cbranch_scc0 {lp}")
        a.label(ok)
    def last_signals(k, n, sIdx, add, va, vb):
        lds_arrive(k, va, vb, rtn=True)
        e(f"s_waitcnt lgkmcnt(0)"); a.lg = []
        e(f"v_readfirstlane_b32 s{sT1}, v{vb}")
        sk = lab("ns")
        e(f"s_cmp_lg_u32 s{sT1}, {n-1}")
        e(f"s_cbranch_scc1 {sk}")
        a.skip_begin()
        signal(sIdx, add, va, vb)
        a.skip_end()
        a.label(sk)
    NT = [2, 2, 1]
    ACC = [AA, AB, AA]
    tw_state = [None, None]
    def wreads(G):
        r, s = divmod(G, 28)
        base = slot(G // 4) * 16384 + (s % 4) * 2048
        hi, lo = base >> 16, base & 0xffff
        L = []
        for t in range(NT[r]):
            d = WF + (G % 3) * 8 + t * 4
            def f0(t=t, d=d):
                if tw_state[t] != (r, hi):
                    e(f"v_add_u32 v{vTW[t]}, {hex(hi << 16)}, v{vTB[r][t]}")
                    tw_state[t] = (r, hi)
                a.ds_op(f"ds_read_b64_tr_b16 v[{d}:{d+1}], v{vTW[t]} offset:{lo}", f"w{G}")
            def f1(t=t, d=d):
                a.ds_op(f"ds_read_b64_tr_b16 v[{d+2}:{d+3}], v{vTW[t]} offset:{lo+512}", f"w{G}")
            L += [f0, f1]
        return L
    xr_next = [0]
    def xread(n):
        for _ in range(n):
            s = xr_next[0]
            if s >= 28: return
            xr_next[0] += 1
            if s == 16:
                for q in range(4): e(f"v_add_u32 v{vXR[q]}, 0x10000, v{vXR[q]}")
            off = ((s // 4) * 16384) & 0xffff
            a.ds_op(f"ds_read_b128 v[{X0+4*s}:{X0+4*s+3}], v{vXR[s%4]} offset:{off}", f"x{s}")
    BARS = opt.get("bars", [0, 1, 2, 3, 5, 7, 9, 11, 13, 15, 17, 19])
    PQ = opt.get("pq", 13)
    PZ = opt.get("pz", 15)
    L2P = {int(k): v for k, v in opt.get("l2p", {}).items()}
    window = []; pending = []
    def period_barrier(i):
        for c in window: a.vm.extend([f"c{c}", f"c{c}"])
        assert not pending, pending
        window.clear()
        nxt = min([b for b in BARS if b > i] + [20])
        a.vm_wait(f"c{nxt}")
        assert dma_next[0] > nxt, (i, nxt, dma_next[0])
        if i == 3: a.vm_wait("stat")
        if i == PQ: a.vm_wait("st")
        if i in opt.get("sb", []): sp.stamp("pre", lvl=2, nowait=True)
        e("s_barrier")
        if i in opt.get("sb", []): sp.stamp("post", lvl=2, nowait=True)
        if i == 3:
            e(f"v_and_b32 v{vK}, 31, v{vLane}")
            e(f"v_lshlrev_b32 v{vK}, 2, v{vK}")
            e(f"s_lshl_b32 s{sT1}, s{sTT}, 7")
            e(f"s_add_u32 s{sT1}, s{sT1}, s{sStat}")
            e(f"v_mov_b32 v{vFlag}, 0")
            a.vm_op(f"buffer_load_dword v{vK}, v{vK}, {S(rWS)}, s{sT1} offen sc1", "kld")
            a.vm_op(f"global_load_dword v{vFlag}, v{vFlag}, s[{pDBG}:{pDBG+1}] sc1", "kld")
        if i in L2P:
            for k in L2P[i]:
                sk = lab("pf")
                e(f"s_cmp_lg_u32 s{sW}, {k}")
                e(f"s_cbranch_scc1 {sk}")
                a.skip_begin()
                e(f"s_lshr_b32 s{sT1}, s2, 3")
                nl, ptr, nb = (56, pW2, W2_BYTES) if k < 7 else (98, pWO, WO_BYTES)
                if k < 7:
                    e(f"s_mul_i32 s{sT1}, s{sT1}, {7*56*128}")
                    e(f"s_add_u32 s{sT1}, s{sT1}, {k*56*128}")
                else:
                    e(f"s_mul_i32 s{sT1}, s{sT1}, {98*128}")
                e(f"v_min_u32 v{vDum+2}, {min(nl, 64) - 1 if k < 7 else 48}, v{vLane}")
                e(f"v_lshl_add_u32 v{vDum+2}, v{vDum+2}, 7, s{sT1}")
                e(f"global_load_dword v{vDum+1}, v{vDum+2}, s[{ptr}:{ptr+1}]")
                if k == 7:
                    e(f"v_add_u32 v{vDum+2}, {49*128}, v{vDum+2}")
                    e(f"global_load_dword v{vDum+1}, v{vDum+2}, s[{ptr}:{ptr+1}]")
                a.skip_end()
                a.label(sk)
        if i == PZ:
            e(f"v_lshrrev_b32 v{vV1}, 2, v{vSt}")
            e(f"v_add_u32 v{vV1}, {SYNC}, v{vV1}")
            e(f"v_mov_b32 v{vV2}, 0")
            a.ds_op(f"ds_write_b32 v{vV1}, v{vV2}", "z")
        if i == PQ and sigq[0]:
            sk = lab("q")
            e(f"s_cmp_lg_u32 s{sW}, 0")
            e(f"s_cbranch_scc1 {sk}")
            a.skip_begin()
            check_flag(vDum + 2)
            signal(sCOL, 0, vDum + 2, vDum + 3)
            a.skip_end()
            a.label(sk)
        while dma_next[0] <= 20:
            c = dma_next[0]
            if c < 10:
                sl = slot(c)
                if not all(xr_next[0] > s and a.ds_done(f"x{s}") for s in range(4*sl, 4*sl+4)): break
            elif c - 9 > i - 1: break
            window.append(c); dma_next[0] += 1
        nq = nxt - i
        per = -(-len(window) // nq)
        pending[:] = [window[k*per:(k+1)*per] for k in range(nq)]
    sigq = [False]
    XR = opt.get("xrate", 2)
    def kloop(r, extra, budget, hooks={}):
        extra = list(extra)
        if opt.get("x_noepi"): extra = [x for x in extra if x[1] == 0]
        gap = 0
        for s in range(28):
            G = r * 28 + s
            Gn = G + 2
            rd = wreads(Gn) if Gn < 84 else []
            a.ds_wait(f"w{G}")
            if r == 0: a.ds_wait(f"x{s}")
            ph = Gn % 4
            for t in range(NT[r]):
                d = ACC[r] + 16 * t
                w = WF + (G % 3) * 8 + t * 4
                c = "0" if s == 0 else f"v[{d}:{d+15}]"
                e(f"v_mfma_f32_32x32x16_bf16 v[{d}:{d+15}], v[{w}:{w+3}], v[{X0+4*s}:{X0+4*s+3}], {c}")
                gap += 1
                if t == 0 and Gn < 84 and ph == 0 and (Gn // 4 - 1) in BARS: period_barrier(Gn // 4 - 1)
                n = -(-len(rd) // (NT[r] - t))
                for f in rd[:n]: f()
                rd = rd[n:]
                if r == 0: xread((XR + 1 - t) // 2)
                left = budget
                if t == NT[r] - 1 and pending and pending[0] and ph % 2 == 0:
                    sk = lab("d")
                    e(f"s_cmp_lg_u32 s{sPh}, {ph}")
                    e(f"s_cbranch_scc1 {sk}")
                    a.skip_begin()
                    for c in pending[0]: dma(c, track=False)
                    a.skip_end()
                    a.label(sk)
                    left = opt.get("dmabud", 4)
                if t == NT[r] - 1 and s in hooks: hooks[s](); left = 0
                while extra and gap > 3 and extra[0][1] <= left:
                    f, cst = extra.pop(0); f(); left -= cst
            if ph == 3 and pending: pending.pop(0)
        return extra
    def I(t):
        op = t.split()[0]
        return (lambda: e(t), 8 if op.startswith(TRANS) else (2 if op.startswith("s_") else 4))
    def consts():
        def sel():
            e(f"s_cmp_lt_u32 s{sCOL}, 4")
            e(f"s_cselect_b32 s{sT1}, {hexf(28**-0.5*LOG2E)}, 1.0")
            e(f"v_mul_f32 v{vSc}, s{sT1}, v{vSc}")
        return [(lambda: a.vm_wait("kld"), 0), I(f"v_rsq_f32 v{vSc}, v{vK}"),
                I(f"v_mul_f32 v{vC1}, {hexf(-LOG2E)}, v{vSc}"), (sel, 8)]
    def silu4(Gt, U, t, p):
        L = []
        for k in range(4): L.append(I(f"v_mul_f32 v{t+k}, v{vC1}, v{Gt+k}"))
        for k in range(4):
            L.append(I(f"v_exp_f32 v{t+k}, v{t+k}"))
            L.append(I(f"v_mul_f32 v{Gt+k}, v{Gt+k}, v{U+k}"))
        for k in range(4): L.append(I(f"v_fma_f32 v{t+k}, v{t+k}, v{vK}, v{vK}"))
        for k in range(4): L.append(I(f"v_rcp_f32 v{t+k}, v{t+k}"))
        for k in range(4): L.append(I(f"v_mul_f32 v{Gt+k}, v{Gt+k}, v{t+k}"))
        for k in range(2): L.append(I(f"v_cvt_pk_bf16_f32 v{p+k}, v{Gt+2*k}, v{Gt+2*k+1}"))
        return L
    def store(r, soff, off):
        if opt.get("x_nost"): return (lambda: None, 8)
        return (lambda: a.vm_op(f"buffer_store_dwordx4 v[{r}:{r+3}], v{vSt}, {S(rWS)}, s{soff} offen offset:{off}{ST}", "st"), 8)
    def epiF(acc, soff):
        Gt, U = acc, acc + 16
        L = []
        for q in range(4):
            L += silu4(Gt + 4*q, U + 4*q, T0 + (q % 2) * 4, U + (q // 2) * 8 + (q % 2) * 2)
            if q % 2 == 1: L.append(store(U + (q // 2) * 8, soff, (q // 2) * 1024))
        return L
    def epiQKV(acc, isv):
        L = []
        P = T0 + 8
        for q in range(4):
            for k in range(4): L.append(I(f"v_mul_f32 v{acc+4*q+k}, v{vSc}, v{acc+4*q+k}"))
            for k in range(2): L.append(I(f"v_cvt_pk_bf16_f32 v{P+2*q+k}, v{acc+4*q+2*k}, v{acc+4*q+2*k+1}"))
            if q == 1 and not isv: L.append(store(P, sQKoff, 0))
        L.append(I(f"v_cndmask_b32 v{P+6}, v{vP6}, v{P+6}, vcc"))
        L.append(I(f"v_cndmask_b32 v{P+7}, v{vP7}, v{P+7}, vcc"))
        if not isv: L.append(store(P + 4, sQKoff, 1024))
        else:
            for q in range(4):
                if q: L.append(I(f"v_xor_b32 v{vV4}, {16*q}, v{vV1}"))
                L.append((lambda q=q: a.ds_op(f"ds_write_b64 v{vV4 if q else vV1}, v[{P+2*q}:{P+2*q+1}]", "vw"), 4))
            L += [(lambda: None, 8)] * 2
            L.append((lambda: a.ds_wait("vw"), 0))
            for q in range(4):
                L.append((lambda q=q: a.ds_op(f"ds_read_b64_tr_b16 v[{acc+2*q}:{acc+2*q+1}], v{vV3 if q % 2 else vV2} offset:{512*q}", "vr"), 4))
            L += [(lambda: None, 8)] * 2
            L.append((lambda: a.ds_wait("vr"), 0))
            L.append(store(acc, sQKoff, 0))
            L.append(store(acc + 4, sQKoff, 1024))
        L.append(I(f"s_add_u32 s{sQKoff}, s{sQKoff}, {64*2048}"))
        return L
    B1, B2 = opt.get("b1", 12), opt.get("b2", 12)
    xread(4)
    for f in wreads(0) + wreads(1): f()
    if opt.get("wpf", 1) == 2:
        e(f"s_cmp_ge_u32 s{sW}, 4")
        e(f"s_cbranch_scc1 L_wp")
        a.skip_begin(); wpf(); a.skip_end()
        a.label("L_wp")
    a.vm_op(f"buffer_store_dword v{T0}, v{vStat}, {S(rWS)}, s{sStat} offen", "stat")
    a.vm_op(f"buffer_store_dword v{T0+1}, v{T0+2}, {S(rWS)}, s{sStat} offen", "stat")
    assert not kloop(0, deferred(), 16)
    sp.stamp("r0")
    e(f"s_cmp_lt_u32 s{sCOL}, 8")
    e(f"s_cbranch_scc1 L_pqk")
    e(f"s_cmp_lt_u32 s{sCOL}, 12")
    e(f"s_cbranch_scc1 L_pv")
    saved = (list(a.vm), list(a.lg), list(tw_state), dma_next[0], list(a.hist), list(window), [list(p) for p in pending], sp.n)
    ends = []
    for nm, ex in (("f", lambda: epiF(AA, sQKoff)), ("L_pqk", lambda: epiQKV(AA, False) + epiQKV(AA + 16, False)),
                   ("L_pv", lambda: epiQKV(AA, True) + epiQKV(AA + 16, True))):
        if nm != "f": a.label(nm)
        a.vm, a.lg = list(saved[0]), list(saved[1]); tw_state[:] = saved[2]; dma_next[0] = saved[3]; a.hist = list(saved[4])
        window[:] = saved[5]; pending[:] = [list(p) for p in saved[6]]; sp.set(saved[7])
        sigq[0] = nm != "f"
        nst0 = [0]
        exl = consts() + ex()
        if nm != "f":
            exl.append((lambda: nst0.__setitem__(0, 1), 0))
            _pb = period_barrier
        rest = kloop(1, exl, {"f": B1, "L_pqk": opt.get("b1q", 12), "L_pv": opt.get("b1v", 16)}[nm], hooks={(PQ + 1) * 4 - 2 - 28 - 1: (lambda: None) if nm == "f" else (lambda: (_ for _ in ()).throw(AssertionError("qkv epilogue too late")) if not nst0[0] else None)})
        for f, c in rest: f()
        ends.append(([t for t in a.vm if t != "st"], list(a.lg), list(tw_state), dma_next[0], list(window), [list(p) for p in pending]))
        if nm != "L_pv": e("s_branch L_r2")
    assert ends[0][1:] == ends[1][1:] == ends[2][1:], ends
    a.vm = min((x[0] for x in ends), key=len)
    assert all(x[0][len(x[0])-len(a.vm):] == a.vm for x in ends)
    a.label("L_r2")
    e("s_nop 1")
    sp.stamp("r1")
    K0, Q, KV, O, Sx, P, T = 16, 24, 56, 128, 192, 224, 240
    ATT_LDS, WO_LDS = 49152, 98304
    sX, sJ = 54, 55
    sHead, sQB, sKV, sRun = 62, 63, 64, 58
    sWq, sTB, sCB, sWo, sLB = 62, 63, 64, 58, 66
    vD, vPoll, vStV = vD0, vDum + 4, vD0
    rW = rA
    rK, rV = rA, rB
    def early1():
        e(f"s_and_b32 s{sX}, s2, 7")
        e(f"s_lshr_b32 s{sJ}, s2, 3")
        e(f"s_lshl_b32 s{sHead}, s{sX}, 1")
        e(f"s_and_b32 s{sT1}, s{sJ}, 1")
        e(f"s_add_u32 s{sHead}, s{sHead}, s{sT1}")
        e(f"v_min_u32 v{vPoll}, 2, v{vLane}")
        e(f"v_lshlrev_b32 v{vPoll}, 9, v{vPoll}")
        e(f"s_lshr_b32 s{sT1}, s{sHead}, 2")
        e(f"s_lshl_b32 s{sT1}, s{sT1}, 7")
        e(f"v_add_u32 v{vPoll}, s{sT1}, v{vPoll}")
        check_flag(vDum + 2)
        e(f"s_mov_b32 s{sT3}, {CNT_OFF}")
        a.vm_op(f"buffer_load_dword v{vDum+3}, v{vPoll}, {S(rWS)}, s{sT3} offen sc1", "poll")
    NE = opt.get("ne", 1)
    def kvload(i):
        for k in range(4):
            r = KV + 16 * i + 4 * k
            e(f"buffer_load_dwordx4 v[{r}:{r+3}], v{vSt}, {S(rK if k < 2 else rV)}, s{sRun} offen offset:{1024*(k%2)}{LD}")
        e(f"s_add_u32 s{sRun}, s{sRun}, 2048")
        e(f"s_and_b32 s{sRun}, s{sRun}, 0x1ffff")
    def early2():
        a.vm_wait("poll")
        e(f"s_cmp_ge_u32 s{sW}, 4")
        e(f"s_cbranch_scc1 L_e2j")
        a.skip_begin()
        e(f"v_cmp_gt_u32 s[74:75], 16, v{vDum+3}")
        e(f"s_cmp_eq_u64 s[74:75], 0")
        e(f"s_cbranch_scc1 L_e2ok")
        sv = list(a.vm)
        poll(vPoll, vDum + 3, 16, 1)
        a.vm = sv
        a.label("L_e2ok")
        e(f"s_lshr_b32 s{sQB}, s{sJ}, 1")
        e(f"s_lshl_b32 s{sKV}, s{sHead}, 17")
        e(f"s_add_u32 s{sKV}, s{sKV}, {KV_OFF}")
        e(f"s_lshl_b32 s{sT1}, s{sHead}, 6")
        e(f"s_lshl2_add_u32 s{sT1}, s{sQB}, s{sT1}")
        e(f"s_add_u32 s{sT1}, s{sT1}, s{sW}")
        e(f"s_lshl_b32 s{sT1}, s{sT1}, 11")
        e(f"buffer_load_dwordx4 v[{Q}:{Q+3}], v{vSt}, {S(rWS)}, s{sT1} offen{LD}")
        e(f"buffer_load_dwordx4 v[{Q+4}:{Q+7}], v{vSt}, {S(rWS)}, s{sT1} offen offset:1024{LD}")
        e(f"s_and_b32 s{sT1}, s{sQB}, {7 if opt.get('rot', 0) else 0}")
        e(f"s_lshl3_add_u32 s{sT1}, s{sW}, s{sT1}")
        e(f"s_lshl1_add_u32 s{sT1}, s{sT1}, 1")
        e(f"s_lshl_b32 s{sRun}, s{sT1}, 11")
        e(f"s_add_u32 s{rK}, s{pWS}, s{sKV}")
        e(f"s_addc_u32 s{rK+1}, s{pWS+1}, 0")
        e(f"s_mov_b32 s{rK+2}, 0x20000")
        e(f"s_mov_b32 s{rK+3}, 0x20000")
        e(f"s_add_u32 s{rV}, s{rK}, {2 << 20}")
        e(f"s_addc_u32 s{rV+1}, s{rK+1}, 0")
        e(f"s_mov_b32 s{rV+2}, 0x20000")
        e(f"s_mov_b32 s{rV+3}, 0x20000")
        for i in range(NE): kvload(i)
        a.skip_end()
        a.label("L_e2j")
        a.vm_mark("early")
    rest = kloop(2, epiF(AB, sHoff), B2, hooks={opt.get("e1", 19): early1, opt.get("e2", 24): early2})
    e("s_barrier")
    sp.stamp("r2")
    for f, c in rest: f()
    for q in range(2):
        for f, c in silu4(AA + 4*q, AA + 8 + 4*q, T0 + 4*q, T0 + 8 + 2*q): f()
    store(T0 + 8, sHoff2, 0)[0]()
    e(f"s_cmp_ge_u32 s{sW}, 4")
    e(f"s_cbranch_scc1 L_gemm")
    nst = sp.n
    sFlag, sIt, sOoff = 59, 60, 61
    for i in range(NE, 3):
        kvload(i); a.vm += [f"kv{i}"] * 4
    assert NE >= 1
    a.vm_wait("early")
    e(f"v_mfma_f32_32x32x16_bf16 v[{Sx}:{Sx+15}], v[{KV}:{KV+3}], v[{Q}:{Q+3}], 0")
    e(f"v_mfma_f32_32x32x16_bf16 v[{Sx}:{Sx+15}], v[{KV+4}:{KV+7}], v[{Q+4}:{Q+7}], v[{Sx}:{Sx+15}]")
    for r in range(16): e(f"v_mov_b32 v{O+r}, 0")
    e(f"s_lshl_b32 s{sT1}, s{sW}, 11")
    e(f"s_add_u32 s{sT1}, s{sT1}, {ATT_LDS}")
    e(f"v_add_u32 v{T+2}, s{sT1}, v{vSt}")
    sp.stamp("qkv")
    M = T + 8
    def patch(jjs, bias):
        U = M + 4
        for jj in jjs: e(f"v_mov_b32 v{U+jj}, v{M+jj}")
        for jj in jjs: e(f"v_permlane32_swap_b32 v{M+jj}, v{U+jj}")
        for jj in jjs: e(f"v_max_f32 v{M+jj}, v{M+jj}, v{U+jj}")
        for jj in jjs: e(f"v_sub_f32 v{M+jj}, {hexf(-bias) if bias else 0}, v{M+jj}")
        for jj in jjs: e(f"v_cvt_pk_bf16_f32 v{U+jj}, v{M+jj}, v{M+jj}")
        for jj in jjs: e(f"v_and_b32 v{U+jj}, 0xffff0000, v{U+jj}")
        for jj in jjs: e(f"v_sub_f32 v{U+jj}, v{M+jj}, v{U+jj}")
        for jj in jjs: e(f"v_cvt_pk_bf16_f32 v{M+jj}, v{M+jj}, v{U+jj}")
        for jj in jjs: e(f"v_cndmask_b32 v{Q+8*jj+6}, v{M+jj}, v{Q+8*jj+6}, vcc")
        for jj in jjs: e(f"v_and_b32 v{M+jj}, 0xffff0000, v{M+jj}")
        for jj in jjs: e(f"v_sub_f32 v{U+jj}, v{U+jj}, v{M+jj}")
        for jj in jjs: e(f"v_cvt_pk_bf16_f32 v{U+jj}, v{U+jj}, 0")
        for jj in jjs: e(f"v_cndmask_b32 v{Q+8*jj+7}, v{U+jj}, v{Q+8*jj+7}, vcc")
    for k in range(4): e(f"v_max3_f32 v{M+4+k}, v{Sx+4*k}, v{Sx+4*k+1}, v{Sx+4*k+2}")
    for k in range(2): e(f"v_max3_f32 v{M+4+2*k}, v{M+4+2*k}, v{M+5+2*k}, v{Sx+8*k+3}")
    e(f"v_max3_f32 v{M}, v{Sx+7}, v{Sx+15}, v{M+4}")
    e(f"v_max_f32 v{M}, v{M}, v{M+6}")
    patch([0], BIAS)
    a.ds_op(f"ds_write_b128 v{T+2}, v[{Q}:{Q+3}]")
    a.ds_op(f"ds_write_b128 v{T+2}, v[{Q+4}:{Q+7}] offset:1024")
    for r in range(16, 40): e(f"v_mov_b32 v{O+r}, 0")
    lds_sync(1, 4, T, T + 1)
    for jj in range(1, 4):
        e(f"s_add_u32 s{sT1}, s{sW}, {jj}")
        e(f"s_and_b32 s{sT1}, s{sT1}, 3")
        e(f"s_lshl_b32 s{sT1}, s{sT1}, 11")
        e(f"s_add_u32 s{sT1}, s{sT1}, {ATT_LDS}")
        e(f"v_add_u32 v{T+2}, s{sT1}, v{vSt}")
        a.ds_op(f"ds_read_b128 v[{Q+8*jj}:{Q+8*jj+3}], v{T+2}")
        a.ds_op(f"ds_read_b128 v[{Q+8*jj+4}:{Q+8*jj+7}], v{T+2} offset:1024")
    for r in range(40, 64): e(f"v_mov_b32 v{O+r}, 0")
    for r in range(8): e(f"v_mov_b32 v{P+8+r}, 0")
    for r in range(8): e(f"v_mov_b32 v{KV+48+8+r}, 0")
    e(f"s_mov_b32 s{sFlag}, 0")
    e(f"s_lshl2_add_u32 s{sOoff}, s{sQB}, s{sW}")
    e(f"s_lshl4_add_u32 s{sOoff}, s{sOoff}, s{sHead}")
    e(f"s_lshl_b32 s{sOoff}, s{sOoff}, 11")
    e(f"s_add_u32 s{sOoff}, s{sOoff}, {O_OFF}")
    a.ds_wait_all()
    lds_arrive(2, T, T + 1)
    a.vm_wait("st")
    last_signals(0, 8, sRB, 12, T, T + 1)
    e(f"s_setprio {opt.get('attprio', 1)}")
    def qk(n, half):
        i, j = (n // 4) % 4, n % 4
        d = Sx + 16 * (n % 2); k = KV + 16 * i + 4 * half; q = Q + 8 * j + 4 * half
        c = "0" if half == 0 else f"v[{d}:{d+15}]"
        e(f"v_mfma_f32_32x32x16_bf16 v[{d}:{d+15}], v[{k}:{k+3}], v[{q}:{q+3}], {c}")
    def pv(n, half):
        i, j = (n // 4) % 4, n % 4
        d = O + 16 * j; v = KV + 16 * i + 8 + 4 * half; p = P + 8 * (n % 2) + 4 * half
        e(f"v_mfma_f32_32x32x16_bf16 v[{d}:{d+15}], v[{v}:{v+3}], v[{p}:{p+3}], v[{d}:{d+15}]")
    def sm(n, g):
        s = Sx + 16 * (n % 2) + 4 * g; p = P + 8 * (n % 2) + 2 * g
        for k in range(4): e(f"v_exp_f32 v{s+k}, v{s+k}")
        e(f"v_cvt_pk_bf16_f32 v{p}, v{s}, v{s+1}")
        e(f"v_cvt_pk_bf16_f32 v{p+1}, v{s+2}, v{s+3}")
    a.vm_wait("kv0")
    sp.stamp("preloop")
    qk(0, 0); qk(0, 1)
    e(f"s_mov_b32 s{sIt}, 3")
    e("s_nop 7")
    a.raw(".p2align 6")
    a.label("L_loop")
    start = len(a.lines)
    for n in range(16, 32):
        i, j = (n // 4) % 4, n % 4
        if j == 3: e("s_waitcnt vmcnt(8)")
        qk(n + 1, 0); sm(n, 0)
        qk(n + 1, 1); sm(n, 1)
        pv(n - 1, 0); sm(n, 2)
        pv(n - 1, 1)
        if j == 0:
            for k in range(0 if opt.get("x_nokv") else 4):
                r = KV + 16 * ((i + 3) % 4) + 4 * k
                e(f"buffer_load_dwordx4 v[{r}:{r+3}], v{vSt}, {S(rK if k < 2 else rV)}, s{sRun} offen offset:{2048*(i%2) + 1024*(k%2)}{LD}")
            if i % 2:
                e(f"s_add_u32 s{sRun}, s{sRun}, 4096")
                e(f"s_and_b32 s{sRun}, s{sRun}, 0x1ffff")
            if i == 0:
                e(f"s_cmp_eq_u32 s{sIt}, 0")
                e(f"s_cselect_b32 s{rK+2}, 0, s{rK+2}")
                e(f"s_cselect_b32 s{rV+2}, 0, s{rV+2}")
        sm(n, 3)
    e(f"s_sub_u32 s{sIt}, s{sIt}, 1")
    e("s_cbranch_scc0 L_loop")
    check_loop(a.lines[start:])
    lds_wait(2, 4, T + 4, T + 5, lambda: (pv(31, 0), pv(31, 1)))
    sp.stamp("loop")
    a.vm = []
    for jj in range(1, 4):
        e(f"s_add_u32 s{sT1}, s{sW}, {jj}")
        e(f"s_and_b32 s{sT1}, s{sT1}, 3")
        e(f"s_mul_i32 s{sT1}, s{sT1}, 12288")
        e(f"s_add_u32 s{sT1}, s{sT1}, {ATT_LDS}")
        e(f"v_add_u32 v{T+jj}, s{sT1}, v{vSt}")
        for q in range(4):
            r = O + 16 * jj + 4 * q
            a.ds_op(f"ds_write_b128 v{T+jj}, v[{r}:{r+3}] offset:{(jj-1)*4096 + q*1024}")
    e(f"s_mul_i32 s{sT1}, s{sW}, 12288")
    e(f"s_add_u32 s{sT1}, s{sT1}, {ATT_LDS}")
    e(f"v_add_u32 v{T}, s{sT1}, v{vSt}")
    lds_sync(7, 4, T + 4, T + 5)
    for p in range(3):
        for q in range(4):
            r = O + 16 + 16 * p + 4 * q
            a.ds_op(f"ds_read_b128 v[{r}:{r+3}], v{T} offset:{p*4096 + q*1024}", f"p{p}")
    for p in range(3):
        a.ds_wait(f"p{p}")
        for k in range(16): e(f"v_add_f32 v{O+k}, v{O+k}, v{O+16+16*p+k}")
    a.label("L_norm")
    e(f"v_mov_b32 v{T}, v{O+12}")
    e(f"v_mov_b32 v{T+1}, v{O+12}")
    e(f"v_permlane32_swap_b32 v{T}, v{T+1}")
    e(f"v_rcp_f32 v{T}, v{T+1}")
    e(f"v_mov_b32 v{T+2}, 0")
    for k in range(16): e(f"v_mul_f32 v{O+k}, v{O+k}, v{T}")
    for k in range(8): e(f"v_cvt_pk_bf16_f32 v{P+k}, v{O+2*k}, v{O+2*k+1}")
    e(f"v_cndmask_b32 v{P+6}, 0, v{P+6}, vcc")
    e(f"v_cndmask_b32 v{P+7}, 0, v{P+7}, vcc")
    e(f"buffer_store_dwordx4 v[{P}:{P+3}], v{vSt}, {S(rWS)}, s{sOoff} offen{ST}")
    e(f"buffer_store_dwordx4 v[{P+4}:{P+7}], v{vSt}, {S(rWS)}, s{sOoff} offen offset:1024{ST}")
    for k in range(16): e(f"v_fmac_f32 v{T+2}, 0, v{O+k}")
    e(f"v_mov_b32 v{T+3}, {hexf(2.0**-(BIAS+8))}")
    e(f"v_cmp_u_f32 s[66:67], v{T+2}, v{T+2}")
    e(f"v_cmp_lt_f32 s[74:75], v{T+1}, v{T+3}")
    e(f"s_or_b64 s[66:67], s[66:67], s[74:75]")
    e(f"s_cmp_eq_u64 s[66:67], 0")
    e(f"s_cselect_b32 s{sT1}, 1, s{sFlag}")
    e(f"s_cmp_eq_u32 s{sT1}, 0")
    e(f"s_cbranch_scc1 L_slow")
    e(f"s_waitcnt vmcnt(0)")
    sp.stamp("ost")
    e(f"s_lshl2_add_u32 s{sT2}, s{sQB}, s{sW}")
    signal(sT2, 28, T + 4, T + 5)
    lds_arrive(9, T + 6, T + 7)
    hdiag(0)
    sp.dump(pWS, sW)
    e("s_endpgm")
    a.label("L_slow")
    a.reset_hist()
    e(f"s_waitcnt vmcnt(0)")
    e(f"s_mov_b32 s{sFlag}, 1")
    e(f"s_mov_b32 s{rK+2}, 0x20000")
    e(f"s_mov_b32 s{rV+2}, 0x20000")
    e(f"v_cndmask_b32 v{Q+6}, 0, v{Q+6}, vcc")
    e(f"v_cndmask_b32 v{Q+7}, 0, v{Q+7}, vcc")
    e(f"v_mov_b32 v{M}, 0xff800000")
    e(f"s_mov_b32 s{sRun}, 0")
    e(f"s_mov_b32 s{sIt}, 64")
    a.label("L_s1")
    start = len(a.lines)
    e(f"buffer_load_dwordx4 v[{KV}:{KV+3}], v{vSt}, {S(rK)}, s{sRun} offen{LD}")
    e(f"buffer_load_dwordx4 v[{KV+4}:{KV+7}], v{vSt}, {S(rK)}, s{sRun} offen offset:1024{LD}")
    e("s_waitcnt vmcnt(0)")
    e(f"v_mfma_f32_32x32x16_bf16 v[{Sx}:{Sx+15}], v[{KV}:{KV+3}], v[{Q}:{Q+3}], 0")
    e(f"v_mfma_f32_32x32x16_bf16 v[{Sx}:{Sx+15}], v[{KV+4}:{KV+7}], v[{Q+4}:{Q+7}], v[{Sx}:{Sx+15}]")
    for k in range(8): e(f"v_max3_f32 v{M}, v{M}, v{Sx+2*k}, v{Sx+2*k+1}")
    e(f"s_add_u32 s{sRun}, s{sRun}, 2048")
    e(f"s_sub_u32 s{sIt}, s{sIt}, 1")
    e(f"s_cmp_lg_u32 s{sIt}, 0")
    e("s_cbranch_scc1 L_s1")
    check_loop(a.lines[start:])
    patch([0], 0.0)
    for r in range(16): e(f"v_mov_b32 v{O+r}, 0")
    e(f"s_mov_b32 s{sRun}, 0")
    e(f"s_mov_b32 s{sIt}, 64")
    a.label("L_s2")
    start = len(a.lines)
    for k in range(4):
        e(f"buffer_load_dwordx4 v[{KV+4*k}:{KV+4*k+3}], v{vSt}, {S(rK if k < 2 else rV)}, s{sRun} offen offset:{1024*(k%2)}{LD}")
    e("s_waitcnt vmcnt(0)")
    qk(0, 0); qk(0, 1)
    for g in range(4): sm(0, g)
    pv(0, 0); pv(0, 1)
    e(f"s_add_u32 s{sRun}, s{sRun}, 2048")
    e(f"s_sub_u32 s{sIt}, s{sIt}, 1")
    e(f"s_cmp_lg_u32 s{sIt}, 0")
    e("s_nop 11")
    e("s_cbranch_scc1 L_s2")
    check_loop(a.lines[start:])
    e("s_branch L_norm")
    a.label("L_gemm")
    a.reset_hist(); a.vm = []; a.lg = []; sp.set(nst)
    ACCG, HR, WFR, T, WO_F, XF, GF = 16, 80, 136, 152, 160, 224, 136
    OF = HR
    GF = 240
    vA0, vA1, vIO, vCt = 4, 5, 6, 7
    sH0, sH1, sI0 = 59, 60, 61
    DP = opt.get("gdepth", 5)
    PACE = opt.get("pace", 4)
    def pace():
        nonlocal PACE
        if PACE and len(a.vm) > PACE:
            e(f"s_waitcnt vmcnt({PACE})"); a.vm = a.vm[-PACE:]
    e(f"s_setprio 2")
    e(f"s_waitcnt vmcnt(0)")
    last_signals(0, 8, sRB, 12, T, T + 1)
    e(f"s_cmp_ge_u32 s{sJ}, 28")
    e(f"s_cbranch_scc1 L_end")
    e(f"s_setprio {opt.get('gprio0', 2)}")
    srd(a, rW, pWO, WO_BYTES)
    e(f"s_sub_u32 s{sWq}, s{sW}, 4")
    e(f"s_mul_i32 s{sT1}, s{sJ}, 37")
    e(f"s_lshr_b32 s{sT1}, s{sT1}, 8")
    e(f"s_mul_i32 s{sT2}, s{sT1}, 7")
    e(f"s_sub_u32 s{sCB}, s{sJ}, s{sT2}")
    e(f"s_lshl2_add_u32 s{sTB}, s{sX}, s{sT1}")
    e(f"s_lshl_b32 s{sCB}, s{sCB}, 7")
    e(f"s_mul_i32 s{sLB}, s{sWq}, 12288")
    dma_voff(a, vLane, vD, T, T + 1)
    e(f"v_and_b32 v{T}, 31, v{vLane}")
    e(f"v_mul_u32_u24 v{T}, 896, v{T}")
    e(f"v_lshrrev_b32 v{T+1}, 5, v{vLane}")
    e(f"v_lshl_add_u32 v{vIO}, v{T+1}, 3, v{T}")
    e(f"s_and_b32 s{sT1}, s{sWq}, 1")
    e(f"s_lshl1_add_u32 s{sT3}, s{sTB}, s{sT1}")
    e(f"s_mul_i32 s{sI0}, s{sT3}, {32*896}")
    e(f"s_add_u32 s{sI0}, s{sI0}, s{sCB}")
    e(f"s_lshr_b32 s{sT2}, s{sWq}, 1")
    e(f"s_lshl_b32 s{sT2}, s{sT2}, 6")
    e(f"s_add_u32 s{sI0}, s{sI0}, s{sT2}")
    def issue_w(s):
        st = s % 6
        e(f"s_add_u32 m0, s{sLB}, {st*2048}")
        e(f"s_add_u32 s{sT1}, s{sWo}, {8*896}")
        a.vm_op(f"buffer_load_dwordx4 v{vD}, {S(rB)}, s{sWo} offen lds", f"s{s}")
        e(f"s_add_u32 m0, s{sLB}, {st*2048+1024}")
        e(f"s_add_u32 s{sWo}, s{sWo}, {16*896}")
        a.vm_op(f"buffer_load_dwordx4 v{vD}, {S(rB)}, s{sT1} offen lds", f"s{s}")
    srd(a, rB, pW2, W2_BYTES)
    e(f"s_mul_i32 s{sWo}, s{sWq}, {448*896}")
    e(f"s_add_u32 s{sWo}, s{sWo}, s{sCB}")
    for s in range(6): issue_w(s); pace()
    e(f"s_mul_i32 s{sH0}, s{sT3}, 112")
    e(f"s_xor_b32 s{sT3}, s{sT3}, 1")
    e(f"s_mul_i32 s{sH1}, s{sT3}, 112")
    e(f"s_mul_i32 s{sT1}, s{sWq}, 28")
    e(f"s_add_u32 s{sT1}, s{sT1}, {H_OFF >> 10}")
    e(f"s_add_u32 s{sH0}, s{sH0}, s{sT1}")
    e(f"s_add_u32 s{sH1}, s{sH1}, s{sT1}")
    e(f"s_lshl_b32 s{sH0}, s{sH0}, 10")
    e(f"s_lshl_b32 s{sH1}, s{sH1}, 10")
    e(f"s_xor_b32 s{sT2}, s{sT2}, s{sLB}")
    tr_addr(a, vLane, vA0, vA1, T, T + 1, T + 2, sT2, xor=True)
    def wr(s, d0, off, wait=True):
        if wait: a.vm_wait(f"s{s}")
        for ct in range(2):
            d = d0 + ct * 4
            ad = vA0 if ct == 0 else vA1
            a.ds_op(f"ds_read_b64_tr_b16 v[{d}:{d+1}], v{ad} offset:{off}", f"w{s}")
            a.ds_op(f"ds_read_b64_tr_b16 v[{d+2}:{d+3}], v{ad} offset:{off+1024}", f"w{s}")
    e(f"s_lshr_b32 s{sT1}, s{sTB}, 1")
    e(f"s_lshl_b32 s{sT1}, s{sT1}, 7")
    e(f"s_add_u32 s{sT1}, s{sT1}, {12*128}")
    e(f"v_mov_b32 v{vCt}, s{sT1}")
    def issue_h(s):
        st = s % 6
        off = (s % 4) * 1024
        a.vm_op(f"buffer_load_dwordx4 v[{HR+8*st}:{HR+8*st+3}], v{vSt}, {S(rWS)}, s{sH0} offen offset:{off}{LD}", f"s{s}")
        a.vm_op(f"buffer_load_dwordx4 v[{HR+8*st+4}:{HR+8*st+7}], v{vSt}, {S(rWS)}, s{sH1} offen offset:{off}{LD}", f"s{s}")
        if s % 4 == 3:
            e(f"s_add_u32 s{sH0}, s{sH0}, 4096")
            e(f"s_add_u32 s{sH1}, s{sH1}, 4096")
    e(f"s_cmp_lg_u32 s{sWq}, 0")
    e(f"s_cbranch_scc1 L_hw")
    poll(vCt, T + 1, 16, opt.get("hsleep", 12))
    lds_arrive(8, T, T + 1)
    a.label("L_hw")
    lds_spin(8, 1, T, T + 1, 3)
    e(f"s_waitcnt vmcnt(0)")
    sp.stamp("hrdy")
    for s in range(DP): issue_h(s)
    e(f"s_setprio {opt.get('gprio', 0)}")
    def mm(s, w, h):
        for ct in range(2):
            for tt in range(2):
                d = ACCG + (2*ct+tt) * 16
                c = "0" if s == 0 else f"v[{d}:{d+15}]"
                e(f"v_mfma_f32_32x32x16_bf16 v[{d}:{d+15}], v[{w+4*ct}:{w+4*ct+3}], v[{h+4*tt}:{h+4*tt+3}], {c}")
    wr(0, WFR, 0)
    TOP = opt.get("gtop", 0)
    for s in range(28):
        if TOP and s > 0:
            if s + 1 < 28: a.vm_wait(f"s{s+1}")
            if 6 <= s + DP - 1 < 28: issue_w(s + DP - 1)
            if s + DP - 1 < 28: issue_h(s + DP - 1)
        if s + 1 < 28: wr(s + 1, WFR + ((s + 1) % 2) * 8, ((s + 1) % 6) * 2048)
        a.ds_wait(f"w{s}")
        if not opt.get("x_nogm") or s == 0: mm(s, WFR + (s % 2) * 8, HR + 8 * (s % 6))
        if opt.get("x_nogl") or TOP: continue
        if 6 <= s + DP < 28: issue_w(s + DP)
        if s + DP < 28: issue_h(s + DP)
    sp.stamp("w2")
    e(f"s_setprio {opt.get('gprio2', 2)}")
    e(f"s_mul_i32 s{sH0}, s{sWq}, 15360")
    PACE = opt.get("pace2", 6)
    e(f"s_mul_i32 s{sWo}, s{sWq}, {112*896}")
    e(f"s_add_u32 s{sWo}, s{sWo}, s{sCB}")
    for i in range(15):
        e(f"s_add_u32 m0, s{sH0}, {WO_LDS + i*1024}")
        if i: e(f"s_add_u32 s{sWo}, s{sWo}, {8*896}")
        a.vm_op(f"buffer_load_dwordx4 v{vD}, {S(rW)}, s{sWo} offen lds", "wo")
        pace()
    XG = HR
    for q in range(4):
        a.vm_op(f"buffer_load_dwordx2 v[{XG+2*q}:{XG+2*q+1}], v{vIO}, {S(rX)}, s{sI0} offen offset:{16*q}", "xg")
        pace()
    e(f"s_setprio {opt.get('gprio3', 0)}")
    def exchange(k):
        for sl in range(1, 4):
            x = (sl >> 1) * 2 + (sl & 1)
            e(f"s_xor_b32 s{sT1}, s{sWq}, {((sl >> 1) << 1) | (sl & 1)}")
            e(f"s_mul_i32 s{sT1}, s{sT1}, 12288")
            e(f"v_add_u32 v{T+sl}, s{sT1}, v{vSt}")
            for q in range(4):
                r = ACCG + 16 * sl + 4 * q
                a.ds_op(f"ds_write_b128 v{T+sl}, v[{r}:{r+3}] offset:{(sl-1)*4096 + q*1024}")
        e(f"v_add_u32 v{T}, s{sLB}, v{vSt}")
        lds_sync(k, 4, T + 1, T + 2)
        for p in range(3):
            for q in range(4):
                r = ACCG + 16 + 16 * p + 4 * q
                a.ds_op(f"ds_read_b128 v[{r}:{r+3}], v{T} offset:{p*4096 + q*1024}", f"p{p}")
        for p in range(3):
            a.ds_wait(f"p{p}")
            for kk in range(16): e(f"v_add_f32 v{ACCG+kk}, v{ACCG+kk}, v{ACCG+16+16*p+kk}")
    lds_sync(3, 4, T + 1, T + 2)
    exchange(4)
    U = ACCG + 16
    for k in range(16): e(f"v_mul_f32 v{U+k}, {hexf(-LOG2E)}, v{ACCG+k}")
    for k in range(16): e(f"v_exp_f32 v{U+k}, v{U+k}")
    for k in range(16): e(f"v_add_f32 v{U+k}, 1.0, v{U+k}")
    for k in range(16): e(f"v_rcp_f32 v{U+k}, v{U+k}")
    for k in range(16): e(f"v_mul_f32 v{GF+k}, v{ACCG+k}, v{U+k}")
    e(f"s_mul_i32 s{sT2}, s{sWq}, 15360 - 12288")
    e(f"s_add_u32 s{sT2}, s{sT2}, {WO_LDS}")
    e(f"v_add_u32 v{vA0}, s{sT2}, v{vA0}")
    e(f"v_add_u32 v{vA1}, s{sT2}, v{vA1}")
    a.vm_wait("xg")
    for s in range(8):
        wr(100 + s, WO_F + 8 * s, (28 * (s // 2) + 16 * (s % 2)) * 128, wait=False)
    for k in range(8):
        e(f"v_lshlrev_b32 v{XF+2*k}, 16, v{XG+k}")
        e(f"v_and_b32 v{XF+2*k+1}, 0xffff0000, v{XG+k}")
    a.ds_wait_all()
    lds_sync(5, 4, T + 1, T + 2)
    srd(a, rW3, pOUT, X_BYTES)
    e(f"s_and_b32 s{sT1}, s{sWq}, 1")
    e(f"s_lshl1_add_u32 s{sT1}, s{sTB}, s{sT1}")
    e(f"s_lshl_b32 s{sH0}, s{sT1}, 15")
    e(f"s_lshl_b32 s{sT1}, s{sWq}, 13")
    e(f"s_add_u32 s{sH0}, s{sH0}, s{sT1}")
    e(f"s_add_u32 s{sH0}, s{sH0}, {O_OFF}")
    e(f"s_xor_b32 s{sH1}, s{sH0}, 32768")
    e(f"v_min_u32 v{T}, 1, v{vLane}")
    e(f"s_lshl1_add_u32 s{sT1}, s{sTB}, 28")
    e(f"v_add_lshl_u32 v{vCt}, v{T}, s{sT1}, 7")
    e(f"v_lshrrev_b32 v{T}, 5, v{vLane}")
    e(f"v_lshl_add_u32 v{vIO}, v{T}, 3, v{vIO}")
    sp.stamp("grdy")
    lds_spin(9, 4, T, T + 1, 3)
    e(f"s_setprio 2")
    poll(vCt, T + 1, 16, opt.get("osleep", 1))
    sp.stamp("ordy")
    for s in range(8):
        if s == 4:
            e(f"s_add_u32 s{sH0}, s{sH0}, 4096")
            e(f"s_add_u32 s{sH1}, s{sH1}, 4096")
        a.vm_op(f"buffer_load_dwordx4 v[{OF+8*s}:{OF+8*s+3}], v{vSt}, {S(rWS)}, s{sH0} offen offset:{(s%4)*1024}{LD}", f"o{s}")
        a.vm_op(f"buffer_load_dwordx4 v[{OF+8*s+4}:{OF+8*s+7}], v{vSt}, {S(rWS)}, s{sH1} offen offset:{(s%4)*1024}{LD}", f"o{s}")
    for s in range(8):
        a.vm_wait(f"o{s}")
        mm(s, WO_F + 8 * s, OF + 8 * s)
    exchange(6)
    for k in range(16): e(f"v_fma_f32 v{ACCG+k}, v{ACCG+k}, v{GF+k}, v{XF+k}")
    for k in range(8): e(f"v_cvt_pk_bf16_f32 v{U+k}, v{ACCG+2*k}, v{ACCG+2*k+1}")
    for pr in range(2):
        e(f"v_permlane32_swap_b32 v{U+4*pr}, v{U+4*pr+2}")
        e(f"v_permlane32_swap_b32 v{U+4*pr+1}, v{U+4*pr+3}")
    e(f"buffer_store_dwordx4 v[{U}:{U+3}], v{vIO}, {S(rW3)}, s{sI0} offen{opt.get('ost', '')}")
    e(f"buffer_store_dwordx4 v[{U+4}:{U+7}], v{vIO}, {S(rW3)}, s{sI0} offen offset:32{opt.get('ost', '')}")
    hdiag(1)
    sp.stamp("end")
    sp.dump(pWS, sW)
    a.label("L_end")
    e("s_endpgm")
    return kd(NAME, 256)

if __name__ == "__main__":
    opt = json.loads(sys.argv[2]) if len(sys.argv) > 2 else {}
    a = Asm()
    a.raw("; one workgroup per CU; workgroups hand data over through d_ws (write-through stores + counters)")
    a.raw("; @launch grid=(256,1,1) block=(512,1,1) lds=163840")
    a.raw('.amdgcn_target "amdgcn-amd-amdhsa--gfx950"')
    a.raw(".text")
    k = gen(a, opt)
    a.raw("L_code_end:")
    a.raw(".fill 64, 4, 0xbf800000")
    a.raw("    s_endpgm")
    a.raw('.section .rodata,"a"')
    a.raw(k)
    open(sys.argv[1], "w").write(a.text())
    print("nops inserted:", a.nops, "lines:", len(a.lines))
```

```python
import sys, json
from common import *
from gemm64 import *
BIAS = 32.0
NAME = "recurrent_scan__softmax_full_mha__glu_gated_swiglu__prompt_kernel"

def gen(a, opt):
    ST = opt.get("st", " sc1")
    LD = " sc1"
    NPH = opt.get("nph", 2)
    kernel_head(a, NAME)
    e = a.e
    uid = [0]
    def lab(p):
        uid[0] += 1; return f"L_{p}{uid[0]}"
    pX, pWQ, pWO, pW1, pW3, pW2, pOUT, pDBG, pWS = 4, 6, 8, 12, 14, 16, 18, 20, 22
    rX, rW1, rW3, rA, rB, rWS = 24, 28, 32, 36, 40, 44
    S = lambda r: f"s[{r}:{r+3}]"
    sW, sTT, sG, sRB, sCOL, sTTG = 48, 49, 50, 51, 52, 53
    sSO = [[54, 55], [56, 56], [57, 57]]
    sP64, sM0, sCurA, sCurB, sOnes, sLo, sHi, sHoff, sQKoff, sQKstep = 58, 59, 60, 61, 62, 63, 64, 65, 66, 67
    sT1, sT2, sT3, sStat, sPh, sHoff2 = 68, 69, 70, 71, 72, 73
    X0, AA, AB, WF, T0 = 16, 128, 160, 192, 216
    vLane, vSt, vD0, vD1, vD2B = 1, 2, 3, 4, 250
    vTB = [[5, 6], [7, 8], [9]]
    vTW = [10, 11]
    vXR = [12, 13, 14, 15]
    vK, vC1, vSc, vP6, vP7, vFlag, vV3, vV4 = 232, 233, 234, 236, 237, 238, 239, 235
    vXW = [240, 241]; vStat = 242; vNM = 243; vAcc = [244, 245, 246, 247]; vV1, vV2 = 248, 249
    vDum = 251
    RAW = 128
    SCR = 7 * 16384
    SYNC = 163840 - 256
    e("s_cmp_ge_u32 s2, 256")
    e("s_cbranch_scc1 L_end")
    sp = Stamper(a, opt.get("stamp"), 0)
    sp.stamp("rt", True); sp.stamp("start")
    if opt.get("hdiag"): e("s_memrealtime s[76:77]"); e("s_memtime s[78:79]")
    e("s_load_dwordx16 s[4:19], s[0:1], 0")
    e("s_load_dwordx4 s[20:23], s[0:1], 64")
    RL = 3
    sWR, sXa, sXb, sGS = sStat, sOnes, sLo, sHi
    e(f"v_lshrrev_b32 v22, 6, v0")
    e(f"v_and_b32 v{vLane}, 63, v0")
    e(f"v_readfirstlane_b32 s{sW}, v22")
    e(f"s_and_b32 s{sT1}, s2, 1")
    e(f"s_bfe_u32 s{sT2}, s2, 0x30003")
    e(f"s_lshl3_add_u32 s{sRB}, s{sT1}, s{sT2}")
    e(f"s_bfe_u32 s{sT1}, s2, 0x20001")
    e(f"s_lshr_b32 s{sT2}, s2, 6")
    e(f"s_lshl2_add_u32 s{sCOL}, s{sT1}, s{sT2}")
    e(f"v_bfe_u32 v22, v0, 3, 3")
    e(f"v_and_b32 v23, 7, v0")
    e(f"s_lshl_b32 s{sT1}, s{sT2}, 2")
    e(f"s_and_b32 s{sWR}, s{sT1}, 4")
    e(f"s_xor_b32 s{sWR}, s{sWR}, s{sW}")
    e(f"s_and_b32 s{sGS}, s{sT1}, 8")
    e(f"s_lshl3_add_u32 s{sT1}, s{sRB}, s{sWR}")
    e(f"s_lshl4_add_u32 s{sT2}, s{sT1}, s{sGS}")
    e(f"s_xor_b32 s{sT1}, s{sT2}, 8")
    e(f"s_mulk_i32 s{sT2}, 896")
    e(f"s_mulk_i32 s{sT1}, 896")
    e(f"v_mul_u32_u24 v24, 896, v22")
    e(f"v_lshl_add_u32 v24, v23, 4, v24")
    e(f"s_mov_b32 s{rX+2}, {hex(X_BYTES)}")
    e(f"s_mov_b32 s{rX+3}, 0x20000")
    e(f"s_cmp_ge_u32 s{sW}, 4")
    e("s_waitcnt lgkmcnt(0)")
    e(f"s_mov_b64 s[{rX}:{rX+1}], s[{pX}:{pX+1}]")
    def xloads(lo, hi, sa, sb):
        for k in range(lo, hi):
            gi, i = divmod(k, 7)
            r = RAW + k * 4
            e(f"buffer_load_dwordx4 v[{r}:{r+3}], v24, {S(rX)}, s{sa if gi == 0 else sb} offen offset:{i*128}")
    XE = opt.get("xe", 10)
    e(f"s_cbranch_scc1 L_x0")
    a.skip_begin(); xloads(0, XE, sT2, sT1)
    e(f"s_branch L_x1")
    a.label("L_x0")
    e(f"s_getpc_b64 s[74:75]")
    a.label("L_pc")
    e(f"s_add_u32 s74, s74, {NAME}-L_pc")
    e(f"s_addc_u32 s75, s75, -1")
    e(f"s_lshr_b32 s3, s2, 3")
    e(f"s_lshl_b32 s3, s3, 7")
    e(f"v_and_b32 v20, 255, v0")
    e(f"v_lshl_add_u32 v20, v20, 12, s3")
    e(f"v_min_u32 v{vDum}, L_code_end-{NAME}-4, v20")
    e(f"global_load_dword v{vDum}, v{vDum}, s[74:75]")
    a.skip_end()
    a.label("L_x1")
    sp.stamp("xiss", lvl=3)
    e(f"s_mov_b32 s{sXa}, s{sT2}")
    e(f"s_mov_b32 s{sXb}, s{sT1}")
    def srd2(d, base, nbytes):
        e(f"s_mov_b64 s[{d}:{d+1}], s[{base}:{base+1}]")
        e(f"s_mov_b32 s{d+2}, {hex(nbytes)}")
        e(f"s_mov_b32 s{d+3}, 0x20000")
    srd2(rWS, pWS, WS_USED)
    e(f"s_or_b32 s{sT3}, s2, s{sW}")
    e(f"s_cbranch_scc1 L_noinit")
    a.skip_begin()
    e(f"v_lshlrev_b32 v25, 7, v{vLane}")
    e(f"v_mov_b32 v26, 0")
    e(f"s_mov_b32 s3, {CNT_OFF}")
    e(f"buffer_store_dword v26, v25, {S(rWS)}, s3 offen sc1")
    e(f"s_add_u32 s3, s3, 8192")
    e(f"buffer_store_dword v26, v25, {S(rWS)}, s3 offen sc1")
    a.skip_end()
    a.label("L_noinit")
    e(f"s_and_b32 s{sTT}, s{sW}, 3")
    e(f"s_lshr_b32 s{sG}, s{sW}, 2")
    e(f"s_lshl_b32 s{sM0}, s{sW}, 10")
    e(f"s_lshl_b32 s{sPh}, s{sG}, 1")
    sTc0a, sTc0b = sCurA, sCurB
    e(f"s_cmp_ge_u32 s{sCOL}, 12")
    e(f"s_cbranch_scc1 L_r0f")
    srd2(rA, pWQ, WQ_BYTES)
    e(f"s_mov_b64 s[{rB}:{rB+1}], s[{pWQ}:{pWQ+1}]")
    e(f"s_and_b32 s{sT2}, s{sCOL}, 3")
    e(f"s_mul_i32 s{sSO[0][0]}, s{sCOL}, 224")
    e(f"s_cmp_eq_u32 s{sT2}, 3")
    e(f"s_cselect_b32 s{sT3}, 32, 0")
    e(f"s_sub_u32 s{sSO[0][0]}, s{sSO[0][0]}, s{sT3}")
    e(f"s_add_u32 s{sSO[0][1]}, s{sSO[0][0]}, 128")
    e(f"s_mul_i32 s{sTc0a}, s{sG}, 112")
    e(f"s_add_u32 s{sTc0a}, s{sTc0a}, s{sT3}")
    e(f"s_add_u32 s{sTc0b}, s{sTc0a}, 56")
    e(f"s_movk_i32 s{sP64}, 2688")
    e(f"s_branch L_r0j")
    a.label("L_r0f")
    srd2(rA, pW1, W1_BYTES)
    e(f"s_mov_b64 s[{rB}:{rB+1}], s[{pW3}:{pW3+1}]")
    e(f"s_add_u32 s{sT1}, s{sCOL}, 12")
    e(f"s_lshl_b32 s{sSO[0][0]}, s{sT1}, 7")
    e(f"s_mov_b32 s{sSO[0][1]}, s{sSO[0][0]}")
    e(f"s_lshl_b32 s{sTc0a}, s{sG}, 6")
    e(f"s_add_u32 s{sTc0b}, s{sTc0a}, 128")
    e(f"s_movk_i32 s{sP64}, 3584")
    a.label("L_r0j")
    a.reset_hist()
    e(f"s_mov_b32 s{rB+2}, s{rA+2}")
    e(f"s_mov_b32 s{rB+3}, 0x20000")
    e(f"s_and_b32 s{sT3}, s{sRB}, 7")
    if opt.get("wpf0", 1):
        e(f"s_cmp_{'lt' if opt.get('wpf0', 2) == 1 else 'ge'}_u32 s{sW}, 4")
        e(f"s_cbranch_scc1 L_w0")
        a.skip_begin()
        e(f"s_mul_i32 s{sT2}, s{sTT}, 48")
        e(f"s_add_u32 s{sT2}, s{sT2}, s{sT3}")
        e(f"v_min_u32 v30, 5, v{vLane}")
        e(f"v_lshl_add_u32 v30, v30, 3, s{sT2}")
        e(f"v_mul_lo_u32 v30, v30, s{sP64}")
        e(f"buffer_load_dword v{vDum+1}, v30, {S(rA)}, s{sSO[0][0]} offen")
        e(f"buffer_load_dword v{vDum+1}, v30, {S(rB)}, s{sSO[0][1]} offen")
        a.skip_end()
        a.label("L_w0")
    e(f"v_lshrrev_b32 v25, 2, v{vLane}")
    e(f"v_and_b32 v25, 4, v25")
    e(f"v_xor_b32 v25, v25, v23")
    e(f"v_lshl_add_u32 v26, s{sW}, 3, v22")
    e(f"v_mul_lo_u32 v{vD0}, v26, s{sP64}")
    e(f"v_lshl_add_u32 v{vD0}, v25, 4, v{vD0}")
    e(f"v_mul_u32_u24 v{vD1}, 3584, v26")
    e(f"v_lshl_add_u32 v{vD1}, v25, 4, v{vD1}")
    e(f"s_lshl_b32 s{sT1}, s{sP64}, 5")
    e(f"v_subrev_u32 v32, s{sT1}, v{vD0}")
    vRow, vSwz, vCol = vV1, vV2, vV3
    e(f"v_lshrrev_b32 v26, 5, v{vLane}")
    e(f"v_bfe_u32 v27, v{vLane}, 2, 2")
    e(f"v_lshl_add_u32 v27, v26, 3, v27")
    e(f"v_lshlrev_b32 v{vRow}, 7, v27")
    e(f"v_and_b32 v28, 8, v{vLane}")
    e(f"v_lshlrev_b32 v{vSwz}, 3, v28")
    e(f"v_and_b32 v29, 3, v{vLane}")
    e(f"v_and_b32 v30, 16, v{vLane}")
    e(f"v_lshlrev_b32 v30, 1, v30")
    e(f"v_lshl_add_u32 v{vCol}, v29, 3, v30")
    def traddr(d, stc, t0, t1):
        return [f"v_add_u32 v{t0}, s{stc}, v{vCol}", f"v_and_b32 v{t1}, 127, v{t0}", f"v_xor_b32 v{t1}, v{t1}, v{vSwz}",
                f"v_and_b32 v{t0}, 128, v{t0}", f"v_lshl_add_u32 v{t0}, v{t0}, 6, v{t1}", f"v_add_u32 v{d}, v{t0}, v{vRow}"]
    for t in traddr(vTB[0][0], sTc0a, 30, 31) + traddr(vTB[0][1], sTc0b, 30, 31): e(t)
    e(f"s_and_b32 s{sT1}, s{sWR}, 1")
    e(f"s_lshl4_add_u32 s{sT1}, s{sT1}, s{sGS}")
    e(f"v_add_u32 v30, s{sT1}, v22")
    e(f"v_xor_b32 v30, v30, v23")
    e(f"v_lshlrev_b32 v30, 4, v30")
    e(f"v_lshrrev_b32 v31, 1, v23")
    e(f"v_lshl_add_u32 v30, v31, 12, v30")
    e(f"v_and_b32 v31, 1, v23")
    e(f"v_lshl_add_u32 v30, v31, 9, v30")
    e(f"s_lshr_b32 s{sT1}, s{sWR}, 1")
    e(f"v_lshl_add_u32 v{vXW[0]}, s{sT1}, 10, v30")
    e(f"v_add_u32 v{vXW[1]}, 0x10000, v{vXW[0]}")
    e(f"v_and_b32 v30, 31, v{vLane}")
    e(f"v_xor_b32 v30, v30, v26")
    e(f"v_lshlrev_b32 v30, 4, v30")
    e(f"v_lshl_add_u32 v30, v26, 9, v30")
    e(f"v_lshl_add_u32 v{vXR[0]}, s{sTT}, 10, v30")
    for q in range(1, 4):
        e(f"v_xor_b32 v{vXR[q]}, {q*4096 + q*32}, v{vXR[0]}")
    e(f"s_lshl4_add_u32 s{sT1}, s{sWR}, s{sGS}")
    e(f"v_add_lshl_u32 v{vStat}, v22, s{sT1}, 2")
    e(f"s_mul_i32 s{sT2}, s{sTT}, 112")
    e(f"s_add_u32 s{sT1}, s{sT3}, s{sT2}")
    e(f"v_min_u32 v30, 13, v{vLane}")
    e(f"v_lshl_add_u32 v30, v30, 3, s{sT1}")
    e(f"v_mul_u32_u24 v{vDum+3}, 3584, v30")
    e(f"s_lshl_b32 s{sT2}, s{sTT}, 6")
    e(f"s_add_u32 s{sT1}, s{sT3}, s{sT2}")
    e(f"s_add_u32 s{sT1}, s{sT1}, 192")
    e(f"v_min_u32 v31, 7, v{vLane}")
    e(f"v_lshl_add_u32 v31, v31, 3, s{sT1}")
    e(f"v_mul_lo_u32 v{vDum+2}, v31, s{sP64}")
    e(f"s_lshl_b32 s{sP64}, s{sP64}, 6")
    srd2(rW1, pW1, W1_BYTES)
    srd2(rW3, pW3, W1_BYTES)
    e(f"s_lshl_b32 s{sSO[1][0]}, s{sCOL}, 7")
    e(f"s_lshr_b32 s{sT1}, s{sCOL}, 1")
    e(f"s_add_u32 s{sT1}, s{sT1}, 16")
    e(f"s_lshl_b32 s{sSO[2][0]}, s{sT1}, 7")
    e(f"s_cmp_lt_u32 s{sW}, 4")
    e(f"s_cbranch_scc1 L_x2")
    a.skip_begin(); xloads(0, XE, sXa, sXb); a.skip_end()
    a.label("L_x2")
    xloads(XE, 14, sXa, sXb)
    e(f"s_lshl_b32 s{sStat}, s2, 9")
    e(f"s_add_u32 s{sStat}, s{sStat}, {ST_OFF}")
    e(f"s_mov_b32 s{sOnes}, 0x3f803f80")
    e(f"s_movk_i32 s{sLo}, 0x3f80")
    e(f"s_mov_b32 s{sHi}, 1.0")
    def slot(c):
        if c < 3: return 7 + c
        if c < 10: return c - 3
        if c == 20: return 7
        return slot(c - 9)
    dma_next = [3]
    def dma(c, track=True):
        r, cc = divmod(c, 7)
        if cc == 0:
            e(f"s_mov_b32 s{sCurA}, s{sSO[r][0]}")
            if r == 0: e(f"s_mov_b32 s{sCurB}, s{sSO[r][1]}")
        va, vb = [(vD0, vD0), (vD1, vD1), (vD1, vD2B)][r]
        sa, sb = (rA, rB) if r == 0 else (rW1, rW3)
        inc = f"s{sP64}" if r == 0 else f"{64*3584}"
        e(f"s_add_u32 m0, s{sM0}, {slot(c)*16384}")
        if cc: e(f"s_add_u32 s{sCurA}, s{sCurA}, {inc}")
        e(f"buffer_load_dwordx4 v{va}, {S(sa)}, s{sCurA} offen lds")
        e(f"s_add_u32 m0, s{sM0}, {slot(c)*16384+8192}")
        if cc and r == 0: e(f"s_add_u32 s{sCurB}, s{sCurB}, {inc}")
        e(f"buffer_load_dwordx4 v{vb}, {S(sb)}, s{sCurB if r == 0 else sCurA} offen lds")
        if track: a.vm += [f"c{c}", f"c{c}"]
    for q in range(8): e(f"v_mov_b32 v{T0+8+q}, 0")
    e(f"s_cmp_lt_u32 s{sW}, 4")
    e(f"s_cbranch_scc1 L_lnA")
    e(f"s_waitcnt vmcnt(0)")
    def dma4(c):
        dma(c, track=False)
        e(f"s_add_u32 m0, s{sM0}, {slot(c)*16384 - 4096}")
        e(f"buffer_load_dwordx4 v32, {S(rA)}, s{sCurA} offen lds")
        e(f"s_add_u32 m0, s{sM0}, {slot(c)*16384 + 8192 - 4096}")
        e(f"buffer_load_dwordx4 v32, {S(rB)}, s{sCurB} offen lds")
        a.vm += [f"c{c}"] * 4
    C2 = opt.get("c2pos", 1)
    for c in range(3 if C2 == 0 else 2): dma4(c)
    e(f"s_branch L_lnB")
    a.label("L_lnA")
    e(f"s_lshl1_add_u32 s{sCurA}, s{sP64}, s{sSO[0][0]}")
    e(f"s_lshl1_add_u32 s{sCurB}, s{sP64}, s{sSO[0][1]}")
    e(f"s_waitcnt vmcnt(0)")
    a.label("L_lnB")
    a.reset_hist()
    sp.stamp("x0"); sp.stamp("x0", lvl=3)
    AC = T0 + 8
    def reduce2(d0, d1):
        for g in range(2): e(f"v_add_f32 v{AC+4*g}, v{AC+4*g}, v{AC+4*g+1}")
        for g in range(2): e(f"v_add_f32 v{AC+4*g+2}, v{AC+4*g+2}, v{AC+4*g+3}")
        for g, d in enumerate((d0, d1)): e(f"v_add_f32 v{d}, v{AC+4*g}, v{AC+4*g+2}")
        for m in ("quad_perm:[1,0,3,2]", "quad_perm:[2,3,0,1]", "row_half_mirror"):
            for d in (d0, d1): e(f"v_add_f32_dpp v{d}, v{d}, v{d} {m} row_mask:0xf bank_mask:0xf")
    for i in range(28):
        for g in range(2): e(f"v_dot2c_f32_bf16 v{AC+4*g+i%4}, s{sOnes}, v{RAW+g*28+i}")
    reduce2(vAcc[0], vAcc[1])
    for q in range(8): e(f"v_mov_b32 v{AC+q}, 0")
    for g in range(2): e(f"v_mul_f32 v{vAcc[g]}, {hexf(-1.0/448)}, v{vAcc[g]}")
    if C2 == 1:
        e(f"s_cmp_lt_u32 s{sW}, 4")
        e(f"s_cbranch_scc1 L_c2")
        a.skip_begin(); dma4(2); a.skip_end()
        a.label("L_c2")
    sp.stamp("pre", lvl=3)
    pend = None
    for gi in range(2):
        for i in range(7):
            r = RAW + gi * 28 + i * 4
            for k in range(4):
                e(f"v_dot2_f32_bf16 v{T0+2*k}, v{r+k}, s{sLo}, v{vAcc[gi]}")
                e(f"v_dot2_f32_bf16 v{T0+2*k+1}, v{r+k}, s{sHi}, v{vAcc[gi]}")
            if pend: pend()
            for k in range(4):
                e(f"v_cvt_pk_bf16_f32 v{r+k}, v{T0+2*k}, v{T0+2*k+1}")
            def pend(r=r, gi=gi, i=i):
                off = i * 16384
                a.ds_op(f"ds_write_b128 v{vXW[off >> 16]}, v[{r}:{r+3}] offset:{off & 0xffff}", "xw")
                if i == 6 and gi == 0:
                    e(f"v_xor_b32 v{vXW[0]}, 128, v{vXW[0]}")
                    e(f"v_xor_b32 v{vXW[1]}, 128, v{vXW[1]}")
    pend()
    if C2 == 2:
        e(f"s_cmp_lt_u32 s{sW}, 4")
        e(f"s_cbranch_scc1 L_c2")
        a.skip_begin(); dma4(2); a.skip_end()
        a.label("L_c2")
    sp.stamp("post", lvl=3)
    for i in range(28):
        for g in range(2): e(f"v_dot2c_f32_bf16 v{AC+4*g+i%4}, v{RAW+g*28+i}, v{RAW+g*28+i}")
    e(f"v_mov_b32 v{T0}, {hexf(1e-5)}")
    e(f"v_mov_b32 v{T0+1}, {hexf(1e-5)}")
    e(f"v_xor_b32 v{T0+2}, 32, v{vStat}")
    reduce2(vAcc[0], vAcc[1])
    for g in range(2): e(f"v_fmac_f32 v{T0+g}, {hexf(1.0/448)}, v{vAcc[g]}")
    def wpf():
        e(f"buffer_load_dword v{vDum+1}, v{vDum+2}, {S(rA)}, s{sSO[0][0]} offen")
        e(f"buffer_load_dword v{vDum+1}, v{vDum+2}, {S(rB)}, s{sSO[0][1]} offen")
        for r in (1, 2):
            e(f"buffer_load_dword v{vDum+1}, v{vDum+3}, {S(rW1)}, s{sSO[r][0]} offen")
            e(f"buffer_load_dword v{vDum+1}, v{vDum+3}, {S(rW3)}, s{sSO[r][0]} offen")
        if opt.get("w2pf", 3) == 3:
            e(f"s_lshl2_add_u32 s{sT1}, s2, s{sW}")
            e(f"s_mul_i32 s{sT2}, s{sT1}, {13*128}")
            e(f"s_lshl_b32 s{sT1}, s{sT1}, 9")
            e(f"v_min_u32 v{vDum+2}, 12, v{vLane}")
            e(f"v_lshl_add_u32 v{vDum+2}, v{vDum+2}, 7, s{sT2}")
            e(f"v_min_u32 v{vDum+2}, {W2_BYTES-4}, v{vDum+2}")
            e(f"v_min_u32 v{vDum+3}, 3, v{vLane}")
            e(f"v_lshl_add_u32 v{vDum+3}, v{vDum+3}, 7, s{sT1}")
            e(f"v_min_u32 v{vDum+3}, {WO_BYTES-4}, v{vDum+3}")
            e(f"global_load_dword v{vDum+1}, v{vDum+2}, s[{pW2}:{pW2+1}]")
            e(f"global_load_dword v{vDum+1}, v{vDum+3}, s[{pWO}:{pWO+1}]")
    e(f"s_cmp_ge_u32 s{sW}, 4")
    e(f"s_cbranch_scc1 L_lnD")
    a.skip_begin()
    e(f"s_or_b32 s{sT3}, s2, s{sW}")
    e(f"s_cbranch_scc1 L_noflag")
    e(f"v_mov_b32 v25, 0")
    e(f"v_mov_b32 v26, 1")
    e(f"global_store_dword v25, v26, s[{pDBG}:{pDBG+1}] sc1")
    a.label("L_noflag")
    if opt.get("wpf", 1) == 1: wpf()
    e(f"s_branch L_lnE")
    a.skip_end()
    a.label("L_lnD")
    sp.stamp("ln", lvl=3, nowait=True)
    a.vm_wait("c1")
    a.label("L_lnE")
    a.ds_wait_all()
    sp.stamp("ln")
    sp.stamp("c1", lvl=3)
    e("s_barrier")
    sp.stamp("b1"); sp.stamp("b1", lvl=3)
    def deferred():
        t0, t1, t2 = AB, AB + 1, AB + 2
        G = lambda *ins: (lambda: [e(x) for x in ins], sum(2 if x.startswith("s_") else 4 for x in ins))
        L = []
        L.append(G(f"v_xor_b32 v{vD2B}, 32, v{vD1}", f"v_lshlrev_b32 v{vSt}, 4, v{vLane}", f"s_mov_b32 vcc_lo, -1", f"s_mov_b32 vcc_hi, 0"))
        L.append(G(f"s_lshl2_add_u32 s{sTTG}, s{sRB}, s{sTT}", f"s_lshl_b32 s{sHoff}, s{sG}, 6"))
        L += [G(x) for x in traddr(vTB[1][0], sHoff, t0, t1)]
        L.append(G(f"v_add_u32 v{vTB[1][1]}, 8192, v{vTB[1][0]}"))
        L.append(G(f"s_and_b32 s{sHoff}, s{sCOL}, 1", f"s_lshl1_add_u32 s{sHoff2}, s{sHoff}, s{sG}", f"s_lshl_b32 s{sHoff}, s{sHoff2}, 5",
                   f"v_xor_b32 v{t0}, s{sHoff}, v{vCol}"))
        L.append(G(f"v_xor_b32 v{t0}, v{t0}, v{vSwz}", f"v_and_b32 v{t1}, 16, v{vLane}"))
        L.append(G(f"v_lshl_add_u32 v{t0}, v{t1}, 9, v{t0}", f"v_add_u32 v{vTB[2][0]}, v{t0}, v{vRow}"))
        L.append(G(f"s_mul_i32 s{sHoff}, s{sTTG}, 112", f"s_add_u32 s{sHoff2}, s{sHoff2}, s{sHoff}", f"s_lshr_b32 s{sQKoff}, s{sSO[2][0]}, 5",
                   f"s_add_u32 s{sHoff2}, s{sHoff2}, s{sQKoff}", f"s_lshl_b32 s{sHoff2}, s{sHoff2}, 10", f"s_add_u32 s{sHoff2}, s{sHoff2}, {H_OFF}"))
        L.append(G(f"s_lshl1_add_u32 s{sHoff}, s{sG}, s{sHoff}", f"s_lshl2_add_u32 s{sHoff}, s{sCOL}, s{sHoff}", f"s_lshl_b32 s{sHoff}, s{sHoff}, 10",
                   f"s_add_u32 s{sHoff}, s{sHoff}, {H_OFF}"))
        L.append(G(f"s_lshl1_add_u32 s{sQKoff}, s{sCOL}, s{sG}", f"s_lshl_b32 s{sQKoff}, s{sQKoff}, 7", f"s_add_u32 s{sQKoff}, s{sQKoff}, s{sTTG}",
                   f"s_lshl_b32 s{sQKoff}, s{sQKoff}, 11", f"s_add_u32 s{sQKstep}, s{sHoff}, {12*4096}", f"s_cmp_ge_u32 s{sCOL}, 12",
                   f"s_cselect_b32 s{sQKoff}, s{sQKstep}, s{sQKoff}"))
        L.append(G(f"s_lshr_b32 s{sQKstep}, s{sCOL}, 2", f"s_cmp_eq_u32 s{sQKstep}, 1", f"s_cselect_b32 s{sOnes}, s{sOnes}, 0", f"s_cselect_b32 s{sHi}, s{sLo}, 0",
                   f"s_cmp_eq_u32 s{sQKstep}, 2", f"s_cselect_b32 s{sOnes}, s{sLo}, s{sOnes}"))
        L.append(G(f"v_mov_b32 v{vP6}, s{sOnes}", f"v_mov_b32 v{vP7}, s{sHi}"))
        L.append(G(f"v_lshrrev_b32 v{t2}, 5, v{vLane}", f"v_bfe_u32 v{t0}, v{vLane}, 2, 2", f"v_lshl_add_u32 v{t0}, v{t2}, 2, v{t0}"))
        L.append(G(f"v_lshrrev_b32 v{t1}, 1, v{t0}", f"v_lshlrev_b32 v{t1}, 3, v{t1}", f"v_xor_b32 v{t1}, v{t1}, v{vCol}"))
        L.append(G(f"s_lshl_b32 s{sQKstep}, s{sW}, 11", f"s_add_u32 s{sQKstep}, s{sQKstep}, {SCR}", f"v_lshl_add_u32 v{t0}, v{t0}, 6, v{t1}",
                   f"v_add_u32 v{vV2}, s{sQKstep}, v{t0}"))
        L.append(G(f"v_xor_b32 v{vV3}, 32, v{vV2}", f"v_bfe_u32 v{t0}, v{vLane}, 1, 3", f"v_xor_b32 v{t0}, v{t0}, v{t2}"))
        L.append(G(f"v_and_b32 v{t1}, 31, v{vLane}", f"v_lshlrev_b32 v{t1}, 6, v{t1}", f"v_lshl_add_u32 v{t0}, v{t0}, 3, v{t1}"))
        L.append(G(f"v_add_u32 v{vV1}, s{sQKstep}, v{t0}"))
        return L
    def hdiag(k):
        if not opt.get("hdiag"): return
        if k == 0: return
        e("s_cmp_ge_u32 s2, 7")
        e("s_cbranch_scc1 L_end")
        e(f"s_cmp_lg_u32 s{sW}, 4")
        e("s_cbranch_scc1 L_end")
        e("s_memrealtime s[80:81]"); e("s_memtime s[82:83]")
        e("s_waitcnt vmcnt(0) lgkmcnt(0)")
        e("s_mov_b64 exec, 1")
        e("s_lshl_b32 s3, s2, 3")
        e("v_mov_b32 v0, s3")
        e("s_sub_u32 s84, s82, s78")
        e("s_sub_u32 s80, s80, s76")
        e("s_and_b32 s76, s76, 0xffff")
        e("s_lshl_b32 s80, s80, 16")
        e("s_or_b32 s76, s76, s80")
        e("v_mov_b32 v2, s76"); e("v_mov_b32 v3, s84")
        e(f"global_store_dword v0, v2, s[{pDBG}:{pDBG+1}] offset:4")
        e(f"global_store_dword v0, v3, s[{pDBG}:{pDBG+1}] offset:8")
    def check_flag(vtmp):
        done = lab("fl")
        e(f"v_readfirstlane_b32 s{sT1}, v{vFlag}")
        e(f"s_cmp_lg_u32 s{sT1}, 0")
        e(f"s_cbranch_scc1 {done}")
        e(f"s_mov_b32 s{sT2}, 0x40000")
        lp = lab("fs"); a.label(lp)
        e(f"v_mov_b32 v{vtmp}, 0")
        e(f"global_load_dword v{vFlag}, v{vtmp}, s[{pDBG}:{pDBG+1}] sc1")
        e(f"s_waitcnt vmcnt(0)")
        e(f"v_readfirstlane_b32 s{sT1}, v{vFlag}")
        e(f"s_sub_u32 s{sT2}, s{sT2}, 1")
        e(f"s_cselect_b32 s{sT1}, 1, s{sT1}")
        e(f"s_cmp_eq_u32 s{sT1}, 0")
        e(f"s_cbranch_scc1 {lp}")
        a.label(done)
    def signal(sIdx, add, va, vb):
        e(f"s_add_u32 s{sT1}, s{sIdx}, {add}")
        e(f"s_lshl_b32 s{sT1}, s{sT1}, 7")
        e(f"s_add_u32 s{sT1}, s{sT1}, {CNT_OFF}")
        e(f"v_mov_b32 v{va}, 0")
        e(f"v_mov_b32 v{vb}, 1")
        e(f"s_mov_b64 exec, 1")
        e(f"buffer_atomic_add v{vb}, v{va}, {S(rWS)}, s{sT1} offen sc1")
        e(f"s_mov_b64 exec, -1")
    def poll(vaddr, vval, target, sleep):
        lp = lab("po"); done = lab("pd")
        e(f"s_mov_b32 s{sT2}, 0x40000")
        e(f"s_mov_b32 s{sT3}, {CNT_OFF}")
        a.label(lp)
        e(f"buffer_load_dword v{vval}, v{vaddr}, {S(rWS)}, s{sT3} offen sc1")
        e(f"s_waitcnt vmcnt(0)")
        e(f"v_cmp_gt_u32 s[74:75], {target}, v{vval}")
        e(f"s_cmp_eq_u64 s[74:75], 0")
        e(f"s_cbranch_scc1 {done}")
        e(f"s_sleep {sleep}")
        e(f"s_sub_u32 s{sT2}, s{sT2}, 1")
        e(f"s_cbranch_scc0 {lp}")
        a.label(done)
        a.vm = []
    def lds_arrive(k, va, vb, rtn=False):
        e(f"v_mov_b32 v{va}, {SYNC + 4*k}")
        e(f"v_mov_b32 v{vb}, 1")
        e(f"s_mov_b64 exec, 1")
        e(f"ds_add_rtn_u32 v{vb}, v{va}, v{vb}" if rtn else f"ds_add_u32 v{va}, v{vb}")
        e(f"s_mov_b64 exec, -1")
    def lds_sync(k, n, va, vb):
        a.ds_wait_all()
        lds_arrive(k, va, vb)
        lp = lab("ls")
        e(f"s_mov_b32 s{sT2}, 0x400000")
        a.label(lp)
        e(f"ds_read_b32 v{vb}, v{va}")
        e(f"s_waitcnt lgkmcnt(0)")
        e(f"v_readfirstlane_b32 s{sT1}, v{vb}")
        e(f"s_sub_u32 s{sT2}, s{sT2}, 1")
        e(f"s_cselect_b32 s{sT1}, {n}, s{sT1}")
        e(f"s_cmp_lt_u32 s{sT1}, {n}")
        e(f"s_cbranch_scc1 {lp}")
    def lds_spin(k, n, va, vb, sleep):
        lp = lab("ls"); ok = lab("lk")
        e(f"v_mov_b32 v{va}, {SYNC + 4*k}")
        e(f"s_mov_b32 s{sT2}, 0x100000")
        a.label(lp)
        e(f"ds_read_b32 v{vb}, v{va}")
        e(f"s_waitcnt lgkmcnt(0)")
        e(f"v_readfirstlane_b32 s{sT1}, v{vb}")
        e(f"s_cmp_ge_u32 s{sT1}, {n}")
        e(f"s_cbranch_scc1 {ok}")
        e(f"s_sleep {sleep}")
        e(f"s_sub_u32 s{sT2}, s{sT2}, 1")
        e(f"s_cbranch_scc0 {lp}")
        a.label(ok)
    def lds_wait(k, n, va, vb, meanwhile):
        lp = lab("lw"); ok = lab("lo")
        e(f"v_mov_b32 v{va}, {SYNC + 4*k}")
        e(f"ds_read_b32 v{vb}, v{va}")
        meanwhile()
        e(f"s_mov_b32 s{sT2}, 0x400000")
        a.label(lp)
        e(f"s_waitcnt lgkmcnt(0)")
        e(f"v_readfirstlane_b32 s{sT1}, v{vb}")
        e(f"s_cmp_ge_u32 s{sT1}, {n}")
        e(f"s_cbranch_scc1 {ok}")
        e(f"ds_read_b32 v{vb}, v{va}")
        e(f"s_sub_u32 s{sT2}, s{sT2}, 1")
        e(f"s_cbranch_scc0 {lp}")
        a.label(ok)
    def last_signals(k, n, sIdx, add, va, vb):
        lds_arrive(k, va, vb, rtn=True)
        e(f"s_waitcnt lgkmcnt(0)"); a.lg = []
        e(f"v_readfirstlane_b32 s{sT1}, v{vb}")
        sk = lab("ns")
        e(f"s_cmp_lg_u32 s{sT1}, {n-1}")
        e(f"s_cbranch_scc1 {sk}")
        a.skip_begin()
        signal(sIdx, add, va, vb)
        a.skip_end()
        a.label(sk)
    NT = [2, 2, 1]
    ACC = [AA, AB, AA]
    tw_state = [None, None]
    def wreads(G):
        r, s = divmod(G, 28)
        base = slot(G // 4) * 16384 + (s % 4) * 2048
        hi, lo = base >> 16, base & 0xffff
        L = []
        for t in range(NT[r]):
            d = WF + (G % 3) * 8 + t * 4
            def f0(t=t, d=d):
                if tw_state[t] != (r, hi):
                    e(f"v_add_u32 v{vTW[t]}, {hex(hi << 16)}, v{vTB[r][t]}")
                    tw_state[t] = (r, hi)
                a.ds_op(f"ds_read_b64_tr_b16 v[{d}:{d+1}], v{vTW[t]} offset:{lo}", f"w{G}")
            def f1(t=t, d=d):
                a.ds_op(f"ds_read_b64_tr_b16 v[{d+2}:{d+3}], v{vTW[t]} offset:{lo+512}", f"w{G}")
            L += [f0, f1]
        return L
    xr_next = [0]
    def xread(n):
        for _ in range(n):
            s = xr_next[0]
            if s >= 28: return
            xr_next[0] += 1
            if s == 16:
                for q in range(4): e(f"v_add_u32 v{vXR[q]}, 0x10000, v{vXR[q]}")
            off = ((s // 4) * 16384) & 0xffff
            a.ds_op(f"ds_read_b128 v[{X0+4*s}:{X0+4*s+3}], v{vXR[s%4]} offset:{off}", f"x{s}")
    BARS = opt.get("bars", [0, 1, 2, 3, 5, 7, 9, 11, 13, 15, 17, 19])
    PQ = opt.get("pq", 13)
    PZ = opt.get("pz", 15)
    L2P = {int(k): v for k, v in opt.get("l2p", {}).items()}
    window = []; pending = []
    def period_barrier(i):
        for c in window: a.vm.extend([f"c{c}", f"c{c}"])
        assert not pending, pending
        window.clear()
        nxt = min([b for b in BARS if b > i] + [20])
        a.vm_wait(f"c{nxt}")
        assert dma_next[0] > nxt, (i, nxt, dma_next[0])
        if i == 3: a.vm_wait("stat")
        if i == PQ: a.vm_wait("st")
        if i in opt.get("sb", []): sp.stamp("pre", lvl=2, nowait=True)
        e("s_barrier")
        if i in opt.get("sb", []): sp.stamp("post", lvl=2, nowait=True)
        if i == 3:
            e(f"v_and_b32 v{vK}, 31, v{vLane}")
            e(f"v_lshlrev_b32 v{vK}, 2, v{vK}")
            e(f"s_lshl_b32 s{sT1}, s{sTT}, 7")
            e(f"s_add_u32 s{sT1}, s{sT1}, s{sStat}")
            e(f"v_mov_b32 v{vFlag}, 0")
            a.vm_op(f"buffer_load_dword v{vK}, v{vK}, {S(rWS)}, s{sT1} offen sc1", "kld")
            a.vm_op(f"global_load_dword v{vFlag}, v{vFlag}, s[{pDBG}:{pDBG+1}] sc1", "kld")
        if i in L2P:
            for k in L2P[i]:
                sk = lab("pf")
                e(f"s_cmp_lg_u32 s{sW}, {k}")
                e(f"s_cbranch_scc1 {sk}")
                a.skip_begin()
                e(f"s_lshr_b32 s{sT1}, s2, 3")
                nl, ptr, nb = (56, pW2, W2_BYTES) if k < 7 else (98, pWO, WO_BYTES)
                if k < 7:
                    e(f"s_mul_i32 s{sT1}, s{sT1}, {7*56*128}")
                    e(f"s_add_u32 s{sT1}, s{sT1}, {k*56*128}")
                else:
                    e(f"s_mul_i32 s{sT1}, s{sT1}, {98*128}")
                e(f"v_min_u32 v{vDum+2}, {min(nl, 64) - 1 if k < 7 else 48}, v{vLane}")
                e(f"v_lshl_add_u32 v{vDum+2}, v{vDum+2}, 7, s{sT1}")
                e(f"global_load_dword v{vDum+1}, v{vDum+2}, s[{ptr}:{ptr+1}]")
                if k == 7:
                    e(f"v_add_u32 v{vDum+2}, {49*128}, v{vDum+2}")
                    e(f"global_load_dword v{vDum+1}, v{vDum+2}, s[{ptr}:{ptr+1}]")
                a.skip_end()
                a.label(sk)
        if i == PZ:
            e(f"v_lshrrev_b32 v{vV1}, 2, v{vSt}")
            e(f"v_add_u32 v{vV1}, {SYNC}, v{vV1}")
            e(f"v_mov_b32 v{vV2}, 0")
            a.ds_op(f"ds_write_b32 v{vV1}, v{vV2}", "z")
        if i == PQ and sigq[0]:
            sk = lab("q")
            e(f"s_cmp_lg_u32 s{sW}, 0")
            e(f"s_cbranch_scc1 {sk}")
            a.skip_begin()
            check_flag(vDum + 2)
            signal(sCOL, 0, vDum + 2, vDum + 3)
            a.skip_end()
            a.label(sk)
        while dma_next[0] <= 20:
            c = dma_next[0]
            if c < 10:
                sl = slot(c)
                if not all(xr_next[0] > s and a.ds_done(f"x{s}") for s in range(4*sl, 4*sl+4)): break
            elif c - 9 > i - 1: break
            window.append(c); dma_next[0] += 1
        nq = nxt - i
        per = -(-len(window) // nq)
        pending[:] = [window[k*per:(k+1)*per] for k in range(nq)]
    sigq = [False]
    XR = opt.get("xrate", 2)
    def kloop(r, extra, budget, hooks={}):
        extra = list(extra)
        if opt.get("x_noepi"): extra = [x for x in extra if x[1] == 0]
        gap = 0
        for s in range(28):
            G = r * 28 + s
            Gn = G + 2
            rd = wreads(Gn) if Gn < 84 else []
            a.ds_wait(f"w{G}")
            if r == 0: a.ds_wait(f"x{s}")
            ph = Gn % 4
            for t in range(NT[r]):
                d = ACC[r] + 16 * t
                w = WF + (G % 3) * 8 + t * 4
                c = "0" if s == 0 else f"v[{d}:{d+15}]"
                e(f"v_mfma_f32_32x32x16_bf16 v[{d}:{d+15}], v[{w}:{w+3}], v[{X0+4*s}:{X0+4*s+3}], {c}")
                gap += 1
                if t == 0 and Gn < 84 and ph == 0 and (Gn // 4 - 1) in BARS: period_barrier(Gn // 4 - 1)
                n = -(-len(rd) // (NT[r] - t))
                for f in rd[:n]: f()
                rd = rd[n:]
                if r == 0: xread((XR + 1 - t) // 2)
                left = budget
                if t == NT[r] - 1 and pending and pending[0] and ph % 2 == 0:
                    sk = lab("d")
                    e(f"s_cmp_lg_u32 s{sPh}, {ph}")
                    e(f"s_cbranch_scc1 {sk}")
                    a.skip_begin()
                    for c in pending[0]: dma(c, track=False)
                    a.skip_end()
                    a.label(sk)
                    left = opt.get("dmabud", 4)
                if t == NT[r] - 1 and s in hooks: hooks[s](); left = 0
                while extra and gap > 3 and extra[0][1] <= left:
                    f, cst = extra.pop(0); f(); left -= cst
            if ph == 3 and pending: pending.pop(0)
        return extra
    def I(t):
        op = t.split()[0]
        return (lambda: e(t), 8 if op.startswith(TRANS) else (2 if op.startswith("s_") else 4))
    def consts():
        def sel():
            e(f"s_cmp_lt_u32 s{sCOL}, 4")
            e(f"s_cselect_b32 s{sT1}, {hexf(28**-0.5*LOG2E)}, 1.0")
            e(f"v_mul_f32 v{vSc}, s{sT1}, v{vSc}")
        return [(lambda: a.vm_wait("kld"), 0), I(f"v_rsq_f32 v{vSc}, v{vK}"),
                I(f"v_mul_f32 v{vC1}, {hexf(-LOG2E)}, v{vSc}"), (sel, 8)]
    def silu4(Gt, U, t, p):
        L = []
        for k in range(4): L.append(I(f"v_mul_f32 v{t+k}, v{vC1}, v{Gt+k}"))
        for k in range(4):
            L.append(I(f"v_exp_f32 v{t+k}, v{t+k}"))
            L.append(I(f"v_mul_f32 v{Gt+k}, v{Gt+k}, v{U+k}"))
        for k in range(4): L.append(I(f"v_fma_f32 v{t+k}, v{t+k}, v{vK}, v{vK}"))
        for k in range(4): L.append(I(f"v_rcp_f32 v{t+k}, v{t+k}"))
        for k in range(4): L.append(I(f"v_mul_f32 v{Gt+k}, v{Gt+k}, v{t+k}"))
        for k in range(2): L.append(I(f"v_cvt_pk_bf16_f32 v{p+k}, v{Gt+2*k}, v{Gt+2*k+1}"))
        return L
    def store(r, soff, off):
        if opt.get("x_nost"): return (lambda: None, 8)
        return (lambda: a.vm_op(f"buffer_store_dwordx4 v[{r}:{r+3}], v{vSt}, {S(rWS)}, s{soff} offen offset:{off}{ST}", "st"), 8)
    def epiF(acc, soff):
        Gt, U = acc, acc + 16
        L = []
        for q in range(4):
            L += silu4(Gt + 4*q, U + 4*q, T0 + (q % 2) * 4, U + (q // 2) * 8 + (q % 2) * 2)
            if q % 2 == 1: L.append(store(U + (q // 2) * 8, soff, (q // 2) * 1024))
        return L
    def epiQKV(acc, isv):
        L = []
        P = T0 + 8
        for q in range(4):
            for k in range(4): L.append(I(f"v_mul_f32 v{acc+4*q+k}, v{vSc}, v{acc+4*q+k}"))
            for k in range(2): L.append(I(f"v_cvt_pk_bf16_f32 v{P+2*q+k}, v{acc+4*q+2*k}, v{acc+4*q+2*k+1}"))
            if q == 1 and not isv: L.append(store(P, sQKoff, 0))
        L.append(I(f"v_cndmask_b32 v{P+6}, v{vP6}, v{P+6}, vcc"))
        L.append(I(f"v_cndmask_b32 v{P+7}, v{vP7}, v{P+7}, vcc"))
        if not isv: L.append(store(P + 4, sQKoff, 1024))
        else:
            for q in range(4):
                if q: L.append(I(f"v_xor_b32 v{vV4}, {16*q}, v{vV1}"))
                L.append((lambda q=q: a.ds_op(f"ds_write_b64 v{vV4 if q else vV1}, v[{P+2*q}:{P+2*q+1}]", "vw"), 4))
            L += [(lambda: None, 8)] * 2
            L.append((lambda: a.ds_wait("vw"), 0))
            for q in range(4):
                L.append((lambda q=q: a.ds_op(f"ds_read_b64_tr_b16 v[{acc+2*q}:{acc+2*q+1}], v{vV3 if q % 2 else vV2} offset:{512*q}", "vr"), 4))
            L += [(lambda: None, 8)] * 2
            L.append((lambda: a.ds_wait("vr"), 0))
            L.append(store(acc, sQKoff, 0))
            L.append(store(acc + 4, sQKoff, 1024))
        L.append(I(f"s_add_u32 s{sQKoff}, s{sQKoff}, {64*2048}"))
        return L
    B1, B2 = opt.get("b1", 12), opt.get("b2", 12)
    xread(4)
    for f in wreads(0) + wreads(1): f()
    if opt.get("wpf", 1) == 2:
        e(f"s_cmp_ge_u32 s{sW}, 4")
        e(f"s_cbranch_scc1 L_wp")
        a.skip_begin(); wpf(); a.skip_end()
        a.label("L_wp")
    a.vm_op(f"buffer_store_dword v{T0}, v{vStat}, {S(rWS)}, s{sStat} offen", "stat")
    a.vm_op(f"buffer_store_dword v{T0+1}, v{T0+2}, {S(rWS)}, s{sStat} offen", "stat")
    assert not kloop(0, deferred(), 16)
    sp.stamp("r0")
    e(f"s_cmp_lt_u32 s{sCOL}, 8")
    e(f"s_cbranch_scc1 L_pqk")
    e(f"s_cmp_lt_u32 s{sCOL}, 12")
    e(f"s_cbranch_scc1 L_pv")
    saved = (list(a.vm), list(a.lg), list(tw_state), dma_next[0], list(a.hist), list(window), [list(p) for p in pending], sp.n)
    ends = []
    for nm, ex in (("f", lambda: epiF(AA, sQKoff)), ("L_pqk", lambda: epiQKV(AA, False) + epiQKV(AA + 16, False)),
                   ("L_pv", lambda: epiQKV(AA, True) + epiQKV(AA + 16, True))):
        if nm != "f": a.label(nm)
        a.vm, a.lg = list(saved[0]), list(saved[1]); tw_state[:] = saved[2]; dma_next[0] = saved[3]; a.hist = list(saved[4])
        window[:] = saved[5]; pending[:] = [list(p) for p in saved[6]]; sp.set(saved[7])
        sigq[0] = nm != "f"
        nst0 = [0]
        exl = consts() + ex()
        if nm != "f":
            exl.append((lambda: nst0.__setitem__(0, 1), 0))
            _pb = period_barrier
        rest = kloop(1, exl, {"f": B1, "L_pqk": opt.get("b1q", 12), "L_pv": opt.get("b1v", 16)}[nm], hooks={(PQ + 1) * 4 - 2 - 28 - 1: (lambda: None) if nm == "f" else (lambda: (_ for _ in ()).throw(AssertionError("qkv epilogue too late")) if not nst0[0] else None)})
        for f, c in rest: f()
        ends.append(([t for t in a.vm if t != "st"], list(a.lg), list(tw_state), dma_next[0], list(window), [list(p) for p in pending]))
        if nm != "L_pv": e("s_branch L_r2")
    assert ends[0][1:] == ends[1][1:] == ends[2][1:], ends
    a.vm = min((x[0] for x in ends), key=len)
    assert all(x[0][len(x[0])-len(a.vm):] == a.vm for x in ends)
    a.label("L_r2")
    e("s_nop 1")
    sp.stamp("r1")
    K0, Q, KV, O, Sx, P, T = 16, 24, 56, 128, 192, 224, 240
    ATT_LDS, WO_LDS = 49152, 98304
    sX, sJ = 54, 55
    sHead, sQB, sKV, sRun = 62, 63, 64, 58
    sWq, sTB, sCB, sWo, sLB = 62, 63, 64, 58, 66
    vD, vPoll, vStV = vD0, vDum + 4, vD0
    rW = rA
    rK, rV = rA, rB
    def early1():
        e(f"s_and_b32 s{sX}, s2, 7")
        e(f"s_lshr_b32 s{sJ}, s2, 3")
        e(f"s_lshl_b32 s{sHead}, s{sX}, 1")
        e(f"s_and_b32 s{sT1}, s{sJ}, 1")
        e(f"s_add_u32 s{sHead}, s{sHead}, s{sT1}")
        e(f"v_min_u32 v{vPoll}, 2, v{vLane}")
        e(f"v_lshlrev_b32 v{vPoll}, 9, v{vPoll}")
        e(f"s_lshr_b32 s{sT1}, s{sHead}, 2")
        e(f"s_lshl_b32 s{sT1}, s{sT1}, 7")
        e(f"v_add_u32 v{vPoll}, s{sT1}, v{vPoll}")
        check_flag(vDum + 2)
        e(f"s_mov_b32 s{sT3}, {CNT_OFF}")
        a.vm_op(f"buffer_load_dword v{vDum+3}, v{vPoll}, {S(rWS)}, s{sT3} offen sc1", "poll")
    NE = opt.get("ne", 1)
    def kvload(i):
        for k in range(4):
            r = KV + 16 * i + 4 * k
            e(f"buffer_load_dwordx4 v[{r}:{r+3}], v{vSt}, {S(rK if k < 2 else rV)}, s{sRun} offen offset:{1024*(k%2)}{LD}")
        e(f"s_add_u32 s{sRun}, s{sRun}, 2048")
        e(f"s_and_b32 s{sRun}, s{sRun}, 0x1ffff")
    def early2():
        a.vm_wait("poll")
        e(f"s_cmp_ge_u32 s{sW}, 4")
        e(f"s_cbranch_scc1 L_e2j")
        a.skip_begin()
        e(f"v_cmp_gt_u32 s[74:75], 16, v{vDum+3}")
        e(f"s_cmp_eq_u64 s[74:75], 0")
        e(f"s_cbranch_scc1 L_e2ok")
        sv = list(a.vm)
        poll(vPoll, vDum + 3, 16, 1)
        a.vm = sv
        a.label("L_e2ok")
        e(f"s_lshr_b32 s{sQB}, s{sJ}, 1")
        e(f"s_lshl_b32 s{sKV}, s{sHead}, 17")
        e(f"s_add_u32 s{sKV}, s{sKV}, {KV_OFF}")
        e(f"s_lshl_b32 s{sT1}, s{sHead}, 6")
        e(f"s_lshl2_add_u32 s{sT1}, s{sQB}, s{sT1}")
        e(f"s_add_u32 s{sT1}, s{sT1}, s{sW}")
        e(f"s_lshl_b32 s{sT1}, s{sT1}, 11")
        e(f"buffer_load_dwordx4 v[{Q}:{Q+3}], v{vSt}, {S(rWS)}, s{sT1} offen{LD}")
        e(f"buffer_load_dwordx4 v[{Q+4}:{Q+7}], v{vSt}, {S(rWS)}, s{sT1} offen offset:1024{LD}")
        e(f"s_and_b32 s{sT1}, s{sQB}, {7 if opt.get('rot', 0) else 0}")
        e(f"s_lshl3_add_u32 s{sT1}, s{sW}, s{sT1}")
        e(f"s_lshl1_add_u32 s{sT1}, s{sT1}, 1")
        e(f"s_lshl_b32 s{sRun}, s{sT1}, 11")
        e(f"s_add_u32 s{rK}, s{pWS}, s{sKV}")
        e(f"s_addc_u32 s{rK+1}, s{pWS+1}, 0")
        e(f"s_mov_b32 s{rK+2}, 0x20000")
        e(f"s_mov_b32 s{rK+3}, 0x20000")
        e(f"s_add_u32 s{rV}, s{rK}, {2 << 20}")
        e(f"s_addc_u32 s{rV+1}, s{rK+1}, 0")
        e(f"s_mov_b32 s{rV+2}, 0x20000")
        e(f"s_mov_b32 s{rV+3}, 0x20000")
        for i in range(NE): kvload(i)
        a.skip_end()
        a.label("L_e2j")
        a.vm_mark("early")
    rest = kloop(2, epiF(AB, sHoff), B2, hooks={opt.get("e1", 19): early1, opt.get("e2", 24): early2})
    e("s_barrier")
    sp.stamp("r2")
    for f, c in rest: f()
    for q in range(2):
        for f, c in silu4(AA + 4*q, AA + 8 + 4*q, T0 + 4*q, T0 + 8 + 2*q): f()
    store(T0 + 8, sHoff2, 0)[0]()
    e(f"s_cmp_ge_u32 s{sW}, 4")
    e(f"s_cbranch_scc1 L_gemm")
    nst = sp.n
    sFlag, sIt, sOoff = 59, 60, 61
    for i in range(NE, 3):
        kvload(i); a.vm += [f"kv{i}"] * 4
    assert NE >= 1
    a.vm_wait("early")
    e(f"v_mfma_f32_32x32x16_bf16 v[{Sx}:{Sx+15}], v[{KV}:{KV+3}], v[{Q}:{Q+3}], 0")
    e(f"v_mfma_f32_32x32x16_bf16 v[{Sx}:{Sx+15}], v[{KV+4}:{KV+7}], v[{Q+4}:{Q+7}], v[{Sx}:{Sx+15}]")
    for r in range(16): e(f"v_mov_b32 v{O+r}, 0")
    e(f"s_lshl_b32 s{sT1}, s{sW}, 11")
    e(f"s_add_u32 s{sT1}, s{sT1}, {ATT_LDS}")
    e(f"v_add_u32 v{T+2}, s{sT1}, v{vSt}")
    sp.stamp("qkv")
    M = T + 8
    def patch(jjs, bias):
        U = M + 4
        for jj in jjs: e(f"v_mov_b32 v{U+jj}, v{M+jj}")
        for jj in jjs: e(f"v_permlane32_swap_b32 v{M+jj}, v{U+jj}")
        for jj in jjs: e(f"v_max_f32 v{M+jj}, v{M+jj}, v{U+jj}")
        for jj in jjs: e(f"v_sub_f32 v{M+jj}, {hexf(-bias) if bias else 0}, v{M+jj}")
        for jj in jjs: e(f"v_cvt_pk_bf16_f32 v{U+jj}, v{M+jj}, v{M+jj}")
        for jj in jjs: e(f"v_and_b32 v{U+jj}, 0xffff0000, v{U+jj}")
        for jj in jjs: e(f"v_sub_f32 v{U+jj}, v{M+jj}, v{U+jj}")
        for jj in jjs: e(f"v_cvt_pk_bf16_f32 v{M+jj}, v{M+jj}, v{U+jj}")
        for jj in jjs: e(f"v_cndmask_b32 v{Q+8*jj+6}, v{M+jj}, v{Q+8*jj+6}, vcc")
        for jj in jjs: e(f"v_and_b32 v{M+jj}, 0xffff0000, v{M+jj}")
        for jj in jjs: e(f"v_sub_f32 v{U+jj}, v{U+jj}, v{M+jj}")
        for jj in jjs: e(f"v_cvt_pk_bf16_f32 v{U+jj}, v{U+jj}, 0")
        for jj in jjs: e(f"v_cndmask_b32 v{Q+8*jj+7}, v{U+jj}, v{Q+8*jj+7}, vcc")
    for k in range(4): e(f"v_max3_f32 v{M+4+k}, v{Sx+4*k}, v{Sx+4*k+1}, v{Sx+4*k+2}")
    for k in range(2): e(f"v_max3_f32 v{M+4+2*k}, v{M+4+2*k}, v{M+5+2*k}, v{Sx+8*k+3}")
    e(f"v_max3_f32 v{M}, v{Sx+7}, v{Sx+15}, v{M+4}")
    e(f"v_max_f32 v{M}, v{M}, v{M+6}")
    patch([0], BIAS)
    a.ds_op(f"ds_write_b128 v{T+2}, v[{Q}:{Q+3}]")
    a.ds_op(f"ds_write_b128 v{T+2}, v[{Q+4}:{Q+7}] offset:1024")
    for r in range(16, 40): e(f"v_mov_b32 v{O+r}, 0")
    lds_sync(1, 4, T, T + 1)
    for jj in range(1, 4):
        e(f"s_add_u32 s{sT1}, s{sW}, {jj}")
        e(f"s_and_b32 s{sT1}, s{sT1}, 3")
        e(f"s_lshl_b32 s{sT1}, s{sT1}, 11")
        e(f"s_add_u32 s{sT1}, s{sT1}, {ATT_LDS}")
        e(f"v_add_u32 v{T+2}, s{sT1}, v{vSt}")
        a.ds_op(f"ds_read_b128 v[{Q+8*jj}:{Q+8*jj+3}], v{T+2}")
        a.ds_op(f"ds_read_b128 v[{Q+8*jj+4}:{Q+8*jj+7}], v{T+2} offset:1024")
    for r in range(40, 64): e(f"v_mov_b32 v{O+r}, 0")
    for r in range(8): e(f"v_mov_b32 v{P+8+r}, 0")
    for r in range(8): e(f"v_mov_b32 v{KV+48+8+r}, 0")
    e(f"s_mov_b32 s{sFlag}, 0")
    e(f"s_lshl2_add_u32 s{sOoff}, s{sQB}, s{sW}")
    e(f"s_lshl4_add_u32 s{sOoff}, s{sOoff}, s{sHead}")
    e(f"s_lshl_b32 s{sOoff}, s{sOoff}, 11")
    e(f"s_add_u32 s{sOoff}, s{sOoff}, {O_OFF}")
    a.ds_wait_all()
    lds_arrive(2, T, T + 1)
    a.vm_wait("st")
    last_signals(0, 8, sRB, 12, T, T + 1)
    e(f"s_setprio {opt.get('attprio', 1)}")
    def qk(n, half):
        i, j = (n // 4) % 4, n % 4
        d = Sx + 16 * (n % 2); k = KV + 16 * i + 4 * half; q = Q + 8 * j + 4 * half
        c = "0" if half == 0 else f"v[{d}:{d+15}]"
        e(f"v_mfma_f32_32x32x16_bf16 v[{d}:{d+15}], v[{k}:{k+3}], v[{q}:{q+3}], {c}")
    def pv(n, half):
        i, j = (n // 4) % 4, n % 4
        d = O + 16 * j; v = KV + 16 * i + 8 + 4 * half; p = P + 8 * (n % 2) + 4 * half
        e(f"v_mfma_f32_32x32x16_bf16 v[{d}:{d+15}], v[{v}:{v+3}], v[{p}:{p+3}], v[{d}:{d+15}]")
    def sm(n, g):
        s = Sx + 16 * (n % 2) + 4 * g; p = P + 8 * (n % 2) + 2 * g
        for k in range(4): e(f"v_exp_f32 v{s+k}, v{s+k}")
        e(f"v_cvt_pk_bf16_f32 v{p}, v{s}, v{s+1}")
        e(f"v_cvt_pk_bf16_f32 v{p+1}, v{s+2}, v{s+3}")
    a.vm_wait("kv0")
    sp.stamp("preloop")
    qk(0, 0); qk(0, 1)
    e(f"s_mov_b32 s{sIt}, 3")
    e("s_nop 7")
    a.raw(".p2align 6")
    a.label("L_loop")
    start = len(a.lines)
    for n in range(16, 32):
        i, j = (n // 4) % 4, n % 4
        if j == 3: e("s_waitcnt vmcnt(8)")
        qk(n + 1, 0); sm(n, 0)
        qk(n + 1, 1); sm(n, 1)
        pv(n - 1, 0); sm(n, 2)
        pv(n - 1, 1)
        if j == 0:
            for k in range(0 if opt.get("x_nokv") else 4):
                r = KV + 16 * ((i + 3) % 4) + 4 * k
                e(f"buffer_load_dwordx4 v[{r}:{r+3}], v{vSt}, {S(rK if k < 2 else rV)}, s{sRun} offen offset:{2048*(i%2) + 1024*(k%2)}{LD}")
            if i % 2:
                e(f"s_add_u32 s{sRun}, s{sRun}, 4096")
                e(f"s_and_b32 s{sRun}, s{sRun}, 0x1ffff")
            if i == 0:
                e(f"s_cmp_eq_u32 s{sIt}, 0")
                e(f"s_cselect_b32 s{rK+2}, 0, s{rK+2}")
                e(f"s_cselect_b32 s{rV+2}, 0, s{rV+2}")
        sm(n, 3)
    e(f"s_sub_u32 s{sIt}, s{sIt}, 1")
    e("s_cbranch_scc0 L_loop")
    check_loop(a.lines[start:])
    lds_wait(2, 4, T + 4, T + 5, lambda: (pv(31, 0), pv(31, 1)))
    sp.stamp("loop")
    a.vm = []
    for jj in range(1, 4):
        e(f"s_add_u32 s{sT1}, s{sW}, {jj}")
        e(f"s_and_b32 s{sT1}, s{sT1}, 3")
        e(f"s_mul_i32 s{sT1}, s{sT1}, 12288")
        e(f"s_add_u32 s{sT1}, s{sT1}, {ATT_LDS}")
        e(f"v_add_u32 v{T+jj}, s{sT1}, v{vSt}")
        for q in range(4):
            r = O + 16 * jj + 4 * q
            a.ds_op(f"ds_write_b128 v{T+jj}, v[{r}:{r+3}] offset:{(jj-1)*4096 + q*1024}")
    e(f"s_mul_i32 s{sT1}, s{sW}, 12288")
    e(f"s_add_u32 s{sT1}, s{sT1}, {ATT_LDS}")
    e(f"v_add_u32 v{T}, s{sT1}, v{vSt}")
    lds_sync(7, 4, T + 4, T + 5)
    for p in range(3):
        for q in range(4):
            r = O + 16 + 16 * p + 4 * q
            a.ds_op(f"ds_read_b128 v[{r}:{r+3}], v{T} offset:{p*4096 + q*1024}", f"p{p}")
    for p in range(3):
        a.ds_wait(f"p{p}")
        for k in range(16): e(f"v_add_f32 v{O+k}, v{O+k}, v{O+16+16*p+k}")
    a.label("L_norm")
    e(f"v_mov_b32 v{T}, v{O+12}")
    e(f"v_mov_b32 v{T+1}, v{O+12}")
    e(f"v_permlane32_swap_b32 v{T}, v{T+1}")
    e(f"v_rcp_f32 v{T}, v{T+1}")
    e(f"v_mov_b32 v{T+2}, 0")
    for k in range(16): e(f"v_mul_f32 v{O+k}, v{O+k}, v{T}")
    for k in range(8): e(f"v_cvt_pk_bf16_f32 v{P+k}, v{O+2*k}, v{O+2*k+1}")
    e(f"v_cndmask_b32 v{P+6}, 0, v{P+6}, vcc")
    e(f"v_cndmask_b32 v{P+7}, 0, v{P+7}, vcc")
    e(f"buffer_store_dwordx4 v[{P}:{P+3}], v{vSt}, {S(rWS)}, s{sOoff} offen{ST}")
    e(f"buffer_store_dwordx4 v[{P+4}:{P+7}], v{vSt}, {S(rWS)}, s{sOoff} offen offset:1024{ST}")
    for k in range(16): e(f"v_fmac_f32 v{T+2}, 0, v{O+k}")
    e(f"v_mov_b32 v{T+3}, {hexf(2.0**-(BIAS+8))}")
    e(f"v_cmp_u_f32 s[66:67], v{T+2}, v{T+2}")
    e(f"v_cmp_lt_f32 s[74:75], v{T+1}, v{T+3}")
    e(f"s_or_b64 s[66:67], s[66:67], s[74:75]")
    e(f"s_cmp_eq_u64 s[66:67], 0")
    e(f"s_cselect_b32 s{sT1}, 1, s{sFlag}")
    e(f"s_cmp_eq_u32 s{sT1}, 0")
    e(f"s_cbranch_scc1 L_slow")
    e(f"s_waitcnt vmcnt(0)")
    sp.stamp("ost")
    e(f"s_lshl2_add_u32 s{sT2}, s{sQB}, s{sW}")
    signal(sT2, 28, T + 4, T + 5)
    lds_arrive(9, T + 6, T + 7)
    hdiag(0)
    sp.dump(pWS, sW)
    e("s_endpgm")
    a.label("L_slow")
    a.reset_hist()
    e(f"s_waitcnt vmcnt(0)")
    e(f"s_mov_b32 s{sFlag}, 1")
    e(f"s_mov_b32 s{rK+2}, 0x20000")
    e(f"s_mov_b32 s{rV+2}, 0x20000")
    e(f"v_cndmask_b32 v{Q+6}, 0, v{Q+6}, vcc")
    e(f"v_cndmask_b32 v{Q+7}, 0, v{Q+7}, vcc")
    e(f"v_mov_b32 v{M}, 0xff800000")
    e(f"s_mov_b32 s{sRun}, 0")
    e(f"s_mov_b32 s{sIt}, 64")
    a.label("L_s1")
    start = len(a.lines)
    e(f"buffer_load_dwordx4 v[{KV}:{KV+3}], v{vSt}, {S(rK)}, s{sRun} offen{LD}")
    e(f"buffer_load_dwordx4 v[{KV+4}:{KV+7}], v{vSt}, {S(rK)}, s{sRun} offen offset:1024{LD}")
    e("s_waitcnt vmcnt(0)")
    e(f"v_mfma_f32_32x32x16_bf16 v[{Sx}:{Sx+15}], v[{KV}:{KV+3}], v[{Q}:{Q+3}], 0")
    e(f"v_mfma_f32_32x32x16_bf16 v[{Sx}:{Sx+15}], v[{KV+4}:{KV+7}], v[{Q+4}:{Q+7}], v[{Sx}:{Sx+15}]")
    for k in range(8): e(f"v_max3_f32 v{M}, v{M}, v{Sx+2*k}, v{Sx+2*k+1}")
    e(f"s_add_u32 s{sRun}, s{sRun}, 2048")
    e(f"s_sub_u32 s{sIt}, s{sIt}, 1")
    e(f"s_cmp_lg_u32 s{sIt}, 0")
    e("s_cbranch_scc1 L_s1")
    check_loop(a.lines[start:])
    patch([0], 0.0)
    for r in range(16): e(f"v_mov_b32 v{O+r}, 0")
    e(f"s_mov_b32 s{sRun}, 0")
    e(f"s_mov_b32 s{sIt}, 64")
    a.label("L_s2")
    start = len(a.lines)
    for k in range(4):
        e(f"buffer_load_dwordx4 v[{KV+4*k}:{KV+4*k+3}], v{vSt}, {S(rK if k < 2 else rV)}, s{sRun} offen offset:{1024*(k%2)}{LD}")
    e("s_waitcnt vmcnt(0)")
    qk(0, 0); qk(0, 1)
    for g in range(4): sm(0, g)
    pv(0, 0); pv(0, 1)
    e(f"s_add_u32 s{sRun}, s{sRun}, 2048")
    e(f"s_sub_u32 s{sIt}, s{sIt}, 1")
    e(f"s_cmp_lg_u32 s{sIt}, 0")
    e("s_nop 11")
    e("s_cbranch_scc1 L_s2")
    check_loop(a.lines[start:])
    e("s_branch L_norm")
    a.label("L_gemm")
    a.reset_hist(); a.vm = []; a.lg = []; sp.set(nst)
    ACCG, HR, WFR, T, WO_F, XF, GF = 16, 80, 136, 152, 160, 224, 136
    OF = HR
    GF = 240
    vA0, vA1, vIO, vCt = 4, 5, 6, 7
    sH0, sH1, sI0 = 59, 60, 61
    DP = opt.get("gdepth", 5)
    PACE = opt.get("pace", 4)
    def pace():
        nonlocal PACE
        if PACE and len(a.vm) > PACE:
            e(f"s_waitcnt vmcnt({PACE})"); a.vm = a.vm[-PACE:]
    e(f"s_setprio 2")
    e(f"s_waitcnt vmcnt(0)")
    last_signals(0, 8, sRB, 12, T, T + 1)
    e(f"s_cmp_ge_u32 s{sJ}, 28")
    e(f"s_cbranch_scc1 L_end")
    e(f"s_setprio {opt.get('gprio0', 2)}")
    srd(a, rW, pWO, WO_BYTES)
    e(f"s_sub_u32 s{sWq}, s{sW}, 4")
    e(f"s_mul_i32 s{sT1}, s{sJ}, 37")
    e(f"s_lshr_b32 s{sT1}, s{sT1}, 8")
    e(f"s_mul_i32 s{sT2}, s{sT1}, 7")
    e(f"s_sub_u32 s{sCB}, s{sJ}, s{sT2}")
    e(f"s_lshl2_add_u32 s{sTB}, s{sX}, s{sT1}")
    e(f"s_lshl_b32 s{sCB}, s{sCB}, 7")
    e(f"s_mul_i32 s{sLB}, s{sWq}, 12288")
    dma_voff(a, vLane, vD, T, T + 1)
    e(f"v_and_b32 v{T}, 31, v{vLane}")
    e(f"v_mul_u32_u24 v{T}, 896, v{T}")
    e(f"v_lshrrev_b32 v{T+1}, 5, v{vLane}")
    e(f"v_lshl_add_u32 v{vIO}, v{T+1}, 3, v{T}")
    e(f"s_and_b32 s{sT1}, s{sWq}, 1")
    e(f"s_lshl1_add_u32 s{sT3}, s{sTB}, s{sT1}")
    e(f"s_mul_i32 s{sI0}, s{sT3}, {32*896}")
    e(f"s_add_u32 s{sI0}, s{sI0}, s{sCB}")
    e(f"s_lshr_b32 s{sT2}, s{sWq}, 1")
    e(f"s_lshl_b32 s{sT2}, s{sT2}, 6")
    e(f"s_add_u32 s{sI0}, s{sI0}, s{sT2}")
    def issue_w(s):
        st = s % 6
        e(f"s_add_u32 m0, s{sLB}, {st*2048}")
        e(f"s_add_u32 s{sT1}, s{sWo}, {8*896}")
        a.vm_op(f"buffer_load_dwordx4 v{vD}, {S(rB)}, s{sWo} offen lds", f"s{s}")
        e(f"s_add_u32 m0, s{sLB}, {st*2048+1024}")
        e(f"s_add_u32 s{sWo}, s{sWo}, {16*896}")
        a.vm_op(f"buffer_load_dwordx4 v{vD}, {S(rB)}, s{sT1} offen lds", f"s{s}")
    srd(a, rB, pW2, W2_BYTES)
    e(f"s_mul_i32 s{sWo}, s{sWq}, {448*896}")
    e(f"s_add_u32 s{sWo}, s{sWo}, s{sCB}")
    for s in range(6): issue_w(s); pace()
    e(f"s_mul_i32 s{sH0}, s{sT3}, 112")
    e(f"s_xor_b32 s{sT3}, s{sT3}, 1")
    e(f"s_mul_i32 s{sH1}, s{sT3}, 112")
    e(f"s_mul_i32 s{sT1}, s{sWq}, 28")
    e(f"s_add_u32 s{sT1}, s{sT1}, {H_OFF >> 10}")
    e(f"s_add_u32 s{sH0}, s{sH0}, s{sT1}")
    e(f"s_add_u32 s{sH1}, s{sH1}, s{sT1}")
    e(f"s_lshl_b32 s{sH0}, s{sH0}, 10")
    e(f"s_lshl_b32 s{sH1}, s{sH1}, 10")
    e(f"s_xor_b32 s{sT2}, s{sT2}, s{sLB}")
    tr_addr(a, vLane, vA0, vA1, T, T + 1, T + 2, sT2, xor=True)
    def wr(s, d0, off, wait=True):
        if wait: a.vm_wait(f"s{s}")
        for ct in range(2):
            d = d0 + ct * 4
            ad = vA0 if ct == 0 else vA1
            a.ds_op(f"ds_read_b64_tr_b16 v[{d}:{d+1}], v{ad} offset:{off}", f"w{s}")
            a.ds_op(f"ds_read_b64_tr_b16 v[{d+2}:{d+3}], v{ad} offset:{off+1024}", f"w{s}")
    e(f"s_lshr_b32 s{sT1}, s{sTB}, 1")
    e(f"s_lshl_b32 s{sT1}, s{sT1}, 7")
    e(f"s_add_u32 s{sT1}, s{sT1}, {12*128}")
    e(f"v_mov_b32 v{vCt}, s{sT1}")
    def issue_h(s):
        st = s % 6
        off = (s % 4) * 1024
        a.vm_op(f"buffer_load_dwordx4 v[{HR+8*st}:{HR+8*st+3}], v{vSt}, {S(rWS)}, s{sH0} offen offset:{off}{LD}", f"s{s}")
        a.vm_op(f"buffer_load_dwordx4 v[{HR+8*st+4}:{HR+8*st+7}], v{vSt}, {S(rWS)}, s{sH1} offen offset:{off}{LD}", f"s{s}")
        if s % 4 == 3:
            e(f"s_add_u32 s{sH0}, s{sH0}, 4096")
            e(f"s_add_u32 s{sH1}, s{sH1}, 4096")
    e(f"s_cmp_lg_u32 s{sWq}, 0")
    e(f"s_cbranch_scc1 L_hw")
    poll(vCt, T + 1, 16, opt.get("hsleep", 12))
    lds_arrive(8, T, T + 1)
    a.label("L_hw")
    lds_spin(8, 1, T, T + 1, 3)
    e(f"s_waitcnt vmcnt(0)")
    sp.stamp("hrdy")
    for s in range(DP): issue_h(s)
    e(f"s_setprio {opt.get('gprio', 0)}")
    def mm(s, w, h):
        for ct in range(2):
            for tt in range(2):
                d = ACCG + (2*ct+tt) * 16
                c = "0" if s == 0 else f"v[{d}:{d+15}]"
                e(f"v_mfma_f32_32x32x16_bf16 v[{d}:{d+15}], v[{w+4*ct}:{w+4*ct+3}], v[{h+4*tt}:{h+4*tt+3}], {c}")
    wr(0, WFR, 0)
    TOP = opt.get("gtop", 0)
    for s in range(28):
        if TOP and s > 0:
            if s + 1 < 28: a.vm_wait(f"s{s+1}")
            if 6 <= s + DP - 1 < 28: issue_w(s + DP - 1)
            if s + DP - 1 < 28: issue_h(s + DP - 1)
        if s + 1 < 28: wr(s + 1, WFR + ((s + 1) % 2) * 8, ((s + 1) % 6) * 2048)
        a.ds_wait(f"w{s}")
        if not opt.get("x_nogm") or s == 0: mm(s, WFR + (s % 2) * 8, HR + 8 * (s % 6))
        if opt.get("x_nogl") or TOP: continue
        if 6 <= s + DP < 28: issue_w(s + DP)
        if s + DP < 28: issue_h(s + DP)
    sp.stamp("w2")
    e(f"s_setprio {opt.get('gprio2', 2)}")
    e(f"s_mul_i32 s{sH0}, s{sWq}, 15360")
    PACE = opt.get("pace2", 6)
    e(f"s_mul_i32 s{sWo}, s{sWq}, {112*896}")
    e(f"s_add_u32 s{sWo}, s{sWo}, s{sCB}")
    for i in range(15):
        e(f"s_add_u32 m0, s{sH0}, {WO_LDS + i*1024}")
        if i: e(f"s_add_u32 s{sWo}, s{sWo}, {8*896}")
        a.vm_op(f"buffer_load_dwordx4 v{vD}, {S(rW)}, s{sWo} offen lds", "wo")
        pace()
    XG = HR
    for q in range(4):
        a.vm_op(f"buffer_load_dwordx2 v[{XG+2*q}:{XG+2*q+1}], v{vIO}, {S(rX)}, s{sI0} offen offset:{16*q}", "xg")
        pace()
    e(f"s_setprio {opt.get('gprio3', 0)}")
    def exchange(k):
        for sl in range(1, 4):
            x = (sl >> 1) * 2 + (sl & 1)
            e(f"s_xor_b32 s{sT1}, s{sWq}, {((sl >> 1) << 1) | (sl & 1)}")
            e(f"s_mul_i32 s{sT1}, s{sT1}, 12288")
            e(f"v_add_u32 v{T+sl}, s{sT1}, v{vSt}")
            for q in range(4):
                r = ACCG + 16 * sl + 4 * q
                a.ds_op(f"ds_write_b128 v{T+sl}, v[{r}:{r+3}] offset:{(sl-1)*4096 + q*1024}")
        e(f"v_add_u32 v{T}, s{sLB}, v{vSt}")
        lds_sync(k, 4, T + 1, T + 2)
        for p in range(3):
            for q in range(4):
                r = ACCG + 16 + 16 * p + 4 * q
                a.ds_op(f"ds_read_b128 v[{r}:{r+3}], v{T} offset:{p*4096 + q*1024}", f"p{p}")
        for p in range(3):
            a.ds_wait(f"p{p}")
            for kk in range(16): e(f"v_add_f32 v{ACCG+kk}, v{ACCG+kk}, v{ACCG+16+16*p+kk}")
    lds_sync(3, 4, T + 1, T + 2)
    exchange(4)
    U = ACCG + 16
    for k in range(16): e(f"v_mul_f32 v{U+k}, {hexf(-LOG2E)}, v{ACCG+k}")
    for k in range(16): e(f"v_exp_f32 v{U+k}, v{U+k}")
    for k in range(16): e(f"v_add_f32 v{U+k}, 1.0, v{U+k}")
    for k in range(16): e(f"v_rcp_f32 v{U+k}, v{U+k}")
    for k in range(16): e(f"v_mul_f32 v{GF+k}, v{ACCG+k}, v{U+k}")
    e(f"s_mul_i32 s{sT2}, s{sWq}, 15360 - 12288")
    e(f"s_add_u32 s{sT2}, s{sT2}, {WO_LDS}")
    e(f"v_add_u32 v{vA0}, s{sT2}, v{vA0}")
    e(f"v_add_u32 v{vA1}, s{sT2}, v{vA1}")
    a.vm_wait("xg")
    for s in range(8):
        wr(100 + s, WO_F + 8 * s, (28 * (s // 2) + 16 * (s % 2)) * 128, wait=False)
    for k in range(8):
        e(f"v_lshlrev_b32 v{XF+2*k}, 16, v{XG+k}")
        e(f"v_and_b32 v{XF+2*k+1}, 0xffff0000, v{XG+k}")
    a.ds_wait_all()
    lds_sync(5, 4, T + 1, T + 2)
    srd(a, rW3, pOUT, X_BYTES)
    e(f"s_and_b32 s{sT1}, s{sWq}, 1")
    e(f"s_lshl1_add_u32 s{sT1}, s{sTB}, s{sT1}")
    e(f"s_lshl_b32 s{sH0}, s{sT1}, 15")
    e(f"s_lshl_b32 s{sT1}, s{sWq}, 13")
    e(f"s_add_u32 s{sH0}, s{sH0}, s{sT1}")
    e(f"s_add_u32 s{sH0}, s{sH0}, {O_OFF}")
    e(f"s_xor_b32 s{sH1}, s{sH0}, 32768")
    e(f"v_min_u32 v{T}, 1, v{vLane}")
    e(f"s_lshl1_add_u32 s{sT1}, s{sTB}, 28")
    e(f"v_add_lshl_u32 v{vCt}, v{T}, s{sT1}, 7")
    e(f"v_lshrrev_b32 v{T}, 5, v{vLane}")
    e(f"v_lshl_add_u32 v{vIO}, v{T}, 3, v{vIO}")
    sp.stamp("grdy")
    lds_spin(9, 4, T, T + 1, 3)
    e(f"s_setprio 2")
    poll(vCt, T + 1, 16, opt.get("osleep", 1))
    sp.stamp("ordy")
    for s in range(8):
        if s == 4:
            e(f"s_add_u32 s{sH0}, s{sH0}, 4096")
            e(f"s_add_u32 s{sH1}, s{sH1}, 4096")
        a.vm_op(f"buffer_load_dwordx4 v[{OF+8*s}:{OF+8*s+3}], v{vSt}, {S(rWS)}, s{sH0} offen offset:{(s%4)*1024}{LD}", f"o{s}")
        a.vm_op(f"buffer_load_dwordx4 v[{OF+8*s+4}:{OF+8*s+7}], v{vSt}, {S(rWS)}, s{sH1} offen offset:{(s%4)*1024}{LD}", f"o{s}")
    for s in range(8):
        a.vm_wait(f"o{s}")
        mm(s, WO_F + 8 * s, OF + 8 * s)
    exchange(6)
    for k in range(16): e(f"v_fma_f32 v{ACCG+k}, v{ACCG+k}, v{GF+k}, v{XF+k}")
    for k in range(8): e(f"v_cvt_pk_bf16_f32 v{U+k}, v{ACCG+2*k}, v{ACCG+2*k+1}")
    for pr in range(2):
        e(f"v_permlane32_swap_b32 v{U+4*pr}, v{U+4*pr+2}")
        e(f"v_permlane32_swap_b32 v{U+4*pr+1}, v{U+4*pr+3}")
    e(f"buffer_store_dwordx4 v[{U}:{U+3}], v{vIO}, {S(rW3)}, s{sI0} offen{opt.get('ost', '')}")
    e(f"buffer_store_dwordx4 v[{U+4}:{U+7}], v{vIO}, {S(rW3)}, s{sI0} offen offset:32{opt.get('ost', '')}")
    hdiag(1)
    sp.stamp("end")
    sp.dump(pWS, sW)
    a.label("L_end")
    e("s_endpgm")
    return kd(NAME, 256)

if __name__ == "__main__":
    opt = json.loads(sys.argv[2]) if len(sys.argv) > 2 else {}
    a = Asm()
    a.raw("; one workgroup per CU; workgroups hand data over through d_ws (write-through stores + counters)")
    a.raw("; @launch grid=(256,1,1) block=(512,1,1) lds=163840")
    a.raw('.amdgcn_target "amdgcn-amd-amdhsa--gfx950"')
    a.raw(".text")
    k = gen(a, opt)
    a.raw("L_code_end:")
    a.raw(".fill 64, 4, 0xbf800000")
    a.raw("    s_endpgm")
    a.raw('.section .rodata,"a"')
    a.raw(k)
    open(sys.argv[1], "w").write(a.text())
    print("nops inserted:", a.nops, "lines:", len(a.lines))
```

```python
import sys, json
from common import *
from gemm64 import *
BIAS = 32.0
NAME = "recurrent_scan__softmax_full_mha__glu_gated_swiglu__prompt_kernel"

def gen(a, opt):
    ST = opt.get("st", " sc1")
    LD = " sc1"
    NPH = opt.get("nph", 2)
    kernel_head(a, NAME)
    e = a.e
    uid = [0]
    def lab(p):
        uid[0] += 1; return f"L_{p}{uid[0]}"
    pX, pWQ, pWO, pW1, pW3, pW2, pOUT, pDBG, pWS = 4, 6, 8, 12, 14, 16, 18, 20, 22
    rX, rW1, rW3, rA, rB, rWS = 24, 28, 32, 36, 40, 44
    S = lambda r: f"s[{r}:{r+3}]"
    sW, sTT, sG, sRB, sCOL, sTTG = 48, 49, 50, 51, 52, 53
    sSO = [[54, 55], [56, 56], [57, 57]]
    sP64, sM0, sCurA, sCurB, sOnes, sLo, sHi, sHoff, sQKoff, sQKstep = 58, 59, 60, 61, 62, 63, 64, 65, 66, 67
    sT1, sT2, sT3, sStat, sPh, sHoff2 = 68, 69, 70, 71, 72, 73
    X0, AA, AB, WF, T0 = 16, 128, 160, 192, 216
    vLane, vSt, vD0, vD1, vD2B = 1, 2, 3, 4, 250
    vTB = [[5, 6], [7, 8], [9]]
    vTW = [10, 11]
    vXR = [12, 13, 14, 15]
    vK, vC1, vSc, vP6, vP7, vFlag, vV3, vV4 = 232, 233, 234, 236, 237, 238, 239, 235
    vXW = [240, 241]; vStat = 242; vNM = 243; vAcc = [244, 245, 246, 247]; vV1, vV2 = 248, 249
    vDum = 251
    RAW = 128
    SCR = 7 * 16384
    SYNC = 163840 - 256
    e("s_cmp_ge_u32 s2, 256")
    e("s_cbranch_scc1 L_end")
    sp = Stamper(a, opt.get("stamp"), 0)
    sp.stamp("rt", True); sp.stamp("start")
    if opt.get("hdiag"): e("s_memrealtime s[76:77]"); e("s_memtime s[78:79]")
    e("s_load_dwordx16 s[4:19], s[0:1], 0")
    e("s_load_dwordx4 s[20:23], s[0:1], 64")
    RL = 3
    sWR, sXa, sXb, sGS = sStat, sOnes, sLo, sHi
    e(f"v_lshrrev_b32 v22, 6, v0")
    e(f"v_and_b32 v{vLane}, 63, v0")
    e(f"v_readfirstlane_b32 s{sW}, v22")
    e(f"s_and_b32 s{sT1}, s2, 1")
    e(f"s_bfe_u32 s{sT2}, s2, 0x30003")
    e(f"s_lshl3_add_u32 s{sRB}, s{sT1}, s{sT2}")
    e(f"s_bfe_u32 s{sT1}, s2, 0x20001")
    e(f"s_lshr_b32 s{sT2}, s2, 6")
    e(f"s_lshl2_add_u32 s{sCOL}, s{sT1}, s{sT2}")
    e(f"v_bfe_u32 v22, v0, 3, 3")
    e(f"v_and_b32 v23, 7, v0")
    e(f"s_lshl_b32 s{sT1}, s{sT2}, 2")
    e(f"s_and_b32 s{sWR}, s{sT1}, 4")
    e(f"s_xor_b32 s{sWR}, s{sWR}, s{sW}")
    e(f"s_and_b32 s{sGS}, s{sT1}, 8")
    e(f"s_lshl3_add_u32 s{sT1}, s{sRB}, s{sWR}")
    e(f"s_lshl4_add_u32 s{sT2}, s{sT1}, s{sGS}")
    e(f"s_xor_b32 s{sT1}, s{sT2}, 8")
    e(f"s_mulk_i32 s{sT2}, 896")
    e(f"s_mulk_i32 s{sT1}, 896")
    e(f"v_mul_u32_u24 v24, 896, v22")
    e(f"v_lshl_add_u32 v24, v23, 4, v24")
    e(f"s_mov_b32 s{rX+2}, {hex(X_BYTES)}")
    e(f"s_mov_b32 s{rX+3}, 0x20000")
    e(f"s_cmp_ge_u32 s{sW}, 4")
    e("s_waitcnt lgkmcnt(0)")
    e(f"s_mov_b64 s[{rX}:{rX+1}], s[{pX}:{pX+1}]")
    def xloads(lo, hi, sa, sb):
        for k in range(lo, hi):
            gi, i = divmod(k, 7)
            r = RAW + k * 4
            e(f"buffer_load_dwordx4 v[{r}:{r+3}], v24, {S(rX)}, s{sa if gi == 0 else sb} offen offset:{i*128}")
    def touch():
        sh = opt.get("touchsh", 21)
        e(f"v_min_u32 v25, {(WS_USED >> sh) - 1}, v{vLane}")
        e(f"v_lshlrev_b32 v25, {sh}, v25")
        e(f"global_load_dword v{vDum+1}, v25, s[{pWS}:{pWS+1}]")
        e(f"v_mov_b32 v25, 0")
        for p in (pW1, pW3, pWQ, pW2, pWO, pOUT, pDBG):
            e(f"global_load_dword v{vDum+1}, v25, s[{p}:{p+1}]")
    XE = opt.get("xe", 10)
    e(f"s_cbranch_scc1 L_x0")
    a.skip_begin(); xloads(0, XE, sT2, sT1)
    e(f"s_branch L_x1")
    a.label("L_x0")
    e(f"s_getpc_b64 s[74:75]")
    a.label("L_pc")
    e(f"s_add_u32 s74, s74, {NAME}-L_pc")
    e(f"s_addc_u32 s75, s75, -1")
    e(f"s_lshr_b32 s3, s2, 3")
    e(f"s_lshl_b32 s3, s3, 7")
    e(f"v_and_b32 v20, 255, v0")
    e(f"v_lshl_add_u32 v20, v20, 12, s3")
    e(f"v_min_u32 v{vDum}, L_code_end-{NAME}-4, v20")
    e(f"global_load_dword v{vDum}, v{vDum}, s[74:75]")
    if opt.get("touch") == 1: touch()
    a.skip_end()
    a.label("L_x1")
    sp.stamp("xiss", lvl=3)
    e(f"s_mov_b32 s{sXa}, s{sT2}")
    e(f"s_mov_b32 s{sXb}, s{sT1}")
    def srd2(d, base, nbytes):
        e(f"s_mov_b64 s[{d}:{d+1}], s[{base}:{base+1}]")
        e(f"s_mov_b32 s{d+2}, {hex(nbytes)}")
        e(f"s_mov_b32 s{d+3}, 0x20000")
    srd2(rWS, pWS, WS_USED)
    e(f"s_or_b32 s{sT3}, s2, s{sW}")
    e(f"s_cbranch_scc1 L_noinit")
    a.skip_begin()
    e(f"v_lshlrev_b32 v25, 7, v{vLane}")
    e(f"v_mov_b32 v26, 0")
    e(f"s_mov_b32 s3, {CNT_OFF}")
    e(f"buffer_store_dword v26, v25, {S(rWS)}, s3 offen sc1")
    e(f"s_add_u32 s3, s3, 8192")
    e(f"buffer_store_dword v26, v25, {S(rWS)}, s3 offen sc1")
    a.skip_end()
    a.label("L_noinit")
    e(f"s_and_b32 s{sTT}, s{sW}, 3")
    e(f"s_lshr_b32 s{sG}, s{sW}, 2")
    e(f"s_lshl_b32 s{sM0}, s{sW}, 10")
    e(f"s_lshl_b32 s{sPh}, s{sG}, 1")
    sTc0a, sTc0b = sCurA, sCurB
    e(f"s_cmp_ge_u32 s{sCOL}, 12")
    e(f"s_cbranch_scc1 L_r0f")
    srd2(rA, pWQ, WQ_BYTES)
    e(f"s_mov_b64 s[{rB}:{rB+1}], s[{pWQ}:{pWQ+1}]")
    e(f"s_and_b32 s{sT2}, s{sCOL}, 3")
    e(f"s_mul_i32 s{sSO[0][0]}, s{sCOL}, 224")
    e(f"s_cmp_eq_u32 s{sT2}, 3")
    e(f"s_cselect_b32 s{sT3}, 32, 0")
    e(f"s_sub_u32 s{sSO[0][0]}, s{sSO[0][0]}, s{sT3}")
    e(f"s_add_u32 s{sSO[0][1]}, s{sSO[0][0]}, 128")
    e(f"s_mul_i32 s{sTc0a}, s{sG}, 112")
    e(f"s_add_u32 s{sTc0a}, s{sTc0a}, s{sT3}")
    e(f"s_add_u32 s{sTc0b}, s{sTc0a}, 56")
    e(f"s_movk_i32 s{sP64}, 2688")
    e(f"s_branch L_r0j")
    a.label("L_r0f")
    srd2(rA, pW1, W1_BYTES)
    e(f"s_mov_b64 s[{rB}:{rB+1}], s[{pW3}:{pW3+1}]")
    e(f"s_add_u32 s{sT1}, s{sCOL}, 12")
    e(f"s_lshl_b32 s{sSO[0][0]}, s{sT1}, 7")
    e(f"s_mov_b32 s{sSO[0][1]}, s{sSO[0][0]}")
    e(f"s_lshl_b32 s{sTc0a}, s{sG}, 6")
    e(f"s_add_u32 s{sTc0b}, s{sTc0a}, 128")
    e(f"s_movk_i32 s{sP64}, 3584")
    a.label("L_r0j")
    a.reset_hist()
    e(f"s_mov_b32 s{rB+2}, s{rA+2}")
    e(f"s_mov_b32 s{rB+3}, 0x20000")
    e(f"s_and_b32 s{sT3}, s{sRB}, 7")
    if opt.get("wpf0", 1):
        e(f"s_cmp_{'lt' if opt.get('wpf0', 2) == 1 else 'ge'}_u32 s{sW}, 4")
        e(f"s_cbranch_scc1 L_w0")
        a.skip_begin()
        e(f"s_mul_i32 s{sT2}, s{sTT}, 48")
        e(f"s_add_u32 s{sT2}, s{sT2}, s{sT3}")
        e(f"v_min_u32 v30, 5, v{vLane}")
        e(f"v_lshl_add_u32 v30, v30, 3, s{sT2}")
        e(f"v_mul_lo_u32 v30, v30, s{sP64}")
        e(f"buffer_load_dword v{vDum+1}, v30, {S(rA)}, s{sSO[0][0]} offen")
        e(f"buffer_load_dword v{vDum+1}, v30, {S(rB)}, s{sSO[0][1]} offen")
        a.skip_end()
        a.label("L_w0")
    e(f"v_lshrrev_b32 v25, 2, v{vLane}")
    e(f"v_and_b32 v25, 4, v25")
    e(f"v_xor_b32 v25, v25, v23")
    e(f"v_lshl_add_u32 v26, s{sW}, 3, v22")
    e(f"v_mul_lo_u32 v{vD0}, v26, s{sP64}")
    e(f"v_lshl_add_u32 v{vD0}, v25, 4, v{vD0}")
    e(f"v_mul_u32_u24 v{vD1}, 3584, v26")
    e(f"v_lshl_add_u32 v{vD1}, v25, 4, v{vD1}")
    e(f"s_lshl_b32 s{sT1}, s{sP64}, 5")
    e(f"v_subrev_u32 v32, s{sT1}, v{vD0}")
    vRow, vSwz, vCol = vV1, vV2, vV3
    e(f"v_lshrrev_b32 v26, 5, v{vLane}")
    e(f"v_bfe_u32 v27, v{vLane}, 2, 2")
    e(f"v_lshl_add_u32 v27, v26, 3, v27")
    e(f"v_lshlrev_b32 v{vRow}, 7, v27")
    e(f"v_and_b32 v28, 8, v{vLane}")
    e(f"v_lshlrev_b32 v{vSwz}, 3, v28")
    e(f"v_and_b32 v29, 3, v{vLane}")
    e(f"v_and_b32 v30, 16, v{vLane}")
    e(f"v_lshlrev_b32 v30, 1, v30")
    e(f"v_lshl_add_u32 v{vCol}, v29, 3, v30")
    def traddr(d, stc, t0, t1):
        return [f"v_add_u32 v{t0}, s{stc}, v{vCol}", f"v_and_b32 v{t1}, 127, v{t0}", f"v_xor_b32 v{t1}, v{t1}, v{vSwz}",
                f"v_and_b32 v{t0}, 128, v{t0}", f"v_lshl_add_u32 v{t0}, v{t0}, 6, v{t1}", f"v_add_u32 v{d}, v{t0}, v{vRow}"]
    for t in traddr(vTB[0][0], sTc0a, 30, 31) + traddr(vTB[0][1], sTc0b, 30, 31): e(t)
    e(f"s_and_b32 s{sT1}, s{sWR}, 1")
    e(f"s_lshl4_add_u32 s{sT1}, s{sT1}, s{sGS}")
    e(f"v_add_u32 v30, s{sT1}, v22")
    e(f"v_xor_b32 v30, v30, v23")
    e(f"v_lshlrev_b32 v30, 4, v30")
    e(f"v_lshrrev_b32 v31, 1, v23")
    e(f"v_lshl_add_u32 v30, v31, 12, v30")
    e(f"v_and_b32 v31, 1, v23")
    e(f"v_lshl_add_u32 v30, v31, 9, v30")
    e(f"s_lshr_b32 s{sT1}, s{sWR}, 1")
    e(f"v_lshl_add_u32 v{vXW[0]}, s{sT1}, 10, v30")
    e(f"v_add_u32 v{vXW[1]}, 0x10000, v{vXW[0]}")
    e(f"v_and_b32 v30, 31, v{vLane}")
    e(f"v_xor_b32 v30, v30, v26")
    e(f"v_lshlrev_b32 v30, 4, v30")
    e(f"v_lshl_add_u32 v30, v26, 9, v30")
    e(f"v_lshl_add_u32 v{vXR[0]}, s{sTT}, 10, v30")
    for q in range(1, 4):
        e(f"v_xor_b32 v{vXR[q]}, {q*4096 + q*32}, v{vXR[0]}")
    e(f"s_lshl4_add_u32 s{sT1}, s{sWR}, s{sGS}")
    e(f"v_add_lshl_u32 v{vStat}, v22, s{sT1}, 2")
    e(f"s_mul_i32 s{sT2}, s{sTT}, 112")
    e(f"s_add_u32 s{sT1}, s{sT3}, s{sT2}")
    e(f"v_min_u32 v30, 13, v{vLane}")
    e(f"v_lshl_add_u32 v30, v30, 3, s{sT1}")
    e(f"v_mul_u32_u24 v{vDum+3}, 3584, v30")
    e(f"s_lshl_b32 s{sT2}, s{sTT}, 6")
    e(f"s_add_u32 s{sT1}, s{sT3}, s{sT2}")
    e(f"s_add_u32 s{sT1}, s{sT1}, 192")
    e(f"v_min_u32 v31, 7, v{vLane}")
    e(f"v_lshl_add_u32 v31, v31, 3, s{sT1}")
    e(f"v_mul_lo_u32 v{vDum+2}, v31, s{sP64}")
    e(f"s_lshl_b32 s{sP64}, s{sP64}, 6")
    srd2(rW1, pW1, W1_BYTES)
    srd2(rW3, pW3, W1_BYTES)
    e(f"s_lshl_b32 s{sSO[1][0]}, s{sCOL}, 7")
    e(f"s_lshr_b32 s{sT1}, s{sCOL}, 1")
    e(f"s_add_u32 s{sT1}, s{sT1}, 16")
    e(f"s_lshl_b32 s{sSO[2][0]}, s{sT1}, 7")
    e(f"s_cmp_lt_u32 s{sW}, 4")
    e(f"s_cbranch_scc1 L_x2")
    a.skip_begin(); xloads(0, XE, sXa, sXb); a.skip_end()
    a.label("L_x2")
    xloads(XE, 14, sXa, sXb)
    e(f"s_lshl_b32 s{sStat}, s2, 9")
    e(f"s_add_u32 s{sStat}, s{sStat}, {ST_OFF}")
    e(f"s_mov_b32 s{sOnes}, 0x3f803f80")
    e(f"s_movk_i32 s{sLo}, 0x3f80")
    e(f"s_mov_b32 s{sHi}, 1.0")
    def slot(c):
        if c < 3: return 7 + c
        if c < 10: return c - 3
        if c == 20: return 7
        return slot(c - 9)
    dma_next = [3]
    def dma(c, track=True):
        r, cc = divmod(c, 7)
        if cc == 0:
            e(f"s_mov_b32 s{sCurA}, s{sSO[r][0]}")
            if r == 0: e(f"s_mov_b32 s{sCurB}, s{sSO[r][1]}")
        va, vb = [(vD0, vD0), (vD1, vD1), (vD1, vD2B)][r]
        sa, sb = (rA, rB) if r == 0 else (rW1, rW3)
        inc = f"s{sP64}" if r == 0 else f"{64*3584}"
        e(f"s_add_u32 m0, s{sM0}, {slot(c)*16384}")
        if cc: e(f"s_add_u32 s{sCurA}, s{sCurA}, {inc}")
        e(f"buffer_load_dwordx4 v{va}, {S(sa)}, s{sCurA} offen lds")
        e(f"s_add_u32 m0, s{sM0}, {slot(c)*16384+8192}")
        if cc and r == 0: e(f"s_add_u32 s{sCurB}, s{sCurB}, {inc}")
        e(f"buffer_load_dwordx4 v{vb}, {S(sb)}, s{sCurB if r == 0 else sCurA} offen lds")
        if track: a.vm += [f"c{c}", f"c{c}"]
    for q in range(8): e(f"v_mov_b32 v{T0+8+q}, 0")
    e(f"s_cmp_lt_u32 s{sW}, 4")
    e(f"s_cbranch_scc1 L_lnA")
    e(f"s_waitcnt vmcnt(0)")
    def dma4(c):
        dma(c, track=False)
        e(f"s_add_u32 m0, s{sM0}, {slot(c)*16384 - 4096}")
        e(f"buffer_load_dwordx4 v32, {S(rA)}, s{sCurA} offen lds")
        e(f"s_add_u32 m0, s{sM0}, {slot(c)*16384 + 8192 - 4096}")
        e(f"buffer_load_dwordx4 v32, {S(rB)}, s{sCurB} offen lds")
        a.vm += [f"c{c}"] * 4
    C2 = opt.get("c2pos", 1)
    for c in range(3 if C2 == 0 else 2): dma4(c)
    e(f"s_branch L_lnB")
    a.label("L_lnA")
    e(f"s_lshl1_add_u32 s{sCurA}, s{sP64}, s{sSO[0][0]}")
    e(f"s_lshl1_add_u32 s{sCurB}, s{sP64}, s{sSO[0][1]}")
    e(f"s_waitcnt vmcnt(0)")
    a.label("L_lnB")
    a.reset_hist()
    sp.stamp("x0"); sp.stamp("x0", lvl=3)
    AC = T0 + 8
    def reduce2(d0, d1):
        for g in range(2): e(f"v_add_f32 v{AC+4*g}, v{AC+4*g}, v{AC+4*g+1}")
        for g in range(2): e(f"v_add_f32 v{AC+4*g+2}, v{AC+4*g+2}, v{AC+4*g+3}")
        for g, d in enumerate((d0, d1)): e(f"v_add_f32 v{d}, v{AC+4*g}, v{AC+4*g+2}")
        for m in ("quad_perm:[1,0,3,2]", "quad_perm:[2,3,0,1]", "row_half_mirror"):
            for d in (d0, d1): e(f"v_add_f32_dpp v{d}, v{d}, v{d} {m} row_mask:0xf bank_mask:0xf")
    for i in range(28):
        for g in range(2): e(f"v_dot2c_f32_bf16 v{AC+4*g+i%4}, s{sOnes}, v{RAW+g*28+i}")
    reduce2(vAcc[0], vAcc[1])
    for q in range(8): e(f"v_mov_b32 v{AC+q}, 0")
    for g in range(2): e(f"v_mul_f32 v{vAcc[g]}, {hexf(-1.0/448)}, v{vAcc[g]}")
    if C2 == 1:
        e(f"s_cmp_lt_u32 s{sW}, 4")
        e(f"s_cbranch_scc1 L_c2")
        a.skip_begin(); dma4(2); a.skip_end()
        a.label("L_c2")
    sp.stamp("pre", lvl=3)
    pend = None
    for gi in range(2):
        for i in range(7):
            r = RAW + gi * 28 + i * 4
            for k in range(4):
                e(f"v_dot2_f32_bf16 v{T0+2*k}, v{r+k}, s{sLo}, v{vAcc[gi]}")
                e(f"v_dot2_f32_bf16 v{T0+2*k+1}, v{r+k}, s{sHi}, v{vAcc[gi]}")
            if pend: pend()
            for k in range(4):
                e(f"v_cvt_pk_bf16_f32 v{r+k}, v{T0+2*k}, v{T0+2*k+1}")
            def pend(r=r, gi=gi, i=i):
                off = i * 16384
                a.ds_op(f"ds_write_b128 v{vXW[off >> 16]}, v[{r}:{r+3}] offset:{off & 0xffff}", "xw")
                if i == 6 and gi == 0:
                    e(f"v_xor_b32 v{vXW[0]}, 128, v{vXW[0]}")
                    e(f"v_xor_b32 v{vXW[1]}, 128, v{vXW[1]}")
    pend()
    if C2 == 2:
        e(f"s_cmp_lt_u32 s{sW}, 4")
        e(f"s_cbranch_scc1 L_c2")
        a.skip_begin(); dma4(2); a.skip_end()
        a.label("L_c2")
    sp.stamp("post", lvl=3)
    for i in range(28):
        for g in range(2): e(f"v_dot2c_f32_bf16 v{AC+4*g+i%4}, v{RAW+g*28+i}, v{RAW+g*28+i}")
    e(f"v_mov_b32 v{T0}, {hexf(1e-5)}")
    e(f"v_mov_b32 v{T0+1}, {hexf(1e-5)}")
    e(f"v_xor_b32 v{T0+2}, 32, v{vStat}")
    reduce2(vAcc[0], vAcc[1])
    for g in range(2): e(f"v_fmac_f32 v{T0+g}, {hexf(1.0/448)}, v{vAcc[g]}")
    def wpf():
        e(f"buffer_load_dword v{vDum+1}, v{vDum+2}, {S(rA)}, s{sSO[0][0]} offen")
        e(f"buffer_load_dword v{vDum+1}, v{vDum+2}, {S(rB)}, s{sSO[0][1]} offen")
        for r in (1, 2):
            e(f"buffer_load_dword v{vDum+1}, v{vDum+3}, {S(rW1)}, s{sSO[r][0]} offen")
            e(f"buffer_load_dword v{vDum+1}, v{vDum+3}, {S(rW3)}, s{sSO[r][0]} offen")
        if opt.get("w2pf", 3) == 3:
            e(f"s_lshl2_add_u32 s{sT1}, s2, s{sW}")
            e(f"s_mul_i32 s{sT2}, s{sT1}, {13*128}")
            e(f"s_lshl_b32 s{sT1}, s{sT1}, 9")
            e(f"v_min_u32 v{vDum+2}, 12, v{vLane}")
            e(f"v_lshl_add_u32 v{vDum+2}, v{vDum+2}, 7, s{sT2}")
            e(f"v_min_u32 v{vDum+2}, {W2_BYTES-4}, v{vDum+2}")
            e(f"v_min_u32 v{vDum+3}, 3, v{vLane}")
            e(f"v_lshl_add_u32 v{vDum+3}, v{vDum+3}, 7, s{sT1}")
            e(f"v_min_u32 v{vDum+3}, {WO_BYTES-4}, v{vDum+3}")
            e(f"global_load_dword v{vDum+1}, v{vDum+2}, s[{pW2}:{pW2+1}]")
            e(f"global_load_dword v{vDum+1}, v{vDum+3}, s[{pWO}:{pWO+1}]")
    e(f"s_cmp_ge_u32 s{sW}, 4")
    e(f"s_cbranch_scc1 L_lnD")
    a.skip_begin()
    e(f"s_or_b32 s{sT3}, s2, s{sW}")
    e(f"s_cbranch_scc1 L_noflag")
    e(f"v_mov_b32 v25, 0")
    e(f"v_mov_b32 v26, 1")
    e(f"global_store_dword v25, v26, s[{pDBG}:{pDBG+1}] sc1")
    a.label("L_noflag")
    if opt.get("touch") == 2: touch()
    if opt.get("wpf", 1) == 1: wpf()
    e(f"s_branch L_lnE")
    a.skip_end()
    a.label("L_lnD")
    sp.stamp("ln", lvl=3, nowait=True)
    a.vm_wait("c1")
    a.label("L_lnE")
    a.ds_wait_all()
    sp.stamp("ln")
    sp.stamp("c1", lvl=3)
    e("s_barrier")
    sp.stamp("b1"); sp.stamp("b1", lvl=3)
    def deferred():
        t0, t1, t2 = AB, AB + 1, AB + 2
        G = lambda *ins: (lambda: [e(x) for x in ins], sum(2 if x.startswith("s_") else 4 for x in ins))
        L = []
        L.append(G(f"v_xor_b32 v{vD2B}, 32, v{vD1}", f"v_lshlrev_b32 v{vSt}, 4, v{vLane}", f"s_mov_b32 vcc_lo, -1", f"s_mov_b32 vcc_hi, 0"))
        L.append(G(f"s_lshl2_add_u32 s{sTTG}, s{sRB}, s{sTT}", f"s_lshl_b32 s{sHoff}, s{sG}, 6"))
        L += [G(x) for x in traddr(vTB[1][0], sHoff, t0, t1)]
        L.append(G(f"v_add_u32 v{vTB[1][1]}, 8192, v{vTB[1][0]}"))
        L.append(G(f"s_and_b32 s{sHoff}, s{sCOL}, 1", f"s_lshl1_add_u32 s{sHoff2}, s{sHoff}, s{sG}", f"s_lshl_b32 s{sHoff}, s{sHoff2}, 5",
                   f"v_xor_b32 v{t0}, s{sHoff}, v{vCol}"))
        L.append(G(f"v_xor_b32 v{t0}, v{t0}, v{vSwz}", f"v_and_b32 v{t1}, 16, v{vLane}"))
        L.append(G(f"v_lshl_add_u32 v{t0}, v{t1}, 9, v{t0}", f"v_add_u32 v{vTB[2][0]}, v{t0}, v{vRow}"))
        L.append(G(f"s_mul_i32 s{sHoff}, s{sTTG}, 112", f"s_add_u32 s{sHoff2}, s{sHoff2}, s{sHoff}", f"s_lshr_b32 s{sQKoff}, s{sSO[2][0]}, 5",
                   f"s_add_u32 s{sHoff2}, s{sHoff2}, s{sQKoff}", f"s_lshl_b32 s{sHoff2}, s{sHoff2}, 10", f"s_add_u32 s{sHoff2}, s{sHoff2}, {H_OFF}"))
        L.append(G(f"s_lshl1_add_u32 s{sHoff}, s{sG}, s{sHoff}", f"s_lshl2_add_u32 s{sHoff}, s{sCOL}, s{sHoff}", f"s_lshl_b32 s{sHoff}, s{sHoff}, 10",
                   f"s_add_u32 s{sHoff}, s{sHoff}, {H_OFF}"))
        L.append(G(f"s_lshl1_add_u32 s{sQKoff}, s{sCOL}, s{sG}", f"s_lshl_b32 s{sQKoff}, s{sQKoff}, 7", f"s_add_u32 s{sQKoff}, s{sQKoff}, s{sTTG}",
                   f"s_lshl_b32 s{sQKoff}, s{sQKoff}, 11", f"s_add_u32 s{sQKstep}, s{sHoff}, {12*4096}", f"s_cmp_ge_u32 s{sCOL}, 12",
                   f"s_cselect_b32 s{sQKoff}, s{sQKstep}, s{sQKoff}"))
        L.append(G(f"s_lshr_b32 s{sQKstep}, s{sCOL}, 2", f"s_cmp_eq_u32 s{sQKstep}, 1", f"s_cselect_b32 s{sOnes}, s{sOnes}, 0", f"s_cselect_b32 s{sHi}, s{sLo}, 0",
                   f"s_cmp_eq_u32 s{sQKstep}, 2", f"s_cselect_b32 s{sOnes}, s{sLo}, s{sOnes}"))
        L.append(G(f"v_mov_b32 v{vP6}, s{sOnes}", f"v_mov_b32 v{vP7}, s{sHi}"))
        L.append(G(f"v_lshrrev_b32 v{t2}, 5, v{vLane}", f"v_bfe_u32 v{t0}, v{vLane}, 2, 2", f"v_lshl_add_u32 v{t0}, v{t2}, 2, v{t0}"))
        L.append(G(f"v_lshrrev_b32 v{t1}, 1, v{t0}", f"v_lshlrev_b32 v{t1}, 3, v{t1}", f"v_xor_b32 v{t1}, v{t1}, v{vCol}"))
        L.append(G(f"s_lshl_b32 s{sQKstep}, s{sW}, 11", f"s_add_u32 s{sQKstep}, s{sQKstep}, {SCR}", f"v_lshl_add_u32 v{t0}, v{t0}, 6, v{t1}",
                   f"v_add_u32 v{vV2}, s{sQKstep}, v{t0}"))
        L.append(G(f"v_xor_b32 v{vV3}, 32, v{vV2}", f"v_bfe_u32 v{t0}, v{vLane}, 1, 3", f"v_xor_b32 v{t0}, v{t0}, v{t2}"))
        L.append(G(f"v_and_b32 v{t1}, 31, v{vLane}", f"v_lshlrev_b32 v{t1}, 6, v{t1}", f"v_lshl_add_u32 v{t0}, v{t0}, 3, v{t1}"))
        L.append(G(f"v_add_u32 v{vV1}, s{sQKstep}, v{t0}"))
        return L
    def hdiag(k):
        if not opt.get("hdiag"): return
        if k == 0: return
        e("s_cmp_ge_u32 s2, 7")
        e("s_cbranch_scc1 L_end")
        e(f"s_cmp_lg_u32 s{sW}, 4")
        e("s_cbranch_scc1 L_end")
        e("s_memrealtime s[80:81]"); e("s_memtime s[82:83]")
        e("s_waitcnt vmcnt(0) lgkmcnt(0)")
        e("s_mov_b64 exec, 1")
        e("s_lshl_b32 s3, s2, 3")
        e("v_mov_b32 v0, s3")
        e("s_sub_u32 s84, s82, s78")
        e("s_sub_u32 s80, s80, s76")
        e("s_and_b32 s76, s76, 0xffff")
        e("s_lshl_b32 s80, s80, 16")
        e("s_or_b32 s76, s76, s80")
        e("v_mov_b32 v2, s76"); e("v_mov_b32 v3, s84")
        e(f"global_store_dword v0, v2, s[{pDBG}:{pDBG+1}] offset:4")
        e(f"global_store_dword v0, v3, s[{pDBG}:{pDBG+1}] offset:8")
    def check_flag(vtmp):
        done = lab("fl")
        e(f"v_readfirstlane_b32 s{sT1}, v{vFlag}")
        e(f"s_cmp_lg_u32 s{sT1}, 0")
        e(f"s_cbranch_scc1 {done}")
        e(f"s_mov_b32 s{sT2}, 0x40000")
        lp = lab("fs"); a.label(lp)
        e(f"v_mov_b32 v{vtmp}, 0")
        e(f"global_load_dword v{vFlag}, v{vtmp}, s[{pDBG}:{pDBG+1}] sc1")
        e(f"s_waitcnt vmcnt(0)")
        e(f"v_readfirstlane_b32 s{sT1}, v{vFlag}")
        e(f"s_sub_u32 s{sT2}, s{sT2}, 1")
        e(f"s_cselect_b32 s{sT1}, 1, s{sT1}")
        e(f"s_cmp_eq_u32 s{sT1}, 0")
        e(f"s_cbranch_scc1 {lp}")
        a.label(done)
    def signal(sIdx, add, va, vb):
        e(f"s_add_u32 s{sT1}, s{sIdx}, {add}")
        e(f"s_lshl_b32 s{sT1}, s{sT1}, 7")
        e(f"s_add_u32 s{sT1}, s{sT1}, {CNT_OFF}")
        e(f"v_mov_b32 v{va}, 0")
        e(f"v_mov_b32 v{vb}, 1")
        e(f"s_mov_b64 exec, 1")
        e(f"buffer_atomic_add v{vb}, v{va}, {S(rWS)}, s{sT1} offen sc1")
        e(f"s_mov_b64 exec, -1")
    def poll(vaddr, vval, target, sleep):
        lp = lab("po"); done = lab("pd")
        e(f"s_mov_b32 s{sT2}, 0x40000")
        e(f"s_mov_b32 s{sT3}, {CNT_OFF}")
        a.label(lp)
        e(f"buffer_load_dword v{vval}, v{vaddr}, {S(rWS)}, s{sT3} offen sc1")
        e(f"s_waitcnt vmcnt(0)")
        e(f"v_cmp_gt_u32 s[74:75], {target}, v{vval}")
        e(f"s_cmp_eq_u64 s[74:75], 0")
        e(f"s_cbranch_scc1 {done}")
        e(f"s_sleep {sleep}")
        e(f"s_sub_u32 s{sT2}, s{sT2}, 1")
        e(f"s_cbranch_scc0 {lp}")
        a.label(done)
        a.vm = []
    def lds_arrive(k, va, vb, rtn=False):
        e(f"v_mov_b32 v{va}, {SYNC + 4*k}")
        e(f"v_mov_b32 v{vb}, 1")
        e(f"s_mov_b64 exec, 1")
        e(f"ds_add_rtn_u32 v{vb}, v{va}, v{vb}" if rtn else f"ds_add_u32 v{va}, v{vb}")
        e(f"s_mov_b64 exec, -1")
    def lds_sync(k, n, va, vb):
        a.ds_wait_all()
        lds_arrive(k, va, vb)
        lp = lab("ls")
        e(f"s_mov_b32 s{sT2}, 0x400000")
        a.label(lp)
        e(f"ds_read_b32 v{vb}, v{va}")
        e(f"s_waitcnt lgkmcnt(0)")
        e(f"v_readfirstlane_b32 s{sT1}, v{vb}")
        e(f"s_sub_u32 s{sT2}, s{sT2}, 1")
        e(f"s_cselect_b32 s{sT1}, {n}, s{sT1}")
        e(f"s_cmp_lt_u32 s{sT1}, {n}")
        e(f"s_cbranch_scc1 {lp}")
    def lds_spin(k, n, va, vb, sleep):
        lp = lab("ls"); ok = lab("lk")
        e(f"v_mov_b32 v{va}, {SYNC + 4*k}")
        e(f"s_mov_b32 s{sT2}, 0x100000")
        a.label(lp)
        e(f"ds_read_b32 v{vb}, v{va}")
        e(f"s_waitcnt lgkmcnt(0)")
        e(f"v_readfirstlane_b32 s{sT1}, v{vb}")
        e(f"s_cmp_ge_u32 s{sT1}, {n}")
        e(f"s_cbranch_scc1 {ok}")
        e(f"s_sleep {sleep}")
        e(f"s_sub_u32 s{sT2}, s{sT2}, 1")
        e(f"s_cbranch_scc0 {lp}")
        a.label(ok)
    def lds_wait(k, n, va, vb, meanwhile):
        lp = lab("lw"); ok = lab("lo")
        e(f"v_mov_b32 v{va}, {SYNC + 4*k}")
        e(f"ds_read_b32 v{vb}, v{va}")
        meanwhile()
        e(f"s_mov_b32 s{sT2}, 0x400000")
        a.label(lp)
        e(f"s_waitcnt lgkmcnt(0)")
        e(f"v_readfirstlane_b32 s{sT1}, v{vb}")
        e(f"s_cmp_ge_u32 s{sT1}, {n}")
        e(f"s_cbranch_scc1 {ok}")
        e(f"ds_read_b32 v{vb}, v{va}")
        e(f"s_sub_u32 s{sT2}, s{sT2}, 1")
        e(f"s_cbranch_scc0 {lp}")
        a.label(ok)
    def last_signals(k, n, sIdx, add, va, vb):
        lds_arrive(k, va, vb, rtn=True)
        e(f"s_waitcnt lgkmcnt(0)"); a.lg = []
        e(f"v_readfirstlane_b32 s{sT1}, v{vb}")
        sk = lab("ns")
        e(f"s_cmp_lg_u32 s{sT1}, {n-1}")
        e(f"s_cbranch_scc1 {sk}")
        a.skip_begin()
        signal(sIdx, add, va, vb)
        a.skip_end()
        a.label(sk)
    NT = [2, 2, 1]
    ACC = [AA, AB, AA]
    tw_state = [None, None]
    def wreads(G):
        r, s = divmod(G, 28)
        base = slot(G // 4) * 16384 + (s % 4) * 2048
        hi, lo = base >> 16, base & 0xffff
        L = []
        for t in range(NT[r]):
            d = WF + (G % 3) * 8 + t * 4
            def f0(t=t, d=d):
                if tw_state[t] != (r, hi):
                    e(f"v_add_u32 v{vTW[t]}, {hex(hi << 16)}, v{vTB[r][t]}")
                    tw_state[t] = (r, hi)
                a.ds_op(f"ds_read_b64_tr_b16 v[{d}:{d+1}], v{vTW[t]} offset:{lo}", f"w{G}")
            def f1(t=t, d=d):
                a.ds_op(f"ds_read_b64_tr_b16 v[{d+2}:{d+3}], v{vTW[t]} offset:{lo+512}", f"w{G}")
            L += [f0, f1]
        return L
    xr_next = [0]
    def xread(n):
        for _ in range(n):
            s = xr_next[0]
            if s >= 28: return
            xr_next[0] += 1
            if s == 16:
                for q in range(4): e(f"v_add_u32 v{vXR[q]}, 0x10000, v{vXR[q]}")
            off = ((s // 4) * 16384) & 0xffff
            a.ds_op(f"ds_read_b128 v[{X0+4*s}:{X0+4*s+3}], v{vXR[s%4]} offset:{off}", f"x{s}")
    BARS = opt.get("bars", [0, 1, 2, 3, 5, 7, 9, 11, 13, 15, 17, 19])
    PQ = opt.get("pq", 13)
    PZ = opt.get("pz", 15)
    L2P = {int(k): v for k, v in opt.get("l2p", {}).items()}
    window = []; pending = []
    def period_barrier(i):
        for c in window: a.vm.extend([f"c{c}", f"c{c}"])
        assert not pending, pending
        window.clear()
        nxt = min([b for b in BARS if b > i] + [20])
        a.vm_wait(f"c{nxt}")
        assert dma_next[0] > nxt, (i, nxt, dma_next[0])
        if i == 3: a.vm_wait("stat")
        if i == PQ: a.vm_wait("st")
        if i in opt.get("sb", []): sp.stamp("pre", lvl=2, nowait=True)
        e("s_barrier")
        if i in opt.get("sb", []): sp.stamp("post", lvl=2, nowait=True)
        if i == 3:
            e(f"v_and_b32 v{vK}, 31, v{vLane}")
            e(f"v_lshlrev_b32 v{vK}, 2, v{vK}")
            e(f"s_lshl_b32 s{sT1}, s{sTT}, 7")
            e(f"s_add_u32 s{sT1}, s{sT1}, s{sStat}")
            e(f"v_mov_b32 v{vFlag}, 0")
            a.vm_op(f"buffer_load_dword v{vK}, v{vK}, {S(rWS)}, s{sT1} offen sc1", "kld")
            a.vm_op(f"global_load_dword v{vFlag}, v{vFlag}, s[{pDBG}:{pDBG+1}] sc1", "kld")
        if i in L2P:
            for k in L2P[i]:
                sk = lab("pf")
                e(f"s_cmp_lg_u32 s{sW}, {k}")
                e(f"s_cbranch_scc1 {sk}")
                a.skip_begin()
                e(f"s_lshr_b32 s{sT1}, s2, 3")
                nl, ptr, nb = (56, pW2, W2_BYTES) if k < 7 else (98, pWO, WO_BYTES)
                if k < 7:
                    e(f"s_mul_i32 s{sT1}, s{sT1}, {7*56*128}")
                    e(f"s_add_u32 s{sT1}, s{sT1}, {k*56*128}")
                else:
                    e(f"s_mul_i32 s{sT1}, s{sT1}, {98*128}")
                e(f"v_min_u32 v{vDum+2}, {min(nl, 64) - 1 if k < 7 else 48}, v{vLane}")
                e(f"v_lshl_add_u32 v{vDum+2}, v{vDum+2}, 7, s{sT1}")
                e(f"global_load_dword v{vDum+1}, v{vDum+2}, s[{ptr}:{ptr+1}]")
                if k == 7:
                    e(f"v_add_u32 v{vDum+2}, {49*128}, v{vDum+2}")
                    e(f"global_load_dword v{vDum+1}, v{vDum+2}, s[{ptr}:{ptr+1}]")
                a.skip_end()
                a.label(sk)
        if i == PZ:
            e(f"v_lshrrev_b32 v{vV1}, 2, v{vSt}")
            e(f"v_add_u32 v{vV1}, {SYNC}, v{vV1}")
            e(f"v_mov_b32 v{vV2}, 0")
            a.ds_op(f"ds_write_b32 v{vV1}, v{vV2}", "z")
        if i == PQ and sigq[0]:
            sk = lab("q")
            e(f"s_cmp_lg_u32 s{sW}, 0")
            e(f"s_cbranch_scc1 {sk}")
            a.skip_begin()
            check_flag(vDum + 2)
            signal(sCOL, 0, vDum + 2, vDum + 3)
            a.skip_end()
            a.label(sk)
        while dma_next[0] <= 20:
            c = dma_next[0]
            if c < 10:
                sl = slot(c)
                if not all(xr_next[0] > s and a.ds_done(f"x{s}") for s in range(4*sl, 4*sl+4)): break
            elif c - 9 > i - 1: break
            window.append(c); dma_next[0] += 1
        nq = nxt - i
        per = -(-len(window) // nq)
        pending[:] = [window[k*per:(k+1)*per] for k in range(nq)]
    sigq = [False]
    XR = opt.get("xrate", 2)
    def kloop(r, extra, budget, hooks={}):
        extra = list(extra)
        if opt.get("x_noepi"): extra = [x for x in extra if x[1] == 0]
        gap = 0
        for s in range(28):
            G = r * 28 + s
            Gn = G + 2
            rd = wreads(Gn) if Gn < 84 else []
            a.ds_wait(f"w{G}")
            if r == 0: a.ds_wait(f"x{s}")
            ph = Gn % 4
            for t in range(NT[r]):
                d = ACC[r] + 16 * t
                w = WF + (G % 3) * 8 + t * 4
                c = "0" if s == 0 else f"v[{d}:{d+15}]"
                e(f"v_mfma_f32_32x32x16_bf16 v[{d}:{d+15}], v[{w}:{w+3}], v[{X0+4*s}:{X0+4*s+3}], {c}")
                gap += 1
                if t == 0 and Gn < 84 and ph == 0 and (Gn // 4 - 1) in BARS: period_barrier(Gn // 4 - 1)
                n = -(-len(rd) // (NT[r] - t))
                for f in rd[:n]: f()
                rd = rd[n:]
                if r == 0: xread((XR + 1 - t) // 2)
                left = budget
                if t == NT[r] - 1 and pending and pending[0] and ph % 2 == 0:
                    sk = lab("d")
                    e(f"s_cmp_lg_u32 s{sPh}, {ph}")
                    e(f"s_cbranch_scc1 {sk}")
                    a.skip_begin()
                    for c in pending[0]: dma(c, track=False)
                    a.skip_end()
                    a.label(sk)
                    left = opt.get("dmabud", 4)
                if t == NT[r] - 1 and s in hooks: hooks[s](); left = 0
                while extra and gap > 3 and extra[0][1] <= left:
                    f, cst = extra.pop(0); f(); left -= cst
            if ph == 3 and pending: pending.pop(0)
        return extra
    def I(t):
        op = t.split()[0]
        return (lambda: e(t), 8 if op.startswith(TRANS) else (2 if op.startswith("s_") else 4))
    def consts():
        def sel():
            e(f"s_cmp_lt_u32 s{sCOL}, 4")
            e(f"s_cselect_b32 s{sT1}, {hexf(28**-0.5*LOG2E)}, 1.0")
            e(f"v_mul_f32 v{vSc}, s{sT1}, v{vSc}")
        return [(lambda: a.vm_wait("kld"), 0), I(f"v_rsq_f32 v{vSc}, v{vK}"),
                I(f"v_mul_f32 v{vC1}, {hexf(-LOG2E)}, v{vSc}"), (sel, 8)]
    def silu4(Gt, U, t, p):
        L = []
        for k in range(4): L.append(I(f"v_mul_f32 v{t+k}, v{vC1}, v{Gt+k}"))
        for k in range(4):
            L.append(I(f"v_exp_f32 v{t+k}, v{t+k}"))
            L.append(I(f"v_mul_f32 v{Gt+k}, v{Gt+k}, v{U+k}"))
        for k in range(4): L.append(I(f"v_fma_f32 v{t+k}, v{t+k}, v{vK}, v{vK}"))
        for k in range(4): L.append(I(f"v_rcp_f32 v{t+k}, v{t+k}"))
        for k in range(4): L.append(I(f"v_mul_f32 v{Gt+k}, v{Gt+k}, v{t+k}"))
        for k in range(2): L.append(I(f"v_cvt_pk_bf16_f32 v{p+k}, v{Gt+2*k}, v{Gt+2*k+1}"))
        return L
    def store(r, soff, off):
        if opt.get("x_nost"): return (lambda: None, 8)
        return (lambda: a.vm_op(f"buffer_store_dwordx4 v[{r}:{r+3}], v{vSt}, {S(rWS)}, s{soff} offen offset:{off}{ST}", "st"), 8)
    def epiF(acc, soff):
        Gt, U = acc, acc + 16
        L = []
        for q in range(4):
            L += silu4(Gt + 4*q, U + 4*q, T0 + (q % 2) * 4, U + (q // 2) * 8 + (q % 2) * 2)
            if q % 2 == 1: L.append(store(U + (q // 2) * 8, soff, (q // 2) * 1024))
        return L
    def epiQKV(acc, isv):
        L = []
        P = T0 + 8
        for q in range(4):
            for k in range(4): L.append(I(f"v_mul_f32 v{acc+4*q+k}, v{vSc}, v{acc+4*q+k}"))
            for k in range(2): L.append(I(f"v_cvt_pk_bf16_f32 v{P+2*q+k}, v{acc+4*q+2*k}, v{acc+4*q+2*k+1}"))
            if q == 1 and not isv: L.append(store(P, sQKoff, 0))
        L.append(I(f"v_cndmask_b32 v{P+6}, v{vP6}, v{P+6}, vcc"))
        L.append(I(f"v_cndmask_b32 v{P+7}, v{vP7}, v{P+7}, vcc"))
        if not isv: L.append(store(P + 4, sQKoff, 1024))
        else:
            for q in range(4):
                if q: L.append(I(f"v_xor_b32 v{vV4}, {16*q}, v{vV1}"))
                L.append((lambda q=q: a.ds_op(f"ds_write_b64 v{vV4 if q else vV1}, v[{P+2*q}:{P+2*q+1}]", "vw"), 4))
            L += [(lambda: None, 8)] * 2
            L.append((lambda: a.ds_wait("vw"), 0))
            for q in range(4):
                L.append((lambda q=q: a.ds_op(f"ds_read_b64_tr_b16 v[{acc+2*q}:{acc+2*q+1}], v{vV3 if q % 2 else vV2} offset:{512*q}", "vr"), 4))
            L += [(lambda: None, 8)] * 2
            L.append((lambda: a.ds_wait("vr"), 0))
            L.append(store(acc, sQKoff, 0))
            L.append(store(acc + 4, sQKoff, 1024))
        L.append(I(f"s_add_u32 s{sQKoff}, s{sQKoff}, {64*2048}"))
        return L
    B1, B2 = opt.get("b1", 12), opt.get("b2", 12)
    xread(4)
    for f in wreads(0) + wreads(1): f()
    if opt.get("wpf", 1) == 2:
        e(f"s_cmp_ge_u32 s{sW}, 4")
        e(f"s_cbranch_scc1 L_wp")
        a.skip_begin(); wpf(); a.skip_end()
        a.label("L_wp")
    a.vm_op(f"buffer_store_dword v{T0}, v{vStat}, {S(rWS)}, s{sStat} offen", "stat")
    a.vm_op(f"buffer_store_dword v{T0+1}, v{T0+2}, {S(rWS)}, s{sStat} offen", "stat")
    assert not kloop(0, deferred(), 16)
    sp.stamp("r0")
    e(f"s_cmp_lt_u32 s{sCOL}, 8")
    e(f"s_cbranch_scc1 L_pqk")
    e(f"s_cmp_lt_u32 s{sCOL}, 12")
    e(f"s_cbranch_scc1 L_pv")
    saved = (list(a.vm), list(a.lg), list(tw_state), dma_next[0], list(a.hist), list(window), [list(p) for p in pending], sp.n)
    ends = []
    for nm, ex in (("f", lambda: epiF(AA, sQKoff)), ("L_pqk", lambda: epiQKV(AA, False) + epiQKV(AA + 16, False)),
                   ("L_pv", lambda: epiQKV(AA, True) + epiQKV(AA + 16, True))):
        if nm != "f": a.label(nm)
        a.vm, a.lg = list(saved[0]), list(saved[1]); tw_state[:] = saved[2]; dma_next[0] = saved[3]; a.hist = list(saved[4])
        window[:] = saved[5]; pending[:] = [list(p) for p in saved[6]]; sp.set(saved[7])
        sigq[0] = nm != "f"
        nst0 = [0]
        exl = consts() + ex()
        if nm != "f":
            exl.append((lambda: nst0.__setitem__(0, 1), 0))
            _pb = period_barrier
        rest = kloop(1, exl, {"f": B1, "L_pqk": opt.get("b1q", 12), "L_pv": opt.get("b1v", 16)}[nm], hooks={(PQ + 1) * 4 - 2 - 28 - 1: (lambda: None) if nm == "f" else (lambda: (_ for _ in ()).throw(AssertionError("qkv epilogue too late")) if not nst0[0] else None)})
        for f, c in rest: f()
        ends.append(([t for t in a.vm if t != "st"], list(a.lg), list(tw_state), dma_next[0], list(window), [list(p) for p in pending]))
        if nm != "L_pv": e("s_branch L_r2")
    assert ends[0][1:] == ends[1][1:] == ends[2][1:], ends
    a.vm = min((x[0] for x in ends), key=len)
    assert all(x[0][len(x[0])-len(a.vm):] == a.vm for x in ends)
    a.label("L_r2")
    e("s_nop 1")
    sp.stamp("r1")
    K0, Q, KV, O, Sx, P, T = 16, 24, 56, 128, 192, 224, 240
    ATT_LDS, WO_LDS = 49152, 98304
    sX, sJ = 54, 55
    sHead, sQB, sKV, sRun = 62, 63, 64, 58
    sWq, sTB, sCB, sWo, sLB = 62, 63, 64, 58, 66
    vD, vPoll, vStV = vD0, vDum + 4, vD0
    rW = rA
    rK, rV = rA, rB
    def early1():
        e(f"s_and_b32 s{sX}, s2, 7")
        e(f"s_lshr_b32 s{sJ}, s2, 3")
        e(f"s_lshl_b32 s{sHead}, s{sX}, 1")
        e(f"s_and_b32 s{sT1}, s{sJ}, 1")
        e(f"s_add_u32 s{sHead}, s{sHead}, s{sT1}")
        e(f"v_min_u32 v{vPoll}, 2, v{vLane}")
        e(f"v_lshlrev_b32 v{vPoll}, 9, v{vPoll}")
        e(f"s_lshr_b32 s{sT1}, s{sHead}, 2")
        e(f"s_lshl_b32 s{sT1}, s{sT1}, 7")
        e(f"v_add_u32 v{vPoll}, s{sT1}, v{vPoll}")
        check_flag(vDum + 2)
        e(f"s_mov_b32 s{sT3}, {CNT_OFF}")
        a.vm_op(f"buffer_load_dword v{vDum+3}, v{vPoll}, {S(rWS)}, s{sT3} offen sc1", "poll")
    NE = opt.get("ne", 1)
    def kvload(i):
        for k in range(4):
            r = KV + 16 * i + 4 * k
            e(f"buffer_load_dwordx4 v[{r}:{r+3}], v{vSt}, {S(rK if k < 2 else rV)}, s{sRun} offen offset:{1024*(k%2)}{LD}")
        e(f"s_add_u32 s{sRun}, s{sRun}, 2048")
        e(f"s_and_b32 s{sRun}, s{sRun}, 0x1ffff")
    def early2():
        a.vm_wait("poll")
        e(f"s_cmp_ge_u32 s{sW}, 4")
        e(f"s_cbranch_scc1 L_e2j")
        a.skip_begin()
        e(f"v_cmp_gt_u32 s[74:75], 16, v{vDum+3}")
        e(f"s_cmp_eq_u64 s[74:75], 0")
        e(f"s_cbranch_scc1 L_e2ok")
        sv = list(a.vm)
        poll(vPoll, vDum + 3, 16, 1)
        a.vm = sv
        a.label("L_e2ok")
        e(f"s_lshr_b32 s{sQB}, s{sJ}, 1")
        e(f"s_lshl_b32 s{sKV}, s{sHead}, 17")
        e(f"s_add_u32 s{sKV}, s{sKV}, {KV_OFF}")
        e(f"s_lshl_b32 s{sT1}, s{sHead}, 6")
        e(f"s_lshl2_add_u32 s{sT1}, s{sQB}, s{sT1}")
        e(f"s_add_u32 s{sT1}, s{sT1}, s{sW}")
        e(f"s_lshl_b32 s{sT1}, s{sT1}, 11")
        e(f"buffer_load_dwordx4 v[{Q}:{Q+3}], v{vSt}, {S(rWS)}, s{sT1} offen{LD}")
        e(f"buffer_load_dwordx4 v[{Q+4}:{Q+7}], v{vSt}, {S(rWS)}, s{sT1} offen offset:1024{LD}")
        e(f"s_and_b32 s{sT1}, s{sQB}, {7 if opt.get('rot', 0) else 0}")
        e(f"s_lshl3_add_u32 s{sT1}, s{sW}, s{sT1}")
        e(f"s_lshl1_add_u32 s{sT1}, s{sT1}, 1")
        e(f"s_lshl_b32 s{sRun}, s{sT1}, 11")
        e(f"s_add_u32 s{rK}, s{pWS}, s{sKV}")
        e(f"s_addc_u32 s{rK+1}, s{pWS+1}, 0")
        e(f"s_mov_b32 s{rK+2}, 0x20000")
        e(f"s_mov_b32 s{rK+3}, 0x20000")
        e(f"s_add_u32 s{rV}, s{rK}, {2 << 20}")
        e(f"s_addc_u32 s{rV+1}, s{rK+1}, 0")
        e(f"s_mov_b32 s{rV+2}, 0x20000")
        e(f"s_mov_b32 s{rV+3}, 0x20000")
        for i in range(NE): kvload(i)
        a.skip_end()
        a.label("L_e2j")
        a.vm_mark("early")
    rest = kloop(2, epiF(AB, sHoff), B2, hooks={opt.get("e1", 19): early1, opt.get("e2", 24): early2})
    e("s_barrier")
    sp.stamp("r2")
    for f, c in rest: f()
    for q in range(2):
        for f, c in silu4(AA + 4*q, AA + 8 + 4*q, T0 + 4*q, T0 + 8 + 2*q): f()
    store(T0 + 8, sHoff2, 0)[0]()
    e(f"s_cmp_ge_u32 s{sW}, 4")
    e(f"s_cbranch_scc1 L_gemm")
    nst = sp.n
    sFlag, sIt, sOoff = 59, 60, 61
    for i in range(NE, 3):
        kvload(i); a.vm += [f"kv{i}"] * 4
    assert NE >= 1
    a.vm_wait("early")
    e(f"v_mfma_f32_32x32x16_bf16 v[{Sx}:{Sx+15}], v[{KV}:{KV+3}], v[{Q}:{Q+3}], 0")
    e(f"v_mfma_f32_32x32x16_bf16 v[{Sx}:{Sx+15}], v[{KV+4}:{KV+7}], v[{Q+4}:{Q+7}], v[{Sx}:{Sx+15}]")
    for r in range(16): e(f"v_mov_b32 v{O+r}, 0")
    e(f"s_lshl_b32 s{sT1}, s{sW}, 11")
    e(f"s_add_u32 s{sT1}, s{sT1}, {ATT_LDS}")
    e(f"v_add_u32 v{T+2}, s{sT1}, v{vSt}")
    sp.stamp("qkv")
    M = T + 8
    def patch(jjs, bias):
        U = M + 4
        for jj in jjs: e(f"v_mov_b32 v{U+jj}, v{M+jj}")
        for jj in jjs: e(f"v_permlane32_swap_b32 v{M+jj}, v{U+jj}")
        for jj in jjs: e(f"v_max_f32 v{M+jj}, v{M+jj}, v{U+jj}")
        for jj in jjs: e(f"v_sub_f32 v{M+jj}, {hexf(-bias) if bias else 0}, v{M+jj}")
        for jj in jjs: e(f"v_cvt_pk_bf16_f32 v{U+jj}, v{M+jj}, v{M+jj}")
        for jj in jjs: e(f"v_and_b32 v{U+jj}, 0xffff0000, v{U+jj}")
        for jj in jjs: e(f"v_sub_f32 v{U+jj}, v{M+jj}, v{U+jj}")
        for jj in jjs: e(f"v_cvt_pk_bf16_f32 v{M+jj}, v{M+jj}, v{U+jj}")
        for jj in jjs: e(f"v_cndmask_b32 v{Q+8*jj+6}, v{M+jj}, v{Q+8*jj+6}, vcc")
        for jj in jjs: e(f"v_and_b32 v{M+jj}, 0xffff0000, v{M+jj}")
        for jj in jjs: e(f"v_sub_f32 v{U+jj}, v{U+jj}, v{M+jj}")
        for jj in jjs: e(f"v_cvt_pk_bf16_f32 v{U+jj}, v{U+jj}, 0")
        for jj in jjs: e(f"v_cndmask_b32 v{Q+8*jj+7}, v{U+jj}, v{Q+8*jj+7}, vcc")
    for k in range(4): e(f"v_max3_f32 v{M+4+k}, v{Sx+4*k}, v{Sx+4*k+1}, v{Sx+4*k+2}")
    for k in range(2): e(f"v_max3_f32 v{M+4+2*k}, v{M+4+2*k}, v{M+5+2*k}, v{Sx+8*k+3}")
    e(f"v_max3_f32 v{M}, v{Sx+7}, v{Sx+15}, v{M+4}")
    e(f"v_max_f32 v{M}, v{M}, v{M+6}")
    patch([0], BIAS)
    a.ds_op(f"ds_write_b128 v{T+2}, v[{Q}:{Q+3}]")
    a.ds_op(f"ds_write_b128 v{T+2}, v[{Q+4}:{Q+7}] offset:1024")
    for r in range(16, 40): e(f"v_mov_b32 v{O+r}, 0")
    lds_sync(1, 4, T, T + 1)
    for jj in range(1, 4):
        e(f"s_add_u32 s{sT1}, s{sW}, {jj}")
        e(f"s_and_b32 s{sT1}, s{sT1}, 3")
        e(f"s_lshl_b32 s{sT1}, s{sT1}, 11")
        e(f"s_add_u32 s{sT1}, s{sT1}, {ATT_LDS}")
        e(f"v_add_u32 v{T+2}, s{sT1}, v{vSt}")
        a.ds_op(f"ds_read_b128 v[{Q+8*jj}:{Q+8*jj+3}], v{T+2}")
        a.ds_op(f"ds_read_b128 v[{Q+8*jj+4}:{Q+8*jj+7}], v{T+2} offset:1024")
    for r in range(40, 64): e(f"v_mov_b32 v{O+r}, 0")
    for r in range(8): e(f"v_mov_b32 v{P+8+r}, 0")
    for r in range(8): e(f"v_mov_b32 v{KV+48+8+r}, 0")
    e(f"s_mov_b32 s{sFlag}, 0")
    e(f"s_lshl2_add_u32 s{sOoff}, s{sQB}, s{sW}")
    e(f"s_lshl4_add_u32 s{sOoff}, s{sOoff}, s{sHead}")
    e(f"s_lshl_b32 s{sOoff}, s{sOoff}, 11")
    e(f"s_add_u32 s{sOoff}, s{sOoff}, {O_OFF}")
    a.ds_wait_all()
    lds_arrive(2, T, T + 1)
    a.vm_wait("st")
    last_signals(0, 8, sRB, 12, T, T + 1)
    e(f"s_setprio {opt.get('attprio', 1)}")
    def qk(n, half):
        i, j = (n // 4) % 4, n % 4
        d = Sx + 16 * (n % 2); k = KV + 16 * i + 4 * half; q = Q + 8 * j + 4 * half
        c = "0" if half == 0 else f"v[{d}:{d+15}]"
        e(f"v_mfma_f32_32x32x16_bf16 v[{d}:{d+15}], v[{k}:{k+3}], v[{q}:{q+3}], {c}")
    def pv(n, half):
        i, j = (n // 4) % 4, n % 4
        d = O + 16 * j; v = KV + 16 * i + 8 + 4 * half; p = P + 8 * (n % 2) + 4 * half
        e(f"v_mfma_f32_32x32x16_bf16 v[{d}:{d+15}], v[{v}:{v+3}], v[{p}:{p+3}], v[{d}:{d+15}]")
    def sm(n, g):
        s = Sx + 16 * (n % 2) + 4 * g; p = P + 8 * (n % 2) + 2 * g
        for k in range(4): e(f"v_exp_f32 v{s+k}, v{s+k}")
        e(f"v_cvt_pk_bf16_f32 v{p}, v{s}, v{s+1}")
        e(f"v_cvt_pk_bf16_f32 v{p+1}, v{s+2}, v{s+3}")
    a.vm_wait("kv0")
    sp.stamp("preloop")
    qk(0, 0); qk(0, 1)
    e(f"s_mov_b32 s{sIt}, 3")
    e("s_nop 7")
    a.raw(".p2align 6")
    a.label("L_loop")
    start = len(a.lines)
    for n in range(16, 32):
        i, j = (n // 4) % 4, n % 4
        if j == 3: e("s_waitcnt vmcnt(8)")
        qk(n + 1, 0); sm(n, 0)
        qk(n + 1, 1); sm(n, 1)
        pv(n - 1, 0); sm(n, 2)
        pv(n - 1, 1)
        if j == 0:
            for k in range(0 if opt.get("x_nokv") else 4):
                r = KV + 16 * ((i + 3) % 4) + 4 * k
                e(f"buffer_load_dwordx4 v[{r}:{r+3}], v{vSt}, {S(rK if k < 2 else rV)}, s{sRun} offen offset:{2048*(i%2) + 1024*(k%2)}{LD}")
            if i % 2:
                e(f"s_add_u32 s{sRun}, s{sRun}, 4096")
                e(f"s_and_b32 s{sRun}, s{sRun}, 0x1ffff")
            if i == 0:
                e(f"s_cmp_eq_u32 s{sIt}, 0")
                e(f"s_cselect_b32 s{rK+2}, 0, s{rK+2}")
                e(f"s_cselect_b32 s{rV+2}, 0, s{rV+2}")
        sm(n, 3)
    e(f"s_sub_u32 s{sIt}, s{sIt}, 1")
    e("s_cbranch_scc0 L_loop")
    check_loop(a.lines[start:])
    lds_wait(2, 4, T + 4, T + 5, lambda: (pv(31, 0), pv(31, 1)))
    sp.stamp("loop")
    a.vm = []
    for jj in range(1, 4):
        e(f"s_add_u32 s{sT1}, s{sW}, {jj}")
        e(f"s_and_b32 s{sT1}, s{sT1}, 3")
        e(f"s_mul_i32 s{sT1}, s{sT1}, 12288")
        e(f"s_add_u32 s{sT1}, s{sT1}, {ATT_LDS}")
        e(f"v_add_u32 v{T+jj}, s{sT1}, v{vSt}")
        for q in range(4):
            r = O + 16 * jj + 4 * q
            a.ds_op(f"ds_write_b128 v{T+jj}, v[{r}:{r+3}] offset:{(jj-1)*4096 + q*1024}")
    e(f"s_mul_i32 s{sT1}, s{sW}, 12288")
    e(f"s_add_u32 s{sT1}, s{sT1}, {ATT_LDS}")
    e(f"v_add_u32 v{T}, s{sT1}, v{vSt}")
    lds_sync(7, 4, T + 4, T + 5)
    for p in range(3):
        for q in range(4):
            r = O + 16 + 16 * p + 4 * q
            a.ds_op(f"ds_read_b128 v[{r}:{r+3}], v{T} offset:{p*4096 + q*1024}", f"p{p}")
    for p in range(3):
        a.ds_wait(f"p{p}")
        for k in range(16): e(f"v_add_f32 v{O+k}, v{O+k}, v{O+16+16*p+k}")
    a.label("L_norm")
    e(f"v_mov_b32 v{T}, v{O+12}")
    e(f"v_mov_b32 v{T+1}, v{O+12}")
    e(f"v_permlane32_swap_b32 v{T}, v{T+1}")
    e(f"v_rcp_f32 v{T}, v{T+1}")
    e(f"v_mov_b32 v{T+2}, 0")
    for k in range(16): e(f"v_mul_f32 v{O+k}, v{O+k}, v{T}")
    for k in range(8): e(f"v_cvt_pk_bf16_f32 v{P+k}, v{O+2*k}, v{O+2*k+1}")
    e(f"v_cndmask_b32 v{P+6}, 0, v{P+6}, vcc")
    e(f"v_cndmask_b32 v{P+7}, 0, v{P+7}, vcc")
    e(f"buffer_store_dwordx4 v[{P}:{P+3}], v{vSt}, {S(rWS)}, s{sOoff} offen{ST}")
    e(f"buffer_store_dwordx4 v[{P+4}:{P+7}], v{vSt}, {S(rWS)}, s{sOoff} offen offset:1024{ST}")
    for k in range(16): e(f"v_fmac_f32 v{T+2}, 0, v{O+k}")
    e(f"v_mov_b32 v{T+3}, {hexf(2.0**-(BIAS+8))}")
    e(f"v_cmp_u_f32 s[66:67], v{T+2}, v{T+2}")
    e(f"v_cmp_lt_f32 s[74:75], v{T+1}, v{T+3}")
    e(f"s_or_b64 s[66:67], s[66:67], s[74:75]")
    e(f"s_cmp_eq_u64 s[66:67], 0")
    e(f"s_cselect_b32 s{sT1}, 1, s{sFlag}")
    e(f"s_cmp_eq_u32 s{sT1}, 0")
    e(f"s_cbranch_scc1 L_slow")
    e(f"s_waitcnt vmcnt(0)")
    sp.stamp("ost")
    e(f"s_lshl2_add_u32 s{sT2}, s{sQB}, s{sW}")
    signal(sT2, 28, T + 4, T + 5)
    lds_arrive(9, T + 6, T + 7)
    hdiag(0)
    sp.dump(pWS, sW)
    e("s_endpgm")
    a.label("L_slow")
    a.reset_hist()
    e(f"s_waitcnt vmcnt(0)")
    e(f"s_mov_b32 s{sFlag}, 1")
    e(f"s_mov_b32 s{rK+2}, 0x20000")
    e(f"s_mov_b32 s{rV+2}, 0x20000")
    e(f"v_cndmask_b32 v{Q+6}, 0, v{Q+6}, vcc")
    e(f"v_cndmask_b32 v{Q+7}, 0, v{Q+7}, vcc")
    e(f"v_mov_b32 v{M}, 0xff800000")
    e(f"s_mov_b32 s{sRun}, 0")
    e(f"s_mov_b32 s{sIt}, 64")
    a.label("L_s1")
    start = len(a.lines)
    e(f"buffer_load_dwordx4 v[{KV}:{KV+3}], v{vSt}, {S(rK)}, s{sRun} offen{LD}")
    e(f"buffer_load_dwordx4 v[{KV+4}:{KV+7}], v{vSt}, {S(rK)}, s{sRun} offen offset:1024{LD}")
    e("s_waitcnt vmcnt(0)")
    e(f"v_mfma_f32_32x32x16_bf16 v[{Sx}:{Sx+15}], v[{KV}:{KV+3}], v[{Q}:{Q+3}], 0")
    e(f"v_mfma_f32_32x32x16_bf16 v[{Sx}:{Sx+15}], v[{KV+4}:{KV+7}], v[{Q+4}:{Q+7}], v[{Sx}:{Sx+15}]")
    for k in range(8): e(f"v_max3_f32 v{M}, v{M}, v{Sx+2*k}, v{Sx+2*k+1}")
    e(f"s_add_u32 s{sRun}, s{sRun}, 2048")
    e(f"s_sub_u32 s{sIt}, s{sIt}, 1")
    e(f"s_cmp_lg_u32 s{sIt}, 0")
    e("s_cbranch_scc1 L_s1")
    check_loop(a.lines[start:])
    patch([0], 0.0)
    for r in range(16): e(f"v_mov_b32 v{O+r}, 0")
    e(f"s_mov_b32 s{sRun}, 0")
    e(f"s_mov_b32 s{sIt}, 64")
    a.label("L_s2")
    start = len(a.lines)
    for k in range(4):
        e(f"buffer_load_dwordx4 v[{KV+4*k}:{KV+4*k+3}], v{vSt}, {S(rK if k < 2 else rV)}, s{sRun} offen offset:{1024*(k%2)}{LD}")
    e("s_waitcnt vmcnt(0)")
    qk(0, 0); qk(0, 1)
    for g in range(4): sm(0, g)
    pv(0, 0); pv(0, 1)
    e(f"s_add_u32 s{sRun}, s{sRun}, 2048")
    e(f"s_sub_u32 s{sIt}, s{sIt}, 1")
    e(f"s_cmp_lg_u32 s{sIt}, 0")
    e("s_nop 11")
    e("s_cbranch_scc1 L_s2")
    check_loop(a.lines[start:])
    e("s_branch L_norm")
    a.label("L_gemm")
    a.reset_hist(); a.vm = []; a.lg = []; sp.set(nst)
    ACCG, HR, WFR, T, WO_F, XF, GF = 16, 80, 136, 152, 160, 224, 136
    OF = HR
    GF = 240
    vA0, vA1, vIO, vCt = 4, 5, 6, 7
    sH0, sH1, sI0 = 59, 60, 61
    DP = opt.get("gdepth", 5)
    PACE = opt.get("pace", 4)
    def pace():
        nonlocal PACE
        if PACE and len(a.vm) > PACE:
            e(f"s_waitcnt vmcnt({PACE})"); a.vm = a.vm[-PACE:]
    e(f"s_setprio 2")
    e(f"s_waitcnt vmcnt(0)")
    last_signals(0, 8, sRB, 12, T, T + 1)
    e(f"s_cmp_ge_u32 s{sJ}, 28")
    e(f"s_cbranch_scc1 L_end")
    e(f"s_setprio {opt.get('gprio0', 2)}")
    srd(a, rW, pWO, WO_BYTES)
    e(f"s_sub_u32 s{sWq}, s{sW}, 4")
    e(f"s_mul_i32 s{sT1}, s{sJ}, 37")
    e(f"s_lshr_b32 s{sT1}, s{sT1}, 8")
    e(f"s_mul_i32 s{sT2}, s{sT1}, 7")
    e(f"s_sub_u32 s{sCB}, s{sJ}, s{sT2}")
    e(f"s_lshl2_add_u32 s{sTB}, s{sX}, s{sT1}")
    e(f"s_lshl_b32 s{sCB}, s{sCB}, 7")
    e(f"s_mul_i32 s{sLB}, s{sWq}, 12288")
    dma_voff(a, vLane, vD, T, T + 1)
    e(f"v_and_b32 v{T}, 31, v{vLane}")
    e(f"v_mul_u32_u24 v{T}, 896, v{T}")
    e(f"v_lshrrev_b32 v{T+1}, 5, v{vLane}")
    e(f"v_lshl_add_u32 v{vIO}, v{T+1}, 3, v{T}")
    e(f"s_and_b32 s{sT1}, s{sWq}, 1")
    e(f"s_lshl1_add_u32 s{sT3}, s{sTB}, s{sT1}")
    e(f"s_mul_i32 s{sI0}, s{sT3}, {32*896}")
    e(f"s_add_u32 s{sI0}, s{sI0}, s{sCB}")
    e(f"s_lshr_b32 s{sT2}, s{sWq}, 1")
    e(f"s_lshl_b32 s{sT2}, s{sT2}, 6")
    e(f"s_add_u32 s{sI0}, s{sI0}, s{sT2}")
    def issue_w(s):
        st = s % 6
        e(f"s_add_u32 m0, s{sLB}, {st*2048}")
        e(f"s_add_u32 s{sT1}, s{sWo}, {8*896}")
        a.vm_op(f"buffer_load_dwordx4 v{vD}, {S(rB)}, s{sWo} offen lds", f"s{s}")
        e(f"s_add_u32 m0, s{sLB}, {st*2048+1024}")
        e(f"s_add_u32 s{sWo}, s{sWo}, {16*896}")
        a.vm_op(f"buffer_load_dwordx4 v{vD}, {S(rB)}, s{sT1} offen lds", f"s{s}")
    srd(a, rB, pW2, W2_BYTES)
    e(f"s_mul_i32 s{sWo}, s{sWq}, {448*896}")
    e(f"s_add_u32 s{sWo}, s{sWo}, s{sCB}")
    for s in range(6): issue_w(s); pace()
    e(f"s_mul_i32 s{sH0}, s{sT3}, 112")
    e(f"s_xor_b32 s{sT3}, s{sT3}, 1")
    e(f"s_mul_i32 s{sH1}, s{sT3}, 112")
    e(f"s_mul_i32 s{sT1}, s{sWq}, 28")
    e(f"s_add_u32 s{sT1}, s{sT1}, {H_OFF >> 10}")
    e(f"s_add_u32 s{sH0}, s{sH0}, s{sT1}")
    e(f"s_add_u32 s{sH1}, s{sH1}, s{sT1}")
    e(f"s_lshl_b32 s{sH0}, s{sH0}, 10")
    e(f"s_lshl_b32 s{sH1}, s{sH1}, 10")
    e(f"s_xor_b32 s{sT2}, s{sT2}, s{sLB}")
    tr_addr(a, vLane, vA0, vA1, T, T + 1, T + 2, sT2, xor=True)
    def wr(s, d0, off, wait=True):
        if wait: a.vm_wait(f"s{s}")
        for ct in range(2):
            d = d0 + ct * 4
            ad = vA0 if ct == 0 else vA1
            a.ds_op(f"ds_read_b64_tr_b16 v[{d}:{d+1}], v{ad} offset:{off}", f"w{s}")
            a.ds_op(f"ds_read_b64_tr_b16 v[{d+2}:{d+3}], v{ad} offset:{off+1024}", f"w{s}")
    e(f"s_lshr_b32 s{sT1}, s{sTB}, 1")
    e(f"s_lshl_b32 s{sT1}, s{sT1}, 7")
    e(f"s_add_u32 s{sT1}, s{sT1}, {12*128}")
    e(f"v_mov_b32 v{vCt}, s{sT1}")
    def issue_h(s):
        st = s % 6
        off = (s % 4) * 1024
        a.vm_op(f"buffer_load_dwordx4 v[{HR+8*st}:{HR+8*st+3}], v{vSt}, {S(rWS)}, s{sH0} offen offset:{off}{LD}", f"s{s}")
        a.vm_op(f"buffer_load_dwordx4 v[{HR+8*st+4}:{HR+8*st+7}], v{vSt}, {S(rWS)}, s{sH1} offen offset:{off}{LD}", f"s{s}")
        if s % 4 == 3:
            e(f"s_add_u32 s{sH0}, s{sH0}, 4096")
            e(f"s_add_u32 s{sH1}, s{sH1}, 4096")
    e(f"s_cmp_lg_u32 s{sWq}, 0")
    e(f"s_cbranch_scc1 L_hw")
    poll(vCt, T + 1, 16, opt.get("hsleep", 12))
    lds_arrive(8, T, T + 1)
    a.label("L_hw")
    lds_spin(8, 1, T, T + 1, 3)
    e(f"s_waitcnt vmcnt(0)")
    sp.stamp("hrdy")
    for s in range(DP): issue_h(s)
    e(f"s_setprio {opt.get('gprio', 0)}")
    def mm(s, w, h):
        for ct in range(2):
            for tt in range(2):
                d = ACCG + (2*ct+tt) * 16
                c = "0" if s == 0 else f"v[{d}:{d+15}]"
                e(f"v_mfma_f32_32x32x16_bf16 v[{d}:{d+15}], v[{w+4*ct}:{w+4*ct+3}], v[{h+4*tt}:{h+4*tt+3}], {c}")
    wr(0, WFR, 0)
    TOP = opt.get("gtop", 0)
    for s in range(28):
        if TOP and s > 0:
            if s + 1 < 28: a.vm_wait(f"s{s+1}")
            if 6 <= s + DP - 1 < 28: issue_w(s + DP - 1)
            if s + DP - 1 < 28: issue_h(s + DP - 1)
        if s + 1 < 28: wr(s + 1, WFR + ((s + 1) % 2) * 8, ((s + 1) % 6) * 2048)
        a.ds_wait(f"w{s}")
        if not opt.get("x_nogm") or s == 0: mm(s, WFR + (s % 2) * 8, HR + 8 * (s % 6))
        if opt.get("x_nogl") or TOP: continue
        if 6 <= s + DP < 28: issue_w(s + DP)
        if s + DP < 28: issue_h(s + DP)
    sp.stamp("w2")
    e(f"s_setprio {opt.get('gprio2', 2)}")
    e(f"s_mul_i32 s{sH0}, s{sWq}, 15360")
    PACE = opt.get("pace2", 6)
    e(f"s_mul_i32 s{sWo}, s{sWq}, {112*896}")
    e(f"s_add_u32 s{sWo}, s{sWo}, s{sCB}")
    for i in range(15):
        e(f"s_add_u32 m0, s{sH0}, {WO_LDS + i*1024}")
        if i: e(f"s_add_u32 s{sWo}, s{sWo}, {8*896}")
        a.vm_op(f"buffer_load_dwordx4 v{vD}, {S(rW)}, s{sWo} offen lds", "wo")
        pace()
    XG = HR
    for q in range(4):
        a.vm_op(f"buffer_load_dwordx2 v[{XG+2*q}:{XG+2*q+1}], v{vIO}, {S(rX)}, s{sI0} offen offset:{16*q}", "xg")
        pace()
    e(f"s_setprio {opt.get('gprio3', 0)}")
    def exchange(k):
        for sl in range(1, 4):
            x = (sl >> 1) * 2 + (sl & 1)
            e(f"s_xor_b32 s{sT1}, s{sWq}, {((sl >> 1) << 1) | (sl & 1)}")
            e(f"s_mul_i32 s{sT1}, s{sT1}, 12288")
            e(f"v_add_u32 v{T+sl}, s{sT1}, v{vSt}")
            for q in range(4):
                r = ACCG + 16 * sl + 4 * q
                a.ds_op(f"ds_write_b128 v{T+sl}, v[{r}:{r+3}] offset:{(sl-1)*4096 + q*1024}")
        e(f"v_add_u32 v{T}, s{sLB}, v{vSt}")
        lds_sync(k, 4, T + 1, T + 2)
        for p in range(3):
            for q in range(4):
                r = ACCG + 16 + 16 * p + 4 * q
                a.ds_op(f"ds_read_b128 v[{r}:{r+3}], v{T} offset:{p*4096 + q*1024}", f"p{p}")
        for p in range(3):
            a.ds_wait(f"p{p}")
            for kk in range(16): e(f"v_add_f32 v{ACCG+kk}, v{ACCG+kk}, v{ACCG+16+16*p+kk}")
    lds_sync(3, 4, T + 1, T + 2)
    exchange(4)
    U = ACCG + 16
    for k in range(16): e(f"v_mul_f32 v{U+k}, {hexf(-LOG2E)}, v{ACCG+k}")
    for k in range(16): e(f"v_exp_f32 v{U+k}, v{U+k}")
    for k in range(16): e(f"v_add_f32 v{U+k}, 1.0, v{U+k}")
    for k in range(16): e(f"v_rcp_f32 v{U+k}, v{U+k}")
    for k in range(16): e(f"v_mul_f32 v{GF+k}, v{ACCG+k}, v{U+k}")
    e(f"s_mul_i32 s{sT2}, s{sWq}, 15360 - 12288")
    e(f"s_add_u32 s{sT2}, s{sT2}, {WO_LDS}")
    e(f"v_add_u32 v{vA0}, s{sT2}, v{vA0}")
    e(f"v_add_u32 v{vA1}, s{sT2}, v{vA1}")
    a.vm_wait("xg")
    for s in range(8):
        wr(100 + s, WO_F + 8 * s, (28 * (s // 2) + 16 * (s % 2)) * 128, wait=False)
    for k in range(8):
        e(f"v_lshlrev_b32 v{XF+2*k}, 16, v{XG+k}")
        e(f"v_and_b32 v{XF+2*k+1}, 0xffff0000, v{XG+k}")
    a.ds_wait_all()
    lds_sync(5, 4, T + 1, T + 2)
    srd(a, rW3, pOUT, X_BYTES)
    e(f"s_and_b32 s{sT1}, s{sWq}, 1")
    e(f"s_lshl1_add_u32 s{sT1}, s{sTB}, s{sT1}")
    e(f"s_lshl_b32 s{sH0}, s{sT1}, 15")
    e(f"s_lshl_b32 s{sT1}, s{sWq}, 13")
    e(f"s_add_u32 s{sH0}, s{sH0}, s{sT1}")
    e(f"s_add_u32 s{sH0}, s{sH0}, {O_OFF}")
    e(f"s_xor_b32 s{sH1}, s{sH0}, 32768")
    e(f"v_min_u32 v{T}, 1, v{vLane}")
    e(f"s_lshl1_add_u32 s{sT1}, s{sTB}, 28")
    e(f"v_add_lshl_u32 v{vCt}, v{T}, s{sT1}, 7")
    e(f"v_lshrrev_b32 v{T}, 5, v{vLane}")
    e(f"v_lshl_add_u32 v{vIO}, v{T}, 3, v{vIO}")
    sp.stamp("grdy")
    lds_spin(9, 4, T, T + 1, 3)
    e(f"s_setprio 2")
    poll(vCt, T + 1, 16, opt.get("osleep", 1))
    sp.stamp("ordy")
    for s in range(8):
        if s == 4:
            e(f"s_add_u32 s{sH0}, s{sH0}, 4096")
            e(f"s_add_u32 s{sH1}, s{sH1}, 4096")
        a.vm_op(f"buffer_load_dwordx4 v[{OF+8*s}:{OF+8*s+3}], v{vSt}, {S(rWS)}, s{sH0} offen offset:{(s%4)*1024}{LD}", f"o{s}")
        a.vm_op(f"buffer_load_dwordx4 v[{OF+8*s+4}:{OF+8*s+7}], v{vSt}, {S(rWS)}, s{sH1} offen offset:{(s%4)*1024}{LD}", f"o{s}")
    for s in range(8):
        a.vm_wait(f"o{s}")
        mm(s, WO_F + 8 * s, OF + 8 * s)
    exchange(6)
    for k in range(16): e(f"v_fma_f32 v{ACCG+k}, v{ACCG+k}, v{GF+k}, v{XF+k}")
    for k in range(8): e(f"v_cvt_pk_bf16_f32 v{U+k}, v{ACCG+2*k}, v{ACCG+2*k+1}")
    for pr in range(2):
        e(f"v_permlane32_swap_b32 v{U+4*pr}, v{U+4*pr+2}")
        e(f"v_permlane32_swap_b32 v{U+4*pr+1}, v{U+4*pr+3}")
    e(f"buffer_store_dwordx4 v[{U}:{U+3}], v{vIO}, {S(rW3)}, s{sI0} offen{opt.get('ost', '')}")
    e(f"buffer_store_dwordx4 v[{U+4}:{U+7}], v{vIO}, {S(rW3)}, s{sI0} offen offset:32{opt.get('ost', '')}")
    hdiag(1)
    sp.stamp("end")
    sp.dump(pWS, sW)
    a.label("L_end")
    e("s_endpgm")
    return kd(NAME, 256)

if __name__ == "__main__":
    opt = json.loads(sys.argv[2]) if len(sys.argv) > 2 else {}
    a = Asm()
    a.raw("; one workgroup per CU; workgroups hand data over through d_ws (write-through stores + counters)")
    a.raw("; @launch grid=(256,1,1) block=(512,1,1) lds=163840")
    a.raw('.amdgcn_target "amdgcn-amd-amdhsa--gfx950"')
    a.raw(".text")
    k = gen(a, opt)
    a.raw("L_code_end:")
    a.raw(".fill 64, 4, 0xbf800000")
    a.raw("    s_endpgm")
    a.raw('.section .rodata,"a"')
    a.raw(k)
    open(sys.argv[1], "w").write(a.text())
    print("nops inserted:", a.nops, "lines:", len(a.lines))
```

```python
import sys, json
from common import *
from gemm64 import *
BIAS = 32.0
NAME = "recurrent_scan__softmax_full_mha__glu_gated_swiglu__prompt_kernel"

def gen(a, opt):
    ST = opt.get("st", " sc1")
    LD = " sc1"
    NPH = opt.get("nph", 2)
    kernel_head(a, NAME)
    e = a.e
    uid = [0]
    def lab(p):
        uid[0] += 1; return f"L_{p}{uid[0]}"
    pX, pWQ, pWO, pW1, pW3, pW2, pOUT, pDBG, pWS = 4, 6, 8, 12, 14, 16, 18, 20, 22
    rX, rW1, rW3, rA, rB, rWS = 24, 28, 32, 36, 40, 44
    S = lambda r: f"s[{r}:{r+3}]"
    sW, sTT, sG, sRB, sCOL, sTTG = 48, 49, 50, 51, 52, 53
    sSO = [[54, 55], [56, 56], [57, 57]]
    sP64, sM0, sCurA, sCurB, sOnes, sLo, sHi, sHoff, sQKoff, sQKstep = 58, 59, 60, 61, 62, 63, 64, 65, 66, 67
    sT1, sT2, sT3, sStat, sPh, sHoff2 = 68, 69, 70, 71, 72, 73
    X0, AA, AB, WF, T0 = 16, 128, 160, 192, 216
    vLane, vSt, vD0, vD1, vD2B = 1, 2, 3, 4, 250
    vTB = [[5, 6], [7, 8], [9, 243]]
    vTW = [10, 11]
    vXR = [12, 13, 14, 15]
    vK, vC1, vSc, vP6, vP7, vFlag, vV3, vV4 = 232, 233, 234, 236, 237, 238, 239, 235
    vXW = [240, 241]; vStat = 242; vNM = 243; vAcc = [244, 245, 246, 247]; vV1, vV2 = 248, 249
    vDum = 251
    RAW = 128
    SCR = 7 * 16384
    SYNC = 163840 - 256
    e("s_cmp_ge_u32 s2, 256")
    e("s_cbranch_scc1 L_end")
    sp = Stamper(a, opt.get("stamp"), 0)
    sp.stamp("rt", True); sp.stamp("start")
    if opt.get("hdiag"): e("s_memrealtime s[76:77]"); e("s_memtime s[78:79]")
    e("s_load_dwordx16 s[4:19], s[0:1], 0")
    e("s_load_dwordx4 s[20:23], s[0:1], 64")
    RL = 3
    sWR, sXa, sXb, sGS = sStat, sOnes, sLo, sHi
    e(f"v_lshrrev_b32 v22, 6, v0")
    e(f"v_and_b32 v{vLane}, 63, v0")
    e(f"v_readfirstlane_b32 s{sW}, v22")
    e(f"s_and_b32 s{sT1}, s2, 1")
    e(f"s_bfe_u32 s{sT2}, s2, 0x30003")
    e(f"s_lshl3_add_u32 s{sRB}, s{sT1}, s{sT2}")
    e(f"s_bfe_u32 s{sT1}, s2, 0x20001")
    e(f"s_lshr_b32 s{sT2}, s2, 6")
    e(f"s_lshl2_add_u32 s{sCOL}, s{sT1}, s{sT2}")
    e(f"v_bfe_u32 v22, v0, 3, 3")
    e(f"v_and_b32 v23, 7, v0")
    e(f"s_lshl_b32 s{sT1}, s{sT2}, 2")
    e(f"s_and_b32 s{sWR}, s{sT1}, 4")
    e(f"s_xor_b32 s{sWR}, s{sWR}, s{sW}")
    e(f"s_and_b32 s{sGS}, s{sT1}, 8")
    e(f"s_lshl3_add_u32 s{sT1}, s{sRB}, s{sWR}")
    e(f"s_lshl4_add_u32 s{sT2}, s{sT1}, s{sGS}")
    e(f"s_xor_b32 s{sT1}, s{sT2}, 8")
    e(f"s_mulk_i32 s{sT2}, 896")
    e(f"s_mulk_i32 s{sT1}, 896")
    e(f"v_mul_u32_u24 v24, 896, v22")
    e(f"v_lshl_add_u32 v24, v23, 4, v24")
    e(f"s_mov_b32 s{rX+2}, {hex(X_BYTES)}")
    e(f"s_mov_b32 s{rX+3}, 0x20000")
    e(f"s_cmp_ge_u32 s{sW}, 4")
    e("s_waitcnt lgkmcnt(0)")
    e(f"s_mov_b64 s[{rX}:{rX+1}], s[{pX}:{pX+1}]")
    def xloads(lo, hi, sa, sb):
        for k in range(lo, hi):
            gi, i = divmod(k, 7)
            r = RAW + k * 4
            e(f"buffer_load_dwordx4 v[{r}:{r+3}], v24, {S(rX)}, s{sa if gi == 0 else sb} offen offset:{i*128}")
    def touch():
        sh = opt.get("touchsh", 21)
        e(f"v_min_u32 v25, {(WS_USED >> sh) - 1}, v{vLane}")
        e(f"v_lshlrev_b32 v25, {sh}, v25")
        e(f"global_load_dword v{vDum+1}, v25, s[{pWS}:{pWS+1}]")
        e(f"v_mov_b32 v25, 0")
        for p in (pW1, pW3, pWQ, pW2, pWO, pOUT, pDBG):
            e(f"global_load_dword v{vDum+1}, v25, s[{p}:{p+1}]")
    XE = opt.get("xe", 10)
    e(f"s_cbranch_scc1 L_x0")
    a.skip_begin(); xloads(0, XE, sT2, sT1)
    e(f"s_branch L_x1")
    a.label("L_x0")
    e(f"s_getpc_b64 s[74:75]")
    a.label("L_pc")
    e(f"s_add_u32 s74, s74, {NAME}-L_pc")
    e(f"s_addc_u32 s75, s75, -1")
    e(f"s_lshr_b32 s3, s2, 3")
    e(f"s_lshl_b32 s3, s3, 7")
    e(f"v_and_b32 v20, 255, v0")
    e(f"v_lshl_add_u32 v20, v20, 12, s3")
    e(f"v_min_u32 v{vDum}, L_code_end-{NAME}-4, v20")
    e(f"global_load_dword v{vDum}, v{vDum}, s[74:75]")
    if opt.get("touch") == 1: touch()
    a.skip_end()
    a.label("L_x1")
    sp.stamp("xiss", lvl=3)
    e(f"s_mov_b32 s{sXa}, s{sT2}")
    e(f"s_mov_b32 s{sXb}, s{sT1}")
    def srd2(d, base, nbytes):
        e(f"s_mov_b64 s[{d}:{d+1}], s[{base}:{base+1}]")
        e(f"s_mov_b32 s{d+2}, {hex(nbytes)}")
        e(f"s_mov_b32 s{d+3}, 0x20000")
    srd2(rWS, pWS, WS_USED)
    e(f"s_or_b32 s{sT3}, s2, s{sW}")
    e(f"s_cbranch_scc1 L_noinit")
    a.skip_begin()
    e(f"v_lshlrev_b32 v25, 7, v{vLane}")
    e(f"v_mov_b32 v26, 0")
    e(f"s_mov_b32 s3, {CNT_OFF}")
    for q in range(5):
        if q: e(f"s_add_u32 s3, s3, 8192")
        e(f"buffer_store_dword v26, v25, {S(rWS)}, s3 offen sc1")
    a.skip_end()
    a.label("L_noinit")
    e(f"s_and_b32 s{sTT}, s{sW}, 3")
    e(f"s_lshr_b32 s{sG}, s{sW}, 2")
    e(f"s_lshl_b32 s{sM0}, s{sW}, 10")
    e(f"s_lshl_b32 s{sPh}, s{sG}, 1")
    sTc0a, sTc0b = sCurA, sCurB
    e(f"s_cmp_ge_u32 s{sCOL}, 12")
    e(f"s_cbranch_scc1 L_r0f")
    srd2(rA, pWQ, WQ_BYTES)
    e(f"s_mov_b64 s[{rB}:{rB+1}], s[{pWQ}:{pWQ+1}]")
    e(f"s_and_b32 s{sT2}, s{sCOL}, 3")
    e(f"s_mul_i32 s{sSO[0][0]}, s{sCOL}, 224")
    e(f"s_cmp_eq_u32 s{sT2}, 3")
    e(f"s_cselect_b32 s{sT3}, 32, 0")
    e(f"s_sub_u32 s{sSO[0][0]}, s{sSO[0][0]}, s{sT3}")
    e(f"s_add_u32 s{sSO[0][1]}, s{sSO[0][0]}, 128")
    e(f"s_mul_i32 s{sTc0a}, s{sG}, 112")
    e(f"s_add_u32 s{sTc0a}, s{sTc0a}, s{sT3}")
    e(f"s_add_u32 s{sTc0b}, s{sTc0a}, 56")
    e(f"s_movk_i32 s{sP64}, 2688")
    e(f"s_branch L_r0j")
    a.label("L_r0f")
    srd2(rA, pW1, W1_BYTES)
    e(f"s_mov_b64 s[{rB}:{rB+1}], s[{pW3}:{pW3+1}]")
    e(f"s_add_u32 s{sT1}, s{sCOL}, 12")
    e(f"s_lshl_b32 s{sSO[0][0]}, s{sT1}, 7")
    e(f"s_mov_b32 s{sSO[0][1]}, s{sSO[0][0]}")
    e(f"s_lshl_b32 s{sTc0a}, s{sG}, 6")
    e(f"s_add_u32 s{sTc0b}, s{sTc0a}, 128")
    e(f"s_movk_i32 s{sP64}, 3584")
    a.label("L_r0j")
    a.reset_hist()
    e(f"s_mov_b32 s{rB+2}, s{rA+2}")
    e(f"s_mov_b32 s{rB+3}, 0x20000")
    e(f"s_and_b32 s{sT3}, s{sRB}, 7")
    if opt.get("wpf0", 1):
        e(f"s_cmp_{'lt' if opt.get('wpf0', 2) == 1 else 'ge'}_u32 s{sW}, 4")
        e(f"s_cbranch_scc1 L_w0")
        a.skip_begin()
        e(f"s_mul_i32 s{sT2}, s{sTT}, 48")
        e(f"s_add_u32 s{sT2}, s{sT2}, s{sT3}")
        e(f"v_min_u32 v30, 5, v{vLane}")
        e(f"v_lshl_add_u32 v30, v30, 3, s{sT2}")
        e(f"v_mul_lo_u32 v30, v30, s{sP64}")
        e(f"buffer_load_dword v{vDum+1}, v30, {S(rA)}, s{sSO[0][0]} offen")
        e(f"buffer_load_dword v{vDum+1}, v30, {S(rB)}, s{sSO[0][1]} offen")
        a.skip_end()
        a.label("L_w0")
    e(f"v_lshrrev_b32 v25, 2, v{vLane}")
    e(f"v_and_b32 v25, 4, v25")
    e(f"v_xor_b32 v25, v25, v23")
    e(f"v_lshl_add_u32 v26, s{sW}, 3, v22")
    e(f"v_mul_lo_u32 v{vD0}, v26, s{sP64}")
    e(f"v_lshl_add_u32 v{vD0}, v25, 4, v{vD0}")
    e(f"v_mul_u32_u24 v{vD1}, 3584, v26")
    e(f"v_lshl_add_u32 v{vD1}, v25, 4, v{vD1}")
    e(f"s_lshl_b32 s{sT1}, s{sP64}, 5")
    e(f"v_subrev_u32 v32, s{sT1}, v{vD0}")
    vRow, vSwz, vCol = vV1, vV2, vV3
    e(f"v_lshrrev_b32 v26, 5, v{vLane}")
    e(f"v_bfe_u32 v27, v{vLane}, 2, 2")
    e(f"v_lshl_add_u32 v27, v26, 3, v27")
    e(f"v_lshlrev_b32 v{vRow}, 7, v27")
    e(f"v_and_b32 v28, 8, v{vLane}")
    e(f"v_lshlrev_b32 v{vSwz}, 3, v28")
    e(f"v_and_b32 v29, 3, v{vLane}")
    e(f"v_and_b32 v30, 16, v{vLane}")
    e(f"v_lshlrev_b32 v30, 1, v30")
    e(f"v_lshl_add_u32 v{vCol}, v29, 3, v30")
    def traddr(d, stc, t0, t1):
        return [f"v_add_u32 v{t0}, s{stc}, v{vCol}", f"v_and_b32 v{t1}, 127, v{t0}", f"v_xor_b32 v{t1}, v{t1}, v{vSwz}",
                f"v_and_b32 v{t0}, 128, v{t0}", f"v_lshl_add_u32 v{t0}, v{t0}, 6, v{t1}", f"v_add_u32 v{d}, v{t0}, v{vRow}"]
    for t in traddr(vTB[0][0], sTc0a, 30, 31) + traddr(vTB[0][1], sTc0b, 30, 31): e(t)
    e(f"s_and_b32 s{sT1}, s{sWR}, 1")
    e(f"s_lshl4_add_u32 s{sT1}, s{sT1}, s{sGS}")
    e(f"v_add_u32 v30, s{sT1}, v22")
    e(f"v_xor_b32 v30, v30, v23")
    e(f"v_lshlrev_b32 v30, 4, v30")
    e(f"v_lshrrev_b32 v31, 1, v23")
    e(f"v_lshl_add_u32 v30, v31, 12, v30")
    e(f"v_and_b32 v31, 1, v23")
    e(f"v_lshl_add_u32 v30, v31, 9, v30")
    e(f"s_lshr_b32 s{sT1}, s{sWR}, 1")
    e(f"v_lshl_add_u32 v{vXW[0]}, s{sT1}, 10, v30")
    e(f"v_add_u32 v{vXW[1]}, 0x10000, v{vXW[0]}")
    e(f"v_and_b32 v30, 31, v{vLane}")
    e(f"v_xor_b32 v30, v30, v26")
    e(f"v_lshlrev_b32 v30, 4, v30")
    e(f"v_lshl_add_u32 v30, v26, 9, v30")
    e(f"v_lshl_add_u32 v{vXR[0]}, s{sTT}, 10, v30")
    for q in range(1, 4):
        e(f"v_xor_b32 v{vXR[q]}, {q*4096 + q*32}, v{vXR[0]}")
    e(f"s_lshl4_add_u32 s{sT1}, s{sWR}, s{sGS}")
    e(f"v_add_lshl_u32 v{vStat}, v22, s{sT1}, 2")
    e(f"s_mul_i32 s{sT2}, s{sTT}, 112")
    e(f"s_add_u32 s{sT1}, s{sT3}, s{sT2}")
    e(f"v_min_u32 v30, 13, v{vLane}")
    e(f"v_lshl_add_u32 v30, v30, 3, s{sT1}")
    e(f"v_mul_u32_u24 v{vDum+3}, 3584, v30")
    e(f"s_lshl_b32 s{sT2}, s{sTT}, 6")
    e(f"s_add_u32 s{sT1}, s{sT3}, s{sT2}")
    e(f"s_add_u32 s{sT1}, s{sT1}, 192")
    e(f"v_min_u32 v31, 7, v{vLane}")
    e(f"v_lshl_add_u32 v31, v31, 3, s{sT1}")
    e(f"v_mul_lo_u32 v{vDum+2}, v31, s{sP64}")
    e(f"s_lshl_b32 s{sP64}, s{sP64}, 6")
    srd2(rW1, pW1, W1_BYTES)
    srd2(rW3, pW3, W1_BYTES)
    e(f"s_lshl_b32 s{sSO[1][0]}, s{sCOL}, 7")
    e(f"s_lshr_b32 s{sT1}, s{sCOL}, 1")
    e(f"s_add_u32 s{sT1}, s{sT1}, 16")
    e(f"s_lshl_b32 s{sSO[2][0]}, s{sT1}, 7")
    e(f"s_cmp_lt_u32 s{sW}, 4")
    e(f"s_cbranch_scc1 L_x2")
    a.skip_begin(); xloads(0, XE, sXa, sXb); a.skip_end()
    a.label("L_x2")
    xloads(XE, 14, sXa, sXb)
    e(f"s_lshl_b32 s{sStat}, s2, 9")
    e(f"s_add_u32 s{sStat}, s{sStat}, {ST_OFF}")
    e(f"s_mov_b32 s{sOnes}, 0x3f803f80")
    e(f"s_movk_i32 s{sLo}, 0x3f80")
    e(f"s_mov_b32 s{sHi}, 1.0")
    def slot(c):
        if c < 3: return 7 + c
        if c < 10: return c - 3
        if c == 20: return 7
        return slot(c - 9)
    dma_next = [3]
    def dma(c, track=True):
        r, cc = divmod(c, 7)
        if cc == 0:
            e(f"s_mov_b32 s{sCurA}, s{sSO[r][0]}")
            if r == 0: e(f"s_mov_b32 s{sCurB}, s{sSO[r][1]}")
        va, vb = [(vD0, vD0), (vD1, vD1), (vD1, vD2B)][r]
        sa, sb = (rA, rB) if r == 0 else (rW1, rW3)
        inc = f"s{sP64}" if r == 0 else f"{64*3584}"
        e(f"s_add_u32 m0, s{sM0}, {slot(c)*16384}")
        if cc: e(f"s_add_u32 s{sCurA}, s{sCurA}, {inc}")
        e(f"buffer_load_dwordx4 v{va}, {S(sa)}, s{sCurA} offen lds")
        e(f"s_add_u32 m0, s{sM0}, {slot(c)*16384+8192}")
        if cc and r == 0: e(f"s_add_u32 s{sCurB}, s{sCurB}, {inc}")
        e(f"buffer_load_dwordx4 v{vb}, {S(sb)}, s{sCurB if r == 0 else sCurA} offen lds")
        if track: a.vm += [f"c{c}", f"c{c}"]
    for q in range(8): e(f"v_mov_b32 v{T0+8+q}, 0")
    e(f"s_cmp_lt_u32 s{sW}, 4")
    e(f"s_cbranch_scc1 L_lnA")
    e(f"s_waitcnt vmcnt(0)")
    def dma4(c):
        dma(c, track=False)
        e(f"s_add_u32 m0, s{sM0}, {slot(c)*16384 - 4096}")
        e(f"buffer_load_dwordx4 v32, {S(rA)}, s{sCurA} offen lds")
        e(f"s_add_u32 m0, s{sM0}, {slot(c)*16384 + 8192 - 4096}")
        e(f"buffer_load_dwordx4 v32, {S(rB)}, s{sCurB} offen lds")
        a.vm += [f"c{c}"] * 4
    C2 = opt.get("c2pos", 1)
    for c in range(3 if C2 == 0 else 2): dma4(c)
    e(f"s_branch L_lnB")
    a.label("L_lnA")
    e(f"s_lshl1_add_u32 s{sCurA}, s{sP64}, s{sSO[0][0]}")
    e(f"s_lshl1_add_u32 s{sCurB}, s{sP64}, s{sSO[0][1]}")
    e(f"s_waitcnt vmcnt(0)")
    a.label("L_lnB")
    a.reset_hist()
    sp.stamp("x0"); sp.stamp("x0", lvl=3)
    AC = T0 + 8
    def reduce2(d0, d1):
        for g in range(2): e(f"v_add_f32 v{AC+4*g}, v{AC+4*g}, v{AC+4*g+1}")
        for g in range(2): e(f"v_add_f32 v{AC+4*g+2}, v{AC+4*g+2}, v{AC+4*g+3}")
        for g, d in enumerate((d0, d1)): e(f"v_add_f32 v{d}, v{AC+4*g}, v{AC+4*g+2}")
        for m in ("quad_perm:[1,0,3,2]", "quad_perm:[2,3,0,1]", "row_half_mirror"):
            for d in (d0, d1): e(f"v_add_f32_dpp v{d}, v{d}, v{d} {m} row_mask:0xf bank_mask:0xf")
    for i in range(28):
        for g in range(2): e(f"v_dot2c_f32_bf16 v{AC+4*g+i%4}, s{sOnes}, v{RAW+g*28+i}")
    reduce2(vAcc[0], vAcc[1])
    for q in range(8): e(f"v_mov_b32 v{AC+q}, 0")
    for g in range(2): e(f"v_mul_f32 v{vAcc[g]}, {hexf(-1.0/448)}, v{vAcc[g]}")
    if C2 == 1:
        e(f"s_cmp_lt_u32 s{sW}, 4")
        e(f"s_cbranch_scc1 L_c2")
        a.skip_begin(); dma4(2); a.skip_end()
        a.label("L_c2")
    sp.stamp("pre", lvl=3)
    pend = None
    for gi in range(2):
        for i in range(7):
            r = RAW + gi * 28 + i * 4
            for k in range(4):
                e(f"v_dot2_f32_bf16 v{T0+2*k}, v{r+k}, s{sLo}, v{vAcc[gi]}")
                e(f"v_dot2_f32_bf16 v{T0+2*k+1}, v{r+k}, s{sHi}, v{vAcc[gi]}")
            if pend: pend()
            for k in range(4):
                e(f"v_cvt_pk_bf16_f32 v{r+k}, v{T0+2*k}, v{T0+2*k+1}")
            def pend(r=r, gi=gi, i=i):
                off = i * 16384
                a.ds_op(f"ds_write_b128 v{vXW[off >> 16]}, v[{r}:{r+3}] offset:{off & 0xffff}", "xw")
                if i == 6 and gi == 0:
                    e(f"v_xor_b32 v{vXW[0]}, 128, v{vXW[0]}")
                    e(f"v_xor_b32 v{vXW[1]}, 128, v{vXW[1]}")
    pend()
    if C2 == 2:
        e(f"s_cmp_lt_u32 s{sW}, 4")
        e(f"s_cbranch_scc1 L_c2")
        a.skip_begin(); dma4(2); a.skip_end()
        a.label("L_c2")
    sp.stamp("post", lvl=3)
    for i in range(28):
        for g in range(2): e(f"v_dot2c_f32_bf16 v{AC+4*g+i%4}, v{RAW+g*28+i}, v{RAW+g*28+i}")
    e(f"v_mov_b32 v{T0}, {hexf(1e-5)}")
    e(f"v_mov_b32 v{T0+1}, {hexf(1e-5)}")
    e(f"v_xor_b32 v{T0+2}, 32, v{vStat}")
    reduce2(vAcc[0], vAcc[1])
    for g in range(2): e(f"v_fmac_f32 v{T0+g}, {hexf(1.0/448)}, v{vAcc[g]}")
    def wpf():
        e(f"buffer_load_dword v{vDum+1}, v{vDum+2}, {S(rA)}, s{sSO[0][0]} offen")
        e(f"buffer_load_dword v{vDum+1}, v{vDum+2}, {S(rB)}, s{sSO[0][1]} offen")
        for r in (1, 2):
            e(f"buffer_load_dword v{vDum+1}, v{vDum+3}, {S(rW1)}, s{sSO[r][0]} offen")
            e(f"buffer_load_dword v{vDum+1}, v{vDum+3}, {S(rW3)}, s{sSO[r][0]} offen")
        if opt.get("w2pf", 3) == 3:
            e(f"s_lshl2_add_u32 s{sT1}, s2, s{sW}")
            e(f"s_mul_i32 s{sT2}, s{sT1}, {13*128}")
            e(f"s_lshl_b32 s{sT1}, s{sT1}, 9")
            e(f"v_min_u32 v{vDum+2}, 12, v{vLane}")
            e(f"v_lshl_add_u32 v{vDum+2}, v{vDum+2}, 7, s{sT2}")
            e(f"v_min_u32 v{vDum+2}, {W2_BYTES-4}, v{vDum+2}")
            e(f"v_min_u32 v{vDum+3}, 3, v{vLane}")
            e(f"v_lshl_add_u32 v{vDum+3}, v{vDum+3}, 7, s{sT1}")
            e(f"v_min_u32 v{vDum+3}, {WO_BYTES-4}, v{vDum+3}")
            e(f"global_load_dword v{vDum+1}, v{vDum+2}, s[{pW2}:{pW2+1}]")
            e(f"global_load_dword v{vDum+1}, v{vDum+3}, s[{pWO}:{pWO+1}]")
    e(f"s_cmp_ge_u32 s{sW}, 4")
    e(f"s_cbranch_scc1 L_lnD")
    a.skip_begin()
    e(f"s_or_b32 s{sT3}, s2, s{sW}")
    e(f"s_cbranch_scc1 L_noflag")
    e(f"v_mov_b32 v25, 0")
    e(f"v_mov_b32 v26, 1")
    e(f"global_store_dword v25, v26, s[{pDBG}:{pDBG+1}] sc1")
    a.label("L_noflag")
    if opt.get("touch") == 2: touch()
    if opt.get("wpf", 1) == 1: wpf()
    e(f"s_branch L_lnE")
    a.skip_end()
    a.label("L_lnD")
    sp.stamp("ln", lvl=3, nowait=True)
    a.vm_wait("c1")
    a.label("L_lnE")
    a.ds_wait_all()
    sp.stamp("ln")
    sp.stamp("c1", lvl=3)
    e("s_barrier")
    sp.stamp("b1"); sp.stamp("b1", lvl=3)
    def deferred():
        t0, t1, t2 = AB, AB + 1, AB + 2
        G = lambda *ins: (lambda: [e(x) for x in ins], sum(2 if x.startswith("s_") else 4 for x in ins))
        L = []
        L.append(G(f"v_xor_b32 v{vD2B}, 32, v{vD1}", f"v_lshlrev_b32 v{vSt}, 4, v{vLane}", f"s_mov_b32 vcc_lo, -1", f"s_mov_b32 vcc_hi, 0"))
        L.append(G(f"s_lshl2_add_u32 s{sTTG}, s{sRB}, s{sTT}", f"s_lshl_b32 s{sHoff}, s{sG}, 6"))
        L += [G(x) for x in traddr(vTB[1][0], sHoff, t0, t1)]
        L.append(G(f"v_add_u32 v{vTB[1][1]}, 8192, v{vTB[1][0]}"))
        L.append(G(f"s_and_b32 s{sHoff}, s{sCOL}, 1", f"s_lshl_b32 s{sHoff2}, s{sHoff}, 1", f"s_lshl_b32 s{sHoff}, s{sHoff2}, 5",
                   f"v_xor_b32 v{t0}, s{sHoff}, v{vCol}"))
        L.append(G(f"v_xor_b32 v{t0}, v{t0}, v{vSwz}", f"v_and_b32 v{t1}, 16, v{vLane}"))
        L.append(G(f"v_lshl_add_u32 v{t0}, v{t1}, 9, v{t0}", f"v_add_u32 v{vTB[2][0]}, v{t0}, v{vRow}", f"v_xor_b32 v{vTB[2][1]}, 32, v{vTB[2][0]}"))
        L.append(G(f"s_mul_i32 s{sHoff}, s{sTTG}, 112", f"s_add_u32 s{sHoff2}, s{sHoff2}, s{sHoff}", f"s_lshr_b32 s{sQKoff}, s{sSO[2][0]}, 5",
                   f"s_add_u32 s{sHoff2}, s{sHoff2}, s{sQKoff}", f"s_lshl_b32 s{sHoff2}, s{sHoff2}, 10", f"s_add_u32 s{sHoff2}, s{sHoff2}, {H_OFF}"))
        L.append(G(f"s_lshl1_add_u32 s{sHoff}, s{sG}, s{sHoff}", f"s_lshl2_add_u32 s{sHoff}, s{sCOL}, s{sHoff}", f"s_lshl_b32 s{sHoff}, s{sHoff}, 10",
                   f"s_add_u32 s{sHoff}, s{sHoff}, {H_OFF}"))
        L.append(G(f"s_lshl1_add_u32 s{sQKoff}, s{sCOL}, s{sG}", f"s_lshl_b32 s{sQKoff}, s{sQKoff}, 7", f"s_add_u32 s{sQKoff}, s{sQKoff}, s{sTTG}",
                   f"s_lshl_b32 s{sQKoff}, s{sQKoff}, 11", f"s_add_u32 s{sQKstep}, s{sHoff}, {12*4096}", f"s_cmp_ge_u32 s{sCOL}, 12",
                   f"s_cselect_b32 s{sQKoff}, s{sQKstep}, s{sQKoff}"))
        L.append(G(f"s_lshr_b32 s{sQKstep}, s{sCOL}, 2", f"s_cmp_eq_u32 s{sQKstep}, 1", f"s_cselect_b32 s{sOnes}, s{sOnes}, 0", f"s_cselect_b32 s{sHi}, s{sLo}, 0",
                   f"s_cmp_eq_u32 s{sQKstep}, 2", f"s_cselect_b32 s{sOnes}, s{sLo}, s{sOnes}"))
        L.append(G(f"v_mov_b32 v{vP6}, s{sOnes}", f"v_mov_b32 v{vP7}, s{sHi}"))
        L.append(G(f"v_lshrrev_b32 v{t2}, 5, v{vLane}", f"v_bfe_u32 v{t0}, v{vLane}, 2, 2", f"v_lshl_add_u32 v{t0}, v{t2}, 2, v{t0}"))
        L.append(G(f"v_lshrrev_b32 v{t1}, 1, v{t0}", f"v_lshlrev_b32 v{t1}, 3, v{t1}", f"v_xor_b32 v{t1}, v{t1}, v{vCol}"))
        L.append(G(f"s_lshl_b32 s{sQKstep}, s{sW}, 11", f"s_add_u32 s{sQKstep}, s{sQKstep}, {SCR}", f"v_lshl_add_u32 v{t0}, v{t0}, 6, v{t1}",
                   f"v_add_u32 v{vV2}, s{sQKstep}, v{t0}"))
        L.append(G(f"v_xor_b32 v{vV3}, 32, v{vV2}", f"v_bfe_u32 v{t0}, v{vLane}, 1, 3", f"v_xor_b32 v{t0}, v{t0}, v{t2}"))
        L.append(G(f"v_and_b32 v{t1}, 31, v{vLane}", f"v_lshlrev_b32 v{t1}, 6, v{t1}", f"v_lshl_add_u32 v{t0}, v{t0}, 3, v{t1}"))
        L.append(G(f"v_add_u32 v{vV1}, s{sQKstep}, v{t0}"))
        return L
    def hdiag(k):
        if not opt.get("hdiag"): return
        if k == 0: return
        e("s_cmp_ge_u32 s2, 7")
        e("s_cbranch_scc1 L_end")
        e(f"s_cmp_lg_u32 s{sW}, 4")
        e("s_cbranch_scc1 L_end")
        e("s_memrealtime s[80:81]"); e("s_memtime s[82:83]")
        e("s_waitcnt vmcnt(0) lgkmcnt(0)")
        e("s_mov_b64 exec, 1")
        e("s_lshl_b32 s3, s2, 3")
        e("v_mov_b32 v0, s3")
        e("s_sub_u32 s84, s82, s78")
        e("s_sub_u32 s80, s80, s76")
        e("s_and_b32 s76, s76, 0xffff")
        e("s_lshl_b32 s80, s80, 16")
        e("s_or_b32 s76, s76, s80")
        e("v_mov_b32 v2, s76"); e("v_mov_b32 v3, s84")
        e(f"global_store_dword v0, v2, s[{pDBG}:{pDBG+1}] offset:4")
        e(f"global_store_dword v0, v3, s[{pDBG}:{pDBG+1}] offset:8")
    def check_flag(vtmp):
        done = lab("fl")
        e(f"v_readfirstlane_b32 s{sT1}, v{vFlag}")
        e(f"s_cmp_lg_u32 s{sT1}, 0")
        e(f"s_cbranch_scc1 {done}")
        e(f"s_mov_b32 s{sT2}, 0x40000")
        lp = lab("fs"); a.label(lp)
        e(f"v_mov_b32 v{vtmp}, 0")
        e(f"global_load_dword v{vFlag}, v{vtmp}, s[{pDBG}:{pDBG+1}] sc1")
        e(f"s_waitcnt vmcnt(0)")
        e(f"v_readfirstlane_b32 s{sT1}, v{vFlag}")
        e(f"s_sub_u32 s{sT2}, s{sT2}, 1")
        e(f"s_cselect_b32 s{sT1}, 1, s{sT1}")
        e(f"s_cmp_eq_u32 s{sT1}, 0")
        e(f"s_cbranch_scc1 {lp}")
        a.label(done)
    def signal(sIdx, add, va, vb):
        e(f"s_add_u32 s{sT1}, s{sIdx}, {add}")
        e(f"s_lshl_b32 s{sT1}, s{sT1}, 7")
        e(f"s_add_u32 s{sT1}, s{sT1}, {CNT_OFF}")
        e(f"v_mov_b32 v{va}, 0")
        e(f"v_mov_b32 v{vb}, 1")
        e(f"s_mov_b64 exec, 1")
        e(f"buffer_atomic_add v{vb}, v{va}, {S(rWS)}, s{sT1} offen sc1")
        e(f"s_mov_b64 exec, -1")
    def poll(vaddr, vval, target, sleep):
        lp = lab("po"); done = lab("pd")
        e(f"s_mov_b32 s{sT2}, 0x40000")
        e(f"s_mov_b32 s{sT3}, {CNT_OFF}")
        a.label(lp)
        e(f"buffer_load_dword v{vval}, v{vaddr}, {S(rWS)}, s{sT3} offen sc1")
        e(f"s_waitcnt vmcnt(0)")
        e(f"v_cmp_gt_u32 s[74:75], {target}, v{vval}")
        e(f"s_cmp_eq_u64 s[74:75], 0")
        e(f"s_cbranch_scc1 {done}")
        e(f"s_sleep {sleep}")
        e(f"s_sub_u32 s{sT2}, s{sT2}, 1")
        e(f"s_cbranch_scc0 {lp}")
        a.label(done)
        a.vm = []
    def lds_arrive(k, va, vb, rtn=False):
        e(f"v_mov_b32 v{va}, {SYNC + 4*k}")
        e(f"v_mov_b32 v{vb}, 1")
        e(f"s_mov_b64 exec, 1")
        e(f"ds_add_rtn_u32 v{vb}, v{va}, v{vb}" if rtn else f"ds_add_u32 v{va}, v{vb}")
        e(f"s_mov_b64 exec, -1")
    def lds_sync(k, n, va, vb, meanwhile=None):
        a.ds_wait_all()
        lds_arrive(k, va, vb)
        if meanwhile:
            e("s_nop 3"); meanwhile()
        lp = lab("ls")
        e(f"s_mov_b32 s{sT2}, 0x400000")
        a.label(lp)
        e(f"ds_read_b32 v{vb}, v{va}")
        e(f"s_waitcnt lgkmcnt(0)")
        e(f"v_readfirstlane_b32 s{sT1}, v{vb}")
        e(f"s_sub_u32 s{sT2}, s{sT2}, 1")
        e(f"s_cselect_b32 s{sT1}, {n}, s{sT1}")
        e(f"s_cmp_lt_u32 s{sT1}, {n}")
        e(f"s_cbranch_scc1 {lp}")
    def lds_spin(k, n, va, vb, sleep):
        lp = lab("ls"); ok = lab("lk")
        e(f"v_mov_b32 v{va}, {SYNC + 4*k}")
        e(f"s_mov_b32 s{sT2}, 0x100000")
        a.label(lp)
        e(f"ds_read_b32 v{vb}, v{va}")
        e(f"s_waitcnt lgkmcnt(0)")
        e(f"v_readfirstlane_b32 s{sT1}, v{vb}")
        e(f"s_cmp_ge_u32 s{sT1}, {n}")
        e(f"s_cbranch_scc1 {ok}")
        e(f"s_sleep {sleep}")
        e(f"s_sub_u32 s{sT2}, s{sT2}, 1")
        e(f"s_cbranch_scc0 {lp}")
        a.label(ok)
    def lds_check(k, n, va, vb):
        lp = lab("lc"); ok = lab("ld")
        e(f"s_mov_b32 s{sT2}, 0x400000")
        a.label(lp)
        e(f"s_waitcnt lgkmcnt(0)"); a.lg = []
        e(f"v_readfirstlane_b32 s{sT1}, v{vb}")
        e(f"s_cmp_ge_u32 s{sT1}, {n}")
        e(f"s_cbranch_scc1 {ok}")
        a.skip_begin()
        e(f"ds_read_b32 v{vb}, v{va}")
        e(f"s_sub_u32 s{sT2}, s{sT2}, 1")
        e(f"s_cbranch_scc0 {lp}")
        a.skip_end()
        a.label(ok)
    def lds_wait(k, n, va, vb, meanwhile):
        lp = lab("lw"); ok = lab("lo")
        e(f"v_mov_b32 v{va}, {SYNC + 4*k}")
        e(f"ds_read_b32 v{vb}, v{va}")
        meanwhile()
        e(f"s_mov_b32 s{sT2}, 0x400000")
        a.label(lp)
        e(f"s_waitcnt lgkmcnt(0)")
        e(f"v_readfirstlane_b32 s{sT1}, v{vb}")
        e(f"s_cmp_ge_u32 s{sT1}, {n}")
        e(f"s_cbranch_scc1 {ok}")
        e(f"ds_read_b32 v{vb}, v{va}")
        e(f"s_sub_u32 s{sT2}, s{sT2}, 1")
        e(f"s_cbranch_scc0 {lp}")
        a.label(ok)
    def last_signals(k, n, sIdx, add, va, vb):
        lds_arrive(k, va, vb, rtn=True)
        e(f"s_waitcnt lgkmcnt(0)"); a.lg = []
        e(f"v_readfirstlane_b32 s{sT1}, v{vb}")
        sk = lab("ns")
        e(f"s_cmp_lg_u32 s{sT1}, {n-1}")
        e(f"s_cbranch_scc1 {sk}")
        a.skip_begin()
        signal(sIdx, add, va, vb)
        a.skip_end()
        a.label(sk)
    NT = [2, 2, 2]
    ACC = [AA, AB, AA]
    tw_state = [None, None]
    def wreads(G):
        r, s = divmod(G, 28)
        base = slot(G // 4) * 16384 + (s % 4) * 2048
        hi, lo = base >> 16, base & 0xffff
        L = []
        for t in range(NT[r]):
            d = WF + (G % 3) * 8 + t * 4
            def f0(t=t, d=d):
                if tw_state[t] != (r, hi):
                    e(f"v_add_u32 v{vTW[t]}, {hex(hi << 16)}, v{vTB[r][t]}")
                    tw_state[t] = (r, hi)
                a.ds_op(f"ds_read_b64_tr_b16 v[{d}:{d+1}], v{vTW[t]} offset:{lo}", f"w{G}")
            def f1(t=t, d=d):
                a.ds_op(f"ds_read_b64_tr_b16 v[{d+2}:{d+3}], v{vTW[t]} offset:{lo+512}", f"w{G}")
            L += [f0, f1]
        return L
    xr_next = [0]
    def xread(n):
        for _ in range(n):
            s = xr_next[0]
            if s >= 28: return
            xr_next[0] += 1
            if s == 16:
                for q in range(4): e(f"v_add_u32 v{vXR[q]}, 0x10000, v{vXR[q]}")
            off = ((s // 4) * 16384) & 0xffff
            a.ds_op(f"ds_read_b128 v[{X0+4*s}:{X0+4*s+3}], v{vXR[s%4]} offset:{off}", f"x{s}")
    BARS = opt.get("bars", [0, 1, 2, 3, 5, 7, 9, 11, 13, 15])
    PQ = opt.get("pq", 11)
    PZ = opt.get("pz", 13)
    L2P = {int(k): v for k, v in opt.get("l2p", {}).items()}
    VEND = PQ
    window = []; pending = []
    def period_barrier(i):
        for c in window: a.vm.extend([f"c{c}", f"c{c}"])
        assert not pending, pending
        window.clear()
        nxt = min([b for b in BARS if b > i] + [20])
        a.vm_wait(f"c{nxt}")
        assert dma_next[0] > nxt, (i, nxt, dma_next[0])
        if i == 3: a.vm_wait("stat")
        if i == PQ: a.vm_wait("st")
        if i in opt.get("sb", []): sp.stamp("pre", lvl=2, nowait=True)
        e("s_barrier")
        if i in opt.get("sb", []): sp.stamp("post", lvl=2, nowait=True)
        if i == 3:
            e(f"v_and_b32 v{vK}, 31, v{vLane}")
            e(f"v_lshlrev_b32 v{vK}, 2, v{vK}")
            e(f"s_lshl_b32 s{sT1}, s{sTT}, 7")
            e(f"s_add_u32 s{sT1}, s{sT1}, s{sStat}")
            e(f"v_mov_b32 v{vFlag}, 0")
            a.vm_op(f"buffer_load_dword v{vK}, v{vK}, {S(rWS)}, s{sT1} offen sc1", "kld")
            a.vm_op(f"global_load_dword v{vFlag}, v{vFlag}, s[{pDBG}:{pDBG+1}] sc1", "kld")
        if i in L2P:
            for k in L2P[i]:
                sk = lab("pf")
                e(f"s_cmp_lg_u32 s{sW}, {k}")
                e(f"s_cbranch_scc1 {sk}")
                a.skip_begin()
                e(f"s_lshr_b32 s{sT1}, s2, 3")
                nl, ptr, nb = (56, pW2, W2_BYTES) if k < 7 else (98, pWO, WO_BYTES)
                if k < 7:
                    e(f"s_mul_i32 s{sT1}, s{sT1}, {7*56*128}")
                    e(f"s_add_u32 s{sT1}, s{sT1}, {k*56*128}")
                else:
                    e(f"s_mul_i32 s{sT1}, s{sT1}, {98*128}")
                e(f"v_min_u32 v{vDum+2}, {min(nl, 64) - 1 if k < 7 else 48}, v{vLane}")
                e(f"v_lshl_add_u32 v{vDum+2}, v{vDum+2}, 7, s{sT1}")
                e(f"global_load_dword v{vDum+1}, v{vDum+2}, s[{ptr}:{ptr+1}]")
                if k == 7:
                    e(f"v_add_u32 v{vDum+2}, {49*128}, v{vDum+2}")
                    e(f"global_load_dword v{vDum+1}, v{vDum+2}, s[{ptr}:{ptr+1}]")
                a.skip_end()
                a.label(sk)
        if i == PZ:
            e(f"v_lshrrev_b32 v{vDum+2}, 2, v{vSt}")
            e(f"v_add_u32 v{vDum+2}, {SYNC}, v{vDum+2}")
            e(f"v_mov_b32 v{vDum+3}, 0")
            a.ds_op(f"ds_write_b32 v{vDum+2}, v{vDum+3}", "z")
        if i == PQ and sigq[0]:
            sk = lab("q")
            e(f"s_cmp_lg_u32 s{sW}, 0")
            e(f"s_cbranch_scc1 {sk}")
            a.skip_begin()
            check_flag(vDum + 2)
            signal(sCOL, 0, vDum + 2, vDum + 3)
            a.skip_end()
            a.label(sk)
        while dma_next[0] <= 20:
            c = dma_next[0]
            if c < 10:
                sl = slot(c)
                if not all(xr_next[0] > s and a.ds_done(f"x{s}") for s in range(4*sl, 4*sl+4)): break
            elif c == 20:
                if i < 13: break
            elif c - 9 > i - 1: break
            window.append(c); dma_next[0] += 1
        nq = nxt - i
        per = -(-len(window) // nq)
        pending[:] = [window[k*per:(k+1)*per] for k in range(nq)]
    sigq = [False]
    XR = opt.get("xrate", 2)
    def kloop(r, extra, budget, hooks={}):
        extra = list(extra)
        if opt.get("x_noepi"): extra = [x for x in extra if x[1] == 0]
        gap = 0
        for s in range(28):
            G = r * 28 + s
            Gn = G + 2
            rd = wreads(Gn) if Gn < 84 else []
            a.ds_wait(f"w{G}")
            if r == 0: a.ds_wait(f"x{s}")
            ph = Gn % 4
            for t in range(NT[r]):
                d = ACC[r] + 16 * t
                w = WF + (G % 3) * 8 + t * 4
                c = "0" if s == 0 else f"v[{d}:{d+15}]"
                e(f"v_mfma_f32_32x32x16_bf16 v[{d}:{d+15}], v[{w}:{w+3}], v[{X0+4*s}:{X0+4*s+3}], {c}")
                gap += 1
                if t == 0 and Gn < 84 and ph == 0 and (Gn // 4 - 1) in BARS: period_barrier(Gn // 4 - 1)
                n = -(-len(rd) // (NT[r] - t))
                for f in rd[:n]: f()
                rd = rd[n:]
                if r == 0: xread((XR + 1 - t) // 2)
                left = budget
                if t == NT[r] - 1 and pending and pending[0] and ph % 2 == 0:
                    sk = lab("d")
                    e(f"s_cmp_lg_u32 s{sPh}, {ph}")
                    e(f"s_cbranch_scc1 {sk}")
                    a.skip_begin()
                    for c in pending[0]: dma(c, track=False)
                    a.skip_end()
                    a.label(sk)
                    left = opt.get("dmabud", 4)
                if t == NT[r] - 1 and s in hooks: hooks[s](); left = 0
                while extra and gap > 3 and extra[0][1] <= left:
                    f, cst = extra.pop(0); f(); left -= cst
            if ph == 3 and pending: pending.pop(0)
        return extra
    def I(t):
        op = t.split()[0]
        return (lambda: e(t), 8 if op.startswith(TRANS) else (2 if op.startswith("s_") else 4))
    def consts():
        def sel():
            e(f"s_cmp_lt_u32 s{sCOL}, 4")
            e(f"s_cselect_b32 s{sT1}, {hexf(28**-0.5*LOG2E)}, 1.0")
            e(f"v_mul_f32 v{vSc}, s{sT1}, v{vSc}")
        return [(lambda: a.vm_wait("kld"), 0), I(f"v_rsq_f32 v{vSc}, v{vK}"),
                I(f"v_mul_f32 v{vC1}, {hexf(-LOG2E)}, v{vSc}"), (sel, 8)]
    def silu4(Gt, U, t, p):
        L = []
        for k in range(4): L.append(I(f"v_mul_f32 v{t+k}, v{vC1}, v{Gt+k}"))
        for k in range(4):
            L.append(I(f"v_exp_f32 v{t+k}, v{t+k}"))
            L.append(I(f"v_mul_f32 v{Gt+k}, v{Gt+k}, v{U+k}"))
        for k in range(4): L.append(I(f"v_fma_f32 v{t+k}, v{t+k}, v{vK}, v{vK}"))
        for k in range(4): L.append(I(f"v_rcp_f32 v{t+k}, v{t+k}"))
        for k in range(4): L.append(I(f"v_mul_f32 v{Gt+k}, v{Gt+k}, v{t+k}"))
        for k in range(2): L.append(I(f"v_cvt_pk_bf16_f32 v{p+k}, v{Gt+2*k}, v{Gt+2*k+1}"))
        return L
    def store(r, soff, off):
        if opt.get("x_nost"): return (lambda: None, 8)
        return (lambda: a.vm_op(f"buffer_store_dwordx4 v[{r}:{r+3}], v{vSt}, {S(rWS)}, s{soff} offen offset:{off}{ST}", "st"), 8)
    def epiF(acc, soff):
        Gt, U = acc, acc + 16
        L = []
        for q in range(4):
            L += silu4(Gt + 4*q, U + 4*q, T0 + (q % 2) * 4, U + (q // 2) * 8 + (q % 2) * 2)
            if q % 2 == 1: L.append(store(U + (q // 2) * 8, soff, (q // 2) * 1024))
        return L
    def epiQKV(acc, isv):
        L = []
        P = T0 + 8
        for q in range(4):
            for k in range(4): L.append(I(f"v_mul_f32 v{acc+4*q+k}, v{vSc}, v{acc+4*q+k}"))
            for k in range(2): L.append(I(f"v_cvt_pk_bf16_f32 v{P+2*q+k}, v{acc+4*q+2*k}, v{acc+4*q+2*k+1}"))
            if q == 1 and not isv: L.append(store(P, sQKoff, 0))
        L.append(I(f"v_cndmask_b32 v{P+6}, v{vP6}, v{P+6}, vcc"))
        L.append(I(f"v_cndmask_b32 v{P+7}, v{vP7}, v{P+7}, vcc"))
        if not isv: L.append(store(P + 4, sQKoff, 1024))
        else:
            for q in range(4):
                if q: L.append(I(f"v_xor_b32 v{vV4}, {16*q}, v{vV1}"))
                L.append((lambda q=q: a.ds_op(f"ds_write_b64 v{vV4 if q else vV1}, v[{P+2*q}:{P+2*q+1}]", "vw"), 4))
            L += [(lambda: None, 8)] * 2
            L.append((lambda: a.ds_wait("vw"), 0))
            for q in range(4):
                L.append((lambda q=q: a.ds_op(f"ds_read_b64_tr_b16 v[{acc+2*q}:{acc+2*q+1}], v{vV3 if q % 2 else vV2} offset:{512*q}", "vr"), 4))
            L += [(lambda: None, 8)] * 2
            L.append((lambda: a.ds_wait("vr"), 0))
            L.append(store(acc, sQKoff, 0))
            L.append(store(acc + 4, sQKoff, 1024))
        L.append(I(f"s_add_u32 s{sQKoff}, s{sQKoff}, {64*2048}"))
        return L
    B1, B2 = opt.get("b1", 12), opt.get("b2", 12)
    if opt.get("yprio"):
        e(f"s_cmp_lt_u32 s{sW}, 4")
        e(f"s_cbranch_scc1 L_yp")
        e(f"s_setprio 1")
        a.label("L_yp")
    xread(4)
    for f in wreads(0) + wreads(1): f()
    if opt.get("wpf", 1) == 2:
        e(f"s_cmp_ge_u32 s{sW}, 4")
        e(f"s_cbranch_scc1 L_wp")
        a.skip_begin(); wpf(); a.skip_end()
        a.label("L_wp")
    a.vm_op(f"buffer_store_dword v{T0}, v{vStat}, {S(rWS)}, s{sStat} offen", "stat")
    a.vm_op(f"buffer_store_dword v{T0+1}, v{T0+2}, {S(rWS)}, s{sStat} offen", "stat")
    assert not kloop(0, deferred(), 16)
    sp.stamp("r0")
    e(f"s_cmp_lt_u32 s{sCOL}, 8")
    e(f"s_cbranch_scc1 L_pqk")
    e(f"s_cmp_lt_u32 s{sCOL}, 12")
    e(f"s_cbranch_scc1 L_pv")
    saved = (list(a.vm), list(a.lg), list(tw_state), dma_next[0], list(a.hist), list(window), [list(p) for p in pending], sp.n)
    ends = []
    for nm, ex in (("f", lambda: epiF(AA, sQKoff)), ("L_pqk", lambda: epiQKV(AA, False) + epiQKV(AA + 16, False)),
                   ("L_pv", lambda: epiQKV(AA, True) + epiQKV(AA + 16, True))):
        if nm != "f": a.label(nm)
        a.vm, a.lg = list(saved[0]), list(saved[1]); tw_state[:] = saved[2]; dma_next[0] = saved[3]; a.hist = list(saved[4])
        window[:] = saved[5]; pending[:] = [list(p) for p in saved[6]]; sp.set(saved[7])
        sigq[0] = nm != "f"
        nst0 = [0]
        exl = consts() + ex()
        if nm != "f":
            exl.append((lambda: nst0.__setitem__(0, 1), 0))
            _pb = period_barrier
        rest = kloop(1, exl, {"f": B1, "L_pqk": opt.get("b1q", 24), "L_pv": opt.get("b1v", 24)}[nm], hooks={(VEND + 1) * 4 - 2 - 28 - 1: (lambda: None) if nm == "f" else (lambda: (_ for _ in ()).throw(AssertionError("qkv epilogue too late")) if not nst0[0] else None)})
        for f, c in rest: f()
        ends.append(([t for t in a.vm if t != "st"], list(a.lg), list(tw_state), dma_next[0], list(window), [list(p) for p in pending]))
        if nm != "L_pv": e("s_branch L_r2")
    assert ends[0][1:] == ends[1][1:] == ends[2][1:], ends
    a.vm = min((x[0] for x in ends), key=len)
    assert all(x[0][len(x[0])-len(a.vm):] == a.vm for x in ends)
    a.label("L_r2")
    e("s_nop 1")
    sp.stamp("r1"); sp.stamp("r1", lvl=5, nowait=True)
    K0, Q, KV, O, Sx, P, T = 16, 24, 56, 128, 192, 224, 240
    ATT_LDS, WO_LDS = 49152, 98304
    sX, sJ = 54, 55
    sHead, sQB, sKV, sRun = 62, 63, 64, 58
    sWq, sTB, sCB, sWo, sLB = 62, 63, 64, 58, 66
    vD, vPoll, vStV = vD0, vDum + 4, vD0
    rW = rA
    rK, rV = rA, rB
    NE = 3
    QX = 147456
    def kvload(i):
        for k in range(4):
            r = KV + 16 * i + 4 * k
            a.vm_op(f"buffer_load_dwordx4 v[{r}:{r+3}], v{vSt}, {S(rK if k < 2 else rV)}, s{sRun} offen offset:{1024*(k%2)}{LD}", f"kv{i}")
        e(f"s_add_u32 s{sRun}, s{sRun}, 2048")
        e(f"s_and_b32 s{sRun}, s{sRun}, 0x1ffff")
    e(f"s_and_b32 s{sX}, s2, 7")
    e(f"s_lshr_b32 s{sJ}, s2, 3")
    check_flag(vDum + 2)
    e(f"s_cmp_lt_u32 s{sW}, 4")
    e(f"s_cbranch_scc1 L_att")
    join = (list(a.vm), list(a.lg), list(a.hist), list(window), sp.n)
    e(f"s_setprio {opt.get('r2prio', 2)}")
    rest = kloop(2, epiF(AB, sHoff), B2)
    sp.stamp("r2")
    for f, c in rest: f()
    for t in range(2):
        for q in range(2):
            for f, c in silu4(AA + 16*t + 4*q, AA + 16*t + 8 + 4*q, T0 + 4*q, T0 + 8 + 4*t + 2*q): f()
        store(T0 + 8 + 4*t, sHoff2, 1024*t)[0]()
    e(f"s_branch L_gemm")
    nst = sp.n
    a.label("L_att")
    a.vm, a.lg, a.hist = list(join[0]), list(join[1]), list(join[2]); sp.set(join[4])
    for c in join[3]: a.vm.extend([f"c{c}", f"c{c}"])
    e(f"s_setprio {opt.get('attprio0', 3)}")
    e(f"s_and_b32 s{sT1}, s{sJ}, 1")
    e(f"s_lshl1_add_u32 s{sHead}, s{sX}, s{sT1}")
    e(f"v_min_u32 v{vPoll}, 2, v{vLane}")
    e(f"v_lshlrev_b32 v{vPoll}, 9, v{vPoll}")
    e(f"s_lshr_b32 s{sT1}, s{sHead}, 2")
    e(f"v_lshl_add_u32 v{vPoll}, s{sT1}, 7, v{vPoll}")
    e(f"s_mov_b32 s{sT3}, {CNT_OFF}")
    a.vm_op(f"buffer_load_dword v{vDum+3}, v{vPoll}, {S(rWS)}, s{sT3} offen sc1", "poll")
    def qload():
        e(f"s_lshl_b32 s{sT1}, s{sHead}, 6")
        e(f"s_lshl2_add_u32 s{sT1}, s{sQB}, s{sT1}")
        e(f"s_add_u32 s{sT1}, s{sT1}, s{sW}")
        e(f"s_lshl_b32 s{sT1}, s{sT1}, 11")
        a.vm_op(f"buffer_load_dwordx4 v[{Q}:{Q+3}], v{vSt}, {S(rWS)}, s{sT1} offen{LD}", "q")
        a.vm_op(f"buffer_load_dwordx4 v[{Q+4}:{Q+7}], v{vSt}, {S(rWS)}, s{sT1} offen offset:1024{LD}", "q")
        kvload(0)
    e(f"s_lshr_b32 s{sQB}, s{sJ}, 1")
    e(f"s_lshl_b32 s{sKV}, s{sHead}, 17")
    e(f"s_add_u32 s{sKV}, s{sKV}, {KV_OFF}")
    e(f"s_lshl_b32 s{sRun}, s{sW}, 15")
    e(f"s_add_u32 s{sRun}, s{sRun}, 2048")
    e(f"s_add_u32 s{rK}, s{pWS}, s{sKV}")
    e(f"s_addc_u32 s{rK+1}, s{pWS+1}, 0")
    e(f"s_mov_b32 s{rK+2}, 0x20000")
    e(f"s_mov_b32 s{rK+3}, 0x20000")
    e(f"s_add_u32 s{rV}, s{rK}, {2 << 20}")
    e(f"s_addc_u32 s{rV+1}, s{rK+1}, 0")
    e(f"s_mov_b32 s{rV+2}, 0x20000")
    e(f"s_mov_b32 s{rV+3}, 0x20000")
    ep = epiF(AB, sHoff)
    n1 = opt.get("ep1", 26)
    a.ds_wait_all()
    for f, c in ep[:n1]: f()
    sp.stamp("ep", lvl=5, nowait=True)
    a.vm_wait("poll")
    sp.stamp("pl", lvl=5, nowait=True)
    e(f"v_cmp_gt_u32 s[74:75], 16, v{vDum+3}")
    e(f"s_cmp_eq_u64 s[74:75], 0")
    e(f"s_cbranch_scc1 L_e2ok")
    sv = (list(a.vm), list(a.hist))
    for f, c in ep[n1:]: f()
    e("s_barrier")
    poll(vPoll, vDum + 3, 16, 1)
    qload(); e("s_waitcnt vmcnt(0)"); e(f"s_branch L_e2j")
    a.label("L_e2ok")
    a.vm, a.hist = sv
    sp.stamp("r2"); sp.stamp("ok", lvl=5, nowait=True)
    qload()
    for f, c in ep[n1:]: f()
    sp.stamp("ep2", lvl=5, nowait=True)
    e("s_barrier")
    a.label("L_e2j")
    kvload(1); kvload(2)
    sFlag, sIt, sOoff = 59, 60, 61
    e(f"s_mov_b32 s{sFlag}, 0")
    e(f"s_lshl2_add_u32 s{sOoff}, s{sQB}, s{sW}")
    e(f"s_lshl4_add_u32 s{sOoff}, s{sOoff}, s{sHead}")
    e(f"s_lshl_b32 s{sOoff}, s{sOoff}, 11")
    e(f"s_add_u32 s{sOoff}, s{sOoff}, {O_OFF}")
    for jj in range(4):
        e(f"s_add_u32 s{sT1}, s{sW}, {jj}")
        e(f"s_and_b32 s{sT1}, s{sT1}, 3")
        e(f"s_lshl_b32 s{sT1}, s{sT1}, 11")
        e(f"s_add_u32 s{sT1}, s{sT1}, {QX}")
        e(f"v_add_u32 v{T+2+jj}, s{sT1}, v{vSt}")
    sp.stamp("pre", lvl=5, nowait=True)
    a.vm_wait("kv0")
    sp.stamp("kv0", lvl=5, nowait=True)
    e(f"v_mfma_f32_32x32x16_bf16 v[{Sx}:{Sx+15}], v[{KV}:{KV+3}], v[{Q}:{Q+3}], 0")
    e(f"v_mfma_f32_32x32x16_bf16 v[{Sx}:{Sx+15}], v[{KV+4}:{KV+7}], v[{Q+4}:{Q+7}], v[{Sx}:{Sx+15}]")
    sp.stamp("qkv")
    def qk(n, half):
        i, j = (n // 4) % 4, n % 4
        d = Sx + 16 * (n % 2); k = KV + 16 * i + 4 * half; q = Q + 8 * j + 4 * half
        c = "0" if half == 0 else f"v[{d}:{d+15}]"
        e(f"v_mfma_f32_32x32x16_bf16 v[{d}:{d+15}], v[{k}:{k+3}], v[{q}:{q+3}], {c}")
    def pv(n, half):
        i, j = (n // 4) % 4, n % 4
        d = O + 16 * j; v = KV + 16 * i + 8 + 4 * half; p = P + 8 * (n % 2) + 4 * half
        e(f"v_mfma_f32_32x32x16_bf16 v[{d}:{d+15}], v[{v}:{v+3}], v[{p}:{p+3}], v[{d}:{d+15}]")
    def sm(n, g):
        s = Sx + 16 * (n % 2) + 4 * g; p = P + 8 * (n % 2) + 2 * g
        for k in range(4): e(f"v_exp_f32 v{s+k}, v{s+k}")
        e(f"v_cvt_pk_bf16_f32 v{p}, v{s}, v{s+1}")
        e(f"v_cvt_pk_bf16_f32 v{p+1}, v{s+2}, v{s+3}")
    M = T + 8
    def patch(jjs, bias):
        U = M + 4
        for jj in jjs: e(f"v_mov_b32 v{U+jj}, v{M+jj}")
        for jj in jjs: e(f"v_permlane32_swap_b32 v{M+jj}, v{U+jj}")
        for jj in jjs: e(f"v_max_f32 v{M+jj}, v{M+jj}, v{U+jj}")
        for jj in jjs: e(f"v_sub_f32 v{M+jj}, {hexf(-bias) if bias else 0}, v{M+jj}")
        for jj in jjs: e(f"v_cvt_pk_bf16_f32 v{U+jj}, v{M+jj}, v{M+jj}")
        for jj in jjs: e(f"v_and_b32 v{U+jj}, 0xffff0000, v{U+jj}")
        for jj in jjs: e(f"v_sub_f32 v{U+jj}, v{M+jj}, v{U+jj}")
        for jj in jjs: e(f"v_cvt_pk_bf16_f32 v{M+jj}, v{M+jj}, v{U+jj}")
        for jj in jjs: e(f"v_cndmask_b32 v{Q+8*jj+6}, v{M+jj}, v{Q+8*jj+6}, vcc")
        for jj in jjs: e(f"v_and_b32 v{M+jj}, 0xffff0000, v{M+jj}")
        for jj in jjs: e(f"v_sub_f32 v{U+jj}, v{U+jj}, v{M+jj}")
        for jj in jjs: e(f"v_cvt_pk_bf16_f32 v{U+jj}, v{U+jj}, 0")
        for jj in jjs: e(f"v_cndmask_b32 v{Q+8*jj+7}, v{U+jj}, v{Q+8*jj+7}, vcc")
    for k in range(4): e(f"v_max3_f32 v{M+4+k}, v{Sx+4*k}, v{Sx+4*k+1}, v{Sx+4*k+2}")
    for k in range(2): e(f"v_max3_f32 v{M+4+2*k}, v{M+4+2*k}, v{M+5+2*k}, v{Sx+8*k+3}")
    e(f"v_max3_f32 v{M}, v{Sx+7}, v{Sx+15}, v{M+4}")
    e(f"v_max_f32 v{M}, v{M}, v{M+6}")
    patch([0], BIAS)
    a.ds_op(f"ds_write_b128 v{T+2}, v[{Q}:{Q+3}]")
    a.ds_op(f"ds_write_b128 v{T+2}, v[{Q+4}:{Q+7}] offset:1024")
    lds_sync(1, 4, T, T + 1, lambda: (qk(0, 0), qk(0, 1)))
    for jj in range(1, 4):
        a.ds_op(f"ds_read_b128 v[{Q+8*jj}:{Q+8*jj+3}], v{T+2+jj}")
        a.ds_op(f"ds_read_b128 v[{Q+8*jj+4}:{Q+8*jj+7}], v{T+2+jj} offset:1024")
    e("s_waitcnt vmcnt(8)")
    last_signals(0, 8, sRB, 12, T, T + 1)
    lds_arrive(2, T, T + 1)
    e(f"s_setprio {opt.get('attprio', 1)}")
    a.vm = []
    sp.stamp("preloop"); sp.stamp("preloop", lvl=5)
    def pv0(n, half):
        i, j = (n // 4) % 4, n % 4
        d = O + 16 * j; v = KV + 16 * i + 8 + 4 * half; p = P + 8 * (n % 2) + 4 * half
        c = "0" if (n < 4 and half == 0) else f"v[{d}:{d+15}]"
        e(f"v_mfma_f32_32x32x16_bf16 v[{d}:{d+15}], v[{v}:{v+3}], v[{p}:{p+3}], {c}")
    def owrite(jj):
        for q in range(4):
            r = O + 16 * jj + 4 * q
            a.ds_op(f"ds_write_b128 v{T+jj}, v[{r}:{r+3}] offset:{(jj-1)*4096 + q*1024}")
    for jj in range(4):
        e(f"s_add_u32 s{sT1}, s{sW}, {jj}")
        e(f"s_and_b32 s{sT1}, s{sT1}, 3")
        e(f"s_mul_i32 s{sT1}, s{sT1}, 12288")
        e(f"s_add_u32 s{sT1}, s{sT1}, {ATT_LDS}")
        e(f"v_add_u32 v{T+jj}, s{sT1}, v{vSt}")
    a.raw(".p2align 6")
    for n in range(64):
        ti, j = divmod(n, 4)
        if j == 3 and ti < 15: e(f"s_waitcnt vmcnt({4 * min(2, 14 - ti)})")
        if n + 1 < 64: qk(n + 1, 0)
        sm(n, 0)
        if n + 1 < 64: qk(n + 1, 1)
        sm(n, 1)
        if n: pv0(n - 1, 0)
        sm(n, 2)
        if n: pv0(n - 1, 1)
        if j == 0 and ti + 3 < 16:
            for k in range(4):
                r = KV + 16 * ((ti + 3) % 4) + 4 * k
                e(f"buffer_load_dwordx4 v[{r}:{r+3}], v{vSt}, {S(rK if k < 2 else rV)}, s{sRun} offen offset:{2048*(ti%2) + 1024*(k%2)}{LD}")
            if ti % 2:
                e(f"s_add_u32 s{sRun}, s{sRun}, 4096")
                e(f"s_and_b32 s{sRun}, s{sRun}, 0x1ffff")
        if n == 60:
            e(f"v_mov_b32 v{T+4}, {SYNC}")
            a.ds_op(f"ds_read_b32 v{T+5}, v{T+4}", "chk")
        if n == 63:
            lds_check(0, 8, T + 4, T + 5)
            owrite(1)
        sm(n, 3)
    pv0(63, 0); pv0(63, 1)
    owrite(2)
    sp.stamp("loop"); sp.stamp("loop", lvl=4)
    a.vm = []
    owrite(3)
    sp.stamp("wr", lvl=4)
    lds_sync(7, 4, T + 4, T + 5)
    sp.stamp("sy", lvl=4)
    for p in range(3):
        for q in range(4):
            r = O + 16 + 16 * p + 4 * q
            a.ds_op(f"ds_read_b128 v[{r}:{r+3}], v{T} offset:{p*4096 + q*1024}", f"p{p}")
    for p in range(3):
        a.ds_wait(f"p{p}")
        for k in range(16): e(f"v_add_f32 v{O+k}, v{O+k}, v{O+16+16*p+k}")
    sp.stamp("rd", lvl=4)
    a.label("L_norm")
    e(f"v_mov_b32 v{T}, v{O+12}")
    e(f"v_mov_b32 v{T+1}, v{O+12}")
    e(f"v_permlane32_swap_b32 v{T}, v{T+1}")
    e(f"v_rcp_f32 v{T}, v{T+1}")
    e(f"v_mov_b32 v{T+2}, 0")
    for k in range(16): e(f"v_mul_f32 v{O+k}, v{O+k}, v{T}")
    for k in range(8): e(f"v_cvt_pk_bf16_f32 v{P+k}, v{O+2*k}, v{O+2*k+1}")
    e(f"v_cndmask_b32 v{P+6}, 0, v{P+6}, vcc")
    e(f"v_cndmask_b32 v{P+7}, 0, v{P+7}, vcc")
    e(f"buffer_store_dwordx4 v[{P}:{P+3}], v{vSt}, {S(rWS)}, s{sOoff} offen{ST}")
    e(f"buffer_store_dwordx4 v[{P+4}:{P+7}], v{vSt}, {S(rWS)}, s{sOoff} offen offset:1024{ST}")
    for k in range(16): e(f"v_fmac_f32 v{T+2}, 0, v{O+k}")
    e(f"v_mov_b32 v{T+3}, {hexf(2.0**-(BIAS+8))}")
    e(f"v_cmp_u_f32 s[66:67], v{T+2}, v{T+2}")
    e(f"v_cmp_lt_f32 s[74:75], v{T+1}, v{T+3}")
    e(f"s_or_b64 s[66:67], s[66:67], s[74:75]")
    e(f"s_cmp_eq_u64 s[66:67], 0")
    e(f"s_cselect_b32 s{sT1}, 1, s{sFlag}")
    e(f"s_cmp_eq_u32 s{sT1}, 0")
    e(f"s_cbranch_scc1 L_slow")
    sp.stamp("chk", lvl=4)
    e(f"s_waitcnt vmcnt(0)")
    sp.stamp("ost"); sp.stamp("ost", lvl=4)
    e(f"s_lshl2_add_u32 s{sT2}, s{sQB}, s{sW}")
    e(f"s_lshr_b32 s{sT3}, s{sHead}, 2")
    e(f"s_lshl2_add_u32 s{sT2}, s{sT2}, s{sT3}")
    signal(sT2, 28, T + 4, T + 5)
    lds_arrive(9, T + 6, T + 7)
    hdiag(0)
    sp.dump(pWS, sW)
    e("s_endpgm")
    a.label("L_slow")
    a.reset_hist()
    e(f"s_waitcnt vmcnt(0)")
    e(f"s_mov_b32 s{sFlag}, 1")
    e(f"s_mov_b32 s{rK+2}, 0x20000")
    e(f"s_mov_b32 s{rV+2}, 0x20000")
    e(f"v_cndmask_b32 v{Q+6}, 0, v{Q+6}, vcc")
    e(f"v_cndmask_b32 v{Q+7}, 0, v{Q+7}, vcc")
    e(f"v_mov_b32 v{M}, 0xff800000")
    e(f"s_mov_b32 s{sRun}, 0")
    e(f"s_mov_b32 s{sIt}, 64")
    a.label("L_s1")
    start = len(a.lines)
    e(f"buffer_load_dwordx4 v[{KV}:{KV+3}], v{vSt}, {S(rK)}, s{sRun} offen{LD}")
    e(f"buffer_load_dwordx4 v[{KV+4}:{KV+7}], v{vSt}, {S(rK)}, s{sRun} offen offset:1024{LD}")
    e("s_waitcnt vmcnt(0)")
    e(f"v_mfma_f32_32x32x16_bf16 v[{Sx}:{Sx+15}], v[{KV}:{KV+3}], v[{Q}:{Q+3}], 0")
    e(f"v_mfma_f32_32x32x16_bf16 v[{Sx}:{Sx+15}], v[{KV+4}:{KV+7}], v[{Q+4}:{Q+7}], v[{Sx}:{Sx+15}]")
    for k in range(8): e(f"v_max3_f32 v{M}, v{M}, v{Sx+2*k}, v{Sx+2*k+1}")
    e(f"s_add_u32 s{sRun}, s{sRun}, 2048")
    e(f"s_sub_u32 s{sIt}, s{sIt}, 1")
    e(f"s_cmp_lg_u32 s{sIt}, 0")
    e("s_cbranch_scc1 L_s1")
    check_loop(a.lines[start:])
    patch([0], 0.0)
    for r in range(16): e(f"v_mov_b32 v{O+r}, 0")
    e(f"s_mov_b32 s{sRun}, 0")
    e(f"s_mov_b32 s{sIt}, 64")
    a.label("L_s2")
    start = len(a.lines)
    for k in range(4):
        e(f"buffer_load_dwordx4 v[{KV+4*k}:{KV+4*k+3}], v{vSt}, {S(rK if k < 2 else rV)}, s{sRun} offen offset:{1024*(k%2)}{LD}")
    e("s_waitcnt vmcnt(0)")
    qk(0, 0); qk(0, 1)
    for g in range(4): sm(0, g)
    pv(0, 0); pv(0, 1)
    e(f"s_add_u32 s{sRun}, s{sRun}, 2048")
    e(f"s_sub_u32 s{sIt}, s{sIt}, 1")
    e(f"s_cmp_lg_u32 s{sIt}, 0")
    e("s_nop 11")
    e("s_cbranch_scc1 L_s2")
    check_loop(a.lines[start:])
    e("s_branch L_norm")
    a.label("L_gemm")
    a.reset_hist(); a.vm = []; a.lg = []; sp.set(nst)
    ACCG, HR, WFR, T, WO_F, XF, GF = 16, 80, 136, 152, 160, 224, 136
    OF = HR
    GF = 240
    vA0, vA1, vIO, vCt = 4, 5, 6, 7
    sH0, sH1, sI0 = 59, 60, 61
    DP = opt.get("gdepth", 5)
    PACE = opt.get("pace", 4)
    def pace():
        nonlocal PACE
        if PACE and len(a.vm) > PACE:
            e(f"s_waitcnt vmcnt({PACE})"); a.vm = a.vm[-PACE:]
    e(f"s_setprio 2")
    e(f"s_waitcnt vmcnt(0)")
    last_signals(0, 8, sRB, 12, T, T + 1)
    e(f"s_cmp_ge_u32 s{sJ}, 28")
    e(f"s_cbranch_scc1 L_end")
    e(f"s_setprio {opt.get('gprio0', 2)}")
    lds_sync(3, 4, T, T + 1)
    srd(a, rW, pWO, WO_BYTES)
    e(f"s_sub_u32 s{sWq}, s{sW}, 4")
    e(f"s_mul_i32 s{sT1}, s{sJ}, 37")
    e(f"s_lshr_b32 s{sT1}, s{sT1}, 8")
    e(f"s_mul_i32 s{sT2}, s{sT1}, 7")
    e(f"s_sub_u32 s{sCB}, s{sJ}, s{sT2}")
    e(f"s_lshl2_add_u32 s{sTB}, s{sX}, s{sT1}")
    e(f"s_lshl_b32 s{sCB}, s{sCB}, 7")
    e(f"s_mul_i32 s{sLB}, s{sWq}, 12288")
    dma_voff(a, vLane, vD, T, T + 1)
    e(f"v_and_b32 v{T}, 31, v{vLane}")
    e(f"v_mul_u32_u24 v{T}, 896, v{T}")
    e(f"v_lshrrev_b32 v{T+1}, 5, v{vLane}")
    e(f"v_lshl_add_u32 v{vIO}, v{T+1}, 3, v{T}")
    e(f"s_and_b32 s{sT1}, s{sWq}, 1")
    e(f"s_lshl1_add_u32 s{sT3}, s{sTB}, s{sT1}")
    e(f"s_mul_i32 s{sI0}, s{sT3}, {32*896}")
    e(f"s_add_u32 s{sI0}, s{sI0}, s{sCB}")
    e(f"s_lshr_b32 s{sT2}, s{sWq}, 1")
    e(f"s_lshl_b32 s{sT2}, s{sT2}, 6")
    e(f"s_add_u32 s{sI0}, s{sI0}, s{sT2}")
    def issue_w(s):
        st = s % 6
        e(f"s_add_u32 m0, s{sLB}, {st*2048}")
        e(f"s_add_u32 s{sT1}, s{sWo}, {8*896}")
        a.vm_op(f"buffer_load_dwordx4 v{vD}, {S(rB)}, s{sWo} offen lds", f"s{s}")
        e(f"s_add_u32 m0, s{sLB}, {st*2048+1024}")
        e(f"s_add_u32 s{sWo}, s{sWo}, {16*896}")
        a.vm_op(f"buffer_load_dwordx4 v{vD}, {S(rB)}, s{sT1} offen lds", f"s{s}")
    srd(a, rB, pW2, W2_BYTES)
    e(f"s_mul_i32 s{sWo}, s{sWq}, {448*896}")
    e(f"s_add_u32 s{sWo}, s{sWo}, s{sCB}")
    for s in range(6): issue_w(s); pace()
    e(f"s_mul_i32 s{sH0}, s{sT3}, 112")
    e(f"s_xor_b32 s{sT3}, s{sT3}, 1")
    e(f"s_mul_i32 s{sH1}, s{sT3}, 112")
    e(f"s_mul_i32 s{sT1}, s{sWq}, 28")
    e(f"s_add_u32 s{sT1}, s{sT1}, {H_OFF >> 10}")
    e(f"s_add_u32 s{sH0}, s{sH0}, s{sT1}")
    e(f"s_add_u32 s{sH1}, s{sH1}, s{sT1}")
    e(f"s_lshl_b32 s{sH0}, s{sH0}, 10")
    e(f"s_lshl_b32 s{sH1}, s{sH1}, 10")
    e(f"s_xor_b32 s{sT2}, s{sT2}, s{sLB}")
    tr_addr(a, vLane, vA0, vA1, T, T + 1, T + 2, sT2, xor=True)
    def wr(s, d0, off, wait=True):
        if wait: a.vm_wait(f"s{s}")
        for ct in range(2):
            d = d0 + ct * 4
            ad = vA0 if ct == 0 else vA1
            a.ds_op(f"ds_read_b64_tr_b16 v[{d}:{d+1}], v{ad} offset:{off}", f"w{s}")
            a.ds_op(f"ds_read_b64_tr_b16 v[{d+2}:{d+3}], v{ad} offset:{off+1024}", f"w{s}")
    e(f"s_lshr_b32 s{sT1}, s{sTB}, 1")
    e(f"s_lshl_b32 s{sT1}, s{sT1}, 7")
    e(f"s_add_u32 s{sT1}, s{sT1}, {12*128}")
    e(f"v_mov_b32 v{vCt}, s{sT1}")
    def issue_h(s):
        st = s % 6
        off = (s % 4) * 1024
        a.vm_op(f"buffer_load_dwordx4 v[{HR+8*st}:{HR+8*st+3}], v{vSt}, {S(rWS)}, s{sH0} offen offset:{off}{LD}", f"s{s}")
        a.vm_op(f"buffer_load_dwordx4 v[{HR+8*st+4}:{HR+8*st+7}], v{vSt}, {S(rWS)}, s{sH1} offen offset:{off}{LD}", f"s{s}")
        if s % 4 == 3:
            e(f"s_add_u32 s{sH0}, s{sH0}, 4096")
            e(f"s_add_u32 s{sH1}, s{sH1}, 4096")
    e(f"s_cmp_lg_u32 s{sWq}, 0")
    e(f"s_cbranch_scc1 L_hw")
    poll(vCt, T + 1, 16, opt.get("hsleep", 4))
    lds_arrive(8, T, T + 1)
    a.label("L_hw")
    lds_spin(2, 4, T, T + 1, 3)
    lds_spin(8, 1, T, T + 1, 3)
    e(f"s_waitcnt vmcnt(0)")
    sp.stamp("hrdy")
    for s in range(DP): issue_h(s)
    e(f"s_setprio {opt.get('gprio', 0)}")
    def mm(s, w, h):
        for ct in range(2):
            for tt in range(2):
                d = ACCG + (2*ct+tt) * 16
                c = "0" if s == 0 else f"v[{d}:{d+15}]"
                e(f"v_mfma_f32_32x32x16_bf16 v[{d}:{d+15}], v[{w+4*ct}:{w+4*ct+3}], v[{h+4*tt}:{h+4*tt+3}], {c}")
    wr(0, WFR, 0)
    XG = 144
    late = []
    def wo_first():
        e(f"s_mul_i32 s{sH0}, s{sWq}, 15360")
        e(f"s_mul_i32 s{sWo}, s{sWq}, {112*896}")
        e(f"s_add_u32 s{sWo}, s{sWo}, s{sCB}")
    def wo_dma(i):
        if i == 0: wo_first()
        e(f"s_add_u32 m0, s{sH0}, {WO_LDS + i*1024}")
        if i: e(f"s_add_u32 s{sWo}, s{sWo}, {8*896}")
        a.vm_op(f"buffer_load_dwordx4 v{vD}, {S(rW)}, s{sWo} offen lds", "wo")
    XG = XF + 8
    for i in range(15): late.append(lambda i=i: wo_dma(i))
    for q in range(4):
        late.append(lambda q=q: a.vm_op(f"buffer_load_dwordx2 v[{XG+2*q}:{XG+2*q+1}], v{vIO}, {S(rX)}, s{sI0} offen offset:{16*q}", "xg"))
    TOP = opt.get("gtop", 0)
    for s in range(28):
        if TOP and s > 0:
            if s + 1 < 28: a.vm_wait(f"s{s+1}")
            if 6 <= s + DP - 1 < 28: issue_w(s + DP - 1)
            if s + DP - 1 < 28: issue_h(s + DP - 1)
        if s + 1 < 28: wr(s + 1, WFR + ((s + 1) % 2) * 8, ((s + 1) % 6) * 2048)
        a.ds_wait(f"w{s}")
        if not opt.get("x_nogm") or s == 0: mm(s, WFR + (s % 2) * 8, HR + 8 * (s % 6))
        if opt.get("x_nogl") or TOP: continue
        if 6 <= s + DP < 28: issue_w(s + DP)
        if s + DP < 28: issue_h(s + DP)
        else:
            for _ in range(4):
                if late: late.pop(0)()
    while late: late.pop(0)()
    sp.stamp("w2")
    e(f"s_setprio {opt.get('gprio3', 0)}")
    def exchange(k):
        e(f"v_add_u32 v{T}, s{sLB}, v{vSt}")
        for sl in range(1, 4):
            for q in range(4):
                r = ACCG + 16 * sl + 4 * q
                a.ds_op(f"ds_write_b128 v{T}, v[{r}:{r+3}] offset:{(sl-1)*4096 + q*1024}")
            e(f"s_xor_b32 s{sT1}, s{sWq}, {sl}")
            e(f"s_mul_i32 s{sT1}, s{sT1}, 12288")
            e(f"v_add_u32 v{T+2+sl}, s{sT1}, v{vSt}")
        if k == 6: sp.stamp("wr", lvl=4)
        lds_sync(k, 4, T + 1, T + 2)
        if k == 6: sp.stamp("sy", lvl=4)
        for p in range(3):
            for q in range(4):
                r = ACCG + 16 + 16 * p + 4 * q
                a.ds_op(f"ds_read_b128 v[{r}:{r+3}], v{T+3+p} offset:{p*4096 + q*1024}", f"p{p}")
        for p in range(3):
            a.ds_wait(f"p{p}")
            for kk in range(16): e(f"v_add_f32 v{ACCG+kk}, v{ACCG+kk}, v{ACCG+16+16*p+kk}")
    exchange(4)
    U = ACCG + 16
    for k in range(16): e(f"v_mul_f32 v{U+k}, {hexf(-LOG2E)}, v{ACCG+k}")
    for k in range(16): e(f"v_exp_f32 v{U+k}, v{U+k}")
    for k in range(16): e(f"v_add_f32 v{U+k}, 1.0, v{U+k}")
    for k in range(16): e(f"v_rcp_f32 v{U+k}, v{U+k}")
    for k in range(16): e(f"v_mul_f32 v{GF+k}, v{ACCG+k}, v{U+k}")
    e(f"s_mul_i32 s{sT2}, s{sWq}, 15360 - 12288")
    e(f"s_add_u32 s{sT2}, s{sT2}, {WO_LDS}")
    e(f"v_add_u32 v{vA0}, s{sT2}, v{vA0}")
    e(f"v_add_u32 v{vA1}, s{sT2}, v{vA1}")
    a.vm_wait("xg")
    for s in range(8):
        wr(100 + s, WO_F + 8 * s, (28 * (s // 2) + 16 * (s % 2)) * 128, wait=False)
    for k in range(8):
        if k < 7:
            e(f"v_lshlrev_b32 v{XF+2*k}, 16, v{XG+k}")
            e(f"v_and_b32 v{XF+2*k+1}, 0xffff0000, v{XG+k}")
        else:
            e(f"v_lshlrev_b32 v{XF+14}, 16, v{XG+7}")
            e(f"v_and_b32 v{XF+15}, 0xffff0000, v{XG+7}")
    a.ds_wait_all()
    lds_sync(5, 4, T + 1, T + 2)
    srd(a, rW3, pOUT, X_BYTES)
    e(f"s_and_b32 s{sT1}, s{sWq}, 1")
    e(f"s_lshl1_add_u32 s{sT1}, s{sTB}, s{sT1}")
    e(f"s_lshl_b32 s{sH0}, s{sT1}, 15")
    e(f"s_lshl_b32 s{sT1}, s{sWq}, 13")
    e(f"s_add_u32 s{sH0}, s{sH0}, s{sT1}")
    e(f"s_add_u32 s{sH0}, s{sH0}, {O_OFF}")
    e(f"s_xor_b32 s{sH1}, s{sH0}, 32768")
    e(f"v_min_u32 v{T}, 1, v{vLane}")
    e(f"v_lshlrev_b32 v{T}, 2, v{T}")
    e(f"s_lshl3_add_u32 s{sT1}, s{sTB}, s{sWq}")
    e(f"s_add_u32 s{sT1}, s{sT1}, 28")
    e(f"v_add_lshl_u32 v{vCt}, v{T}, s{sT1}, 7")
    e(f"v_lshrrev_b32 v{T}, 5, v{vLane}")
    e(f"v_lshl_add_u32 v{vIO}, v{T}, 3, v{vIO}")
    sp.stamp("grdy")
    lds_spin(9, 4, T, T + 1, 3)
    e(f"s_setprio 2")
    poll(vCt, T + 1, 4, opt.get("osleep", 1))
    sp.stamp("ordy"); sp.stamp("ordy", lvl=4)
    for s in range(8):
        if s == 4:
            e(f"s_add_u32 s{sH0}, s{sH0}, 4096")
            e(f"s_add_u32 s{sH1}, s{sH1}, 4096")
        a.vm_op(f"buffer_load_dwordx4 v[{OF+8*s}:{OF+8*s+3}], v{vSt}, {S(rWS)}, s{sH0} offen offset:{(s%4)*1024}{LD}", f"o{s}")
        a.vm_op(f"buffer_load_dwordx4 v[{OF+8*s+4}:{OF+8*s+7}], v{vSt}, {S(rWS)}, s{sH1} offen offset:{(s%4)*1024}{LD}", f"o{s}")
    sp.stamp("oiss", lvl=4, nowait=True)
    for s in range(8):
        a.vm_wait(f"o{s}")
        if s in (0, 7): sp.stamp("o", lvl=4, nowait=True)
        mm(s, WO_F + 8 * s, OF + 8 * s)
    exchange(6)
    sp.stamp("ex", lvl=4)
    for k in range(16): e(f"v_fma_f32 v{ACCG+k}, v{ACCG+k}, v{GF+k}, v{XF+k}")
    for k in range(8): e(f"v_cvt_pk_bf16_f32 v{U+k}, v{ACCG+2*k}, v{ACCG+2*k+1}")
    for pr in range(2):
        e(f"v_permlane32_swap_b32 v{U+4*pr}, v{U+4*pr+2}")
        e(f"v_permlane32_swap_b32 v{U+4*pr+1}, v{U+4*pr+3}")
    e(f"buffer_store_dwordx4 v[{U}:{U+3}], v{vIO}, {S(rW3)}, s{sI0} offen{opt.get('ost', '')}")
    e(f"buffer_store_dwordx4 v[{U+4}:{U+7}], v{vIO}, {S(rW3)}, s{sI0} offen offset:32{opt.get('ost', '')}")
    hdiag(1)
    sp.stamp("end"); sp.stamp("end", lvl=4)
    if sp.on == 4: e("s_waitcnt vmcnt(0)")
    sp.stamp("drain", lvl=4)
    sp.dump(pWS, sW)
    a.label("L_end")
    e("s_endpgm")
    return kd(NAME, 256)

if __name__ == "__main__":
    opt = json.loads(sys.argv[2]) if len(sys.argv) > 2 else {}
    a = Asm()
    a.raw("; one workgroup per CU; workgroups hand data over through d_ws (write-through stores + counters)")
    a.raw("; @launch grid=(256,1,1) block=(512,1,1) lds=163840")
    a.raw('.amdgcn_target "amdgcn-amd-amdhsa--gfx950"')
    a.raw(".text")
    k = gen(a, opt)
    a.raw("L_code_end:")
    a.raw(".fill 64, 4, 0xbf800000")
    a.raw("    s_endpgm")
    a.raw('.section .rodata,"a"')
    a.raw(k)
    open(sys.argv[1], "w").write(a.text())
    print("nops inserted:", a.nops, "lines:", len(a.lines))
```

```python
import sys, json
from common import *
from gemm64 import *
BIAS = 32.0
NAME = "recurrent_scan__softmax_full_mha__glu_gated_swiglu__prompt_kernel"

def gen(a, opt):
    ST = opt.get("st", " sc1")
    LD = " sc1"
    NPH = opt.get("nph", 2)
    kernel_head(a, NAME)
    e = a.e
    uid = [0]
    def lab(p):
        uid[0] += 1; return f"L_{p}{uid[0]}"
    pX, pWQ, pWO, pW1, pW3, pW2, pOUT, pDBG, pWS = 4, 6, 8, 12, 14, 16, 18, 20, 22
    rX, rW1, rW3, rA, rB, rWS = 24, 28, 32, 36, 40, 44
    S = lambda r: f"s[{r}:{r+3}]"
    sW, sTT, sG, sRB, sCOL, sTTG = 48, 49, 50, 51, 52, 53
    sSO = [[54, 55], [56, 56], [57, 57]]
    sP64, sM0, sCurA, sCurB, sOnes, sLo, sHi, sHoff, sQKoff, sQKstep = 58, 59, 60, 61, 62, 63, 64, 65, 66, 67
    sT1, sT2, sT3, sStat, sPh, sHoff2 = 68, 69, 70, 71, 72, 73
    X0, AA, AB, WF, T0 = 16, 128, 160, 192, 216
    vLane, vSt, vD0, vD1, vD2B = 1, 2, 3, 4, 250
    vTB = [[5, 6], [7, 8], [9, 243]]
    vTW = [10, 11]
    vXR = [12, 13, 14, 15]
    vK, vC1, vSc, vP6, vP7, vFlag, vV3, vV4 = 232, 233, 234, 236, 237, 238, 239, 235
    vXW = [240, 241]; vStat = 242; vNM = 243; vAcc = [244, 245, 246, 247]; vV1, vV2 = 248, 249
    vDum = 251
    RAW = 128
    SCR = 7 * 16384
    SYNC = 163840 - 256
    e("s_cmp_ge_u32 s2, 256")
    e("s_cbranch_scc1 L_end")
    sp = Stamper(a, opt.get("stamp"), 0)
    sp.stamp("rt", True); sp.stamp("start")
    if opt.get("hdiag") or opt.get("pad"): e("s_memrealtime s[76:77]"); e("s_memtime s[78:79]")
    e("s_load_dwordx16 s[4:19], s[0:1], 0")
    e("s_load_dwordx4 s[20:23], s[0:1], 64")
    RL = 3
    sWR, sXa, sXb, sGS = sStat, sOnes, sLo, sHi
    e(f"v_lshrrev_b32 v22, 6, v0")
    e(f"v_and_b32 v{vLane}, 63, v0")
    e(f"v_readfirstlane_b32 s{sW}, v22")
    e(f"s_and_b32 s{sT1}, s2, 1")
    e(f"s_bfe_u32 s{sT2}, s2, 0x30003")
    e(f"s_lshl3_add_u32 s{sRB}, s{sT1}, s{sT2}")
    e(f"s_bfe_u32 s{sT1}, s2, 0x20001")
    e(f"s_lshr_b32 s{sT2}, s2, 6")
    e(f"s_lshl2_add_u32 s{sCOL}, s{sT1}, s{sT2}")
    e(f"v_bfe_u32 v22, v0, 3, 3")
    e(f"v_and_b32 v23, 7, v0")
    e(f"s_lshl_b32 s{sT1}, s{sT2}, 2")
    e(f"s_and_b32 s{sWR}, s{sT1}, 4")
    e(f"s_xor_b32 s{sWR}, s{sWR}, s{sW}")
    e(f"s_and_b32 s{sGS}, s{sT1}, 8")
    e(f"s_lshl3_add_u32 s{sT1}, s{sRB}, s{sWR}")
    e(f"s_lshl4_add_u32 s{sT2}, s{sT1}, s{sGS}")
    e(f"s_xor_b32 s{sT1}, s{sT2}, 8")
    e(f"s_mulk_i32 s{sT2}, 896")
    e(f"s_mulk_i32 s{sT1}, 896")
    e(f"v_mul_u32_u24 v24, 896, v22")
    e(f"v_lshl_add_u32 v24, v23, 4, v24")
    e(f"s_mov_b32 s{rX+2}, {hex(X_BYTES)}")
    e(f"s_mov_b32 s{rX+3}, 0x20000")
    e(f"s_cmp_ge_u32 s{sW}, 4")
    e("s_waitcnt lgkmcnt(0)")
    e(f"s_mov_b64 s[{rX}:{rX+1}], s[{pX}:{pX+1}]")
    def xloads(lo, hi, sa, sb):
        for k in range(lo, hi):
            gi, i = divmod(k, 7)
            r = RAW + k * 4
            e(f"buffer_load_dwordx4 v[{r}:{r+3}], v24, {S(rX)}, s{sa if gi == 0 else sb} offen offset:{i*128}")
    def touch():
        sh = opt.get("touchsh", 21)
        e(f"v_min_u32 v25, {(WS_USED >> sh) - 1}, v{vLane}")
        e(f"v_lshlrev_b32 v25, {sh}, v25")
        e(f"global_load_dword v{vDum+1}, v25, s[{pWS}:{pWS+1}]")
        e(f"v_mov_b32 v25, 0")
        for p in (pW1, pW3, pWQ, pW2, pWO, pOUT, pDBG):
            e(f"global_load_dword v{vDum+1}, v25, s[{p}:{p+1}]")
    XE = opt.get("xe", 10)
    e(f"s_cbranch_scc1 L_x0")
    a.skip_begin(); xloads(0, XE, sT2, sT1)
    e(f"s_branch L_x1")
    a.label("L_x0")
    e(f"s_getpc_b64 s[74:75]")
    a.label("L_pc")
    e(f"s_add_u32 s74, s74, {NAME}-L_pc")
    e(f"s_addc_u32 s75, s75, -1")
    e(f"s_lshr_b32 s3, s2, 3")
    e(f"s_lshl_b32 s3, s3, 7")
    e(f"v_and_b32 v20, 255, v0")
    e(f"v_lshl_add_u32 v20, v20, 12, s3")
    e(f"v_min_u32 v{vDum}, L_code_end-{NAME}-4, v20")
    e(f"global_load_dword v{vDum}, v{vDum}, s[74:75]")
    if opt.get("touch") == 1: touch()
    a.skip_end()
    a.label("L_x1")
    sp.stamp("xiss", lvl=3)
    e(f"s_mov_b32 s{sXa}, s{sT2}")
    e(f"s_mov_b32 s{sXb}, s{sT1}")
    def srd2(d, base, nbytes):
        e(f"s_mov_b64 s[{d}:{d+1}], s[{base}:{base+1}]")
        e(f"s_mov_b32 s{d+2}, {hex(nbytes)}")
        e(f"s_mov_b32 s{d+3}, 0x20000")
    srd2(rWS, pWS, WS_USED)
    e(f"s_or_b32 s{sT3}, s2, s{sW}")
    e(f"s_cbranch_scc1 L_noinit")
    a.skip_begin()
    e(f"v_lshlrev_b32 v25, 7, v{vLane}")
    e(f"v_mov_b32 v26, 0")
    e(f"s_mov_b32 s3, {CNT_OFF}")
    for q in range(5):
        if q: e(f"s_add_u32 s3, s3, 8192")
        e(f"buffer_store_dword v26, v25, {S(rWS)}, s3 offen sc1")
    a.skip_end()
    a.label("L_noinit")
    e(f"s_and_b32 s{sTT}, s{sW}, 3")
    e(f"s_lshr_b32 s{sG}, s{sW}, 2")
    e(f"s_lshl_b32 s{sM0}, s{sW}, 10")
    e(f"s_lshl_b32 s{sPh}, s{sG}, 1")
    sTc0a, sTc0b = sCurA, sCurB
    e(f"s_cmp_ge_u32 s{sCOL}, 12")
    e(f"s_cbranch_scc1 L_r0f")
    srd2(rA, pWQ, WQ_BYTES)
    e(f"s_mov_b64 s[{rB}:{rB+1}], s[{pWQ}:{pWQ+1}]")
    e(f"s_and_b32 s{sT2}, s{sCOL}, 3")
    e(f"s_mul_i32 s{sSO[0][0]}, s{sCOL}, 224")
    e(f"s_cmp_eq_u32 s{sT2}, 3")
    e(f"s_cselect_b32 s{sT3}, 32, 0")
    e(f"s_sub_u32 s{sSO[0][0]}, s{sSO[0][0]}, s{sT3}")
    e(f"s_add_u32 s{sSO[0][1]}, s{sSO[0][0]}, 128")
    e(f"s_mul_i32 s{sTc0a}, s{sG}, 112")
    e(f"s_add_u32 s{sTc0a}, s{sTc0a}, s{sT3}")
    e(f"s_add_u32 s{sTc0b}, s{sTc0a}, 56")
    e(f"s_movk_i32 s{sP64}, 2688")
    e(f"s_branch L_r0j")
    a.label("L_r0f")
    srd2(rA, pW1, W1_BYTES)
    e(f"s_mov_b64 s[{rB}:{rB+1}], s[{pW3}:{pW3+1}]")
    e(f"s_add_u32 s{sT1}, s{sCOL}, 12")
    e(f"s_lshl_b32 s{sSO[0][0]}, s{sT1}, 7")
    e(f"s_mov_b32 s{sSO[0][1]}, s{sSO[0][0]}")
    e(f"s_lshl_b32 s{sTc0a}, s{sG}, 6")
    e(f"s_add_u32 s{sTc0b}, s{sTc0a}, 128")
    e(f"s_movk_i32 s{sP64}, 3584")
    a.label("L_r0j")
    a.reset_hist()
    e(f"s_mov_b32 s{rB+2}, s{rA+2}")
    e(f"s_mov_b32 s{rB+3}, 0x20000")
    e(f"s_and_b32 s{sT3}, s{sRB}, 7")
    if opt.get("wpf0", 1):
        e(f"s_cmp_{'lt' if opt.get('wpf0', 2) == 1 else 'ge'}_u32 s{sW}, 4")
        e(f"s_cbranch_scc1 L_w0")
        a.skip_begin()
        e(f"s_mul_i32 s{sT2}, s{sTT}, 48")
        e(f"s_add_u32 s{sT2}, s{sT2}, s{sT3}")
        e(f"v_min_u32 v30, 5, v{vLane}")
        e(f"v_lshl_add_u32 v30, v30, 3, s{sT2}")
        e(f"v_mul_lo_u32 v30, v30, s{sP64}")
        e(f"buffer_load_dword v{vDum+1}, v30, {S(rA)}, s{sSO[0][0]} offen")
        e(f"buffer_load_dword v{vDum+1}, v30, {S(rB)}, s{sSO[0][1]} offen")
        a.skip_end()
        a.label("L_w0")
    e(f"v_lshrrev_b32 v25, 2, v{vLane}")
    e(f"v_and_b32 v25, 4, v25")
    e(f"v_xor_b32 v25, v25, v23")
    e(f"v_lshl_add_u32 v26, s{sW}, 3, v22")
    e(f"v_mul_lo_u32 v{vD0}, v26, s{sP64}")
    e(f"v_lshl_add_u32 v{vD0}, v25, 4, v{vD0}")
    e(f"v_mul_u32_u24 v{vD1}, 3584, v26")
    e(f"v_lshl_add_u32 v{vD1}, v25, 4, v{vD1}")
    e(f"s_lshl_b32 s{sT1}, s{sP64}, 5")
    e(f"v_subrev_u32 v32, s{sT1}, v{vD0}")
    vRow, vSwz, vCol = vV1, vV2, vV3
    e(f"v_lshrrev_b32 v26, 5, v{vLane}")
    e(f"v_bfe_u32 v27, v{vLane}, 2, 2")
    e(f"v_lshl_add_u32 v27, v26, 3, v27")
    e(f"v_lshlrev_b32 v{vRow}, 7, v27")
    e(f"v_and_b32 v28, 8, v{vLane}")
    e(f"v_lshlrev_b32 v{vSwz}, 3, v28")
    e(f"v_and_b32 v29, 3, v{vLane}")
    e(f"v_and_b32 v30, 16, v{vLane}")
    e(f"v_lshlrev_b32 v30, 1, v30")
    e(f"v_lshl_add_u32 v{vCol}, v29, 3, v30")
    def traddr(d, stc, t0, t1):
        return [f"v_add_u32 v{t0}, s{stc}, v{vCol}", f"v_and_b32 v{t1}, 127, v{t0}", f"v_xor_b32 v{t1}, v{t1}, v{vSwz}",
                f"v_and_b32 v{t0}, 128, v{t0}", f"v_lshl_add_u32 v{t0}, v{t0}, 6, v{t1}", f"v_add_u32 v{d}, v{t0}, v{vRow}"]
    for t in traddr(vTB[0][0], sTc0a, 30, 31) + traddr(vTB[0][1], sTc0b, 30, 31): e(t)
    e(f"s_and_b32 s{sT1}, s{sWR}, 1")
    e(f"s_lshl4_add_u32 s{sT1}, s{sT1}, s{sGS}")
    e(f"v_add_u32 v30, s{sT1}, v22")
    e(f"v_xor_b32 v30, v30, v23")
    e(f"v_lshlrev_b32 v30, 4, v30")
    e(f"v_lshrrev_b32 v31, 1, v23")
    e(f"v_lshl_add_u32 v30, v31, 12, v30")
    e(f"v_and_b32 v31, 1, v23")
    e(f"v_lshl_add_u32 v30, v31, 9, v30")
    e(f"s_lshr_b32 s{sT1}, s{sWR}, 1")
    e(f"v_lshl_add_u32 v{vXW[0]}, s{sT1}, 10, v30")
    e(f"v_add_u32 v{vXW[1]}, 0x10000, v{vXW[0]}")
    e(f"v_and_b32 v30, 31, v{vLane}")
    e(f"v_xor_b32 v30, v30, v26")
    e(f"v_lshlrev_b32 v30, 4, v30")
    e(f"v_lshl_add_u32 v30, v26, 9, v30")
    e(f"v_lshl_add_u32 v{vXR[0]}, s{sTT}, 10, v30")
    for q in range(1, 4):
        e(f"v_xor_b32 v{vXR[q]}, {q*4096 + q*32}, v{vXR[0]}")
    e(f"s_lshl4_add_u32 s{sT1}, s{sWR}, s{sGS}")
    e(f"v_add_lshl_u32 v{vStat}, v22, s{sT1}, 2")
    e(f"s_mul_i32 s{sT2}, s{sTT}, 112")
    e(f"s_add_u32 s{sT1}, s{sT3}, s{sT2}")
    e(f"v_min_u32 v30, 13, v{vLane}")
    e(f"v_lshl_add_u32 v30, v30, 3, s{sT1}")
    e(f"v_mul_u32_u24 v{vDum+3}, 3584, v30")
    e(f"s_lshl_b32 s{sT2}, s{sTT}, 6")
    e(f"s_add_u32 s{sT1}, s{sT3}, s{sT2}")
    e(f"s_add_u32 s{sT1}, s{sT1}, 192")
    e(f"v_min_u32 v31, 7, v{vLane}")
    e(f"v_lshl_add_u32 v31, v31, 3, s{sT1}")
    e(f"v_mul_lo_u32 v{vDum+2}, v31, s{sP64}")
    e(f"s_lshl_b32 s{sP64}, s{sP64}, 6")
    srd2(rW1, pW1, W1_BYTES)
    srd2(rW3, pW3, W1_BYTES)
    e(f"s_lshl_b32 s{sSO[1][0]}, s{sCOL}, 7")
    e(f"s_lshr_b32 s{sT1}, s{sCOL}, 1")
    e(f"s_add_u32 s{sT1}, s{sT1}, 16")
    e(f"s_lshl_b32 s{sSO[2][0]}, s{sT1}, 7")
    e(f"s_cmp_lt_u32 s{sW}, 4")
    e(f"s_cbranch_scc1 L_x2")
    a.skip_begin(); xloads(0, XE, sXa, sXb); a.skip_end()
    a.label("L_x2")
    xloads(XE, 14, sXa, sXb)
    e(f"s_lshl_b32 s{sStat}, s2, 9")
    e(f"s_add_u32 s{sStat}, s{sStat}, {ST_OFF}")
    e(f"s_mov_b32 s{sOnes}, 0x3f803f80")
    e(f"s_movk_i32 s{sLo}, 0x3f80")
    e(f"s_mov_b32 s{sHi}, 1.0")
    def slot(c):
        if c < 3: return 7 + c
        if c < 10: return c - 3
        if c == 20: return 7
        return slot(c - 9)
    dma_next = [3]
    def dma(c, track=True):
        r, cc = divmod(c, 7)
        if cc == 0:
            e(f"s_mov_b32 s{sCurA}, s{sSO[r][0]}")
            if r == 0: e(f"s_mov_b32 s{sCurB}, s{sSO[r][1]}")
        va, vb = [(vD0, vD0), (vD1, vD1), (vD1, vD2B)][r]
        sa, sb = (rA, rB) if r == 0 else (rW1, rW3)
        inc = f"s{sP64}" if r == 0 else f"{64*3584}"
        e(f"s_add_u32 m0, s{sM0}, {slot(c)*16384}")
        if cc: e(f"s_add_u32 s{sCurA}, s{sCurA}, {inc}")
        e(f"buffer_load_dwordx4 v{va}, {S(sa)}, s{sCurA} offen lds")
        e(f"s_add_u32 m0, s{sM0}, {slot(c)*16384+8192}")
        if cc and r == 0: e(f"s_add_u32 s{sCurB}, s{sCurB}, {inc}")
        e(f"buffer_load_dwordx4 v{vb}, {S(sb)}, s{sCurB if r == 0 else sCurA} offen lds")
        if track: a.vm += [f"c{c}", f"c{c}"]
    for q in range(8): e(f"v_mov_b32 v{T0+8+q}, 0")
    e(f"s_cmp_lt_u32 s{sW}, 4")
    e(f"s_cbranch_scc1 L_lnA")
    e(f"s_waitcnt vmcnt(0)")
    def dma4(c):
        dma(c, track=False)
        e(f"s_add_u32 m0, s{sM0}, {slot(c)*16384 - 4096}")
        e(f"buffer_load_dwordx4 v32, {S(rA)}, s{sCurA} offen lds")
        e(f"s_add_u32 m0, s{sM0}, {slot(c)*16384 + 8192 - 4096}")
        e(f"buffer_load_dwordx4 v32, {S(rB)}, s{sCurB} offen lds")
        a.vm += [f"c{c}"] * 4
    C2 = opt.get("c2pos", 1)
    for c in range(3 if C2 == 0 else 2): dma4(c)
    e(f"s_branch L_lnB")
    a.label("L_lnA")
    e(f"s_lshl1_add_u32 s{sCurA}, s{sP64}, s{sSO[0][0]}")
    e(f"s_lshl1_add_u32 s{sCurB}, s{sP64}, s{sSO[0][1]}")
    e(f"s_waitcnt vmcnt(0)")
    a.label("L_lnB")
    a.reset_hist()
    sp.stamp("x0"); sp.stamp("x0", lvl=3)
    AC = T0 + 8
    def reduce2(d0, d1):
        for g in range(2): e(f"v_add_f32 v{AC+4*g}, v{AC+4*g}, v{AC+4*g+1}")
        for g in range(2): e(f"v_add_f32 v{AC+4*g+2}, v{AC+4*g+2}, v{AC+4*g+3}")
        for g, d in enumerate((d0, d1)): e(f"v_add_f32 v{d}, v{AC+4*g}, v{AC+4*g+2}")
        for m in ("quad_perm:[1,0,3,2]", "quad_perm:[2,3,0,1]", "row_half_mirror"):
            for d in (d0, d1): e(f"v_add_f32_dpp v{d}, v{d}, v{d} {m} row_mask:0xf bank_mask:0xf")
    for i in range(28):
        for g in range(2): e(f"v_dot2c_f32_bf16 v{AC+4*g+i%4}, s{sOnes}, v{RAW+g*28+i}")
    reduce2(vAcc[0], vAcc[1])
    for q in range(8): e(f"v_mov_b32 v{AC+q}, 0")
    for g in range(2): e(f"v_mul_f32 v{vAcc[g]}, {hexf(-1.0/448)}, v{vAcc[g]}")
    if C2 == 1:
        e(f"s_cmp_lt_u32 s{sW}, 4")
        e(f"s_cbranch_scc1 L_c2")
        a.skip_begin(); dma4(2); a.skip_end()
        a.label("L_c2")
    sp.stamp("pre", lvl=3)
    pend = None
    for gi in range(2):
        for i in range(7):
            r = RAW + gi * 28 + i * 4
            for k in range(4):
                e(f"v_dot2_f32_bf16 v{T0+2*k}, v{r+k}, s{sLo}, v{vAcc[gi]}")
                e(f"v_dot2_f32_bf16 v{T0+2*k+1}, v{r+k}, s{sHi}, v{vAcc[gi]}")
            if pend: pend()
            for k in range(4):
                e(f"v_cvt_pk_bf16_f32 v{r+k}, v{T0+2*k}, v{T0+2*k+1}")
            def pend(r=r, gi=gi, i=i):
                off = i * 16384
                a.ds_op(f"ds_write_b128 v{vXW[off >> 16]}, v[{r}:{r+3}] offset:{off & 0xffff}", "xw")
                if i == 6 and gi == 0:
                    e(f"v_xor_b32 v{vXW[0]}, 128, v{vXW[0]}")
                    e(f"v_xor_b32 v{vXW[1]}, 128, v{vXW[1]}")
    pend()
    if C2 == 2:
        e(f"s_cmp_lt_u32 s{sW}, 4")
        e(f"s_cbranch_scc1 L_c2")
        a.skip_begin(); dma4(2); a.skip_end()
        a.label("L_c2")
    sp.stamp("post", lvl=3)
    for i in range(28):
        for g in range(2): e(f"v_dot2c_f32_bf16 v{AC+4*g+i%4}, v{RAW+g*28+i}, v{RAW+g*28+i}")
    e(f"v_mov_b32 v{T0}, {hexf(1e-5)}")
    e(f"v_mov_b32 v{T0+1}, {hexf(1e-5)}")
    e(f"v_xor_b32 v{T0+2}, 32, v{vStat}")
    reduce2(vAcc[0], vAcc[1])
    for g in range(2): e(f"v_fmac_f32 v{T0+g}, {hexf(1.0/448)}, v{vAcc[g]}")
    def wpf():
        e(f"buffer_load_dword v{vDum+1}, v{vDum+2}, {S(rA)}, s{sSO[0][0]} offen")
        e(f"buffer_load_dword v{vDum+1}, v{vDum+2}, {S(rB)}, s{sSO[0][1]} offen")
        for r in (1, 2):
            e(f"buffer_load_dword v{vDum+1}, v{vDum+3}, {S(rW1)}, s{sSO[r][0]} offen")
            e(f"buffer_load_dword v{vDum+1}, v{vDum+3}, {S(rW3)}, s{sSO[r][0]} offen")
        if opt.get("w2pf", 3) == 3:
            e(f"s_lshl2_add_u32 s{sT1}, s2, s{sW}")
            e(f"s_mul_i32 s{sT2}, s{sT1}, {13*128}")
            e(f"s_lshl_b32 s{sT1}, s{sT1}, 9")
            e(f"v_min_u32 v{vDum+2}, 12, v{vLane}")
            e(f"v_lshl_add_u32 v{vDum+2}, v{vDum+2}, 7, s{sT2}")
            e(f"v_min_u32 v{vDum+2}, {W2_BYTES-4}, v{vDum+2}")
            e(f"v_min_u32 v{vDum+3}, 3, v{vLane}")
            e(f"v_lshl_add_u32 v{vDum+3}, v{vDum+3}, 7, s{sT1}")
            e(f"v_min_u32 v{vDum+3}, {WO_BYTES-4}, v{vDum+3}")
            e(f"global_load_dword v{vDum+1}, v{vDum+2}, s[{pW2}:{pW2+1}]")
            e(f"global_load_dword v{vDum+1}, v{vDum+3}, s[{pWO}:{pWO+1}]")
    e(f"s_cmp_ge_u32 s{sW}, 4")
    e(f"s_cbranch_scc1 L_lnD")
    a.skip_begin()
    e(f"s_or_b32 s{sT3}, s2, s{sW}")
    e(f"s_cbranch_scc1 L_noflag")
    e(f"v_mov_b32 v25, 0")
    e(f"v_mov_b32 v26, 1")
    e(f"global_store_dword v25, v26, s[{pDBG}:{pDBG+1}] sc1")
    a.label("L_noflag")
    if opt.get("touch") == 2: touch()
    if opt.get("wpf", 1) == 1: wpf()
    e(f"s_branch L_lnE")
    a.skip_end()
    a.label("L_lnD")
    sp.stamp("ln", lvl=3, nowait=True)
    a.vm_wait("c1")
    a.label("L_lnE")
    a.ds_wait_all()
    sp.stamp("ln")
    sp.stamp("c1", lvl=3)
    e("s_barrier")
    sp.stamp("b1"); sp.stamp("b1", lvl=3)
    def deferred():
        t0, t1, t2 = AB, AB + 1, AB + 2
        G = lambda *ins: (lambda: [e(x) for x in ins], sum(2 if x.startswith("s_") else 4 for x in ins))
        L = []
        L.append(G(f"v_xor_b32 v{vD2B}, 32, v{vD1}", f"v_lshlrev_b32 v{vSt}, 4, v{vLane}", f"s_mov_b32 vcc_lo, -1", f"s_mov_b32 vcc_hi, 0"))
        L.append(G(f"s_lshl2_add_u32 s{sTTG}, s{sRB}, s{sTT}", f"s_lshl_b32 s{sHoff}, s{sG}, 6"))
        L += [G(x) for x in traddr(vTB[1][0], sHoff, t0, t1)]
        L.append(G(f"v_add_u32 v{vTB[1][1]}, 8192, v{vTB[1][0]}"))
        L.append(G(f"s_and_b32 s{sHoff}, s{sCOL}, 1", f"s_lshl_b32 s{sHoff2}, s{sHoff}, 1", f"s_lshl_b32 s{sHoff}, s{sHoff2}, 5",
                   f"v_xor_b32 v{t0}, s{sHoff}, v{vCol}"))
        L.append(G(f"v_xor_b32 v{t0}, v{t0}, v{vSwz}", f"v_and_b32 v{t1}, 16, v{vLane}"))
        L.append(G(f"v_lshl_add_u32 v{t0}, v{t1}, 9, v{t0}", f"v_add_u32 v{vTB[2][0]}, v{t0}, v{vRow}", f"v_xor_b32 v{vTB[2][1]}, 32, v{vTB[2][0]}"))
        L.append(G(f"s_mul_i32 s{sHoff}, s{sTTG}, 112", f"s_add_u32 s{sHoff2}, s{sHoff2}, s{sHoff}", f"s_lshr_b32 s{sQKoff}, s{sSO[2][0]}, 5",
                   f"s_add_u32 s{sHoff2}, s{sHoff2}, s{sQKoff}", f"s_lshl_b32 s{sHoff2}, s{sHoff2}, 10", f"s_add_u32 s{sHoff2}, s{sHoff2}, {H_OFF}"))
        L.append(G(f"s_lshl1_add_u32 s{sHoff}, s{sG}, s{sHoff}", f"s_lshl2_add_u32 s{sHoff}, s{sCOL}, s{sHoff}", f"s_lshl_b32 s{sHoff}, s{sHoff}, 10",
                   f"s_add_u32 s{sHoff}, s{sHoff}, {H_OFF}"))
        L.append(G(f"s_lshl1_add_u32 s{sQKoff}, s{sCOL}, s{sG}", f"s_lshl_b32 s{sQKoff}, s{sQKoff}, 7", f"s_add_u32 s{sQKoff}, s{sQKoff}, s{sTTG}",
                   f"s_lshl_b32 s{sQKoff}, s{sQKoff}, 11", f"s_add_u32 s{sQKstep}, s{sHoff}, {12*4096}", f"s_cmp_ge_u32 s{sCOL}, 12",
                   f"s_cselect_b32 s{sQKoff}, s{sQKstep}, s{sQKoff}"))
        L.append(G(f"s_lshr_b32 s{sQKstep}, s{sCOL}, 2", f"s_cmp_eq_u32 s{sQKstep}, 1", f"s_cselect_b32 s{sOnes}, s{sOnes}, 0", f"s_cselect_b32 s{sHi}, s{sLo}, 0",
                   f"s_cmp_eq_u32 s{sQKstep}, 2", f"s_cselect_b32 s{sOnes}, s{sLo}, s{sOnes}"))
        L.append(G(f"v_mov_b32 v{vP6}, s{sOnes}", f"v_mov_b32 v{vP7}, s{sHi}"))
        L.append(G(f"v_lshrrev_b32 v{t2}, 5, v{vLane}", f"v_bfe_u32 v{t0}, v{vLane}, 2, 2", f"v_lshl_add_u32 v{t0}, v{t2}, 2, v{t0}"))
        L.append(G(f"v_lshrrev_b32 v{t1}, 1, v{t0}", f"v_lshlrev_b32 v{t1}, 3, v{t1}", f"v_xor_b32 v{t1}, v{t1}, v{vCol}"))
        L.append(G(f"s_lshl_b32 s{sQKstep}, s{sW}, 11", f"s_add_u32 s{sQKstep}, s{sQKstep}, {SCR}", f"v_lshl_add_u32 v{t0}, v{t0}, 6, v{t1}",
                   f"v_add_u32 v{vV2}, s{sQKstep}, v{t0}"))
        L.append(G(f"v_xor_b32 v{vV3}, 32, v{vV2}", f"v_bfe_u32 v{t0}, v{vLane}, 1, 3", f"v_xor_b32 v{t0}, v{t0}, v{t2}"))
        L.append(G(f"v_and_b32 v{t1}, 31, v{vLane}", f"v_lshlrev_b32 v{t1}, 6, v{t1}", f"v_lshl_add_u32 v{t0}, v{t0}, 3, v{t1}"))
        L.append(G(f"v_add_u32 v{vV1}, s{sQKstep}, v{t0}"))
        return L
    def hdiag(k):
        if not opt.get("hdiag"): return
        if k == 0: return
        e("s_cmp_ge_u32 s2, 7")
        e("s_cbranch_scc1 L_end")
        e(f"s_cmp_lg_u32 s{sW}, 4")
        e("s_cbranch_scc1 L_end")
        e("s_memrealtime s[80:81]"); e("s_memtime s[82:83]")
        e("s_waitcnt vmcnt(0) lgkmcnt(0)")
        e("s_mov_b64 exec, 1")
        e("s_lshl_b32 s3, s2, 3")
        e("v_mov_b32 v0, s3")
        e("s_sub_u32 s84, s82, s78")
        e("s_sub_u32 s80, s80, s76")
        e("s_and_b32 s76, s76, 0xffff")
        e("s_lshl_b32 s80, s80, 16")
        e("s_or_b32 s76, s76, s80")
        e("v_mov_b32 v2, s76"); e("v_mov_b32 v3, s84")
        e(f"global_store_dword v0, v2, s[{pDBG}:{pDBG+1}] offset:4")
        e(f"global_store_dword v0, v3, s[{pDBG}:{pDBG+1}] offset:8")
    def check_flag(vtmp):
        done = lab("fl")
        e(f"v_readfirstlane_b32 s{sT1}, v{vFlag}")
        e(f"s_cmp_lg_u32 s{sT1}, 0")
        e(f"s_cbranch_scc1 {done}")
        e(f"s_mov_b32 s{sT2}, 0x40000")
        lp = lab("fs"); a.label(lp)
        e(f"v_mov_b32 v{vtmp}, 0")
        e(f"global_load_dword v{vFlag}, v{vtmp}, s[{pDBG}:{pDBG+1}] sc1")
        e(f"s_waitcnt vmcnt(0)")
        e(f"v_readfirstlane_b32 s{sT1}, v{vFlag}")
        e(f"s_sub_u32 s{sT2}, s{sT2}, 1")
        e(f"s_cselect_b32 s{sT1}, 1, s{sT1}")
        e(f"s_cmp_eq_u32 s{sT1}, 0")
        e(f"s_cbranch_scc1 {lp}")
        a.label(done)
    def signal(sIdx, add, va, vb):
        e(f"s_add_u32 s{sT1}, s{sIdx}, {add}")
        e(f"s_lshl_b32 s{sT1}, s{sT1}, 7")
        e(f"s_add_u32 s{sT1}, s{sT1}, {CNT_OFF}")
        e(f"v_mov_b32 v{va}, 0")
        e(f"v_mov_b32 v{vb}, 1")
        e(f"s_mov_b64 exec, 1")
        e(f"buffer_atomic_add v{vb}, v{va}, {S(rWS)}, s{sT1} offen sc1")
        e(f"s_mov_b64 exec, -1")
    def poll(vaddr, vval, target, sleep):
        lp = lab("po"); done = lab("pd")
        e(f"s_mov_b32 s{sT2}, 0x40000")
        e(f"s_mov_b32 s{sT3}, {CNT_OFF}")
        a.label(lp)
        e(f"buffer_load_dword v{vval}, v{vaddr}, {S(rWS)}, s{sT3} offen sc1")
        e(f"s_waitcnt vmcnt(0)")
        e(f"v_cmp_gt_u32 s[74:75], {target}, v{vval}")
        e(f"s_cmp_eq_u64 s[74:75], 0")
        e(f"s_cbranch_scc1 {done}")
        e(f"s_sleep {sleep}")
        e(f"s_sub_u32 s{sT2}, s{sT2}, 1")
        e(f"s_cbranch_scc0 {lp}")
        a.label(done)
        a.vm = []
    def lds_arrive(k, va, vb, rtn=False):
        e(f"v_mov_b32 v{va}, {SYNC + 4*k}")
        e(f"v_mov_b32 v{vb}, 1")
        e(f"s_mov_b64 exec, 1")
        e(f"ds_add_rtn_u32 v{vb}, v{va}, v{vb}" if rtn else f"ds_add_u32 v{va}, v{vb}")
        e(f"s_mov_b64 exec, -1")
    def lds_sync(k, n, va, vb, meanwhile=None):
        a.ds_wait_all()
        lds_arrive(k, va, vb)
        if meanwhile:
            e("s_nop 3"); meanwhile()
        lp = lab("ls")
        e(f"s_mov_b32 s{sT2}, 0x400000")
        a.label(lp)
        e(f"ds_read_b32 v{vb}, v{va}")
        e(f"s_waitcnt lgkmcnt(0)")
        e(f"v_readfirstlane_b32 s{sT1}, v{vb}")
        e(f"s_sub_u32 s{sT2}, s{sT2}, 1")
        e(f"s_cselect_b32 s{sT1}, {n}, s{sT1}")
        e(f"s_cmp_lt_u32 s{sT1}, {n}")
        e(f"s_cbranch_scc1 {lp}")
    def lds_spin(k, n, va, vb, sleep):
        lp = lab("ls"); ok = lab("lk")
        e(f"v_mov_b32 v{va}, {SYNC + 4*k}")
        e(f"s_mov_b32 s{sT2}, 0x100000")
        a.label(lp)
        e(f"ds_read_b32 v{vb}, v{va}")
        e(f"s_waitcnt lgkmcnt(0)")
        e(f"v_readfirstlane_b32 s{sT1}, v{vb}")
        e(f"s_cmp_ge_u32 s{sT1}, {n}")
        e(f"s_cbranch_scc1 {ok}")
        e(f"s_sleep {sleep}")
        e(f"s_sub_u32 s{sT2}, s{sT2}, 1")
        e(f"s_cbranch_scc0 {lp}")
        a.label(ok)
    def lds_check(k, n, va, vb):
        lp = lab("lc"); ok = lab("ld")
        e(f"s_mov_b32 s{sT2}, 0x400000")
        a.label(lp)
        e(f"s_waitcnt lgkmcnt(0)"); a.lg = []
        e(f"v_readfirstlane_b32 s{sT1}, v{vb}")
        e(f"s_cmp_ge_u32 s{sT1}, {n}")
        e(f"s_cbranch_scc1 {ok}")
        a.skip_begin()
        e(f"ds_read_b32 v{vb}, v{va}")
        e(f"s_sub_u32 s{sT2}, s{sT2}, 1")
        e(f"s_cbranch_scc0 {lp}")
        a.skip_end()
        a.label(ok)
    def lds_wait(k, n, va, vb, meanwhile):
        lp = lab("lw"); ok = lab("lo")
        e(f"v_mov_b32 v{va}, {SYNC + 4*k}")
        e(f"ds_read_b32 v{vb}, v{va}")
        meanwhile()
        e(f"s_mov_b32 s{sT2}, 0x400000")
        a.label(lp)
        e(f"s_waitcnt lgkmcnt(0)")
        e(f"v_readfirstlane_b32 s{sT1}, v{vb}")
        e(f"s_cmp_ge_u32 s{sT1}, {n}")
        e(f"s_cbranch_scc1 {ok}")
        e(f"ds_read_b32 v{vb}, v{va}")
        e(f"s_sub_u32 s{sT2}, s{sT2}, 1")
        e(f"s_cbranch_scc0 {lp}")
        a.label(ok)
    def last_signals(k, n, sIdx, add, va, vb):
        lds_arrive(k, va, vb, rtn=True)
        e(f"s_waitcnt lgkmcnt(0)"); a.lg = []
        e(f"v_readfirstlane_b32 s{sT1}, v{vb}")
        sk = lab("ns")
        e(f"s_cmp_lg_u32 s{sT1}, {n-1}")
        e(f"s_cbranch_scc1 {sk}")
        a.skip_begin()
        signal(sIdx, add, va, vb)
        a.skip_end()
        a.label(sk)
    NT = [2, 2, 2]
    ACC = [AA, AB, AA]
    tw_state = [None, None]
    def wreads(G):
        r, s = divmod(G, 28)
        base = slot(G // 4) * 16384 + (s % 4) * 2048
        hi, lo = base >> 16, base & 0xffff
        L = []
        for t in range(NT[r]):
            d = WF + (G % 3) * 8 + t * 4
            def f0(t=t, d=d):
                if tw_state[t] != (r, hi):
                    e(f"v_add_u32 v{vTW[t]}, {hex(hi << 16)}, v{vTB[r][t]}")
                    tw_state[t] = (r, hi)
                a.ds_op(f"ds_read_b64_tr_b16 v[{d}:{d+1}], v{vTW[t]} offset:{lo}", f"w{G}")
            def f1(t=t, d=d):
                a.ds_op(f"ds_read_b64_tr_b16 v[{d+2}:{d+3}], v{vTW[t]} offset:{lo+512}", f"w{G}")
            L += [f0, f1]
        return L
    xr_next = [0]
    def xread(n):
        for _ in range(n):
            s = xr_next[0]
            if s >= 28: return
            xr_next[0] += 1
            if s == 16:
                for q in range(4): e(f"v_add_u32 v{vXR[q]}, 0x10000, v{vXR[q]}")
            off = ((s // 4) * 16384) & 0xffff
            a.ds_op(f"ds_read_b128 v[{X0+4*s}:{X0+4*s+3}], v{vXR[s%4]} offset:{off}", f"x{s}")
    BARS = opt.get("bars", [0, 1, 2, 3, 5, 7, 9, 11, 13, 15])
    PQ = opt.get("pq", 11)
    PZ = opt.get("pz", 13)
    L2P = {int(k): v for k, v in opt.get("l2p", {}).items()}
    VEND = PQ
    window = []; pending = []
    def period_barrier(i):
        for c in window: a.vm.extend([f"c{c}", f"c{c}"])
        assert not pending, pending
        window.clear()
        nxt = min([b for b in BARS if b > i] + [20])
        a.vm_wait(f"c{nxt}")
        assert dma_next[0] > nxt, (i, nxt, dma_next[0])
        if i == 3: a.vm_wait("stat")
        if i == PQ: a.vm_wait("st")
        if i in opt.get("sb", []): sp.stamp("pre", lvl=2, nowait=True)
        e("s_barrier")
        if i in opt.get("sb", []): sp.stamp("post", lvl=2, nowait=True)
        if i == 3:
            e(f"v_and_b32 v{vK}, 31, v{vLane}")
            e(f"v_lshlrev_b32 v{vK}, 2, v{vK}")
            e(f"s_lshl_b32 s{sT1}, s{sTT}, 7")
            e(f"s_add_u32 s{sT1}, s{sT1}, s{sStat}")
            e(f"v_mov_b32 v{vFlag}, 0")
            a.vm_op(f"buffer_load_dword v{vK}, v{vK}, {S(rWS)}, s{sT1} offen sc1", "kld")
            a.vm_op(f"global_load_dword v{vFlag}, v{vFlag}, s[{pDBG}:{pDBG+1}] sc1", "kld")
        if i in L2P:
            for k in L2P[i]:
                sk = lab("pf")
                e(f"s_cmp_lg_u32 s{sW}, {k}")
                e(f"s_cbranch_scc1 {sk}")
                a.skip_begin()
                e(f"s_lshr_b32 s{sT1}, s2, 3")
                nl, ptr, nb = (56, pW2, W2_BYTES) if k < 7 else (98, pWO, WO_BYTES)
                if k < 7:
                    e(f"s_mul_i32 s{sT1}, s{sT1}, {7*56*128}")
                    e(f"s_add_u32 s{sT1}, s{sT1}, {k*56*128}")
                else:
                    e(f"s_mul_i32 s{sT1}, s{sT1}, {98*128}")
                e(f"v_min_u32 v{vDum+2}, {min(nl, 64) - 1 if k < 7 else 48}, v{vLane}")
                e(f"v_lshl_add_u32 v{vDum+2}, v{vDum+2}, 7, s{sT1}")
                e(f"global_load_dword v{vDum+1}, v{vDum+2}, s[{ptr}:{ptr+1}]")
                if k == 7:
                    e(f"v_add_u32 v{vDum+2}, {49*128}, v{vDum+2}")
                    e(f"global_load_dword v{vDum+1}, v{vDum+2}, s[{ptr}:{ptr+1}]")
                a.skip_end()
                a.label(sk)
        if i == PZ:
            e(f"v_lshrrev_b32 v{vDum+2}, 2, v{vSt}")
            e(f"v_add_u32 v{vDum+2}, {SYNC}, v{vDum+2}")
            e(f"v_mov_b32 v{vDum+3}, 0")
            a.ds_op(f"ds_write_b32 v{vDum+2}, v{vDum+3}", "z")
        if i == PQ and sigq[0]:
            sk = lab("q")
            e(f"s_cmp_lg_u32 s{sW}, 0")
            e(f"s_cbranch_scc1 {sk}")
            a.skip_begin()
            check_flag(vDum + 2)
            signal(sCOL, 0, vDum + 2, vDum + 3)
            a.skip_end()
            a.label(sk)
        while dma_next[0] <= 20:
            c = dma_next[0]
            if c < 10:
                sl = slot(c)
                if not all(xr_next[0] > s and a.ds_done(f"x{s}") for s in range(4*sl, 4*sl+4)): break
            elif c == 20:
                if i < 13: break
            elif c - 9 > i - 1: break
            window.append(c); dma_next[0] += 1
        nq = nxt - i
        per = -(-len(window) // nq)
        pending[:] = [window[k*per:(k+1)*per] for k in range(nq)]
    sigq = [False]
    XR = opt.get("xrate", 2)
    def kloop(r, extra, budget, hooks={}):
        extra = list(extra)
        if opt.get("x_noepi"): extra = [x for x in extra if x[1] == 0]
        gap = 0
        for s in range(28):
            G = r * 28 + s
            Gn = G + 2
            rd = wreads(Gn) if Gn < 84 else []
            a.ds_wait(f"w{G}")
            if r == 0: a.ds_wait(f"x{s}")
            ph = Gn % 4
            for t in range(NT[r]):
                d = ACC[r] + 16 * t
                w = WF + (G % 3) * 8 + t * 4
                c = "0" if s == 0 else f"v[{d}:{d+15}]"
                e(f"v_mfma_f32_32x32x16_bf16 v[{d}:{d+15}], v[{w}:{w+3}], v[{X0+4*s}:{X0+4*s+3}], {c}")
                gap += 1
                if t == 0 and Gn < 84 and ph == 0 and (Gn // 4 - 1) in BARS: period_barrier(Gn // 4 - 1)
                n = -(-len(rd) // (NT[r] - t))
                for f in rd[:n]: f()
                rd = rd[n:]
                if r == 0: xread((XR + 1 - t) // 2)
                left = budget
                if t == NT[r] - 1 and pending and pending[0] and ph % 2 == 0:
                    sk = lab("d")
                    e(f"s_cmp_lg_u32 s{sPh}, {ph}")
                    e(f"s_cbranch_scc1 {sk}")
                    a.skip_begin()
                    for c in pending[0]: dma(c, track=False)
                    a.skip_end()
                    a.label(sk)
                    left = opt.get("dmabud", 4)
                if t == NT[r] - 1 and s in hooks: hooks[s](); left = 0
                while extra and gap > 3 and extra[0][1] <= left:
                    f, cst = extra.pop(0); f(); left -= cst
            if ph == 3 and pending: pending.pop(0)
        return extra
    def I(t):
        op = t.split()[0]
        return (lambda: e(t), 8 if op.startswith(TRANS) else (2 if op.startswith("s_") else 4))
    def consts():
        def sel():
            e(f"s_cmp_lt_u32 s{sCOL}, 4")
            e(f"s_cselect_b32 s{sT1}, {hexf(28**-0.5*LOG2E)}, 1.0")
            e(f"v_mul_f32 v{vSc}, s{sT1}, v{vSc}")
        return [(lambda: a.vm_wait("kld"), 0), I(f"v_rsq_f32 v{vSc}, v{vK}"),
                I(f"v_mul_f32 v{vC1}, {hexf(-LOG2E)}, v{vSc}"), (sel, 8)]
    def silu4(Gt, U, t, p):
        L = []
        for k in range(4): L.append(I(f"v_mul_f32 v{t+k}, v{vC1}, v{Gt+k}"))
        for k in range(4):
            L.append(I(f"v_exp_f32 v{t+k}, v{t+k}"))
            L.append(I(f"v_mul_f32 v{Gt+k}, v{Gt+k}, v{U+k}"))
        for k in range(4): L.append(I(f"v_fma_f32 v{t+k}, v{t+k}, v{vK}, v{vK}"))
        for k in range(4): L.append(I(f"v_rcp_f32 v{t+k}, v{t+k}"))
        for k in range(4): L.append(I(f"v_mul_f32 v{Gt+k}, v{Gt+k}, v{t+k}"))
        for k in range(2): L.append(I(f"v_cvt_pk_bf16_f32 v{p+k}, v{Gt+2*k}, v{Gt+2*k+1}"))
        return L
    def store(r, soff, off):
        if opt.get("x_nost"): return (lambda: None, 8)
        return (lambda: a.vm_op(f"buffer_store_dwordx4 v[{r}:{r+3}], v{vSt}, {S(rWS)}, s{soff} offen offset:{off}{ST}", "st"), 8)
    def epiF(acc, soff):
        Gt, U = acc, acc + 16
        L = []
        for q in range(4):
            L += silu4(Gt + 4*q, U + 4*q, T0 + (q % 2) * 4, U + (q // 2) * 8 + (q % 2) * 2)
            if q % 2 == 1: L.append(store(U + (q // 2) * 8, soff, (q // 2) * 1024))
        return L
    def epiQKV(acc, isv):
        L = []
        P = T0 + 8
        for q in range(4):
            for k in range(4): L.append(I(f"v_mul_f32 v{acc+4*q+k}, v{vSc}, v{acc+4*q+k}"))
            for k in range(2): L.append(I(f"v_cvt_pk_bf16_f32 v{P+2*q+k}, v{acc+4*q+2*k}, v{acc+4*q+2*k+1}"))
            if q == 1 and not isv: L.append(store(P, sQKoff, 0))
        L.append(I(f"v_cndmask_b32 v{P+6}, v{vP6}, v{P+6}, vcc"))
        L.append(I(f"v_cndmask_b32 v{P+7}, v{vP7}, v{P+7}, vcc"))
        if not isv: L.append(store(P + 4, sQKoff, 1024))
        else:
            for q in range(4):
                if q: L.append(I(f"v_xor_b32 v{vV4}, {16*q}, v{vV1}"))
                L.append((lambda q=q: a.ds_op(f"ds_write_b64 v{vV4 if q else vV1}, v[{P+2*q}:{P+2*q+1}]", "vw"), 4))
            L += [(lambda: None, 8)] * 2
            L.append((lambda: a.ds_wait("vw"), 0))
            for q in range(4):
                L.append((lambda q=q: a.ds_op(f"ds_read_b64_tr_b16 v[{acc+2*q}:{acc+2*q+1}], v{vV3 if q % 2 else vV2} offset:{512*q}", "vr"), 4))
            L += [(lambda: None, 8)] * 2
            L.append((lambda: a.ds_wait("vr"), 0))
            L.append(store(acc, sQKoff, 0))
            L.append(store(acc + 4, sQKoff, 1024))
        L.append(I(f"s_add_u32 s{sQKoff}, s{sQKoff}, {64*2048}"))
        return L
    B1, B2 = opt.get("b1", 12), opt.get("b2", 12)
    if opt.get("yprio"):
        e(f"s_cmp_lt_u32 s{sW}, 4")
        e(f"s_cbranch_scc1 L_yp")
        e(f"s_setprio 1")
        a.label("L_yp")
    xread(4)
    for f in wreads(0) + wreads(1): f()
    if opt.get("wpf", 1) == 2:
        e(f"s_cmp_ge_u32 s{sW}, 4")
        e(f"s_cbranch_scc1 L_wp")
        a.skip_begin(); wpf(); a.skip_end()
        a.label("L_wp")
    a.vm_op(f"buffer_store_dword v{T0}, v{vStat}, {S(rWS)}, s{sStat} offen", "stat")
    a.vm_op(f"buffer_store_dword v{T0+1}, v{T0+2}, {S(rWS)}, s{sStat} offen", "stat")
    assert not kloop(0, deferred(), 16)
    sp.stamp("r0")
    e(f"s_cmp_lt_u32 s{sCOL}, 8")
    e(f"s_cbranch_scc1 L_pqk")
    e(f"s_cmp_lt_u32 s{sCOL}, 12")
    e(f"s_cbranch_scc1 L_pv")
    saved = (list(a.vm), list(a.lg), list(tw_state), dma_next[0], list(a.hist), list(window), [list(p) for p in pending], sp.n)
    ends = []
    for nm, ex in (("f", lambda: epiF(AA, sQKoff)), ("L_pqk", lambda: epiQKV(AA, False) + epiQKV(AA + 16, False)),
                   ("L_pv", lambda: epiQKV(AA, True) + epiQKV(AA + 16, True))):
        if nm != "f": a.label(nm)
        a.vm, a.lg = list(saved[0]), list(saved[1]); tw_state[:] = saved[2]; dma_next[0] = saved[3]; a.hist = list(saved[4])
        window[:] = saved[5]; pending[:] = [list(p) for p in saved[6]]; sp.set(saved[7])
        sigq[0] = nm != "f"
        nst0 = [0]
        exl = consts() + ex()
        if nm != "f":
            exl.append((lambda: nst0.__setitem__(0, 1), 0))
            _pb = period_barrier
        rest = kloop(1, exl, {"f": B1, "L_pqk": opt.get("b1q", 24), "L_pv": opt.get("b1v", 24)}[nm], hooks={(VEND + 1) * 4 - 2 - 28 - 1: (lambda: None) if nm == "f" else (lambda: (_ for _ in ()).throw(AssertionError("qkv epilogue too late")) if not nst0[0] else None)})
        for f, c in rest: f()
        ends.append(([t for t in a.vm if t != "st"], list(a.lg), list(tw_state), dma_next[0], list(window), [list(p) for p in pending]))
        if nm != "L_pv": e("s_branch L_r2")
    assert ends[0][1:] == ends[1][1:] == ends[2][1:], ends
    a.vm = min((x[0] for x in ends), key=len)
    assert all(x[0][len(x[0])-len(a.vm):] == a.vm for x in ends)
    a.label("L_r2")
    e("s_nop 1")
    sp.stamp("r1"); sp.stamp("r1", lvl=5, nowait=True)
    K0, Q, KV, O, Sx, P, T = 16, 24, 56, 128, 192, 224, 240
    ATT_LDS, WO_LDS = 49152, 98304
    sX, sJ = 54, 55
    sHead, sQB, sKV, sRun = 62, 63, 64, 58
    sWq, sTB, sCB, sWo, sLB = 62, 63, 64, 58, 66
    vD, vPoll, vStV = vD0, vDum + 4, vD0
    rW = rA
    rK, rV = rA, rB
    NE = 3
    QX = 147456
    def kvload(i):
        for k in range(4):
            r = KV + 16 * i + 4 * k
            a.vm_op(f"buffer_load_dwordx4 v[{r}:{r+3}], v{vSt}, {S(rK if k < 2 else rV)}, s{sRun} offen offset:{1024*(k%2)}{LD}", f"kv{i}")
        e(f"s_add_u32 s{sRun}, s{sRun}, 2048")
        e(f"s_and_b32 s{sRun}, s{sRun}, 0x1ffff")
    e(f"s_and_b32 s{sX}, s2, 7")
    e(f"s_lshr_b32 s{sJ}, s2, 3")
    check_flag(vDum + 2)
    e(f"s_cmp_lt_u32 s{sW}, 4")
    e(f"s_cbranch_scc1 L_att")
    join = (list(a.vm), list(a.lg), list(a.hist), list(window), sp.n)
    e(f"s_setprio {opt.get('r2prio', 2)}")
    rest = kloop(2, epiF(AB, sHoff), B2)
    sp.stamp("r2")
    for f, c in rest: f()
    for t in range(2):
        for q in range(2):
            for f, c in silu4(AA + 16*t + 4*q, AA + 16*t + 8 + 4*q, T0 + 4*q, T0 + 8 + 4*t + 2*q): f()
        store(T0 + 8 + 4*t, sHoff2, 1024*t)[0]()
    e(f"s_branch L_gemm")
    nst = sp.n
    a.label("L_att")
    a.vm, a.lg, a.hist = list(join[0]), list(join[1]), list(join[2]); sp.set(join[4])
    for c in join[3]: a.vm.extend([f"c{c}", f"c{c}"])
    e(f"s_setprio {opt.get('attprio0', 3)}")
    e(f"s_and_b32 s{sT1}, s{sJ}, 1")
    e(f"s_lshl1_add_u32 s{sHead}, s{sX}, s{sT1}")
    e(f"v_min_u32 v{vPoll}, 2, v{vLane}")
    e(f"v_lshlrev_b32 v{vPoll}, 9, v{vPoll}")
    e(f"s_lshr_b32 s{sT1}, s{sHead}, 2")
    e(f"v_lshl_add_u32 v{vPoll}, s{sT1}, 7, v{vPoll}")
    e(f"s_mov_b32 s{sT3}, {CNT_OFF}")
    a.vm_op(f"buffer_load_dword v{vDum+3}, v{vPoll}, {S(rWS)}, s{sT3} offen sc1", "poll")
    def qload():
        e(f"s_lshl_b32 s{sT1}, s{sHead}, 6")
        e(f"s_lshl2_add_u32 s{sT1}, s{sQB}, s{sT1}")
        e(f"s_add_u32 s{sT1}, s{sT1}, s{sW}")
        e(f"s_lshl_b32 s{sT1}, s{sT1}, 11")
        a.vm_op(f"buffer_load_dwordx4 v[{Q}:{Q+3}], v{vSt}, {S(rWS)}, s{sT1} offen{LD}", "q")
        a.vm_op(f"buffer_load_dwordx4 v[{Q+4}:{Q+7}], v{vSt}, {S(rWS)}, s{sT1} offen offset:1024{LD}", "q")
        kvload(0)
    e(f"s_lshr_b32 s{sQB}, s{sJ}, 1")
    e(f"s_lshl_b32 s{sKV}, s{sHead}, 17")
    e(f"s_add_u32 s{sKV}, s{sKV}, {KV_OFF}")
    e(f"s_lshl_b32 s{sRun}, s{sW}, 15")
    e(f"s_add_u32 s{sRun}, s{sRun}, 2048")
    e(f"s_add_u32 s{rK}, s{pWS}, s{sKV}")
    e(f"s_addc_u32 s{rK+1}, s{pWS+1}, 0")
    e(f"s_mov_b32 s{rK+2}, 0x20000")
    e(f"s_mov_b32 s{rK+3}, 0x20000")
    e(f"s_add_u32 s{rV}, s{rK}, {2 << 20}")
    e(f"s_addc_u32 s{rV+1}, s{rK+1}, 0")
    e(f"s_mov_b32 s{rV+2}, 0x20000")
    e(f"s_mov_b32 s{rV+3}, 0x20000")
    ep = epiF(AB, sHoff)
    n1 = opt.get("ep1", 26)
    a.ds_wait_all()
    for f, c in ep[:n1]: f()
    sp.stamp("ep", lvl=5, nowait=True)
    a.vm_wait("poll")
    sp.stamp("pl", lvl=5, nowait=True)
    e(f"v_cmp_gt_u32 s[74:75], 16, v{vDum+3}")
    e(f"s_cmp_eq_u64 s[74:75], 0")
    e(f"s_cbranch_scc1 L_e2ok")
    sv = (list(a.vm), list(a.hist))
    for f, c in ep[n1:]: f()
    e("s_barrier")
    poll(vPoll, vDum + 3, 16, 1)
    qload(); e("s_waitcnt vmcnt(0)"); e(f"s_branch L_e2j")
    a.label("L_e2ok")
    a.vm, a.hist = sv
    sp.stamp("r2"); sp.stamp("ok", lvl=5, nowait=True)
    qload()
    for f, c in ep[n1:]: f()
    sp.stamp("ep2", lvl=5, nowait=True)
    e("s_barrier")
    a.label("L_e2j")
    kvload(1); kvload(2)
    sFlag, sIt, sOoff = 59, 60, 61
    e(f"s_mov_b32 s{sFlag}, 0")
    e(f"s_lshl2_add_u32 s{sOoff}, s{sQB}, s{sW}")
    e(f"s_lshl4_add_u32 s{sOoff}, s{sOoff}, s{sHead}")
    e(f"s_lshl_b32 s{sOoff}, s{sOoff}, 11")
    e(f"s_add_u32 s{sOoff}, s{sOoff}, {O_OFF}")
    for jj in range(4):
        e(f"s_add_u32 s{sT1}, s{sW}, {jj}")
        e(f"s_and_b32 s{sT1}, s{sT1}, 3")
        e(f"s_lshl_b32 s{sT1}, s{sT1}, 11")
        e(f"s_add_u32 s{sT1}, s{sT1}, {QX}")
        e(f"v_add_u32 v{T+2+jj}, s{sT1}, v{vSt}")
    sp.stamp("pre", lvl=5, nowait=True)
    a.vm_wait("kv0")
    sp.stamp("kv0", lvl=5, nowait=True)
    e(f"v_mfma_f32_32x32x16_bf16 v[{Sx}:{Sx+15}], v[{KV}:{KV+3}], v[{Q}:{Q+3}], 0")
    e(f"v_mfma_f32_32x32x16_bf16 v[{Sx}:{Sx+15}], v[{KV+4}:{KV+7}], v[{Q+4}:{Q+7}], v[{Sx}:{Sx+15}]")
    sp.stamp("qkv")
    def qk(n, half):
        i, j = (n // 4) % 4, n % 4
        d = Sx + 16 * (n % 2); k = KV + 16 * i + 4 * half; q = Q + 8 * j + 4 * half
        c = "0" if half == 0 else f"v[{d}:{d+15}]"
        e(f"v_mfma_f32_32x32x16_bf16 v[{d}:{d+15}], v[{k}:{k+3}], v[{q}:{q+3}], {c}")
    def pv(n, half):
        i, j = (n // 4) % 4, n % 4
        d = O + 16 * j; v = KV + 16 * i + 8 + 4 * half; p = P + 8 * (n % 2) + 4 * half
        e(f"v_mfma_f32_32x32x16_bf16 v[{d}:{d+15}], v[{v}:{v+3}], v[{p}:{p+3}], v[{d}:{d+15}]")
    def sm(n, g):
        s = Sx + 16 * (n % 2) + 4 * g; p = P + 8 * (n % 2) + 2 * g
        for k in range(4): e(f"v_exp_f32 v{s+k}, v{s+k}")
        e(f"v_cvt_pk_bf16_f32 v{p}, v{s}, v{s+1}")
        e(f"v_cvt_pk_bf16_f32 v{p+1}, v{s+2}, v{s+3}")
    M = T + 8
    def patch(jjs, bias):
        U = M + 4
        for jj in jjs: e(f"v_mov_b32 v{U+jj}, v{M+jj}")
        for jj in jjs: e(f"v_permlane32_swap_b32 v{M+jj}, v{U+jj}")
        for jj in jjs: e(f"v_max_f32 v{M+jj}, v{M+jj}, v{U+jj}")
        for jj in jjs: e(f"v_sub_f32 v{M+jj}, {hexf(-bias) if bias else 0}, v{M+jj}")
        for jj in jjs: e(f"v_cvt_pk_bf16_f32 v{U+jj}, v{M+jj}, v{M+jj}")
        for jj in jjs: e(f"v_and_b32 v{U+jj}, 0xffff0000, v{U+jj}")
        for jj in jjs: e(f"v_sub_f32 v{U+jj}, v{M+jj}, v{U+jj}")
        for jj in jjs: e(f"v_cvt_pk_bf16_f32 v{M+jj}, v{M+jj}, v{U+jj}")
        for jj in jjs: e(f"v_cndmask_b32 v{Q+8*jj+6}, v{M+jj}, v{Q+8*jj+6}, vcc")
        for jj in jjs: e(f"v_and_b32 v{M+jj}, 0xffff0000, v{M+jj}")
        for jj in jjs: e(f"v_sub_f32 v{U+jj}, v{U+jj}, v{M+jj}")
        for jj in jjs: e(f"v_cvt_pk_bf16_f32 v{U+jj}, v{U+jj}, 0")
        for jj in jjs: e(f"v_cndmask_b32 v{Q+8*jj+7}, v{U+jj}, v{Q+8*jj+7}, vcc")
    for k in range(4): e(f"v_max3_f32 v{M+4+k}, v{Sx+4*k}, v{Sx+4*k+1}, v{Sx+4*k+2}")
    for k in range(2): e(f"v_max3_f32 v{M+4+2*k}, v{M+4+2*k}, v{M+5+2*k}, v{Sx+8*k+3}")
    e(f"v_max3_f32 v{M}, v{Sx+7}, v{Sx+15}, v{M+4}")
    e(f"v_max_f32 v{M}, v{M}, v{M+6}")
    patch([0], BIAS)
    a.ds_op(f"ds_write_b128 v{T+2}, v[{Q}:{Q+3}]")
    a.ds_op(f"ds_write_b128 v{T+2}, v[{Q+4}:{Q+7}] offset:1024")
    lds_sync(1, 4, T, T + 1, lambda: (qk(0, 0), qk(0, 1)))
    for jj in range(1, 4):
        a.ds_op(f"ds_read_b128 v[{Q+8*jj}:{Q+8*jj+3}], v{T+2+jj}")
        a.ds_op(f"ds_read_b128 v[{Q+8*jj+4}:{Q+8*jj+7}], v{T+2+jj} offset:1024")
    e("s_waitcnt vmcnt(8)")
    last_signals(0, 8, sRB, 12, T, T + 1)
    lds_arrive(2, T, T + 1)
    e(f"s_setprio {opt.get('attprio', 1)}")
    a.vm = []
    sp.stamp("preloop"); sp.stamp("preloop", lvl=5)
    def pv0(n, half):
        i, j = (n // 4) % 4, n % 4
        d = O + 16 * j; v = KV + 16 * i + 8 + 4 * half; p = P + 8 * (n % 2) + 4 * half
        c = "0" if (n < 4 and half == 0) else f"v[{d}:{d+15}]"
        e(f"v_mfma_f32_32x32x16_bf16 v[{d}:{d+15}], v[{v}:{v+3}], v[{p}:{p+3}], {c}")
    def owrite(jj):
        for q in range(4):
            r = O + 16 * jj + 4 * q
            a.ds_op(f"ds_write_b128 v{T+jj}, v[{r}:{r+3}] offset:{(jj-1)*4096 + q*1024}")
    for jj in range(4):
        e(f"s_add_u32 s{sT1}, s{sW}, {jj}")
        e(f"s_and_b32 s{sT1}, s{sT1}, 3")
        e(f"s_mul_i32 s{sT1}, s{sT1}, 12288")
        e(f"s_add_u32 s{sT1}, s{sT1}, {ATT_LDS}")
        e(f"v_add_u32 v{T+jj}, s{sT1}, v{vSt}")
    a.raw(".p2align 6")
    for n in range(64):
        ti, j = divmod(n, 4)
        if j == 3 and ti < 15: e(f"s_waitcnt vmcnt({4 * min(2, 14 - ti)})")
        if n + 1 < 64: qk(n + 1, 0)
        sm(n, 0)
        if n + 1 < 64: qk(n + 1, 1)
        sm(n, 1)
        if n: pv0(n - 1, 0)
        sm(n, 2)
        if n: pv0(n - 1, 1)
        if j == 0 and ti + 3 < 16:
            for k in range(4):
                r = KV + 16 * ((ti + 3) % 4) + 4 * k
                e(f"buffer_load_dwordx4 v[{r}:{r+3}], v{vSt}, {S(rK if k < 2 else rV)}, s{sRun} offen offset:{2048*(ti%2) + 1024*(k%2)}{LD}")
            if ti % 2:
                e(f"s_add_u32 s{sRun}, s{sRun}, 4096")
                e(f"s_and_b32 s{sRun}, s{sRun}, 0x1ffff")
        if n == 60:
            e(f"v_mov_b32 v{T+4}, {SYNC}")
            a.ds_op(f"ds_read_b32 v{T+5}, v{T+4}", "chk")
        if n == 63:
            lds_check(0, 8, T + 4, T + 5)
            owrite(1)
        sm(n, 3)
    pv0(63, 0); pv0(63, 1)
    owrite(2)
    sp.stamp("loop"); sp.stamp("loop", lvl=4)
    a.vm = []
    owrite(3)
    sp.stamp("wr", lvl=4)
    lds_sync(7, 4, T + 4, T + 5)
    sp.stamp("sy", lvl=4)
    for p in range(3):
        for q in range(4):
            r = O + 16 + 16 * p + 4 * q
            a.ds_op(f"ds_read_b128 v[{r}:{r+3}], v{T} offset:{p*4096 + q*1024}", f"p{p}")
    for p in range(3):
        a.ds_wait(f"p{p}")
        for k in range(16): e(f"v_add_f32 v{O+k}, v{O+k}, v{O+16+16*p+k}")
    sp.stamp("rd", lvl=4)
    a.label("L_norm")
    e(f"v_mov_b32 v{T}, v{O+12}")
    e(f"v_mov_b32 v{T+1}, v{O+12}")
    e(f"v_permlane32_swap_b32 v{T}, v{T+1}")
    e(f"v_rcp_f32 v{T}, v{T+1}")
    e(f"v_mov_b32 v{T+2}, 0")
    for k in range(16): e(f"v_mul_f32 v{O+k}, v{O+k}, v{T}")
    for k in range(8): e(f"v_cvt_pk_bf16_f32 v{P+k}, v{O+2*k}, v{O+2*k+1}")
    e(f"v_cndmask_b32 v{P+6}, 0, v{P+6}, vcc")
    e(f"v_cndmask_b32 v{P+7}, 0, v{P+7}, vcc")
    e(f"buffer_store_dwordx4 v[{P}:{P+3}], v{vSt}, {S(rWS)}, s{sOoff} offen{ST}")
    e(f"buffer_store_dwordx4 v[{P+4}:{P+7}], v{vSt}, {S(rWS)}, s{sOoff} offen offset:1024{ST}")
    for k in range(16): e(f"v_fmac_f32 v{T+2}, 0, v{O+k}")
    e(f"v_mov_b32 v{T+3}, {hexf(2.0**-(BIAS+8))}")
    e(f"v_cmp_u_f32 s[66:67], v{T+2}, v{T+2}")
    e(f"v_cmp_lt_f32 s[74:75], v{T+1}, v{T+3}")
    e(f"s_or_b64 s[66:67], s[66:67], s[74:75]")
    e(f"s_cmp_eq_u64 s[66:67], 0")
    e(f"s_cselect_b32 s{sT1}, 1, s{sFlag}")
    e(f"s_cmp_eq_u32 s{sT1}, 0")
    e(f"s_cbranch_scc1 L_slow")
    sp.stamp("chk", lvl=4)
    e(f"s_waitcnt vmcnt(0)")
    sp.stamp("ost"); sp.stamp("ost", lvl=4)
    e(f"s_lshl2_add_u32 s{sT2}, s{sQB}, s{sW}")
    e(f"s_lshr_b32 s{sT3}, s{sHead}, 2")
    e(f"s_lshl2_add_u32 s{sT2}, s{sT2}, s{sT3}")
    signal(sT2, 28, T + 4, T + 5)
    lds_arrive(9, T + 6, T + 7)
    hdiag(0)
    sp.dump(pWS, sW)
    e("s_endpgm")
    a.label("L_slow")
    a.reset_hist()
    e(f"s_waitcnt vmcnt(0)")
    e(f"s_mov_b32 s{sFlag}, 1")
    e(f"s_mov_b32 s{rK+2}, 0x20000")
    e(f"s_mov_b32 s{rV+2}, 0x20000")
    e(f"v_cndmask_b32 v{Q+6}, 0, v{Q+6}, vcc")
    e(f"v_cndmask_b32 v{Q+7}, 0, v{Q+7}, vcc")
    e(f"v_mov_b32 v{M}, 0xff800000")
    e(f"s_mov_b32 s{sRun}, 0")
    e(f"s_mov_b32 s{sIt}, 64")
    a.label("L_s1")
    start = len(a.lines)
    e(f"buffer_load_dwordx4 v[{KV}:{KV+3}], v{vSt}, {S(rK)}, s{sRun} offen{LD}")
    e(f"buffer_load_dwordx4 v[{KV+4}:{KV+7}], v{vSt}, {S(rK)}, s{sRun} offen offset:1024{LD}")
    e("s_waitcnt vmcnt(0)")
    e(f"v_mfma_f32_32x32x16_bf16 v[{Sx}:{Sx+15}], v[{KV}:{KV+3}], v[{Q}:{Q+3}], 0")
    e(f"v_mfma_f32_32x32x16_bf16 v[{Sx}:{Sx+15}], v[{KV+4}:{KV+7}], v[{Q+4}:{Q+7}], v[{Sx}:{Sx+15}]")
    for k in range(8): e(f"v_max3_f32 v{M}, v{M}, v{Sx+2*k}, v{Sx+2*k+1}")
    e(f"s_add_u32 s{sRun}, s{sRun}, 2048")
    e(f"s_sub_u32 s{sIt}, s{sIt}, 1")
    e(f"s_cmp_lg_u32 s{sIt}, 0")
    e("s_cbranch_scc1 L_s1")
    check_loop(a.lines[start:])
    patch([0], 0.0)
    for r in range(16): e(f"v_mov_b32 v{O+r}, 0")
    e(f"s_mov_b32 s{sRun}, 0")
    e(f"s_mov_b32 s{sIt}, 64")
    a.label("L_s2")
    start = len(a.lines)
    for k in range(4):
        e(f"buffer_load_dwordx4 v[{KV+4*k}:{KV+4*k+3}], v{vSt}, {S(rK if k < 2 else rV)}, s{sRun} offen offset:{1024*(k%2)}{LD}")
    e("s_waitcnt vmcnt(0)")
    qk(0, 0); qk(0, 1)
    for g in range(4): sm(0, g)
    pv(0, 0); pv(0, 1)
    e(f"s_add_u32 s{sRun}, s{sRun}, 2048")
    e(f"s_sub_u32 s{sIt}, s{sIt}, 1")
    e(f"s_cmp_lg_u32 s{sIt}, 0")
    e("s_nop 11")
    e("s_cbranch_scc1 L_s2")
    check_loop(a.lines[start:])
    e("s_branch L_norm")
    a.label("L_gemm")
    a.reset_hist(); a.vm = []; a.lg = []; sp.set(nst)
    ACCG, HR, WFR, T, WO_F, XF, GF = 16, 80, 136, 152, 160, 224, 136
    OF = HR
    GF = 240
    vA0, vA1, vIO, vCt = 4, 5, 6, 7
    sH0, sH1, sI0 = 59, 60, 61
    DP = opt.get("gdepth", 5)
    PACE = opt.get("pace", 4)
    def pace():
        nonlocal PACE
        if PACE and len(a.vm) > PACE:
            e(f"s_waitcnt vmcnt({PACE})"); a.vm = a.vm[-PACE:]
    e(f"s_setprio 2")
    e(f"s_waitcnt vmcnt(0)")
    last_signals(0, 8, sRB, 12, T, T + 1)
    e(f"s_cmp_ge_u32 s{sJ}, 28")
    e(f"s_cbranch_scc1 L_end")
    e(f"s_setprio {opt.get('gprio0', 2)}")
    lds_sync(3, 4, T, T + 1)
    srd(a, rW, pWO, WO_BYTES)
    e(f"s_sub_u32 s{sWq}, s{sW}, 4")
    e(f"s_mul_i32 s{sT1}, s{sJ}, 37")
    e(f"s_lshr_b32 s{sT1}, s{sT1}, 8")
    e(f"s_mul_i32 s{sT2}, s{sT1}, 7")
    e(f"s_sub_u32 s{sCB}, s{sJ}, s{sT2}")
    e(f"s_lshl2_add_u32 s{sTB}, s{sX}, s{sT1}")
    e(f"s_lshl_b32 s{sCB}, s{sCB}, 7")
    e(f"s_mul_i32 s{sLB}, s{sWq}, 12288")
    dma_voff(a, vLane, vD, T, T + 1)
    e(f"v_and_b32 v{T}, 31, v{vLane}")
    e(f"v_mul_u32_u24 v{T}, 896, v{T}")
    e(f"v_lshrrev_b32 v{T+1}, 5, v{vLane}")
    e(f"v_lshl_add_u32 v{vIO}, v{T+1}, 3, v{T}")
    e(f"s_and_b32 s{sT1}, s{sWq}, 1")
    e(f"s_lshl1_add_u32 s{sT3}, s{sTB}, s{sT1}")
    e(f"s_mul_i32 s{sI0}, s{sT3}, {32*896}")
    e(f"s_add_u32 s{sI0}, s{sI0}, s{sCB}")
    e(f"s_lshr_b32 s{sT2}, s{sWq}, 1")
    e(f"s_lshl_b32 s{sT2}, s{sT2}, 6")
    e(f"s_add_u32 s{sI0}, s{sI0}, s{sT2}")
    def issue_w(s):
        st = s % 6
        e(f"s_add_u32 m0, s{sLB}, {st*2048}")
        e(f"s_add_u32 s{sT1}, s{sWo}, {8*896}")
        a.vm_op(f"buffer_load_dwordx4 v{vD}, {S(rB)}, s{sWo} offen lds", f"s{s}")
        e(f"s_add_u32 m0, s{sLB}, {st*2048+1024}")
        e(f"s_add_u32 s{sWo}, s{sWo}, {16*896}")
        a.vm_op(f"buffer_load_dwordx4 v{vD}, {S(rB)}, s{sT1} offen lds", f"s{s}")
    srd(a, rB, pW2, W2_BYTES)
    e(f"s_mul_i32 s{sWo}, s{sWq}, {448*896}")
    e(f"s_add_u32 s{sWo}, s{sWo}, s{sCB}")
    for s in range(6): issue_w(s); pace()
    e(f"s_mul_i32 s{sH0}, s{sT3}, 112")
    e(f"s_xor_b32 s{sT3}, s{sT3}, 1")
    e(f"s_mul_i32 s{sH1}, s{sT3}, 112")
    e(f"s_mul_i32 s{sT1}, s{sWq}, 28")
    e(f"s_add_u32 s{sT1}, s{sT1}, {H_OFF >> 10}")
    e(f"s_add_u32 s{sH0}, s{sH0}, s{sT1}")
    e(f"s_add_u32 s{sH1}, s{sH1}, s{sT1}")
    e(f"s_lshl_b32 s{sH0}, s{sH0}, 10")
    e(f"s_lshl_b32 s{sH1}, s{sH1}, 10")
    e(f"s_xor_b32 s{sT2}, s{sT2}, s{sLB}")
    tr_addr(a, vLane, vA0, vA1, T, T + 1, T + 2, sT2, xor=True)
    def wr(s, d0, off, wait=True):
        if wait: a.vm_wait(f"s{s}")
        for ct in range(2):
            d = d0 + ct * 4
            ad = vA0 if ct == 0 else vA1
            a.ds_op(f"ds_read_b64_tr_b16 v[{d}:{d+1}], v{ad} offset:{off}", f"w{s}")
            a.ds_op(f"ds_read_b64_tr_b16 v[{d+2}:{d+3}], v{ad} offset:{off+1024}", f"w{s}")
    e(f"s_lshr_b32 s{sT1}, s{sTB}, 1")
    e(f"s_lshl_b32 s{sT1}, s{sT1}, 7")
    e(f"s_add_u32 s{sT1}, s{sT1}, {12*128}")
    e(f"v_mov_b32 v{vCt}, s{sT1}")
    def issue_h(s):
        st = s % 6
        off = (s % 4) * 1024
        a.vm_op(f"buffer_load_dwordx4 v[{HR+8*st}:{HR+8*st+3}], v{vSt}, {S(rWS)}, s{sH0} offen offset:{off}{LD}", f"s{s}")
        a.vm_op(f"buffer_load_dwordx4 v[{HR+8*st+4}:{HR+8*st+7}], v{vSt}, {S(rWS)}, s{sH1} offen offset:{off}{LD}", f"s{s}")
        if s % 4 == 3:
            e(f"s_add_u32 s{sH0}, s{sH0}, 4096")
            e(f"s_add_u32 s{sH1}, s{sH1}, 4096")
    e(f"s_cmp_lg_u32 s{sWq}, 0")
    e(f"s_cbranch_scc1 L_hw")
    poll(vCt, T + 1, 16, opt.get("hsleep", 4))
    lds_arrive(8, T, T + 1)
    a.label("L_hw")
    lds_spin(2, 4, T, T + 1, 3)
    lds_spin(8, 1, T, T + 1, 3)
    e(f"s_waitcnt vmcnt(0)")
    sp.stamp("hrdy")
    for s in range(DP): issue_h(s)
    e(f"s_setprio {opt.get('gprio', 0)}")
    def mm(s, w, h):
        for ct in range(2):
            for tt in range(2):
                d = ACCG + (2*ct+tt) * 16
                c = "0" if s == 0 else f"v[{d}:{d+15}]"
                e(f"v_mfma_f32_32x32x16_bf16 v[{d}:{d+15}], v[{w+4*ct}:{w+4*ct+3}], v[{h+4*tt}:{h+4*tt+3}], {c}")
    wr(0, WFR, 0)
    XG = 144
    late = []
    def wo_first():
        e(f"s_mul_i32 s{sH0}, s{sWq}, 15360")
        e(f"s_mul_i32 s{sWo}, s{sWq}, {112*896}")
        e(f"s_add_u32 s{sWo}, s{sWo}, s{sCB}")
    def wo_dma(i):
        if i == 0: wo_first()
        e(f"s_add_u32 m0, s{sH0}, {WO_LDS + i*1024}")
        if i: e(f"s_add_u32 s{sWo}, s{sWo}, {8*896}")
        a.vm_op(f"buffer_load_dwordx4 v{vD}, {S(rW)}, s{sWo} offen lds", "wo")
    XG = XF + 8
    for i in range(15): late.append(lambda i=i: wo_dma(i))
    for q in range(4):
        late.append(lambda q=q: a.vm_op(f"buffer_load_dwordx2 v[{XG+2*q}:{XG+2*q+1}], v{vIO}, {S(rX)}, s{sI0} offen offset:{16*q}", "xg"))
    TOP = opt.get("gtop", 0)
    for s in range(28):
        if TOP and s > 0:
            if s + 1 < 28: a.vm_wait(f"s{s+1}")
            if 6 <= s + DP - 1 < 28: issue_w(s + DP - 1)
            if s + DP - 1 < 28: issue_h(s + DP - 1)
        if s + 1 < 28: wr(s + 1, WFR + ((s + 1) % 2) * 8, ((s + 1) % 6) * 2048)
        a.ds_wait(f"w{s}")
        if not opt.get("x_nogm") or s == 0: mm(s, WFR + (s % 2) * 8, HR + 8 * (s % 6))
        if opt.get("x_nogl") or TOP: continue
        if 6 <= s + DP < 28: issue_w(s + DP)
        if s + DP < 28: issue_h(s + DP)
        else:
            for _ in range(4):
                if late: late.pop(0)()
    while late: late.pop(0)()
    sp.stamp("w2")
    e(f"s_setprio {opt.get('gprio3', 0)}")
    def exchange(k):
        e(f"v_add_u32 v{T}, s{sLB}, v{vSt}")
        for sl in range(1, 4):
            for q in range(4):
                r = ACCG + 16 * sl + 4 * q
                a.ds_op(f"ds_write_b128 v{T}, v[{r}:{r+3}] offset:{(sl-1)*4096 + q*1024}")
            e(f"s_xor_b32 s{sT1}, s{sWq}, {sl}")
            e(f"s_mul_i32 s{sT1}, s{sT1}, 12288")
            e(f"v_add_u32 v{T+2+sl}, s{sT1}, v{vSt}")
        if k == 6: sp.stamp("wr", lvl=4)
        lds_sync(k, 4, T + 1, T + 2)
        if k == 6: sp.stamp("sy", lvl=4)
        for p in range(3):
            for q in range(4):
                r = ACCG + 16 + 16 * p + 4 * q
                a.ds_op(f"ds_read_b128 v[{r}:{r+3}], v{T+3+p} offset:{p*4096 + q*1024}", f"p{p}")
        for p in range(3):
            a.ds_wait(f"p{p}")
            for kk in range(16): e(f"v_add_f32 v{ACCG+kk}, v{ACCG+kk}, v{ACCG+16+16*p+kk}")
    exchange(4)
    U = ACCG + 16
    for k in range(16): e(f"v_mul_f32 v{U+k}, {hexf(-LOG2E)}, v{ACCG+k}")
    for k in range(16): e(f"v_exp_f32 v{U+k}, v{U+k}")
    for k in range(16): e(f"v_add_f32 v{U+k}, 1.0, v{U+k}")
    for k in range(16): e(f"v_rcp_f32 v{U+k}, v{U+k}")
    for k in range(16): e(f"v_mul_f32 v{GF+k}, v{ACCG+k}, v{U+k}")
    e(f"s_mul_i32 s{sT2}, s{sWq}, 15360 - 12288")
    e(f"s_add_u32 s{sT2}, s{sT2}, {WO_LDS}")
    e(f"v_add_u32 v{vA0}, s{sT2}, v{vA0}")
    e(f"v_add_u32 v{vA1}, s{sT2}, v{vA1}")
    a.vm_wait("xg")
    for s in range(8):
        wr(100 + s, WO_F + 8 * s, (28 * (s // 2) + 16 * (s % 2)) * 128, wait=False)
    for k in range(8):
        if k < 7:
            e(f"v_lshlrev_b32 v{XF+2*k}, 16, v{XG+k}")
            e(f"v_and_b32 v{XF+2*k+1}, 0xffff0000, v{XG+k}")
        else:
            e(f"v_lshlrev_b32 v{XF+14}, 16, v{XG+7}")
            e(f"v_and_b32 v{XF+15}, 0xffff0000, v{XG+7}")
    a.ds_wait_all()
    lds_sync(5, 4, T + 1, T + 2)
    srd(a, rW3, pOUT, X_BYTES)
    e(f"s_and_b32 s{sT1}, s{sWq}, 1")
    e(f"s_lshl1_add_u32 s{sT1}, s{sTB}, s{sT1}")
    e(f"s_lshl_b32 s{sH0}, s{sT1}, 15")
    e(f"s_lshl_b32 s{sT1}, s{sWq}, 13")
    e(f"s_add_u32 s{sH0}, s{sH0}, s{sT1}")
    e(f"s_add_u32 s{sH0}, s{sH0}, {O_OFF}")
    e(f"s_xor_b32 s{sH1}, s{sH0}, 32768")
    e(f"v_min_u32 v{T}, 1, v{vLane}")
    e(f"v_lshlrev_b32 v{T}, 2, v{T}")
    e(f"s_lshl3_add_u32 s{sT1}, s{sTB}, s{sWq}")
    e(f"s_add_u32 s{sT1}, s{sT1}, 28")
    e(f"v_add_lshl_u32 v{vCt}, v{T}, s{sT1}, 7")
    e(f"v_lshrrev_b32 v{T}, 5, v{vLane}")
    e(f"v_lshl_add_u32 v{vIO}, v{T}, 3, v{vIO}")
    sp.stamp("grdy")
    lds_spin(9, 4, T, T + 1, 3)
    e(f"s_setprio 2")
    poll(vCt, T + 1, 4, opt.get("osleep", 1))
    sp.stamp("ordy"); sp.stamp("ordy", lvl=4)
    for s in range(8):
        if s == 4:
            e(f"s_add_u32 s{sH0}, s{sH0}, 4096")
            e(f"s_add_u32 s{sH1}, s{sH1}, 4096")
        a.vm_op(f"buffer_load_dwordx4 v[{OF+8*s}:{OF+8*s+3}], v{vSt}, {S(rWS)}, s{sH0} offen offset:{(s%4)*1024}{LD}", f"o{s}")
        a.vm_op(f"buffer_load_dwordx4 v[{OF+8*s+4}:{OF+8*s+7}], v{vSt}, {S(rWS)}, s{sH1} offen offset:{(s%4)*1024}{LD}", f"o{s}")
    sp.stamp("oiss", lvl=4, nowait=True)
    for s in range(8):
        a.vm_wait(f"o{s}")
        if s in (0, 7): sp.stamp("o", lvl=4, nowait=True)
        mm(s, WO_F + 8 * s, OF + 8 * s)
    exchange(6)
    sp.stamp("ex", lvl=4)
    for k in range(16): e(f"v_fma_f32 v{ACCG+k}, v{ACCG+k}, v{GF+k}, v{XF+k}")
    for k in range(8): e(f"v_cvt_pk_bf16_f32 v{U+k}, v{ACCG+2*k}, v{ACCG+2*k+1}")
    for pr in range(2):
        e(f"v_permlane32_swap_b32 v{U+4*pr}, v{U+4*pr+2}")
        e(f"v_permlane32_swap_b32 v{U+4*pr+1}, v{U+4*pr+3}")
    e(f"buffer_store_dwordx4 v[{U}:{U+3}], v{vIO}, {S(rW3)}, s{sI0} offen{opt.get('ost', '')}")
    e(f"buffer_store_dwordx4 v[{U+4}:{U+7}], v{vIO}, {S(rW3)}, s{sI0} offen offset:32{opt.get('ost', '')}")
    hdiag(1)
    if opt.get("pad"):
        a.label("L_pad")
        e("s_memrealtime s[80:81]")
        e("s_waitcnt lgkmcnt(0)")
        e("s_sub_u32 s80, s80, s76")
        e(f"s_cmp_lt_u32 s80, {opt['pad']}")
        e("s_cbranch_scc1 L_pad")
    sp.stamp("end"); sp.stamp("end", lvl=4)
    if sp.on == 4: e("s_waitcnt vmcnt(0)")
    sp.stamp("drain", lvl=4)
    sp.dump(pWS, sW)
    a.label("L_end")
    e("s_endpgm")
    return kd(NAME, 256)

if __name__ == "__main__":
    opt = json.loads(sys.argv[2]) if len(sys.argv) > 2 else {}
    a = Asm()
    a.raw("; one workgroup per CU; workgroups hand data over through d_ws (write-through stores + counters)")
    a.raw("; @launch grid=(256,1,1) block=(512,1,1) lds=163840")
    a.raw('.amdgcn_target "amdgcn-amd-amdhsa--gfx950"')
    a.raw(".text")
    k = gen(a, opt)
    a.raw("L_code_end:")
    a.raw(".fill 64, 4, 0xbf800000")
    a.raw("    s_endpgm")
    a.raw('.section .rodata,"a"')
    a.raw(k)
    open(sys.argv[1], "w").write(a.text())
    print("nops inserted:", a.nops, "lines:", len(a.lines))
```

```python
import sys, json
from common import *
from gemm64 import *
BIAS = 32.0
NAME = "recurrent_scan__softmax_full_mha__glu_gated_swiglu__prompt_kernel"

def gen(a, opt):
    ST = opt.get("st", " sc1")
    LD = " sc1"
    NPH = opt.get("nph", 2)
    kernel_head(a, NAME)
    e = a.e
    uid = [0]
    def lab(p):
        uid[0] += 1; return f"L_{p}{uid[0]}"
    pX, pWQ, pWO, pW1, pW3, pW2, pOUT, pDBG, pWS = 4, 6, 8, 12, 14, 16, 18, 20, 22
    rX, rW1, rW3, rA, rB, rWS = 24, 28, 32, 36, 40, 44
    S = lambda r: f"s[{r}:{r+3}]"
    sW, sTT, sG, sRB, sCOL, sTTG = 48, 49, 50, 51, 52, 53
    sSO = [[54, 55], [56, 56], [57, 57]]
    sP64, sM0, sCurA, sCurB, sOnes, sLo, sHi, sHoff, sQKoff, sQKstep = 58, 59, 60, 61, 62, 63, 64, 65, 66, 67
    sT1, sT2, sT3, sStat, sPh, sHoff2 = 68, 69, 70, 71, 72, 73
    X0, AA, AB, WF, T0 = 16, 128, 160, 192, 216
    vLane, vSt, vD0, vD1, vD2B = 1, 2, 3, 4, 250
    vTB = [[5, 6], [7, 8], [9, 243]]
    vTW = [10, 11]
    vXR = [12, 13, 14, 15]
    vK, vC1, vSc, vP6, vP7, vFlag, vV3, vV4 = 232, 233, 234, 236, 237, 238, 239, 235
    vXW = [240, 241]; vStat = 242; vNM = 243; vAcc = [244, 245, 246, 247]; vV1, vV2 = 248, 249
    vDum = 251
    RAW = 128
    SCR = 7 * 16384
    SYNC = 163840 - 256
    e("s_cmp_ge_u32 s2, 256")
    e("s_cbranch_scc1 L_end")
    sp = Stamper(a, opt.get("stamp"), 0)
    sp.stamp("rt", True); sp.stamp("start")
    if opt.get("hdiag") or opt.get("pad"): e("s_memrealtime s[76:77]"); e("s_memtime s[78:79]")
    e("s_load_dwordx16 s[4:19], s[0:1], 0")
    e("s_load_dwordx4 s[20:23], s[0:1], 64")
    RL = 3
    sWR, sXa, sXb, sGS = sStat, sOnes, sLo, sHi
    e(f"v_lshrrev_b32 v22, 6, v0")
    e(f"v_and_b32 v{vLane}, 63, v0")
    e(f"v_readfirstlane_b32 s{sW}, v22")
    e(f"s_and_b32 s{sT1}, s2, 1")
    e(f"s_bfe_u32 s{sT2}, s2, 0x30003")
    e(f"s_lshl3_add_u32 s{sRB}, s{sT1}, s{sT2}")
    e(f"s_bfe_u32 s{sT1}, s2, 0x20001")
    e(f"s_lshr_b32 s{sT2}, s2, 6")
    e(f"s_lshl2_add_u32 s{sCOL}, s{sT1}, s{sT2}")
    e(f"v_bfe_u32 v22, v0, 3, 3")
    e(f"v_and_b32 v23, 7, v0")
    e(f"s_lshl_b32 s{sT1}, s{sT2}, 2")
    e(f"s_and_b32 s{sWR}, s{sT1}, 4")
    e(f"s_xor_b32 s{sWR}, s{sWR}, s{sW}")
    e(f"s_and_b32 s{sGS}, s{sT1}, 8")
    e(f"s_lshl3_add_u32 s{sT1}, s{sRB}, s{sWR}")
    e(f"s_lshl4_add_u32 s{sT2}, s{sT1}, s{sGS}")
    e(f"s_xor_b32 s{sT1}, s{sT2}, 8")
    e(f"s_mulk_i32 s{sT2}, 896")
    e(f"s_mulk_i32 s{sT1}, 896")
    e(f"v_mul_u32_u24 v24, 896, v22")
    e(f"v_lshl_add_u32 v24, v23, 4, v24")
    e(f"s_mov_b32 s{rX+2}, {hex(X_BYTES)}")
    e(f"s_mov_b32 s{rX+3}, 0x20000")
    e(f"s_cmp_ge_u32 s{sW}, 4")
    e("s_waitcnt lgkmcnt(0)")
    e(f"s_mov_b64 s[{rX}:{rX+1}], s[{pX}:{pX+1}]")
    def xloads(lo, hi, sa, sb):
        for k in range(lo, hi):
            gi, i = divmod(k, 7)
            r = RAW + k * 4
            e(f"buffer_load_dwordx4 v[{r}:{r+3}], v24, {S(rX)}, s{sa if gi == 0 else sb} offen offset:{i*128}")
    def touch():
        sh = opt.get("touchsh", 21)
        e(f"v_min_u32 v25, {(WS_USED >> sh) - 1}, v{vLane}")
        e(f"v_lshlrev_b32 v25, {sh}, v25")
        e(f"global_load_dword v{vDum+1}, v25, s[{pWS}:{pWS+1}]")
        e(f"v_mov_b32 v25, 0")
        for p in (pW1, pW3, pWQ, pW2, pWO, pOUT, pDBG):
            e(f"global_load_dword v{vDum+1}, v25, s[{p}:{p+1}]")
    XE = opt.get("xe", 10)
    e(f"s_cbranch_scc1 L_x0")
    a.skip_begin(); xloads(0, XE, sT2, sT1)
    e(f"s_branch L_x1")
    a.label("L_x0")
    e(f"s_getpc_b64 s[74:75]")
    a.label("L_pc")
    e(f"s_add_u32 s74, s74, {NAME}-L_pc")
    e(f"s_addc_u32 s75, s75, -1")
    e(f"s_lshr_b32 s3, s2, 3")
    e(f"s_lshl_b32 s3, s3, 7")
    e(f"v_and_b32 v20, 255, v0")
    e(f"v_lshl_add_u32 v20, v20, 12, s3")
    e(f"v_min_u32 v{vDum}, L_code_end-{NAME}-4, v20")
    e(f"global_load_dword v{vDum}, v{vDum}, s[74:75]")
    if opt.get("touch") == 1: touch()
    a.skip_end()
    a.label("L_x1")
    sp.stamp("xiss", lvl=3)
    e(f"s_mov_b32 s{sXa}, s{sT2}")
    e(f"s_mov_b32 s{sXb}, s{sT1}")
    def srd2(d, base, nbytes):
        e(f"s_mov_b64 s[{d}:{d+1}], s[{base}:{base+1}]")
        e(f"s_mov_b32 s{d+2}, {hex(nbytes)}")
        e(f"s_mov_b32 s{d+3}, 0x20000")
    srd2(rWS, pWS, WS_USED)
    e(f"s_or_b32 s{sT3}, s2, s{sW}")
    e(f"s_cbranch_scc1 L_noinit")
    a.skip_begin()
    e(f"v_lshlrev_b32 v25, 7, v{vLane}")
    e(f"v_mov_b32 v26, 0")
    e(f"s_mov_b32 s3, {CNT_OFF}")
    for q in range(5):
        if q: e(f"s_add_u32 s3, s3, 8192")
        e(f"buffer_store_dword v26, v25, {S(rWS)}, s3 offen sc1")
    a.skip_end()
    a.label("L_noinit")
    if opt.get("padg"):
        e("s_cmp_ge_u32 s2, 8")
        e("s_cbranch_scc1 L_pg")
        e(f"s_cmp_lg_u32 s{sW}, 7")
        e("s_cbranch_scc1 L_pg")
        e("s_not_b32 s80, s76")
        e("v_mov_b32 v25, 0"); e("v_mov_b32 v26, s80")
        e(f"global_atomic_umax v25, v26, s[{pDBG}:{pDBG+1}] offset:4 sc1")
        a.label("L_pg")
    e(f"s_and_b32 s{sTT}, s{sW}, 3")
    e(f"s_lshr_b32 s{sG}, s{sW}, 2")
    e(f"s_lshl_b32 s{sM0}, s{sW}, 10")
    e(f"s_lshl_b32 s{sPh}, s{sG}, 1")
    sTc0a, sTc0b = sCurA, sCurB
    e(f"s_cmp_ge_u32 s{sCOL}, 12")
    e(f"s_cbranch_scc1 L_r0f")
    srd2(rA, pWQ, WQ_BYTES)
    e(f"s_mov_b64 s[{rB}:{rB+1}], s[{pWQ}:{pWQ+1}]")
    e(f"s_and_b32 s{sT2}, s{sCOL}, 3")
    e(f"s_mul_i32 s{sSO[0][0]}, s{sCOL}, 224")
    e(f"s_cmp_eq_u32 s{sT2}, 3")
    e(f"s_cselect_b32 s{sT3}, 32, 0")
    e(f"s_sub_u32 s{sSO[0][0]}, s{sSO[0][0]}, s{sT3}")
    e(f"s_add_u32 s{sSO[0][1]}, s{sSO[0][0]}, 128")
    e(f"s_mul_i32 s{sTc0a}, s{sG}, 112")
    e(f"s_add_u32 s{sTc0a}, s{sTc0a}, s{sT3}")
    e(f"s_add_u32 s{sTc0b}, s{sTc0a}, 56")
    e(f"s_movk_i32 s{sP64}, 2688")
    e(f"s_branch L_r0j")
    a.label("L_r0f")
    srd2(rA, pW1, W1_BYTES)
    e(f"s_mov_b64 s[{rB}:{rB+1}], s[{pW3}:{pW3+1}]")
    e(f"s_add_u32 s{sT1}, s{sCOL}, 12")
    e(f"s_lshl_b32 s{sSO[0][0]}, s{sT1}, 7")
    e(f"s_mov_b32 s{sSO[0][1]}, s{sSO[0][0]}")
    e(f"s_lshl_b32 s{sTc0a}, s{sG}, 6")
    e(f"s_add_u32 s{sTc0b}, s{sTc0a}, 128")
    e(f"s_movk_i32 s{sP64}, 3584")
    a.label("L_r0j")
    a.reset_hist()
    e(f"s_mov_b32 s{rB+2}, s{rA+2}")
    e(f"s_mov_b32 s{rB+3}, 0x20000")
    e(f"s_and_b32 s{sT3}, s{sRB}, 7")
    if opt.get("wpf0", 1):
        e(f"s_cmp_{'lt' if opt.get('wpf0', 2) == 1 else 'ge'}_u32 s{sW}, 4")
        e(f"s_cbranch_scc1 L_w0")
        a.skip_begin()
        e(f"s_mul_i32 s{sT2}, s{sTT}, 48")
        e(f"s_add_u32 s{sT2}, s{sT2}, s{sT3}")
        e(f"v_min_u32 v30, 5, v{vLane}")
        e(f"v_lshl_add_u32 v30, v30, 3, s{sT2}")
        e(f"v_mul_lo_u32 v30, v30, s{sP64}")
        e(f"buffer_load_dword v{vDum+1}, v30, {S(rA)}, s{sSO[0][0]} offen")
        e(f"buffer_load_dword v{vDum+1}, v30, {S(rB)}, s{sSO[0][1]} offen")
        a.skip_end()
        a.label("L_w0")
    e(f"v_lshrrev_b32 v25, 2, v{vLane}")
    e(f"v_and_b32 v25, 4, v25")
    e(f"v_xor_b32 v25, v25, v23")
    e(f"v_lshl_add_u32 v26, s{sW}, 3, v22")
    e(f"v_mul_lo_u32 v{vD0}, v26, s{sP64}")
    e(f"v_lshl_add_u32 v{vD0}, v25, 4, v{vD0}")
    e(f"v_mul_u32_u24 v{vD1}, 3584, v26")
    e(f"v_lshl_add_u32 v{vD1}, v25, 4, v{vD1}")
    e(f"s_lshl_b32 s{sT1}, s{sP64}, 5")
    e(f"v_subrev_u32 v32, s{sT1}, v{vD0}")
    vRow, vSwz, vCol = vV1, vV2, vV3
    e(f"v_lshrrev_b32 v26, 5, v{vLane}")
    e(f"v_bfe_u32 v27, v{vLane}, 2, 2")
    e(f"v_lshl_add_u32 v27, v26, 3, v27")
    e(f"v_lshlrev_b32 v{vRow}, 7, v27")
    e(f"v_and_b32 v28, 8, v{vLane}")
    e(f"v_lshlrev_b32 v{vSwz}, 3, v28")
    e(f"v_and_b32 v29, 3, v{vLane}")
    e(f"v_and_b32 v30, 16, v{vLane}")
    e(f"v_lshlrev_b32 v30, 1, v30")
    e(f"v_lshl_add_u32 v{vCol}, v29, 3, v30")
    def traddr(d, stc, t0, t1):
        return [f"v_add_u32 v{t0}, s{stc}, v{vCol}", f"v_and_b32 v{t1}, 127, v{t0}", f"v_xor_b32 v{t1}, v{t1}, v{vSwz}",
                f"v_and_b32 v{t0}, 128, v{t0}", f"v_lshl_add_u32 v{t0}, v{t0}, 6, v{t1}", f"v_add_u32 v{d}, v{t0}, v{vRow}"]
    for t in traddr(vTB[0][0], sTc0a, 30, 31) + traddr(vTB[0][1], sTc0b, 30, 31): e(t)
    e(f"s_and_b32 s{sT1}, s{sWR}, 1")
    e(f"s_lshl4_add_u32 s{sT1}, s{sT1}, s{sGS}")
    e(f"v_add_u32 v30, s{sT1}, v22")
    e(f"v_xor_b32 v30, v30, v23")
    e(f"v_lshlrev_b32 v30, 4, v30")
    e(f"v_lshrrev_b32 v31, 1, v23")
    e(f"v_lshl_add_u32 v30, v31, 12, v30")
    e(f"v_and_b32 v31, 1, v23")
    e(f"v_lshl_add_u32 v30, v31, 9, v30")
    e(f"s_lshr_b32 s{sT1}, s{sWR}, 1")
    e(f"v_lshl_add_u32 v{vXW[0]}, s{sT1}, 10, v30")
    e(f"v_add_u32 v{vXW[1]}, 0x10000, v{vXW[0]}")
    e(f"v_and_b32 v30, 31, v{vLane}")
    e(f"v_xor_b32 v30, v30, v26")
    e(f"v_lshlrev_b32 v30, 4, v30")
    e(f"v_lshl_add_u32 v30, v26, 9, v30")
    e(f"v_lshl_add_u32 v{vXR[0]}, s{sTT}, 10, v30")
    for q in range(1, 4):
        e(f"v_xor_b32 v{vXR[q]}, {q*4096 + q*32}, v{vXR[0]}")
    e(f"s_lshl4_add_u32 s{sT1}, s{sWR}, s{sGS}")
    e(f"v_add_lshl_u32 v{vStat}, v22, s{sT1}, 2")
    e(f"s_mul_i32 s{sT2}, s{sTT}, 112")
    e(f"s_add_u32 s{sT1}, s{sT3}, s{sT2}")
    e(f"v_min_u32 v30, 13, v{vLane}")
    e(f"v_lshl_add_u32 v30, v30, 3, s{sT1}")
    e(f"v_mul_u32_u24 v{vDum+3}, 3584, v30")
    e(f"s_lshl_b32 s{sT2}, s{sTT}, 6")
    e(f"s_add_u32 s{sT1}, s{sT3}, s{sT2}")
    e(f"s_add_u32 s{sT1}, s{sT1}, 192")
    e(f"v_min_u32 v31, 7, v{vLane}")
    e(f"v_lshl_add_u32 v31, v31, 3, s{sT1}")
    e(f"v_mul_lo_u32 v{vDum+2}, v31, s{sP64}")
    e(f"s_lshl_b32 s{sP64}, s{sP64}, 6")
    srd2(rW1, pW1, W1_BYTES)
    srd2(rW3, pW3, W1_BYTES)
    e(f"s_lshl_b32 s{sSO[1][0]}, s{sCOL}, 7")
    e(f"s_lshr_b32 s{sT1}, s{sCOL}, 1")
    e(f"s_add_u32 s{sT1}, s{sT1}, 16")
    e(f"s_lshl_b32 s{sSO[2][0]}, s{sT1}, 7")
    e(f"s_cmp_lt_u32 s{sW}, 4")
    e(f"s_cbranch_scc1 L_x2")
    a.skip_begin(); xloads(0, XE, sXa, sXb); a.skip_end()
    a.label("L_x2")
    xloads(XE, 14, sXa, sXb)
    e(f"s_lshl_b32 s{sStat}, s2, 9")
    e(f"s_add_u32 s{sStat}, s{sStat}, {ST_OFF}")
    e(f"s_mov_b32 s{sOnes}, 0x3f803f80")
    e(f"s_movk_i32 s{sLo}, 0x3f80")
    e(f"s_mov_b32 s{sHi}, 1.0")
    def slot(c):
        if c < 3: return 7 + c
        if c < 10: return c - 3
        if c == 20: return 7
        return slot(c - 9)
    dma_next = [3]
    def dma(c, track=True):
        r, cc = divmod(c, 7)
        if cc == 0:
            e(f"s_mov_b32 s{sCurA}, s{sSO[r][0]}")
            if r == 0: e(f"s_mov_b32 s{sCurB}, s{sSO[r][1]}")
        va, vb = [(vD0, vD0), (vD1, vD1), (vD1, vD2B)][r]
        sa, sb = (rA, rB) if r == 0 else (rW1, rW3)
        inc = f"s{sP64}" if r == 0 else f"{64*3584}"
        e(f"s_add_u32 m0, s{sM0}, {slot(c)*16384}")
        if cc: e(f"s_add_u32 s{sCurA}, s{sCurA}, {inc}")
        e(f"buffer_load_dwordx4 v{va}, {S(sa)}, s{sCurA} offen lds")
        e(f"s_add_u32 m0, s{sM0}, {slot(c)*16384+8192}")
        if cc and r == 0: e(f"s_add_u32 s{sCurB}, s{sCurB}, {inc}")
        e(f"buffer_load_dwordx4 v{vb}, {S(sb)}, s{sCurB if r == 0 else sCurA} offen lds")
        if track: a.vm += [f"c{c}", f"c{c}"]
    for q in range(8): e(f"v_mov_b32 v{T0+8+q}, 0")
    e(f"s_cmp_lt_u32 s{sW}, 4")
    e(f"s_cbranch_scc1 L_lnA")
    e(f"s_waitcnt vmcnt(0)")
    def dma4(c):
        dma(c, track=False)
        e(f"s_add_u32 m0, s{sM0}, {slot(c)*16384 - 4096}")
        e(f"buffer_load_dwordx4 v32, {S(rA)}, s{sCurA} offen lds")
        e(f"s_add_u32 m0, s{sM0}, {slot(c)*16384 + 8192 - 4096}")
        e(f"buffer_load_dwordx4 v32, {S(rB)}, s{sCurB} offen lds")
        a.vm += [f"c{c}"] * 4
    C2 = opt.get("c2pos", 1)
    for c in range(3 if C2 == 0 else 2): dma4(c)
    e(f"s_branch L_lnB")
    a.label("L_lnA")
    e(f"s_lshl1_add_u32 s{sCurA}, s{sP64}, s{sSO[0][0]}")
    e(f"s_lshl1_add_u32 s{sCurB}, s{sP64}, s{sSO[0][1]}")
    e(f"s_waitcnt vmcnt(0)")
    a.label("L_lnB")
    a.reset_hist()
    sp.stamp("x0"); sp.stamp("x0", lvl=3)
    AC = T0 + 8
    def reduce2(d0, d1):
        for g in range(2): e(f"v_add_f32 v{AC+4*g}, v{AC+4*g}, v{AC+4*g+1}")
        for g in range(2): e(f"v_add_f32 v{AC+4*g+2}, v{AC+4*g+2}, v{AC+4*g+3}")
        for g, d in enumerate((d0, d1)): e(f"v_add_f32 v{d}, v{AC+4*g}, v{AC+4*g+2}")
        for m in ("quad_perm:[1,0,3,2]", "quad_perm:[2,3,0,1]", "row_half_mirror"):
            for d in (d0, d1): e(f"v_add_f32_dpp v{d}, v{d}, v{d} {m} row_mask:0xf bank_mask:0xf")
    for i in range(28):
        for g in range(2): e(f"v_dot2c_f32_bf16 v{AC+4*g+i%4}, s{sOnes}, v{RAW+g*28+i}")
    reduce2(vAcc[0], vAcc[1])
    for q in range(8): e(f"v_mov_b32 v{AC+q}, 0")
    for g in range(2): e(f"v_mul_f32 v{vAcc[g]}, {hexf(-1.0/448)}, v{vAcc[g]}")
    if C2 == 1:
        e(f"s_cmp_lt_u32 s{sW}, 4")
        e(f"s_cbranch_scc1 L_c2")
        a.skip_begin(); dma4(2); a.skip_end()
        a.label("L_c2")
    sp.stamp("pre", lvl=3)
    pend = None
    for gi in range(2):
        for i in range(7):
            r = RAW + gi * 28 + i * 4
            for k in range(4):
                e(f"v_dot2_f32_bf16 v{T0+2*k}, v{r+k}, s{sLo}, v{vAcc[gi]}")
                e(f"v_dot2_f32_bf16 v{T0+2*k+1}, v{r+k}, s{sHi}, v{vAcc[gi]}")
            if pend: pend()
            for k in range(4):
                e(f"v_cvt_pk_bf16_f32 v{r+k}, v{T0+2*k}, v{T0+2*k+1}")
            def pend(r=r, gi=gi, i=i):
                off = i * 16384
                a.ds_op(f"ds_write_b128 v{vXW[off >> 16]}, v[{r}:{r+3}] offset:{off & 0xffff}", "xw")
                if i == 6 and gi == 0:
                    e(f"v_xor_b32 v{vXW[0]}, 128, v{vXW[0]}")
                    e(f"v_xor_b32 v{vXW[1]}, 128, v{vXW[1]}")
    pend()
    if C2 == 2:
        e(f"s_cmp_lt_u32 s{sW}, 4")
        e(f"s_cbranch_scc1 L_c2")
        a.skip_begin(); dma4(2); a.skip_end()
        a.label("L_c2")
    sp.stamp("post", lvl=3)
    for i in range(28):
        for g in range(2): e(f"v_dot2c_f32_bf16 v{AC+4*g+i%4}, v{RAW+g*28+i}, v{RAW+g*28+i}")
    e(f"v_mov_b32 v{T0}, {hexf(1e-5)}")
    e(f"v_mov_b32 v{T0+1}, {hexf(1e-5)}")
    e(f"v_xor_b32 v{T0+2}, 32, v{vStat}")
    reduce2(vAcc[0], vAcc[1])
    for g in range(2): e(f"v_fmac_f32 v{T0+g}, {hexf(1.0/448)}, v{vAcc[g]}")
    def wpf():
        e(f"buffer_load_dword v{vDum+1}, v{vDum+2}, {S(rA)}, s{sSO[0][0]} offen")
        e(f"buffer_load_dword v{vDum+1}, v{vDum+2}, {S(rB)}, s{sSO[0][1]} offen")
        for r in (1, 2):
            e(f"buffer_load_dword v{vDum+1}, v{vDum+3}, {S(rW1)}, s{sSO[r][0]} offen")
            e(f"buffer_load_dword v{vDum+1}, v{vDum+3}, {S(rW3)}, s{sSO[r][0]} offen")
        if opt.get("w2pf", 3) == 3:
            e(f"s_lshl2_add_u32 s{sT1}, s2, s{sW}")
            e(f"s_mul_i32 s{sT2}, s{sT1}, {13*128}")
            e(f"s_lshl_b32 s{sT1}, s{sT1}, 9")
            e(f"v_min_u32 v{vDum+2}, 12, v{vLane}")
            e(f"v_lshl_add_u32 v{vDum+2}, v{vDum+2}, 7, s{sT2}")
            e(f"v_min_u32 v{vDum+2}, {W2_BYTES-4}, v{vDum+2}")
            e(f"v_min_u32 v{vDum+3}, 3, v{vLane}")
            e(f"v_lshl_add_u32 v{vDum+3}, v{vDum+3}, 7, s{sT1}")
            e(f"v_min_u32 v{vDum+3}, {WO_BYTES-4}, v{vDum+3}")
            e(f"global_load_dword v{vDum+1}, v{vDum+2}, s[{pW2}:{pW2+1}]")
            e(f"global_load_dword v{vDum+1}, v{vDum+3}, s[{pWO}:{pWO+1}]")
    e(f"s_cmp_ge_u32 s{sW}, 4")
    e(f"s_cbranch_scc1 L_lnD")
    a.skip_begin()
    e(f"s_or_b32 s{sT3}, s2, s{sW}")
    e(f"s_cbranch_scc1 L_noflag")
    e(f"v_mov_b32 v25, 0")
    e(f"v_mov_b32 v26, 1")
    e(f"global_store_dword v25, v26, s[{pDBG}:{pDBG+1}] sc1")
    a.label("L_noflag")
    if opt.get("touch") == 2: touch()
    if opt.get("wpf", 1) == 1: wpf()
    e(f"s_branch L_lnE")
    a.skip_end()
    a.label("L_lnD")
    sp.stamp("ln", lvl=3, nowait=True)
    a.vm_wait("c1")
    a.label("L_lnE")
    a.ds_wait_all()
    sp.stamp("ln")
    sp.stamp("c1", lvl=3)
    e("s_barrier")
    sp.stamp("b1"); sp.stamp("b1", lvl=3)
    def deferred():
        t0, t1, t2 = AB, AB + 1, AB + 2
        G = lambda *ins: (lambda: [e(x) for x in ins], sum(2 if x.startswith("s_") else 4 for x in ins))
        L = []
        L.append(G(f"v_xor_b32 v{vD2B}, 32, v{vD1}", f"v_lshlrev_b32 v{vSt}, 4, v{vLane}", f"s_mov_b32 vcc_lo, -1", f"s_mov_b32 vcc_hi, 0"))
        L.append(G(f"s_lshl2_add_u32 s{sTTG}, s{sRB}, s{sTT}", f"s_lshl_b32 s{sHoff}, s{sG}, 6"))
        L += [G(x) for x in traddr(vTB[1][0], sHoff, t0, t1)]
        L.append(G(f"v_add_u32 v{vTB[1][1]}, 8192, v{vTB[1][0]}"))
        L.append(G(f"s_and_b32 s{sHoff}, s{sCOL}, 1", f"s_lshl_b32 s{sHoff2}, s{sHoff}, 1", f"s_lshl_b32 s{sHoff}, s{sHoff2}, 5",
                   f"v_xor_b32 v{t0}, s{sHoff}, v{vCol}"))
        L.append(G(f"v_xor_b32 v{t0}, v{t0}, v{vSwz}", f"v_and_b32 v{t1}, 16, v{vLane}"))
        L.append(G(f"v_lshl_add_u32 v{t0}, v{t1}, 9, v{t0}", f"v_add_u32 v{vTB[2][0]}, v{t0}, v{vRow}", f"v_xor_b32 v{vTB[2][1]}, 32, v{vTB[2][0]}"))
        L.append(G(f"s_mul_i32 s{sHoff}, s{sTTG}, 112", f"s_add_u32 s{sHoff2}, s{sHoff2}, s{sHoff}", f"s_lshr_b32 s{sQKoff}, s{sSO[2][0]}, 5",
                   f"s_add_u32 s{sHoff2}, s{sHoff2}, s{sQKoff}", f"s_lshl_b32 s{sHoff2}, s{sHoff2}, 10", f"s_add_u32 s{sHoff2}, s{sHoff2}, {H_OFF}"))
        L.append(G(f"s_lshl1_add_u32 s{sHoff}, s{sG}, s{sHoff}", f"s_lshl2_add_u32 s{sHoff}, s{sCOL}, s{sHoff}", f"s_lshl_b32 s{sHoff}, s{sHoff}, 10",
                   f"s_add_u32 s{sHoff}, s{sHoff}, {H_OFF}"))
        L.append(G(f"s_lshl1_add_u32 s{sQKoff}, s{sCOL}, s{sG}", f"s_lshl_b32 s{sQKoff}, s{sQKoff}, 7", f"s_add_u32 s{sQKoff}, s{sQKoff}, s{sTTG}",
                   f"s_lshl_b32 s{sQKoff}, s{sQKoff}, 11", f"s_add_u32 s{sQKstep}, s{sHoff}, {12*4096}", f"s_cmp_ge_u32 s{sCOL}, 12",
                   f"s_cselect_b32 s{sQKoff}, s{sQKstep}, s{sQKoff}"))
        L.append(G(f"s_lshr_b32 s{sQKstep}, s{sCOL}, 2", f"s_cmp_eq_u32 s{sQKstep}, 1", f"s_cselect_b32 s{sOnes}, s{sOnes}, 0", f"s_cselect_b32 s{sHi}, s{sLo}, 0",
                   f"s_cmp_eq_u32 s{sQKstep}, 2", f"s_cselect_b32 s{sOnes}, s{sLo}, s{sOnes}"))
        L.append(G(f"v_mov_b32 v{vP6}, s{sOnes}", f"v_mov_b32 v{vP7}, s{sHi}"))
        L.append(G(f"v_lshrrev_b32 v{t2}, 5, v{vLane}", f"v_bfe_u32 v{t0}, v{vLane}, 2, 2", f"v_lshl_add_u32 v{t0}, v{t2}, 2, v{t0}"))
        L.append(G(f"v_lshrrev_b32 v{t1}, 1, v{t0}", f"v_lshlrev_b32 v{t1}, 3, v{t1}", f"v_xor_b32 v{t1}, v{t1}, v{vCol}"))
        L.append(G(f"s_lshl_b32 s{sQKstep}, s{sW}, 11", f"s_add_u32 s{sQKstep}, s{sQKstep}, {SCR}", f"v_lshl_add_u32 v{t0}, v{t0}, 6, v{t1}",
                   f"v_add_u32 v{vV2}, s{sQKstep}, v{t0}"))
        L.append(G(f"v_xor_b32 v{vV3}, 32, v{vV2}", f"v_bfe_u32 v{t0}, v{vLane}, 1, 3", f"v_xor_b32 v{t0}, v{t0}, v{t2}"))
        L.append(G(f"v_and_b32 v{t1}, 31, v{vLane}", f"v_lshlrev_b32 v{t1}, 6, v{t1}", f"v_lshl_add_u32 v{t0}, v{t0}, 3, v{t1}"))
        L.append(G(f"v_add_u32 v{vV1}, s{sQKstep}, v{t0}"))
        return L
    def hdiag(k):
        if not opt.get("hdiag"): return
        if k == 0: return
        e("s_cmp_ge_u32 s2, 7")
        e("s_cbranch_scc1 L_end")
        e(f"s_cmp_lg_u32 s{sW}, 4")
        e("s_cbranch_scc1 L_end")
        e("s_memrealtime s[80:81]"); e("s_memtime s[82:83]")
        e("s_waitcnt vmcnt(0) lgkmcnt(0)")
        e("s_mov_b64 exec, 1")
        e("s_lshl_b32 s3, s2, 3")
        e("v_mov_b32 v0, s3")
        e("s_sub_u32 s84, s82, s78")
        e("s_sub_u32 s80, s80, s76")
        e("s_and_b32 s76, s76, 0xffff")
        e("s_lshl_b32 s80, s80, 16")
        e("s_or_b32 s76, s76, s80")
        e("v_mov_b32 v2, s76"); e("v_mov_b32 v3, s84")
        e(f"global_store_dword v0, v2, s[{pDBG}:{pDBG+1}] offset:4")
        e(f"global_store_dword v0, v3, s[{pDBG}:{pDBG+1}] offset:8")
    def check_flag(vtmp):
        done = lab("fl")
        e(f"v_readfirstlane_b32 s{sT1}, v{vFlag}")
        e(f"s_cmp_lg_u32 s{sT1}, 0")
        e(f"s_cbranch_scc1 {done}")
        e(f"s_mov_b32 s{sT2}, 0x40000")
        lp = lab("fs"); a.label(lp)
        e(f"v_mov_b32 v{vtmp}, 0")
        e(f"global_load_dword v{vFlag}, v{vtmp}, s[{pDBG}:{pDBG+1}] sc1")
        e(f"s_waitcnt vmcnt(0)")
        e(f"v_readfirstlane_b32 s{sT1}, v{vFlag}")
        e(f"s_sub_u32 s{sT2}, s{sT2}, 1")
        e(f"s_cselect_b32 s{sT1}, 1, s{sT1}")
        e(f"s_cmp_eq_u32 s{sT1}, 0")
        e(f"s_cbranch_scc1 {lp}")
        a.label(done)
    def signal(sIdx, add, va, vb):
        e(f"s_add_u32 s{sT1}, s{sIdx}, {add}")
        e(f"s_lshl_b32 s{sT1}, s{sT1}, 7")
        e(f"s_add_u32 s{sT1}, s{sT1}, {CNT_OFF}")
        e(f"v_mov_b32 v{va}, 0")
        e(f"v_mov_b32 v{vb}, 1")
        e(f"s_mov_b64 exec, 1")
        e(f"buffer_atomic_add v{vb}, v{va}, {S(rWS)}, s{sT1} offen sc1")
        e(f"s_mov_b64 exec, -1")
    def poll(vaddr, vval, target, sleep):
        lp = lab("po"); done = lab("pd")
        e(f"s_mov_b32 s{sT2}, 0x40000")
        e(f"s_mov_b32 s{sT3}, {CNT_OFF}")
        a.label(lp)
        e(f"buffer_load_dword v{vval}, v{vaddr}, {S(rWS)}, s{sT3} offen sc1")
        e(f"s_waitcnt vmcnt(0)")
        e(f"v_cmp_gt_u32 s[74:75], {target}, v{vval}")
        e(f"s_cmp_eq_u64 s[74:75], 0")
        e(f"s_cbranch_scc1 {done}")
        e(f"s_sleep {sleep}")
        e(f"s_sub_u32 s{sT2}, s{sT2}, 1")
        e(f"s_cbranch_scc0 {lp}")
        a.label(done)
        a.vm = []
    def lds_arrive(k, va, vb, rtn=False):
        e(f"v_mov_b32 v{va}, {SYNC + 4*k}")
        e(f"v_mov_b32 v{vb}, 1")
        e(f"s_mov_b64 exec, 1")
        e(f"ds_add_rtn_u32 v{vb}, v{va}, v{vb}" if rtn else f"ds_add_u32 v{va}, v{vb}")
        e(f"s_mov_b64 exec, -1")
    def lds_sync(k, n, va, vb, meanwhile=None):
        a.ds_wait_all()
        lds_arrive(k, va, vb)
        if meanwhile:
            e("s_nop 3"); meanwhile()
        lp = lab("ls")
        e(f"s_mov_b32 s{sT2}, 0x400000")
        a.label(lp)
        e(f"ds_read_b32 v{vb}, v{va}")
        e(f"s_waitcnt lgkmcnt(0)")
        e(f"v_readfirstlane_b32 s{sT1}, v{vb}")
        e(f"s_sub_u32 s{sT2}, s{sT2}, 1")
        e(f"s_cselect_b32 s{sT1}, {n}, s{sT1}")
        e(f"s_cmp_lt_u32 s{sT1}, {n}")
        e(f"s_cbranch_scc1 {lp}")
    def lds_spin(k, n, va, vb, sleep):
        lp = lab("ls"); ok = lab("lk")
        e(f"v_mov_b32 v{va}, {SYNC + 4*k}")
        e(f"s_mov_b32 s{sT2}, 0x100000")
        a.label(lp)
        e(f"ds_read_b32 v{vb}, v{va}")
        e(f"s_waitcnt lgkmcnt(0)")
        e(f"v_readfirstlane_b32 s{sT1}, v{vb}")
        e(f"s_cmp_ge_u32 s{sT1}, {n}")
        e(f"s_cbranch_scc1 {ok}")
        e(f"s_sleep {sleep}")
        e(f"s_sub_u32 s{sT2}, s{sT2}, 1")
        e(f"s_cbranch_scc0 {lp}")
        a.label(ok)
    def lds_check(k, n, va, vb):
        lp = lab("lc"); ok = lab("ld")
        e(f"s_mov_b32 s{sT2}, 0x400000")
        a.label(lp)
        e(f"s_waitcnt lgkmcnt(0)"); a.lg = []
        e(f"v_readfirstlane_b32 s{sT1}, v{vb}")
        e(f"s_cmp_ge_u32 s{sT1}, {n}")
        e(f"s_cbranch_scc1 {ok}")
        a.skip_begin()
        e(f"ds_read_b32 v{vb}, v{va}")
        e(f"s_sub_u32 s{sT2}, s{sT2}, 1")
        e(f"s_cbranch_scc0 {lp}")
        a.skip_end()
        a.label(ok)
    def lds_wait(k, n, va, vb, meanwhile):
        lp = lab("lw"); ok = lab("lo")
        e(f"v_mov_b32 v{va}, {SYNC + 4*k}")
        e(f"ds_read_b32 v{vb}, v{va}")
        meanwhile()
        e(f"s_mov_b32 s{sT2}, 0x400000")
        a.label(lp)
        e(f"s_waitcnt lgkmcnt(0)")
        e(f"v_readfirstlane_b32 s{sT1}, v{vb}")
        e(f"s_cmp_ge_u32 s{sT1}, {n}")
        e(f"s_cbranch_scc1 {ok}")
        e(f"ds_read_b32 v{vb}, v{va}")
        e(f"s_sub_u32 s{sT2}, s{sT2}, 1")
        e(f"s_cbranch_scc0 {lp}")
        a.label(ok)
    def last_signals(k, n, sIdx, add, va, vb):
        lds_arrive(k, va, vb, rtn=True)
        e(f"s_waitcnt lgkmcnt(0)"); a.lg = []
        e(f"v_readfirstlane_b32 s{sT1}, v{vb}")
        sk = lab("ns")
        e(f"s_cmp_lg_u32 s{sT1}, {n-1}")
        e(f"s_cbranch_scc1 {sk}")
        a.skip_begin()
        signal(sIdx, add, va, vb)
        a.skip_end()
        a.label(sk)
    NT = [2, 2, 2]
    ACC = [AA, AB, AA]
    tw_state = [None, None]
    def wreads(G):
        r, s = divmod(G, 28)
        base = slot(G // 4) * 16384 + (s % 4) * 2048
        hi, lo = base >> 16, base & 0xffff
        L = []
        for t in range(NT[r]):
            d = WF + (G % 3) * 8 + t * 4
            def f0(t=t, d=d):
                if tw_state[t] != (r, hi):
                    e(f"v_add_u32 v{vTW[t]}, {hex(hi << 16)}, v{vTB[r][t]}")
                    tw_state[t] = (r, hi)
                a.ds_op(f"ds_read_b64_tr_b16 v[{d}:{d+1}], v{vTW[t]} offset:{lo}", f"w{G}")
            def f1(t=t, d=d):
                a.ds_op(f"ds_read_b64_tr_b16 v[{d+2}:{d+3}], v{vTW[t]} offset:{lo+512}", f"w{G}")
            L += [f0, f1]
        return L
    xr_next = [0]
    def xread(n):
        for _ in range(n):
            s = xr_next[0]
            if s >= 28: return
            xr_next[0] += 1
            if s == 16:
                for q in range(4): e(f"v_add_u32 v{vXR[q]}, 0x10000, v{vXR[q]}")
            off = ((s // 4) * 16384) & 0xffff
            a.ds_op(f"ds_read_b128 v[{X0+4*s}:{X0+4*s+3}], v{vXR[s%4]} offset:{off}", f"x{s}")
    BARS = opt.get("bars", [0, 1, 2, 3, 5, 7, 9, 11, 13, 15])
    PQ = opt.get("pq", 11)
    PZ = opt.get("pz", 13)
    L2P = {int(k): v for k, v in opt.get("l2p", {}).items()}
    VEND = PQ
    window = []; pending = []
    def period_barrier(i):
        for c in window: a.vm.extend([f"c{c}", f"c{c}"])
        assert not pending, pending
        window.clear()
        nxt = min([b for b in BARS if b > i] + [20])
        a.vm_wait(f"c{nxt}")
        assert dma_next[0] > nxt, (i, nxt, dma_next[0])
        if i == 3: a.vm_wait("stat")
        if i == PQ: a.vm_wait("st")
        if i in opt.get("sb", []): sp.stamp("pre", lvl=2, nowait=True)
        e("s_barrier")
        if i in opt.get("sb", []): sp.stamp("post", lvl=2, nowait=True)
        if i == 3:
            e(f"v_and_b32 v{vK}, 31, v{vLane}")
            e(f"v_lshlrev_b32 v{vK}, 2, v{vK}")
            e(f"s_lshl_b32 s{sT1}, s{sTT}, 7")
            e(f"s_add_u32 s{sT1}, s{sT1}, s{sStat}")
            e(f"v_mov_b32 v{vFlag}, 0")
            a.vm_op(f"buffer_load_dword v{vK}, v{vK}, {S(rWS)}, s{sT1} offen sc1", "kld")
            a.vm_op(f"global_load_dword v{vFlag}, v{vFlag}, s[{pDBG}:{pDBG+1}] sc1", "kld")
        if i in L2P:
            for k in L2P[i]:
                sk = lab("pf")
                e(f"s_cmp_lg_u32 s{sW}, {k}")
                e(f"s_cbranch_scc1 {sk}")
                a.skip_begin()
                e(f"s_lshr_b32 s{sT1}, s2, 3")
                nl, ptr, nb = (56, pW2, W2_BYTES) if k < 7 else (98, pWO, WO_BYTES)
                if k < 7:
                    e(f"s_mul_i32 s{sT1}, s{sT1}, {7*56*128}")
                    e(f"s_add_u32 s{sT1}, s{sT1}, {k*56*128}")
                else:
                    e(f"s_mul_i32 s{sT1}, s{sT1}, {98*128}")
                e(f"v_min_u32 v{vDum+2}, {min(nl, 64) - 1 if k < 7 else 48}, v{vLane}")
                e(f"v_lshl_add_u32 v{vDum+2}, v{vDum+2}, 7, s{sT1}")
                e(f"global_load_dword v{vDum+1}, v{vDum+2}, s[{ptr}:{ptr+1}]")
                if k == 7:
                    e(f"v_add_u32 v{vDum+2}, {49*128}, v{vDum+2}")
                    e(f"global_load_dword v{vDum+1}, v{vDum+2}, s[{ptr}:{ptr+1}]")
                a.skip_end()
                a.label(sk)
        if i == PZ:
            e(f"v_lshrrev_b32 v{vDum+2}, 2, v{vSt}")
            e(f"v_add_u32 v{vDum+2}, {SYNC}, v{vDum+2}")
            e(f"v_mov_b32 v{vDum+3}, 0")
            a.ds_op(f"ds_write_b32 v{vDum+2}, v{vDum+3}", "z")
        if i == PQ and sigq[0]:
            sk = lab("q")
            e(f"s_cmp_lg_u32 s{sW}, 0")
            e(f"s_cbranch_scc1 {sk}")
            a.skip_begin()
            check_flag(vDum + 2)
            signal(sCOL, 0, vDum + 2, vDum + 3)
            a.skip_end()
            a.label(sk)
        while dma_next[0] <= 20:
            c = dma_next[0]
            if c < 10:
                sl = slot(c)
                if not all(xr_next[0] > s and a.ds_done(f"x{s}") for s in range(4*sl, 4*sl+4)): break
            elif c == 20:
                if i < 13: break
            elif c - 9 > i - 1: break
            window.append(c); dma_next[0] += 1
        nq = nxt - i
        per = -(-len(window) // nq)
        pending[:] = [window[k*per:(k+1)*per] for k in range(nq)]
    sigq = [False]
    XR = opt.get("xrate", 2)
    def kloop(r, extra, budget, hooks={}):
        extra = list(extra)
        if opt.get("x_noepi"): extra = [x for x in extra if x[1] == 0]
        gap = 0
        for s in range(28):
            G = r * 28 + s
            Gn = G + 2
            rd = wreads(Gn) if Gn < 84 else []
            a.ds_wait(f"w{G}")
            if r == 0: a.ds_wait(f"x{s}")
            ph = Gn % 4
            for t in range(NT[r]):
                d = ACC[r] + 16 * t
                w = WF + (G % 3) * 8 + t * 4
                c = "0" if s == 0 else f"v[{d}:{d+15}]"
                e(f"v_mfma_f32_32x32x16_bf16 v[{d}:{d+15}], v[{w}:{w+3}], v[{X0+4*s}:{X0+4*s+3}], {c}")
                gap += 1
                if t == 0 and Gn < 84 and ph == 0 and (Gn // 4 - 1) in BARS: period_barrier(Gn // 4 - 1)
                n = -(-len(rd) // (NT[r] - t))
                for f in rd[:n]: f()
                rd = rd[n:]
                if r == 0: xread((XR + 1 - t) // 2)
                left = budget
                if t == NT[r] - 1 and pending and pending[0] and ph % 2 == 0:
                    sk = lab("d")
                    e(f"s_cmp_lg_u32 s{sPh}, {ph}")
                    e(f"s_cbranch_scc1 {sk}")
                    a.skip_begin()
                    for c in pending[0]: dma(c, track=False)
                    a.skip_end()
                    a.label(sk)
                    left = opt.get("dmabud", 4)
                if t == NT[r] - 1 and s in hooks: hooks[s](); left = 0
                while extra and gap > 3 and extra[0][1] <= left:
                    f, cst = extra.pop(0); f(); left -= cst
            if ph == 3 and pending: pending.pop(0)
        return extra
    def I(t):
        op = t.split()[0]
        return (lambda: e(t), 8 if op.startswith(TRANS) else (2 if op.startswith("s_") else 4))
    def consts():
        def sel():
            e(f"s_cmp_lt_u32 s{sCOL}, 4")
            e(f"s_cselect_b32 s{sT1}, {hexf(28**-0.5*LOG2E)}, 1.0")
            e(f"v_mul_f32 v{vSc}, s{sT1}, v{vSc}")
        return [(lambda: a.vm_wait("kld"), 0), I(f"v_rsq_f32 v{vSc}, v{vK}"),
                I(f"v_mul_f32 v{vC1}, {hexf(-LOG2E)}, v{vSc}"), (sel, 8)]
    def silu4(Gt, U, t, p):
        L = []
        for k in range(4): L.append(I(f"v_mul_f32 v{t+k}, v{vC1}, v{Gt+k}"))
        for k in range(4):
            L.append(I(f"v_exp_f32 v{t+k}, v{t+k}"))
            L.append(I(f"v_mul_f32 v{Gt+k}, v{Gt+k}, v{U+k}"))
        for k in range(4): L.append(I(f"v_fma_f32 v{t+k}, v{t+k}, v{vK}, v{vK}"))
        for k in range(4): L.append(I(f"v_rcp_f32 v{t+k}, v{t+k}"))
        for k in range(4): L.append(I(f"v_mul_f32 v{Gt+k}, v{Gt+k}, v{t+k}"))
        for k in range(2): L.append(I(f"v_cvt_pk_bf16_f32 v{p+k}, v{Gt+2*k}, v{Gt+2*k+1}"))
        return L
    def store(r, soff, off):
        if opt.get("x_nost"): return (lambda: None, 8)
        return (lambda: a.vm_op(f"buffer_store_dwordx4 v[{r}:{r+3}], v{vSt}, {S(rWS)}, s{soff} offen offset:{off}{ST}", "st"), 8)
    def epiF(acc, soff):
        Gt, U = acc, acc + 16
        L = []
        for q in range(4):
            L += silu4(Gt + 4*q, U + 4*q, T0 + (q % 2) * 4, U + (q // 2) * 8 + (q % 2) * 2)
            if q % 2 == 1: L.append(store(U + (q // 2) * 8, soff, (q // 2) * 1024))
        return L
    def epiQKV(acc, isv):
        L = []
        P = T0 + 8
        for q in range(4):
            for k in range(4): L.append(I(f"v_mul_f32 v{acc+4*q+k}, v{vSc}, v{acc+4*q+k}"))
            for k in range(2): L.append(I(f"v_cvt_pk_bf16_f32 v{P+2*q+k}, v{acc+4*q+2*k}, v{acc+4*q+2*k+1}"))
            if q == 1 and not isv: L.append(store(P, sQKoff, 0))
        L.append(I(f"v_cndmask_b32 v{P+6}, v{vP6}, v{P+6}, vcc"))
        L.append(I(f"v_cndmask_b32 v{P+7}, v{vP7}, v{P+7}, vcc"))
        if not isv: L.append(store(P + 4, sQKoff, 1024))
        else:
            for q in range(4):
                if q: L.append(I(f"v_xor_b32 v{vV4}, {16*q}, v{vV1}"))
                L.append((lambda q=q: a.ds_op(f"ds_write_b64 v{vV4 if q else vV1}, v[{P+2*q}:{P+2*q+1}]", "vw"), 4))
            L += [(lambda: None, 8)] * 2
            L.append((lambda: a.ds_wait("vw"), 0))
            for q in range(4):
                L.append((lambda q=q: a.ds_op(f"ds_read_b64_tr_b16 v[{acc+2*q}:{acc+2*q+1}], v{vV3 if q % 2 else vV2} offset:{512*q}", "vr"), 4))
            L += [(lambda: None, 8)] * 2
            L.append((lambda: a.ds_wait("vr"), 0))
            L.append(store(acc, sQKoff, 0))
            L.append(store(acc + 4, sQKoff, 1024))
        L.append(I(f"s_add_u32 s{sQKoff}, s{sQKoff}, {64*2048}"))
        return L
    B1, B2 = opt.get("b1", 12), opt.get("b2", 12)
    if opt.get("yprio"):
        e(f"s_cmp_lt_u32 s{sW}, 4")
        e(f"s_cbranch_scc1 L_yp")
        e(f"s_setprio 1")
        a.label("L_yp")
    xread(4)
    for f in wreads(0) + wreads(1): f()
    if opt.get("wpf", 1) == 2:
        e(f"s_cmp_ge_u32 s{sW}, 4")
        e(f"s_cbranch_scc1 L_wp")
        a.skip_begin(); wpf(); a.skip_end()
        a.label("L_wp")
    a.vm_op(f"buffer_store_dword v{T0}, v{vStat}, {S(rWS)}, s{sStat} offen", "stat")
    a.vm_op(f"buffer_store_dword v{T0+1}, v{T0+2}, {S(rWS)}, s{sStat} offen", "stat")
    assert not kloop(0, deferred(), 16)
    sp.stamp("r0")
    e(f"s_cmp_lt_u32 s{sCOL}, 8")
    e(f"s_cbranch_scc1 L_pqk")
    e(f"s_cmp_lt_u32 s{sCOL}, 12")
    e(f"s_cbranch_scc1 L_pv")
    saved = (list(a.vm), list(a.lg), list(tw_state), dma_next[0], list(a.hist), list(window), [list(p) for p in pending], sp.n)
    ends = []
    for nm, ex in (("f", lambda: epiF(AA, sQKoff)), ("L_pqk", lambda: epiQKV(AA, False) + epiQKV(AA + 16, False)),
                   ("L_pv", lambda: epiQKV(AA, True) + epiQKV(AA + 16, True))):
        if nm != "f": a.label(nm)
        a.vm, a.lg = list(saved[0]), list(saved[1]); tw_state[:] = saved[2]; dma_next[0] = saved[3]; a.hist = list(saved[4])
        window[:] = saved[5]; pending[:] = [list(p) for p in saved[6]]; sp.set(saved[7])
        sigq[0] = nm != "f"
        nst0 = [0]
        exl = consts() + ex()
        if nm != "f":
            exl.append((lambda: nst0.__setitem__(0, 1), 0))
            _pb = period_barrier
        rest = kloop(1, exl, {"f": B1, "L_pqk": opt.get("b1q", 24), "L_pv": opt.get("b1v", 24)}[nm], hooks={(VEND + 1) * 4 - 2 - 28 - 1: (lambda: None) if nm == "f" else (lambda: (_ for _ in ()).throw(AssertionError("qkv epilogue too late")) if not nst0[0] else None)})
        for f, c in rest: f()
        ends.append(([t for t in a.vm if t != "st"], list(a.lg), list(tw_state), dma_next[0], list(window), [list(p) for p in pending]))
        if nm != "L_pv": e("s_branch L_r2")
    assert ends[0][1:] == ends[1][1:] == ends[2][1:], ends
    a.vm = min((x[0] for x in ends), key=len)
    assert all(x[0][len(x[0])-len(a.vm):] == a.vm for x in ends)
    a.label("L_r2")
    e("s_nop 1")
    sp.stamp("r1"); sp.stamp("r1", lvl=5, nowait=True)
    K0, Q, KV, O, Sx, P, T = 16, 24, 56, 128, 192, 224, 240
    ATT_LDS, WO_LDS = 49152, 98304
    sX, sJ = 54, 55
    sHead, sQB, sKV, sRun = 62, 63, 64, 58
    sWq, sTB, sCB, sWo, sLB = 62, 63, 64, 58, 66
    vD, vPoll, vStV = vD0, vDum + 4, vD0
    rW = rA
    rK, rV = rA, rB
    NE = 3
    QX = 147456
    def kvload(i):
        for k in range(4):
            r = KV + 16 * i + 4 * k
            a.vm_op(f"buffer_load_dwordx4 v[{r}:{r+3}], v{vSt}, {S(rK if k < 2 else rV)}, s{sRun} offen offset:{1024*(k%2)}{LD}", f"kv{i}")
        e(f"s_add_u32 s{sRun}, s{sRun}, 2048")
        e(f"s_and_b32 s{sRun}, s{sRun}, 0x1ffff")
    e(f"s_and_b32 s{sX}, s2, 7")
    e(f"s_lshr_b32 s{sJ}, s2, 3")
    check_flag(vDum + 2)
    e(f"s_cmp_lt_u32 s{sW}, 4")
    e(f"s_cbranch_scc1 L_att")
    join = (list(a.vm), list(a.lg), list(a.hist), list(window), sp.n)
    e(f"s_setprio {opt.get('r2prio', 2)}")
    rest = kloop(2, epiF(AB, sHoff), B2)
    sp.stamp("r2")
    for f, c in rest: f()
    for t in range(2):
        for q in range(2):
            for f, c in silu4(AA + 16*t + 4*q, AA + 16*t + 8 + 4*q, T0 + 4*q, T0 + 8 + 4*t + 2*q): f()
        store(T0 + 8 + 4*t, sHoff2, 1024*t)[0]()
    e(f"s_branch L_gemm")
    nst = sp.n
    a.label("L_att")
    a.vm, a.lg, a.hist = list(join[0]), list(join[1]), list(join[2]); sp.set(join[4])
    for c in join[3]: a.vm.extend([f"c{c}", f"c{c}"])
    e(f"s_setprio {opt.get('attprio0', 3)}")
    e(f"s_and_b32 s{sT1}, s{sJ}, 1")
    e(f"s_lshl1_add_u32 s{sHead}, s{sX}, s{sT1}")
    e(f"v_min_u32 v{vPoll}, 2, v{vLane}")
    e(f"v_lshlrev_b32 v{vPoll}, 9, v{vPoll}")
    e(f"s_lshr_b32 s{sT1}, s{sHead}, 2")
    e(f"v_lshl_add_u32 v{vPoll}, s{sT1}, 7, v{vPoll}")
    e(f"s_mov_b32 s{sT3}, {CNT_OFF}")
    a.vm_op(f"buffer_load_dword v{vDum+3}, v{vPoll}, {S(rWS)}, s{sT3} offen sc1", "poll")
    def qload():
        e(f"s_lshl_b32 s{sT1}, s{sHead}, 6")
        e(f"s_lshl2_add_u32 s{sT1}, s{sQB}, s{sT1}")
        e(f"s_add_u32 s{sT1}, s{sT1}, s{sW}")
        e(f"s_lshl_b32 s{sT1}, s{sT1}, 11")
        a.vm_op(f"buffer_load_dwordx4 v[{Q}:{Q+3}], v{vSt}, {S(rWS)}, s{sT1} offen{LD}", "q")
        a.vm_op(f"buffer_load_dwordx4 v[{Q+4}:{Q+7}], v{vSt}, {S(rWS)}, s{sT1} offen offset:1024{LD}", "q")
        kvload(0)
    e(f"s_lshr_b32 s{sQB}, s{sJ}, 1")
    e(f"s_lshl_b32 s{sKV}, s{sHead}, 17")
    e(f"s_add_u32 s{sKV}, s{sKV}, {KV_OFF}")
    e(f"s_lshl_b32 s{sRun}, s{sW}, 15")
    e(f"s_add_u32 s{sRun}, s{sRun}, 2048")
    e(f"s_add_u32 s{rK}, s{pWS}, s{sKV}")
    e(f"s_addc_u32 s{rK+1}, s{pWS+1}, 0")
    e(f"s_mov_b32 s{rK+2}, 0x20000")
    e(f"s_mov_b32 s{rK+3}, 0x20000")
    e(f"s_add_u32 s{rV}, s{rK}, {2 << 20}")
    e(f"s_addc_u32 s{rV+1}, s{rK+1}, 0")
    e(f"s_mov_b32 s{rV+2}, 0x20000")
    e(f"s_mov_b32 s{rV+3}, 0x20000")
    ep = epiF(AB, sHoff)
    n1 = opt.get("ep1", 26)
    a.ds_wait_all()
    for f, c in ep[:n1]: f()
    sp.stamp("ep", lvl=5, nowait=True)
    a.vm_wait("poll")
    sp.stamp("pl", lvl=5, nowait=True)
    e(f"v_cmp_gt_u32 s[74:75], 16, v{vDum+3}")
    e(f"s_cmp_eq_u64 s[74:75], 0")
    e(f"s_cbranch_scc1 L_e2ok")
    sv = (list(a.vm), list(a.hist))
    for f, c in ep[n1:]: f()
    e("s_barrier")
    poll(vPoll, vDum + 3, 16, 1)
    qload(); e("s_waitcnt vmcnt(0)"); e(f"s_branch L_e2j")
    a.label("L_e2ok")
    a.vm, a.hist = sv
    sp.stamp("r2"); sp.stamp("ok", lvl=5, nowait=True)
    qload()
    for f, c in ep[n1:]: f()
    sp.stamp("ep2", lvl=5, nowait=True)
    e("s_barrier")
    a.label("L_e2j")
    kvload(1); kvload(2)
    sFlag, sIt, sOoff = 59, 60, 61
    e(f"s_mov_b32 s{sFlag}, 0")
    e(f"s_lshl2_add_u32 s{sOoff}, s{sQB}, s{sW}")
    e(f"s_lshl4_add_u32 s{sOoff}, s{sOoff}, s{sHead}")
    e(f"s_lshl_b32 s{sOoff}, s{sOoff}, 11")
    e(f"s_add_u32 s{sOoff}, s{sOoff}, {O_OFF}")
    for jj in range(4):
        e(f"s_add_u32 s{sT1}, s{sW}, {jj}")
        e(f"s_and_b32 s{sT1}, s{sT1}, 3")
        e(f"s_lshl_b32 s{sT1}, s{sT1}, 11")
        e(f"s_add_u32 s{sT1}, s{sT1}, {QX}")
        e(f"v_add_u32 v{T+2+jj}, s{sT1}, v{vSt}")
    sp.stamp("pre", lvl=5, nowait=True)
    a.vm_wait("kv0")
    sp.stamp("kv0", lvl=5, nowait=True)
    e(f"v_mfma_f32_32x32x16_bf16 v[{Sx}:{Sx+15}], v[{KV}:{KV+3}], v[{Q}:{Q+3}], 0")
    e(f"v_mfma_f32_32x32x16_bf16 v[{Sx}:{Sx+15}], v[{KV+4}:{KV+7}], v[{Q+4}:{Q+7}], v[{Sx}:{Sx+15}]")
    sp.stamp("qkv")
    def qk(n, half):
        i, j = (n // 4) % 4, n % 4
        d = Sx + 16 * (n % 2); k = KV + 16 * i + 4 * half; q = Q + 8 * j + 4 * half
        c = "0" if half == 0 else f"v[{d}:{d+15}]"
        e(f"v_mfma_f32_32x32x16_bf16 v[{d}:{d+15}], v[{k}:{k+3}], v[{q}:{q+3}], {c}")
    def pv(n, half):
        i, j = (n // 4) % 4, n % 4
        d = O + 16 * j; v = KV + 16 * i + 8 + 4 * half; p = P + 8 * (n % 2) + 4 * half
        e(f"v_mfma_f32_32x32x16_bf16 v[{d}:{d+15}], v[{v}:{v+3}], v[{p}:{p+3}], v[{d}:{d+15}]")
    def sm(n, g):
        s = Sx + 16 * (n % 2) + 4 * g; p = P + 8 * (n % 2) + 2 * g
        for k in range(4): e(f"v_exp_f32 v{s+k}, v{s+k}")
        e(f"v_cvt_pk_bf16_f32 v{p}, v{s}, v{s+1}")
        e(f"v_cvt_pk_bf16_f32 v{p+1}, v{s+2}, v{s+3}")
    M = T + 8
    def patch(jjs, bias):
        U = M + 4
        for jj in jjs: e(f"v_mov_b32 v{U+jj}, v{M+jj}")
        for jj in jjs: e(f"v_permlane32_swap_b32 v{M+jj}, v{U+jj}")
        for jj in jjs: e(f"v_max_f32 v{M+jj}, v{M+jj}, v{U+jj}")
        for jj in jjs: e(f"v_sub_f32 v{M+jj}, {hexf(-bias) if bias else 0}, v{M+jj}")
        for jj in jjs: e(f"v_cvt_pk_bf16_f32 v{U+jj}, v{M+jj}, v{M+jj}")
        for jj in jjs: e(f"v_and_b32 v{U+jj}, 0xffff0000, v{U+jj}")
        for jj in jjs: e(f"v_sub_f32 v{U+jj}, v{M+jj}, v{U+jj}")
        for jj in jjs: e(f"v_cvt_pk_bf16_f32 v{M+jj}, v{M+jj}, v{U+jj}")
        for jj in jjs: e(f"v_cndmask_b32 v{Q+8*jj+6}, v{M+jj}, v{Q+8*jj+6}, vcc")
        for jj in jjs: e(f"v_and_b32 v{M+jj}, 0xffff0000, v{M+jj}")
        for jj in jjs: e(f"v_sub_f32 v{U+jj}, v{U+jj}, v{M+jj}")
        for jj in jjs: e(f"v_cvt_pk_bf16_f32 v{U+jj}, v{U+jj}, 0")
        for jj in jjs: e(f"v_cndmask_b32 v{Q+8*jj+7}, v{U+jj}, v{Q+8*jj+7}, vcc")
    for k in range(4): e(f"v_max3_f32 v{M+4+k}, v{Sx+4*k}, v{Sx+4*k+1}, v{Sx+4*k+2}")
    for k in range(2): e(f"v_max3_f32 v{M+4+2*k}, v{M+4+2*k}, v{M+5+2*k}, v{Sx+8*k+3}")
    e(f"v_max3_f32 v{M}, v{Sx+7}, v{Sx+15}, v{M+4}")
    e(f"v_max_f32 v{M}, v{M}, v{M+6}")
    patch([0], BIAS)
    a.ds_op(f"ds_write_b128 v{T+2}, v[{Q}:{Q+3}]")
    a.ds_op(f"ds_write_b128 v{T+2}, v[{Q+4}:{Q+7}] offset:1024")
    lds_sync(1, 4, T, T + 1, lambda: (qk(0, 0), qk(0, 1)))
    for jj in range(1, 4):
        a.ds_op(f"ds_read_b128 v[{Q+8*jj}:{Q+8*jj+3}], v{T+2+jj}")
        a.ds_op(f"ds_read_b128 v[{Q+8*jj+4}:{Q+8*jj+7}], v{T+2+jj} offset:1024")
    e("s_waitcnt vmcnt(8)")
    last_signals(0, 8, sRB, 12, T, T + 1)
    lds_arrive(2, T, T + 1)
    e(f"s_setprio {opt.get('attprio', 1)}")
    a.vm = []
    sp.stamp("preloop"); sp.stamp("preloop", lvl=5)
    def pv0(n, half):
        i, j = (n // 4) % 4, n % 4
        d = O + 16 * j; v = KV + 16 * i + 8 + 4 * half; p = P + 8 * (n % 2) + 4 * half
        c = "0" if (n < 4 and half == 0) else f"v[{d}:{d+15}]"
        e(f"v_mfma_f32_32x32x16_bf16 v[{d}:{d+15}], v[{v}:{v+3}], v[{p}:{p+3}], {c}")
    def owrite(jj):
        for q in range(4):
            r = O + 16 * jj + 4 * q
            a.ds_op(f"ds_write_b128 v{T+jj}, v[{r}:{r+3}] offset:{(jj-1)*4096 + q*1024}")
    for jj in range(4):
        e(f"s_add_u32 s{sT1}, s{sW}, {jj}")
        e(f"s_and_b32 s{sT1}, s{sT1}, 3")
        e(f"s_mul_i32 s{sT1}, s{sT1}, 12288")
        e(f"s_add_u32 s{sT1}, s{sT1}, {ATT_LDS}")
        e(f"v_add_u32 v{T+jj}, s{sT1}, v{vSt}")
    a.raw(".p2align 6")
    for n in range(64):
        ti, j = divmod(n, 4)
        if j == 3 and ti < 15: e(f"s_waitcnt vmcnt({4 * min(2, 14 - ti)})")
        if n + 1 < 64: qk(n + 1, 0)
        sm(n, 0)
        if n + 1 < 64: qk(n + 1, 1)
        sm(n, 1)
        if n: pv0(n - 1, 0)
        sm(n, 2)
        if n: pv0(n - 1, 1)
        if j == 0 and ti + 3 < 16:
            for k in range(4):
                r = KV + 16 * ((ti + 3) % 4) + 4 * k
                e(f"buffer_load_dwordx4 v[{r}:{r+3}], v{vSt}, {S(rK if k < 2 else rV)}, s{sRun} offen offset:{2048*(ti%2) + 1024*(k%2)}{LD}")
            if ti % 2:
                e(f"s_add_u32 s{sRun}, s{sRun}, 4096")
                e(f"s_and_b32 s{sRun}, s{sRun}, 0x1ffff")
        if n == 60:
            e(f"v_mov_b32 v{T+4}, {SYNC}")
            a.ds_op(f"ds_read_b32 v{T+5}, v{T+4}", "chk")
        if n == 63:
            lds_check(0, 8, T + 4, T + 5)
            owrite(1)
        sm(n, 3)
    pv0(63, 0); pv0(63, 1)
    owrite(2)
    sp.stamp("loop"); sp.stamp("loop", lvl=4)
    a.vm = []
    owrite(3)
    sp.stamp("wr", lvl=4)
    lds_sync(7, 4, T + 4, T + 5)
    sp.stamp("sy", lvl=4)
    for p in range(3):
        for q in range(4):
            r = O + 16 + 16 * p + 4 * q
            a.ds_op(f"ds_read_b128 v[{r}:{r+3}], v{T} offset:{p*4096 + q*1024}", f"p{p}")
    for p in range(3):
        a.ds_wait(f"p{p}")
        for k in range(16): e(f"v_add_f32 v{O+k}, v{O+k}, v{O+16+16*p+k}")
    sp.stamp("rd", lvl=4)
    a.label("L_norm")
    e(f"v_mov_b32 v{T}, v{O+12}")
    e(f"v_mov_b32 v{T+1}, v{O+12}")
    e(f"v_permlane32_swap_b32 v{T}, v{T+1}")
    e(f"v_rcp_f32 v{T}, v{T+1}")
    e(f"v_mov_b32 v{T+2}, 0")
    for k in range(16): e(f"v_mul_f32 v{O+k}, v{O+k}, v{T}")
    for k in range(8): e(f"v_cvt_pk_bf16_f32 v{P+k}, v{O+2*k}, v{O+2*k+1}")
    e(f"v_cndmask_b32 v{P+6}, 0, v{P+6}, vcc")
    e(f"v_cndmask_b32 v{P+7}, 0, v{P+7}, vcc")
    e(f"buffer_store_dwordx4 v[{P}:{P+3}], v{vSt}, {S(rWS)}, s{sOoff} offen{ST}")
    e(f"buffer_store_dwordx4 v[{P+4}:{P+7}], v{vSt}, {S(rWS)}, s{sOoff} offen offset:1024{ST}")
    for k in range(16): e(f"v_fmac_f32 v{T+2}, 0, v{O+k}")
    e(f"v_mov_b32 v{T+3}, {hexf(2.0**-(BIAS+8))}")
    e(f"v_cmp_u_f32 s[66:67], v{T+2}, v{T+2}")
    e(f"v_cmp_lt_f32 s[74:75], v{T+1}, v{T+3}")
    e(f"s_or_b64 s[66:67], s[66:67], s[74:75]")
    e(f"s_cmp_eq_u64 s[66:67], 0")
    e(f"s_cselect_b32 s{sT1}, 1, s{sFlag}")
    e(f"s_cmp_eq_u32 s{sT1}, 0")
    e(f"s_cbranch_scc1 L_slow")
    sp.stamp("chk", lvl=4)
    e(f"s_waitcnt vmcnt(0)")
    sp.stamp("ost"); sp.stamp("ost", lvl=4)
    e(f"s_lshl2_add_u32 s{sT2}, s{sQB}, s{sW}")
    e(f"s_lshr_b32 s{sT3}, s{sHead}, 2")
    e(f"s_lshl2_add_u32 s{sT2}, s{sT2}, s{sT3}")
    signal(sT2, 28, T + 4, T + 5)
    lds_arrive(9, T + 6, T + 7)
    hdiag(0)
    sp.dump(pWS, sW)
    e("s_endpgm")
    a.label("L_slow")
    a.reset_hist()
    e(f"s_waitcnt vmcnt(0)")
    e(f"s_mov_b32 s{sFlag}, 1")
    e(f"s_mov_b32 s{rK+2}, 0x20000")
    e(f"s_mov_b32 s{rV+2}, 0x20000")
    e(f"v_cndmask_b32 v{Q+6}, 0, v{Q+6}, vcc")
    e(f"v_cndmask_b32 v{Q+7}, 0, v{Q+7}, vcc")
    e(f"v_mov_b32 v{M}, 0xff800000")
    e(f"s_mov_b32 s{sRun}, 0")
    e(f"s_mov_b32 s{sIt}, 64")
    a.label("L_s1")
    start = len(a.lines)
    e(f"buffer_load_dwordx4 v[{KV}:{KV+3}], v{vSt}, {S(rK)}, s{sRun} offen{LD}")
    e(f"buffer_load_dwordx4 v[{KV+4}:{KV+7}], v{vSt}, {S(rK)}, s{sRun} offen offset:1024{LD}")
    e("s_waitcnt vmcnt(0)")
    e(f"v_mfma_f32_32x32x16_bf16 v[{Sx}:{Sx+15}], v[{KV}:{KV+3}], v[{Q}:{Q+3}], 0")
    e(f"v_mfma_f32_32x32x16_bf16 v[{Sx}:{Sx+15}], v[{KV+4}:{KV+7}], v[{Q+4}:{Q+7}], v[{Sx}:{Sx+15}]")
    for k in range(8): e(f"v_max3_f32 v{M}, v{M}, v{Sx+2*k}, v{Sx+2*k+1}")
    e(f"s_add_u32 s{sRun}, s{sRun}, 2048")
    e(f"s_sub_u32 s{sIt}, s{sIt}, 1")
    e(f"s_cmp_lg_u32 s{sIt}, 0")
    e("s_cbranch_scc1 L_s1")
    check_loop(a.lines[start:])
    patch([0], 0.0)
    for r in range(16): e(f"v_mov_b32 v{O+r}, 0")
    e(f"s_mov_b32 s{sRun}, 0")
    e(f"s_mov_b32 s{sIt}, 64")
    a.label("L_s2")
    start = len(a.lines)
    for k in range(4):
        e(f"buffer_load_dwordx4 v[{KV+4*k}:{KV+4*k+3}], v{vSt}, {S(rK if k < 2 else rV)}, s{sRun} offen offset:{1024*(k%2)}{LD}")
    e("s_waitcnt vmcnt(0)")
    qk(0, 0); qk(0, 1)
    for g in range(4): sm(0, g)
    pv(0, 0); pv(0, 1)
    e(f"s_add_u32 s{sRun}, s{sRun}, 2048")
    e(f"s_sub_u32 s{sIt}, s{sIt}, 1")
    e(f"s_cmp_lg_u32 s{sIt}, 0")
    e("s_nop 11")
    e("s_cbranch_scc1 L_s2")
    check_loop(a.lines[start:])
    e("s_branch L_norm")
    a.label("L_gemm")
    a.reset_hist(); a.vm = []; a.lg = []; sp.set(nst)
    ACCG, HR, WFR, T, WO_F, XF, GF = 16, 80, 136, 152, 160, 224, 136
    OF = HR
    GF = 240
    vA0, vA1, vIO, vCt = 4, 5, 6, 7
    sH0, sH1, sI0 = 59, 60, 61
    DP = opt.get("gdepth", 5)
    PACE = opt.get("pace", 4)
    def pace():
        nonlocal PACE
        if PACE and len(a.vm) > PACE:
            e(f"s_waitcnt vmcnt({PACE})"); a.vm = a.vm[-PACE:]
    e(f"s_setprio 2")
    e(f"s_waitcnt vmcnt(0)")
    last_signals(0, 8, sRB, 12, T, T + 1)
    e(f"s_cmp_ge_u32 s{sJ}, 28")
    e(f"s_cbranch_scc1 L_end")
    e(f"s_setprio {opt.get('gprio0', 2)}")
    lds_sync(3, 4, T, T + 1)
    srd(a, rW, pWO, WO_BYTES)
    e(f"s_sub_u32 s{sWq}, s{sW}, 4")
    e(f"s_mul_i32 s{sT1}, s{sJ}, 37")
    e(f"s_lshr_b32 s{sT1}, s{sT1}, 8")
    e(f"s_mul_i32 s{sT2}, s{sT1}, 7")
    e(f"s_sub_u32 s{sCB}, s{sJ}, s{sT2}")
    e(f"s_lshl2_add_u32 s{sTB}, s{sX}, s{sT1}")
    e(f"s_lshl_b32 s{sCB}, s{sCB}, 7")
    e(f"s_mul_i32 s{sLB}, s{sWq}, 12288")
    dma_voff(a, vLane, vD, T, T + 1)
    e(f"v_and_b32 v{T}, 31, v{vLane}")
    e(f"v_mul_u32_u24 v{T}, 896, v{T}")
    e(f"v_lshrrev_b32 v{T+1}, 5, v{vLane}")
    e(f"v_lshl_add_u32 v{vIO}, v{T+1}, 3, v{T}")
    e(f"s_and_b32 s{sT1}, s{sWq}, 1")
    e(f"s_lshl1_add_u32 s{sT3}, s{sTB}, s{sT1}")
    e(f"s_mul_i32 s{sI0}, s{sT3}, {32*896}")
    e(f"s_add_u32 s{sI0}, s{sI0}, s{sCB}")
    e(f"s_lshr_b32 s{sT2}, s{sWq}, 1")
    e(f"s_lshl_b32 s{sT2}, s{sT2}, 6")
    e(f"s_add_u32 s{sI0}, s{sI0}, s{sT2}")
    def issue_w(s):
        st = s % 6
        e(f"s_add_u32 m0, s{sLB}, {st*2048}")
        e(f"s_add_u32 s{sT1}, s{sWo}, {8*896}")
        a.vm_op(f"buffer_load_dwordx4 v{vD}, {S(rB)}, s{sWo} offen lds", f"s{s}")
        e(f"s_add_u32 m0, s{sLB}, {st*2048+1024}")
        e(f"s_add_u32 s{sWo}, s{sWo}, {16*896}")
        a.vm_op(f"buffer_load_dwordx4 v{vD}, {S(rB)}, s{sT1} offen lds", f"s{s}")
    srd(a, rB, pW2, W2_BYTES)
    e(f"s_mul_i32 s{sWo}, s{sWq}, {448*896}")
    e(f"s_add_u32 s{sWo}, s{sWo}, s{sCB}")
    for s in range(6): issue_w(s); pace()
    e(f"s_mul_i32 s{sH0}, s{sT3}, 112")
    e(f"s_xor_b32 s{sT3}, s{sT3}, 1")
    e(f"s_mul_i32 s{sH1}, s{sT3}, 112")
    e(f"s_mul_i32 s{sT1}, s{sWq}, 28")
    e(f"s_add_u32 s{sT1}, s{sT1}, {H_OFF >> 10}")
    e(f"s_add_u32 s{sH0}, s{sH0}, s{sT1}")
    e(f"s_add_u32 s{sH1}, s{sH1}, s{sT1}")
    e(f"s_lshl_b32 s{sH0}, s{sH0}, 10")
    e(f"s_lshl_b32 s{sH1}, s{sH1}, 10")
    e(f"s_xor_b32 s{sT2}, s{sT2}, s{sLB}")
    tr_addr(a, vLane, vA0, vA1, T, T + 1, T + 2, sT2, xor=True)
    def wr(s, d0, off, wait=True):
        if wait: a.vm_wait(f"s{s}")
        for ct in range(2):
            d = d0 + ct * 4
            ad = vA0 if ct == 0 else vA1
            a.ds_op(f"ds_read_b64_tr_b16 v[{d}:{d+1}], v{ad} offset:{off}", f"w{s}")
            a.ds_op(f"ds_read_b64_tr_b16 v[{d+2}:{d+3}], v{ad} offset:{off+1024}", f"w{s}")
    e(f"s_lshr_b32 s{sT1}, s{sTB}, 1")
    e(f"s_lshl_b32 s{sT1}, s{sT1}, 7")
    e(f"s_add_u32 s{sT1}, s{sT1}, {12*128}")
    e(f"v_mov_b32 v{vCt}, s{sT1}")
    def issue_h(s):
        st = s % 6
        off = (s % 4) * 1024
        a.vm_op(f"buffer_load_dwordx4 v[{HR+8*st}:{HR+8*st+3}], v{vSt}, {S(rWS)}, s{sH0} offen offset:{off}{LD}", f"s{s}")
        a.vm_op(f"buffer_load_dwordx4 v[{HR+8*st+4}:{HR+8*st+7}], v{vSt}, {S(rWS)}, s{sH1} offen offset:{off}{LD}", f"s{s}")
        if s % 4 == 3:
            e(f"s_add_u32 s{sH0}, s{sH0}, 4096")
            e(f"s_add_u32 s{sH1}, s{sH1}, 4096")
    e(f"s_cmp_lg_u32 s{sWq}, 0")
    e(f"s_cbranch_scc1 L_hw")
    poll(vCt, T + 1, 16, opt.get("hsleep", 4))
    lds_arrive(8, T, T + 1)
    a.label("L_hw")
    lds_spin(2, 4, T, T + 1, 3)
    lds_spin(8, 1, T, T + 1, 3)
    e(f"s_waitcnt vmcnt(0)")
    sp.stamp("hrdy")
    for s in range(DP): issue_h(s)
    e(f"s_setprio {opt.get('gprio', 0)}")
    def mm(s, w, h):
        for ct in range(2):
            for tt in range(2):
                d = ACCG + (2*ct+tt) * 16
                c = "0" if s == 0 else f"v[{d}:{d+15}]"
                e(f"v_mfma_f32_32x32x16_bf16 v[{d}:{d+15}], v[{w+4*ct}:{w+4*ct+3}], v[{h+4*tt}:{h+4*tt+3}], {c}")
    wr(0, WFR, 0)
    XG = 144
    late = []
    def wo_first():
        e(f"s_mul_i32 s{sH0}, s{sWq}, 15360")
        e(f"s_mul_i32 s{sWo}, s{sWq}, {112*896}")
        e(f"s_add_u32 s{sWo}, s{sWo}, s{sCB}")
    def wo_dma(i):
        if i == 0: wo_first()
        e(f"s_add_u32 m0, s{sH0}, {WO_LDS + i*1024}")
        if i: e(f"s_add_u32 s{sWo}, s{sWo}, {8*896}")
        a.vm_op(f"buffer_load_dwordx4 v{vD}, {S(rW)}, s{sWo} offen lds", "wo")
    XG = XF + 8
    for i in range(15): late.append(lambda i=i: wo_dma(i))
    for q in range(4):
        late.append(lambda q=q: a.vm_op(f"buffer_load_dwordx2 v[{XG+2*q}:{XG+2*q+1}], v{vIO}, {S(rX)}, s{sI0} offen offset:{16*q}", "xg"))
    TOP = opt.get("gtop", 0)
    for s in range(28):
        if TOP and s > 0:
            if s + 1 < 28: a.vm_wait(f"s{s+1}")
            if 6 <= s + DP - 1 < 28: issue_w(s + DP - 1)
            if s + DP - 1 < 28: issue_h(s + DP - 1)
        if s + 1 < 28: wr(s + 1, WFR + ((s + 1) % 2) * 8, ((s + 1) % 6) * 2048)
        a.ds_wait(f"w{s}")
        if not opt.get("x_nogm") or s == 0: mm(s, WFR + (s % 2) * 8, HR + 8 * (s % 6))
        if opt.get("x_nogl") or TOP: continue
        if 6 <= s + DP < 28: issue_w(s + DP)
        if s + DP < 28: issue_h(s + DP)
        else:
            for _ in range(4):
                if late: late.pop(0)()
    while late: late.pop(0)()
    sp.stamp("w2")
    e(f"s_setprio {opt.get('gprio3', 0)}")
    def exchange(k):
        e(f"v_add_u32 v{T}, s{sLB}, v{vSt}")
        for sl in range(1, 4):
            for q in range(4):
                r = ACCG + 16 * sl + 4 * q
                a.ds_op(f"ds_write_b128 v{T}, v[{r}:{r+3}] offset:{(sl-1)*4096 + q*1024}")
            e(f"s_xor_b32 s{sT1}, s{sWq}, {sl}")
            e(f"s_mul_i32 s{sT1}, s{sT1}, 12288")
            e(f"v_add_u32 v{T+2+sl}, s{sT1}, v{vSt}")
        if k == 6: sp.stamp("wr", lvl=4)
        lds_sync(k, 4, T + 1, T + 2)
        if k == 6: sp.stamp("sy", lvl=4)
        for p in range(3):
            for q in range(4):
                r = ACCG + 16 + 16 * p + 4 * q
                a.ds_op(f"ds_read_b128 v[{r}:{r+3}], v{T+3+p} offset:{p*4096 + q*1024}", f"p{p}")
        for p in range(3):
            a.ds_wait(f"p{p}")
            for kk in range(16): e(f"v_add_f32 v{ACCG+kk}, v{ACCG+kk}, v{ACCG+16+16*p+kk}")
    exchange(4)
    U = ACCG + 16
    for k in range(16): e(f"v_mul_f32 v{U+k}, {hexf(-LOG2E)}, v{ACCG+k}")
    for k in range(16): e(f"v_exp_f32 v{U+k}, v{U+k}")
    for k in range(16): e(f"v_add_f32 v{U+k}, 1.0, v{U+k}")
    for k in range(16): e(f"v_rcp_f32 v{U+k}, v{U+k}")
    for k in range(16): e(f"v_mul_f32 v{GF+k}, v{ACCG+k}, v{U+k}")
    e(f"s_mul_i32 s{sT2}, s{sWq}, 15360 - 12288")
    e(f"s_add_u32 s{sT2}, s{sT2}, {WO_LDS}")
    e(f"v_add_u32 v{vA0}, s{sT2}, v{vA0}")
    e(f"v_add_u32 v{vA1}, s{sT2}, v{vA1}")
    a.vm_wait("xg")
    for s in range(8):
        wr(100 + s, WO_F + 8 * s, (28 * (s // 2) + 16 * (s % 2)) * 128, wait=False)
    for k in range(8):
        if k < 7:
            e(f"v_lshlrev_b32 v{XF+2*k}, 16, v{XG+k}")
            e(f"v_and_b32 v{XF+2*k+1}, 0xffff0000, v{XG+k}")
        else:
            e(f"v_lshlrev_b32 v{XF+14}, 16, v{XG+7}")
            e(f"v_and_b32 v{XF+15}, 0xffff0000, v{XG+7}")
    a.ds_wait_all()
    lds_sync(5, 4, T + 1, T + 2)
    srd(a, rW3, pOUT, X_BYTES)
    e(f"s_and_b32 s{sT1}, s{sWq}, 1")
    e(f"s_lshl1_add_u32 s{sT1}, s{sTB}, s{sT1}")
    e(f"s_lshl_b32 s{sH0}, s{sT1}, 15")
    e(f"s_lshl_b32 s{sT1}, s{sWq}, 13")
    e(f"s_add_u32 s{sH0}, s{sH0}, s{sT1}")
    e(f"s_add_u32 s{sH0}, s{sH0}, {O_OFF}")
    e(f"s_xor_b32 s{sH1}, s{sH0}, 32768")
    e(f"v_min_u32 v{T}, 1, v{vLane}")
    e(f"v_lshlrev_b32 v{T}, 2, v{T}")
    e(f"s_lshl3_add_u32 s{sT1}, s{sTB}, s{sWq}")
    e(f"s_add_u32 s{sT1}, s{sT1}, 28")
    e(f"v_add_lshl_u32 v{vCt}, v{T}, s{sT1}, 7")
    e(f"v_lshrrev_b32 v{T}, 5, v{vLane}")
    e(f"v_lshl_add_u32 v{vIO}, v{T}, 3, v{vIO}")
    sp.stamp("grdy")
    lds_spin(9, 4, T, T + 1, 3)
    e(f"s_setprio 2")
    poll(vCt, T + 1, 4, opt.get("osleep", 1))
    sp.stamp("ordy"); sp.stamp("ordy", lvl=4)
    for s in range(8):
        if s == 4:
            e(f"s_add_u32 s{sH0}, s{sH0}, 4096")
            e(f"s_add_u32 s{sH1}, s{sH1}, 4096")
        a.vm_op(f"buffer_load_dwordx4 v[{OF+8*s}:{OF+8*s+3}], v{vSt}, {S(rWS)}, s{sH0} offen offset:{(s%4)*1024}{LD}", f"o{s}")
        a.vm_op(f"buffer_load_dwordx4 v[{OF+8*s+4}:{OF+8*s+7}], v{vSt}, {S(rWS)}, s{sH1} offen offset:{(s%4)*1024}{LD}", f"o{s}")
    sp.stamp("oiss", lvl=4, nowait=True)
    for s in range(8):
        a.vm_wait(f"o{s}")
        if s in (0, 7): sp.stamp("o", lvl=4, nowait=True)
        mm(s, WO_F + 8 * s, OF + 8 * s)
    exchange(6)
    sp.stamp("ex", lvl=4)
    for k in range(16): e(f"v_fma_f32 v{ACCG+k}, v{ACCG+k}, v{GF+k}, v{XF+k}")
    for k in range(8): e(f"v_cvt_pk_bf16_f32 v{U+k}, v{ACCG+2*k}, v{ACCG+2*k+1}")
    for pr in range(2):
        e(f"v_permlane32_swap_b32 v{U+4*pr}, v{U+4*pr+2}")
        e(f"v_permlane32_swap_b32 v{U+4*pr+1}, v{U+4*pr+3}")
    e(f"buffer_store_dwordx4 v[{U}:{U+3}], v{vIO}, {S(rW3)}, s{sI0} offen{opt.get('ost', '')}")
    e(f"buffer_store_dwordx4 v[{U+4}:{U+7}], v{vIO}, {S(rW3)}, s{sI0} offen offset:32{opt.get('ost', '')}")
    hdiag(1)
    if opt.get("padg"):
        e("v_mov_b32 v0, 0")
        e(f"global_load_dword v0, v0, s[{pDBG}:{pDBG+1}] offset:4 sc1")
        e("s_waitcnt vmcnt(0)")
        e("v_readfirstlane_b32 s76, v0")
        e("s_not_b32 s76, s76")
    if opt.get("pad"):
        a.label("L_pad")
        e("s_memrealtime s[80:81]")
        e("s_waitcnt lgkmcnt(0)")
        e("s_sub_u32 s80, s80, s76")
        e(f"s_cmp_lt_u32 s80, {opt['pad']}")
        e("s_cbranch_scc1 L_pad")
    sp.stamp("end"); sp.stamp("end", lvl=4)
    if sp.on == 4: e("s_waitcnt vmcnt(0)")
    sp.stamp("drain", lvl=4)
    sp.dump(pWS, sW)
    a.label("L_end")
    e("s_endpgm")
    return kd(NAME, 256)

if __name__ == "__main__":
    opt = json.loads(sys.argv[2]) if len(sys.argv) > 2 else {}
    a = Asm()
    a.raw("; one workgroup per CU; workgroups hand data over through d_ws (write-through stores + counters)")
    a.raw("; @launch grid=(256,1,1) block=(512,1,1) lds=163840")
    a.raw('.amdgcn_target "amdgcn-amd-amdhsa--gfx950"')
    a.raw(".text")
    k = gen(a, opt)
    a.raw("L_code_end:")
    a.raw(".fill 64, 4, 0xbf800000")
    a.raw("    s_endpgm")
    a.raw('.section .rodata,"a"')
    a.raw(k)
    open(sys.argv[1], "w").write(a.text())
    print("nops inserted:", a.nops, "lines:", len(a.lines))
```

```python
import sys, json
from common import *
from gemm64 import *
BIAS = 32.0
NAME = "recurrent_scan__softmax_full_mha__glu_gated_swiglu__prompt_kernel"

def gen(a, opt):
    ST = opt.get("st", " sc1")
    LD = " sc1"
    NPH = opt.get("nph", 2)
    kernel_head(a, NAME)
    e = a.e
    uid = [0]
    def lab(p):
        uid[0] += 1; return f"L_{p}{uid[0]}"
    pX, pWQ, pWO, pW1, pW3, pW2, pOUT, pDBG, pWS = 4, 6, 8, 12, 14, 16, 18, 20, 22
    rX, rW1, rW3, rA, rB, rWS = 24, 28, 32, 36, 40, 44
    S = lambda r: f"s[{r}:{r+3}]"
    sW, sTT, sG, sRB, sCOL, sTTG = 48, 49, 50, 51, 52, 53
    sSO = [[54, 55], [56, 56], [57, 57]]
    sP64, sM0, sCurA, sCurB, sOnes, sLo, sHi, sHoff, sQKoff, sQKstep = 58, 59, 60, 61, 62, 63, 64, 65, 66, 67
    sT1, sT2, sT3, sStat, sPh, sHoff2 = 68, 69, 70, 71, 72, 73
    X0, AA, AB, WF, T0 = 16, 128, 160, 192, 216
    vLane, vSt, vD0, vD1, vD2B = 1, 2, 3, 4, 250
    vTB = [[5, 6], [7, 8], [9, 243]]
    vTW = [10, 11]
    vXR = [12, 13, 14, 15]
    vK, vC1, vSc, vP6, vP7, vFlag, vV3, vV4 = 232, 233, 234, 236, 237, 238, 239, 235
    vXW = [240, 241]; vStat = 242; vNM = 243; vAcc = [244, 245, 246, 247]; vV1, vV2 = 248, 249
    vDum = 251
    RAW = 128
    SCR = 7 * 16384
    SYNC = 163840 - 256
    e("s_cmp_ge_u32 s2, 256")
    e("s_cbranch_scc1 L_end")
    sp = Stamper(a, opt.get("stamp"), 0)
    sp.stamp("rt", True); sp.stamp("start")
    if opt.get("hdiag") or opt.get("pad"): e("s_memrealtime s[76:77]"); e("s_memtime s[78:79]")
    e("s_load_dwordx16 s[4:19], s[0:1], 0")
    e("s_load_dwordx4 s[20:23], s[0:1], 64")
    RL = 3
    sWR, sXa, sXb, sGS = sStat, sOnes, sLo, sHi
    e(f"v_lshrrev_b32 v22, 6, v0")
    e(f"v_and_b32 v{vLane}, 63, v0")
    e(f"v_readfirstlane_b32 s{sW}, v22")
    e(f"s_and_b32 s{sT1}, s2, 1")
    e(f"s_bfe_u32 s{sT2}, s2, 0x30003")
    e(f"s_lshl3_add_u32 s{sRB}, s{sT1}, s{sT2}")
    e(f"s_bfe_u32 s{sT1}, s2, 0x20001")
    e(f"s_lshr_b32 s{sT2}, s2, 6")
    e(f"s_lshl2_add_u32 s{sCOL}, s{sT1}, s{sT2}")
    e(f"v_bfe_u32 v22, v0, 3, 3")
    e(f"v_and_b32 v23, 7, v0")
    e(f"s_lshl_b32 s{sT1}, s{sT2}, 2")
    e(f"s_and_b32 s{sWR}, s{sT1}, 4")
    e(f"s_xor_b32 s{sWR}, s{sWR}, s{sW}")
    e(f"s_and_b32 s{sGS}, s{sT1}, 8")
    e(f"s_lshl3_add_u32 s{sT1}, s{sRB}, s{sWR}")
    e(f"s_lshl4_add_u32 s{sT2}, s{sT1}, s{sGS}")
    e(f"s_xor_b32 s{sT1}, s{sT2}, 8")
    e(f"s_mulk_i32 s{sT2}, 896")
    e(f"s_mulk_i32 s{sT1}, 896")
    e(f"v_mul_u32_u24 v24, 896, v22")
    e(f"v_lshl_add_u32 v24, v23, 4, v24")
    e(f"s_mov_b32 s{rX+2}, {hex(X_BYTES)}")
    e(f"s_mov_b32 s{rX+3}, 0x20000")
    e(f"s_cmp_ge_u32 s{sW}, 4")
    e("s_waitcnt lgkmcnt(0)")
    e(f"s_mov_b64 s[{rX}:{rX+1}], s[{pX}:{pX+1}]")
    def xloads(lo, hi, sa, sb):
        for k in range(lo, hi):
            gi, i = divmod(k, 7)
            r = RAW + k * 4
            e(f"buffer_load_dwordx4 v[{r}:{r+3}], v24, {S(rX)}, s{sa if gi == 0 else sb} offen offset:{i*128}{opt.get('xnt', '')}")
    def touch():
        sh = opt.get("touchsh", 21)
        e(f"v_min_u32 v25, {(WS_USED >> sh) - 1}, v{vLane}")
        e(f"v_lshlrev_b32 v25, {sh}, v25")
        e(f"global_load_dword v{vDum+1}, v25, s[{pWS}:{pWS+1}]")
        e(f"v_mov_b32 v25, 0")
        for p in (pW1, pW3, pWQ, pW2, pWO, pOUT, pDBG):
            e(f"global_load_dword v{vDum+1}, v25, s[{p}:{p+1}]")
    XE = opt.get("xe", 10)
    e(f"s_cbranch_scc1 L_x0")
    a.skip_begin(); xloads(0, XE, sT2, sT1)
    e(f"s_branch L_x1")
    a.label("L_x0")
    e(f"s_getpc_b64 s[74:75]")
    a.label("L_pc")
    e(f"s_add_u32 s74, s74, {NAME}-L_pc")
    e(f"s_addc_u32 s75, s75, -1")
    e(f"s_lshr_b32 s3, s2, 3")
    e(f"s_lshl_b32 s3, s3, 7")
    e(f"v_and_b32 v20, 255, v0")
    e(f"v_lshl_add_u32 v20, v20, 12, s3")
    e(f"v_min_u32 v{vDum}, L_code_end-{NAME}-4, v20")
    e(f"global_load_dword v{vDum}, v{vDum}, s[74:75]")
    if opt.get("touch") == 1: touch()
    a.skip_end()
    a.label("L_x1")
    sp.stamp("xiss", lvl=3)
    e(f"s_mov_b32 s{sXa}, s{sT2}")
    e(f"s_mov_b32 s{sXb}, s{sT1}")
    def srd2(d, base, nbytes):
        e(f"s_mov_b64 s[{d}:{d+1}], s[{base}:{base+1}]")
        e(f"s_mov_b32 s{d+2}, {hex(nbytes)}")
        e(f"s_mov_b32 s{d+3}, 0x20000")
    srd2(rWS, pWS, WS_USED)
    e(f"s_or_b32 s{sT3}, s2, s{sW}")
    e(f"s_cbranch_scc1 L_noinit")
    a.skip_begin()
    e(f"v_lshlrev_b32 v25, 7, v{vLane}")
    e(f"v_mov_b32 v26, 0")
    e(f"s_mov_b32 s3, {CNT_OFF}")
    for q in range(5):
        if q: e(f"s_add_u32 s3, s3, 8192")
        e(f"buffer_store_dword v26, v25, {S(rWS)}, s3 offen sc1")
    a.skip_end()
    a.label("L_noinit")
    if opt.get("padg"):
        e("s_cmp_ge_u32 s2, 8")
        e("s_cbranch_scc1 L_pg")
        e(f"s_cmp_lg_u32 s{sW}, 7")
        e("s_cbranch_scc1 L_pg")
        e("s_not_b32 s80, s76")
        e("v_mov_b32 v25, 0"); e("v_mov_b32 v26, s80")
        e(f"global_atomic_umax v25, v26, s[{pDBG}:{pDBG+1}] offset:4 sc1")
        a.label("L_pg")
    e(f"s_and_b32 s{sTT}, s{sW}, 3")
    e(f"s_lshr_b32 s{sG}, s{sW}, 2")
    e(f"s_lshl_b32 s{sM0}, s{sW}, 10")
    e(f"s_lshl_b32 s{sPh}, s{sG}, 1")
    sTc0a, sTc0b = sCurA, sCurB
    e(f"s_cmp_ge_u32 s{sCOL}, 12")
    e(f"s_cbranch_scc1 L_r0f")
    srd2(rA, pWQ, WQ_BYTES)
    e(f"s_mov_b64 s[{rB}:{rB+1}], s[{pWQ}:{pWQ+1}]")
    e(f"s_and_b32 s{sT2}, s{sCOL}, 3")
    e(f"s_mul_i32 s{sSO[0][0]}, s{sCOL}, 224")
    e(f"s_cmp_eq_u32 s{sT2}, 3")
    e(f"s_cselect_b32 s{sT3}, 32, 0")
    e(f"s_sub_u32 s{sSO[0][0]}, s{sSO[0][0]}, s{sT3}")
    e(f"s_add_u32 s{sSO[0][1]}, s{sSO[0][0]}, 128")
    e(f"s_mul_i32 s{sTc0a}, s{sG}, 112")
    e(f"s_add_u32 s{sTc0a}, s{sTc0a}, s{sT3}")
    e(f"s_add_u32 s{sTc0b}, s{sTc0a}, 56")
    e(f"s_movk_i32 s{sP64}, 2688")
    e(f"s_branch L_r0j")
    a.label("L_r0f")
    srd2(rA, pW1, W1_BYTES)
    e(f"s_mov_b64 s[{rB}:{rB+1}], s[{pW3}:{pW3+1}]")
    e(f"s_add_u32 s{sT1}, s{sCOL}, 12")
    e(f"s_lshl_b32 s{sSO[0][0]}, s{sT1}, 7")
    e(f"s_mov_b32 s{sSO[0][1]}, s{sSO[0][0]}")
    e(f"s_lshl_b32 s{sTc0a}, s{sG}, 6")
    e(f"s_add_u32 s{sTc0b}, s{sTc0a}, 128")
    e(f"s_movk_i32 s{sP64}, 3584")
    a.label("L_r0j")
    a.reset_hist()
    e(f"s_mov_b32 s{rB+2}, s{rA+2}")
    e(f"s_mov_b32 s{rB+3}, 0x20000")
    e(f"s_and_b32 s{sT3}, s{sRB}, 7")
    if opt.get("wpf0", 1):
        e(f"s_cmp_{'lt' if opt.get('wpf0', 2) == 1 else 'ge'}_u32 s{sW}, 4")
        e(f"s_cbranch_scc1 L_w0")
        a.skip_begin()
        e(f"s_mul_i32 s{sT2}, s{sTT}, 48")
        e(f"s_add_u32 s{sT2}, s{sT2}, s{sT3}")
        e(f"v_min_u32 v30, 5, v{vLane}")
        e(f"v_lshl_add_u32 v30, v30, 3, s{sT2}")
        e(f"v_mul_lo_u32 v30, v30, s{sP64}")
        e(f"buffer_load_dword v{vDum+1}, v30, {S(rA)}, s{sSO[0][0]} offen{opt.get('pnt', '')}")
        e(f"buffer_load_dword v{vDum+1}, v30, {S(rB)}, s{sSO[0][1]} offen{opt.get('pnt', '')}")
        a.skip_end()
        a.label("L_w0")
    e(f"v_lshrrev_b32 v25, 2, v{vLane}")
    e(f"v_and_b32 v25, 4, v25")
    e(f"v_xor_b32 v25, v25, v23")
    e(f"v_lshl_add_u32 v26, s{sW}, 3, v22")
    e(f"v_mul_lo_u32 v{vD0}, v26, s{sP64}")
    e(f"v_lshl_add_u32 v{vD0}, v25, 4, v{vD0}")
    e(f"v_mul_u32_u24 v{vD1}, 3584, v26")
    e(f"v_lshl_add_u32 v{vD1}, v25, 4, v{vD1}")
    e(f"s_lshl_b32 s{sT1}, s{sP64}, 5")
    e(f"v_subrev_u32 v32, s{sT1}, v{vD0}")
    vRow, vSwz, vCol = vV1, vV2, vV3
    e(f"v_lshrrev_b32 v26, 5, v{vLane}")
    e(f"v_bfe_u32 v27, v{vLane}, 2, 2")
    e(f"v_lshl_add_u32 v27, v26, 3, v27")
    e(f"v_lshlrev_b32 v{vRow}, 7, v27")
    e(f"v_and_b32 v28, 8, v{vLane}")
    e(f"v_lshlrev_b32 v{vSwz}, 3, v28")
    e(f"v_and_b32 v29, 3, v{vLane}")
    e(f"v_and_b32 v30, 16, v{vLane}")
    e(f"v_lshlrev_b32 v30, 1, v30")
    e(f"v_lshl_add_u32 v{vCol}, v29, 3, v30")
    def traddr(d, stc, t0, t1):
        return [f"v_add_u32 v{t0}, s{stc}, v{vCol}", f"v_and_b32 v{t1}, 127, v{t0}", f"v_xor_b32 v{t1}, v{t1}, v{vSwz}",
                f"v_and_b32 v{t0}, 128, v{t0}", f"v_lshl_add_u32 v{t0}, v{t0}, 6, v{t1}", f"v_add_u32 v{d}, v{t0}, v{vRow}"]
    for t in traddr(vTB[0][0], sTc0a, 30, 31) + traddr(vTB[0][1], sTc0b, 30, 31): e(t)
    e(f"s_and_b32 s{sT1}, s{sWR}, 1")
    e(f"s_lshl4_add_u32 s{sT1}, s{sT1}, s{sGS}")
    e(f"v_add_u32 v30, s{sT1}, v22")
    e(f"v_xor_b32 v30, v30, v23")
    e(f"v_lshlrev_b32 v30, 4, v30")
    e(f"v_lshrrev_b32 v31, 1, v23")
    e(f"v_lshl_add_u32 v30, v31, 12, v30")
    e(f"v_and_b32 v31, 1, v23")
    e(f"v_lshl_add_u32 v30, v31, 9, v30")
    e(f"s_lshr_b32 s{sT1}, s{sWR}, 1")
    e(f"v_lshl_add_u32 v{vXW[0]}, s{sT1}, 10, v30")
    e(f"v_add_u32 v{vXW[1]}, 0x10000, v{vXW[0]}")
    e(f"v_and_b32 v30, 31, v{vLane}")
    e(f"v_xor_b32 v30, v30, v26")
    e(f"v_lshlrev_b32 v30, 4, v30")
    e(f"v_lshl_add_u32 v30, v26, 9, v30")
    e(f"v_lshl_add_u32 v{vXR[0]}, s{sTT}, 10, v30")
    for q in range(1, 4):
        e(f"v_xor_b32 v{vXR[q]}, {q*4096 + q*32}, v{vXR[0]}")
    e(f"s_lshl4_add_u32 s{sT1}, s{sWR}, s{sGS}")
    e(f"v_add_lshl_u32 v{vStat}, v22, s{sT1}, 2")
    e(f"s_mul_i32 s{sT2}, s{sTT}, 112")
    e(f"s_add_u32 s{sT1}, s{sT3}, s{sT2}")
    e(f"v_min_u32 v30, 13, v{vLane}")
    e(f"v_lshl_add_u32 v30, v30, 3, s{sT1}")
    e(f"v_mul_u32_u24 v{vDum+3}, 3584, v30")
    e(f"s_lshl_b32 s{sT2}, s{sTT}, 6")
    e(f"s_add_u32 s{sT1}, s{sT3}, s{sT2}")
    e(f"s_add_u32 s{sT1}, s{sT1}, 192")
    e(f"v_min_u32 v31, 7, v{vLane}")
    e(f"v_lshl_add_u32 v31, v31, 3, s{sT1}")
    e(f"v_mul_lo_u32 v{vDum+2}, v31, s{sP64}")
    e(f"s_lshl_b32 s{sP64}, s{sP64}, 6")
    srd2(rW1, pW1, W1_BYTES)
    srd2(rW3, pW3, W1_BYTES)
    e(f"s_lshl_b32 s{sSO[1][0]}, s{sCOL}, 7")
    e(f"s_lshr_b32 s{sT1}, s{sCOL}, 1")
    e(f"s_add_u32 s{sT1}, s{sT1}, 16")
    e(f"s_lshl_b32 s{sSO[2][0]}, s{sT1}, 7")
    e(f"s_cmp_lt_u32 s{sW}, 4")
    e(f"s_cbranch_scc1 L_x2")
    a.skip_begin(); xloads(0, XE, sXa, sXb); a.skip_end()
    a.label("L_x2")
    xloads(XE, 14, sXa, sXb)
    e(f"s_lshl_b32 s{sStat}, s2, 9")
    e(f"s_add_u32 s{sStat}, s{sStat}, {ST_OFF}")
    e(f"s_mov_b32 s{sOnes}, 0x3f803f80")
    e(f"s_movk_i32 s{sLo}, 0x3f80")
    e(f"s_mov_b32 s{sHi}, 1.0")
    def slot(c):
        if c < 3: return 7 + c
        if c < 10: return c - 3
        if c == 20: return 7
        return slot(c - 9)
    dma_next = [3]
    def dma(c, track=True):
        r, cc = divmod(c, 7)
        if cc == 0:
            e(f"s_mov_b32 s{sCurA}, s{sSO[r][0]}")
            if r == 0: e(f"s_mov_b32 s{sCurB}, s{sSO[r][1]}")
        va, vb = [(vD0, vD0), (vD1, vD1), (vD1, vD2B)][r]
        sa, sb = (rA, rB) if r == 0 else (rW1, rW3)
        inc = f"s{sP64}" if r == 0 else f"{64*3584}"
        e(f"s_add_u32 m0, s{sM0}, {slot(c)*16384}")
        if cc: e(f"s_add_u32 s{sCurA}, s{sCurA}, {inc}")
        e(f"buffer_load_dwordx4 v{va}, {S(sa)}, s{sCurA} offen lds")
        e(f"s_add_u32 m0, s{sM0}, {slot(c)*16384+8192}")
        if cc and r == 0: e(f"s_add_u32 s{sCurB}, s{sCurB}, {inc}")
        e(f"buffer_load_dwordx4 v{vb}, {S(sb)}, s{sCurB if r == 0 else sCurA} offen lds")
        if track: a.vm += [f"c{c}", f"c{c}"]
    for q in range(8): e(f"v_mov_b32 v{T0+8+q}, 0")
    e(f"s_cmp_lt_u32 s{sW}, 4")
    e(f"s_cbranch_scc1 L_lnA")
    e(f"s_waitcnt vmcnt(0)")
    def dma4(c):
        dma(c, track=False)
        e(f"s_add_u32 m0, s{sM0}, {slot(c)*16384 - 4096}")
        e(f"buffer_load_dwordx4 v32, {S(rA)}, s{sCurA} offen lds")
        e(f"s_add_u32 m0, s{sM0}, {slot(c)*16384 + 8192 - 4096}")
        e(f"buffer_load_dwordx4 v32, {S(rB)}, s{sCurB} offen lds")
        a.vm += [f"c{c}"] * 4
    C2 = opt.get("c2pos", 1)
    for c in range(3 if C2 == 0 else 2): dma4(c)
    e(f"s_branch L_lnB")
    a.label("L_lnA")
    e(f"s_lshl1_add_u32 s{sCurA}, s{sP64}, s{sSO[0][0]}")
    e(f"s_lshl1_add_u32 s{sCurB}, s{sP64}, s{sSO[0][1]}")
    e(f"s_waitcnt vmcnt(0)")
    a.label("L_lnB")
    a.reset_hist()
    sp.stamp("x0"); sp.stamp("x0", lvl=3)
    AC = T0 + 8
    def reduce2(d0, d1):
        for g in range(2): e(f"v_add_f32 v{AC+4*g}, v{AC+4*g}, v{AC+4*g+1}")
        for g in range(2): e(f"v_add_f32 v{AC+4*g+2}, v{AC+4*g+2}, v{AC+4*g+3}")
        for g, d in enumerate((d0, d1)): e(f"v_add_f32 v{d}, v{AC+4*g}, v{AC+4*g+2}")
        for m in ("quad_perm:[1,0,3,2]", "quad_perm:[2,3,0,1]", "row_half_mirror"):
            for d in (d0, d1): e(f"v_add_f32_dpp v{d}, v{d}, v{d} {m} row_mask:0xf bank_mask:0xf")
    for i in range(28):
        for g in range(2): e(f"v_dot2c_f32_bf16 v{AC+4*g+i%4}, s{sOnes}, v{RAW+g*28+i}")
    reduce2(vAcc[0], vAcc[1])
    for q in range(8): e(f"v_mov_b32 v{AC+q}, 0")
    for g in range(2): e(f"v_mul_f32 v{vAcc[g]}, {hexf(-1.0/448)}, v{vAcc[g]}")
    if C2 == 1:
        e(f"s_cmp_lt_u32 s{sW}, 4")
        e(f"s_cbranch_scc1 L_c2")
        a.skip_begin(); dma4(2); a.skip_end()
        a.label("L_c2")
    sp.stamp("pre", lvl=3)
    pend = None
    for gi in range(2):
        for i in range(7):
            r = RAW + gi * 28 + i * 4
            for k in range(4):
                e(f"v_dot2_f32_bf16 v{T0+2*k}, v{r+k}, s{sLo}, v{vAcc[gi]}")
                e(f"v_dot2_f32_bf16 v{T0+2*k+1}, v{r+k}, s{sHi}, v{vAcc[gi]}")
            if pend: pend()
            for k in range(4):
                e(f"v_cvt_pk_bf16_f32 v{r+k}, v{T0+2*k}, v{T0+2*k+1}")
            def pend(r=r, gi=gi, i=i):
                off = i * 16384
                a.ds_op(f"ds_write_b128 v{vXW[off >> 16]}, v[{r}:{r+3}] offset:{off & 0xffff}", "xw")
                if i == 6 and gi == 0:
                    e(f"v_xor_b32 v{vXW[0]}, 128, v{vXW[0]}")
                    e(f"v_xor_b32 v{vXW[1]}, 128, v{vXW[1]}")
    pend()
    if C2 == 2:
        e(f"s_cmp_lt_u32 s{sW}, 4")
        e(f"s_cbranch_scc1 L_c2")
        a.skip_begin(); dma4(2); a.skip_end()
        a.label("L_c2")
    sp.stamp("post", lvl=3)
    for i in range(28):
        for g in range(2): e(f"v_dot2c_f32_bf16 v{AC+4*g+i%4}, v{RAW+g*28+i}, v{RAW+g*28+i}")
    e(f"v_mov_b32 v{T0}, {hexf(1e-5)}")
    e(f"v_mov_b32 v{T0+1}, {hexf(1e-5)}")
    e(f"v_xor_b32 v{T0+2}, 32, v{vStat}")
    reduce2(vAcc[0], vAcc[1])
    for g in range(2): e(f"v_fmac_f32 v{T0+g}, {hexf(1.0/448)}, v{vAcc[g]}")
    def wpf():
        e(f"buffer_load_dword v{vDum+1}, v{vDum+2}, {S(rA)}, s{sSO[0][0]} offen{opt.get('pnt', '')}")
        e(f"buffer_load_dword v{vDum+1}, v{vDum+2}, {S(rB)}, s{sSO[0][1]} offen{opt.get('pnt', '')}")
        for r in (1, 2):
            e(f"buffer_load_dword v{vDum+1}, v{vDum+3}, {S(rW1)}, s{sSO[r][0]} offen{opt.get('pnt', '')}")
            e(f"buffer_load_dword v{vDum+1}, v{vDum+3}, {S(rW3)}, s{sSO[r][0]} offen{opt.get('pnt', '')}")
        if opt.get("w2pf", 3) == 3:
            e(f"s_lshl2_add_u32 s{sT1}, s2, s{sW}")
            e(f"s_mul_i32 s{sT2}, s{sT1}, {13*128}")
            e(f"s_lshl_b32 s{sT1}, s{sT1}, 9")
            e(f"v_min_u32 v{vDum+2}, 12, v{vLane}")
            e(f"v_lshl_add_u32 v{vDum+2}, v{vDum+2}, 7, s{sT2}")
            e(f"v_min_u32 v{vDum+2}, {W2_BYTES-4}, v{vDum+2}")
            e(f"v_min_u32 v{vDum+3}, 3, v{vLane}")
            e(f"v_lshl_add_u32 v{vDum+3}, v{vDum+3}, 7, s{sT1}")
            e(f"v_min_u32 v{vDum+3}, {WO_BYTES-4}, v{vDum+3}")
            e(f"global_load_dword v{vDum+1}, v{vDum+2}, s[{pW2}:{pW2+1}]{opt.get('p2nt', '')}")
            e(f"global_load_dword v{vDum+1}, v{vDum+3}, s[{pWO}:{pWO+1}]")
    e(f"s_cmp_ge_u32 s{sW}, 4")
    e(f"s_cbranch_scc1 L_lnD")
    a.skip_begin()
    e(f"s_or_b32 s{sT3}, s2, s{sW}")
    e(f"s_cbranch_scc1 L_noflag")
    e(f"v_mov_b32 v25, 0")
    e(f"v_mov_b32 v26, 1")
    e(f"global_store_dword v25, v26, s[{pDBG}:{pDBG+1}] sc1")
    a.label("L_noflag")
    if opt.get("touch") == 2: touch()
    if opt.get("wpf", 1) == 1: wpf()
    e(f"s_branch L_lnE")
    a.skip_end()
    a.label("L_lnD")
    sp.stamp("ln", lvl=3, nowait=True)
    a.vm_wait("c1")
    a.label("L_lnE")
    a.ds_wait_all()
    sp.stamp("ln")
    sp.stamp("c1", lvl=3)
    e("s_barrier")
    sp.stamp("b1"); sp.stamp("b1", lvl=3)
    def deferred():
        t0, t1, t2 = AB, AB + 1, AB + 2
        G = lambda *ins: (lambda: [e(x) for x in ins], sum(2 if x.startswith("s_") else 4 for x in ins))
        L = []
        L.append(G(f"v_xor_b32 v{vD2B}, 32, v{vD1}", f"v_lshlrev_b32 v{vSt}, 4, v{vLane}", f"s_mov_b32 vcc_lo, -1", f"s_mov_b32 vcc_hi, 0"))
        L.append(G(f"s_lshl2_add_u32 s{sTTG}, s{sRB}, s{sTT}", f"s_lshl_b32 s{sHoff}, s{sG}, 6"))
        L += [G(x) for x in traddr(vTB[1][0], sHoff, t0, t1)]
        L.append(G(f"v_add_u32 v{vTB[1][1]}, 8192, v{vTB[1][0]}"))
        L.append(G(f"s_and_b32 s{sHoff}, s{sCOL}, 1", f"s_lshl_b32 s{sHoff2}, s{sHoff}, 1", f"s_lshl_b32 s{sHoff}, s{sHoff2}, 5",
                   f"v_xor_b32 v{t0}, s{sHoff}, v{vCol}"))
        L.append(G(f"v_xor_b32 v{t0}, v{t0}, v{vSwz}", f"v_and_b32 v{t1}, 16, v{vLane}"))
        L.append(G(f"v_lshl_add_u32 v{t0}, v{t1}, 9, v{t0}", f"v_add_u32 v{vTB[2][0]}, v{t0}, v{vRow}", f"v_xor_b32 v{vTB[2][1]}, 32, v{vTB[2][0]}"))
        L.append(G(f"s_mul_i32 s{sHoff}, s{sTTG}, 112", f"s_add_u32 s{sHoff2}, s{sHoff2}, s{sHoff}", f"s_lshr_b32 s{sQKoff}, s{sSO[2][0]}, 5",
                   f"s_add_u32 s{sHoff2}, s{sHoff2}, s{sQKoff}", f"s_lshl_b32 s{sHoff2}, s{sHoff2}, 10", f"s_add_u32 s{sHoff2}, s{sHoff2}, {H_OFF}"))
        L.append(G(f"s_lshl1_add_u32 s{sHoff}, s{sG}, s{sHoff}", f"s_lshl2_add_u32 s{sHoff}, s{sCOL}, s{sHoff}", f"s_lshl_b32 s{sHoff}, s{sHoff}, 10",
                   f"s_add_u32 s{sHoff}, s{sHoff}, {H_OFF}"))
        L.append(G(f"s_lshl1_add_u32 s{sQKoff}, s{sCOL}, s{sG}", f"s_lshl_b32 s{sQKoff}, s{sQKoff}, 7", f"s_add_u32 s{sQKoff}, s{sQKoff}, s{sTTG}",
                   f"s_lshl_b32 s{sQKoff}, s{sQKoff}, 11", f"s_add_u32 s{sQKstep}, s{sHoff}, {12*4096}", f"s_cmp_ge_u32 s{sCOL}, 12",
                   f"s_cselect_b32 s{sQKoff}, s{sQKstep}, s{sQKoff}"))
        L.append(G(f"s_lshr_b32 s{sQKstep}, s{sCOL}, 2", f"s_cmp_eq_u32 s{sQKstep}, 1", f"s_cselect_b32 s{sOnes}, s{sOnes}, 0", f"s_cselect_b32 s{sHi}, s{sLo}, 0",
                   f"s_cmp_eq_u32 s{sQKstep}, 2", f"s_cselect_b32 s{sOnes}, s{sLo}, s{sOnes}"))
        L.append(G(f"v_mov_b32 v{vP6}, s{sOnes}", f"v_mov_b32 v{vP7}, s{sHi}"))
        L.append(G(f"v_lshrrev_b32 v{t2}, 5, v{vLane}", f"v_bfe_u32 v{t0}, v{vLane}, 2, 2", f"v_lshl_add_u32 v{t0}, v{t2}, 2, v{t0}"))
        L.append(G(f"v_lshrrev_b32 v{t1}, 1, v{t0}", f"v_lshlrev_b32 v{t1}, 3, v{t1}", f"v_xor_b32 v{t1}, v{t1}, v{vCol}"))
        L.append(G(f"s_lshl_b32 s{sQKstep}, s{sW}, 11", f"s_add_u32 s{sQKstep}, s{sQKstep}, {SCR}", f"v_lshl_add_u32 v{t0}, v{t0}, 6, v{t1}",
                   f"v_add_u32 v{vV2}, s{sQKstep}, v{t0}"))
        L.append(G(f"v_xor_b32 v{vV3}, 32, v{vV2}", f"v_bfe_u32 v{t0}, v{vLane}, 1, 3", f"v_xor_b32 v{t0}, v{t0}, v{t2}"))
        L.append(G(f"v_and_b32 v{t1}, 31, v{vLane}", f"v_lshlrev_b32 v{t1}, 6, v{t1}", f"v_lshl_add_u32 v{t0}, v{t0}, 3, v{t1}"))
        L.append(G(f"v_add_u32 v{vV1}, s{sQKstep}, v{t0}"))
        return L
    def hdiag(k):
        if not opt.get("hdiag"): return
        if k == 0: return
        e("s_cmp_ge_u32 s2, 7")
        e("s_cbranch_scc1 L_end")
        e(f"s_cmp_lg_u32 s{sW}, 4")
        e("s_cbranch_scc1 L_end")
        e("s_memrealtime s[80:81]"); e("s_memtime s[82:83]")
        e("s_waitcnt vmcnt(0) lgkmcnt(0)")
        e("s_mov_b64 exec, 1")
        e("s_lshl_b32 s3, s2, 3")
        e("v_mov_b32 v0, s3")
        e("s_sub_u32 s84, s82, s78")
        e("s_sub_u32 s80, s80, s76")
        e("s_and_b32 s76, s76, 0xffff")
        e("s_lshl_b32 s80, s80, 16")
        e("s_or_b32 s76, s76, s80")
        e("v_mov_b32 v2, s76"); e("v_mov_b32 v3, s84")
        e(f"global_store_dword v0, v2, s[{pDBG}:{pDBG+1}] offset:4")
        e(f"global_store_dword v0, v3, s[{pDBG}:{pDBG+1}] offset:8")
    def check_flag(vtmp):
        done = lab("fl")
        e(f"v_readfirstlane_b32 s{sT1}, v{vFlag}")
        e(f"s_cmp_lg_u32 s{sT1}, 0")
        e(f"s_cbranch_scc1 {done}")
        e(f"s_mov_b32 s{sT2}, 0x40000")
        lp = lab("fs"); a.label(lp)
        e(f"v_mov_b32 v{vtmp}, 0")
        e(f"global_load_dword v{vFlag}, v{vtmp}, s[{pDBG}:{pDBG+1}] sc1")
        e(f"s_waitcnt vmcnt(0)")
        e(f"v_readfirstlane_b32 s{sT1}, v{vFlag}")
        e(f"s_sub_u32 s{sT2}, s{sT2}, 1")
        e(f"s_cselect_b32 s{sT1}, 1, s{sT1}")
        e(f"s_cmp_eq_u32 s{sT1}, 0")
        e(f"s_cbranch_scc1 {lp}")
        a.label(done)
    def signal(sIdx, add, va, vb):
        e(f"s_add_u32 s{sT1}, s{sIdx}, {add}")
        e(f"s_lshl_b32 s{sT1}, s{sT1}, 7")
        e(f"s_add_u32 s{sT1}, s{sT1}, {CNT_OFF}")
        e(f"v_mov_b32 v{va}, 0")
        e(f"v_mov_b32 v{vb}, 1")
        e(f"s_mov_b64 exec, 1")
        e(f"buffer_atomic_add v{vb}, v{va}, {S(rWS)}, s{sT1} offen sc1")
        e(f"s_mov_b64 exec, -1")
    def poll(vaddr, vval, target, sleep):
        lp = lab("po"); done = lab("pd")
        e(f"s_mov_b32 s{sT2}, 0x40000")
        e(f"s_mov_b32 s{sT3}, {CNT_OFF}")
        a.label(lp)
        e(f"buffer_load_dword v{vval}, v{vaddr}, {S(rWS)}, s{sT3} offen sc1")
        e(f"s_waitcnt vmcnt(0)")
        e(f"v_cmp_gt_u32 s[74:75], {target}, v{vval}")
        e(f"s_cmp_eq_u64 s[74:75], 0")
        e(f"s_cbranch_scc1 {done}")
        e(f"s_sleep {sleep}")
        e(f"s_sub_u32 s{sT2}, s{sT2}, 1")
        e(f"s_cbranch_scc0 {lp}")
        a.label(done)
        a.vm = []
    def lds_arrive(k, va, vb, rtn=False):
        e(f"v_mov_b32 v{va}, {SYNC + 4*k}")
        e(f"v_mov_b32 v{vb}, 1")
        e(f"s_mov_b64 exec, 1")
        e(f"ds_add_rtn_u32 v{vb}, v{va}, v{vb}" if rtn else f"ds_add_u32 v{va}, v{vb}")
        e(f"s_mov_b64 exec, -1")
    def lds_sync(k, n, va, vb, meanwhile=None):
        a.ds_wait_all()
        lds_arrive(k, va, vb)
        if meanwhile:
            e("s_nop 3"); meanwhile()
        lp = lab("ls")
        e(f"s_mov_b32 s{sT2}, 0x400000")
        a.label(lp)
        e(f"ds_read_b32 v{vb}, v{va}")
        e(f"s_waitcnt lgkmcnt(0)")
        e(f"v_readfirstlane_b32 s{sT1}, v{vb}")
        e(f"s_sub_u32 s{sT2}, s{sT2}, 1")
        e(f"s_cselect_b32 s{sT1}, {n}, s{sT1}")
        e(f"s_cmp_lt_u32 s{sT1}, {n}")
        e(f"s_cbranch_scc1 {lp}")
    def lds_spin(k, n, va, vb, sleep):
        lp = lab("ls"); ok = lab("lk")
        e(f"v_mov_b32 v{va}, {SYNC + 4*k}")
        e(f"s_mov_b32 s{sT2}, 0x100000")
        a.label(lp)
        e(f"ds_read_b32 v{vb}, v{va}")
        e(f"s_waitcnt lgkmcnt(0)")
        e(f"v_readfirstlane_b32 s{sT1}, v{vb}")
        e(f"s_cmp_ge_u32 s{sT1}, {n}")
        e(f"s_cbranch_scc1 {ok}")
        e(f"s_sleep {sleep}")
        e(f"s_sub_u32 s{sT2}, s{sT2}, 1")
        e(f"s_cbranch_scc0 {lp}")
        a.label(ok)
    def lds_check(k, n, va, vb):
        lp = lab("lc"); ok = lab("ld")
        e(f"s_mov_b32 s{sT2}, 0x400000")
        a.label(lp)
        e(f"s_waitcnt lgkmcnt(0)"); a.lg = []
        e(f"v_readfirstlane_b32 s{sT1}, v{vb}")
        e(f"s_cmp_ge_u32 s{sT1}, {n}")
        e(f"s_cbranch_scc1 {ok}")
        a.skip_begin()
        e(f"ds_read_b32 v{vb}, v{va}")
        e(f"s_sub_u32 s{sT2}, s{sT2}, 1")
        e(f"s_cbranch_scc0 {lp}")
        a.skip_end()
        a.label(ok)
    def lds_wait(k, n, va, vb, meanwhile):
        lp = lab("lw"); ok = lab("lo")
        e(f"v_mov_b32 v{va}, {SYNC + 4*k}")
        e(f"ds_read_b32 v{vb}, v{va}")
        meanwhile()
        e(f"s_mov_b32 s{sT2}, 0x400000")
        a.label(lp)
        e(f"s_waitcnt lgkmcnt(0)")
        e(f"v_readfirstlane_b32 s{sT1}, v{vb}")
        e(f"s_cmp_ge_u32 s{sT1}, {n}")
        e(f"s_cbranch_scc1 {ok}")
        e(f"ds_read_b32 v{vb}, v{va}")
        e(f"s_sub_u32 s{sT2}, s{sT2}, 1")
        e(f"s_cbranch_scc0 {lp}")
        a.label(ok)
    def last_signals(k, n, sIdx, add, va, vb):
        lds_arrive(k, va, vb, rtn=True)
        e(f"s_waitcnt lgkmcnt(0)"); a.lg = []
        e(f"v_readfirstlane_b32 s{sT1}, v{vb}")
        sk = lab("ns")
        e(f"s_cmp_lg_u32 s{sT1}, {n-1}")
        e(f"s_cbranch_scc1 {sk}")
        a.skip_begin()
        signal(sIdx, add, va, vb)
        a.skip_end()
        a.label(sk)
    NT = [2, 2, 2]
    ACC = [AA, AB, AA]
    tw_state = [None, None]
    def wreads(G):
        r, s = divmod(G, 28)
        base = slot(G // 4) * 16384 + (s % 4) * 2048
        hi, lo = base >> 16, base & 0xffff
        L = []
        for t in range(NT[r]):
            d = WF + (G % 3) * 8 + t * 4
            def f0(t=t, d=d):
                if tw_state[t] != (r, hi):
                    e(f"v_add_u32 v{vTW[t]}, {hex(hi << 16)}, v{vTB[r][t]}")
                    tw_state[t] = (r, hi)
                a.ds_op(f"ds_read_b64_tr_b16 v[{d}:{d+1}], v{vTW[t]} offset:{lo}", f"w{G}")
            def f1(t=t, d=d):
                a.ds_op(f"ds_read_b64_tr_b16 v[{d+2}:{d+3}], v{vTW[t]} offset:{lo+512}", f"w{G}")
            L += [f0, f1]
        return L
    xr_next = [0]
    def xread(n):
        for _ in range(n):
            s = xr_next[0]
            if s >= 28: return
            xr_next[0] += 1
            if s == 16:
                for q in range(4): e(f"v_add_u32 v{vXR[q]}, 0x10000, v{vXR[q]}")
            off = ((s // 4) * 16384) & 0xffff
            a.ds_op(f"ds_read_b128 v[{X0+4*s}:{X0+4*s+3}], v{vXR[s%4]} offset:{off}", f"x{s}")
    BARS = opt.get("bars", [0, 1, 2, 3, 5, 7, 9, 11, 13, 15])
    PQ = opt.get("pq", 11)
    PZ = opt.get("pz", 13)
    L2P = {int(k): v for k, v in opt.get("l2p", {}).items()}
    VEND = PQ
    window = []; pending = []
    def period_barrier(i):
        for c in window: a.vm.extend([f"c{c}", f"c{c}"])
        assert not pending, pending
        window.clear()
        nxt = min([b for b in BARS if b > i] + [20])
        a.vm_wait(f"c{nxt}")
        assert dma_next[0] > nxt, (i, nxt, dma_next[0])
        if i == 3: a.vm_wait("stat")
        if i == PQ: a.vm_wait("st")
        if i in opt.get("sb", []): sp.stamp("pre", lvl=2, nowait=True)
        e("s_barrier")
        if i in opt.get("sb", []): sp.stamp("post", lvl=2, nowait=True)
        if i == 3:
            e(f"v_and_b32 v{vK}, 31, v{vLane}")
            e(f"v_lshlrev_b32 v{vK}, 2, v{vK}")
            e(f"s_lshl_b32 s{sT1}, s{sTT}, 7")
            e(f"s_add_u32 s{sT1}, s{sT1}, s{sStat}")
            e(f"v_mov_b32 v{vFlag}, 0")
            a.vm_op(f"buffer_load_dword v{vK}, v{vK}, {S(rWS)}, s{sT1} offen sc1", "kld")
            a.vm_op(f"global_load_dword v{vFlag}, v{vFlag}, s[{pDBG}:{pDBG+1}] sc1", "kld")
        if i in L2P:
            for k in L2P[i]:
                sk = lab("pf")
                e(f"s_cmp_lg_u32 s{sW}, {k}")
                e(f"s_cbranch_scc1 {sk}")
                a.skip_begin()
                e(f"s_lshr_b32 s{sT1}, s2, 3")
                nl, ptr, nb = (56, pW2, W2_BYTES) if k < 7 else (98, pWO, WO_BYTES)
                if k < 7:
                    e(f"s_mul_i32 s{sT1}, s{sT1}, {7*56*128}")
                    e(f"s_add_u32 s{sT1}, s{sT1}, {k*56*128}")
                else:
                    e(f"s_mul_i32 s{sT1}, s{sT1}, {98*128}")
                e(f"v_min_u32 v{vDum+2}, {min(nl, 64) - 1 if k < 7 else 48}, v{vLane}")
                e(f"v_lshl_add_u32 v{vDum+2}, v{vDum+2}, 7, s{sT1}")
                e(f"global_load_dword v{vDum+1}, v{vDum+2}, s[{ptr}:{ptr+1}]")
                if k == 7:
                    e(f"v_add_u32 v{vDum+2}, {49*128}, v{vDum+2}")
                    e(f"global_load_dword v{vDum+1}, v{vDum+2}, s[{ptr}:{ptr+1}]")
                a.skip_end()
                a.label(sk)
        if i == PZ:
            e(f"v_lshrrev_b32 v{vDum+2}, 2, v{vSt}")
            e(f"v_add_u32 v{vDum+2}, {SYNC}, v{vDum+2}")
            e(f"v_mov_b32 v{vDum+3}, 0")
            a.ds_op(f"ds_write_b32 v{vDum+2}, v{vDum+3}", "z")
        if i == PQ and sigq[0]:
            sk = lab("q")
            e(f"s_cmp_lg_u32 s{sW}, 0")
            e(f"s_cbranch_scc1 {sk}")
            a.skip_begin()
            check_flag(vDum + 2)
            signal(sCOL, 0, vDum + 2, vDum + 3)
            a.skip_end()
            a.label(sk)
        while dma_next[0] <= 20:
            c = dma_next[0]
            if c < 10:
                sl = slot(c)
                if not all(xr_next[0] > s and a.ds_done(f"x{s}") for s in range(4*sl, 4*sl+4)): break
            elif c == 20:
                if i < 13: break
            elif c - 9 > i - 1: break
            window.append(c); dma_next[0] += 1
        nq = nxt - i
        per = -(-len(window) // nq)
        pending[:] = [window[k*per:(k+1)*per] for k in range(nq)]
    sigq = [False]
    XR = opt.get("xrate", 2)
    def kloop(r, extra, budget, hooks={}):
        extra = list(extra)
        if opt.get("x_noepi"): extra = [x for x in extra if x[1] == 0]
        gap = 0
        for s in range(28):
            G = r * 28 + s
            Gn = G + 2
            rd = wreads(Gn) if Gn < 84 else []
            a.ds_wait(f"w{G}")
            if r == 0: a.ds_wait(f"x{s}")
            ph = Gn % 4
            for t in range(NT[r]):
                d = ACC[r] + 16 * t
                w = WF + (G % 3) * 8 + t * 4
                c = "0" if s == 0 else f"v[{d}:{d+15}]"
                e(f"v_mfma_f32_32x32x16_bf16 v[{d}:{d+15}], v[{w}:{w+3}], v[{X0+4*s}:{X0+4*s+3}], {c}")
                gap += 1
                if t == 0 and Gn < 84 and ph == 0 and (Gn // 4 - 1) in BARS: period_barrier(Gn // 4 - 1)
                n = -(-len(rd) // (NT[r] - t))
                for f in rd[:n]: f()
                rd = rd[n:]
                if r == 0: xread((XR + 1 - t) // 2)
                left = budget
                if t == NT[r] - 1 and pending and pending[0] and ph % 2 == 0:
                    sk = lab("d")
                    e(f"s_cmp_lg_u32 s{sPh}, {ph}")
                    e(f"s_cbranch_scc1 {sk}")
                    a.skip_begin()
                    for c in pending[0]: dma(c, track=False)
                    a.skip_end()
                    a.label(sk)
                    left = opt.get("dmabud", 4)
                if t == NT[r] - 1 and s in hooks: hooks[s](); left = 0
                while extra and gap > 3 and extra[0][1] <= left:
                    f, cst = extra.pop(0); f(); left -= cst
            if ph == 3 and pending: pending.pop(0)
        return extra
    def I(t):
        op = t.split()[0]
        return (lambda: e(t), 8 if op.startswith(TRANS) else (2 if op.startswith("s_") else 4))
    def consts():
        def sel():
            e(f"s_cmp_lt_u32 s{sCOL}, 4")
            e(f"s_cselect_b32 s{sT1}, {hexf(28**-0.5*LOG2E)}, 1.0")
            e(f"v_mul_f32 v{vSc}, s{sT1}, v{vSc}")
        return [(lambda: a.vm_wait("kld"), 0), I(f"v_rsq_f32 v{vSc}, v{vK}"),
                I(f"v_mul_f32 v{vC1}, {hexf(-LOG2E)}, v{vSc}"), (sel, 8)]
    def silu4(Gt, U, t, p):
        L = []
        for k in range(4): L.append(I(f"v_mul_f32 v{t+k}, v{vC1}, v{Gt+k}"))
        for k in range(4):
            L.append(I(f"v_exp_f32 v{t+k}, v{t+k}"))
            L.append(I(f"v_mul_f32 v{Gt+k}, v{Gt+k}, v{U+k}"))
        for k in range(4): L.append(I(f"v_fma_f32 v{t+k}, v{t+k}, v{vK}, v{vK}"))
        for k in range(4): L.append(I(f"v_rcp_f32 v{t+k}, v{t+k}"))
        for k in range(4): L.append(I(f"v_mul_f32 v{Gt+k}, v{Gt+k}, v{t+k}"))
        for k in range(2): L.append(I(f"v_cvt_pk_bf16_f32 v{p+k}, v{Gt+2*k}, v{Gt+2*k+1}"))
        return L
    def store(r, soff, off):
        if opt.get("x_nost"): return (lambda: None, 8)
        return (lambda: a.vm_op(f"buffer_store_dwordx4 v[{r}:{r+3}], v{vSt}, {S(rWS)}, s{soff} offen offset:{off}{ST}", "st"), 8)
    def epiF(acc, soff):
        Gt, U = acc, acc + 16
        L = []
        for q in range(4):
            L += silu4(Gt + 4*q, U + 4*q, T0 + (q % 2) * 4, U + (q // 2) * 8 + (q % 2) * 2)
            if q % 2 == 1: L.append(store(U + (q // 2) * 8, soff, (q // 2) * 1024))
        return L
    def epiQKV(acc, isv):
        L = []
        P = T0 + 8
        for q in range(4):
            for k in range(4): L.append(I(f"v_mul_f32 v{acc+4*q+k}, v{vSc}, v{acc+4*q+k}"))
            for k in range(2): L.append(I(f"v_cvt_pk_bf16_f32 v{P+2*q+k}, v{acc+4*q+2*k}, v{acc+4*q+2*k+1}"))
            if q == 1 and not isv: L.append(store(P, sQKoff, 0))
        L.append(I(f"v_cndmask_b32 v{P+6}, v{vP6}, v{P+6}, vcc"))
        L.append(I(f"v_cndmask_b32 v{P+7}, v{vP7}, v{P+7}, vcc"))
        if not isv: L.append(store(P + 4, sQKoff, 1024))
        else:
            for q in range(4):
                if q: L.append(I(f"v_xor_b32 v{vV4}, {16*q}, v{vV1}"))
                L.append((lambda q=q: a.ds_op(f"ds_write_b64 v{vV4 if q else vV1}, v[{P+2*q}:{P+2*q+1}]", "vw"), 4))
            L += [(lambda: None, 8)] * 2
            L.append((lambda: a.ds_wait("vw"), 0))
            for q in range(4):
                L.append((lambda q=q: a.ds_op(f"ds_read_b64_tr_b16 v[{acc+2*q}:{acc+2*q+1}], v{vV3 if q % 2 else vV2} offset:{512*q}", "vr"), 4))
            L += [(lambda: None, 8)] * 2
            L.append((lambda: a.ds_wait("vr"), 0))
            L.append(store(acc, sQKoff, 0))
            L.append(store(acc + 4, sQKoff, 1024))
        L.append(I(f"s_add_u32 s{sQKoff}, s{sQKoff}, {64*2048}"))
        return L
    B1, B2 = opt.get("b1", 12), opt.get("b2", 12)
    if opt.get("yprio"):
        e(f"s_cmp_lt_u32 s{sW}, 4")
        e(f"s_cbranch_scc1 L_yp")
        e(f"s_setprio 1")
        a.label("L_yp")
    xread(4)
    for f in wreads(0) + wreads(1): f()
    if opt.get("wpf", 1) == 2:
        e(f"s_cmp_ge_u32 s{sW}, 4")
        e(f"s_cbranch_scc1 L_wp")
        a.skip_begin(); wpf(); a.skip_end()
        a.label("L_wp")
    a.vm_op(f"buffer_store_dword v{T0}, v{vStat}, {S(rWS)}, s{sStat} offen", "stat")
    a.vm_op(f"buffer_store_dword v{T0+1}, v{T0+2}, {S(rWS)}, s{sStat} offen", "stat")
    assert not kloop(0, deferred(), 16)
    sp.stamp("r0")
    e(f"s_cmp_lt_u32 s{sCOL}, 8")
    e(f"s_cbranch_scc1 L_pqk")
    e(f"s_cmp_lt_u32 s{sCOL}, 12")
    e(f"s_cbranch_scc1 L_pv")
    saved = (list(a.vm), list(a.lg), list(tw_state), dma_next[0], list(a.hist), list(window), [list(p) for p in pending], sp.n)
    ends = []
    for nm, ex in (("f", lambda: epiF(AA, sQKoff)), ("L_pqk", lambda: epiQKV(AA, False) + epiQKV(AA + 16, False)),
                   ("L_pv", lambda: epiQKV(AA, True) + epiQKV(AA + 16, True))):
        if nm != "f": a.label(nm)
        a.vm, a.lg = list(saved[0]), list(saved[1]); tw_state[:] = saved[2]; dma_next[0] = saved[3]; a.hist = list(saved[4])
        window[:] = saved[5]; pending[:] = [list(p) for p in saved[6]]; sp.set(saved[7])
        sigq[0] = nm != "f"
        nst0 = [0]
        exl = consts() + ex()
        if nm != "f":
            exl.append((lambda: nst0.__setitem__(0, 1), 0))
            _pb = period_barrier
        rest = kloop(1, exl, {"f": B1, "L_pqk": opt.get("b1q", 32), "L_pv": opt.get("b1v", 32)}[nm], hooks={(VEND + 1) * 4 - 2 - 28 - 1: (lambda: None) if nm == "f" else (lambda: (_ for _ in ()).throw(AssertionError("qkv epilogue too late")) if not nst0[0] else None)})
        for f, c in rest: f()
        ends.append(([t for t in a.vm if t != "st"], list(a.lg), list(tw_state), dma_next[0], list(window), [list(p) for p in pending]))
        if nm != "L_pv": e("s_branch L_r2")
    assert ends[0][1:] == ends[1][1:] == ends[2][1:], ends
    a.vm = min((x[0] for x in ends), key=len)
    assert all(x[0][len(x[0])-len(a.vm):] == a.vm for x in ends)
    a.label("L_r2")
    e("s_nop 1")
    sp.stamp("r1"); sp.stamp("r1", lvl=5, nowait=True)
    K0, Q, KV, O, Sx, P, T = 16, 24, 56, 128, 192, 224, 240
    ATT_LDS, WO_LDS = 49152, 98304
    sX, sJ = 54, 55
    sHead, sQB, sKV, sRun = 62, 63, 64, 58
    sWq, sTB, sCB, sWo, sLB = 62, 63, 64, 58, 66
    vD, vPoll, vStV = vD0, vDum + 4, vD0
    rW = rA
    rK, rV = rA, rB
    NE = 3
    QX = 147456
    def kvload(i):
        for k in range(4):
            r = KV + 16 * i + 4 * k
            a.vm_op(f"buffer_load_dwordx4 v[{r}:{r+3}], v{vSt}, {S(rK if k < 2 else rV)}, s{sRun} offen offset:{1024*(k%2)}{LD}", f"kv{i}")
        e(f"s_add_u32 s{sRun}, s{sRun}, 2048")
        e(f"s_and_b32 s{sRun}, s{sRun}, 0x1ffff")
    e(f"s_and_b32 s{sX}, s2, 7")
    e(f"s_lshr_b32 s{sJ}, s2, 3")
    check_flag(vDum + 2)
    e(f"s_cmp_lt_u32 s{sW}, 4")
    e(f"s_cbranch_scc1 L_att")
    join = (list(a.vm), list(a.lg), list(a.hist), list(window), sp.n)
    e(f"s_setprio {opt.get('r2prio', 2)}")
    rest = kloop(2, epiF(AB, sHoff), B2)
    sp.stamp("r2")
    for f, c in rest: f()
    for t in range(2):
        for q in range(2):
            for f, c in silu4(AA + 16*t + 4*q, AA + 16*t + 8 + 4*q, T0 + 4*q, T0 + 8 + 4*t + 2*q): f()
        store(T0 + 8 + 4*t, sHoff2, 1024*t)[0]()
    e(f"s_branch L_gemm")
    nst = sp.n
    a.label("L_att")
    a.vm, a.lg, a.hist = list(join[0]), list(join[1]), list(join[2]); sp.set(join[4])
    for c in join[3]: a.vm.extend([f"c{c}", f"c{c}"])
    e(f"s_setprio {opt.get('attprio0', 3)}")
    e(f"s_and_b32 s{sT1}, s{sJ}, 1")
    e(f"s_lshl1_add_u32 s{sHead}, s{sX}, s{sT1}")
    e(f"v_min_u32 v{vPoll}, 2, v{vLane}")
    e(f"v_lshlrev_b32 v{vPoll}, 9, v{vPoll}")
    e(f"s_lshr_b32 s{sT1}, s{sHead}, 2")
    e(f"v_lshl_add_u32 v{vPoll}, s{sT1}, 7, v{vPoll}")
    e(f"s_mov_b32 s{sT3}, {CNT_OFF}")
    a.vm_op(f"buffer_load_dword v{vDum+3}, v{vPoll}, {S(rWS)}, s{sT3} offen sc1", "poll")
    def qload():
        e(f"s_lshl_b32 s{sT1}, s{sHead}, 6")
        e(f"s_lshl2_add_u32 s{sT1}, s{sQB}, s{sT1}")
        e(f"s_add_u32 s{sT1}, s{sT1}, s{sW}")
        e(f"s_lshl_b32 s{sT1}, s{sT1}, 11")
        a.vm_op(f"buffer_load_dwordx4 v[{Q}:{Q+3}], v{vSt}, {S(rWS)}, s{sT1} offen{LD}", "q")
        a.vm_op(f"buffer_load_dwordx4 v[{Q+4}:{Q+7}], v{vSt}, {S(rWS)}, s{sT1} offen offset:1024{LD}", "q")
        kvload(0)
    e(f"s_lshr_b32 s{sQB}, s{sJ}, 1")
    e(f"s_lshl_b32 s{sKV}, s{sHead}, 17")
    e(f"s_add_u32 s{sKV}, s{sKV}, {KV_OFF}")
    e(f"s_lshl_b32 s{sRun}, s{sW}, 15")
    e(f"s_add_u32 s{sRun}, s{sRun}, 2048")
    e(f"s_add_u32 s{rK}, s{pWS}, s{sKV}")
    e(f"s_addc_u32 s{rK+1}, s{pWS+1}, 0")
    e(f"s_mov_b32 s{rK+2}, 0x20000")
    e(f"s_mov_b32 s{rK+3}, 0x20000")
    e(f"s_add_u32 s{rV}, s{rK}, {2 << 20}")
    e(f"s_addc_u32 s{rV+1}, s{rK+1}, 0")
    e(f"s_mov_b32 s{rV+2}, 0x20000")
    e(f"s_mov_b32 s{rV+3}, 0x20000")
    ep = epiF(AB, sHoff)
    n1 = opt.get("ep1", 26)
    a.ds_wait_all()
    for f, c in ep[:n1]: f()
    sp.stamp("ep", lvl=5, nowait=True)
    a.vm_wait("poll")
    sp.stamp("pl", lvl=5, nowait=True)
    e(f"v_cmp_gt_u32 s[74:75], 16, v{vDum+3}")
    e(f"s_cmp_eq_u64 s[74:75], 0")
    e(f"s_cbranch_scc1 L_e2ok")
    sv = (list(a.vm), list(a.hist))
    for f, c in ep[n1:]: f()
    e("s_barrier")
    poll(vPoll, vDum + 3, 16, 1)
    qload(); e("s_waitcnt vmcnt(0)"); e(f"s_branch L_e2j")
    a.label("L_e2ok")
    a.vm, a.hist = sv
    sp.stamp("r2"); sp.stamp("ok", lvl=5, nowait=True)
    qload()
    for f, c in ep[n1:]: f()
    sp.stamp("ep2", lvl=5, nowait=True)
    e("s_barrier")
    a.label("L_e2j")
    kvload(1); kvload(2)
    sFlag, sIt, sOoff = 59, 60, 61
    e(f"s_mov_b32 s{sFlag}, 0")
    e(f"s_lshl2_add_u32 s{sOoff}, s{sQB}, s{sW}")
    e(f"s_lshl4_add_u32 s{sOoff}, s{sOoff}, s{sHead}")
    e(f"s_lshl_b32 s{sOoff}, s{sOoff}, 11")
    e(f"s_add_u32 s{sOoff}, s{sOoff}, {O_OFF}")
    for jj in range(4):
        e(f"s_add_u32 s{sT1}, s{sW}, {jj}")
        e(f"s_and_b32 s{sT1}, s{sT1}, 3")
        e(f"s_lshl_b32 s{sT1}, s{sT1}, 11")
        e(f"s_add_u32 s{sT1}, s{sT1}, {QX}")
        e(f"v_add_u32 v{T+2+jj}, s{sT1}, v{vSt}")
    sp.stamp("pre", lvl=5, nowait=True)
    a.vm_wait("kv0")
    sp.stamp("kv0", lvl=5, nowait=True)
    e(f"v_mfma_f32_32x32x16_bf16 v[{Sx}:{Sx+15}], v[{KV}:{KV+3}], v[{Q}:{Q+3}], 0")
    e(f"v_mfma_f32_32x32x16_bf16 v[{Sx}:{Sx+15}], v[{KV+4}:{KV+7}], v[{Q+4}:{Q+7}], v[{Sx}:{Sx+15}]")
    sp.stamp("qkv")
    def qk(n, half):
        i, j = (n // 4) % 4, n % 4
        d = Sx + 16 * (n % 2); k = KV + 16 * i + 4 * half; q = Q + 8 * j + 4 * half
        c = "0" if half == 0 else f"v[{d}:{d+15}]"
        e(f"v_mfma_f32_32x32x16_bf16 v[{d}:{d+15}], v[{k}:{k+3}], v[{q}:{q+3}], {c}")
    def pv(n, half):
        i, j = (n // 4) % 4, n % 4
        d = O + 16 * j; v = KV + 16 * i + 8 + 4 * half; p = P + 8 * (n % 2) + 4 * half
        e(f"v_mfma_f32_32x32x16_bf16 v[{d}:{d+15}], v[{v}:{v+3}], v[{p}:{p+3}], v[{d}:{d+15}]")
    def sm(n, g):
        s = Sx + 16 * (n % 2) + 4 * g; p = P + 8 * (n % 2) + 2 * g
        for k in range(4): e(f"v_exp_f32 v{s+k}, v{s+k}")
        e(f"v_cvt_pk_bf16_f32 v{p}, v{s}, v{s+1}")
        e(f"v_cvt_pk_bf16_f32 v{p+1}, v{s+2}, v{s+3}")
    M = T + 8
    def patch(jjs, bias):
        U = M + 4
        for jj in jjs: e(f"v_mov_b32 v{U+jj}, v{M+jj}")
        for jj in jjs: e(f"v_permlane32_swap_b32 v{M+jj}, v{U+jj}")
        for jj in jjs: e(f"v_max_f32 v{M+jj}, v{M+jj}, v{U+jj}")
        for jj in jjs: e(f"v_sub_f32 v{M+jj}, {hexf(-bias) if bias else 0}, v{M+jj}")
        for jj in jjs: e(f"v_cvt_pk_bf16_f32 v{U+jj}, v{M+jj}, v{M+jj}")
        for jj in jjs: e(f"v_and_b32 v{U+jj}, 0xffff0000, v{U+jj}")
        for jj in jjs: e(f"v_sub_f32 v{U+jj}, v{M+jj}, v{U+jj}")
        for jj in jjs: e(f"v_cvt_pk_bf16_f32 v{M+jj}, v{M+jj}, v{U+jj}")
        for jj in jjs: e(f"v_cndmask_b32 v{Q+8*jj+6}, v{M+jj}, v{Q+8*jj+6}, vcc")
        for jj in jjs: e(f"v_and_b32 v{M+jj}, 0xffff0000, v{M+jj}")
        for jj in jjs: e(f"v_sub_f32 v{U+jj}, v{U+jj}, v{M+jj}")
        for jj in jjs: e(f"v_cvt_pk_bf16_f32 v{U+jj}, v{U+jj}, 0")
        for jj in jjs: e(f"v_cndmask_b32 v{Q+8*jj+7}, v{U+jj}, v{Q+8*jj+7}, vcc")
    for k in range(4): e(f"v_max3_f32 v{M+4+k}, v{Sx+4*k}, v{Sx+4*k+1}, v{Sx+4*k+2}")
    for k in range(2): e(f"v_max3_f32 v{M+4+2*k}, v{M+4+2*k}, v{M+5+2*k}, v{Sx+8*k+3}")
    e(f"v_max3_f32 v{M}, v{Sx+7}, v{Sx+15}, v{M+4}")
    e(f"v_max_f32 v{M}, v{M}, v{M+6}")
    patch([0], BIAS)
    a.ds_op(f"ds_write_b128 v{T+2}, v[{Q}:{Q+3}]")
    a.ds_op(f"ds_write_b128 v{T+2}, v[{Q+4}:{Q+7}] offset:1024")
    lds_sync(1, 4, T, T + 1, lambda: (qk(0, 0), qk(0, 1)))
    for jj in range(1, 4):
        a.ds_op(f"ds_read_b128 v[{Q+8*jj}:{Q+8*jj+3}], v{T+2+jj}")
        a.ds_op(f"ds_read_b128 v[{Q+8*jj+4}:{Q+8*jj+7}], v{T+2+jj} offset:1024")
    e("s_waitcnt vmcnt(8)")
    last_signals(0, 8, sRB, 12, T, T + 1)
    lds_arrive(2, T, T + 1)
    e(f"s_setprio {opt.get('attprio', 1)}")
    a.vm = []
    sp.stamp("preloop"); sp.stamp("preloop", lvl=5)
    def pv0(n, half):
        i, j = (n // 4) % 4, n % 4
        d = O + 16 * j; v = KV + 16 * i + 8 + 4 * half; p = P + 8 * (n % 2) + 4 * half
        c = "0" if (n < 4 and half == 0) else f"v[{d}:{d+15}]"
        e(f"v_mfma_f32_32x32x16_bf16 v[{d}:{d+15}], v[{v}:{v+3}], v[{p}:{p+3}], {c}")
    def owrite(jj):
        for q in range(4):
            r = O + 16 * jj + 4 * q
            a.ds_op(f"ds_write_b128 v{T+jj}, v[{r}:{r+3}] offset:{(jj-1)*4096 + q*1024}")
    for jj in range(4):
        e(f"s_add_u32 s{sT1}, s{sW}, {jj}")
        e(f"s_and_b32 s{sT1}, s{sT1}, 3")
        e(f"s_mul_i32 s{sT1}, s{sT1}, 12288")
        e(f"s_add_u32 s{sT1}, s{sT1}, {ATT_LDS}")
        e(f"v_add_u32 v{T+jj}, s{sT1}, v{vSt}")
    a.raw(".p2align 6")
    for n in range(64):
        ti, j = divmod(n, 4)
        if j == 3 and ti < 15: e(f"s_waitcnt vmcnt({4 * min(2, 14 - ti)})")
        if n + 1 < 64: qk(n + 1, 0)
        sm(n, 0)
        if n + 1 < 64: qk(n + 1, 1)
        sm(n, 1)
        if n: pv0(n - 1, 0)
        sm(n, 2)
        if n: pv0(n - 1, 1)
        if j == 0 and ti + 3 < 16:
            for k in range(4):
                r = KV + 16 * ((ti + 3) % 4) + 4 * k
                e(f"buffer_load_dwordx4 v[{r}:{r+3}], v{vSt}, {S(rK if k < 2 else rV)}, s{sRun} offen offset:{2048*(ti%2) + 1024*(k%2)}{LD}")
            if ti % 2:
                e(f"s_add_u32 s{sRun}, s{sRun}, 4096")
                e(f"s_and_b32 s{sRun}, s{sRun}, 0x1ffff")
        if n == 60:
            e(f"v_mov_b32 v{T+4}, {SYNC}")
            a.ds_op(f"ds_read_b32 v{T+5}, v{T+4}", "chk")
        if n == 63:
            lds_check(0, 8, T + 4, T + 5)
            owrite(1)
        sm(n, 3)
    pv0(63, 0); pv0(63, 1)
    owrite(2)
    sp.stamp("loop"); sp.stamp("loop", lvl=4)
    a.vm = []
    owrite(3)
    sp.stamp("wr", lvl=4)
    lds_sync(7, 4, T + 4, T + 5)
    sp.stamp("sy", lvl=4)
    for p in range(3):
        for q in range(4):
            r = O + 16 + 16 * p + 4 * q
            a.ds_op(f"ds_read_b128 v[{r}:{r+3}], v{T} offset:{p*4096 + q*1024}", f"p{p}")
    for p in range(3):
        a.ds_wait(f"p{p}")
        for k in range(16): e(f"v_add_f32 v{O+k}, v{O+k}, v{O+16+16*p+k}")
    sp.stamp("rd", lvl=4)
    a.label("L_norm")
    e(f"v_mov_b32 v{T}, v{O+12}")
    e(f"v_mov_b32 v{T+1}, v{O+12}")
    e(f"v_permlane32_swap_b32 v{T}, v{T+1}")
    e(f"v_rcp_f32 v{T}, v{T+1}")
    e(f"v_mov_b32 v{T+2}, 0")
    for k in range(16): e(f"v_mul_f32 v{O+k}, v{O+k}, v{T}")
    for k in range(8): e(f"v_cvt_pk_bf16_f32 v{P+k}, v{O+2*k}, v{O+2*k+1}")
    e(f"v_cndmask_b32 v{P+6}, 0, v{P+6}, vcc")
    e(f"v_cndmask_b32 v{P+7}, 0, v{P+7}, vcc")
    e(f"buffer_store_dwordx4 v[{P}:{P+3}], v{vSt}, {S(rWS)}, s{sOoff} offen{ST}")
    e(f"buffer_store_dwordx4 v[{P+4}:{P+7}], v{vSt}, {S(rWS)}, s{sOoff} offen offset:1024{ST}")
    for k in range(16): e(f"v_fmac_f32 v{T+2}, 0, v{O+k}")
    e(f"v_mov_b32 v{T+3}, {hexf(2.0**-(BIAS+8))}")
    e(f"v_cmp_u_f32 s[66:67], v{T+2}, v{T+2}")
    e(f"v_cmp_lt_f32 s[74:75], v{T+1}, v{T+3}")
    e(f"s_or_b64 s[66:67], s[66:67], s[74:75]")
    e(f"s_cmp_eq_u64 s[66:67], 0")
    e(f"s_cselect_b32 s{sT1}, 1, s{sFlag}")
    e(f"s_cmp_eq_u32 s{sT1}, 0")
    e(f"s_cbranch_scc1 L_slow")
    sp.stamp("chk", lvl=4)
    e(f"s_waitcnt vmcnt(0)")
    sp.stamp("ost"); sp.stamp("ost", lvl=4)
    e(f"s_lshl2_add_u32 s{sT2}, s{sQB}, s{sW}")
    e(f"s_lshr_b32 s{sT3}, s{sHead}, 2")
    e(f"s_lshl2_add_u32 s{sT2}, s{sT2}, s{sT3}")
    signal(sT2, 28, T + 4, T + 5)
    lds_arrive(9, T + 6, T + 7)
    hdiag(0)
    sp.dump(pWS, sW)
    e("s_endpgm")
    a.label("L_slow")
    a.reset_hist()
    e(f"s_waitcnt vmcnt(0)")
    e(f"s_mov_b32 s{sFlag}, 1")
    e(f"s_mov_b32 s{rK+2}, 0x20000")
    e(f"s_mov_b32 s{rV+2}, 0x20000")
    e(f"v_cndmask_b32 v{Q+6}, 0, v{Q+6}, vcc")
    e(f"v_cndmask_b32 v{Q+7}, 0, v{Q+7}, vcc")
    e(f"v_mov_b32 v{M}, 0xff800000")
    e(f"s_mov_b32 s{sRun}, 0")
    e(f"s_mov_b32 s{sIt}, 64")
    a.label("L_s1")
    start = len(a.lines)
    e(f"buffer_load_dwordx4 v[{KV}:{KV+3}], v{vSt}, {S(rK)}, s{sRun} offen{LD}")
    e(f"buffer_load_dwordx4 v[{KV+4}:{KV+7}], v{vSt}, {S(rK)}, s{sRun} offen offset:1024{LD}")
    e("s_waitcnt vmcnt(0)")
    e(f"v_mfma_f32_32x32x16_bf16 v[{Sx}:{Sx+15}], v[{KV}:{KV+3}], v[{Q}:{Q+3}], 0")
    e(f"v_mfma_f32_32x32x16_bf16 v[{Sx}:{Sx+15}], v[{KV+4}:{KV+7}], v[{Q+4}:{Q+7}], v[{Sx}:{Sx+15}]")
    for k in range(8): e(f"v_max3_f32 v{M}, v{M}, v{Sx+2*k}, v{Sx+2*k+1}")
    e(f"s_add_u32 s{sRun}, s{sRun}, 2048")
    e(f"s_sub_u32 s{sIt}, s{sIt}, 1")
    e(f"s_cmp_lg_u32 s{sIt}, 0")
    e("s_cbranch_scc1 L_s1")
    check_loop(a.lines[start:])
    patch([0], 0.0)
    for r in range(16): e(f"v_mov_b32 v{O+r}, 0")
    e(f"s_mov_b32 s{sRun}, 0")
    e(f"s_mov_b32 s{sIt}, 64")
    a.label("L_s2")
    start = len(a.lines)
    for k in range(4):
        e(f"buffer_load_dwordx4 v[{KV+4*k}:{KV+4*k+3}], v{vSt}, {S(rK if k < 2 else rV)}, s{sRun} offen offset:{1024*(k%2)}{LD}")
    e("s_waitcnt vmcnt(0)")
    qk(0, 0); qk(0, 1)
    for g in range(4): sm(0, g)
    pv(0, 0); pv(0, 1)
    e(f"s_add_u32 s{sRun}, s{sRun}, 2048")
    e(f"s_sub_u32 s{sIt}, s{sIt}, 1")
    e(f"s_cmp_lg_u32 s{sIt}, 0")
    e("s_nop 11")
    e("s_cbranch_scc1 L_s2")
    check_loop(a.lines[start:])
    e("s_branch L_norm")
    a.label("L_gemm")
    a.reset_hist(); a.vm = []; a.lg = []; sp.set(nst)
    ACCG, HR, WFR, T, WO_F, XF, GF = 16, 80, 136, 152, 160, 224, 136
    OF = HR
    GF = 240
    vA0, vA1, vIO, vCt = 4, 5, 6, 7
    sH0, sH1, sI0 = 59, 60, 61
    DP = opt.get("gdepth", 5)
    PACE = opt.get("pace", 4)
    def pace():
        nonlocal PACE
        if PACE and len(a.vm) > PACE:
            e(f"s_waitcnt vmcnt({PACE})"); a.vm = a.vm[-PACE:]
    e(f"s_setprio 2")
    e(f"s_waitcnt vmcnt(0)")
    last_signals(0, 8, sRB, 12, T, T + 1)
    e(f"s_cmp_ge_u32 s{sJ}, 28")
    e(f"s_cbranch_scc1 L_end")
    e(f"s_setprio {opt.get('gprio0', 2)}")
    lds_sync(3, 4, T, T + 1)
    srd(a, rW, pWO, WO_BYTES)
    e(f"s_sub_u32 s{sWq}, s{sW}, 4")
    e(f"s_mul_i32 s{sT1}, s{sJ}, 37")
    e(f"s_lshr_b32 s{sT1}, s{sT1}, 8")
    e(f"s_mul_i32 s{sT2}, s{sT1}, 7")
    e(f"s_sub_u32 s{sCB}, s{sJ}, s{sT2}")
    e(f"s_lshl2_add_u32 s{sTB}, s{sX}, s{sT1}")
    e(f"s_lshl_b32 s{sCB}, s{sCB}, 7")
    e(f"s_mul_i32 s{sLB}, s{sWq}, 12288")
    dma_voff(a, vLane, vD, T, T + 1)
    e(f"v_and_b32 v{T}, 31, v{vLane}")
    e(f"v_mul_u32_u24 v{T}, 896, v{T}")
    e(f"v_lshrrev_b32 v{T+1}, 5, v{vLane}")
    e(f"v_lshl_add_u32 v{vIO}, v{T+1}, 3, v{T}")
    e(f"s_and_b32 s{sT1}, s{sWq}, 1")
    e(f"s_lshl1_add_u32 s{sT3}, s{sTB}, s{sT1}")
    e(f"s_mul_i32 s{sI0}, s{sT3}, {32*896}")
    e(f"s_add_u32 s{sI0}, s{sI0}, s{sCB}")
    e(f"s_lshr_b32 s{sT2}, s{sWq}, 1")
    e(f"s_lshl_b32 s{sT2}, s{sT2}, 6")
    e(f"s_add_u32 s{sI0}, s{sI0}, s{sT2}")
    def issue_w(s):
        st = s % 6
        e(f"s_add_u32 m0, s{sLB}, {st*2048}")
        e(f"s_add_u32 s{sT1}, s{sWo}, {8*896}")
        a.vm_op(f"buffer_load_dwordx4 v{vD}, {S(rB)}, s{sWo} offen lds", f"s{s}")
        e(f"s_add_u32 m0, s{sLB}, {st*2048+1024}")
        e(f"s_add_u32 s{sWo}, s{sWo}, {16*896}")
        a.vm_op(f"buffer_load_dwordx4 v{vD}, {S(rB)}, s{sT1} offen lds", f"s{s}")
    srd(a, rB, pW2, W2_BYTES)
    e(f"s_mul_i32 s{sWo}, s{sWq}, {448*896}")
    e(f"s_add_u32 s{sWo}, s{sWo}, s{sCB}")
    for s in range(6): issue_w(s); pace()
    e(f"s_mul_i32 s{sH0}, s{sT3}, 112")
    e(f"s_xor_b32 s{sT3}, s{sT3}, 1")
    e(f"s_mul_i32 s{sH1}, s{sT3}, 112")
    e(f"s_mul_i32 s{sT1}, s{sWq}, 28")
    e(f"s_add_u32 s{sT1}, s{sT1}, {H_OFF >> 10}")
    e(f"s_add_u32 s{sH0}, s{sH0}, s{sT1}")
    e(f"s_add_u32 s{sH1}, s{sH1}, s{sT1}")
    e(f"s_lshl_b32 s{sH0}, s{sH0}, 10")
    e(f"s_lshl_b32 s{sH1}, s{sH1}, 10")
    e(f"s_xor_b32 s{sT2}, s{sT2}, s{sLB}")
    tr_addr(a, vLane, vA0, vA1, T, T + 1, T + 2, sT2, xor=True)
    def wr(s, d0, off, wait=True):
        if wait: a.vm_wait(f"s{s}")
        for ct in range(2):
            d = d0 + ct * 4
            ad = vA0 if ct == 0 else vA1
            a.ds_op(f"ds_read_b64_tr_b16 v[{d}:{d+1}], v{ad} offset:{off}", f"w{s}")
            a.ds_op(f"ds_read_b64_tr_b16 v[{d+2}:{d+3}], v{ad} offset:{off+1024}", f"w{s}")
    e(f"s_lshr_b32 s{sT1}, s{sTB}, 1")
    e(f"s_lshl_b32 s{sT1}, s{sT1}, 7")
    e(f"s_add_u32 s{sT1}, s{sT1}, {12*128}")
    e(f"v_mov_b32 v{vCt}, s{sT1}")
    def issue_h(s):
        st = s % 6
        off = (s % 4) * 1024
        a.vm_op(f"buffer_load_dwordx4 v[{HR+8*st}:{HR+8*st+3}], v{vSt}, {S(rWS)}, s{sH0} offen offset:{off}{LD}", f"s{s}")
        a.vm_op(f"buffer_load_dwordx4 v[{HR+8*st+4}:{HR+8*st+7}], v{vSt}, {S(rWS)}, s{sH1} offen offset:{off}{LD}", f"s{s}")
        if s % 4 == 3:
            e(f"s_add_u32 s{sH0}, s{sH0}, 4096")
            e(f"s_add_u32 s{sH1}, s{sH1}, 4096")
    e(f"s_cmp_lg_u32 s{sWq}, 0")
    e(f"s_cbranch_scc1 L_hw")
    poll(vCt, T + 1, 16, opt.get("hsleep", 4))
    lds_arrive(8, T, T + 1)
    a.label("L_hw")
    lds_spin(2, 4, T, T + 1, 3)
    lds_spin(8, 1, T, T + 1, 3)
    e(f"s_waitcnt vmcnt(0)")
    sp.stamp("hrdy")
    for s in range(DP): issue_h(s)
    e(f"s_setprio {opt.get('gprio', 0)}")
    def mm(s, w, h):
        for ct in range(2):
            for tt in range(2):
                d = ACCG + (2*ct+tt) * 16
                c = "0" if s == 0 else f"v[{d}:{d+15}]"
                e(f"v_mfma_f32_32x32x16_bf16 v[{d}:{d+15}], v[{w+4*ct}:{w+4*ct+3}], v[{h+4*tt}:{h+4*tt+3}], {c}")
    wr(0, WFR, 0)
    XG = 144
    late = []
    def wo_first():
        e(f"s_mul_i32 s{sH0}, s{sWq}, 15360")
        e(f"s_mul_i32 s{sWo}, s{sWq}, {112*896}")
        e(f"s_add_u32 s{sWo}, s{sWo}, s{sCB}")
    def wo_dma(i):
        if i == 0: wo_first()
        e(f"s_add_u32 m0, s{sH0}, {WO_LDS + i*1024}")
        if i: e(f"s_add_u32 s{sWo}, s{sWo}, {8*896}")
        a.vm_op(f"buffer_load_dwordx4 v{vD}, {S(rW)}, s{sWo} offen lds", "wo")
    XG = XF + 8
    for i in range(15): late.append(lambda i=i: wo_dma(i))
    for q in range(4):
        late.append(lambda q=q: a.vm_op(f"buffer_load_dwordx2 v[{XG+2*q}:{XG+2*q+1}], v{vIO}, {S(rX)}, s{sI0} offen offset:{16*q}", "xg"))
    TOP = opt.get("gtop", 0)
    for s in range(28):
        if TOP and s > 0:
            if s + 1 < 28: a.vm_wait(f"s{s+1}")
            if 6 <= s + DP - 1 < 28: issue_w(s + DP - 1)
            if s + DP - 1 < 28: issue_h(s + DP - 1)
        if s + 1 < 28: wr(s + 1, WFR + ((s + 1) % 2) * 8, ((s + 1) % 6) * 2048)
        a.ds_wait(f"w{s}")
        if not opt.get("x_nogm") or s == 0: mm(s, WFR + (s % 2) * 8, HR + 8 * (s % 6))
        if opt.get("x_nogl") or TOP: continue
        if 6 <= s + DP < 28: issue_w(s + DP)
        if s + DP < 28: issue_h(s + DP)
        else:
            for _ in range(4):
                if late: late.pop(0)()
    while late: late.pop(0)()
    sp.stamp("w2")
    e(f"s_setprio {opt.get('gprio3', 0)}")
    def exchange(k):
        e(f"v_add_u32 v{T}, s{sLB}, v{vSt}")
        for sl in range(1, 4):
            for q in range(4):
                r = ACCG + 16 * sl + 4 * q
                a.ds_op(f"ds_write_b128 v{T}, v[{r}:{r+3}] offset:{(sl-1)*4096 + q*1024}")
            e(f"s_xor_b32 s{sT1}, s{sWq}, {sl}")
            e(f"s_mul_i32 s{sT1}, s{sT1}, 12288")
            e(f"v_add_u32 v{T+2+sl}, s{sT1}, v{vSt}")
        if k == 6: sp.stamp("wr", lvl=4)
        lds_sync(k, 4, T + 1, T + 2)
        if k == 6: sp.stamp("sy", lvl=4)
        for p in range(3):
            for q in range(4):
                r = ACCG + 16 + 16 * p + 4 * q
                a.ds_op(f"ds_read_b128 v[{r}:{r+3}], v{T+3+p} offset:{p*4096 + q*1024}", f"p{p}")
        for p in range(3):
            a.ds_wait(f"p{p}")
            for kk in range(16): e(f"v_add_f32 v{ACCG+kk}, v{ACCG+kk}, v{ACCG+16+16*p+kk}")
    exchange(4)
    U = ACCG + 16
    for k in range(16): e(f"v_mul_f32 v{U+k}, {hexf(-LOG2E)}, v{ACCG+k}")
    for k in range(16): e(f"v_exp_f32 v{U+k}, v{U+k}")
    for k in range(16): e(f"v_add_f32 v{U+k}, 1.0, v{U+k}")
    for k in range(16): e(f"v_rcp_f32 v{U+k}, v{U+k}")
    for k in range(16): e(f"v_mul_f32 v{GF+k}, v{ACCG+k}, v{U+k}")
    e(f"s_mul_i32 s{sT2}, s{sWq}, 15360 - 12288")
    e(f"s_add_u32 s{sT2}, s{sT2}, {WO_LDS}")
    e(f"v_add_u32 v{vA0}, s{sT2}, v{vA0}")
    e(f"v_add_u32 v{vA1}, s{sT2}, v{vA1}")
    a.vm_wait("xg")
    for s in range(8):
        wr(100 + s, WO_F + 8 * s, (28 * (s // 2) + 16 * (s % 2)) * 128, wait=False)
    for k in range(8):
        if k < 7:
            e(f"v_lshlrev_b32 v{XF+2*k}, 16, v{XG+k}")
            e(f"v_and_b32 v{XF+2*k+1}, 0xffff0000, v{XG+k}")
        else:
            e(f"v_lshlrev_b32 v{XF+14}, 16, v{XG+7}")
            e(f"v_and_b32 v{XF+15}, 0xffff0000, v{XG+7}")
    a.ds_wait_all()
    lds_sync(5, 4, T + 1, T + 2)
    srd(a, rW3, pOUT, X_BYTES)
    e(f"s_and_b32 s{sT1}, s{sWq}, 1")
    e(f"s_lshl1_add_u32 s{sT1}, s{sTB}, s{sT1}")
    e(f"s_lshl_b32 s{sH0}, s{sT1}, 15")
    e(f"s_lshl_b32 s{sT1}, s{sWq}, 13")
    e(f"s_add_u32 s{sH0}, s{sH0}, s{sT1}")
    e(f"s_add_u32 s{sH0}, s{sH0}, {O_OFF}")
    e(f"s_xor_b32 s{sH1}, s{sH0}, 32768")
    e(f"v_min_u32 v{T}, 1, v{vLane}")
    e(f"v_lshlrev_b32 v{T}, 2, v{T}")
    e(f"s_lshl3_add_u32 s{sT1}, s{sTB}, s{sWq}")
    e(f"s_add_u32 s{sT1}, s{sT1}, 28")
    e(f"v_add_lshl_u32 v{vCt}, v{T}, s{sT1}, 7")
    e(f"v_lshrrev_b32 v{T}, 5, v{vLane}")
    e(f"v_lshl_add_u32 v{vIO}, v{T}, 3, v{vIO}")
    sp.stamp("grdy")
    lds_spin(9, 4, T, T + 1, 3)
    e(f"s_setprio 2")
    poll(vCt, T + 1, 4, opt.get("osleep", 1))
    sp.stamp("ordy"); sp.stamp("ordy", lvl=4)
    for s in range(8):
        if s == 4:
            e(f"s_add_u32 s{sH0}, s{sH0}, 4096")
            e(f"s_add_u32 s{sH1}, s{sH1}, 4096")
        a.vm_op(f"buffer_load_dwordx4 v[{OF+8*s}:{OF+8*s+3}], v{vSt}, {S(rWS)}, s{sH0} offen offset:{(s%4)*1024}{LD}", f"o{s}")
        a.vm_op(f"buffer_load_dwordx4 v[{OF+8*s+4}:{OF+8*s+7}], v{vSt}, {S(rWS)}, s{sH1} offen offset:{(s%4)*1024}{LD}", f"o{s}")
    sp.stamp("oiss", lvl=4, nowait=True)
    for s in range(8):
        a.vm_wait(f"o{s}")
        if s in (0, 7): sp.stamp("o", lvl=4, nowait=True)
        mm(s, WO_F + 8 * s, OF + 8 * s)
    exchange(6)
    sp.stamp("ex", lvl=4)
    for k in range(16): e(f"v_fma_f32 v{ACCG+k}, v{ACCG+k}, v{GF+k}, v{XF+k}")
    for k in range(8): e(f"v_cvt_pk_bf16_f32 v{U+k}, v{ACCG+2*k}, v{ACCG+2*k+1}")
    for pr in range(2):
        e(f"v_permlane32_swap_b32 v{U+4*pr}, v{U+4*pr+2}")
        e(f"v_permlane32_swap_b32 v{U+4*pr+1}, v{U+4*pr+3}")
    e(f"buffer_store_dwordx4 v[{U}:{U+3}], v{vIO}, {S(rW3)}, s{sI0} offen{opt.get('ost', '')}")
    e(f"buffer_store_dwordx4 v[{U+4}:{U+7}], v{vIO}, {S(rW3)}, s{sI0} offen offset:32{opt.get('ost', '')}")
    hdiag(1)
    if opt.get("padg"):
        e("v_mov_b32 v0, 0")
        e(f"global_load_dword v0, v0, s[{pDBG}:{pDBG+1}] offset:4 sc1")
        e("s_waitcnt vmcnt(0)")
        e("v_readfirstlane_b32 s76, v0")
        e("s_not_b32 s76, s76")
    if opt.get("pad"):
        a.label("L_pad")
        e("s_memrealtime s[80:81]")
        e("s_waitcnt lgkmcnt(0)")
        e("s_sub_u32 s80, s80, s76")
        e(f"s_cmp_lt_u32 s80, {opt['pad']}")
        e("s_cbranch_scc1 L_pad")
    sp.stamp("end"); sp.stamp("end", lvl=4)
    if sp.on == 4: e("s_waitcnt vmcnt(0)")
    sp.stamp("drain", lvl=4)
    sp.dump(pWS, sW)
    a.label("L_end")
    e("s_endpgm")
    return kd(NAME, 256)

if __name__ == "__main__":
    opt = json.loads(sys.argv[2]) if len(sys.argv) > 2 else {}
    a = Asm()
    a.raw("; one workgroup per CU; workgroups hand data over through d_ws (write-through stores + counters)")
    a.raw("; @launch grid=(256,1,1) block=(512,1,1) lds=163840")
    a.raw('.amdgcn_target "amdgcn-amd-amdhsa--gfx950"')
    a.raw(".text")
    k = gen(a, opt)
    a.raw("L_code_end:")
    a.raw(".fill 64, 4, 0xbf800000")
    a.raw("    s_endpgm")
    a.raw('.section .rodata,"a"')
    a.raw(k)
    open(sys.argv[1], "w").write(a.text())
    print("nops inserted:", a.nops, "lines:", len(a.lines))
```

```python
import sys, json
from common import *
from gemm64 import *
BIAS = 32.0
NAME = "recurrent_scan__softmax_full_mha__glu_gated_swiglu__prompt_kernel"

def gen(a, opt):
    BIAS = float(opt.get("bias", 32))
    ST = opt.get("st", " sc1")
    LD = " sc1"
    NPH = opt.get("nph", 2)
    kernel_head(a, NAME)
    e = a.e
    uid = [0]
    def lab(p):
        uid[0] += 1; return f"L_{p}{uid[0]}"
    pX, pWQ, pWO, pW1, pW3, pW2, pOUT, pDBG, pWS = 4, 6, 8, 12, 14, 16, 18, 20, 22
    rX, rW1, rW3, rA, rB, rWS = 24, 28, 32, 36, 40, 44
    S = lambda r: f"s[{r}:{r+3}]"
    sW, sTT, sG, sRB, sCOL, sTTG = 48, 49, 50, 51, 52, 53
    sSO = [[54, 55], [56, 56], [57, 57]]
    sP64, sM0, sCurA, sCurB, sOnes, sLo, sHi, sHoff, sQKoff, sQKstep = 58, 59, 60, 61, 62, 63, 64, 65, 66, 67
    sT1, sT2, sT3, sStat, sPh, sHoff2 = 68, 69, 70, 71, 72, 73
    X0, AA, AB, WF, T0 = 16, 128, 160, 192, 216
    vLane, vSt, vD0, vD1, vD2B = 1, 2, 3, 4, 250
    vTB = [[5, 6], [7, 8], [9, 243]]
    vTW = [10, 11]
    vXR = [12, 13, 14, 15]
    vK, vC1, vSc, vP6, vP7, vFlag, vV3, vV4 = 232, 233, 234, 236, 237, 238, 239, 235
    vXW = [240, 241]; vStat = 242; vNM = 243; vAcc = [244, 245, 246, 247]; vV1, vV2 = 248, 249
    vDum = 251
    RAW = 128
    SCR = 7 * 16384
    SYNC = 163840 - 256
    e("s_cmp_ge_u32 s2, 256")
    e("s_cbranch_scc1 L_end")
    sp = Stamper(a, opt.get("stamp"), 0)
    sp.stamp("rt", True); sp.stamp("start")
    if opt.get("hdiag") or opt.get("pad") or opt.get("padat"): e("s_memrealtime s[76:77]"); e("s_memtime s[78:79]")
    e("s_load_dwordx16 s[4:19], s[0:1], 0")
    e("s_load_dwordx4 s[20:23], s[0:1], 64")
    RL = 3
    sWR, sXa, sXb, sGS = sStat, sOnes, sLo, sHi
    e(f"v_lshrrev_b32 v22, 6, v0")
    e(f"v_and_b32 v{vLane}, 63, v0")
    e(f"v_readfirstlane_b32 s{sW}, v22")
    e(f"s_and_b32 s{sT1}, s2, 1")
    e(f"s_bfe_u32 s{sT2}, s2, 0x30003")
    e(f"s_lshl3_add_u32 s{sRB}, s{sT1}, s{sT2}")
    e(f"s_bfe_u32 s{sT1}, s2, 0x20001")
    e(f"s_lshr_b32 s{sT2}, s2, 6")
    e(f"s_lshl2_add_u32 s{sCOL}, s{sT1}, s{sT2}")
    e(f"v_bfe_u32 v22, v0, 3, 3")
    e(f"v_and_b32 v23, 7, v0")
    e(f"s_lshl_b32 s{sT1}, s{sT2}, 2")
    e(f"s_and_b32 s{sWR}, s{sT1}, 4")
    e(f"s_xor_b32 s{sWR}, s{sWR}, s{sW}")
    e(f"s_and_b32 s{sGS}, s{sT1}, 8")
    e(f"s_lshl3_add_u32 s{sT1}, s{sRB}, s{sWR}")
    e(f"s_lshl4_add_u32 s{sT2}, s{sT1}, s{sGS}")
    e(f"s_xor_b32 s{sT1}, s{sT2}, 8")
    e(f"s_mulk_i32 s{sT2}, 896")
    e(f"s_mulk_i32 s{sT1}, 896")
    e(f"v_mul_u32_u24 v24, 896, v22")
    e(f"v_lshl_add_u32 v24, v23, 4, v24")
    e(f"s_mov_b32 s{rX+2}, {hex(X_BYTES)}")
    e(f"s_mov_b32 s{rX+3}, 0x20000")
    e(f"s_cmp_ge_u32 s{sW}, 4")
    e("s_waitcnt lgkmcnt(0)")
    e(f"s_mov_b64 s[{rX}:{rX+1}], s[{pX}:{pX+1}]")
    def xloads(lo, hi, sa, sb):
        for k in range(lo, hi):
            gi, i = divmod(k, 7)
            r = RAW + k * 4
            e(f"buffer_load_dwordx4 v[{r}:{r+3}], v24, {S(rX)}, s{sa if gi == 0 else sb} offen offset:{i*128}{opt.get('xnt', '')}")
    def touch():
        sh = opt.get("touchsh", 21)
        e(f"v_min_u32 v25, {(WS_USED >> sh) - 1}, v{vLane}")
        e(f"v_lshlrev_b32 v25, {sh}, v25")
        e(f"global_load_dword v{vDum+1}, v25, s[{pWS}:{pWS+1}]")
        e(f"v_mov_b32 v25, 0")
        for p in (pW1, pW3, pWQ, pW2, pWO, pOUT, pDBG):
            e(f"global_load_dword v{vDum+1}, v25, s[{p}:{p+1}]")
    XE = opt.get("xe", 10)
    e(f"s_cbranch_scc1 L_x0")
    a.skip_begin(); xloads(0, XE, sT2, sT1)
    e(f"s_branch L_x1")
    a.label("L_x0")
    e(f"s_getpc_b64 s[74:75]")
    a.label("L_pc")
    e(f"s_add_u32 s74, s74, {NAME}-L_pc")
    e(f"s_addc_u32 s75, s75, -1")
    e(f"s_lshr_b32 s3, s2, 3")
    e(f"s_lshl_b32 s3, s3, 7")
    e(f"v_and_b32 v20, 255, v0")
    e(f"v_lshl_add_u32 v20, v20, 12, s3")
    e(f"v_min_u32 v{vDum}, L_code_end-{NAME}-4, v20")
    e(f"global_load_dword v{vDum}, v{vDum}, s[74:75]")
    if opt.get("touch") == 1: touch()
    a.skip_end()
    a.label("L_x1")
    sp.stamp("xiss", lvl=3)
    e(f"s_mov_b32 s{sXa}, s{sT2}")
    e(f"s_mov_b32 s{sXb}, s{sT1}")
    def padat(nm):
        if opt.get("padat", [None])[0] != nm: return
        l = lab("pa"); a.label(l)
        e("s_memrealtime s[80:81]")
        e("s_waitcnt lgkmcnt(0)"); a.lg = []
        e("s_sub_u32 s80, s80, s76")
        e(f"s_cmp_lt_u32 s80, {opt['padat'][1]}")
        e(f"s_cbranch_scc1 {l}")
    def srd2(d, base, nbytes):
        e(f"s_mov_b64 s[{d}:{d+1}], s[{base}:{base+1}]")
        e(f"s_mov_b32 s{d+2}, {hex(nbytes)}")
        e(f"s_mov_b32 s{d+3}, 0x20000")
    srd2(rWS, pWS, WS_USED)
    e(f"s_or_b32 s{sT3}, s2, s{sW}")
    e(f"s_cbranch_scc1 L_noinit")
    a.skip_begin()
    e(f"v_lshlrev_b32 v25, 7, v{vLane}")
    e(f"v_mov_b32 v26, 0")
    e(f"s_mov_b32 s3, {CNT_OFF}")
    for q in range(5):
        if q: e(f"s_add_u32 s3, s3, 8192")
        e(f"buffer_store_dword v26, v25, {S(rWS)}, s3 offen sc1")
    a.skip_end()
    a.label("L_noinit")
    if opt.get("padg"):
        e("s_cmp_ge_u32 s2, 8")
        e("s_cbranch_scc1 L_pg")
        e(f"s_cmp_lg_u32 s{sW}, 7")
        e("s_cbranch_scc1 L_pg")
        e("s_not_b32 s80, s76")
        e("v_mov_b32 v25, 0"); e("v_mov_b32 v26, s80")
        e(f"global_atomic_umax v25, v26, s[{pDBG}:{pDBG+1}] offset:4 sc1")
        a.label("L_pg")
    e(f"s_and_b32 s{sTT}, s{sW}, 3")
    e(f"s_lshr_b32 s{sG}, s{sW}, 2")
    e(f"s_lshl_b32 s{sM0}, s{sW}, 10")
    e(f"s_lshl_b32 s{sPh}, s{sG}, 1")
    sTc0a, sTc0b = sCurA, sCurB
    e(f"s_cmp_ge_u32 s{sCOL}, 12")
    e(f"s_cbranch_scc1 L_r0f")
    srd2(rA, pWQ, WQ_BYTES)
    e(f"s_mov_b64 s[{rB}:{rB+1}], s[{pWQ}:{pWQ+1}]")
    e(f"s_and_b32 s{sT2}, s{sCOL}, 3")
    e(f"s_mul_i32 s{sSO[0][0]}, s{sCOL}, 224")
    e(f"s_cmp_eq_u32 s{sT2}, 3")
    e(f"s_cselect_b32 s{sT3}, 32, 0")
    e(f"s_sub_u32 s{sSO[0][0]}, s{sSO[0][0]}, s{sT3}")
    e(f"s_add_u32 s{sSO[0][1]}, s{sSO[0][0]}, 128")
    e(f"s_mul_i32 s{sTc0a}, s{sG}, 112")
    e(f"s_add_u32 s{sTc0a}, s{sTc0a}, s{sT3}")
    e(f"s_add_u32 s{sTc0b}, s{sTc0a}, 56")
    e(f"s_movk_i32 s{sP64}, 2688")
    e(f"s_branch L_r0j")
    a.label("L_r0f")
    srd2(rA, pW1, W1_BYTES)
    e(f"s_mov_b64 s[{rB}:{rB+1}], s[{pW3}:{pW3+1}]")
    e(f"s_add_u32 s{sT1}, s{sCOL}, 12")
    e(f"s_lshl_b32 s{sSO[0][0]}, s{sT1}, 7")
    e(f"s_mov_b32 s{sSO[0][1]}, s{sSO[0][0]}")
    e(f"s_lshl_b32 s{sTc0a}, s{sG}, 6")
    e(f"s_add_u32 s{sTc0b}, s{sTc0a}, 128")
    e(f"s_movk_i32 s{sP64}, 3584")
    a.label("L_r0j")
    a.reset_hist()
    e(f"s_mov_b32 s{rB+2}, s{rA+2}")
    e(f"s_mov_b32 s{rB+3}, 0x20000")
    e(f"s_and_b32 s{sT3}, s{sRB}, 7")
    if opt.get("wpf0", 1):
        e(f"s_cmp_{'lt' if opt.get('wpf0', 2) == 1 else 'ge'}_u32 s{sW}, 4")
        e(f"s_cbranch_scc1 L_w0")
        a.skip_begin()
        e(f"s_mul_i32 s{sT2}, s{sTT}, 48")
        e(f"s_add_u32 s{sT2}, s{sT2}, s{sT3}")
        e(f"v_min_u32 v30, 5, v{vLane}")
        e(f"v_lshl_add_u32 v30, v30, 3, s{sT2}")
        e(f"v_mul_lo_u32 v30, v30, s{sP64}")
        e(f"buffer_load_dword v{vDum+1}, v30, {S(rA)}, s{sSO[0][0]} offen{opt.get('pnt', '')}")
        e(f"buffer_load_dword v{vDum+1}, v30, {S(rB)}, s{sSO[0][1]} offen{opt.get('pnt', '')}")
        a.skip_end()
        a.label("L_w0")
    e(f"v_lshrrev_b32 v25, 2, v{vLane}")
    e(f"v_and_b32 v25, 4, v25")
    e(f"v_xor_b32 v25, v25, v23")
    e(f"v_lshl_add_u32 v26, s{sW}, 3, v22")
    e(f"v_mul_lo_u32 v{vD0}, v26, s{sP64}")
    e(f"v_lshl_add_u32 v{vD0}, v25, 4, v{vD0}")
    e(f"v_mul_u32_u24 v{vD1}, 3584, v26")
    e(f"v_lshl_add_u32 v{vD1}, v25, 4, v{vD1}")
    e(f"s_lshl_b32 s{sT1}, s{sP64}, 5")
    e(f"v_subrev_u32 v32, s{sT1}, v{vD0}")
    vRow, vSwz, vCol = vV1, vV2, vV3
    e(f"v_lshrrev_b32 v26, 5, v{vLane}")
    e(f"v_bfe_u32 v27, v{vLane}, 2, 2")
    e(f"v_lshl_add_u32 v27, v26, 3, v27")
    e(f"v_lshlrev_b32 v{vRow}, 7, v27")
    e(f"v_and_b32 v28, 8, v{vLane}")
    e(f"v_lshlrev_b32 v{vSwz}, 3, v28")
    e(f"v_and_b32 v29, 3, v{vLane}")
    e(f"v_and_b32 v30, 16, v{vLane}")
    e(f"v_lshlrev_b32 v30, 1, v30")
    e(f"v_lshl_add_u32 v{vCol}, v29, 3, v30")
    def traddr(d, stc, t0, t1):
        return [f"v_add_u32 v{t0}, s{stc}, v{vCol}", f"v_and_b32 v{t1}, 127, v{t0}", f"v_xor_b32 v{t1}, v{t1}, v{vSwz}",
                f"v_and_b32 v{t0}, 128, v{t0}", f"v_lshl_add_u32 v{t0}, v{t0}, 6, v{t1}", f"v_add_u32 v{d}, v{t0}, v{vRow}"]
    for t in traddr(vTB[0][0], sTc0a, 30, 31) + traddr(vTB[0][1], sTc0b, 30, 31): e(t)
    e(f"s_and_b32 s{sT1}, s{sWR}, 1")
    e(f"s_lshl4_add_u32 s{sT1}, s{sT1}, s{sGS}")
    e(f"v_add_u32 v30, s{sT1}, v22")
    e(f"v_xor_b32 v30, v30, v23")
    e(f"v_lshlrev_b32 v30, 4, v30")
    e(f"v_lshrrev_b32 v31, 1, v23")
    e(f"v_lshl_add_u32 v30, v31, 12, v30")
    e(f"v_and_b32 v31, 1, v23")
    e(f"v_lshl_add_u32 v30, v31, 9, v30")
    e(f"s_lshr_b32 s{sT1}, s{sWR}, 1")
    e(f"v_lshl_add_u32 v{vXW[0]}, s{sT1}, 10, v30")
    e(f"v_add_u32 v{vXW[1]}, 0x10000, v{vXW[0]}")
    e(f"v_and_b32 v30, 31, v{vLane}")
    e(f"v_xor_b32 v30, v30, v26")
    e(f"v_lshlrev_b32 v30, 4, v30")
    e(f"v_lshl_add_u32 v30, v26, 9, v30")
    e(f"v_lshl_add_u32 v{vXR[0]}, s{sTT}, 10, v30")
    for q in range(1, 4):
        e(f"v_xor_b32 v{vXR[q]}, {q*4096 + q*32}, v{vXR[0]}")
    e(f"s_lshl4_add_u32 s{sT1}, s{sWR}, s{sGS}")
    e(f"v_add_lshl_u32 v{vStat}, v22, s{sT1}, 2")
    e(f"s_mul_i32 s{sT2}, s{sTT}, 112")
    e(f"s_add_u32 s{sT1}, s{sT3}, s{sT2}")
    e(f"v_min_u32 v30, 13, v{vLane}")
    e(f"v_lshl_add_u32 v30, v30, 3, s{sT1}")
    e(f"v_mul_u32_u24 v{vDum+3}, 3584, v30")
    e(f"s_lshl_b32 s{sT2}, s{sTT}, 6")
    e(f"s_add_u32 s{sT1}, s{sT3}, s{sT2}")
    e(f"s_add_u32 s{sT1}, s{sT1}, 192")
    e(f"v_min_u32 v31, 7, v{vLane}")
    e(f"v_lshl_add_u32 v31, v31, 3, s{sT1}")
    e(f"v_mul_lo_u32 v{vDum+2}, v31, s{sP64}")
    e(f"s_lshl_b32 s{sP64}, s{sP64}, 6")
    srd2(rW1, pW1, W1_BYTES)
    srd2(rW3, pW3, W1_BYTES)
    e(f"s_lshl_b32 s{sSO[1][0]}, s{sCOL}, 7")
    e(f"s_lshr_b32 s{sT1}, s{sCOL}, 1")
    e(f"s_add_u32 s{sT1}, s{sT1}, 16")
    e(f"s_lshl_b32 s{sSO[2][0]}, s{sT1}, 7")
    e(f"s_cmp_lt_u32 s{sW}, 4")
    e(f"s_cbranch_scc1 L_x2")
    a.skip_begin(); xloads(0, XE, sXa, sXb); a.skip_end()
    a.label("L_x2")
    xloads(XE, 14, sXa, sXb)
    e(f"s_lshl_b32 s{sStat}, s2, 9")
    e(f"s_add_u32 s{sStat}, s{sStat}, {ST_OFF}")
    e(f"s_mov_b32 s{sOnes}, 0x3f803f80")
    e(f"s_movk_i32 s{sLo}, 0x3f80")
    e(f"s_mov_b32 s{sHi}, 1.0")
    def slot(c):
        if c < 3: return 7 + c
        if c < 10: return c - 3
        if c == 20: return 7
        return slot(c - 9)
    dma_next = [3]
    def dma(c, track=True):
        r, cc = divmod(c, 7)
        if cc == 0:
            e(f"s_mov_b32 s{sCurA}, s{sSO[r][0]}")
            if r == 0: e(f"s_mov_b32 s{sCurB}, s{sSO[r][1]}")
        va, vb = [(vD0, vD0), (vD1, vD1), (vD1, vD2B)][r]
        sa, sb = (rA, rB) if r == 0 else (rW1, rW3)
        inc = f"s{sP64}" if r == 0 else f"{64*3584}"
        e(f"s_add_u32 m0, s{sM0}, {slot(c)*16384}")
        if cc: e(f"s_add_u32 s{sCurA}, s{sCurA}, {inc}")
        e(f"buffer_load_dwordx4 v{va}, {S(sa)}, s{sCurA} offen lds")
        e(f"s_add_u32 m0, s{sM0}, {slot(c)*16384+8192}")
        if cc and r == 0: e(f"s_add_u32 s{sCurB}, s{sCurB}, {inc}")
        e(f"buffer_load_dwordx4 v{vb}, {S(sb)}, s{sCurB if r == 0 else sCurA} offen lds")
        if track: a.vm += [f"c{c}", f"c{c}"]
    for q in range(8): e(f"v_mov_b32 v{T0+8+q}, 0")
    e(f"s_cmp_lt_u32 s{sW}, 4")
    e(f"s_cbranch_scc1 L_lnA")
    e(f"s_waitcnt vmcnt(0)")
    def dma4(c):
        dma(c, track=False)
        e(f"s_add_u32 m0, s{sM0}, {slot(c)*16384 - 4096}")
        e(f"buffer_load_dwordx4 v32, {S(rA)}, s{sCurA} offen lds")
        e(f"s_add_u32 m0, s{sM0}, {slot(c)*16384 + 8192 - 4096}")
        e(f"buffer_load_dwordx4 v32, {S(rB)}, s{sCurB} offen lds")
        a.vm += [f"c{c}"] * 4
    C2 = opt.get("c2pos", 1)
    for c in range(3 if C2 == 0 else 2): dma4(c)
    e(f"s_branch L_lnB")
    a.label("L_lnA")
    e(f"s_lshl1_add_u32 s{sCurA}, s{sP64}, s{sSO[0][0]}")
    e(f"s_lshl1_add_u32 s{sCurB}, s{sP64}, s{sSO[0][1]}")
    e(f"s_waitcnt vmcnt(0)")
    a.label("L_lnB")
    a.reset_hist()
    padat("x0")
    sp.stamp("x0"); sp.stamp("x0", lvl=3)
    AC = T0 + 8
    def reduce2(d0, d1):
        for g in range(2): e(f"v_add_f32 v{AC+4*g}, v{AC+4*g}, v{AC+4*g+1}")
        for g in range(2): e(f"v_add_f32 v{AC+4*g+2}, v{AC+4*g+2}, v{AC+4*g+3}")
        for g, d in enumerate((d0, d1)): e(f"v_add_f32 v{d}, v{AC+4*g}, v{AC+4*g+2}")
        for m in ("quad_perm:[1,0,3,2]", "quad_perm:[2,3,0,1]", "row_half_mirror"):
            for d in (d0, d1): e(f"v_add_f32_dpp v{d}, v{d}, v{d} {m} row_mask:0xf bank_mask:0xf")
    for i in range(28):
        for g in range(2): e(f"v_dot2c_f32_bf16 v{AC+4*g+i%4}, s{sOnes}, v{RAW+g*28+i}")
    reduce2(vAcc[0], vAcc[1])
    for q in range(8): e(f"v_mov_b32 v{AC+q}, 0")
    for g in range(2): e(f"v_mul_f32 v{vAcc[g]}, {hexf(-1.0/448)}, v{vAcc[g]}")
    if C2 == 1:
        e(f"s_cmp_lt_u32 s{sW}, 4")
        e(f"s_cbranch_scc1 L_c2")
        a.skip_begin(); dma4(2); a.skip_end()
        a.label("L_c2")
    sp.stamp("pre", lvl=3)
    pend = None
    for gi in range(2):
        for i in range(7):
            r = RAW + gi * 28 + i * 4
            for k in range(4):
                e(f"v_dot2_f32_bf16 v{T0+2*k}, v{r+k}, s{sLo}, v{vAcc[gi]}")
                e(f"v_dot2_f32_bf16 v{T0+2*k+1}, v{r+k}, s{sHi}, v{vAcc[gi]}")
            if pend: pend()
            for k in range(4):
                e(f"v_cvt_pk_bf16_f32 v{r+k}, v{T0+2*k}, v{T0+2*k+1}")
            def pend(r=r, gi=gi, i=i):
                off = i * 16384
                a.ds_op(f"ds_write_b128 v{vXW[off >> 16]}, v[{r}:{r+3}] offset:{off & 0xffff}", "xw")
                if i == 6 and gi == 0:
                    e(f"v_xor_b32 v{vXW[0]}, 128, v{vXW[0]}")
                    e(f"v_xor_b32 v{vXW[1]}, 128, v{vXW[1]}")
    pend()
    if C2 == 2:
        e(f"s_cmp_lt_u32 s{sW}, 4")
        e(f"s_cbranch_scc1 L_c2")
        a.skip_begin(); dma4(2); a.skip_end()
        a.label("L_c2")
    sp.stamp("post", lvl=3)
    for i in range(28):
        for g in range(2): e(f"v_dot2c_f32_bf16 v{AC+4*g+i%4}, v{RAW+g*28+i}, v{RAW+g*28+i}")
    e(f"v_mov_b32 v{T0}, {hexf(1e-5)}")
    e(f"v_mov_b32 v{T0+1}, {hexf(1e-5)}")
    e(f"v_xor_b32 v{T0+2}, 32, v{vStat}")
    reduce2(vAcc[0], vAcc[1])
    for g in range(2): e(f"v_fmac_f32 v{T0+g}, {hexf(1.0/448)}, v{vAcc[g]}")
    def wpf():
        e(f"buffer_load_dword v{vDum+1}, v{vDum+2}, {S(rA)}, s{sSO[0][0]} offen{opt.get('pnt', '')}")
        e(f"buffer_load_dword v{vDum+1}, v{vDum+2}, {S(rB)}, s{sSO[0][1]} offen{opt.get('pnt', '')}")
        for r in (1, 2):
            e(f"buffer_load_dword v{vDum+1}, v{vDum+3}, {S(rW1)}, s{sSO[r][0]} offen{opt.get('pnt', '')}")
            e(f"buffer_load_dword v{vDum+1}, v{vDum+3}, {S(rW3)}, s{sSO[r][0]} offen{opt.get('pnt', '')}")
        if opt.get("w2pf", 3) == 3:
            e(f"s_lshl2_add_u32 s{sT1}, s2, s{sW}")
            e(f"s_mul_i32 s{sT2}, s{sT1}, {13*128}")
            e(f"s_lshl_b32 s{sT1}, s{sT1}, 9")
            e(f"v_min_u32 v{vDum+2}, 12, v{vLane}")
            e(f"v_lshl_add_u32 v{vDum+2}, v{vDum+2}, 7, s{sT2}")
            e(f"v_min_u32 v{vDum+2}, {W2_BYTES-4}, v{vDum+2}")
            e(f"v_min_u32 v{vDum+3}, 3, v{vLane}")
            e(f"v_lshl_add_u32 v{vDum+3}, v{vDum+3}, 7, s{sT1}")
            e(f"v_min_u32 v{vDum+3}, {WO_BYTES-4}, v{vDum+3}")
            e(f"global_load_dword v{vDum+1}, v{vDum+2}, s[{pW2}:{pW2+1}]{opt.get('p2nt', '')}")
            e(f"global_load_dword v{vDum+1}, v{vDum+3}, s[{pWO}:{pWO+1}]")
    e(f"s_cmp_ge_u32 s{sW}, 4")
    e(f"s_cbranch_scc1 L_lnD")
    a.skip_begin()
    e(f"s_or_b32 s{sT3}, s2, s{sW}")
    e(f"s_cbranch_scc1 L_noflag")
    e(f"v_mov_b32 v25, 0")
    e(f"v_mov_b32 v26, 1")
    e(f"global_store_dword v25, v26, s[{pDBG}:{pDBG+1}] sc1")
    a.label("L_noflag")
    if opt.get("touch") == 2: touch()
    if opt.get("wpf", 1) == 1: wpf()
    e(f"s_branch L_lnE")
    a.skip_end()
    a.label("L_lnD")
    sp.stamp("ln", lvl=3, nowait=True)
    a.vm_wait("c1")
    a.label("L_lnE")
    a.ds_wait_all()
    sp.stamp("ln")
    sp.stamp("c1", lvl=3)
    e("s_barrier")
    padat("b1")
    sp.stamp("b1"); sp.stamp("b1", lvl=3)
    def deferred():
        t0, t1, t2 = AB, AB + 1, AB + 2
        G = lambda *ins: (lambda: [e(x) for x in ins], sum(2 if x.startswith("s_") else 4 for x in ins))
        L = []
        L.append(G(f"v_xor_b32 v{vD2B}, 32, v{vD1}", f"v_lshlrev_b32 v{vSt}, 4, v{vLane}", f"s_mov_b32 vcc_lo, -1", f"s_mov_b32 vcc_hi, 0"))
        L.append(G(f"s_lshl2_add_u32 s{sTTG}, s{sRB}, s{sTT}", f"s_lshl_b32 s{sHoff}, s{sG}, 6"))
        L += [G(x) for x in traddr(vTB[1][0], sHoff, t0, t1)]
        L.append(G(f"v_add_u32 v{vTB[1][1]}, 8192, v{vTB[1][0]}"))
        L.append(G(f"s_and_b32 s{sHoff}, s{sCOL}, 1", f"s_lshl_b32 s{sHoff2}, s{sHoff}, 1", f"s_lshl_b32 s{sHoff}, s{sHoff2}, 5",
                   f"v_xor_b32 v{t0}, s{sHoff}, v{vCol}"))
        L.append(G(f"v_xor_b32 v{t0}, v{t0}, v{vSwz}", f"v_and_b32 v{t1}, 16, v{vLane}"))
        L.append(G(f"v_lshl_add_u32 v{t0}, v{t1}, 9, v{t0}", f"v_add_u32 v{vTB[2][0]}, v{t0}, v{vRow}", f"v_xor_b32 v{vTB[2][1]}, 32, v{vTB[2][0]}"))
        L.append(G(f"s_mul_i32 s{sHoff}, s{sTTG}, 112", f"s_add_u32 s{sHoff2}, s{sHoff2}, s{sHoff}", f"s_lshr_b32 s{sQKoff}, s{sSO[2][0]}, 5",
                   f"s_add_u32 s{sHoff2}, s{sHoff2}, s{sQKoff}", f"s_lshl_b32 s{sHoff2}, s{sHoff2}, 10", f"s_add_u32 s{sHoff2}, s{sHoff2}, {H_OFF}"))
        L.append(G(f"s_lshl1_add_u32 s{sHoff}, s{sG}, s{sHoff}", f"s_lshl2_add_u32 s{sHoff}, s{sCOL}, s{sHoff}", f"s_lshl_b32 s{sHoff}, s{sHoff}, 10",
                   f"s_add_u32 s{sHoff}, s{sHoff}, {H_OFF}"))
        L.append(G(f"s_lshl1_add_u32 s{sQKoff}, s{sCOL}, s{sG}", f"s_lshl_b32 s{sQKoff}, s{sQKoff}, 7", f"s_add_u32 s{sQKoff}, s{sQKoff}, s{sTTG}",
                   f"s_lshl_b32 s{sQKoff}, s{sQKoff}, 11", f"s_add_u32 s{sQKstep}, s{sHoff}, {12*4096}", f"s_cmp_ge_u32 s{sCOL}, 12",
                   f"s_cselect_b32 s{sQKoff}, s{sQKstep}, s{sQKoff}"))
        L.append(G(f"s_lshr_b32 s{sQKstep}, s{sCOL}, 2", f"s_cmp_eq_u32 s{sQKstep}, 1", f"s_cselect_b32 s{sOnes}, s{sOnes}, 0", f"s_cselect_b32 s{sHi}, s{sLo}, 0",
                   f"s_cmp_eq_u32 s{sQKstep}, 2", f"s_cselect_b32 s{sOnes}, s{sLo}, s{sOnes}"))
        L.append(G(f"v_mov_b32 v{vP6}, s{sOnes}", f"v_mov_b32 v{vP7}, s{sHi}"))
        L.append(G(f"v_lshrrev_b32 v{t2}, 5, v{vLane}", f"v_bfe_u32 v{t0}, v{vLane}, 2, 2", f"v_lshl_add_u32 v{t0}, v{t2}, 2, v{t0}"))
        L.append(G(f"v_lshrrev_b32 v{t1}, 1, v{t0}", f"v_lshlrev_b32 v{t1}, 3, v{t1}", f"v_xor_b32 v{t1}, v{t1}, v{vCol}"))
        L.append(G(f"s_lshl_b32 s{sQKstep}, s{sW}, 11", f"s_add_u32 s{sQKstep}, s{sQKstep}, {SCR}", f"v_lshl_add_u32 v{t0}, v{t0}, 6, v{t1}",
                   f"v_add_u32 v{vV2}, s{sQKstep}, v{t0}"))
        L.append(G(f"v_xor_b32 v{vV3}, 32, v{vV2}", f"v_bfe_u32 v{t0}, v{vLane}, 1, 3", f"v_xor_b32 v{t0}, v{t0}, v{t2}"))
        L.append(G(f"v_and_b32 v{t1}, 31, v{vLane}", f"v_lshlrev_b32 v{t1}, 6, v{t1}", f"v_lshl_add_u32 v{t0}, v{t0}, 3, v{t1}"))
        L.append(G(f"v_add_u32 v{vV1}, s{sQKstep}, v{t0}"))
        return L
    def hdiag(k):
        if not opt.get("hdiag"): return
        if k == 0: return
        e("s_cmp_ge_u32 s2, 7")
        e("s_cbranch_scc1 L_end")
        e(f"s_cmp_lg_u32 s{sW}, 4")
        e("s_cbranch_scc1 L_end")
        e("s_memrealtime s[80:81]"); e("s_memtime s[82:83]")
        e("s_waitcnt vmcnt(0) lgkmcnt(0)")
        e("s_mov_b64 exec, 1")
        e("s_lshl_b32 s3, s2, 3")
        e("v_mov_b32 v0, s3")
        e("s_sub_u32 s84, s82, s78")
        e("s_sub_u32 s80, s80, s76")
        e("s_and_b32 s76, s76, 0xffff")
        e("s_lshl_b32 s80, s80, 16")
        e("s_or_b32 s76, s76, s80")
        e("v_mov_b32 v2, s76"); e("v_mov_b32 v3, s84")
        e(f"global_store_dword v0, v2, s[{pDBG}:{pDBG+1}] offset:4")
        e(f"global_store_dword v0, v3, s[{pDBG}:{pDBG+1}] offset:8")
    def check_flag(vtmp):
        done = lab("fl")
        e(f"v_readfirstlane_b32 s{sT1}, v{vFlag}")
        e(f"s_cmp_lg_u32 s{sT1}, 0")
        e(f"s_cbranch_scc1 {done}")
        e(f"s_mov_b32 s{sT2}, 0x40000")
        lp = lab("fs"); a.label(lp)
        e(f"v_mov_b32 v{vtmp}, 0")
        e(f"global_load_dword v{vFlag}, v{vtmp}, s[{pDBG}:{pDBG+1}] sc1")
        e(f"s_waitcnt vmcnt(0)")
        e(f"v_readfirstlane_b32 s{sT1}, v{vFlag}")
        e(f"s_sub_u32 s{sT2}, s{sT2}, 1")
        e(f"s_cselect_b32 s{sT1}, 1, s{sT1}")
        e(f"s_cmp_eq_u32 s{sT1}, 0")
        e(f"s_cbranch_scc1 {lp}")
        a.label(done)
    def signal(sIdx, add, va, vb):
        e(f"s_add_u32 s{sT1}, s{sIdx}, {add}")
        e(f"s_lshl_b32 s{sT1}, s{sT1}, 7")
        e(f"s_add_u32 s{sT1}, s{sT1}, {CNT_OFF}")
        e(f"v_mov_b32 v{va}, 0")
        e(f"v_mov_b32 v{vb}, 1")
        e(f"s_mov_b64 exec, 1")
        e(f"buffer_atomic_add v{vb}, v{va}, {S(rWS)}, s{sT1} offen sc1")
        e(f"s_mov_b64 exec, -1")
    def poll(vaddr, vval, target, sleep):
        lp = lab("po"); done = lab("pd")
        e(f"s_mov_b32 s{sT2}, 0x40000")
        e(f"s_mov_b32 s{sT3}, {CNT_OFF}")
        a.label(lp)
        e(f"buffer_load_dword v{vval}, v{vaddr}, {S(rWS)}, s{sT3} offen sc1")
        e(f"s_waitcnt vmcnt(0)")
        e(f"v_cmp_gt_u32 s[74:75], {target}, v{vval}")
        e(f"s_cmp_eq_u64 s[74:75], 0")
        e(f"s_cbranch_scc1 {done}")
        e(f"s_sleep {sleep}")
        e(f"s_sub_u32 s{sT2}, s{sT2}, 1")
        e(f"s_cbranch_scc0 {lp}")
        a.label(done)
        a.vm = []
    def lds_arrive(k, va, vb, rtn=False):
        e(f"v_mov_b32 v{va}, {SYNC + 4*k}")
        e(f"v_mov_b32 v{vb}, 1")
        e(f"s_mov_b64 exec, 1")
        e(f"ds_add_rtn_u32 v{vb}, v{va}, v{vb}" if rtn else f"ds_add_u32 v{va}, v{vb}")
        e(f"s_mov_b64 exec, -1")
    def lds_sync(k, n, va, vb, meanwhile=None):
        a.ds_wait_all()
        lds_arrive(k, va, vb)
        if meanwhile:
            e("s_nop 3"); meanwhile()
        lp = lab("ls")
        e(f"s_mov_b32 s{sT2}, 0x400000")
        a.label(lp)
        e(f"ds_read_b32 v{vb}, v{va}")
        e(f"s_waitcnt lgkmcnt(0)")
        e(f"v_readfirstlane_b32 s{sT1}, v{vb}")
        e(f"s_sub_u32 s{sT2}, s{sT2}, 1")
        e(f"s_cselect_b32 s{sT1}, {n}, s{sT1}")
        e(f"s_cmp_lt_u32 s{sT1}, {n}")
        e(f"s_cbranch_scc1 {lp}")
    def lds_spin(k, n, va, vb, sleep):
        lp = lab("ls"); ok = lab("lk")
        e(f"v_mov_b32 v{va}, {SYNC + 4*k}")
        e(f"s_mov_b32 s{sT2}, 0x100000")
        a.label(lp)
        e(f"ds_read_b32 v{vb}, v{va}")
        e(f"s_waitcnt lgkmcnt(0)")
        e(f"v_readfirstlane_b32 s{sT1}, v{vb}")
        e(f"s_cmp_ge_u32 s{sT1}, {n}")
        e(f"s_cbranch_scc1 {ok}")
        e(f"s_sleep {sleep}")
        e(f"s_sub_u32 s{sT2}, s{sT2}, 1")
        e(f"s_cbranch_scc0 {lp}")
        a.label(ok)
    def lds_check(k, n, va, vb):
        lp = lab("lc"); ok = lab("ld")
        e(f"s_mov_b32 s{sT2}, 0x400000")
        a.label(lp)
        e(f"s_waitcnt lgkmcnt(0)"); a.lg = []
        e(f"v_readfirstlane_b32 s{sT1}, v{vb}")
        e(f"s_cmp_ge_u32 s{sT1}, {n}")
        e(f"s_cbranch_scc1 {ok}")
        a.skip_begin()
        e(f"ds_read_b32 v{vb}, v{va}")
        e(f"s_sub_u32 s{sT2}, s{sT2}, 1")
        e(f"s_cbranch_scc0 {lp}")
        a.skip_end()
        a.label(ok)
    def lds_wait(k, n, va, vb, meanwhile):
        lp = lab("lw"); ok = lab("lo")
        e(f"v_mov_b32 v{va}, {SYNC + 4*k}")
        e(f"ds_read_b32 v{vb}, v{va}")
        meanwhile()
        e(f"s_mov_b32 s{sT2}, 0x400000")
        a.label(lp)
        e(f"s_waitcnt lgkmcnt(0)")
        e(f"v_readfirstlane_b32 s{sT1}, v{vb}")
        e(f"s_cmp_ge_u32 s{sT1}, {n}")
        e(f"s_cbranch_scc1 {ok}")
        e(f"ds_read_b32 v{vb}, v{va}")
        e(f"s_sub_u32 s{sT2}, s{sT2}, 1")
        e(f"s_cbranch_scc0 {lp}")
        a.label(ok)
    def last_signals(k, n, sIdx, add, va, vb):
        lds_arrive(k, va, vb, rtn=True)
        e(f"s_waitcnt lgkmcnt(0)"); a.lg = []
        e(f"v_readfirstlane_b32 s{sT1}, v{vb}")
        sk = lab("ns")
        e(f"s_cmp_lg_u32 s{sT1}, {n-1}")
        e(f"s_cbranch_scc1 {sk}")
        a.skip_begin()
        signal(sIdx, add, va, vb)
        a.skip_end()
        a.label(sk)
    NT = [2, 2, 2]
    ACC = [AA, AB, AA]
    tw_state = [None, None]
    def wreads(G):
        r, s = divmod(G, 28)
        base = slot(G // 4) * 16384 + (s % 4) * 2048
        hi, lo = base >> 16, base & 0xffff
        L = []
        for t in range(NT[r]):
            d = WF + (G % 3) * 8 + t * 4
            def f0(t=t, d=d):
                if tw_state[t] != (r, hi):
                    e(f"v_add_u32 v{vTW[t]}, {hex(hi << 16)}, v{vTB[r][t]}")
                    tw_state[t] = (r, hi)
                a.ds_op(f"ds_read_b64_tr_b16 v[{d}:{d+1}], v{vTW[t]} offset:{lo}", f"w{G}")
            def f1(t=t, d=d):
                a.ds_op(f"ds_read_b64_tr_b16 v[{d+2}:{d+3}], v{vTW[t]} offset:{lo+512}", f"w{G}")
            L += [f0, f1]
        return L
    xr_next = [0]
    def xread(n):
        for _ in range(n):
            s = xr_next[0]
            if s >= 28: return
            xr_next[0] += 1
            if s == 16:
                for q in range(4): e(f"v_add_u32 v{vXR[q]}, 0x10000, v{vXR[q]}")
            off = ((s // 4) * 16384) & 0xffff
            a.ds_op(f"ds_read_b128 v[{X0+4*s}:{X0+4*s+3}], v{vXR[s%4]} offset:{off}", f"x{s}")
    BARS = opt.get("bars", [0, 1, 2, 3, 5, 7, 9, 11, 13, 15])
    PQ = opt.get("pq", 11)
    PZ = opt.get("pz", 13)
    L2P = {int(k): v for k, v in opt.get("l2p", {}).items()}
    VEND = PQ
    window = []; pending = []
    def period_barrier(i):
        for c in window: a.vm.extend([f"c{c}", f"c{c}"])
        assert not pending, pending
        window.clear()
        nxt = min([b for b in BARS if b > i] + [20])
        a.vm_wait(f"c{nxt}")
        assert dma_next[0] > nxt, (i, nxt, dma_next[0])
        if i == 3: a.vm_wait("stat")
        if i == PQ: a.vm_wait("st")
        if i in opt.get("sb", []): sp.stamp("pre", lvl=2, nowait=True)
        e("s_barrier")
        if i in opt.get("sb", []): sp.stamp("post", lvl=2, nowait=True)
        if i == 3:
            e(f"v_and_b32 v{vK}, 31, v{vLane}")
            e(f"v_lshlrev_b32 v{vK}, 2, v{vK}")
            e(f"s_lshl_b32 s{sT1}, s{sTT}, 7")
            e(f"s_add_u32 s{sT1}, s{sT1}, s{sStat}")
            e(f"v_mov_b32 v{vFlag}, 0")
            a.vm_op(f"buffer_load_dword v{vK}, v{vK}, {S(rWS)}, s{sT1} offen sc1", "kld")
            a.vm_op(f"global_load_dword v{vFlag}, v{vFlag}, s[{pDBG}:{pDBG+1}] sc1", "kld")
        if i in L2P:
            for k in L2P[i]:
                sk = lab("pf")
                e(f"s_cmp_lg_u32 s{sW}, {k}")
                e(f"s_cbranch_scc1 {sk}")
                a.skip_begin()
                e(f"s_lshr_b32 s{sT1}, s2, 3")
                nl, ptr, nb = (56, pW2, W2_BYTES) if k < 7 else (98, pWO, WO_BYTES)
                if k < 7:
                    e(f"s_mul_i32 s{sT1}, s{sT1}, {7*56*128}")
                    e(f"s_add_u32 s{sT1}, s{sT1}, {k*56*128}")
                else:
                    e(f"s_mul_i32 s{sT1}, s{sT1}, {98*128}")
                e(f"v_min_u32 v{vDum+2}, {min(nl, 64) - 1 if k < 7 else 48}, v{vLane}")
                e(f"v_lshl_add_u32 v{vDum+2}, v{vDum+2}, 7, s{sT1}")
                e(f"global_load_dword v{vDum+1}, v{vDum+2}, s[{ptr}:{ptr+1}]")
                if k == 7:
                    e(f"v_add_u32 v{vDum+2}, {49*128}, v{vDum+2}")
                    e(f"global_load_dword v{vDum+1}, v{vDum+2}, s[{ptr}:{ptr+1}]")
                a.skip_end()
                a.label(sk)
        if i == PZ:
            e(f"v_lshrrev_b32 v{vDum+2}, 2, v{vSt}")
            e(f"v_add_u32 v{vDum+2}, {SYNC}, v{vDum+2}")
            e(f"v_mov_b32 v{vDum+3}, 0")
            a.ds_op(f"ds_write_b32 v{vDum+2}, v{vDum+3}", "z")
        if i == PQ and sigq[0]:
            sk = lab("q")
            e(f"s_cmp_lg_u32 s{sW}, 0")
            e(f"s_cbranch_scc1 {sk}")
            a.skip_begin()
            check_flag(vDum + 2)
            signal(sCOL, 0, vDum + 2, vDum + 3)
            a.skip_end()
            a.label(sk)
        while dma_next[0] <= 20:
            c = dma_next[0]
            if c < 10:
                sl = slot(c)
                if not all(xr_next[0] > s and a.ds_done(f"x{s}") for s in range(4*sl, 4*sl+4)): break
            elif c == 20:
                if i < 13: break
            elif c - 9 > i - 1: break
            window.append(c); dma_next[0] += 1
        nq = nxt - i
        per = -(-len(window) // nq)
        pending[:] = [window[k*per:(k+1)*per] for k in range(nq)]
    sigq = [False]
    XR = opt.get("xrate", 2)
    def kloop(r, extra, budget, hooks={}):
        extra = list(extra)
        if opt.get("x_noepi"): extra = [x for x in extra if x[1] == 0]
        gap = 0
        for s in range(28):
            G = r * 28 + s
            Gn = G + 2
            rd = wreads(Gn) if Gn < 84 else []
            a.ds_wait(f"w{G}")
            if r == 0: a.ds_wait(f"x{s}")
            ph = Gn % 4
            for t in range(NT[r]):
                d = ACC[r] + 16 * t
                w = WF + (G % 3) * 8 + t * 4
                c = "0" if s == 0 else f"v[{d}:{d+15}]"
                e(f"v_mfma_f32_32x32x16_bf16 v[{d}:{d+15}], v[{w}:{w+3}], v[{X0+4*s}:{X0+4*s+3}], {c}")
                gap += 1
                if t == 0 and Gn < 84 and ph == 0 and (Gn // 4 - 1) in BARS: period_barrier(Gn // 4 - 1)
                n = -(-len(rd) // (NT[r] - t))
                for f in rd[:n]: f()
                rd = rd[n:]
                if r == 0: xread((XR + 1 - t) // 2)
                left = budget
                if t == NT[r] - 1 and pending and pending[0] and ph % 2 == 0:
                    sk = lab("d")
                    e(f"s_cmp_lg_u32 s{sPh}, {ph}")
                    e(f"s_cbranch_scc1 {sk}")
                    a.skip_begin()
                    for c in pending[0]: dma(c, track=False)
                    a.skip_end()
                    a.label(sk)
                    left = opt.get("dmabud", 4)
                if t == NT[r] - 1 and s in hooks: hooks[s](); left = 0
                while extra and gap > 3 and extra[0][1] <= left:
                    f, cst = extra.pop(0); f(); left -= cst
            if ph == 3 and pending: pending.pop(0)
        return extra
    def I(t):
        op = t.split()[0]
        return (lambda: e(t), 8 if op.startswith(TRANS) else (2 if op.startswith("s_") else 4))
    def consts():
        def sel():
            e(f"s_cmp_lt_u32 s{sCOL}, 4")
            e(f"s_cselect_b32 s{sT1}, {hexf(28**-0.5*LOG2E)}, 1.0")
            e(f"v_mul_f32 v{vSc}, s{sT1}, v{vSc}")
        return [(lambda: a.vm_wait("kld"), 0), I(f"v_rsq_f32 v{vSc}, v{vK}"),
                I(f"v_mul_f32 v{vC1}, {hexf(-LOG2E)}, v{vSc}"), (sel, 8)]
    def silu4(Gt, U, t, p):
        L = []
        for k in range(4): L.append(I(f"v_mul_f32 v{t+k}, v{vC1}, v{Gt+k}"))
        for k in range(4):
            L.append(I(f"v_exp_f32 v{t+k}, v{t+k}"))
            L.append(I(f"v_mul_f32 v{Gt+k}, v{Gt+k}, v{U+k}"))
        for k in range(4): L.append(I(f"v_fma_f32 v{t+k}, v{t+k}, v{vK}, v{vK}"))
        for k in range(4): L.append(I(f"v_rcp_f32 v{t+k}, v{t+k}"))
        for k in range(4): L.append(I(f"v_mul_f32 v{Gt+k}, v{Gt+k}, v{t+k}"))
        for k in range(2): L.append(I(f"v_cvt_pk_bf16_f32 v{p+k}, v{Gt+2*k}, v{Gt+2*k+1}"))
        return L
    def store(r, soff, off):
        if opt.get("x_nost"): return (lambda: None, 8)
        return (lambda: a.vm_op(f"buffer_store_dwordx4 v[{r}:{r+3}], v{vSt}, {S(rWS)}, s{soff} offen offset:{off}{ST}", "st"), 8)
    def epiF(acc, soff):
        Gt, U = acc, acc + 16
        L = []
        for q in range(4):
            L += silu4(Gt + 4*q, U + 4*q, T0 + (q % 2) * 4, U + (q // 2) * 8 + (q % 2) * 2)
            if q % 2 == 1: L.append(store(U + (q // 2) * 8, soff, (q // 2) * 1024))
        return L
    def epiQKV(acc, isv):
        L = []
        P = T0 + 8
        for q in range(4):
            for k in range(4): L.append(I(f"v_mul_f32 v{acc+4*q+k}, v{vSc}, v{acc+4*q+k}"))
            for k in range(2): L.append(I(f"v_cvt_pk_bf16_f32 v{P+2*q+k}, v{acc+4*q+2*k}, v{acc+4*q+2*k+1}"))
            if q == 1 and not isv: L.append(store(P, sQKoff, 0))
        L.append(I(f"v_cndmask_b32 v{P+6}, v{vP6}, v{P+6}, vcc"))
        L.append(I(f"v_cndmask_b32 v{P+7}, v{vP7}, v{P+7}, vcc"))
        if not isv: L.append(store(P + 4, sQKoff, 1024))
        else:
            for q in range(4):
                if q: L.append(I(f"v_xor_b32 v{vV4}, {16*q}, v{vV1}"))
                L.append((lambda q=q: a.ds_op(f"ds_write_b64 v{vV4 if q else vV1}, v[{P+2*q}:{P+2*q+1}]", "vw"), 4))
            L += [(lambda: None, 8)] * 2
            L.append((lambda: a.ds_wait("vw"), 0))
            for q in range(4):
                L.append((lambda q=q: a.ds_op(f"ds_read_b64_tr_b16 v[{acc+2*q}:{acc+2*q+1}], v{vV3 if q % 2 else vV2} offset:{512*q}", "vr"), 4))
            L += [(lambda: None, 8)] * 2
            L.append((lambda: a.ds_wait("vr"), 0))
            L.append(store(acc, sQKoff, 0))
            L.append(store(acc + 4, sQKoff, 1024))
        L.append(I(f"s_add_u32 s{sQKoff}, s{sQKoff}, {64*2048}"))
        return L
    B1, B2 = opt.get("b1", 12), opt.get("b2", 12)
    if opt.get("yprio"):
        e(f"s_cmp_lt_u32 s{sW}, 4")
        e(f"s_cbranch_scc1 L_yp")
        e(f"s_setprio 1")
        a.label("L_yp")
    xread(4)
    for f in wreads(0) + wreads(1): f()
    if opt.get("wpf", 1) == 2:
        e(f"s_cmp_ge_u32 s{sW}, 4")
        e(f"s_cbranch_scc1 L_wp")
        a.skip_begin(); wpf(); a.skip_end()
        a.label("L_wp")
    a.vm_op(f"buffer_store_dword v{T0}, v{vStat}, {S(rWS)}, s{sStat} offen", "stat")
    a.vm_op(f"buffer_store_dword v{T0+1}, v{T0+2}, {S(rWS)}, s{sStat} offen", "stat")
    assert not kloop(0, deferred(), 16)
    padat("r0")
    sp.stamp("r0")
    e(f"s_cmp_lt_u32 s{sCOL}, 8")
    e(f"s_cbranch_scc1 L_pqk")
    e(f"s_cmp_lt_u32 s{sCOL}, 12")
    e(f"s_cbranch_scc1 L_pv")
    saved = (list(a.vm), list(a.lg), list(tw_state), dma_next[0], list(a.hist), list(window), [list(p) for p in pending], sp.n)
    ends = []
    for nm, ex in (("f", lambda: epiF(AA, sQKoff)), ("L_pqk", lambda: epiQKV(AA, False) + epiQKV(AA + 16, False)),
                   ("L_pv", lambda: epiQKV(AA, True) + epiQKV(AA + 16, True))):
        if nm != "f": a.label(nm)
        a.vm, a.lg = list(saved[0]), list(saved[1]); tw_state[:] = saved[2]; dma_next[0] = saved[3]; a.hist = list(saved[4])
        window[:] = saved[5]; pending[:] = [list(p) for p in saved[6]]; sp.set(saved[7])
        sigq[0] = nm != "f"
        nst0 = [0]
        exl = consts() + ex()
        if nm != "f":
            exl.append((lambda: nst0.__setitem__(0, 1), 0))
            _pb = period_barrier
        rest = kloop(1, exl, {"f": B1, "L_pqk": opt.get("b1q", 32), "L_pv": opt.get("b1v", 32)}[nm], hooks={(VEND + 1) * 4 - 2 - 28 - 1: (lambda: None) if nm == "f" else (lambda: (_ for _ in ()).throw(AssertionError("qkv epilogue too late")) if not nst0[0] else None)})
        for f, c in rest: f()
        ends.append(([t for t in a.vm if t != "st"], list(a.lg), list(tw_state), dma_next[0], list(window), [list(p) for p in pending]))
        if nm != "L_pv": e("s_branch L_r2")
    assert ends[0][1:] == ends[1][1:] == ends[2][1:], ends
    a.vm = min((x[0] for x in ends), key=len)
    assert all(x[0][len(x[0])-len(a.vm):] == a.vm for x in ends)
    a.label("L_r2")
    e("s_nop 1")
    padat("r1")
    sp.stamp("r1"); sp.stamp("r1", lvl=5, nowait=True)
    K0, Q, KV, O, Sx, P, T = 16, 24, 56, 128, 192, 224, 240
    ATT_LDS, WO_LDS = 49152, 98304
    sX, sJ = 54, 55
    sHead, sQB, sKV, sRun = 62, 63, 64, 58
    sWq, sTB, sCB, sWo, sLB = 62, 63, 64, 58, 66
    vD, vPoll, vStV = vD0, vDum + 4, vD0
    rW = rA
    rK, rV = rA, rB
    NE = 3
    QX = 147456
    def kvload(i):
        for k in range(4):
            r = KV + 16 * i + 4 * k
            a.vm_op(f"buffer_load_dwordx4 v[{r}:{r+3}], v{vSt}, {S(rK if k < 2 else rV)}, s{sRun} offen offset:{1024*(k%2)}{LD}", f"kv{i}")
        e(f"s_add_u32 s{sRun}, s{sRun}, 2048")
        e(f"s_and_b32 s{sRun}, s{sRun}, 0x1ffff")
    e(f"s_and_b32 s{sX}, s2, 7")
    e(f"s_lshr_b32 s{sJ}, s2, 3")
    check_flag(vDum + 2)
    e(f"s_cmp_lt_u32 s{sW}, 4")
    e(f"s_cbranch_scc1 L_att")
    join = (list(a.vm), list(a.lg), list(a.hist), list(window), sp.n)
    e(f"s_setprio {opt.get('r2prio', 2)}")
    rest = kloop(2, epiF(AB, sHoff), B2)
    sp.stamp("r2")
    for f, c in rest: f()
    for t in range(2):
        for q in range(2):
            for f, c in silu4(AA + 16*t + 4*q, AA + 16*t + 8 + 4*q, T0 + 4*q, T0 + 8 + 4*t + 2*q): f()
        store(T0 + 8 + 4*t, sHoff2, 1024*t)[0]()
    e(f"s_branch L_gemm")
    nst = sp.n
    a.label("L_att")
    a.vm, a.lg, a.hist = list(join[0]), list(join[1]), list(join[2]); sp.set(join[4])
    for c in join[3]: a.vm.extend([f"c{c}", f"c{c}"])
    e(f"s_setprio {opt.get('attprio0', 3)}")
    e(f"s_and_b32 s{sT1}, s{sJ}, 1")
    e(f"s_lshl1_add_u32 s{sHead}, s{sX}, s{sT1}")
    e(f"v_min_u32 v{vPoll}, 2, v{vLane}")
    e(f"v_lshlrev_b32 v{vPoll}, 9, v{vPoll}")
    e(f"s_lshr_b32 s{sT1}, s{sHead}, 2")
    e(f"v_lshl_add_u32 v{vPoll}, s{sT1}, 7, v{vPoll}")
    e(f"s_mov_b32 s{sT3}, {CNT_OFF}")
    a.vm_op(f"buffer_load_dword v{vDum+3}, v{vPoll}, {S(rWS)}, s{sT3} offen sc1", "poll")
    def qload():
        e(f"s_lshl_b32 s{sT1}, s{sHead}, 6")
        e(f"s_lshl2_add_u32 s{sT1}, s{sQB}, s{sT1}")
        e(f"s_add_u32 s{sT1}, s{sT1}, s{sW}")
        e(f"s_lshl_b32 s{sT1}, s{sT1}, 11")
        a.vm_op(f"buffer_load_dwordx4 v[{Q}:{Q+3}], v{vSt}, {S(rWS)}, s{sT1} offen{LD}", "q")
        a.vm_op(f"buffer_load_dwordx4 v[{Q+4}:{Q+7}], v{vSt}, {S(rWS)}, s{sT1} offen offset:1024{LD}", "q")
        kvload(0)
    e(f"s_lshr_b32 s{sQB}, s{sJ}, 1")
    e(f"s_lshl_b32 s{sKV}, s{sHead}, 17")
    e(f"s_add_u32 s{sKV}, s{sKV}, {KV_OFF}")
    e(f"s_lshl_b32 s{sRun}, s{sW}, 15")
    e(f"s_add_u32 s{sRun}, s{sRun}, 2048")
    e(f"s_add_u32 s{rK}, s{pWS}, s{sKV}")
    e(f"s_addc_u32 s{rK+1}, s{pWS+1}, 0")
    e(f"s_mov_b32 s{rK+2}, 0x20000")
    e(f"s_mov_b32 s{rK+3}, 0x20000")
    e(f"s_add_u32 s{rV}, s{rK}, {2 << 20}")
    e(f"s_addc_u32 s{rV+1}, s{rK+1}, 0")
    e(f"s_mov_b32 s{rV+2}, 0x20000")
    e(f"s_mov_b32 s{rV+3}, 0x20000")
    ep = epiF(AB, sHoff)
    n1 = opt.get("ep1", 26)
    a.ds_wait_all()
    for f, c in ep[:n1]: f()
    sp.stamp("ep", lvl=5, nowait=True)
    a.vm_wait("poll")
    sp.stamp("pl", lvl=5, nowait=True)
    e(f"v_cmp_gt_u32 s[74:75], 16, v{vDum+3}")
    e(f"s_cmp_eq_u64 s[74:75], 0")
    e(f"s_cbranch_scc1 L_e2ok")
    sv = (list(a.vm), list(a.hist))
    for f, c in ep[n1:]: f()
    e("s_barrier")
    poll(vPoll, vDum + 3, 16, 1)
    qload(); e("s_waitcnt vmcnt(0)"); e(f"s_branch L_e2j")
    a.label("L_e2ok")
    a.vm, a.hist = sv
    sp.stamp("r2"); sp.stamp("ok", lvl=5, nowait=True)
    qload()
    for f, c in ep[n1:]: f()
    sp.stamp("ep2", lvl=5, nowait=True)
    e("s_barrier")
    a.label("L_e2j")
    kvload(1); kvload(2)
    sFlag, sIt, sOoff = 59, 60, 61
    e(f"s_mov_b32 s{sFlag}, 0")
    e(f"s_lshl2_add_u32 s{sOoff}, s{sQB}, s{sW}")
    e(f"s_lshl4_add_u32 s{sOoff}, s{sOoff}, s{sHead}")
    e(f"s_lshl_b32 s{sOoff}, s{sOoff}, 11")
    e(f"s_add_u32 s{sOoff}, s{sOoff}, {O_OFF}")
    for jj in range(4):
        e(f"s_add_u32 s{sT1}, s{sW}, {jj}")
        e(f"s_and_b32 s{sT1}, s{sT1}, 3")
        e(f"s_lshl_b32 s{sT1}, s{sT1}, 11")
        e(f"s_add_u32 s{sT1}, s{sT1}, {QX}")
        e(f"v_add_u32 v{T+2+jj}, s{sT1}, v{vSt}")
    sp.stamp("pre", lvl=5, nowait=True)
    a.vm_wait("kv0")
    sp.stamp("kv0", lvl=5, nowait=True)
    e(f"v_mfma_f32_32x32x16_bf16 v[{Sx}:{Sx+15}], v[{KV}:{KV+3}], v[{Q}:{Q+3}], 0")
    e(f"v_mfma_f32_32x32x16_bf16 v[{Sx}:{Sx+15}], v[{KV+4}:{KV+7}], v[{Q+4}:{Q+7}], v[{Sx}:{Sx+15}]")
    sp.stamp("qkv")
    def qk(n, half):
        i, j = (n // 4) % 4, n % 4
        d = Sx + 16 * (n % 2); k = KV + 16 * i + 4 * half; q = Q + 8 * j + 4 * half
        c = "0" if half == 0 else f"v[{d}:{d+15}]"
        e(f"v_mfma_f32_32x32x16_bf16 v[{d}:{d+15}], v[{k}:{k+3}], v[{q}:{q+3}], {c}")
    def pv(n, half):
        i, j = (n // 4) % 4, n % 4
        d = O + 16 * j; v = KV + 16 * i + 8 + 4 * half; p = P + 8 * (n % 2) + 4 * half
        e(f"v_mfma_f32_32x32x16_bf16 v[{d}:{d+15}], v[{v}:{v+3}], v[{p}:{p+3}], v[{d}:{d+15}]")
    def sm(n, g):
        s = Sx + 16 * (n % 2) + 4 * g; p = P + 8 * (n % 2) + 2 * g
        for k in range(4): e(f"v_exp_f32 v{s+k}, v{s+k}")
        e(f"v_cvt_pk_bf16_f32 v{p}, v{s}, v{s+1}")
        e(f"v_cvt_pk_bf16_f32 v{p+1}, v{s+2}, v{s+3}")
    M = T + 8
    def patch(jjs, bias):
        U = M + 4
        for jj in jjs: e(f"v_mov_b32 v{U+jj}, v{M+jj}")
        for jj in jjs: e(f"v_permlane32_swap_b32 v{M+jj}, v{U+jj}")
        for jj in jjs: e(f"v_max_f32 v{M+jj}, v{M+jj}, v{U+jj}")
        for jj in jjs: e(f"v_sub_f32 v{M+jj}, {hexf(-bias) if bias else 0}, v{M+jj}")
        for jj in jjs: e(f"v_cvt_pk_bf16_f32 v{U+jj}, v{M+jj}, v{M+jj}")
        for jj in jjs: e(f"v_and_b32 v{U+jj}, 0xffff0000, v{U+jj}")
        for jj in jjs: e(f"v_sub_f32 v{U+jj}, v{M+jj}, v{U+jj}")
        for jj in jjs: e(f"v_cvt_pk_bf16_f32 v{M+jj}, v{M+jj}, v{U+jj}")
        for jj in jjs: e(f"v_cndmask_b32 v{Q+8*jj+6}, v{M+jj}, v{Q+8*jj+6}, vcc")
        for jj in jjs: e(f"v_and_b32 v{M+jj}, 0xffff0000, v{M+jj}")
        for jj in jjs: e(f"v_sub_f32 v{U+jj}, v{U+jj}, v{M+jj}")
        for jj in jjs: e(f"v_cvt_pk_bf16_f32 v{U+jj}, v{U+jj}, 0")
        for jj in jjs: e(f"v_cndmask_b32 v{Q+8*jj+7}, v{U+jj}, v{Q+8*jj+7}, vcc")
    for k in range(4): e(f"v_max3_f32 v{M+4+k}, v{Sx+4*k}, v{Sx+4*k+1}, v{Sx+4*k+2}")
    for k in range(2): e(f"v_max3_f32 v{M+4+2*k}, v{M+4+2*k}, v{M+5+2*k}, v{Sx+8*k+3}")
    e(f"v_max3_f32 v{M}, v{Sx+7}, v{Sx+15}, v{M+4}")
    e(f"v_max_f32 v{M}, v{M}, v{M+6}")
    patch([0], BIAS)
    a.ds_op(f"ds_write_b128 v{T+2}, v[{Q}:{Q+3}]")
    a.ds_op(f"ds_write_b128 v{T+2}, v[{Q+4}:{Q+7}] offset:1024")
    lds_sync(1, 4, T, T + 1, lambda: (qk(0, 0), qk(0, 1)))
    for jj in range(1, 4):
        a.ds_op(f"ds_read_b128 v[{Q+8*jj}:{Q+8*jj+3}], v{T+2+jj}")
        a.ds_op(f"ds_read_b128 v[{Q+8*jj+4}:{Q+8*jj+7}], v{T+2+jj} offset:1024")
    e("s_waitcnt vmcnt(8)")
    last_signals(0, 8, sRB, 12, T, T + 1)
    lds_arrive(2, T, T + 1)
    e(f"s_setprio {opt.get('attprio', 1)}")
    a.vm = []
    padat("preloop")
    sp.stamp("preloop"); sp.stamp("preloop", lvl=5)
    def pv0(n, half):
        i, j = (n // 4) % 4, n % 4
        d = O + 16 * j; v = KV + 16 * i + 8 + 4 * half; p = P + 8 * (n % 2) + 4 * half
        c = "0" if (n < 4 and half == 0) else f"v[{d}:{d+15}]"
        e(f"v_mfma_f32_32x32x16_bf16 v[{d}:{d+15}], v[{v}:{v+3}], v[{p}:{p+3}], {c}")
    def owrite(jj):
        for q in range(4):
            r = O + 16 * jj + 4 * q
            a.ds_op(f"ds_write_b128 v{T+jj}, v[{r}:{r+3}] offset:{(jj-1)*4096 + q*1024}")
    for jj in range(4):
        e(f"s_add_u32 s{sT1}, s{sW}, {jj}")
        e(f"s_and_b32 s{sT1}, s{sT1}, 3")
        e(f"s_mul_i32 s{sT1}, s{sT1}, 12288")
        e(f"s_add_u32 s{sT1}, s{sT1}, {ATT_LDS}")
        e(f"v_add_u32 v{T+jj}, s{sT1}, v{vSt}")
    a.raw(".p2align 6")
    for n in range(64):
        ti, j = divmod(n, 4)
        if j == 3 and ti < 15: e(f"s_waitcnt vmcnt({4 * min(2, 14 - ti)})")
        if n + 1 < 64: qk(n + 1, 0)
        sm(n, 0)
        if n + 1 < 64: qk(n + 1, 1)
        sm(n, 1)
        if n: pv0(n - 1, 0)
        sm(n, 2)
        if n: pv0(n - 1, 1)
        if j == 0 and ti + 3 < 16:
            for k in range(4):
                r = KV + 16 * ((ti + 3) % 4) + 4 * k
                e(f"buffer_load_dwordx4 v[{r}:{r+3}], v{vSt}, {S(rK if k < 2 else rV)}, s{sRun} offen offset:{2048*(ti%2) + 1024*(k%2)}{LD}")
            if ti % 2:
                e(f"s_add_u32 s{sRun}, s{sRun}, 4096")
                e(f"s_and_b32 s{sRun}, s{sRun}, 0x1ffff")
        if n == 60:
            e(f"v_mov_b32 v{T+4}, {SYNC}")
            a.ds_op(f"ds_read_b32 v{T+5}, v{T+4}", "chk")
        if n == 63:
            lds_check(0, 8, T + 4, T + 5)
            owrite(1)
        sm(n, 3)
    pv0(63, 0); pv0(63, 1)
    owrite(2)
    padat("loop")
    sp.stamp("loop"); sp.stamp("loop", lvl=4)
    a.vm = []
    owrite(3)
    sp.stamp("wr", lvl=4)
    lds_sync(7, 4, T + 4, T + 5)
    sp.stamp("sy", lvl=4)
    for p in range(3):
        for q in range(4):
            r = O + 16 + 16 * p + 4 * q
            a.ds_op(f"ds_read_b128 v[{r}:{r+3}], v{T} offset:{p*4096 + q*1024}", f"p{p}")
    for p in range(3):
        a.ds_wait(f"p{p}")
        for k in range(16): e(f"v_add_f32 v{O+k}, v{O+k}, v{O+16+16*p+k}")
    sp.stamp("rd", lvl=4)
    a.label("L_norm")
    e(f"v_mov_b32 v{T}, v{O+12}")
    e(f"v_mov_b32 v{T+1}, v{O+12}")
    e(f"v_permlane32_swap_b32 v{T}, v{T+1}")
    e(f"v_rcp_f32 v{T}, v{T+1}")
    e(f"v_mov_b32 v{T+2}, 0")
    for k in range(16): e(f"v_mul_f32 v{O+k}, v{O+k}, v{T}")
    for k in range(8): e(f"v_cvt_pk_bf16_f32 v{P+k}, v{O+2*k}, v{O+2*k+1}")
    e(f"v_cndmask_b32 v{P+6}, 0, v{P+6}, vcc")
    e(f"v_cndmask_b32 v{P+7}, 0, v{P+7}, vcc")
    e(f"buffer_store_dwordx4 v[{P}:{P+3}], v{vSt}, {S(rWS)}, s{sOoff} offen{ST}")
    e(f"buffer_store_dwordx4 v[{P+4}:{P+7}], v{vSt}, {S(rWS)}, s{sOoff} offen offset:1024{ST}")
    for k in range(16): e(f"v_fmac_f32 v{T+2}, 0, v{O+k}")
    e(f"v_mov_b32 v{T+3}, {hexf(2.0**-(BIAS+8))}")
    e(f"v_cmp_u_f32 s[66:67], v{T+2}, v{T+2}")
    e(f"v_cmp_lt_f32 s[74:75], v{T+1}, v{T+3}")
    e(f"s_or_b64 s[66:67], s[66:67], s[74:75]")
    e(f"s_cmp_eq_u64 s[66:67], 0")
    e(f"s_cselect_b32 s{sT1}, 1, s{sFlag}")
    e(f"s_cmp_eq_u32 s{sT1}, 0")
    e(f"s_cbranch_scc1 L_slow")
    sp.stamp("chk", lvl=4)
    e(f"s_waitcnt vmcnt(0)")
    sp.stamp("ost"); sp.stamp("ost", lvl=4)
    e(f"s_lshl2_add_u32 s{sT2}, s{sQB}, s{sW}")
    e(f"s_lshr_b32 s{sT3}, s{sHead}, 2")
    e(f"s_lshl2_add_u32 s{sT2}, s{sT2}, s{sT3}")
    signal(sT2, 28, T + 4, T + 5)
    lds_arrive(9, T + 6, T + 7)
    hdiag(0)
    sp.dump(pWS, sW)
    e("s_endpgm")
    a.label("L_slow")
    a.reset_hist()
    e(f"s_waitcnt vmcnt(0)")
    e(f"s_mov_b32 s{sFlag}, 1")
    e(f"s_mov_b32 s{rK+2}, 0x20000")
    e(f"s_mov_b32 s{rV+2}, 0x20000")
    e(f"v_cndmask_b32 v{Q+6}, 0, v{Q+6}, vcc")
    e(f"v_cndmask_b32 v{Q+7}, 0, v{Q+7}, vcc")
    e(f"v_mov_b32 v{M}, 0xff800000")
    e(f"s_mov_b32 s{sRun}, 0")
    e(f"s_mov_b32 s{sIt}, 64")
    a.label("L_s1")
    start = len(a.lines)
    e(f"buffer_load_dwordx4 v[{KV}:{KV+3}], v{vSt}, {S(rK)}, s{sRun} offen{LD}")
    e(f"buffer_load_dwordx4 v[{KV+4}:{KV+7}], v{vSt}, {S(rK)}, s{sRun} offen offset:1024{LD}")
    e("s_waitcnt vmcnt(0)")
    e(f"v_mfma_f32_32x32x16_bf16 v[{Sx}:{Sx+15}], v[{KV}:{KV+3}], v[{Q}:{Q+3}], 0")
    e(f"v_mfma_f32_32x32x16_bf16 v[{Sx}:{Sx+15}], v[{KV+4}:{KV+7}], v[{Q+4}:{Q+7}], v[{Sx}:{Sx+15}]")
    for k in range(8): e(f"v_max3_f32 v{M}, v{M}, v{Sx+2*k}, v{Sx+2*k+1}")
    e(f"s_add_u32 s{sRun}, s{sRun}, 2048")
    e(f"s_sub_u32 s{sIt}, s{sIt}, 1")
    e(f"s_cmp_lg_u32 s{sIt}, 0")
    e("s_cbranch_scc1 L_s1")
    check_loop(a.lines[start:])
    patch([0], 0.0)
    for r in range(16): e(f"v_mov_b32 v{O+r}, 0")
    e(f"s_mov_b32 s{sRun}, 0")
    e(f"s_mov_b32 s{sIt}, 64")
    a.label("L_s2")
    start = len(a.lines)
    for k in range(4):
        e(f"buffer_load_dwordx4 v[{KV+4*k}:{KV+4*k+3}], v{vSt}, {S(rK if k < 2 else rV)}, s{sRun} offen offset:{1024*(k%2)}{LD}")
    e("s_waitcnt vmcnt(0)")
    qk(0, 0); qk(0, 1)
    for g in range(4): sm(0, g)
    pv(0, 0); pv(0, 1)
    e(f"s_add_u32 s{sRun}, s{sRun}, 2048")
    e(f"s_sub_u32 s{sIt}, s{sIt}, 1")
    e(f"s_cmp_lg_u32 s{sIt}, 0")
    e("s_nop 11")
    e("s_cbranch_scc1 L_s2")
    check_loop(a.lines[start:])
    e("s_branch L_norm")
    a.label("L_gemm")
    a.reset_hist(); a.vm = []; a.lg = []; sp.set(nst)
    ACCG, HR, WFR, T, WO_F, XF, GF = 16, 80, 136, 152, 160, 224, 136
    OF = HR
    GF = 240
    vA0, vA1, vIO, vCt = 4, 5, 6, 7
    sH0, sH1, sI0 = 59, 60, 61
    DP = opt.get("gdepth", 5)
    PACE = opt.get("pace", 4)
    def pace():
        nonlocal PACE
        if PACE and len(a.vm) > PACE:
            e(f"s_waitcnt vmcnt({PACE})"); a.vm = a.vm[-PACE:]
    e(f"s_setprio 2")
    e(f"s_waitcnt vmcnt(0)")
    last_signals(0, 8, sRB, 12, T, T + 1)
    e(f"s_cmp_ge_u32 s{sJ}, 28")
    e(f"s_cbranch_scc1 L_end")
    e(f"s_setprio {opt.get('gprio0', 2)}")
    lds_sync(3, 4, T, T + 1)
    srd(a, rW, pWO, WO_BYTES)
    e(f"s_sub_u32 s{sWq}, s{sW}, 4")
    e(f"s_mul_i32 s{sT1}, s{sJ}, 37")
    e(f"s_lshr_b32 s{sT1}, s{sT1}, 8")
    e(f"s_mul_i32 s{sT2}, s{sT1}, 7")
    e(f"s_sub_u32 s{sCB}, s{sJ}, s{sT2}")
    e(f"s_lshl2_add_u32 s{sTB}, s{sX}, s{sT1}")
    e(f"s_lshl_b32 s{sCB}, s{sCB}, 7")
    e(f"s_mul_i32 s{sLB}, s{sWq}, 12288")
    dma_voff(a, vLane, vD, T, T + 1)
    e(f"v_and_b32 v{T}, 31, v{vLane}")
    e(f"v_mul_u32_u24 v{T}, 896, v{T}")
    e(f"v_lshrrev_b32 v{T+1}, 5, v{vLane}")
    e(f"v_lshl_add_u32 v{vIO}, v{T+1}, 3, v{T}")
    e(f"s_and_b32 s{sT1}, s{sWq}, 1")
    e(f"s_lshl1_add_u32 s{sT3}, s{sTB}, s{sT1}")
    e(f"s_mul_i32 s{sI0}, s{sT3}, {32*896}")
    e(f"s_add_u32 s{sI0}, s{sI0}, s{sCB}")
    e(f"s_lshr_b32 s{sT2}, s{sWq}, 1")
    e(f"s_lshl_b32 s{sT2}, s{sT2}, 6")
    e(f"s_add_u32 s{sI0}, s{sI0}, s{sT2}")
    def issue_w(s):
        st = s % 6
        e(f"s_add_u32 m0, s{sLB}, {st*2048}")
        e(f"s_add_u32 s{sT1}, s{sWo}, {8*896}")
        a.vm_op(f"buffer_load_dwordx4 v{vD}, {S(rB)}, s{sWo} offen lds", f"s{s}")
        e(f"s_add_u32 m0, s{sLB}, {st*2048+1024}")
        e(f"s_add_u32 s{sWo}, s{sWo}, {16*896}")
        a.vm_op(f"buffer_load_dwordx4 v{vD}, {S(rB)}, s{sT1} offen lds", f"s{s}")
    srd(a, rB, pW2, W2_BYTES)
    e(f"s_mul_i32 s{sWo}, s{sWq}, {448*896}")
    e(f"s_add_u32 s{sWo}, s{sWo}, s{sCB}")
    for s in range(6): issue_w(s); pace()
    e(f"s_mul_i32 s{sH0}, s{sT3}, 112")
    e(f"s_xor_b32 s{sT3}, s{sT3}, 1")
    e(f"s_mul_i32 s{sH1}, s{sT3}, 112")
    e(f"s_mul_i32 s{sT1}, s{sWq}, 28")
    e(f"s_add_u32 s{sT1}, s{sT1}, {H_OFF >> 10}")
    e(f"s_add_u32 s{sH0}, s{sH0}, s{sT1}")
    e(f"s_add_u32 s{sH1}, s{sH1}, s{sT1}")
    e(f"s_lshl_b32 s{sH0}, s{sH0}, 10")
    e(f"s_lshl_b32 s{sH1}, s{sH1}, 10")
    e(f"s_xor_b32 s{sT2}, s{sT2}, s{sLB}")
    tr_addr(a, vLane, vA0, vA1, T, T + 1, T + 2, sT2, xor=True)
    def wr(s, d0, off, wait=True):
        if wait: a.vm_wait(f"s{s}")
        for ct in range(2):
            d = d0 + ct * 4
            ad = vA0 if ct == 0 else vA1
            a.ds_op(f"ds_read_b64_tr_b16 v[{d}:{d+1}], v{ad} offset:{off}", f"w{s}")
            a.ds_op(f"ds_read_b64_tr_b16 v[{d+2}:{d+3}], v{ad} offset:{off+1024}", f"w{s}")
    e(f"s_lshr_b32 s{sT1}, s{sTB}, 1")
    e(f"s_lshl_b32 s{sT1}, s{sT1}, 7")
    e(f"s_add_u32 s{sT1}, s{sT1}, {12*128}")
    e(f"v_mov_b32 v{vCt}, s{sT1}")
    def issue_h(s):
        st = s % 6
        off = (s % 4) * 1024
        a.vm_op(f"buffer_load_dwordx4 v[{HR+8*st}:{HR+8*st+3}], v{vSt}, {S(rWS)}, s{sH0} offen offset:{off}{LD}", f"s{s}")
        a.vm_op(f"buffer_load_dwordx4 v[{HR+8*st+4}:{HR+8*st+7}], v{vSt}, {S(rWS)}, s{sH1} offen offset:{off}{LD}", f"s{s}")
        if s % 4 == 3:
            e(f"s_add_u32 s{sH0}, s{sH0}, 4096")
            e(f"s_add_u32 s{sH1}, s{sH1}, 4096")
    e(f"s_cmp_lg_u32 s{sWq}, 0")
    e(f"s_cbranch_scc1 L_hw")
    poll(vCt, T + 1, 16, opt.get("hsleep", 4))
    lds_arrive(8, T, T + 1)
    a.label("L_hw")
    lds_spin(2, 4, T, T + 1, 3)
    lds_spin(8, 1, T, T + 1, 3)
    e(f"s_waitcnt vmcnt(0)")
    sp.stamp("hrdy")
    for s in range(DP): issue_h(s)
    e(f"s_setprio {opt.get('gprio', 0)}")
    def mm(s, w, h):
        for ct in range(2):
            for tt in range(2):
                d = ACCG + (2*ct+tt) * 16
                c = "0" if s == 0 else f"v[{d}:{d+15}]"
                e(f"v_mfma_f32_32x32x16_bf16 v[{d}:{d+15}], v[{w+4*ct}:{w+4*ct+3}], v[{h+4*tt}:{h+4*tt+3}], {c}")
    wr(0, WFR, 0)
    XG = 144
    late = []
    def wo_first():
        e(f"s_mul_i32 s{sH0}, s{sWq}, 15360")
        e(f"s_mul_i32 s{sWo}, s{sWq}, {112*896}")
        e(f"s_add_u32 s{sWo}, s{sWo}, s{sCB}")
    def wo_dma(i):
        if i == 0: wo_first()
        e(f"s_add_u32 m0, s{sH0}, {WO_LDS + i*1024}")
        if i: e(f"s_add_u32 s{sWo}, s{sWo}, {8*896}")
        a.vm_op(f"buffer_load_dwordx4 v{vD}, {S(rW)}, s{sWo} offen lds", "wo")
    XG = XF + 8
    for i in range(15): late.append(lambda i=i: wo_dma(i))
    for q in range(4):
        late.append(lambda q=q: a.vm_op(f"buffer_load_dwordx2 v[{XG+2*q}:{XG+2*q+1}], v{vIO}, {S(rX)}, s{sI0} offen offset:{16*q}", "xg"))
    TOP = opt.get("gtop", 0)
    for s in range(28):
        if TOP and s > 0:
            if s + 1 < 28: a.vm_wait(f"s{s+1}")
            if 6 <= s + DP - 1 < 28: issue_w(s + DP - 1)
            if s + DP - 1 < 28: issue_h(s + DP - 1)
        if s + 1 < 28: wr(s + 1, WFR + ((s + 1) % 2) * 8, ((s + 1) % 6) * 2048)
        a.ds_wait(f"w{s}")
        if not opt.get("x_nogm") or s == 0: mm(s, WFR + (s % 2) * 8, HR + 8 * (s % 6))
        if opt.get("x_nogl") or TOP: continue
        if 6 <= s + DP < 28: issue_w(s + DP)
        if s + DP < 28: issue_h(s + DP)
        else:
            for _ in range(4):
                if late: late.pop(0)()
    while late: late.pop(0)()
    sp.stamp("w2")
    e(f"s_setprio {opt.get('gprio3', 0)}")
    def exchange(k):
        e(f"v_add_u32 v{T}, s{sLB}, v{vSt}")
        for sl in range(1, 4):
            for q in range(4):
                r = ACCG + 16 * sl + 4 * q
                a.ds_op(f"ds_write_b128 v{T}, v[{r}:{r+3}] offset:{(sl-1)*4096 + q*1024}")
            e(f"s_xor_b32 s{sT1}, s{sWq}, {sl}")
            e(f"s_mul_i32 s{sT1}, s{sT1}, 12288")
            e(f"v_add_u32 v{T+2+sl}, s{sT1}, v{vSt}")
        if k == 6: sp.stamp("wr", lvl=4)
        lds_sync(k, 4, T + 1, T + 2)
        if k == 6: sp.stamp("sy", lvl=4)
        for p in range(3):
            for q in range(4):
                r = ACCG + 16 + 16 * p + 4 * q
                a.ds_op(f"ds_read_b128 v[{r}:{r+3}], v{T+3+p} offset:{p*4096 + q*1024}", f"p{p}")
        for p in range(3):
            a.ds_wait(f"p{p}")
            for kk in range(16): e(f"v_add_f32 v{ACCG+kk}, v{ACCG+kk}, v{ACCG+16+16*p+kk}")
    exchange(4)
    U = ACCG + 16
    for k in range(16): e(f"v_mul_f32 v{U+k}, {hexf(-LOG2E)}, v{ACCG+k}")
    for k in range(16): e(f"v_exp_f32 v{U+k}, v{U+k}")
    for k in range(16): e(f"v_add_f32 v{U+k}, 1.0, v{U+k}")
    for k in range(16): e(f"v_rcp_f32 v{U+k}, v{U+k}")
    for k in range(16): e(f"v_mul_f32 v{GF+k}, v{ACCG+k}, v{U+k}")
    e(f"s_mul_i32 s{sT2}, s{sWq}, 15360 - 12288")
    e(f"s_add_u32 s{sT2}, s{sT2}, {WO_LDS}")
    e(f"v_add_u32 v{vA0}, s{sT2}, v{vA0}")
    e(f"v_add_u32 v{vA1}, s{sT2}, v{vA1}")
    a.vm_wait("xg")
    for s in range(8):
        wr(100 + s, WO_F + 8 * s, (28 * (s // 2) + 16 * (s % 2)) * 128, wait=False)
    for k in range(8):
        if k < 7:
            e(f"v_lshlrev_b32 v{XF+2*k}, 16, v{XG+k}")
            e(f"v_and_b32 v{XF+2*k+1}, 0xffff0000, v{XG+k}")
        else:
            e(f"v_lshlrev_b32 v{XF+14}, 16, v{XG+7}")
            e(f"v_and_b32 v{XF+15}, 0xffff0000, v{XG+7}")
    a.ds_wait_all()
    lds_sync(5, 4, T + 1, T + 2)
    srd(a, rW3, pOUT, X_BYTES)
    e(f"s_and_b32 s{sT1}, s{sWq}, 1")
    e(f"s_lshl1_add_u32 s{sT1}, s{sTB}, s{sT1}")
    e(f"s_lshl_b32 s{sH0}, s{sT1}, 15")
    e(f"s_lshl_b32 s{sT1}, s{sWq}, 13")
    e(f"s_add_u32 s{sH0}, s{sH0}, s{sT1}")
    e(f"s_add_u32 s{sH0}, s{sH0}, {O_OFF}")
    e(f"s_xor_b32 s{sH1}, s{sH0}, 32768")
    e(f"v_min_u32 v{T}, 1, v{vLane}")
    e(f"v_lshlrev_b32 v{T}, 2, v{T}")
    e(f"s_lshl3_add_u32 s{sT1}, s{sTB}, s{sWq}")
    e(f"s_add_u32 s{sT1}, s{sT1}, 28")
    e(f"v_add_lshl_u32 v{vCt}, v{T}, s{sT1}, 7")
    e(f"v_lshrrev_b32 v{T}, 5, v{vLane}")
    e(f"v_lshl_add_u32 v{vIO}, v{T}, 3, v{vIO}")
    sp.stamp("grdy")
    lds_spin(9, 4, T, T + 1, 3)
    e(f"s_setprio 2")
    poll(vCt, T + 1, 4, opt.get("osleep", 1))
    sp.stamp("ordy"); sp.stamp("ordy", lvl=4)
    for s in range(8):
        if s == 4:
            e(f"s_add_u32 s{sH0}, s{sH0}, 4096")
            e(f"s_add_u32 s{sH1}, s{sH1}, 4096")
        a.vm_op(f"buffer_load_dwordx4 v[{OF+8*s}:{OF+8*s+3}], v{vSt}, {S(rWS)}, s{sH0} offen offset:{(s%4)*1024}{LD}", f"o{s}")
        a.vm_op(f"buffer_load_dwordx4 v[{OF+8*s+4}:{OF+8*s+7}], v{vSt}, {S(rWS)}, s{sH1} offen offset:{(s%4)*1024}{LD}", f"o{s}")
    sp.stamp("oiss", lvl=4, nowait=True)
    for s in range(8):
        a.vm_wait(f"o{s}")
        if s in (0, 7): sp.stamp("o", lvl=4, nowait=True)
        mm(s, WO_F + 8 * s, OF + 8 * s)
    exchange(6)
    sp.stamp("ex", lvl=4)
    for k in range(16): e(f"v_fma_f32 v{ACCG+k}, v{ACCG+k}, v{GF+k}, v{XF+k}")
    for k in range(8): e(f"v_cvt_pk_bf16_f32 v{U+k}, v{ACCG+2*k}, v{ACCG+2*k+1}")
    for pr in range(2):
        e(f"v_permlane32_swap_b32 v{U+4*pr}, v{U+4*pr+2}")
        e(f"v_permlane32_swap_b32 v{U+4*pr+1}, v{U+4*pr+3}")
    e(f"buffer_store_dwordx4 v[{U}:{U+3}], v{vIO}, {S(rW3)}, s{sI0} offen{opt.get('ost', '')}")
    e(f"buffer_store_dwordx4 v[{U+4}:{U+7}], v{vIO}, {S(rW3)}, s{sI0} offen offset:32{opt.get('ost', '')}")
    hdiag(1)
    if opt.get("padg"):
        e("v_mov_b32 v0, 0")
        e(f"global_load_dword v0, v0, s[{pDBG}:{pDBG+1}] offset:4 sc1")
        e("s_waitcnt vmcnt(0)")
        e("v_readfirstlane_b32 s76, v0")
        e("s_not_b32 s76, s76")
    if opt.get("pad"):
        a.label("L_pad")
        e("s_memrealtime s[80:81]")
        e("s_waitcnt lgkmcnt(0)")
        e("s_sub_u32 s80, s80, s76")
        e(f"s_cmp_lt_u32 s80, {opt['pad']}")
        e("s_cbranch_scc1 L_pad")
    sp.stamp("end"); sp.stamp("end", lvl=4)
    if sp.on == 4: e("s_waitcnt vmcnt(0)")
    sp.stamp("drain", lvl=4)
    sp.dump(pWS, sW)
    a.label("L_end")
    e("s_endpgm")
    return kd(NAME, 256)

if __name__ == "__main__":
    opt = json.loads(sys.argv[2]) if len(sys.argv) > 2 else {}
    a = Asm()
    a.raw("; one workgroup per CU; workgroups hand data over through d_ws (write-through stores + counters)")
    a.raw("; @launch grid=(256,1,1) block=(512,1,1) lds=163840")
    a.raw('.amdgcn_target "amdgcn-amd-amdhsa--gfx950"')
    a.raw(".text")
    k = gen(a, opt)
    a.raw("L_code_end:")
    a.raw(".fill 64, 4, 0xbf800000")
    a.raw("    s_endpgm")
    a.raw('.section .rodata,"a"')
    a.raw(k)
    open(sys.argv[1], "w").write(a.text())
    print("nops inserted:", a.nops, "lines:", len(a.lines))
```

```python
import sys, json
from common import *
from gemm64 import *
BIAS = 32.0
NAME = "recurrent_scan__softmax_full_mha__glu_gated_swiglu__prompt_kernel"

def gen(a, opt):
    BIAS = float(opt.get("bias", 64))
    ST = opt.get("st", " sc1")
    LD = " sc1"
    NPH = opt.get("nph", 2)
    kernel_head(a, NAME)
    e = a.e
    uid = [0]
    def lab(p):
        uid[0] += 1; return f"L_{p}{uid[0]}"
    pX, pWQ, pWO, pW1, pW3, pW2, pOUT, pDBG, pWS = 4, 6, 8, 12, 14, 16, 18, 20, 22
    rX, rW1, rW3, rA, rB, rWS = 24, 28, 32, 36, 40, 44
    S = lambda r: f"s[{r}:{r+3}]"
    sW, sTT, sG, sRB, sCOL, sTTG = 48, 49, 50, 51, 52, 53
    sSO = [[54, 55], [56, 56], [57, 57]]
    sP64, sM0, sCurA, sCurB, sOnes, sLo, sHi, sHoff, sQKoff, sQKstep = 58, 59, 60, 61, 62, 63, 64, 65, 66, 67
    sT1, sT2, sT3, sStat, sPh, sHoff2 = 68, 69, 70, 71, 72, 73
    X0, AA, AB, WF, T0 = 16, 128, 160, 192, 216
    vLane, vSt, vD0, vD1, vD2B = 1, 2, 3, 4, 250
    vTB = [[5, 6], [7, 8], [9, 243]]
    vTW = [10, 11]
    vXR = [12, 13, 14, 15]
    vK, vC1, vSc, vP6, vP7, vFlag, vV3, vV4 = 232, 233, 234, 236, 237, 238, 239, 235
    vXW = [240, 241]; vStat = 242; vNM = 243; vAcc = [244, 245, 246, 247]; vV1, vV2 = 248, 249
    vDum = 251
    RAW = 128
    SCR = 7 * 16384
    SYNC = 163840 - 256
    e("s_cmp_ge_u32 s2, 256")
    e("s_cbranch_scc1 L_end")
    sp = Stamper(a, opt.get("stamp"), 0); sp.allreal = opt.get("rt")
    sp.stamp("rt", True); sp.stamp("start")
    if opt.get("hdiag") or opt.get("pad") or opt.get("padat"): e("s_memrealtime s[76:77]"); e("s_memtime s[78:79]")
    e("s_load_dwordx16 s[4:19], s[0:1], 0")
    e("s_load_dwordx4 s[20:23], s[0:1], 64")
    RL = 3
    sWR, sXa, sXb, sGS = sStat, sOnes, sLo, sHi
    e(f"v_lshrrev_b32 v22, 6, v0")
    e(f"v_and_b32 v{vLane}, 63, v0")
    e(f"v_readfirstlane_b32 s{sW}, v22")
    e(f"s_and_b32 s{sT1}, s2, 1")
    e(f"s_bfe_u32 s{sT2}, s2, 0x30003")
    e(f"s_lshl3_add_u32 s{sRB}, s{sT1}, s{sT2}")
    e(f"s_bfe_u32 s{sT1}, s2, 0x20001")
    e(f"s_lshr_b32 s{sT2}, s2, 6")
    e(f"s_lshl2_add_u32 s{sCOL}, s{sT1}, s{sT2}")
    e(f"v_bfe_u32 v22, v0, 3, 3")
    e(f"v_and_b32 v23, 7, v0")
    e(f"s_lshl_b32 s{sT1}, s{sT2}, 2")
    e(f"s_and_b32 s{sWR}, s{sT1}, 4")
    e(f"s_xor_b32 s{sWR}, s{sWR}, s{sW}")
    e(f"s_and_b32 s{sGS}, s{sT1}, 8")
    e(f"s_lshl3_add_u32 s{sT1}, s{sRB}, s{sWR}")
    e(f"s_lshl4_add_u32 s{sT2}, s{sT1}, s{sGS}")
    e(f"s_xor_b32 s{sT1}, s{sT2}, 8")
    e(f"s_mulk_i32 s{sT2}, 896")
    e(f"s_mulk_i32 s{sT1}, 896")
    e(f"v_mul_u32_u24 v24, 896, v22")
    e(f"v_lshl_add_u32 v24, v23, 4, v24")
    e(f"s_mov_b32 s{rX+2}, {hex(X_BYTES)}")
    e(f"s_mov_b32 s{rX+3}, 0x20000")
    e(f"s_cmp_ge_u32 s{sW}, 4")
    e("s_waitcnt lgkmcnt(0)")
    e(f"s_mov_b64 s[{rX}:{rX+1}], s[{pX}:{pX+1}]")
    def xloads(lo, hi, sa, sb):
        for k in range(lo, hi):
            gi, i = divmod(k, 7)
            r = RAW + k * 4
            e(f"buffer_load_dwordx4 v[{r}:{r+3}], v24, {S(rX)}, s{sa if gi == 0 else sb} offen offset:{i*128}{opt.get('xnt', '')}")
    def touch():
        sh = opt.get("touchsh", 21)
        e(f"v_min_u32 v25, {(WS_USED >> sh) - 1}, v{vLane}")
        e(f"v_lshlrev_b32 v25, {sh}, v25")
        e(f"global_load_dword v{vDum+1}, v25, s[{pWS}:{pWS+1}]")
        e(f"v_mov_b32 v25, 0")
        for p in (pW1, pW3, pWQ, pW2, pWO, pOUT, pDBG):
            e(f"global_load_dword v{vDum+1}, v25, s[{p}:{p+1}]")
    XE = opt.get("xe", 10)
    e(f"s_cbranch_scc1 L_x0")
    a.skip_begin(); xloads(0, XE, sT2, sT1)
    e(f"s_branch L_x1")
    a.label("L_x0")
    e(f"s_getpc_b64 s[74:75]")
    a.label("L_pc")
    e(f"s_add_u32 s74, s74, {NAME}-L_pc")
    e(f"s_addc_u32 s75, s75, -1")
    e(f"s_lshr_b32 s3, s2, 3")
    e(f"s_lshl_b32 s3, s3, 7")
    e(f"v_and_b32 v20, 255, v0")
    e(f"v_lshl_add_u32 v20, v20, 12, s3")
    e(f"v_min_u32 v{vDum}, L_code_end-{NAME}-4, v20")
    e(f"global_load_dword v{vDum}, v{vDum}, s[74:75]")
    if opt.get("touch") == 1: touch()
    a.skip_end()
    a.label("L_x1")
    sp.stamp("xiss", lvl=3)
    e(f"s_mov_b32 s{sXa}, s{sT2}")
    e(f"s_mov_b32 s{sXb}, s{sT1}")
    def padat(nm):
        if opt.get("padat", [None])[0] != nm: return
        l = lab("pa"); a.label(l)
        e("s_memrealtime s[80:81]")
        e("s_waitcnt lgkmcnt(0)"); a.lg = []
        e("s_sub_u32 s80, s80, s76")
        e(f"s_cmp_lt_u32 s80, {opt['padat'][1]}")
        e(f"s_cbranch_scc1 {l}")
    def srd2(d, base, nbytes):
        e(f"s_mov_b64 s[{d}:{d+1}], s[{base}:{base+1}]")
        e(f"s_mov_b32 s{d+2}, {hex(nbytes)}")
        e(f"s_mov_b32 s{d+3}, 0x20000")
    srd2(rWS, pWS, WS_USED)
    e(f"s_or_b32 s{sT3}, s2, s{sW}")
    e(f"s_cbranch_scc1 L_noinit")
    a.skip_begin()
    e(f"v_lshlrev_b32 v25, 7, v{vLane}")
    e(f"v_mov_b32 v26, 0")
    e(f"s_mov_b32 s3, {CNT_OFF}")
    for q in range(5):
        if q: e(f"s_add_u32 s3, s3, 8192")
        e(f"buffer_store_dword v26, v25, {S(rWS)}, s3 offen sc1")
    a.skip_end()
    a.label("L_noinit")
    if opt.get("padg"):
        e("s_cmp_ge_u32 s2, 8")
        e("s_cbranch_scc1 L_pg")
        e(f"s_cmp_lg_u32 s{sW}, 7")
        e("s_cbranch_scc1 L_pg")
        e("s_not_b32 s80, s76")
        e("v_mov_b32 v25, 0"); e("v_mov_b32 v26, s80")
        e(f"global_atomic_umax v25, v26, s[{pDBG}:{pDBG+1}] offset:4 sc1")
        a.label("L_pg")
    e(f"s_and_b32 s{sTT}, s{sW}, 3")
    e(f"s_lshr_b32 s{sG}, s{sW}, 2")
    e(f"s_lshl_b32 s{sM0}, s{sW}, 10")
    e(f"s_lshl_b32 s{sPh}, s{sG}, 1")
    sTc0a, sTc0b = sCurA, sCurB
    e(f"s_cmp_ge_u32 s{sCOL}, 12")
    e(f"s_cbranch_scc1 L_r0f")
    srd2(rA, pWQ, WQ_BYTES)
    e(f"s_mov_b64 s[{rB}:{rB+1}], s[{pWQ}:{pWQ+1}]")
    e(f"s_and_b32 s{sT2}, s{sCOL}, 3")
    e(f"s_mul_i32 s{sSO[0][0]}, s{sCOL}, 224")
    e(f"s_cmp_eq_u32 s{sT2}, 3")
    e(f"s_cselect_b32 s{sT3}, 32, 0")
    e(f"s_sub_u32 s{sSO[0][0]}, s{sSO[0][0]}, s{sT3}")
    e(f"s_add_u32 s{sSO[0][1]}, s{sSO[0][0]}, 128")
    e(f"s_mul_i32 s{sTc0a}, s{sG}, 112")
    e(f"s_add_u32 s{sTc0a}, s{sTc0a}, s{sT3}")
    e(f"s_add_u32 s{sTc0b}, s{sTc0a}, 56")
    e(f"s_movk_i32 s{sP64}, 2688")
    e(f"s_branch L_r0j")
    a.label("L_r0f")
    srd2(rA, pW1, W1_BYTES)
    e(f"s_mov_b64 s[{rB}:{rB+1}], s[{pW3}:{pW3+1}]")
    e(f"s_add_u32 s{sT1}, s{sCOL}, 12")
    e(f"s_lshl_b32 s{sSO[0][0]}, s{sT1}, 7")
    e(f"s_mov_b32 s{sSO[0][1]}, s{sSO[0][0]}")
    e(f"s_lshl_b32 s{sTc0a}, s{sG}, 6")
    e(f"s_add_u32 s{sTc0b}, s{sTc0a}, 128")
    e(f"s_movk_i32 s{sP64}, 3584")
    a.label("L_r0j")
    a.reset_hist()
    e(f"s_mov_b32 s{rB+2}, s{rA+2}")
    e(f"s_mov_b32 s{rB+3}, 0x20000")
    e(f"s_and_b32 s{sT3}, s{sRB}, 7")
    if opt.get("wpf0", 1):
        e(f"s_cmp_{'lt' if opt.get('wpf0', 2) == 1 else 'ge'}_u32 s{sW}, 4")
        e(f"s_cbranch_scc1 L_w0")
        a.skip_begin()
        W0R = opt.get("w0r", 14)
        e(f"s_mul_i32 s{sT2}, s{sTT}, {8*W0R}")
        e(f"s_add_u32 s{sT2}, s{sT2}, s{sT3}")
        e(f"v_min_u32 v30, {W0R-1}, v{vLane}")
        e(f"v_lshl_add_u32 v30, v30, 3, s{sT2}")
        e(f"v_mul_lo_u32 v30, v30, s{sP64}")
        e(f"buffer_load_dword v{vDum+1}, v30, {S(rA)}, s{sSO[0][0]} offen{opt.get('pnt', '')}")
        e(f"buffer_load_dword v{vDum+1}, v30, {S(rB)}, s{sSO[0][1]} offen{opt.get('pnt', '')}")
        a.skip_end()
        a.label("L_w0")
    e(f"v_lshrrev_b32 v25, 2, v{vLane}")
    e(f"v_and_b32 v25, 4, v25")
    e(f"v_xor_b32 v25, v25, v23")
    e(f"v_lshl_add_u32 v26, s{sW}, 3, v22")
    e(f"v_mul_lo_u32 v{vD0}, v26, s{sP64}")
    e(f"v_lshl_add_u32 v{vD0}, v25, 4, v{vD0}")
    e(f"v_mul_u32_u24 v{vD1}, 3584, v26")
    e(f"v_lshl_add_u32 v{vD1}, v25, 4, v{vD1}")
    e(f"s_lshl_b32 s{sT1}, s{sP64}, 5")
    e(f"v_subrev_u32 v32, s{sT1}, v{vD0}")
    vRow, vSwz, vCol = vV1, vV2, vV3
    e(f"v_lshrrev_b32 v26, 5, v{vLane}")
    e(f"v_bfe_u32 v27, v{vLane}, 2, 2")
    e(f"v_lshl_add_u32 v27, v26, 3, v27")
    e(f"v_lshlrev_b32 v{vRow}, 7, v27")
    e(f"v_and_b32 v28, 8, v{vLane}")
    e(f"v_lshlrev_b32 v{vSwz}, 3, v28")
    e(f"v_and_b32 v29, 3, v{vLane}")
    e(f"v_and_b32 v30, 16, v{vLane}")
    e(f"v_lshlrev_b32 v30, 1, v30")
    e(f"v_lshl_add_u32 v{vCol}, v29, 3, v30")
    def traddr(d, stc, t0, t1):
        return [f"v_add_u32 v{t0}, s{stc}, v{vCol}", f"v_and_b32 v{t1}, 127, v{t0}", f"v_xor_b32 v{t1}, v{t1}, v{vSwz}",
                f"v_and_b32 v{t0}, 128, v{t0}", f"v_lshl_add_u32 v{t0}, v{t0}, 6, v{t1}", f"v_add_u32 v{d}, v{t0}, v{vRow}"]
    for t in traddr(vTB[0][0], sTc0a, 30, 31) + traddr(vTB[0][1], sTc0b, 30, 31): e(t)
    e(f"s_and_b32 s{sT1}, s{sWR}, 1")
    e(f"s_lshl4_add_u32 s{sT1}, s{sT1}, s{sGS}")
    e(f"v_add_u32 v30, s{sT1}, v22")
    e(f"v_xor_b32 v30, v30, v23")
    e(f"v_lshlrev_b32 v30, 4, v30")
    e(f"v_lshrrev_b32 v31, 1, v23")
    e(f"v_lshl_add_u32 v30, v31, 12, v30")
    e(f"v_and_b32 v31, 1, v23")
    e(f"v_lshl_add_u32 v30, v31, 9, v30")
    e(f"s_lshr_b32 s{sT1}, s{sWR}, 1")
    e(f"v_lshl_add_u32 v{vXW[0]}, s{sT1}, 10, v30")
    e(f"v_add_u32 v{vXW[1]}, 0x10000, v{vXW[0]}")
    e(f"v_and_b32 v30, 31, v{vLane}")
    e(f"v_xor_b32 v30, v30, v26")
    e(f"v_lshlrev_b32 v30, 4, v30")
    e(f"v_lshl_add_u32 v30, v26, 9, v30")
    e(f"v_lshl_add_u32 v{vXR[0]}, s{sTT}, 10, v30")
    for q in range(1, 4):
        e(f"v_xor_b32 v{vXR[q]}, {q*4096 + q*32}, v{vXR[0]}")
    e(f"s_lshl4_add_u32 s{sT1}, s{sWR}, s{sGS}")
    e(f"v_add_lshl_u32 v{vStat}, v22, s{sT1}, 2")
    e(f"s_mul_i32 s{sT2}, s{sTT}, 112")
    e(f"s_add_u32 s{sT1}, s{sT3}, s{sT2}")
    e(f"v_min_u32 v30, 13, v{vLane}")
    e(f"v_lshl_add_u32 v30, v30, 3, s{sT1}")
    e(f"v_mul_u32_u24 v{vDum+3}, 3584, v30")
    e(f"s_lshl_b32 s{sT2}, s{sTT}, 6")
    e(f"s_add_u32 s{sT1}, s{sT3}, s{sT2}")
    e(f"s_add_u32 s{sT1}, s{sT1}, 192")
    e(f"v_min_u32 v31, 7, v{vLane}")
    e(f"v_lshl_add_u32 v31, v31, 3, s{sT1}")
    e(f"v_mul_lo_u32 v{vDum+2}, v31, s{sP64}")
    e(f"s_lshl_b32 s{sP64}, s{sP64}, 6")
    srd2(rW1, pW1, W1_BYTES)
    srd2(rW3, pW3, W1_BYTES)
    e(f"s_lshl_b32 s{sSO[1][0]}, s{sCOL}, 7")
    e(f"s_lshr_b32 s{sT1}, s{sCOL}, 1")
    e(f"s_add_u32 s{sT1}, s{sT1}, 16")
    e(f"s_lshl_b32 s{sSO[2][0]}, s{sT1}, 7")
    e(f"s_cmp_lt_u32 s{sW}, 4")
    e(f"s_cbranch_scc1 L_x2")
    a.skip_begin(); xloads(0, XE, sXa, sXb); a.skip_end()
    a.label("L_x2")
    xloads(XE, 14, sXa, sXb)
    e(f"s_lshl_b32 s{sStat}, s2, 9")
    e(f"s_add_u32 s{sStat}, s{sStat}, {ST_OFF}")
    e(f"s_mov_b32 s{sOnes}, 0x3f803f80")
    e(f"s_movk_i32 s{sLo}, 0x3f80")
    e(f"s_mov_b32 s{sHi}, 1.0")
    def slot(c):
        if c < 3: return 7 + c
        if c < 10: return c - 3
        if c == 20: return 7
        return slot(c - 9)
    dma_next = [3]
    def dma(c, track=True):
        r, cc = divmod(c, 7)
        if cc == 0:
            e(f"s_mov_b32 s{sCurA}, s{sSO[r][0]}")
            if r == 0: e(f"s_mov_b32 s{sCurB}, s{sSO[r][1]}")
        va, vb = [(vD0, vD0), (vD1, vD1), (vD1, vD2B)][r]
        sa, sb = (rA, rB) if r == 0 else (rW1, rW3)
        inc = f"s{sP64}" if r == 0 else f"{64*3584}"
        e(f"s_add_u32 m0, s{sM0}, {slot(c)*16384}")
        if cc: e(f"s_add_u32 s{sCurA}, s{sCurA}, {inc}")
        e(f"buffer_load_dwordx4 v{va}, {S(sa)}, s{sCurA} offen lds")
        e(f"s_add_u32 m0, s{sM0}, {slot(c)*16384+8192}")
        if cc and r == 0: e(f"s_add_u32 s{sCurB}, s{sCurB}, {inc}")
        e(f"buffer_load_dwordx4 v{vb}, {S(sb)}, s{sCurB if r == 0 else sCurA} offen lds")
        if track: a.vm += [f"c{c}", f"c{c}"]
    for q in range(8): e(f"v_mov_b32 v{T0+8+q}, 0")
    e(f"s_cmp_lt_u32 s{sW}, 4")
    e(f"s_cbranch_scc1 L_lnA")
    e(f"s_waitcnt vmcnt(0)")
    def dma4(c):
        dma(c, track=False)
        e(f"s_add_u32 m0, s{sM0}, {slot(c)*16384 - 4096}")
        e(f"buffer_load_dwordx4 v32, {S(rA)}, s{sCurA} offen lds")
        e(f"s_add_u32 m0, s{sM0}, {slot(c)*16384 + 8192 - 4096}")
        e(f"buffer_load_dwordx4 v32, {S(rB)}, s{sCurB} offen lds")
        a.vm += [f"c{c}"] * 4
    C2 = opt.get("c2pos", 1)
    for c in range(3 if C2 == 0 else 2): dma4(c)
    e(f"s_branch L_lnB")
    a.label("L_lnA")
    e(f"s_lshl1_add_u32 s{sCurA}, s{sP64}, s{sSO[0][0]}")
    e(f"s_lshl1_add_u32 s{sCurB}, s{sP64}, s{sSO[0][1]}")
    e(f"s_waitcnt vmcnt(0)")
    a.label("L_lnB")
    a.reset_hist()
    padat("x0")
    sp.stamp("x0"); sp.stamp("x0", lvl=3)
    def wpf():
        if opt.get("w0r", 14) < 14:
            e(f"buffer_load_dword v{vDum+1}, v{vDum+2}, {S(rA)}, s{sSO[0][0]} offen{opt.get('pnt', '')}")
            e(f"buffer_load_dword v{vDum+1}, v{vDum+2}, {S(rB)}, s{sSO[0][1]} offen{opt.get('pnt', '')}")
        for r in (1, 2):
            e(f"buffer_load_dword v{vDum+1}, v{vDum+3}, {S(rW1)}, s{sSO[r][0]} offen{opt.get('pnt', '')}")
            e(f"buffer_load_dword v{vDum+1}, v{vDum+3}, {S(rW3)}, s{sSO[r][0]} offen{opt.get('pnt', '')}")
        if opt.get("w2pf", 3) == 3:
            e(f"s_lshl2_add_u32 s{sT1}, s2, s{sW}")
            e(f"s_mul_i32 s{sT2}, s{sT1}, {13*128}")
            e(f"s_lshl_b32 s{sT1}, s{sT1}, 9")
            e(f"v_min_u32 v{vDum+2}, 12, v{vLane}")
            e(f"v_lshl_add_u32 v{vDum+2}, v{vDum+2}, 7, s{sT2}")
            e(f"v_min_u32 v{vDum+2}, {W2_BYTES-4}, v{vDum+2}")
            e(f"v_min_u32 v{vDum+3}, 3, v{vLane}")
            e(f"v_lshl_add_u32 v{vDum+3}, v{vDum+3}, 7, s{sT1}")
            e(f"v_min_u32 v{vDum+3}, {WO_BYTES-4}, v{vDum+3}")
            e(f"global_load_dword v{vDum+1}, v{vDum+2}, s[{pW2}:{pW2+1}]{opt.get('p2nt', '')}")
            e(f"global_load_dword v{vDum+1}, v{vDum+3}, s[{pWO}:{pWO+1}]")
    AC = T0 + 8
    def reduce2(d0, d1):
        for g in range(2): e(f"v_add_f32 v{AC+4*g}, v{AC+4*g}, v{AC+4*g+1}")
        for g in range(2): e(f"v_add_f32 v{AC+4*g+2}, v{AC+4*g+2}, v{AC+4*g+3}")
        for g, d in enumerate((d0, d1)): e(f"v_add_f32 v{d}, v{AC+4*g}, v{AC+4*g+2}")
        for m in ("quad_perm:[1,0,3,2]", "quad_perm:[2,3,0,1]", "row_half_mirror"):
            for d in (d0, d1): e(f"v_add_f32_dpp v{d}, v{d}, v{d} {m} row_mask:0xf bank_mask:0xf")
    for i in range(28):
        for g in range(2): e(f"v_dot2c_f32_bf16 v{AC+4*g+i%4}, s{sOnes}, v{RAW+g*28+i}")
    reduce2(vAcc[0], vAcc[1])
    for q in range(8): e(f"v_mov_b32 v{AC+q}, 0")
    for g in range(2): e(f"v_mul_f32 v{vAcc[g]}, {hexf(-1.0/448)}, v{vAcc[g]}")
    if C2 == 1:
        e(f"s_cmp_lt_u32 s{sW}, 4")
        e(f"s_cbranch_scc1 L_c2")
        a.skip_begin(); dma4(2); a.skip_end()
        a.label("L_c2")
    sp.stamp("pre", lvl=3)
    pend = None
    for gi in range(2):
        for i in range(7):
            r = RAW + gi * 28 + i * 4
            for k in range(4):
                e(f"v_dot2_f32_bf16 v{T0+2*k}, v{r+k}, s{sLo}, v{vAcc[gi]}")
                e(f"v_dot2_f32_bf16 v{T0+2*k+1}, v{r+k}, s{sHi}, v{vAcc[gi]}")
            if pend: pend()
            for k in range(4):
                e(f"v_cvt_pk_bf16_f32 v{r+k}, v{T0+2*k}, v{T0+2*k+1}")
            def pend(r=r, gi=gi, i=i):
                off = i * 16384
                a.ds_op(f"ds_write_b128 v{vXW[off >> 16]}, v[{r}:{r+3}] offset:{off & 0xffff}", "xw")
                if i == 6 and gi == 0:
                    e(f"v_xor_b32 v{vXW[0]}, 128, v{vXW[0]}")
                    e(f"v_xor_b32 v{vXW[1]}, 128, v{vXW[1]}")
    pend()
    if opt.get("wpf", 1) == 3:
        e(f"s_cmp_ge_u32 s{sW}, 4")
        e(f"s_cbranch_scc1 L_wp3")
        a.skip_begin(); wpf(); a.skip_end()
        a.label("L_wp3")
    if C2 == 2:
        e(f"s_cmp_lt_u32 s{sW}, 4")
        e(f"s_cbranch_scc1 L_c2")
        a.skip_begin(); dma4(2); a.skip_end()
        a.label("L_c2")
    sp.stamp("post", lvl=3)
    for i in range(28):
        for g in range(2): e(f"v_dot2c_f32_bf16 v{AC+4*g+i%4}, v{RAW+g*28+i}, v{RAW+g*28+i}")
    e(f"v_mov_b32 v{T0}, {hexf(1e-5)}")
    e(f"v_mov_b32 v{T0+1}, {hexf(1e-5)}")
    e(f"v_xor_b32 v{T0+2}, 32, v{vStat}")
    reduce2(vAcc[0], vAcc[1])
    for g in range(2): e(f"v_fmac_f32 v{T0+g}, {hexf(1.0/448)}, v{vAcc[g]}")
    e(f"s_cmp_ge_u32 s{sW}, 4")
    e(f"s_cbranch_scc1 L_lnD")
    a.skip_begin()
    e(f"s_or_b32 s{sT3}, s2, s{sW}")
    e(f"s_cbranch_scc1 L_noflag")
    e(f"v_mov_b32 v25, 0")
    e(f"v_mov_b32 v26, 1")
    e(f"global_store_dword v25, v26, s[{pDBG}:{pDBG+1}] sc1")
    a.label("L_noflag")
    if opt.get("touch") == 2: touch()
    if opt.get("wpf", 1) == 1: wpf()
    e(f"s_branch L_lnE")
    a.skip_end()
    a.label("L_lnD")
    sp.stamp("ln", lvl=3, nowait=True)
    a.vm_wait("c1")
    a.label("L_lnE")
    a.ds_wait_all()
    sp.stamp("ln")
    sp.stamp("c1", lvl=3)
    e("s_barrier")
    padat("b1")
    sp.stamp("b1"); sp.stamp("b1", lvl=3)
    def deferred():
        t0, t1, t2 = AB, AB + 1, AB + 2
        G = lambda *ins: (lambda: [e(x) for x in ins], sum(2 if x.startswith("s_") else 4 for x in ins))
        L = []
        L.append(G(f"v_xor_b32 v{vD2B}, 32, v{vD1}", f"v_lshlrev_b32 v{vSt}, 4, v{vLane}", f"s_mov_b32 vcc_lo, -1", f"s_mov_b32 vcc_hi, 0"))
        L.append(G(f"s_lshl2_add_u32 s{sTTG}, s{sRB}, s{sTT}", f"s_lshl_b32 s{sHoff}, s{sG}, 6"))
        L += [G(x) for x in traddr(vTB[1][0], sHoff, t0, t1)]
        L.append(G(f"v_add_u32 v{vTB[1][1]}, 8192, v{vTB[1][0]}"))
        L.append(G(f"s_and_b32 s{sHoff}, s{sCOL}, 1", f"s_lshl_b32 s{sHoff2}, s{sHoff}, 1", f"s_lshl_b32 s{sHoff}, s{sHoff2}, 5",
                   f"v_xor_b32 v{t0}, s{sHoff}, v{vCol}"))
        L.append(G(f"v_xor_b32 v{t0}, v{t0}, v{vSwz}", f"v_and_b32 v{t1}, 16, v{vLane}"))
        L.append(G(f"v_lshl_add_u32 v{t0}, v{t1}, 9, v{t0}", f"v_add_u32 v{vTB[2][0]}, v{t0}, v{vRow}", f"v_xor_b32 v{vTB[2][1]}, 32, v{vTB[2][0]}"))
        L.append(G(f"s_mul_i32 s{sHoff}, s{sTTG}, 112", f"s_add_u32 s{sHoff2}, s{sHoff2}, s{sHoff}", f"s_lshr_b32 s{sQKoff}, s{sSO[2][0]}, 5",
                   f"s_add_u32 s{sHoff2}, s{sHoff2}, s{sQKoff}", f"s_lshl_b32 s{sHoff2}, s{sHoff2}, 10", f"s_add_u32 s{sHoff2}, s{sHoff2}, {H_OFF}"))
        L.append(G(f"s_lshl1_add_u32 s{sHoff}, s{sG}, s{sHoff}", f"s_lshl2_add_u32 s{sHoff}, s{sCOL}, s{sHoff}", f"s_lshl_b32 s{sHoff}, s{sHoff}, 10",
                   f"s_add_u32 s{sHoff}, s{sHoff}, {H_OFF}"))
        L.append(G(f"s_lshl1_add_u32 s{sQKoff}, s{sCOL}, s{sG}", f"s_lshl_b32 s{sQKoff}, s{sQKoff}, 7", f"s_add_u32 s{sQKoff}, s{sQKoff}, s{sTTG}",
                   f"s_lshl_b32 s{sQKoff}, s{sQKoff}, 11", f"s_add_u32 s{sQKstep}, s{sHoff}, {12*4096}", f"s_cmp_ge_u32 s{sCOL}, 12",
                   f"s_cselect_b32 s{sQKoff}, s{sQKstep}, s{sQKoff}"))
        L.append(G(f"s_lshr_b32 s{sQKstep}, s{sCOL}, 2", f"s_cmp_eq_u32 s{sQKstep}, 1", f"s_cselect_b32 s{sOnes}, s{sOnes}, 0", f"s_cselect_b32 s{sHi}, s{sLo}, 0",
                   f"s_cmp_eq_u32 s{sQKstep}, 2", f"s_cselect_b32 s{sOnes}, s{sLo}, s{sOnes}"))
        L.append(G(f"v_mov_b32 v{vP6}, s{sOnes}", f"v_mov_b32 v{vP7}, s{sHi}"))
        L.append(G(f"v_lshrrev_b32 v{t2}, 5, v{vLane}", f"v_bfe_u32 v{t0}, v{vLane}, 2, 2", f"v_lshl_add_u32 v{t0}, v{t2}, 2, v{t0}"))
        L.append(G(f"v_lshrrev_b32 v{t1}, 1, v{t0}", f"v_lshlrev_b32 v{t1}, 3, v{t1}", f"v_xor_b32 v{t1}, v{t1}, v{vCol}"))
        L.append(G(f"s_lshl_b32 s{sQKstep}, s{sW}, 11", f"s_add_u32 s{sQKstep}, s{sQKstep}, {SCR}", f"v_lshl_add_u32 v{t0}, v{t0}, 6, v{t1}",
                   f"v_add_u32 v{vV2}, s{sQKstep}, v{t0}"))
        L.append(G(f"v_xor_b32 v{vV3}, 32, v{vV2}", f"v_bfe_u32 v{t0}, v{vLane}, 1, 3", f"v_xor_b32 v{t0}, v{t0}, v{t2}"))
        L.append(G(f"v_and_b32 v{t1}, 31, v{vLane}", f"v_lshlrev_b32 v{t1}, 6, v{t1}", f"v_lshl_add_u32 v{t0}, v{t0}, 3, v{t1}"))
        L.append(G(f"v_add_u32 v{vV1}, s{sQKstep}, v{t0}"))
        return L
    def hdiag(k):
        if not opt.get("hdiag"): return
        if k == 0: return
        e("s_cmp_ge_u32 s2, 7")
        e("s_cbranch_scc1 L_end")
        e(f"s_cmp_lg_u32 s{sW}, 4")
        e("s_cbranch_scc1 L_end")
        e("s_memrealtime s[80:81]"); e("s_memtime s[82:83]")
        e("s_waitcnt vmcnt(0) lgkmcnt(0)")
        e("s_mov_b64 exec, 1")
        e("s_lshl_b32 s3, s2, 3")
        e("v_mov_b32 v0, s3")
        e("s_sub_u32 s84, s82, s78")
        e("s_sub_u32 s80, s80, s76")
        e("s_and_b32 s76, s76, 0xffff")
        e("s_lshl_b32 s80, s80, 16")
        e("s_or_b32 s76, s76, s80")
        e("v_mov_b32 v2, s76"); e("v_mov_b32 v3, s84")
        e(f"global_store_dword v0, v2, s[{pDBG}:{pDBG+1}] offset:4")
        e(f"global_store_dword v0, v3, s[{pDBG}:{pDBG+1}] offset:8")
    def check_flag(vtmp):
        done = lab("fl")
        e(f"v_readfirstlane_b32 s{sT1}, v{vFlag}")
        e(f"s_cmp_lg_u32 s{sT1}, 0")
        e(f"s_cbranch_scc1 {done}")
        e(f"s_mov_b32 s{sT2}, 0x40000")
        lp = lab("fs"); a.label(lp)
        e(f"v_mov_b32 v{vtmp}, 0")
        e(f"global_load_dword v{vFlag}, v{vtmp}, s[{pDBG}:{pDBG+1}] sc1")
        e(f"s_waitcnt vmcnt(0)")
        e(f"v_readfirstlane_b32 s{sT1}, v{vFlag}")
        e(f"s_sub_u32 s{sT2}, s{sT2}, 1")
        e(f"s_cselect_b32 s{sT1}, 1, s{sT1}")
        e(f"s_cmp_eq_u32 s{sT1}, 0")
        e(f"s_cbranch_scc1 {lp}")
        a.label(done)
    def signal(sIdx, add, va, vb):
        e(f"s_add_u32 s{sT1}, s{sIdx}, {add}")
        e(f"s_lshl_b32 s{sT1}, s{sT1}, 7")
        e(f"s_add_u32 s{sT1}, s{sT1}, {CNT_OFF}")
        e(f"v_mov_b32 v{va}, 0")
        e(f"v_mov_b32 v{vb}, 1")
        e(f"s_mov_b64 exec, 1")
        e(f"buffer_atomic_add v{vb}, v{va}, {S(rWS)}, s{sT1} offen sc1")
        e(f"s_mov_b64 exec, -1")
    def poll(vaddr, vval, target, sleep):
        lp = lab("po"); done = lab("pd")
        e(f"s_mov_b32 s{sT2}, 0x40000")
        e(f"s_mov_b32 s{sT3}, {CNT_OFF}")
        a.label(lp)
        e(f"buffer_load_dword v{vval}, v{vaddr}, {S(rWS)}, s{sT3} offen sc1")
        e(f"s_waitcnt vmcnt(0)")
        e(f"v_cmp_gt_u32 s[74:75], {target}, v{vval}")
        e(f"s_cmp_eq_u64 s[74:75], 0")
        e(f"s_cbranch_scc1 {done}")
        e(f"s_sleep {sleep}")
        e(f"s_sub_u32 s{sT2}, s{sT2}, 1")
        e(f"s_cbranch_scc0 {lp}")
        a.label(done)
        a.vm = []
    def lds_arrive(k, va, vb, rtn=False):
        e(f"v_mov_b32 v{va}, {SYNC + 4*k}")
        e(f"v_mov_b32 v{vb}, 1")
        e(f"s_mov_b64 exec, 1")
        e(f"ds_add_rtn_u32 v{vb}, v{va}, v{vb}" if rtn else f"ds_add_u32 v{va}, v{vb}")
        e(f"s_mov_b64 exec, -1")
    def lds_sync(k, n, va, vb, meanwhile=None):
        a.ds_wait_all()
        lds_arrive(k, va, vb)
        if meanwhile:
            e("s_nop 3"); meanwhile()
        lp = lab("ls")
        e(f"s_mov_b32 s{sT2}, 0x400000")
        a.label(lp)
        e(f"ds_read_b32 v{vb}, v{va}")
        e(f"s_waitcnt lgkmcnt(0)")
        e(f"v_readfirstlane_b32 s{sT1}, v{vb}")
        e(f"s_sub_u32 s{sT2}, s{sT2}, 1")
        e(f"s_cselect_b32 s{sT1}, {n}, s{sT1}")
        e(f"s_cmp_lt_u32 s{sT1}, {n}")
        e(f"s_cbranch_scc1 {lp}")
    def lds_spin(k, n, va, vb, sleep):
        lp = lab("ls"); ok = lab("lk")
        e(f"v_mov_b32 v{va}, {SYNC + 4*k}")
        e(f"s_mov_b32 s{sT2}, 0x100000")
        a.label(lp)
        e(f"ds_read_b32 v{vb}, v{va}")
        e(f"s_waitcnt lgkmcnt(0)")
        e(f"v_readfirstlane_b32 s{sT1}, v{vb}")
        e(f"s_cmp_ge_u32 s{sT1}, {n}")
        e(f"s_cbranch_scc1 {ok}")
        e(f"s_sleep {sleep}")
        e(f"s_sub_u32 s{sT2}, s{sT2}, 1")
        e(f"s_cbranch_scc0 {lp}")
        a.label(ok)
    def lds_check(k, n, va, vb):
        lp = lab("lc"); ok = lab("ld")
        e(f"s_mov_b32 s{sT2}, 0x400000")
        a.label(lp)
        e(f"s_waitcnt lgkmcnt(0)"); a.lg = []
        e(f"v_readfirstlane_b32 s{sT1}, v{vb}")
        e(f"s_cmp_ge_u32 s{sT1}, {n}")
        e(f"s_cbranch_scc1 {ok}")
        a.skip_begin()
        e(f"ds_read_b32 v{vb}, v{va}")
        e(f"s_sub_u32 s{sT2}, s{sT2}, 1")
        e(f"s_cbranch_scc0 {lp}")
        a.skip_end()
        a.label(ok)
    def lds_wait(k, n, va, vb, meanwhile):
        lp = lab("lw"); ok = lab("lo")
        e(f"v_mov_b32 v{va}, {SYNC + 4*k}")
        e(f"ds_read_b32 v{vb}, v{va}")
        meanwhile()
        e(f"s_mov_b32 s{sT2}, 0x400000")
        a.label(lp)
        e(f"s_waitcnt lgkmcnt(0)")
        e(f"v_readfirstlane_b32 s{sT1}, v{vb}")
        e(f"s_cmp_ge_u32 s{sT1}, {n}")
        e(f"s_cbranch_scc1 {ok}")
        e(f"ds_read_b32 v{vb}, v{va}")
        e(f"s_sub_u32 s{sT2}, s{sT2}, 1")
        e(f"s_cbranch_scc0 {lp}")
        a.label(ok)
    def last_signals(k, n, sIdx, add, va, vb):
        lds_arrive(k, va, vb, rtn=True)
        e(f"s_waitcnt lgkmcnt(0)"); a.lg = []
        e(f"v_readfirstlane_b32 s{sT1}, v{vb}")
        sk = lab("ns")
        e(f"s_cmp_lg_u32 s{sT1}, {n-1}")
        e(f"s_cbranch_scc1 {sk}")
        a.skip_begin()
        signal(sIdx, add, va, vb)
        a.skip_end()
        a.label(sk)
    NT = [2, 2, 2]
    ACC = [AA, AB, AA]
    tw_state = [None, None]
    def wreads(G):
        r, s = divmod(G, 28)
        base = slot(G // 4) * 16384 + (s % 4) * 2048
        hi, lo = base >> 16, base & 0xffff
        L = []
        for t in range(NT[r]):
            d = WF + (G % 3) * 8 + t * 4
            def f0(t=t, d=d):
                if tw_state[t] != (r, hi):
                    e(f"v_add_u32 v{vTW[t]}, {hex(hi << 16)}, v{vTB[r][t]}")
                    tw_state[t] = (r, hi)
                a.ds_op(f"ds_read_b64_tr_b16 v[{d}:{d+1}], v{vTW[t]} offset:{lo}", f"w{G}")
            def f1(t=t, d=d):
                a.ds_op(f"ds_read_b64_tr_b16 v[{d+2}:{d+3}], v{vTW[t]} offset:{lo+512}", f"w{G}")
            L += [f0, f1]
        return L
    xr_next = [0]
    def xread(n):
        for _ in range(n):
            s = xr_next[0]
            if s >= 28: return
            xr_next[0] += 1
            if s == 16:
                for q in range(4): e(f"v_add_u32 v{vXR[q]}, 0x10000, v{vXR[q]}")
            off = ((s // 4) * 16384) & 0xffff
            a.ds_op(f"ds_read_b128 v[{X0+4*s}:{X0+4*s+3}], v{vXR[s%4]} offset:{off}", f"x{s}")
    BARS = opt.get("bars", [0, 1, 2, 3, 5, 7, 9, 11, 13, 15])
    PQ = opt.get("pq", 11)
    PZ = opt.get("pz", 13)
    L2P = {int(k): v for k, v in opt.get("l2p", {}).items()}
    VEND = PQ
    window = []; pending = []
    def period_barrier(i):
        for c in window: a.vm.extend([f"c{c}", f"c{c}"])
        assert not pending, pending
        window.clear()
        nxt = min([b for b in BARS if b > i] + [20])
        a.vm_wait(f"c{nxt}")
        assert dma_next[0] > nxt, (i, nxt, dma_next[0])
        if i == 3: a.vm_wait("stat")
        if i == PQ: a.vm_wait("st")
        if i in opt.get("sb", []): sp.stamp("pre", lvl=2, nowait=True)
        e("s_barrier")
        if i in opt.get("sb", []): sp.stamp("post", lvl=2, nowait=True)
        if i == 3:
            e(f"v_and_b32 v{vK}, 31, v{vLane}")
            e(f"v_lshlrev_b32 v{vK}, 2, v{vK}")
            e(f"s_lshl_b32 s{sT1}, s{sTT}, 7")
            e(f"s_add_u32 s{sT1}, s{sT1}, s{sStat}")
            e(f"v_mov_b32 v{vFlag}, 0")
            a.vm_op(f"buffer_load_dword v{vK}, v{vK}, {S(rWS)}, s{sT1} offen sc1", "kld")
            a.vm_op(f"global_load_dword v{vFlag}, v{vFlag}, s[{pDBG}:{pDBG+1}] sc1", "kld")
        if i in L2P:
            for k in L2P[i]:
                sk = lab("pf")
                e(f"s_cmp_lg_u32 s{sW}, {k}")
                e(f"s_cbranch_scc1 {sk}")
                a.skip_begin()
                e(f"s_lshr_b32 s{sT1}, s2, 3")
                nl, ptr, nb = (56, pW2, W2_BYTES) if k < 7 else (98, pWO, WO_BYTES)
                if k < 7:
                    e(f"s_mul_i32 s{sT1}, s{sT1}, {7*56*128}")
                    e(f"s_add_u32 s{sT1}, s{sT1}, {k*56*128}")
                else:
                    e(f"s_mul_i32 s{sT1}, s{sT1}, {98*128}")
                e(f"v_min_u32 v{vDum+2}, {min(nl, 64) - 1 if k < 7 else 48}, v{vLane}")
                e(f"v_lshl_add_u32 v{vDum+2}, v{vDum+2}, 7, s{sT1}")
                e(f"global_load_dword v{vDum+1}, v{vDum+2}, s[{ptr}:{ptr+1}]")
                if k == 7:
                    e(f"v_add_u32 v{vDum+2}, {49*128}, v{vDum+2}")
                    e(f"global_load_dword v{vDum+1}, v{vDum+2}, s[{ptr}:{ptr+1}]")
                a.skip_end()
                a.label(sk)
        if i == PZ:
            e(f"v_lshrrev_b32 v{vDum+2}, 2, v{vSt}")
            e(f"v_add_u32 v{vDum+2}, {SYNC}, v{vDum+2}")
            e(f"v_mov_b32 v{vDum+3}, 0")
            a.ds_op(f"ds_write_b32 v{vDum+2}, v{vDum+3}", "z")
        if i == PQ and sigq[0]:
            sk = lab("q")
            e(f"s_cmp_lg_u32 s{sW}, 0")
            e(f"s_cbranch_scc1 {sk}")
            a.skip_begin()
            check_flag(vDum + 2)
            signal(sCOL, 0, vDum + 2, vDum + 3)
            a.skip_end()
            a.label(sk)
        while dma_next[0] <= 20:
            c = dma_next[0]
            if c < 10:
                sl = slot(c)
                if not all(xr_next[0] > s and a.ds_done(f"x{s}") for s in range(4*sl, 4*sl+4)): break
            elif c == 20:
                if i < 13: break
            elif c - 9 > i - 1: break
            window.append(c); dma_next[0] += 1
        nq = nxt - i
        per = -(-len(window) // nq)
        pending[:] = [window[k*per:(k+1)*per] for k in range(nq)]
    sigq = [False]
    XR = opt.get("xrate", 2)
    def kloop(r, extra, budget, hooks={}):
        extra = list(extra)
        if opt.get("x_noepi"): extra = [x for x in extra if x[1] == 0]
        gap = 0
        for s in range(28):
            G = r * 28 + s
            Gn = G + 2
            rd = wreads(Gn) if Gn < 84 else []
            a.ds_wait(f"w{G}")
            if r == 0: a.ds_wait(f"x{s}")
            ph = Gn % 4
            for t in range(NT[r]):
                d = ACC[r] + 16 * t
                w = WF + (G % 3) * 8 + t * 4
                c = "0" if s == 0 else f"v[{d}:{d+15}]"
                e(f"v_mfma_f32_32x32x16_bf16 v[{d}:{d+15}], v[{w}:{w+3}], v[{X0+4*s}:{X0+4*s+3}], {c}")
                gap += 1
                if t == 0 and Gn < 84 and ph == 0 and (Gn // 4 - 1) in BARS: period_barrier(Gn // 4 - 1)
                n = -(-len(rd) // (NT[r] - t))
                for f in rd[:n]: f()
                rd = rd[n:]
                if r == 0: xread((XR + 1 - t) // 2)
                left = budget
                if t == NT[r] - 1 and pending and pending[0] and ph % 2 == 0:
                    sk = lab("d")
                    e(f"s_cmp_lg_u32 s{sPh}, {ph}")
                    e(f"s_cbranch_scc1 {sk}")
                    a.skip_begin()
                    for c in pending[0]: dma(c, track=False)
                    a.skip_end()
                    a.label(sk)
                    left = opt.get("dmabud", 4)
                if t == NT[r] - 1 and s in hooks: hooks[s](); left = 0
                while extra and gap > 3 and extra[0][1] <= left:
                    f, cst = extra.pop(0); f(); left -= cst
            if ph == 3 and pending: pending.pop(0)
        return extra
    def I(t):
        op = t.split()[0]
        return (lambda: e(t), 8 if op.startswith(TRANS) else (2 if op.startswith("s_") else 4))
    def consts():
        def sel():
            e(f"s_cmp_lt_u32 s{sCOL}, 4")
            e(f"s_cselect_b32 s{sT1}, {hexf(28**-0.5*LOG2E)}, 1.0")
            e(f"v_mul_f32 v{vSc}, s{sT1}, v{vSc}")
        return [(lambda: a.vm_wait("kld"), 0), I(f"v_rsq_f32 v{vSc}, v{vK}"),
                I(f"v_mul_f32 v{vC1}, {hexf(-LOG2E)}, v{vSc}"), (sel, 8)]
    def silu4(Gt, U, t, p):
        L = []
        for k in range(4): L.append(I(f"v_mul_f32 v{t+k}, v{vC1}, v{Gt+k}"))
        for k in range(4):
            L.append(I(f"v_exp_f32 v{t+k}, v{t+k}"))
            L.append(I(f"v_mul_f32 v{Gt+k}, v{Gt+k}, v{U+k}"))
        for k in range(4): L.append(I(f"v_fma_f32 v{t+k}, v{t+k}, v{vK}, v{vK}"))
        for k in range(4): L.append(I(f"v_rcp_f32 v{t+k}, v{t+k}"))
        for k in range(4): L.append(I(f"v_mul_f32 v{Gt+k}, v{Gt+k}, v{t+k}"))
        for k in range(2): L.append(I(f"v_cvt_pk_bf16_f32 v{p+k}, v{Gt+2*k}, v{Gt+2*k+1}"))
        return L
    def store(r, soff, off):
        if opt.get("x_nost"): return (lambda: None, 8)
        return (lambda: a.vm_op(f"buffer_store_dwordx4 v[{r}:{r+3}], v{vSt}, {S(rWS)}, s{soff} offen offset:{off}{ST}", "st"), 8)
    def epiF(acc, soff):
        Gt, U = acc, acc + 16
        L = []
        for q in range(4):
            L += silu4(Gt + 4*q, U + 4*q, T0 + (q % 2) * 4, U + (q // 2) * 8 + (q % 2) * 2)
            if q % 2 == 1: L.append(store(U + (q // 2) * 8, soff, (q // 2) * 1024))
        return L
    def epiQKV(acc, isv):
        L = []
        P = T0 + 8
        for q in range(4):
            for k in range(4): L.append(I(f"v_mul_f32 v{acc+4*q+k}, v{vSc}, v{acc+4*q+k}"))
            for k in range(2): L.append(I(f"v_cvt_pk_bf16_f32 v{P+2*q+k}, v{acc+4*q+2*k}, v{acc+4*q+2*k+1}"))
            if q == 1 and not isv: L.append(store(P, sQKoff, 0))
        L.append(I(f"v_cndmask_b32 v{P+6}, v{vP6}, v{P+6}, vcc"))
        L.append(I(f"v_cndmask_b32 v{P+7}, v{vP7}, v{P+7}, vcc"))
        if not isv: L.append(store(P + 4, sQKoff, 1024))
        else:
            for q in range(4):
                if q: L.append(I(f"v_xor_b32 v{vV4}, {16*q}, v{vV1}"))
                L.append((lambda q=q: a.ds_op(f"ds_write_b64 v{vV4 if q else vV1}, v[{P+2*q}:{P+2*q+1}]", "vw"), 4))
            L += [(lambda: None, 8)] * 2
            L.append((lambda: a.ds_wait("vw"), 0))
            for q in range(4):
                L.append((lambda q=q: a.ds_op(f"ds_read_b64_tr_b16 v[{acc+2*q}:{acc+2*q+1}], v{vV3 if q % 2 else vV2} offset:{512*q}", "vr"), 4))
            L += [(lambda: None, 8)] * 2
            L.append((lambda: a.ds_wait("vr"), 0))
            L.append(store(acc, sQKoff, 0))
            L.append(store(acc + 4, sQKoff, 1024))
        L.append(I(f"s_add_u32 s{sQKoff}, s{sQKoff}, {64*2048}"))
        return L
    B1, B2 = opt.get("b1", 12), opt.get("b2", 12)
    if opt.get("yprio"):
        e(f"s_cmp_lt_u32 s{sW}, 4")
        e(f"s_cbranch_scc1 L_yp")
        e(f"s_setprio 1")
        a.label("L_yp")
    xread(4)
    for f in wreads(0) + wreads(1): f()
    if opt.get("wpf", 1) == 2:
        e(f"s_cmp_ge_u32 s{sW}, 4")
        e(f"s_cbranch_scc1 L_wp")
        a.skip_begin(); wpf(); a.skip_end()
        a.label("L_wp")
    a.vm_op(f"buffer_store_dword v{T0}, v{vStat}, {S(rWS)}, s{sStat} offen", "stat")
    a.vm_op(f"buffer_store_dword v{T0+1}, v{T0+2}, {S(rWS)}, s{sStat} offen", "stat")
    assert not kloop(0, deferred(), 16)
    padat("r0")
    sp.stamp("r0")
    e(f"s_cmp_lt_u32 s{sCOL}, 8")
    e(f"s_cbranch_scc1 L_pqk")
    e(f"s_cmp_lt_u32 s{sCOL}, 12")
    e(f"s_cbranch_scc1 L_pv")
    saved = (list(a.vm), list(a.lg), list(tw_state), dma_next[0], list(a.hist), list(window), [list(p) for p in pending], sp.n)
    ends = []
    for nm, ex in (("f", lambda: epiF(AA, sQKoff)), ("L_pqk", lambda: epiQKV(AA, False) + epiQKV(AA + 16, False)),
                   ("L_pv", lambda: epiQKV(AA, True) + epiQKV(AA + 16, True))):
        if nm != "f": a.label(nm)
        a.vm, a.lg = list(saved[0]), list(saved[1]); tw_state[:] = saved[2]; dma_next[0] = saved[3]; a.hist = list(saved[4])
        window[:] = saved[5]; pending[:] = [list(p) for p in saved[6]]; sp.set(saved[7])
        sigq[0] = nm != "f"
        nst0 = [0]
        exl = consts() + ex()
        if nm != "f":
            exl.append((lambda: nst0.__setitem__(0, 1), 0))
            _pb = period_barrier
        rest = kloop(1, exl, {"f": B1, "L_pqk": opt.get("b1q", 32), "L_pv": opt.get("b1v", 32)}[nm], hooks={(VEND + 1) * 4 - 2 - 28 - 1: (lambda: None) if nm == "f" else (lambda: (_ for _ in ()).throw(AssertionError("qkv epilogue too late")) if not nst0[0] else None)})
        for f, c in rest: f()
        ends.append(([t for t in a.vm if t != "st"], list(a.lg), list(tw_state), dma_next[0], list(window), [list(p) for p in pending]))
        if nm != "L_pv": e("s_branch L_r2")
    assert ends[0][1:] == ends[1][1:] == ends[2][1:], ends
    a.vm = min((x[0] for x in ends), key=len)
    assert all(x[0][len(x[0])-len(a.vm):] == a.vm for x in ends)
    a.label("L_r2")
    e("s_nop 1")
    padat("r1")
    sp.stamp("r1"); sp.stamp("r1", lvl=5, nowait=True)
    K0, Q, KV, O, Sx, P, T = 16, 24, 56, 128, 192, 224, 240
    ATT_LDS, WO_LDS = 49152, 98304
    sX, sJ = 54, 55
    sHead, sQB, sKV, sRun = 62, 63, 64, 58
    sWq, sTB, sCB, sWo, sLB = 62, 63, 64, 58, 66
    vD, vPoll, vStV = vD0, vDum + 4, vD0
    rW = rA
    rK, rV = rA, rB
    NE = 3
    QX = 147456
    def kvload(i):
        for k in range(4):
            r = KV + 16 * i + 4 * k
            a.vm_op(f"buffer_load_dwordx4 v[{r}:{r+3}], v{vSt}, {S(rK if k < 2 else rV)}, s{sRun} offen offset:{1024*(k%2)}{LD}", f"kv{i}")
        e(f"s_add_u32 s{sRun}, s{sRun}, 2048")
        e(f"s_and_b32 s{sRun}, s{sRun}, 0x1ffff")
    e(f"s_and_b32 s{sX}, s2, 7")
    e(f"s_lshr_b32 s{sJ}, s2, 3")
    check_flag(vDum + 2)
    e(f"s_cmp_lt_u32 s{sW}, 4")
    e(f"s_cbranch_scc1 L_att")
    join = (list(a.vm), list(a.lg), list(a.hist), list(window), sp.n)
    e(f"s_setprio {opt.get('r2prio', 2)}")
    rest = kloop(2, epiF(AB, sHoff), B2)
    sp.stamp("r2")
    for f, c in rest: f()
    for t in range(2):
        for q in range(2):
            for f, c in silu4(AA + 16*t + 4*q, AA + 16*t + 8 + 4*q, T0 + 4*q, T0 + 8 + 4*t + 2*q): f()
        store(T0 + 8 + 4*t, sHoff2, 1024*t)[0]()
    e(f"s_branch L_gemm")
    nst = sp.n
    a.label("L_att")
    a.vm, a.lg, a.hist = list(join[0]), list(join[1]), list(join[2]); sp.set(join[4])
    for c in join[3]: a.vm.extend([f"c{c}", f"c{c}"])
    e(f"s_setprio {opt.get('attprio0', 3)}")
    e(f"s_and_b32 s{sT1}, s{sJ}, 1")
    e(f"s_lshl1_add_u32 s{sHead}, s{sX}, s{sT1}")
    e(f"v_min_u32 v{vPoll}, 2, v{vLane}")
    e(f"v_lshlrev_b32 v{vPoll}, 9, v{vPoll}")
    e(f"s_lshr_b32 s{sT1}, s{sHead}, 2")
    e(f"v_lshl_add_u32 v{vPoll}, s{sT1}, 7, v{vPoll}")
    e(f"s_mov_b32 s{sT3}, {CNT_OFF}")
    a.vm_op(f"buffer_load_dword v{vDum+3}, v{vPoll}, {S(rWS)}, s{sT3} offen sc1", "poll")
    def qload():
        e(f"s_lshl_b32 s{sT1}, s{sHead}, 6")
        e(f"s_lshl2_add_u32 s{sT1}, s{sQB}, s{sT1}")
        e(f"s_add_u32 s{sT1}, s{sT1}, s{sW}")
        e(f"s_lshl_b32 s{sT1}, s{sT1}, 11")
        a.vm_op(f"buffer_load_dwordx4 v[{Q}:{Q+3}], v{vSt}, {S(rWS)}, s{sT1} offen{LD}", "q")
        a.vm_op(f"buffer_load_dwordx4 v[{Q+4}:{Q+7}], v{vSt}, {S(rWS)}, s{sT1} offen offset:1024{LD}", "q")
        kvload(0)
    e(f"s_lshr_b32 s{sQB}, s{sJ}, 1")
    e(f"s_lshl_b32 s{sKV}, s{sHead}, 17")
    e(f"s_add_u32 s{sKV}, s{sKV}, {KV_OFF}")
    e(f"s_lshl_b32 s{sRun}, s{sW}, 15")
    e(f"s_add_u32 s{sRun}, s{sRun}, 2048")
    e(f"s_add_u32 s{rK}, s{pWS}, s{sKV}")
    e(f"s_addc_u32 s{rK+1}, s{pWS+1}, 0")
    e(f"s_mov_b32 s{rK+2}, 0x20000")
    e(f"s_mov_b32 s{rK+3}, 0x20000")
    e(f"s_add_u32 s{rV}, s{rK}, {2 << 20}")
    e(f"s_addc_u32 s{rV+1}, s{rK+1}, 0")
    e(f"s_mov_b32 s{rV+2}, 0x20000")
    e(f"s_mov_b32 s{rV+3}, 0x20000")
    ep = epiF(AB, sHoff)
    n1 = opt.get("ep1", 26)
    a.ds_wait_all()
    for f, c in ep[:n1]: f()
    sp.stamp("ep", lvl=5, nowait=True)
    a.vm_wait("poll")
    sp.stamp("pl", lvl=5, nowait=True)
    e(f"v_cmp_gt_u32 s[74:75], 16, v{vDum+3}")
    e(f"s_cmp_eq_u64 s[74:75], 0")
    e(f"s_cbranch_scc1 L_e2ok")
    sv = (list(a.vm), list(a.hist))
    for f, c in ep[n1:]: f()
    e("s_barrier")
    poll(vPoll, vDum + 3, 16, 1)
    qload(); e("s_waitcnt vmcnt(0)"); e(f"s_branch L_e2j")
    a.label("L_e2ok")
    a.vm, a.hist = sv
    sp.stamp("r2"); sp.stamp("ok", lvl=5, nowait=True)
    qload()
    for f, c in ep[n1:]: f()
    sp.stamp("ep2", lvl=5, nowait=True)
    e("s_barrier")
    a.label("L_e2j")
    kvload(1); kvload(2)
    sFlag, sIt, sOoff = 59, 60, 61
    e(f"s_mov_b32 s{sFlag}, 0")
    e(f"s_lshl2_add_u32 s{sOoff}, s{sQB}, s{sW}")
    e(f"s_lshl4_add_u32 s{sOoff}, s{sOoff}, s{sHead}")
    e(f"s_lshl_b32 s{sOoff}, s{sOoff}, 11")
    e(f"s_add_u32 s{sOoff}, s{sOoff}, {O_OFF}")
    for jj in range(4):
        e(f"s_add_u32 s{sT1}, s{sW}, {jj}")
        e(f"s_and_b32 s{sT1}, s{sT1}, 3")
        e(f"s_lshl_b32 s{sT1}, s{sT1}, 11")
        e(f"s_add_u32 s{sT1}, s{sT1}, {QX}")
        e(f"v_add_u32 v{T+2+jj}, s{sT1}, v{vSt}")
    sp.stamp("pre", lvl=5, nowait=True)
    a.vm_wait("kv0")
    sp.stamp("kv0", lvl=5, nowait=True)
    e(f"v_mfma_f32_32x32x16_bf16 v[{Sx}:{Sx+15}], v[{KV}:{KV+3}], v[{Q}:{Q+3}], 0")
    e(f"v_mfma_f32_32x32x16_bf16 v[{Sx}:{Sx+15}], v[{KV+4}:{KV+7}], v[{Q+4}:{Q+7}], v[{Sx}:{Sx+15}]")
    sp.stamp("qkv")
    def qk(n, half):
        i, j = (n // 4) % 4, n % 4
        d = Sx + 16 * (n % 2); k = KV + 16 * i + 4 * half; q = Q + 8 * j + 4 * half
        c = "0" if half == 0 else f"v[{d}:{d+15}]"
        e(f"v_mfma_f32_32x32x16_bf16 v[{d}:{d+15}], v[{k}:{k+3}], v[{q}:{q+3}], {c}")
    def pv(n, half):
        i, j = (n // 4) % 4, n % 4
        d = O + 16 * j; v = KV + 16 * i + 8 + 4 * half; p = P + 8 * (n % 2) + 4 * half
        e(f"v_mfma_f32_32x32x16_bf16 v[{d}:{d+15}], v[{v}:{v+3}], v[{p}:{p+3}], v[{d}:{d+15}]")
    def sm(n, g):
        s = Sx + 16 * (n % 2) + 4 * g; p = P + 8 * (n % 2) + 2 * g
        for k in range(4): e(f"v_exp_f32 v{s+k}, v{s+k}")
        e(f"v_cvt_pk_bf16_f32 v{p}, v{s}, v{s+1}")
        e(f"v_cvt_pk_bf16_f32 v{p+1}, v{s+2}, v{s+3}")
    M = T + 8
    def patch(jjs, bias):
        U = M + 4
        for jj in jjs: e(f"v_mov_b32 v{U+jj}, v{M+jj}")
        for jj in jjs: e(f"v_permlane32_swap_b32 v{M+jj}, v{U+jj}")
        for jj in jjs: e(f"v_max_f32 v{M+jj}, v{M+jj}, v{U+jj}")
        for jj in jjs: e(f"v_sub_f32 v{M+jj}, {hexf(-bias) if bias else 0}, v{M+jj}")
        for jj in jjs: e(f"v_cvt_pk_bf16_f32 v{U+jj}, v{M+jj}, v{M+jj}")
        for jj in jjs: e(f"v_and_b32 v{U+jj}, 0xffff0000, v{U+jj}")
        for jj in jjs: e(f"v_sub_f32 v{U+jj}, v{M+jj}, v{U+jj}")
        for jj in jjs: e(f"v_cvt_pk_bf16_f32 v{M+jj}, v{M+jj}, v{U+jj}")
        for jj in jjs: e(f"v_cndmask_b32 v{Q+8*jj+6}, v{M+jj}, v{Q+8*jj+6}, vcc")
        for jj in jjs: e(f"v_and_b32 v{M+jj}, 0xffff0000, v{M+jj}")
        for jj in jjs: e(f"v_sub_f32 v{U+jj}, v{U+jj}, v{M+jj}")
        for jj in jjs: e(f"v_cvt_pk_bf16_f32 v{U+jj}, v{U+jj}, 0")
        for jj in jjs: e(f"v_cndmask_b32 v{Q+8*jj+7}, v{U+jj}, v{Q+8*jj+7}, vcc")
    for k in range(4): e(f"v_max3_f32 v{M+4+k}, v{Sx+4*k}, v{Sx+4*k+1}, v{Sx+4*k+2}")
    for k in range(2): e(f"v_max3_f32 v{M+4+2*k}, v{M+4+2*k}, v{M+5+2*k}, v{Sx+8*k+3}")
    e(f"v_max3_f32 v{M}, v{Sx+7}, v{Sx+15}, v{M+4}")
    e(f"v_max_f32 v{M}, v{M}, v{M+6}")
    patch([0], BIAS)
    a.ds_op(f"ds_write_b128 v{T+2}, v[{Q}:{Q+3}]")
    a.ds_op(f"ds_write_b128 v{T+2}, v[{Q+4}:{Q+7}] offset:1024")
    lds_sync(1, 4, T, T + 1, lambda: (qk(0, 0), qk(0, 1)))
    for jj in range(1, 4):
        a.ds_op(f"ds_read_b128 v[{Q+8*jj}:{Q+8*jj+3}], v{T+2+jj}")
        a.ds_op(f"ds_read_b128 v[{Q+8*jj+4}:{Q+8*jj+7}], v{T+2+jj} offset:1024")
    e("s_waitcnt vmcnt(8)")
    last_signals(0, 8, sRB, 12, T, T + 1)
    lds_arrive(2, T, T + 1)
    e(f"s_setprio {opt.get('attprio', 1)}")
    a.vm = []
    padat("preloop")
    sp.stamp("preloop"); sp.stamp("preloop", lvl=5)
    def pv0(n, half):
        i, j = (n // 4) % 4, n % 4
        d = O + 16 * j; v = KV + 16 * i + 8 + 4 * half; p = P + 8 * (n % 2) + 4 * half
        c = "0" if (n < 4 and half == 0) else f"v[{d}:{d+15}]"
        e(f"v_mfma_f32_32x32x16_bf16 v[{d}:{d+15}], v[{v}:{v+3}], v[{p}:{p+3}], {c}")
    def owrite(jj):
        for q in range(4):
            r = O + 16 * jj + 4 * q
            a.ds_op(f"ds_write_b128 v{T+jj}, v[{r}:{r+3}] offset:{(jj-1)*4096 + q*1024}")
    for jj in range(4):
        e(f"s_add_u32 s{sT1}, s{sW}, {jj}")
        e(f"s_and_b32 s{sT1}, s{sT1}, 3")
        e(f"s_mul_i32 s{sT1}, s{sT1}, 12288")
        e(f"s_add_u32 s{sT1}, s{sT1}, {ATT_LDS}")
        e(f"v_add_u32 v{T+jj}, s{sT1}, v{vSt}")
    a.raw(".p2align 6")
    for n in range(64):
        ti, j = divmod(n, 4)
        if j == 3 and ti < 15: e(f"s_waitcnt vmcnt({4 * min(2, 14 - ti)})")
        if n + 1 < 64: qk(n + 1, 0)
        sm(n, 0)
        if n + 1 < 64: qk(n + 1, 1)
        sm(n, 1)
        if n: pv0(n - 1, 0)
        sm(n, 2)
        if n: pv0(n - 1, 1)
        if j == 0 and ti + 3 < 16:
            for k in range(4):
                r = KV + 16 * ((ti + 3) % 4) + 4 * k
                e(f"buffer_load_dwordx4 v[{r}:{r+3}], v{vSt}, {S(rK if k < 2 else rV)}, s{sRun} offen offset:{2048*(ti%2) + 1024*(k%2)}{LD}")
            if ti % 2:
                e(f"s_add_u32 s{sRun}, s{sRun}, 4096")
                e(f"s_and_b32 s{sRun}, s{sRun}, 0x1ffff")
        if n == 60:
            e(f"v_mov_b32 v{T+4}, {SYNC}")
            a.ds_op(f"ds_read_b32 v{T+5}, v{T+4}", "chk")
        if n == 63:
            lds_check(0, 8, T + 4, T + 5)
            owrite(1)
        sm(n, 3)
    pv0(63, 0); pv0(63, 1)
    owrite(2)
    padat("loop")
    sp.stamp("loop"); sp.stamp("loop", lvl=4)
    a.vm = []
    owrite(3)
    sp.stamp("wr", lvl=4)
    lds_sync(7, 4, T + 4, T + 5)
    sp.stamp("sy", lvl=4)
    for p in range(3):
        for q in range(4):
            r = O + 16 + 16 * p + 4 * q
            a.ds_op(f"ds_read_b128 v[{r}:{r+3}], v{T} offset:{p*4096 + q*1024}", f"p{p}")
    for p in range(3):
        a.ds_wait(f"p{p}")
        for k in range(16): e(f"v_add_f32 v{O+k}, v{O+k}, v{O+16+16*p+k}")
    sp.stamp("rd", lvl=4)
    a.label("L_norm")
    e(f"v_mov_b32 v{T}, v{O+12}")
    e(f"v_mov_b32 v{T+1}, v{O+12}")
    e(f"v_permlane32_swap_b32 v{T}, v{T+1}")
    e(f"v_rcp_f32 v{T}, v{T+1}")
    e(f"v_mov_b32 v{T+2}, 0")
    for k in range(16): e(f"v_mul_f32 v{O+k}, v{O+k}, v{T}")
    for k in range(8): e(f"v_cvt_pk_bf16_f32 v{P+k}, v{O+2*k}, v{O+2*k+1}")
    e(f"v_cndmask_b32 v{P+6}, 0, v{P+6}, vcc")
    e(f"v_cndmask_b32 v{P+7}, 0, v{P+7}, vcc")
    e(f"buffer_store_dwordx4 v[{P}:{P+3}], v{vSt}, {S(rWS)}, s{sOoff} offen{ST}")
    e(f"buffer_store_dwordx4 v[{P+4}:{P+7}], v{vSt}, {S(rWS)}, s{sOoff} offen offset:1024{ST}")
    for k in range(16): e(f"v_fmac_f32 v{T+2}, 0, v{O+k}")
    e(f"v_mov_b32 v{T+3}, {hexf(2.0**-(BIAS+8))}")
    e(f"v_cmp_u_f32 s[66:67], v{T+2}, v{T+2}")
    e(f"v_cmp_lt_f32 s[74:75], v{T+1}, v{T+3}")
    e(f"s_or_b64 s[66:67], s[66:67], s[74:75]")
    e(f"s_cmp_eq_u64 s[66:67], 0")
    e(f"s_cselect_b32 s{sT1}, 1, s{sFlag}")
    e(f"s_cmp_eq_u32 s{sT1}, 0")
    e(f"s_cbranch_scc1 L_slow")
    sp.stamp("chk", lvl=4)
    e(f"s_waitcnt vmcnt(0)")
    sp.stamp("ost"); sp.stamp("ost", lvl=4)
    e(f"s_lshl2_add_u32 s{sT2}, s{sQB}, s{sW}")
    e(f"s_lshr_b32 s{sT3}, s{sHead}, 2")
    e(f"s_lshl2_add_u32 s{sT2}, s{sT2}, s{sT3}")
    signal(sT2, 28, T + 4, T + 5)
    lds_arrive(9, T + 6, T + 7)
    hdiag(0)
    sp.dump(pWS, sW)
    e("s_endpgm")
    a.label("L_slow")
    a.reset_hist()
    e(f"s_waitcnt vmcnt(0)")
    e(f"s_mov_b32 s{sFlag}, 1")
    e(f"s_mov_b32 s{rK+2}, 0x20000")
    e(f"s_mov_b32 s{rV+2}, 0x20000")
    e(f"v_cndmask_b32 v{Q+6}, 0, v{Q+6}, vcc")
    e(f"v_cndmask_b32 v{Q+7}, 0, v{Q+7}, vcc")
    e(f"v_mov_b32 v{M}, 0xff800000")
    e(f"s_mov_b32 s{sRun}, 0")
    e(f"s_mov_b32 s{sIt}, 64")
    a.label("L_s1")
    start = len(a.lines)
    e(f"buffer_load_dwordx4 v[{KV}:{KV+3}], v{vSt}, {S(rK)}, s{sRun} offen{LD}")
    e(f"buffer_load_dwordx4 v[{KV+4}:{KV+7}], v{vSt}, {S(rK)}, s{sRun} offen offset:1024{LD}")
    e("s_waitcnt vmcnt(0)")
    e(f"v_mfma_f32_32x32x16_bf16 v[{Sx}:{Sx+15}], v[{KV}:{KV+3}], v[{Q}:{Q+3}], 0")
    e(f"v_mfma_f32_32x32x16_bf16 v[{Sx}:{Sx+15}], v[{KV+4}:{KV+7}], v[{Q+4}:{Q+7}], v[{Sx}:{Sx+15}]")
    for k in range(8): e(f"v_max3_f32 v{M}, v{M}, v{Sx+2*k}, v{Sx+2*k+1}")
    e(f"s_add_u32 s{sRun}, s{sRun}, 2048")
    e(f"s_sub_u32 s{sIt}, s{sIt}, 1")
    e(f"s_cmp_lg_u32 s{sIt}, 0")
    e("s_cbranch_scc1 L_s1")
    check_loop(a.lines[start:])
    patch([0], 0.0)
    for r in range(16): e(f"v_mov_b32 v{O+r}, 0")
    e(f"s_mov_b32 s{sRun}, 0")
    e(f"s_mov_b32 s{sIt}, 64")
    a.label("L_s2")
    start = len(a.lines)
    for k in range(4):
        e(f"buffer_load_dwordx4 v[{KV+4*k}:{KV+4*k+3}], v{vSt}, {S(rK if k < 2 else rV)}, s{sRun} offen offset:{1024*(k%2)}{LD}")
    e("s_waitcnt vmcnt(0)")
    qk(0, 0); qk(0, 1)
    for g in range(4): sm(0, g)
    pv(0, 0); pv(0, 1)
    e(f"s_add_u32 s{sRun}, s{sRun}, 2048")
    e(f"s_sub_u32 s{sIt}, s{sIt}, 1")
    e(f"s_cmp_lg_u32 s{sIt}, 0")
    e("s_nop 11")
    e("s_cbranch_scc1 L_s2")
    check_loop(a.lines[start:])
    e("s_branch L_norm")
    a.label("L_gemm")
    a.reset_hist(); a.vm = []; a.lg = []; sp.set(nst)
    ACCG, HR, WFR, T, WO_F, XF, GF = 16, 80, 136, 152, 160, 224, 136
    OF = HR
    GF = 240
    vA0, vA1, vIO, vCt = 4, 5, 6, 7
    sH0, sH1, sI0 = 59, 60, 61
    DP = opt.get("gdepth", 5)
    PACE = opt.get("pace", 4)
    def pace():
        nonlocal PACE
        if PACE and len(a.vm) > PACE:
            e(f"s_waitcnt vmcnt({PACE})"); a.vm = a.vm[-PACE:]
    e(f"s_setprio 2")
    e(f"s_waitcnt vmcnt(0)")
    last_signals(0, 8, sRB, 12, T, T + 1)
    e(f"s_cmp_ge_u32 s{sJ}, 28")
    e(f"s_cbranch_scc1 L_end")
    e(f"s_setprio {opt.get('gprio0', 2)}")
    lds_sync(3, 4, T, T + 1)
    srd(a, rW, pWO, WO_BYTES)
    e(f"s_sub_u32 s{sWq}, s{sW}, 4")
    e(f"s_mul_i32 s{sT1}, s{sJ}, 37")
    e(f"s_lshr_b32 s{sT1}, s{sT1}, 8")
    e(f"s_mul_i32 s{sT2}, s{sT1}, 7")
    e(f"s_sub_u32 s{sCB}, s{sJ}, s{sT2}")
    e(f"s_lshl2_add_u32 s{sTB}, s{sX}, s{sT1}")
    e(f"s_lshl_b32 s{sCB}, s{sCB}, 7")
    e(f"s_mul_i32 s{sLB}, s{sWq}, 12288")
    dma_voff(a, vLane, vD, T, T + 1)
    e(f"v_and_b32 v{T}, 31, v{vLane}")
    e(f"v_mul_u32_u24 v{T}, 896, v{T}")
    e(f"v_lshrrev_b32 v{T+1}, 5, v{vLane}")
    e(f"v_lshl_add_u32 v{vIO}, v{T+1}, 3, v{T}")
    e(f"s_and_b32 s{sT1}, s{sWq}, 1")
    e(f"s_lshl1_add_u32 s{sT3}, s{sTB}, s{sT1}")
    e(f"s_mul_i32 s{sI0}, s{sT3}, {32*896}")
    e(f"s_add_u32 s{sI0}, s{sI0}, s{sCB}")
    e(f"s_lshr_b32 s{sT2}, s{sWq}, 1")
    e(f"s_lshl_b32 s{sT2}, s{sT2}, 6")
    e(f"s_add_u32 s{sI0}, s{sI0}, s{sT2}")
    def issue_w(s):
        st = s % 6
        e(f"s_add_u32 m0, s{sLB}, {st*2048}")
        e(f"s_add_u32 s{sT1}, s{sWo}, {8*896}")
        a.vm_op(f"buffer_load_dwordx4 v{vD}, {S(rB)}, s{sWo} offen lds", f"s{s}")
        e(f"s_add_u32 m0, s{sLB}, {st*2048+1024}")
        e(f"s_add_u32 s{sWo}, s{sWo}, {16*896}")
        a.vm_op(f"buffer_load_dwordx4 v{vD}, {S(rB)}, s{sT1} offen lds", f"s{s}")
    srd(a, rB, pW2, W2_BYTES)
    e(f"s_mul_i32 s{sWo}, s{sWq}, {448*896}")
    e(f"s_add_u32 s{sWo}, s{sWo}, s{sCB}")
    for s in range(6): issue_w(s); pace()
    e(f"s_mul_i32 s{sH0}, s{sT3}, 112")
    e(f"s_xor_b32 s{sT3}, s{sT3}, 1")
    e(f"s_mul_i32 s{sH1}, s{sT3}, 112")
    e(f"s_mul_i32 s{sT1}, s{sWq}, 28")
    e(f"s_add_u32 s{sT1}, s{sT1}, {H_OFF >> 10}")
    e(f"s_add_u32 s{sH0}, s{sH0}, s{sT1}")
    e(f"s_add_u32 s{sH1}, s{sH1}, s{sT1}")
    e(f"s_lshl_b32 s{sH0}, s{sH0}, 10")
    e(f"s_lshl_b32 s{sH1}, s{sH1}, 10")
    e(f"s_xor_b32 s{sT2}, s{sT2}, s{sLB}")
    tr_addr(a, vLane, vA0, vA1, T, T + 1, T + 2, sT2, xor=True)
    def wr(s, d0, off, wait=True):
        if wait: a.vm_wait(f"s{s}")
        for ct in range(2):
            d = d0 + ct * 4
            ad = vA0 if ct == 0 else vA1
            a.ds_op(f"ds_read_b64_tr_b16 v[{d}:{d+1}], v{ad} offset:{off}", f"w{s}")
            a.ds_op(f"ds_read_b64_tr_b16 v[{d+2}:{d+3}], v{ad} offset:{off+1024}", f"w{s}")
    e(f"s_lshr_b32 s{sT1}, s{sTB}, 1")
    e(f"s_lshl_b32 s{sT1}, s{sT1}, 7")
    e(f"s_add_u32 s{sT1}, s{sT1}, {12*128}")
    e(f"v_mov_b32 v{vCt}, s{sT1}")
    def issue_h(s):
        st = s % 6
        off = (s % 4) * 1024
        a.vm_op(f"buffer_load_dwordx4 v[{HR+8*st}:{HR+8*st+3}], v{vSt}, {S(rWS)}, s{sH0} offen offset:{off}{LD}", f"s{s}")
        a.vm_op(f"buffer_load_dwordx4 v[{HR+8*st+4}:{HR+8*st+7}], v{vSt}, {S(rWS)}, s{sH1} offen offset:{off}{LD}", f"s{s}")
        if s % 4 == 3:
            e(f"s_add_u32 s{sH0}, s{sH0}, 4096")
            e(f"s_add_u32 s{sH1}, s{sH1}, 4096")
    e(f"s_cmp_lg_u32 s{sWq}, 0")
    e(f"s_cbranch_scc1 L_hw")
    poll(vCt, T + 1, 16, opt.get("hsleep", 4))
    lds_arrive(8, T, T + 1)
    a.label("L_hw")
    lds_spin(2, 4, T, T + 1, 3)
    lds_spin(8, 1, T, T + 1, 3)
    e(f"s_waitcnt vmcnt(0)")
    sp.stamp("hrdy")
    for s in range(DP): issue_h(s)
    e(f"s_setprio {opt.get('gprio', 0)}")
    def mm(s, w, h):
        for ct in range(2):
            for tt in range(2):
                d = ACCG + (2*ct+tt) * 16
                c = "0" if s == 0 else f"v[{d}:{d+15}]"
                e(f"v_mfma_f32_32x32x16_bf16 v[{d}:{d+15}], v[{w+4*ct}:{w+4*ct+3}], v[{h+4*tt}:{h+4*tt+3}], {c}")
    wr(0, WFR, 0)
    XG = 144
    late = []
    def wo_first():
        e(f"s_mul_i32 s{sH0}, s{sWq}, 15360")
        e(f"s_mul_i32 s{sWo}, s{sWq}, {112*896}")
        e(f"s_add_u32 s{sWo}, s{sWo}, s{sCB}")
    def wo_dma(i):
        if i == 0: wo_first()
        e(f"s_add_u32 m0, s{sH0}, {WO_LDS + i*1024}")
        if i: e(f"s_add_u32 s{sWo}, s{sWo}, {8*896}")
        a.vm_op(f"buffer_load_dwordx4 v{vD}, {S(rW)}, s{sWo} offen lds", "wo")
    XG = XF + 8
    for i in range(15): late.append(lambda i=i: wo_dma(i))
    for q in range(4):
        late.append(lambda q=q: a.vm_op(f"buffer_load_dwordx2 v[{XG+2*q}:{XG+2*q+1}], v{vIO}, {S(rX)}, s{sI0} offen offset:{16*q}", "xg"))
    TOP = opt.get("gtop", 0)
    for s in range(28):
        if TOP and s > 0:
            if s + 1 < 28: a.vm_wait(f"s{s+1}")
            if 6 <= s + DP - 1 < 28: issue_w(s + DP - 1)
            if s + DP - 1 < 28: issue_h(s + DP - 1)
        if s + 1 < 28: wr(s + 1, WFR + ((s + 1) % 2) * 8, ((s + 1) % 6) * 2048)
        a.ds_wait(f"w{s}")
        if not opt.get("x_nogm") or s == 0: mm(s, WFR + (s % 2) * 8, HR + 8 * (s % 6))
        if opt.get("x_nogl") or TOP: continue
        if 6 <= s + DP < 28: issue_w(s + DP)
        if s + DP < 28: issue_h(s + DP)
        else:
            for _ in range(4):
                if late: late.pop(0)()
    while late: late.pop(0)()
    sp.stamp("w2")
    e(f"s_setprio {opt.get('gprio3', 0)}")
    def exchange(k):
        e(f"v_add_u32 v{T}, s{sLB}, v{vSt}")
        for sl in range(1, 4):
            for q in range(4):
                r = ACCG + 16 * sl + 4 * q
                a.ds_op(f"ds_write_b128 v{T}, v[{r}:{r+3}] offset:{(sl-1)*4096 + q*1024}")
            e(f"s_xor_b32 s{sT1}, s{sWq}, {sl}")
            e(f"s_mul_i32 s{sT1}, s{sT1}, 12288")
            e(f"v_add_u32 v{T+2+sl}, s{sT1}, v{vSt}")
        if k == 6: sp.stamp("wr", lvl=4)
        lds_sync(k, 4, T + 1, T + 2)
        if k == 6: sp.stamp("sy", lvl=4)
        for p in range(3):
            for q in range(4):
                r = ACCG + 16 + 16 * p + 4 * q
                a.ds_op(f"ds_read_b128 v[{r}:{r+3}], v{T+3+p} offset:{p*4096 + q*1024}", f"p{p}")
        for p in range(3):
            a.ds_wait(f"p{p}")
            for kk in range(16): e(f"v_add_f32 v{ACCG+kk}, v{ACCG+kk}, v{ACCG+16+16*p+kk}")
    exchange(4)
    U = ACCG + 16
    for k in range(16): e(f"v_mul_f32 v{U+k}, {hexf(-LOG2E)}, v{ACCG+k}")
    for k in range(16): e(f"v_exp_f32 v{U+k}, v{U+k}")
    for k in range(16): e(f"v_add_f32 v{U+k}, 1.0, v{U+k}")
    for k in range(16): e(f"v_rcp_f32 v{U+k}, v{U+k}")
    for k in range(16): e(f"v_mul_f32 v{GF+k}, v{ACCG+k}, v{U+k}")
    e(f"s_mul_i32 s{sT2}, s{sWq}, 15360 - 12288")
    e(f"s_add_u32 s{sT2}, s{sT2}, {WO_LDS}")
    e(f"v_add_u32 v{vA0}, s{sT2}, v{vA0}")
    e(f"v_add_u32 v{vA1}, s{sT2}, v{vA1}")
    a.vm_wait("xg")
    for s in range(8):
        wr(100 + s, WO_F + 8 * s, (28 * (s // 2) + 16 * (s % 2)) * 128, wait=False)
    for k in range(8):
        if k < 7:
            e(f"v_lshlrev_b32 v{XF+2*k}, 16, v{XG+k}")
            e(f"v_and_b32 v{XF+2*k+1}, 0xffff0000, v{XG+k}")
        else:
            e(f"v_lshlrev_b32 v{XF+14}, 16, v{XG+7}")
            e(f"v_and_b32 v{XF+15}, 0xffff0000, v{XG+7}")
    a.ds_wait_all()
    lds_sync(5, 4, T + 1, T + 2)
    srd(a, rW3, pOUT, X_BYTES)
    e(f"s_and_b32 s{sT1}, s{sWq}, 1")
    e(f"s_lshl1_add_u32 s{sT1}, s{sTB}, s{sT1}")
    e(f"s_lshl_b32 s{sH0}, s{sT1}, 15")
    e(f"s_lshl_b32 s{sT1}, s{sWq}, 13")
    e(f"s_add_u32 s{sH0}, s{sH0}, s{sT1}")
    e(f"s_add_u32 s{sH0}, s{sH0}, {O_OFF}")
    e(f"s_xor_b32 s{sH1}, s{sH0}, 32768")
    e(f"v_min_u32 v{T}, 1, v{vLane}")
    e(f"v_lshlrev_b32 v{T}, 2, v{T}")
    e(f"s_lshl3_add_u32 s{sT1}, s{sTB}, s{sWq}")
    e(f"s_add_u32 s{sT1}, s{sT1}, 28")
    e(f"v_add_lshl_u32 v{vCt}, v{T}, s{sT1}, 7")
    e(f"v_lshrrev_b32 v{T}, 5, v{vLane}")
    e(f"v_lshl_add_u32 v{vIO}, v{T}, 3, v{vIO}")
    sp.stamp("grdy")
    lds_spin(9, 4, T, T + 1, 3)
    e(f"s_setprio 2")
    poll(vCt, T + 1, 4, opt.get("osleep", 1))
    sp.stamp("ordy"); sp.stamp("ordy", lvl=4)
    for s in range(8):
        if s == 4:
            e(f"s_add_u32 s{sH0}, s{sH0}, 4096")
            e(f"s_add_u32 s{sH1}, s{sH1}, 4096")
        a.vm_op(f"buffer_load_dwordx4 v[{OF+8*s}:{OF+8*s+3}], v{vSt}, {S(rWS)}, s{sH0} offen offset:{(s%4)*1024}{LD}", f"o{s}")
        a.vm_op(f"buffer_load_dwordx4 v[{OF+8*s+4}:{OF+8*s+7}], v{vSt}, {S(rWS)}, s{sH1} offen offset:{(s%4)*1024}{LD}", f"o{s}")
    sp.stamp("oiss", lvl=4, nowait=True)
    for s in range(8):
        a.vm_wait(f"o{s}")
        if s in (0, 7): sp.stamp("o", lvl=4, nowait=True)
        mm(s, WO_F + 8 * s, OF + 8 * s)
    exchange(6)
    sp.stamp("ex", lvl=4)
    for k in range(16): e(f"v_fma_f32 v{ACCG+k}, v{ACCG+k}, v{GF+k}, v{XF+k}")
    for k in range(8): e(f"v_cvt_pk_bf16_f32 v{U+k}, v{ACCG+2*k}, v{ACCG+2*k+1}")
    for pr in range(2):
        e(f"v_permlane32_swap_b32 v{U+4*pr}, v{U+4*pr+2}")
        e(f"v_permlane32_swap_b32 v{U+4*pr+1}, v{U+4*pr+3}")
    e(f"buffer_store_dwordx4 v[{U}:{U+3}], v{vIO}, {S(rW3)}, s{sI0} offen{opt.get('ost', '')}")
    e(f"buffer_store_dwordx4 v[{U+4}:{U+7}], v{vIO}, {S(rW3)}, s{sI0} offen offset:32{opt.get('ost', '')}")
    hdiag(1)
    if opt.get("padg"):
        e("v_mov_b32 v0, 0")
        e(f"global_load_dword v0, v0, s[{pDBG}:{pDBG+1}] offset:4 sc1")
        e("s_waitcnt vmcnt(0)")
        e("v_readfirstlane_b32 s76, v0")
        e("s_not_b32 s76, s76")
    if opt.get("pad"):
        a.label("L_pad")
        e("s_memrealtime s[80:81]")
        e("s_waitcnt lgkmcnt(0)")
        e("s_sub_u32 s80, s80, s76")
        e(f"s_cmp_lt_u32 s80, {opt['pad']}")
        e("s_cbranch_scc1 L_pad")
    sp.stamp("end"); sp.stamp("end", lvl=4)
    if sp.on == 4: e("s_waitcnt vmcnt(0)")
    sp.stamp("drain", lvl=4)
    sp.dump(pWS, sW)
    a.label("L_end")
    e("s_endpgm")
    return kd(NAME, 256)

if __name__ == "__main__":
    opt = json.loads(sys.argv[2]) if len(sys.argv) > 2 else {}
    a = Asm()
    a.raw("; one workgroup per CU; workgroups hand data over through d_ws (write-through stores + counters)")
    a.raw("; @launch grid=(256,1,1) block=(512,1,1) lds=163840")
    a.raw('.amdgcn_target "amdgcn-amd-amdhsa--gfx950"')
    a.raw(".text")
    k = gen(a, opt)
    a.raw("L_code_end:")
    a.raw(".fill 64, 4, 0xbf800000")
    a.raw("    s_endpgm")
    a.raw('.section .rodata,"a"')
    a.raw(k)
    open(sys.argv[1], "w").write(a.text())
    print("nops inserted:", a.nops, "lines:", len(a.lines))
```

```python
import sys, json
from common import *
from gemm64 import *
BIAS = 32.0
NAME = "recurrent_scan__softmax_full_mha__glu_gated_swiglu__prompt_kernel"

def gen(a, opt):
    BIAS = float(opt.get("bias", 64))
    ST = opt.get("st", " sc1")
    LD = " sc1"
    NPH = opt.get("nph", 2)
    kernel_head(a, NAME)
    e = a.e
    uid = [0]
    def lab(p):
        uid[0] += 1; return f"L_{p}{uid[0]}"
    pX, pWQ, pWO, pW1, pW3, pW2, pOUT, pDBG, pWS = 4, 6, 8, 12, 14, 16, 18, 20, 22
    rX, rW1, rW3, rA, rB, rWS = 24, 28, 32, 36, 40, 44
    S = lambda r: f"s[{r}:{r+3}]"
    sW, sTT, sG, sRB, sCOL, sTTG = 48, 49, 50, 51, 52, 53
    sSO = [[54, 55], [56, 56], [57, 57]]
    sP64, sM0, sCurA, sCurB, sOnes, sLo, sHi, sHoff, sQKoff, sQKstep = 58, 59, 60, 61, 62, 63, 64, 65, 66, 67
    sT1, sT2, sT3, sStat, sPh, sHoff2 = 68, 69, 70, 71, 72, 73
    X0, AA, AB, WF, T0 = 16, 128, 160, 192, 216
    vLane, vSt, vD0, vD1, vD2B = 1, 2, 3, 4, 250
    vTB = [[5, 6], [7, 8], [9, 243]]
    vTW = [10, 11]
    vXR = [12, 13, 14, 15]
    vK, vC1, vSc, vP6, vP7, vFlag, vV3, vV4 = 232, 233, 234, 236, 237, 238, 239, 235
    vXW = [240, 241]; vStat = 242; vNM = 243; vAcc = [244, 245, 246, 247]; vV1, vV2 = 248, 249
    vDum = 251
    RAW = 128
    SCR = 7 * 16384
    SYNC = 163840 - 256
    e("s_cmp_ge_u32 s2, 256")
    e("s_cbranch_scc1 L_end")
    sp = Stamper(a, opt.get("stamp"), 0); sp.allreal = opt.get("rt")
    sp.stamp("rt", True); sp.stamp("start")
    if opt.get("hdiag") or opt.get("pad") or opt.get("padat"): e("s_memrealtime s[76:77]"); e("s_memtime s[78:79]")
    e("s_load_dwordx16 s[4:19], s[0:1], 0")
    e("s_load_dwordx4 s[20:23], s[0:1], 64")
    RL = 3
    sWR, sXa, sXb, sGS = sStat, sOnes, sLo, sHi
    e(f"v_lshrrev_b32 v22, 6, v0")
    e(f"v_and_b32 v{vLane}, 63, v0")
    e(f"v_readfirstlane_b32 s{sW}, v22")
    e(f"s_and_b32 s{sT1}, s2, 1")
    e(f"s_bfe_u32 s{sT2}, s2, 0x30003")
    e(f"s_lshl3_add_u32 s{sRB}, s{sT1}, s{sT2}")
    e(f"s_bfe_u32 s{sT1}, s2, 0x20001")
    e(f"s_lshr_b32 s{sT2}, s2, 6")
    e(f"s_lshl2_add_u32 s{sCOL}, s{sT1}, s{sT2}")
    e(f"v_bfe_u32 v22, v0, 3, 3")
    e(f"v_and_b32 v23, 7, v0")
    e(f"s_lshl_b32 s{sT1}, s{sT2}, 2")
    e(f"s_and_b32 s{sWR}, s{sT1}, 4")
    e(f"s_xor_b32 s{sWR}, s{sWR}, s{sW}")
    e(f"s_and_b32 s{sGS}, s{sT1}, 8")
    e(f"s_lshl3_add_u32 s{sT1}, s{sRB}, s{sWR}")
    e(f"s_lshl4_add_u32 s{sT2}, s{sT1}, s{sGS}")
    e(f"s_xor_b32 s{sT1}, s{sT2}, 8")
    e(f"s_mulk_i32 s{sT2}, 896")
    e(f"s_mulk_i32 s{sT1}, 896")
    e(f"v_mul_u32_u24 v24, 896, v22")
    e(f"v_lshl_add_u32 v24, v23, 4, v24")
    e(f"s_mov_b32 s{rX+2}, {hex(X_BYTES)}")
    e(f"s_mov_b32 s{rX+3}, 0x20000")
    e(f"s_cmp_ge_u32 s{sW}, 4")
    e("s_waitcnt lgkmcnt(0)")
    e(f"s_mov_b64 s[{rX}:{rX+1}], s[{pX}:{pX+1}]")
    def xloads(lo, hi, sa, sb):
        for k in range(lo, hi):
            gi, i = divmod(k, 7)
            r = RAW + k * 4
            e(f"buffer_load_dwordx4 v[{r}:{r+3}], v24, {S(rX)}, s{sa if gi == 0 else sb} offen offset:{i*128}{opt.get('xnt', '')}")
    def touch():
        sh = opt.get("touchsh", 21)
        e(f"v_min_u32 v25, {(WS_USED >> sh) - 1}, v{vLane}")
        e(f"v_lshlrev_b32 v25, {sh}, v25")
        e(f"global_load_dword v{vDum+1}, v25, s[{pWS}:{pWS+1}]")
        e(f"v_mov_b32 v25, 0")
        for p in (pW1, pW3, pWQ, pW2, pWO, pOUT, pDBG):
            e(f"global_load_dword v{vDum+1}, v25, s[{p}:{p+1}]")
    XE = opt.get("xe", 10)
    e(f"s_cbranch_scc1 L_x0")
    a.skip_begin(); xloads(0, XE, sT2, sT1)
    e(f"s_branch L_x1")
    a.label("L_x0")
    e(f"s_getpc_b64 s[74:75]")
    a.label("L_pc")
    e(f"s_add_u32 s74, s74, {NAME}-L_pc")
    e(f"s_addc_u32 s75, s75, -1")
    e(f"s_lshr_b32 s3, s2, 3")
    e(f"s_lshl_b32 s3, s3, 7")
    e(f"v_and_b32 v20, 255, v0")
    e(f"v_lshl_add_u32 v20, v20, 12, s3")
    e(f"v_min_u32 v{vDum}, L_code_end-{NAME}-4, v20")
    e(f"global_load_dword v{vDum}, v{vDum}, s[74:75]")
    if opt.get("touch") == 1: touch()
    a.skip_end()
    a.label("L_x1")
    sp.stamp("xiss", lvl=3)
    e(f"s_mov_b32 s{sXa}, s{sT2}")
    e(f"s_mov_b32 s{sXb}, s{sT1}")
    def padat(nm):
        if opt.get("padat", [None])[0] != nm: return
        l = lab("pa"); a.label(l)
        e("s_memrealtime s[80:81]")
        e("s_waitcnt lgkmcnt(0)"); a.lg = []
        e("s_sub_u32 s80, s80, s76")
        e(f"s_cmp_lt_u32 s80, {opt['padat'][1]}")
        e(f"s_cbranch_scc1 {l}")
    def srd2(d, base, nbytes):
        e(f"s_mov_b64 s[{d}:{d+1}], s[{base}:{base+1}]")
        e(f"s_mov_b32 s{d+2}, {hex(nbytes)}")
        e(f"s_mov_b32 s{d+3}, 0x20000")
    if opt.get("wsoff"):
        e(f"s_add_u32 s{pWS}, s{pWS}, {opt['wsoff'] << 20}")
        e(f"s_addc_u32 s{pWS+1}, s{pWS+1}, 0")
    srd2(rWS, pWS, WS_USED)
    e(f"s_or_b32 s{sT3}, s2, s{sW}")
    e(f"s_cbranch_scc1 L_noinit")
    a.skip_begin()
    e(f"v_lshlrev_b32 v25, 7, v{vLane}")
    e(f"v_mov_b32 v26, 0")
    e(f"s_mov_b32 s3, {CNT_OFF}")
    for q in range(5):
        if q: e(f"s_add_u32 s3, s3, 8192")
        e(f"buffer_store_dword v26, v25, {S(rWS)}, s3 offen sc1")
    a.skip_end()
    a.label("L_noinit")
    if opt.get("padg"):
        e("s_cmp_ge_u32 s2, 8")
        e("s_cbranch_scc1 L_pg")
        e(f"s_cmp_lg_u32 s{sW}, 7")
        e("s_cbranch_scc1 L_pg")
        e("s_not_b32 s80, s76")
        e("v_mov_b32 v25, 0"); e("v_mov_b32 v26, s80")
        e(f"global_atomic_umax v25, v26, s[{pDBG}:{pDBG+1}] offset:4 sc1")
        a.label("L_pg")
    e(f"s_and_b32 s{sTT}, s{sW}, 3")
    e(f"s_lshr_b32 s{sG}, s{sW}, 2")
    e(f"s_lshl_b32 s{sM0}, s{sW}, 10")
    e(f"s_lshl_b32 s{sPh}, s{sG}, 1")
    sTc0a, sTc0b = sCurA, sCurB
    e(f"s_cmp_ge_u32 s{sCOL}, 12")
    e(f"s_cbranch_scc1 L_r0f")
    srd2(rA, pWQ, WQ_BYTES)
    e(f"s_mov_b64 s[{rB}:{rB+1}], s[{pWQ}:{pWQ+1}]")
    e(f"s_and_b32 s{sT2}, s{sCOL}, 3")
    e(f"s_mul_i32 s{sSO[0][0]}, s{sCOL}, 224")
    e(f"s_cmp_eq_u32 s{sT2}, 3")
    e(f"s_cselect_b32 s{sT3}, 32, 0")
    e(f"s_sub_u32 s{sSO[0][0]}, s{sSO[0][0]}, s{sT3}")
    e(f"s_add_u32 s{sSO[0][1]}, s{sSO[0][0]}, 128")
    e(f"s_mul_i32 s{sTc0a}, s{sG}, 112")
    e(f"s_add_u32 s{sTc0a}, s{sTc0a}, s{sT3}")
    e(f"s_add_u32 s{sTc0b}, s{sTc0a}, 56")
    e(f"s_movk_i32 s{sP64}, 2688")
    e(f"s_branch L_r0j")
    a.label("L_r0f")
    srd2(rA, pW1, W1_BYTES)
    e(f"s_mov_b64 s[{rB}:{rB+1}], s[{pW3}:{pW3+1}]")
    e(f"s_add_u32 s{sT1}, s{sCOL}, 12")
    e(f"s_lshl_b32 s{sSO[0][0]}, s{sT1}, 7")
    e(f"s_mov_b32 s{sSO[0][1]}, s{sSO[0][0]}")
    e(f"s_lshl_b32 s{sTc0a}, s{sG}, 6")
    e(f"s_add_u32 s{sTc0b}, s{sTc0a}, 128")
    e(f"s_movk_i32 s{sP64}, 3584")
    a.label("L_r0j")
    a.reset_hist()
    e(f"s_mov_b32 s{rB+2}, s{rA+2}")
    e(f"s_mov_b32 s{rB+3}, 0x20000")
    e(f"s_and_b32 s{sT3}, s{sRB}, 7")
    if opt.get("wpf0", 1):
        e(f"s_cmp_{'lt' if opt.get('wpf0', 2) == 1 else 'ge'}_u32 s{sW}, 4")
        e(f"s_cbranch_scc1 L_w0")
        a.skip_begin()
        W0R = opt.get("w0r", 14)
        e(f"s_mul_i32 s{sT2}, s{sTT}, {8*W0R}")
        e(f"s_add_u32 s{sT2}, s{sT2}, s{sT3}")
        e(f"v_min_u32 v30, {W0R-1}, v{vLane}")
        e(f"v_lshl_add_u32 v30, v30, 3, s{sT2}")
        e(f"v_mul_lo_u32 v30, v30, s{sP64}")
        e(f"buffer_load_dword v{vDum+1}, v30, {S(rA)}, s{sSO[0][0]} offen{opt.get('pnt', '')}")
        e(f"buffer_load_dword v{vDum+1}, v30, {S(rB)}, s{sSO[0][1]} offen{opt.get('pnt', '')}")
        a.skip_end()
        a.label("L_w0")
    e(f"v_lshrrev_b32 v25, 2, v{vLane}")
    e(f"v_and_b32 v25, 4, v25")
    e(f"v_xor_b32 v25, v25, v23")
    e(f"v_lshl_add_u32 v26, s{sW}, 3, v22")
    e(f"v_mul_lo_u32 v{vD0}, v26, s{sP64}")
    e(f"v_lshl_add_u32 v{vD0}, v25, 4, v{vD0}")
    e(f"v_mul_u32_u24 v{vD1}, 3584, v26")
    e(f"v_lshl_add_u32 v{vD1}, v25, 4, v{vD1}")
    e(f"s_lshl_b32 s{sT1}, s{sP64}, 5")
    e(f"v_subrev_u32 v32, s{sT1}, v{vD0}")
    vRow, vSwz, vCol = vV1, vV2, vV3
    e(f"v_lshrrev_b32 v26, 5, v{vLane}")
    e(f"v_bfe_u32 v27, v{vLane}, 2, 2")
    e(f"v_lshl_add_u32 v27, v26, 3, v27")
    e(f"v_lshlrev_b32 v{vRow}, 7, v27")
    e(f"v_and_b32 v28, 8, v{vLane}")
    e(f"v_lshlrev_b32 v{vSwz}, 3, v28")
    e(f"v_and_b32 v29, 3, v{vLane}")
    e(f"v_and_b32 v30, 16, v{vLane}")
    e(f"v_lshlrev_b32 v30, 1, v30")
    e(f"v_lshl_add_u32 v{vCol}, v29, 3, v30")
    def traddr(d, stc, t0, t1):
        return [f"v_add_u32 v{t0}, s{stc}, v{vCol}", f"v_and_b32 v{t1}, 127, v{t0}", f"v_xor_b32 v{t1}, v{t1}, v{vSwz}",
                f"v_and_b32 v{t0}, 128, v{t0}", f"v_lshl_add_u32 v{t0}, v{t0}, 6, v{t1}", f"v_add_u32 v{d}, v{t0}, v{vRow}"]
    for t in traddr(vTB[0][0], sTc0a, 30, 31) + traddr(vTB[0][1], sTc0b, 30, 31): e(t)
    e(f"s_and_b32 s{sT1}, s{sWR}, 1")
    e(f"s_lshl4_add_u32 s{sT1}, s{sT1}, s{sGS}")
    e(f"v_add_u32 v30, s{sT1}, v22")
    e(f"v_xor_b32 v30, v30, v23")
    e(f"v_lshlrev_b32 v30, 4, v30")
    e(f"v_lshrrev_b32 v31, 1, v23")
    e(f"v_lshl_add_u32 v30, v31, 12, v30")
    e(f"v_and_b32 v31, 1, v23")
    e(f"v_lshl_add_u32 v30, v31, 9, v30")
    e(f"s_lshr_b32 s{sT1}, s{sWR}, 1")
    e(f"v_lshl_add_u32 v{vXW[0]}, s{sT1}, 10, v30")
    e(f"v_add_u32 v{vXW[1]}, 0x10000, v{vXW[0]}")
    e(f"v_and_b32 v30, 31, v{vLane}")
    e(f"v_xor_b32 v30, v30, v26")
    e(f"v_lshlrev_b32 v30, 4, v30")
    e(f"v_lshl_add_u32 v30, v26, 9, v30")
    e(f"v_lshl_add_u32 v{vXR[0]}, s{sTT}, 10, v30")
    for q in range(1, 4):
        e(f"v_xor_b32 v{vXR[q]}, {q*4096 + q*32}, v{vXR[0]}")
    e(f"s_lshl4_add_u32 s{sT1}, s{sWR}, s{sGS}")
    e(f"v_add_lshl_u32 v{vStat}, v22, s{sT1}, 2")
    e(f"s_mul_i32 s{sT2}, s{sTT}, 112")
    e(f"s_add_u32 s{sT1}, s{sT3}, s{sT2}")
    e(f"v_min_u32 v30, 13, v{vLane}")
    e(f"v_lshl_add_u32 v30, v30, 3, s{sT1}")
    e(f"v_mul_u32_u24 v{vDum+3}, 3584, v30")
    e(f"s_lshl_b32 s{sT2}, s{sTT}, 6")
    e(f"s_add_u32 s{sT1}, s{sT3}, s{sT2}")
    e(f"s_add_u32 s{sT1}, s{sT1}, 192")
    e(f"v_min_u32 v31, 7, v{vLane}")
    e(f"v_lshl_add_u32 v31, v31, 3, s{sT1}")
    e(f"v_mul_lo_u32 v{vDum+2}, v31, s{sP64}")
    e(f"s_lshl_b32 s{sP64}, s{sP64}, 6")
    srd2(rW1, pW1, W1_BYTES)
    srd2(rW3, pW3, W1_BYTES)
    e(f"s_lshl_b32 s{sSO[1][0]}, s{sCOL}, 7")
    e(f"s_lshr_b32 s{sT1}, s{sCOL}, 1")
    e(f"s_add_u32 s{sT1}, s{sT1}, 16")
    e(f"s_lshl_b32 s{sSO[2][0]}, s{sT1}, 7")
    e(f"s_cmp_lt_u32 s{sW}, 4")
    e(f"s_cbranch_scc1 L_x2")
    a.skip_begin(); xloads(0, XE, sXa, sXb); a.skip_end()
    a.label("L_x2")
    xloads(XE, 14, sXa, sXb)
    e(f"s_lshl_b32 s{sStat}, s2, 9")
    e(f"s_add_u32 s{sStat}, s{sStat}, {ST_OFF}")
    e(f"s_mov_b32 s{sOnes}, 0x3f803f80")
    e(f"s_movk_i32 s{sLo}, 0x3f80")
    e(f"s_mov_b32 s{sHi}, 1.0")
    def slot(c):
        if c < 3: return 7 + c
        if c < 10: return c - 3
        if c == 20: return 7
        return slot(c - 9)
    dma_next = [3]
    def dma(c, track=True):
        r, cc = divmod(c, 7)
        if cc == 0:
            e(f"s_mov_b32 s{sCurA}, s{sSO[r][0]}")
            if r == 0: e(f"s_mov_b32 s{sCurB}, s{sSO[r][1]}")
        va, vb = [(vD0, vD0), (vD1, vD1), (vD1, vD2B)][r]
        sa, sb = (rA, rB) if r == 0 else (rW1, rW3)
        inc = f"s{sP64}" if r == 0 else f"{64*3584}"
        e(f"s_add_u32 m0, s{sM0}, {slot(c)*16384}")
        if cc: e(f"s_add_u32 s{sCurA}, s{sCurA}, {inc}")
        e(f"buffer_load_dwordx4 v{va}, {S(sa)}, s{sCurA} offen lds")
        e(f"s_add_u32 m0, s{sM0}, {slot(c)*16384+8192}")
        if cc and r == 0: e(f"s_add_u32 s{sCurB}, s{sCurB}, {inc}")
        e(f"buffer_load_dwordx4 v{vb}, {S(sb)}, s{sCurB if r == 0 else sCurA} offen lds")
        if track: a.vm += [f"c{c}", f"c{c}"]
    for q in range(8): e(f"v_mov_b32 v{T0+8+q}, 0")
    e(f"s_cmp_lt_u32 s{sW}, 4")
    e(f"s_cbranch_scc1 L_lnA")
    e(f"s_waitcnt vmcnt(0)")
    def dma4(c):
        dma(c, track=False)
        e(f"s_add_u32 m0, s{sM0}, {slot(c)*16384 - 4096}")
        e(f"buffer_load_dwordx4 v32, {S(rA)}, s{sCurA} offen lds")
        e(f"s_add_u32 m0, s{sM0}, {slot(c)*16384 + 8192 - 4096}")
        e(f"buffer_load_dwordx4 v32, {S(rB)}, s{sCurB} offen lds")
        a.vm += [f"c{c}"] * 4
    C2 = opt.get("c2pos", 1)
    for c in range(3 if C2 == 0 else 2): dma4(c)
    e(f"s_branch L_lnB")
    a.label("L_lnA")
    e(f"s_lshl1_add_u32 s{sCurA}, s{sP64}, s{sSO[0][0]}")
    e(f"s_lshl1_add_u32 s{sCurB}, s{sP64}, s{sSO[0][1]}")
    e(f"s_waitcnt vmcnt(0)")
    a.label("L_lnB")
    a.reset_hist()
    padat("x0")
    sp.stamp("x0"); sp.stamp("x0", lvl=3)
    def wpf():
        if opt.get("w0r", 14) < 14:
            e(f"buffer_load_dword v{vDum+1}, v{vDum+2}, {S(rA)}, s{sSO[0][0]} offen{opt.get('pnt', '')}")
            e(f"buffer_load_dword v{vDum+1}, v{vDum+2}, {S(rB)}, s{sSO[0][1]} offen{opt.get('pnt', '')}")
        for r in (1, 2):
            e(f"buffer_load_dword v{vDum+1}, v{vDum+3}, {S(rW1)}, s{sSO[r][0]} offen{opt.get('pnt', '')}")
            e(f"buffer_load_dword v{vDum+1}, v{vDum+3}, {S(rW3)}, s{sSO[r][0]} offen{opt.get('pnt', '')}")
        if opt.get("w2pf", 3) == 3:
            e(f"s_lshl2_add_u32 s{sT1}, s2, s{sW}")
            e(f"s_mul_i32 s{sT2}, s{sT1}, {13*128}")
            e(f"s_lshl_b32 s{sT1}, s{sT1}, 9")
            e(f"v_min_u32 v{vDum+2}, 12, v{vLane}")
            e(f"v_lshl_add_u32 v{vDum+2}, v{vDum+2}, 7, s{sT2}")
            e(f"v_min_u32 v{vDum+2}, {W2_BYTES-4}, v{vDum+2}")
            e(f"v_min_u32 v{vDum+3}, 3, v{vLane}")
            e(f"v_lshl_add_u32 v{vDum+3}, v{vDum+3}, 7, s{sT1}")
            e(f"v_min_u32 v{vDum+3}, {WO_BYTES-4}, v{vDum+3}")
            e(f"global_load_dword v{vDum+1}, v{vDum+2}, s[{pW2}:{pW2+1}]{opt.get('p2nt', '')}")
            e(f"global_load_dword v{vDum+1}, v{vDum+3}, s[{pWO}:{pWO+1}]")
    AC = T0 + 8
    def reduce2(d0, d1):
        for g in range(2): e(f"v_add_f32 v{AC+4*g}, v{AC+4*g}, v{AC+4*g+1}")
        for g in range(2): e(f"v_add_f32 v{AC+4*g+2}, v{AC+4*g+2}, v{AC+4*g+3}")
        for g, d in enumerate((d0, d1)): e(f"v_add_f32 v{d}, v{AC+4*g}, v{AC+4*g+2}")
        for m in ("quad_perm:[1,0,3,2]", "quad_perm:[2,3,0,1]", "row_half_mirror"):
            for d in (d0, d1): e(f"v_add_f32_dpp v{d}, v{d}, v{d} {m} row_mask:0xf bank_mask:0xf")
    for i in range(28):
        for g in range(2): e(f"v_dot2c_f32_bf16 v{AC+4*g+i%4}, s{sOnes}, v{RAW+g*28+i}")
    reduce2(vAcc[0], vAcc[1])
    for q in range(8): e(f"v_mov_b32 v{AC+q}, 0")
    for g in range(2): e(f"v_mul_f32 v{vAcc[g]}, {hexf(-1.0/448)}, v{vAcc[g]}")
    if C2 == 1:
        e(f"s_cmp_lt_u32 s{sW}, 4")
        e(f"s_cbranch_scc1 L_c2")
        a.skip_begin(); dma4(2); a.skip_end()
        a.label("L_c2")
    sp.stamp("pre", lvl=3)
    pend = None
    for gi in range(2):
        for i in range(7):
            r = RAW + gi * 28 + i * 4
            for k in range(4):
                e(f"v_dot2_f32_bf16 v{T0+2*k}, v{r+k}, s{sLo}, v{vAcc[gi]}")
                e(f"v_dot2_f32_bf16 v{T0+2*k+1}, v{r+k}, s{sHi}, v{vAcc[gi]}")
            if pend: pend()
            for k in range(4):
                e(f"v_cvt_pk_bf16_f32 v{r+k}, v{T0+2*k}, v{T0+2*k+1}")
            def pend(r=r, gi=gi, i=i):
                off = i * 16384
                a.ds_op(f"ds_write_b128 v{vXW[off >> 16]}, v[{r}:{r+3}] offset:{off & 0xffff}", "xw")
                if i == 6 and gi == 0:
                    e(f"v_xor_b32 v{vXW[0]}, 128, v{vXW[0]}")
                    e(f"v_xor_b32 v{vXW[1]}, 128, v{vXW[1]}")
    pend()
    if opt.get("wpf", 1) == 3:
        e(f"s_cmp_ge_u32 s{sW}, 4")
        e(f"s_cbranch_scc1 L_wp3")
        a.skip_begin(); wpf(); a.skip_end()
        a.label("L_wp3")
    if C2 == 2:
        e(f"s_cmp_lt_u32 s{sW}, 4")
        e(f"s_cbranch_scc1 L_c2")
        a.skip_begin(); dma4(2); a.skip_end()
        a.label("L_c2")
    sp.stamp("post", lvl=3)
    for i in range(28):
        for g in range(2): e(f"v_dot2c_f32_bf16 v{AC+4*g+i%4}, v{RAW+g*28+i}, v{RAW+g*28+i}")
    e(f"v_mov_b32 v{T0}, {hexf(1e-5)}")
    e(f"v_mov_b32 v{T0+1}, {hexf(1e-5)}")
    e(f"v_xor_b32 v{T0+2}, 32, v{vStat}")
    reduce2(vAcc[0], vAcc[1])
    for g in range(2): e(f"v_fmac_f32 v{T0+g}, {hexf(1.0/448)}, v{vAcc[g]}")
    e(f"s_cmp_ge_u32 s{sW}, 4")
    e(f"s_cbranch_scc1 L_lnD")
    a.skip_begin()
    e(f"s_or_b32 s{sT3}, s2, s{sW}")
    e(f"s_cbranch_scc1 L_noflag")
    e(f"v_mov_b32 v25, 0")
    e(f"v_mov_b32 v26, 1")
    e(f"global_store_dword v25, v26, s[{pDBG}:{pDBG+1}] sc1")
    a.label("L_noflag")
    if opt.get("touch") == 2: touch()
    if opt.get("wpf", 1) == 1: wpf()
    e(f"s_branch L_lnE")
    a.skip_end()
    a.label("L_lnD")
    sp.stamp("ln", lvl=3, nowait=True)
    a.vm_wait("c1")
    a.label("L_lnE")
    a.ds_wait_all()
    sp.stamp("ln")
    sp.stamp("c1", lvl=3)
    e("s_barrier")
    padat("b1")
    sp.stamp("b1"); sp.stamp("b1", lvl=3)
    def deferred():
        t0, t1, t2 = AB, AB + 1, AB + 2
        G = lambda *ins: (lambda: [e(x) for x in ins], sum(2 if x.startswith("s_") else 4 for x in ins))
        L = []
        L.append(G(f"v_xor_b32 v{vD2B}, 32, v{vD1}", f"v_lshlrev_b32 v{vSt}, 4, v{vLane}", f"s_mov_b32 vcc_lo, -1", f"s_mov_b32 vcc_hi, 0"))
        L.append(G(f"s_lshl2_add_u32 s{sTTG}, s{sRB}, s{sTT}", f"s_lshl_b32 s{sHoff}, s{sG}, 6"))
        L += [G(x) for x in traddr(vTB[1][0], sHoff, t0, t1)]
        L.append(G(f"v_add_u32 v{vTB[1][1]}, 8192, v{vTB[1][0]}"))
        L.append(G(f"s_and_b32 s{sHoff}, s{sCOL}, 1", f"s_lshl_b32 s{sHoff2}, s{sHoff}, 1", f"s_lshl_b32 s{sHoff}, s{sHoff2}, 5",
                   f"v_xor_b32 v{t0}, s{sHoff}, v{vCol}"))
        L.append(G(f"v_xor_b32 v{t0}, v{t0}, v{vSwz}", f"v_and_b32 v{t1}, 16, v{vLane}"))
        L.append(G(f"v_lshl_add_u32 v{t0}, v{t1}, 9, v{t0}", f"v_add_u32 v{vTB[2][0]}, v{t0}, v{vRow}", f"v_xor_b32 v{vTB[2][1]}, 32, v{vTB[2][0]}"))
        L.append(G(f"s_mul_i32 s{sHoff}, s{sTTG}, 112", f"s_add_u32 s{sHoff2}, s{sHoff2}, s{sHoff}", f"s_lshr_b32 s{sQKoff}, s{sSO[2][0]}, 5",
                   f"s_add_u32 s{sHoff2}, s{sHoff2}, s{sQKoff}", f"s_lshl_b32 s{sHoff2}, s{sHoff2}, 10", f"s_add_u32 s{sHoff2}, s{sHoff2}, {H_OFF}"))
        L.append(G(f"s_lshl1_add_u32 s{sHoff}, s{sG}, s{sHoff}", f"s_lshl2_add_u32 s{sHoff}, s{sCOL}, s{sHoff}", f"s_lshl_b32 s{sHoff}, s{sHoff}, 10",
                   f"s_add_u32 s{sHoff}, s{sHoff}, {H_OFF}"))
        L.append(G(f"s_lshl1_add_u32 s{sQKoff}, s{sCOL}, s{sG}", f"s_lshl_b32 s{sQKoff}, s{sQKoff}, 7", f"s_add_u32 s{sQKoff}, s{sQKoff}, s{sTTG}",
                   f"s_lshl_b32 s{sQKoff}, s{sQKoff}, 11", f"s_add_u32 s{sQKstep}, s{sHoff}, {12*4096}", f"s_cmp_ge_u32 s{sCOL}, 12",
                   f"s_cselect_b32 s{sQKoff}, s{sQKstep}, s{sQKoff}"))
        L.append(G(f"s_lshr_b32 s{sQKstep}, s{sCOL}, 2", f"s_cmp_eq_u32 s{sQKstep}, 1", f"s_cselect_b32 s{sOnes}, s{sOnes}, 0", f"s_cselect_b32 s{sHi}, s{sLo}, 0",
                   f"s_cmp_eq_u32 s{sQKstep}, 2", f"s_cselect_b32 s{sOnes}, s{sLo}, s{sOnes}"))
        L.append(G(f"v_mov_b32 v{vP6}, s{sOnes}", f"v_mov_b32 v{vP7}, s{sHi}"))
        L.append(G(f"v_lshrrev_b32 v{t2}, 5, v{vLane}", f"v_bfe_u32 v{t0}, v{vLane}, 2, 2", f"v_lshl_add_u32 v{t0}, v{t2}, 2, v{t0}"))
        L.append(G(f"v_lshrrev_b32 v{t1}, 1, v{t0}", f"v_lshlrev_b32 v{t1}, 3, v{t1}", f"v_xor_b32 v{t1}, v{t1}, v{vCol}"))
        L.append(G(f"s_lshl_b32 s{sQKstep}, s{sW}, 11", f"s_add_u32 s{sQKstep}, s{sQKstep}, {SCR}", f"v_lshl_add_u32 v{t0}, v{t0}, 6, v{t1}",
                   f"v_add_u32 v{vV2}, s{sQKstep}, v{t0}"))
        L.append(G(f"v_xor_b32 v{vV3}, 32, v{vV2}", f"v_bfe_u32 v{t0}, v{vLane}, 1, 3", f"v_xor_b32 v{t0}, v{t0}, v{t2}"))
        L.append(G(f"v_and_b32 v{t1}, 31, v{vLane}", f"v_lshlrev_b32 v{t1}, 6, v{t1}", f"v_lshl_add_u32 v{t0}, v{t0}, 3, v{t1}"))
        L.append(G(f"v_add_u32 v{vV1}, s{sQKstep}, v{t0}"))
        return L
    def hdiag(k):
        if not opt.get("hdiag"): return
        if k == 0: return
        e("s_cmp_ge_u32 s2, 7")
        e("s_cbranch_scc1 L_end")
        e(f"s_cmp_lg_u32 s{sW}, 4")
        e("s_cbranch_scc1 L_end")
        e("s_memrealtime s[80:81]"); e("s_memtime s[82:83]")
        e("s_waitcnt vmcnt(0) lgkmcnt(0)")
        e("s_mov_b64 exec, 1")
        e("s_lshl_b32 s3, s2, 3")
        e("v_mov_b32 v0, s3")
        e("s_sub_u32 s84, s82, s78")
        e("s_sub_u32 s80, s80, s76")
        e("s_and_b32 s76, s76, 0xffff")
        e("s_lshl_b32 s80, s80, 16")
        e("s_or_b32 s76, s76, s80")
        e("v_mov_b32 v2, s76"); e("v_mov_b32 v3, s84")
        e(f"global_store_dword v0, v2, s[{pDBG}:{pDBG+1}] offset:4")
        e(f"global_store_dword v0, v3, s[{pDBG}:{pDBG+1}] offset:8")
    def check_flag(vtmp):
        done = lab("fl")
        e(f"v_readfirstlane_b32 s{sT1}, v{vFlag}")
        e(f"s_cmp_lg_u32 s{sT1}, 0")
        e(f"s_cbranch_scc1 {done}")
        e(f"s_mov_b32 s{sT2}, 0x40000")
        lp = lab("fs"); a.label(lp)
        e(f"v_mov_b32 v{vtmp}, 0")
        e(f"global_load_dword v{vFlag}, v{vtmp}, s[{pDBG}:{pDBG+1}] sc1")
        e(f"s_waitcnt vmcnt(0)")
        e(f"v_readfirstlane_b32 s{sT1}, v{vFlag}")
        e(f"s_sub_u32 s{sT2}, s{sT2}, 1")
        e(f"s_cselect_b32 s{sT1}, 1, s{sT1}")
        e(f"s_cmp_eq_u32 s{sT1}, 0")
        e(f"s_cbranch_scc1 {lp}")
        a.label(done)
    def signal(sIdx, add, va, vb):
        e(f"s_add_u32 s{sT1}, s{sIdx}, {add}")
        e(f"s_lshl_b32 s{sT1}, s{sT1}, 7")
        e(f"s_add_u32 s{sT1}, s{sT1}, {CNT_OFF}")
        e(f"v_mov_b32 v{va}, 0")
        e(f"v_mov_b32 v{vb}, 1")
        e(f"s_mov_b64 exec, 1")
        e(f"buffer_atomic_add v{vb}, v{va}, {S(rWS)}, s{sT1} offen sc1")
        e(f"s_mov_b64 exec, -1")
    def poll(vaddr, vval, target, sleep):
        lp = lab("po"); done = lab("pd")
        e(f"s_mov_b32 s{sT2}, 0x40000")
        e(f"s_mov_b32 s{sT3}, {CNT_OFF}")
        a.label(lp)
        e(f"buffer_load_dword v{vval}, v{vaddr}, {S(rWS)}, s{sT3} offen sc1")
        e(f"s_waitcnt vmcnt(0)")
        e(f"v_cmp_gt_u32 s[74:75], {target}, v{vval}")
        e(f"s_cmp_eq_u64 s[74:75], 0")
        e(f"s_cbranch_scc1 {done}")
        e(f"s_sleep {sleep}")
        e(f"s_sub_u32 s{sT2}, s{sT2}, 1")
        e(f"s_cbranch_scc0 {lp}")
        a.label(done)
        a.vm = []
    def lds_arrive(k, va, vb, rtn=False):
        e(f"v_mov_b32 v{va}, {SYNC + 4*k}")
        e(f"v_mov_b32 v{vb}, 1")
        e(f"s_mov_b64 exec, 1")
        e(f"ds_add_rtn_u32 v{vb}, v{va}, v{vb}" if rtn else f"ds_add_u32 v{va}, v{vb}")
        e(f"s_mov_b64 exec, -1")
    def lds_sync(k, n, va, vb, meanwhile=None):
        a.ds_wait_all()
        lds_arrive(k, va, vb)
        if meanwhile:
            e("s_nop 3"); meanwhile()
        lp = lab("ls")
        e(f"s_mov_b32 s{sT2}, 0x400000")
        a.label(lp)
        e(f"ds_read_b32 v{vb}, v{va}")
        e(f"s_waitcnt lgkmcnt(0)")
        e(f"v_readfirstlane_b32 s{sT1}, v{vb}")
        e(f"s_sub_u32 s{sT2}, s{sT2}, 1")
        e(f"s_cselect_b32 s{sT1}, {n}, s{sT1}")
        e(f"s_cmp_lt_u32 s{sT1}, {n}")
        e(f"s_cbranch_scc1 {lp}")
    def lds_spin(k, n, va, vb, sleep):
        lp = lab("ls"); ok = lab("lk")
        e(f"v_mov_b32 v{va}, {SYNC + 4*k}")
        e(f"s_mov_b32 s{sT2}, 0x100000")
        a.label(lp)
        e(f"ds_read_b32 v{vb}, v{va}")
        e(f"s_waitcnt lgkmcnt(0)")
        e(f"v_readfirstlane_b32 s{sT1}, v{vb}")
        e(f"s_cmp_ge_u32 s{sT1}, {n}")
        e(f"s_cbranch_scc1 {ok}")
        e(f"s_sleep {sleep}")
        e(f"s_sub_u32 s{sT2}, s{sT2}, 1")
        e(f"s_cbranch_scc0 {lp}")
        a.label(ok)
    def lds_check(k, n, va, vb):
        lp = lab("lc"); ok = lab("ld")
        e(f"s_mov_b32 s{sT2}, 0x400000")
        a.label(lp)
        e(f"s_waitcnt lgkmcnt(0)"); a.lg = []
        e(f"v_readfirstlane_b32 s{sT1}, v{vb}")
        e(f"s_cmp_ge_u32 s{sT1}, {n}")
        e(f"s_cbranch_scc1 {ok}")
        a.skip_begin()
        e(f"ds_read_b32 v{vb}, v{va}")
        e(f"s_sub_u32 s{sT2}, s{sT2}, 1")
        e(f"s_cbranch_scc0 {lp}")
        a.skip_end()
        a.label(ok)
    def lds_wait(k, n, va, vb, meanwhile):
        lp = lab("lw"); ok = lab("lo")
        e(f"v_mov_b32 v{va}, {SYNC + 4*k}")
        e(f"ds_read_b32 v{vb}, v{va}")
        meanwhile()
        e(f"s_mov_b32 s{sT2}, 0x400000")
        a.label(lp)
        e(f"s_waitcnt lgkmcnt(0)")
        e(f"v_readfirstlane_b32 s{sT1}, v{vb}")
        e(f"s_cmp_ge_u32 s{sT1}, {n}")
        e(f"s_cbranch_scc1 {ok}")
        e(f"ds_read_b32 v{vb}, v{va}")
        e(f"s_sub_u32 s{sT2}, s{sT2}, 1")
        e(f"s_cbranch_scc0 {lp}")
        a.label(ok)
    def last_signals(k, n, sIdx, add, va, vb):
        lds_arrive(k, va, vb, rtn=True)
        e(f"s_waitcnt lgkmcnt(0)"); a.lg = []
        e(f"v_readfirstlane_b32 s{sT1}, v{vb}")
        sk = lab("ns")
        e(f"s_cmp_lg_u32 s{sT1}, {n-1}")
        e(f"s_cbranch_scc1 {sk}")
        a.skip_begin()
        signal(sIdx, add, va, vb)
        a.skip_end()
        a.label(sk)
    NT = [2, 2, 2]
    ACC = [AA, AB, AA]
    tw_state = [None, None]
    def wreads(G):
        r, s = divmod(G, 28)
        base = slot(G // 4) * 16384 + (s % 4) * 2048
        hi, lo = base >> 16, base & 0xffff
        L = []
        for t in range(NT[r]):
            d = WF + (G % 3) * 8 + t * 4
            def f0(t=t, d=d):
                if tw_state[t] != (r, hi):
                    e(f"v_add_u32 v{vTW[t]}, {hex(hi << 16)}, v{vTB[r][t]}")
                    tw_state[t] = (r, hi)
                a.ds_op(f"ds_read_b64_tr_b16 v[{d}:{d+1}], v{vTW[t]} offset:{lo}", f"w{G}")
            def f1(t=t, d=d):
                a.ds_op(f"ds_read_b64_tr_b16 v[{d+2}:{d+3}], v{vTW[t]} offset:{lo+512}", f"w{G}")
            L += [f0, f1]
        return L
    xr_next = [0]
    def xread(n):
        for _ in range(n):
            s = xr_next[0]
            if s >= 28: return
            xr_next[0] += 1
            if s == 16:
                for q in range(4): e(f"v_add_u32 v{vXR[q]}, 0x10000, v{vXR[q]}")
            off = ((s // 4) * 16384) & 0xffff
            a.ds_op(f"ds_read_b128 v[{X0+4*s}:{X0+4*s+3}], v{vXR[s%4]} offset:{off}", f"x{s}")
    BARS = opt.get("bars", [0, 1, 2, 3, 5, 7, 9, 11, 13, 15])
    PQ = opt.get("pq", 11)
    PZ = opt.get("pz", 13)
    L2P = {int(k): v for k, v in opt.get("l2p", {}).items()}
    VEND = PQ
    window = []; pending = []
    def period_barrier(i):
        for c in window: a.vm.extend([f"c{c}", f"c{c}"])
        assert not pending, pending
        window.clear()
        nxt = min([b for b in BARS if b > i] + [20])
        a.vm_wait(f"c{nxt}")
        assert dma_next[0] > nxt, (i, nxt, dma_next[0])
        if i == 3: a.vm_wait("stat")
        if i == PQ: a.vm_wait("st")
        if i in opt.get("sb", []): sp.stamp("pre", lvl=2, nowait=True)
        e("s_barrier")
        if i in opt.get("sb", []): sp.stamp("post", lvl=2, nowait=True)
        if i == 3:
            e(f"v_and_b32 v{vK}, 31, v{vLane}")
            e(f"v_lshlrev_b32 v{vK}, 2, v{vK}")
            e(f"s_lshl_b32 s{sT1}, s{sTT}, 7")
            e(f"s_add_u32 s{sT1}, s{sT1}, s{sStat}")
            e(f"v_mov_b32 v{vFlag}, 0")
            a.vm_op(f"buffer_load_dword v{vK}, v{vK}, {S(rWS)}, s{sT1} offen sc1", "kld")
            a.vm_op(f"global_load_dword v{vFlag}, v{vFlag}, s[{pDBG}:{pDBG+1}] sc1", "kld")
        if i in L2P:
            for k in L2P[i]:
                sk = lab("pf")
                e(f"s_cmp_lg_u32 s{sW}, {k}")
                e(f"s_cbranch_scc1 {sk}")
                a.skip_begin()
                e(f"s_lshr_b32 s{sT1}, s2, 3")
                nl, ptr, nb = (56, pW2, W2_BYTES) if k < 7 else (98, pWO, WO_BYTES)
                if k < 7:
                    e(f"s_mul_i32 s{sT1}, s{sT1}, {7*56*128}")
                    e(f"s_add_u32 s{sT1}, s{sT1}, {k*56*128}")
                else:
                    e(f"s_mul_i32 s{sT1}, s{sT1}, {98*128}")
                e(f"v_min_u32 v{vDum+2}, {min(nl, 64) - 1 if k < 7 else 48}, v{vLane}")
                e(f"v_lshl_add_u32 v{vDum+2}, v{vDum+2}, 7, s{sT1}")
                e(f"global_load_dword v{vDum+1}, v{vDum+2}, s[{ptr}:{ptr+1}]")
                if k == 7:
                    e(f"v_add_u32 v{vDum+2}, {49*128}, v{vDum+2}")
                    e(f"global_load_dword v{vDum+1}, v{vDum+2}, s[{ptr}:{ptr+1}]")
                a.skip_end()
                a.label(sk)
        if i == PZ:
            e(f"v_lshrrev_b32 v{vDum+2}, 2, v{vSt}")
            e(f"v_add_u32 v{vDum+2}, {SYNC}, v{vDum+2}")
            e(f"v_mov_b32 v{vDum+3}, 0")
            a.ds_op(f"ds_write_b32 v{vDum+2}, v{vDum+3}", "z")
        if i == PQ and sigq[0]:
            sk = lab("q")
            e(f"s_cmp_lg_u32 s{sW}, 0")
            e(f"s_cbranch_scc1 {sk}")
            a.skip_begin()
            check_flag(vDum + 2)
            signal(sCOL, 0, vDum + 2, vDum + 3)
            a.skip_end()
            a.label(sk)
        while dma_next[0] <= 20:
            c = dma_next[0]
            if c < 10:
                sl = slot(c)
                if not all(xr_next[0] > s and a.ds_done(f"x{s}") for s in range(4*sl, 4*sl+4)): break
            elif c == 20:
                if i < 13: break
            elif c - 9 > i - 1: break
            window.append(c); dma_next[0] += 1
        nq = nxt - i
        per = -(-len(window) // nq)
        pending[:] = [window[k*per:(k+1)*per] for k in range(nq)]
    sigq = [False]
    XR = opt.get("xrate", 2)
    def kloop(r, extra, budget, hooks={}):
        extra = list(extra)
        if opt.get("x_noepi"): extra = [x for x in extra if x[1] == 0]
        gap = 0
        for s in range(28):
            G = r * 28 + s
            Gn = G + 2
            rd = wreads(Gn) if Gn < 84 else []
            a.ds_wait(f"w{G}")
            if r == 0: a.ds_wait(f"x{s}")
            ph = Gn % 4
            for t in range(NT[r]):
                d = ACC[r] + 16 * t
                w = WF + (G % 3) * 8 + t * 4
                c = "0" if s == 0 else f"v[{d}:{d+15}]"
                e(f"v_mfma_f32_32x32x16_bf16 v[{d}:{d+15}], v[{w}:{w+3}], v[{X0+4*s}:{X0+4*s+3}], {c}")
                gap += 1
                if t == 0 and Gn < 84 and ph == 0 and (Gn // 4 - 1) in BARS: period_barrier(Gn // 4 - 1)
                n = -(-len(rd) // (NT[r] - t))
                for f in rd[:n]: f()
                rd = rd[n:]
                if r == 0: xread((XR + 1 - t) // 2)
                left = budget
                if t == NT[r] - 1 and pending and pending[0] and ph % 2 == 0:
                    sk = lab("d")
                    e(f"s_cmp_lg_u32 s{sPh}, {ph}")
                    e(f"s_cbranch_scc1 {sk}")
                    a.skip_begin()
                    for c in pending[0]: dma(c, track=False)
                    a.skip_end()
                    a.label(sk)
                    left = opt.get("dmabud", 4)
                if t == NT[r] - 1 and s in hooks: hooks[s](); left = 0
                while extra and gap > 3 and extra[0][1] <= left:
                    f, cst = extra.pop(0); f(); left -= cst
            if ph == 3 and pending: pending.pop(0)
        return extra
    def I(t):
        op = t.split()[0]
        return (lambda: e(t), 8 if op.startswith(TRANS) else (2 if op.startswith("s_") else 4))
    def consts():
        def sel():
            e(f"s_cmp_lt_u32 s{sCOL}, 4")
            e(f"s_cselect_b32 s{sT1}, {hexf(28**-0.5*LOG2E)}, 1.0")
            e(f"v_mul_f32 v{vSc}, s{sT1}, v{vSc}")
        return [(lambda: a.vm_wait("kld"), 0), I(f"v_rsq_f32 v{vSc}, v{vK}"),
                I(f"v_mul_f32 v{vC1}, {hexf(-LOG2E)}, v{vSc}"), (sel, 8)]
    def silu4(Gt, U, t, p):
        L = []
        for k in range(4): L.append(I(f"v_mul_f32 v{t+k}, v{vC1}, v{Gt+k}"))
        for k in range(4):
            L.append(I(f"v_exp_f32 v{t+k}, v{t+k}"))
            L.append(I(f"v_mul_f32 v{Gt+k}, v{Gt+k}, v{U+k}"))
        for k in range(4): L.append(I(f"v_fma_f32 v{t+k}, v{t+k}, v{vK}, v{vK}"))
        for k in range(4): L.append(I(f"v_rcp_f32 v{t+k}, v{t+k}"))
        for k in range(4): L.append(I(f"v_mul_f32 v{Gt+k}, v{Gt+k}, v{t+k}"))
        for k in range(2): L.append(I(f"v_cvt_pk_bf16_f32 v{p+k}, v{Gt+2*k}, v{Gt+2*k+1}"))
        return L
    def store(r, soff, off):
        if opt.get("x_nost"): return (lambda: None, 8)
        return (lambda: a.vm_op(f"buffer_store_dwordx4 v[{r}:{r+3}], v{vSt}, {S(rWS)}, s{soff} offen offset:{off}{ST}", "st"), 8)
    def epiF(acc, soff):
        Gt, U = acc, acc + 16
        L = []
        for q in range(4):
            L += silu4(Gt + 4*q, U + 4*q, T0 + (q % 2) * 4, U + (q // 2) * 8 + (q % 2) * 2)
            if q % 2 == 1: L.append(store(U + (q // 2) * 8, soff, (q // 2) * 1024))
        return L
    def epiQKV(acc, isv):
        L = []
        P = T0 + 8
        for q in range(4):
            for k in range(4): L.append(I(f"v_mul_f32 v{acc+4*q+k}, v{vSc}, v{acc+4*q+k}"))
            for k in range(2): L.append(I(f"v_cvt_pk_bf16_f32 v{P+2*q+k}, v{acc+4*q+2*k}, v{acc+4*q+2*k+1}"))
            if q == 1 and not isv: L.append(store(P, sQKoff, 0))
        L.append(I(f"v_cndmask_b32 v{P+6}, v{vP6}, v{P+6}, vcc"))
        L.append(I(f"v_cndmask_b32 v{P+7}, v{vP7}, v{P+7}, vcc"))
        if not isv: L.append(store(P + 4, sQKoff, 1024))
        else:
            for q in range(4):
                if q: L.append(I(f"v_xor_b32 v{vV4}, {16*q}, v{vV1}"))
                L.append((lambda q=q: a.ds_op(f"ds_write_b64 v{vV4 if q else vV1}, v[{P+2*q}:{P+2*q+1}]", "vw"), 4))
            L += [(lambda: None, 8)] * 2
            L.append((lambda: a.ds_wait("vw"), 0))
            for q in range(4):
                L.append((lambda q=q: a.ds_op(f"ds_read_b64_tr_b16 v[{acc+2*q}:{acc+2*q+1}], v{vV3 if q % 2 else vV2} offset:{512*q}", "vr"), 4))
            L += [(lambda: None, 8)] * 2
            L.append((lambda: a.ds_wait("vr"), 0))
            L.append(store(acc, sQKoff, 0))
            L.append(store(acc + 4, sQKoff, 1024))
        L.append(I(f"s_add_u32 s{sQKoff}, s{sQKoff}, {64*2048}"))
        return L
    B1, B2 = opt.get("b1", 12), opt.get("b2", 12)
    if opt.get("yprio"):
        e(f"s_cmp_lt_u32 s{sW}, 4")
        e(f"s_cbranch_scc1 L_yp")
        e(f"s_setprio 1")
        a.label("L_yp")
    xread(4)
    for f in wreads(0) + wreads(1): f()
    if opt.get("wpf", 1) == 2:
        e(f"s_cmp_ge_u32 s{sW}, 4")
        e(f"s_cbranch_scc1 L_wp")
        a.skip_begin(); wpf(); a.skip_end()
        a.label("L_wp")
    a.vm_op(f"buffer_store_dword v{T0}, v{vStat}, {S(rWS)}, s{sStat} offen", "stat")
    a.vm_op(f"buffer_store_dword v{T0+1}, v{T0+2}, {S(rWS)}, s{sStat} offen", "stat")
    assert not kloop(0, deferred(), 16)
    padat("r0")
    sp.stamp("r0")
    e(f"s_cmp_lt_u32 s{sCOL}, 8")
    e(f"s_cbranch_scc1 L_pqk")
    e(f"s_cmp_lt_u32 s{sCOL}, 12")
    e(f"s_cbranch_scc1 L_pv")
    saved = (list(a.vm), list(a.lg), list(tw_state), dma_next[0], list(a.hist), list(window), [list(p) for p in pending], sp.n)
    ends = []
    for nm, ex in (("f", lambda: epiF(AA, sQKoff)), ("L_pqk", lambda: epiQKV(AA, False) + epiQKV(AA + 16, False)),
                   ("L_pv", lambda: epiQKV(AA, True) + epiQKV(AA + 16, True))):
        if nm != "f": a.label(nm)
        a.vm, a.lg = list(saved[0]), list(saved[1]); tw_state[:] = saved[2]; dma_next[0] = saved[3]; a.hist = list(saved[4])
        window[:] = saved[5]; pending[:] = [list(p) for p in saved[6]]; sp.set(saved[7])
        sigq[0] = nm != "f"
        nst0 = [0]
        exl = consts() + ex()
        if nm != "f":
            exl.append((lambda: nst0.__setitem__(0, 1), 0))
            _pb = period_barrier
        rest = kloop(1, exl, {"f": B1, "L_pqk": opt.get("b1q", 32), "L_pv": opt.get("b1v", 32)}[nm], hooks={(VEND + 1) * 4 - 2 - 28 - 1: (lambda: None) if nm == "f" else (lambda: (_ for _ in ()).throw(AssertionError("qkv epilogue too late")) if not nst0[0] else None)})
        for f, c in rest: f()
        ends.append(([t for t in a.vm if t != "st"], list(a.lg), list(tw_state), dma_next[0], list(window), [list(p) for p in pending]))
        if nm != "L_pv": e("s_branch L_r2")
    assert ends[0][1:] == ends[1][1:] == ends[2][1:], ends
    a.vm = min((x[0] for x in ends), key=len)
    assert all(x[0][len(x[0])-len(a.vm):] == a.vm for x in ends)
    a.label("L_r2")
    e("s_nop 1")
    padat("r1")
    sp.stamp("r1"); sp.stamp("r1", lvl=5, nowait=True)
    K0, Q, KV, O, Sx, P, T = 16, 24, 56, 128, 192, 224, 240
    ATT_LDS, WO_LDS = 49152, 98304
    sX, sJ = 54, 55
    sHead, sQB, sKV, sRun = 62, 63, 64, 58
    sWq, sTB, sCB, sWo, sLB = 62, 63, 64, 58, 66
    vD, vPoll, vStV = vD0, vDum + 4, vD0
    rW = rA
    rK, rV = rA, rB
    NE = 3
    QX = 147456
    def kvload(i):
        for k in range(4):
            r = KV + 16 * i + 4 * k
            a.vm_op(f"buffer_load_dwordx4 v[{r}:{r+3}], v{vSt}, {S(rK if k < 2 else rV)}, s{sRun} offen offset:{1024*(k%2)}{LD}", f"kv{i}")
        e(f"s_add_u32 s{sRun}, s{sRun}, 2048")
        e(f"s_and_b32 s{sRun}, s{sRun}, 0x1ffff")
    e(f"s_and_b32 s{sX}, s2, 7")
    e(f"s_lshr_b32 s{sJ}, s2, 3")
    check_flag(vDum + 2)
    e(f"s_cmp_lt_u32 s{sW}, 4")
    e(f"s_cbranch_scc1 L_att")
    join = (list(a.vm), list(a.lg), list(a.hist), list(window), sp.n)
    e(f"s_setprio {opt.get('r2prio', 2)}")
    rest = kloop(2, epiF(AB, sHoff), B2)
    sp.stamp("r2")
    for f, c in rest: f()
    for t in range(2):
        for q in range(2):
            for f, c in silu4(AA + 16*t + 4*q, AA + 16*t + 8 + 4*q, T0 + 4*q, T0 + 8 + 4*t + 2*q): f()
        store(T0 + 8 + 4*t, sHoff2, 1024*t)[0]()
    e(f"s_branch L_gemm")
    nst = sp.n
    a.label("L_att")
    a.vm, a.lg, a.hist = list(join[0]), list(join[1]), list(join[2]); sp.set(join[4])
    for c in join[3]: a.vm.extend([f"c{c}", f"c{c}"])
    e(f"s_setprio {opt.get('attprio0', 3)}")
    e(f"s_and_b32 s{sT1}, s{sJ}, 1")
    e(f"s_lshl1_add_u32 s{sHead}, s{sX}, s{sT1}")
    e(f"v_min_u32 v{vPoll}, 2, v{vLane}")
    e(f"v_lshlrev_b32 v{vPoll}, 9, v{vPoll}")
    e(f"s_lshr_b32 s{sT1}, s{sHead}, 2")
    e(f"v_lshl_add_u32 v{vPoll}, s{sT1}, 7, v{vPoll}")
    e(f"s_mov_b32 s{sT3}, {CNT_OFF}")
    a.vm_op(f"buffer_load_dword v{vDum+3}, v{vPoll}, {S(rWS)}, s{sT3} offen sc1", "poll")
    def qload():
        e(f"s_lshl_b32 s{sT1}, s{sHead}, 6")
        e(f"s_lshl2_add_u32 s{sT1}, s{sQB}, s{sT1}")
        e(f"s_add_u32 s{sT1}, s{sT1}, s{sW}")
        e(f"s_lshl_b32 s{sT1}, s{sT1}, 11")
        a.vm_op(f"buffer_load_dwordx4 v[{Q}:{Q+3}], v{vSt}, {S(rWS)}, s{sT1} offen{LD}", "q")
        a.vm_op(f"buffer_load_dwordx4 v[{Q+4}:{Q+7}], v{vSt}, {S(rWS)}, s{sT1} offen offset:1024{LD}", "q")
        kvload(0)
    e(f"s_lshr_b32 s{sQB}, s{sJ}, 1")
    e(f"s_lshl_b32 s{sKV}, s{sHead}, 17")
    e(f"s_add_u32 s{sKV}, s{sKV}, {KV_OFF}")
    e(f"s_and_b32 s{sT1}, s{sQB}, {opt.get('rot', 0)}")
    e(f"s_lshl_b32 s{sT1}, s{sT1}, {opt.get('rotsh', 0)}")
    e(f"s_lshl3_add_u32 s{sT1}, s{sW}, s{sT1}")
    e(f"s_lshl1_add_u32 s{sT1}, s{sT1}, 1")
    e(f"s_lshl_b32 s{sRun}, s{sT1}, 11")
    e(f"s_add_u32 s{rK}, s{pWS}, s{sKV}")
    e(f"s_addc_u32 s{rK+1}, s{pWS+1}, 0")
    e(f"s_mov_b32 s{rK+2}, 0x20000")
    e(f"s_mov_b32 s{rK+3}, 0x20000")
    e(f"s_add_u32 s{rV}, s{rK}, {2 << 20}")
    e(f"s_addc_u32 s{rV+1}, s{rK+1}, 0")
    e(f"s_mov_b32 s{rV+2}, 0x20000")
    e(f"s_mov_b32 s{rV+3}, 0x20000")
    ep = epiF(AB, sHoff)
    n1 = opt.get("ep1", 26)
    a.ds_wait_all()
    for f, c in ep[:n1]: f()
    sp.stamp("ep", lvl=5, nowait=True)
    a.vm_wait("poll")
    sp.stamp("pl", lvl=5, nowait=True)
    e(f"v_cmp_gt_u32 s[74:75], 16, v{vDum+3}")
    e(f"s_cmp_eq_u64 s[74:75], 0")
    e(f"s_cbranch_scc1 L_e2ok")
    sv = (list(a.vm), list(a.hist))
    for f, c in ep[n1:]: f()
    e("s_barrier")
    poll(vPoll, vDum + 3, 16, 1)
    qload(); e("s_waitcnt vmcnt(0)"); e(f"s_branch L_e2j")
    a.label("L_e2ok")
    a.vm, a.hist = sv
    sp.stamp("r2"); sp.stamp("ok", lvl=5, nowait=True)
    qload()
    for f, c in ep[n1:]: f()
    sp.stamp("ep2", lvl=5, nowait=True)
    e("s_barrier")
    a.label("L_e2j")
    kvload(1); kvload(2)
    sFlag, sIt, sOoff = 59, 60, 61
    e(f"s_mov_b32 s{sFlag}, 0")
    e(f"s_lshl2_add_u32 s{sOoff}, s{sQB}, s{sW}")
    e(f"s_lshl4_add_u32 s{sOoff}, s{sOoff}, s{sHead}")
    e(f"s_lshl_b32 s{sOoff}, s{sOoff}, 11")
    e(f"s_add_u32 s{sOoff}, s{sOoff}, {O_OFF}")
    for jj in range(4):
        e(f"s_add_u32 s{sT1}, s{sW}, {jj}")
        e(f"s_and_b32 s{sT1}, s{sT1}, 3")
        e(f"s_lshl_b32 s{sT1}, s{sT1}, 11")
        e(f"s_add_u32 s{sT1}, s{sT1}, {QX}")
        e(f"v_add_u32 v{T+2+jj}, s{sT1}, v{vSt}")
    zl = [] if opt.get("full", 0) else [O + r for r in range(64)] + [P + 8 + r for r in range(8)] + [KV + 56 + r for r in range(8)]
    def zero(n):
        for _ in range(n):
            if zl: e(f"v_mov_b32 v{zl.pop(0)}, 0")
    sp.stamp("pre", lvl=5, nowait=True)
    a.vm_wait("kv0")
    sp.stamp("kv0", lvl=5, nowait=True)
    e(f"v_mfma_f32_32x32x16_bf16 v[{Sx}:{Sx+15}], v[{KV}:{KV+3}], v[{Q}:{Q+3}], 0")
    e(f"v_mfma_f32_32x32x16_bf16 v[{Sx}:{Sx+15}], v[{KV+4}:{KV+7}], v[{Q+4}:{Q+7}], v[{Sx}:{Sx+15}]")
    zero(14)
    sp.stamp("qkv")
    def qk(n, half):
        i, j = (n // 4) % 4, n % 4
        d = Sx + 16 * (n % 2); k = KV + 16 * i + 4 * half; q = Q + 8 * j + 4 * half
        c = "0" if half == 0 else f"v[{d}:{d+15}]"
        e(f"v_mfma_f32_32x32x16_bf16 v[{d}:{d+15}], v[{k}:{k+3}], v[{q}:{q+3}], {c}")
    def pv(n, half):
        i, j = (n // 4) % 4, n % 4
        d = O + 16 * j; v = KV + 16 * i + 8 + 4 * half; p = P + 8 * (n % 2) + 4 * half
        e(f"v_mfma_f32_32x32x16_bf16 v[{d}:{d+15}], v[{v}:{v+3}], v[{p}:{p+3}], v[{d}:{d+15}]")
    def sm(n, g):
        s = Sx + 16 * (n % 2) + 4 * g; p = P + 8 * (n % 2) + 2 * g
        for k in range(4): e(f"v_exp_f32 v{s+k}, v{s+k}")
        e(f"v_cvt_pk_bf16_f32 v{p}, v{s}, v{s+1}")
        e(f"v_cvt_pk_bf16_f32 v{p+1}, v{s+2}, v{s+3}")
    M = T + 8
    def patch(jjs, bias):
        U = M + 4
        for jj in jjs: e(f"v_mov_b32 v{U+jj}, v{M+jj}")
        for jj in jjs: e(f"v_permlane32_swap_b32 v{M+jj}, v{U+jj}")
        for jj in jjs: e(f"v_max_f32 v{M+jj}, v{M+jj}, v{U+jj}")
        for jj in jjs: e(f"v_sub_f32 v{M+jj}, {hexf(-bias) if bias else 0}, v{M+jj}")
        for jj in jjs: e(f"v_cvt_pk_bf16_f32 v{U+jj}, v{M+jj}, v{M+jj}")
        for jj in jjs: e(f"v_and_b32 v{U+jj}, 0xffff0000, v{U+jj}")
        for jj in jjs: e(f"v_sub_f32 v{U+jj}, v{M+jj}, v{U+jj}")
        for jj in jjs: e(f"v_cvt_pk_bf16_f32 v{M+jj}, v{M+jj}, v{U+jj}")
        for jj in jjs: e(f"v_cndmask_b32 v{Q+8*jj+6}, v{M+jj}, v{Q+8*jj+6}, vcc")
        for jj in jjs: e(f"v_and_b32 v{M+jj}, 0xffff0000, v{M+jj}")
        for jj in jjs: e(f"v_sub_f32 v{U+jj}, v{U+jj}, v{M+jj}")
        for jj in jjs: e(f"v_cvt_pk_bf16_f32 v{U+jj}, v{U+jj}, 0")
        for jj in jjs: e(f"v_cndmask_b32 v{Q+8*jj+7}, v{U+jj}, v{Q+8*jj+7}, vcc")
    for k in range(4): e(f"v_max3_f32 v{M+4+k}, v{Sx+4*k}, v{Sx+4*k+1}, v{Sx+4*k+2}")
    for k in range(2): e(f"v_max3_f32 v{M+4+2*k}, v{M+4+2*k}, v{M+5+2*k}, v{Sx+8*k+3}")
    e(f"v_max3_f32 v{M}, v{Sx+7}, v{Sx+15}, v{M+4}")
    e(f"v_max_f32 v{M}, v{M}, v{M+6}")
    patch([0], BIAS)
    a.ds_op(f"ds_write_b128 v{T+2}, v[{Q}:{Q+3}]")
    a.ds_op(f"ds_write_b128 v{T+2}, v[{Q+4}:{Q+7}] offset:1024")
    zero(16)
    lds_sync(1, 4, T, T + 1, lambda: (qk(0, 0), qk(0, 1), zero(24)))
    for jj in range(1, 4):
        a.ds_op(f"ds_read_b128 v[{Q+8*jj}:{Q+8*jj+3}], v{T+2+jj}")
        a.ds_op(f"ds_read_b128 v[{Q+8*jj+4}:{Q+8*jj+7}], v{T+2+jj} offset:1024")
    zero(99)
    e("s_waitcnt vmcnt(8)")
    last_signals(0, 8, sRB, 12, T, T + 1)
    lds_arrive(2, T, T + 1)
    e(f"s_setprio {opt.get('attprio', 1)}")
    a.vm = []
    padat("preloop")
    sp.stamp("preloop"); sp.stamp("preloop", lvl=5)
    def pv0(n, half):
        i, j = (n // 4) % 4, n % 4
        d = O + 16 * j; v = KV + 16 * i + 8 + 4 * half; p = P + 8 * (n % 2) + 4 * half
        c = "0" if (n < 4 and half == 0) else f"v[{d}:{d+15}]"
        e(f"v_mfma_f32_32x32x16_bf16 v[{d}:{d+15}], v[{v}:{v+3}], v[{p}:{p+3}], {c}")
    def owrite(jj):
        for q in range(4):
            r = O + 16 * jj + 4 * q
            a.ds_op(f"ds_write_b128 v{T+jj}, v[{r}:{r+3}] offset:{(jj-1)*4096 + q*1024}")
    for jj in range(4):
        e(f"s_add_u32 s{sT1}, s{sW}, {jj}")
        e(f"s_and_b32 s{sT1}, s{sT1}, 3")
        e(f"s_mul_i32 s{sT1}, s{sT1}, 12288")
        e(f"s_add_u32 s{sT1}, s{sT1}, {ATT_LDS}")
        e(f"v_add_u32 v{T+jj}, s{sT1}, v{vSt}")
    FULL = opt.get("full", 0)
    def slot_code(n, first):
        ti, j = divmod(n, 4)
        if j == 3 and ti < 15: e(f"s_waitcnt vmcnt({4 * min(2, 14 - ti)})")
        if n + 1 < 64: qk(n + 1, 0)
        sm(n, 0)
        if n + 1 < 64: qk(n + 1, 1)
        sm(n, 1)
        if n or not first: (pv0 if first else pv)(n + 15 if n == 0 else n - 1, 0)
        sm(n, 2)
        if n or not first: (pv0 if first else pv)(n + 15 if n == 0 else n - 1, 1)
        if j == 0 and ti + 3 < 16:
            for k in range(4):
                r = KV + 16 * ((ti + 3) % 4) + 4 * k
                e(f"buffer_load_dwordx4 v[{r}:{r+3}], v{vSt}, {S(rK if k < 2 else rV)}, s{sRun} offen offset:{2048*(ti%2) + 1024*(k%2)}{LD}")
            if ti % 2:
                e(f"s_add_u32 s{sRun}, s{sRun}, 4096")
                e(f"s_and_b32 s{sRun}, s{sRun}, 0x1ffff")
        if n == 60:
            e(f"v_mov_b32 v{T+4}, {SYNC}")
            a.ds_op(f"ds_read_b32 v{T+5}, v{T+4}", "chk")
        if n == 63:
            lds_check(0, 8, T + 4, T + 5)
            owrite(1)
        sm(n, 3)
    if FULL:
        a.raw(".p2align 6")
        for n in range(64): slot_code(n, True)
    else:
        e(f"s_mov_b32 s{sIt}, 2")
        a.raw(".p2align 6")
        a.label("L_loop")
        start = len(a.lines)
        for n in range(16): slot_code(n, False)
        e(f"s_sub_u32 s{sIt}, s{sIt}, 1")
        e("s_cbranch_scc0 L_loop")
        check_loop(a.lines[start:])
        for n in range(48, 64): slot_code(n, False)
    pv0(63, 0); pv0(63, 1)
    owrite(2)
    padat("loop")
    sp.stamp("loop"); sp.stamp("loop", lvl=4)
    a.vm = []
    owrite(3)
    sp.stamp("wr", lvl=4)
    lds_sync(7, 4, T + 4, T + 5)
    sp.stamp("sy", lvl=4)
    for p in range(3):
        for q in range(4):
            r = O + 16 + 16 * p + 4 * q
            a.ds_op(f"ds_read_b128 v[{r}:{r+3}], v{T} offset:{p*4096 + q*1024}", f"p{p}")
    for p in range(3):
        a.ds_wait(f"p{p}")
        for k in range(16): e(f"v_add_f32 v{O+k}, v{O+k}, v{O+16+16*p+k}")
    sp.stamp("rd", lvl=4)
    a.label("L_norm")
    e(f"v_mov_b32 v{T}, v{O+12}")
    e(f"v_mov_b32 v{T+1}, v{O+12}")
    e(f"v_permlane32_swap_b32 v{T}, v{T+1}")
    e(f"v_rcp_f32 v{T}, v{T+1}")
    e(f"v_mov_b32 v{T+2}, 0")
    for k in range(16): e(f"v_mul_f32 v{O+k}, v{O+k}, v{T}")
    for k in range(8): e(f"v_cvt_pk_bf16_f32 v{P+k}, v{O+2*k}, v{O+2*k+1}")
    e(f"v_cndmask_b32 v{P+6}, 0, v{P+6}, vcc")
    e(f"v_cndmask_b32 v{P+7}, 0, v{P+7}, vcc")
    e(f"buffer_store_dwordx4 v[{P}:{P+3}], v{vSt}, {S(rWS)}, s{sOoff} offen{ST}")
    e(f"buffer_store_dwordx4 v[{P+4}:{P+7}], v{vSt}, {S(rWS)}, s{sOoff} offen offset:1024{ST}")
    for k in range(16): e(f"v_fmac_f32 v{T+2}, 0, v{O+k}")
    e(f"v_mov_b32 v{T+3}, {hexf(2.0**-(BIAS+8))}")
    e(f"v_cmp_u_f32 s[66:67], v{T+2}, v{T+2}")
    e(f"v_cmp_lt_f32 s[74:75], v{T+1}, v{T+3}")
    e(f"s_or_b64 s[66:67], s[66:67], s[74:75]")
    e(f"s_cmp_eq_u64 s[66:67], 0")
    e(f"s_cselect_b32 s{sT1}, 1, s{sFlag}")
    e(f"s_cmp_eq_u32 s{sT1}, 0")
    e(f"s_cbranch_scc1 L_slow")
    sp.stamp("chk", lvl=4)
    e(f"s_waitcnt vmcnt(0)")
    sp.stamp("ost"); sp.stamp("ost", lvl=4)
    e(f"s_lshl2_add_u32 s{sT2}, s{sQB}, s{sW}")
    e(f"s_lshr_b32 s{sT3}, s{sHead}, 2")
    e(f"s_lshl2_add_u32 s{sT2}, s{sT2}, s{sT3}")
    signal(sT2, 28, T + 4, T + 5)
    lds_arrive(9, T + 6, T + 7)
    hdiag(0)
    sp.dump(pWS, sW)
    e("s_endpgm")
    a.label("L_slow")
    a.reset_hist()
    e(f"s_waitcnt vmcnt(0)")
    e(f"s_mov_b32 s{sFlag}, 1")
    e(f"s_mov_b32 s{rK+2}, 0x20000")
    e(f"s_mov_b32 s{rV+2}, 0x20000")
    e(f"v_cndmask_b32 v{Q+6}, 0, v{Q+6}, vcc")
    e(f"v_cndmask_b32 v{Q+7}, 0, v{Q+7}, vcc")
    e(f"v_mov_b32 v{M}, 0xff800000")
    e(f"s_mov_b32 s{sRun}, 0")
    e(f"s_mov_b32 s{sIt}, 64")
    a.label("L_s1")
    start = len(a.lines)
    e(f"buffer_load_dwordx4 v[{KV}:{KV+3}], v{vSt}, {S(rK)}, s{sRun} offen{LD}")
    e(f"buffer_load_dwordx4 v[{KV+4}:{KV+7}], v{vSt}, {S(rK)}, s{sRun} offen offset:1024{LD}")
    e("s_waitcnt vmcnt(0)")
    e(f"v_mfma_f32_32x32x16_bf16 v[{Sx}:{Sx+15}], v[{KV}:{KV+3}], v[{Q}:{Q+3}], 0")
    e(f"v_mfma_f32_32x32x16_bf16 v[{Sx}:{Sx+15}], v[{KV+4}:{KV+7}], v[{Q+4}:{Q+7}], v[{Sx}:{Sx+15}]")
    for k in range(8): e(f"v_max3_f32 v{M}, v{M}, v{Sx+2*k}, v{Sx+2*k+1}")
    e(f"s_add_u32 s{sRun}, s{sRun}, 2048")
    e(f"s_sub_u32 s{sIt}, s{sIt}, 1")
    e(f"s_cmp_lg_u32 s{sIt}, 0")
    e("s_cbranch_scc1 L_s1")
    check_loop(a.lines[start:])
    patch([0], 0.0)
    for r in range(16): e(f"v_mov_b32 v{O+r}, 0")
    e(f"s_mov_b32 s{sRun}, 0")
    e(f"s_mov_b32 s{sIt}, 64")
    a.label("L_s2")
    start = len(a.lines)
    for k in range(4):
        e(f"buffer_load_dwordx4 v[{KV+4*k}:{KV+4*k+3}], v{vSt}, {S(rK if k < 2 else rV)}, s{sRun} offen offset:{1024*(k%2)}{LD}")
    e("s_waitcnt vmcnt(0)")
    qk(0, 0); qk(0, 1)
    for g in range(4): sm(0, g)
    pv(0, 0); pv(0, 1)
    e(f"s_add_u32 s{sRun}, s{sRun}, 2048")
    e(f"s_sub_u32 s{sIt}, s{sIt}, 1")
    e(f"s_cmp_lg_u32 s{sIt}, 0")
    e("s_nop 11")
    e("s_cbranch_scc1 L_s2")
    check_loop(a.lines[start:])
    e("s_branch L_norm")
    a.label("L_gemm")
    a.reset_hist(); a.vm = []; a.lg = []; sp.set(nst)
    ACCG, HR, WFR, T, WO_F, XF, GF = 16, 80, 136, 152, 160, 224, 136
    OF = HR
    GF = 240
    vA0, vA1, vIO, vCt = 4, 5, 6, 7
    sH0, sH1, sI0 = 59, 60, 61
    DP = opt.get("gdepth", 5)
    PACE = opt.get("pace", 4)
    def pace():
        nonlocal PACE
        if PACE and len(a.vm) > PACE:
            e(f"s_waitcnt vmcnt({PACE})"); a.vm = a.vm[-PACE:]
    e(f"s_setprio 2")
    e(f"s_waitcnt vmcnt(0)")
    last_signals(0, 8, sRB, 12, T, T + 1)
    e(f"s_cmp_ge_u32 s{sJ}, 28")
    e(f"s_cbranch_scc1 L_end")
    e(f"s_setprio {opt.get('gprio0', 2)}")
    lds_sync(3, 4, T, T + 1)
    srd(a, rW, pWO, WO_BYTES)
    e(f"s_sub_u32 s{sWq}, s{sW}, 4")
    e(f"s_mul_i32 s{sT1}, s{sJ}, 37")
    e(f"s_lshr_b32 s{sT1}, s{sT1}, 8")
    e(f"s_mul_i32 s{sT2}, s{sT1}, 7")
    e(f"s_sub_u32 s{sCB}, s{sJ}, s{sT2}")
    e(f"s_lshl2_add_u32 s{sTB}, s{sX}, s{sT1}")
    e(f"s_lshl_b32 s{sCB}, s{sCB}, 7")
    e(f"s_mul_i32 s{sLB}, s{sWq}, 12288")
    dma_voff(a, vLane, vD, T, T + 1)
    e(f"v_and_b32 v{T}, 31, v{vLane}")
    e(f"v_mul_u32_u24 v{T}, 896, v{T}")
    e(f"v_lshrrev_b32 v{T+1}, 5, v{vLane}")
    e(f"v_lshl_add_u32 v{vIO}, v{T+1}, 3, v{T}")
    e(f"s_and_b32 s{sT1}, s{sWq}, 1")
    e(f"s_lshl1_add_u32 s{sT3}, s{sTB}, s{sT1}")
    e(f"s_mul_i32 s{sI0}, s{sT3}, {32*896}")
    e(f"s_add_u32 s{sI0}, s{sI0}, s{sCB}")
    e(f"s_lshr_b32 s{sT2}, s{sWq}, 1")
    e(f"s_lshl_b32 s{sT2}, s{sT2}, 6")
    e(f"s_add_u32 s{sI0}, s{sI0}, s{sT2}")
    def issue_w(s):
        st = s % 6
        e(f"s_add_u32 m0, s{sLB}, {st*2048}")
        e(f"s_add_u32 s{sT1}, s{sWo}, {8*896}")
        a.vm_op(f"buffer_load_dwordx4 v{vD}, {S(rB)}, s{sWo} offen lds", f"s{s}")
        e(f"s_add_u32 m0, s{sLB}, {st*2048+1024}")
        e(f"s_add_u32 s{sWo}, s{sWo}, {16*896}")
        a.vm_op(f"buffer_load_dwordx4 v{vD}, {S(rB)}, s{sT1} offen lds", f"s{s}")
    srd(a, rB, pW2, W2_BYTES)
    e(f"s_mul_i32 s{sWo}, s{sWq}, {448*896}")
    e(f"s_add_u32 s{sWo}, s{sWo}, s{sCB}")
    for s in range(6): issue_w(s); pace()
    e(f"s_mul_i32 s{sH0}, s{sT3}, 112")
    e(f"s_xor_b32 s{sT3}, s{sT3}, 1")
    e(f"s_mul_i32 s{sH1}, s{sT3}, 112")
    e(f"s_mul_i32 s{sT1}, s{sWq}, 28")
    e(f"s_add_u32 s{sT1}, s{sT1}, {H_OFF >> 10}")
    e(f"s_add_u32 s{sH0}, s{sH0}, s{sT1}")
    e(f"s_add_u32 s{sH1}, s{sH1}, s{sT1}")
    e(f"s_lshl_b32 s{sH0}, s{sH0}, 10")
    e(f"s_lshl_b32 s{sH1}, s{sH1}, 10")
    e(f"s_xor_b32 s{sT2}, s{sT2}, s{sLB}")
    tr_addr(a, vLane, vA0, vA1, T, T + 1, T + 2, sT2, xor=True)
    def wr(s, d0, off, wait=True):
        if wait: a.vm_wait(f"s{s}")
        for ct in range(2):
            d = d0 + ct * 4
            ad = vA0 if ct == 0 else vA1
            a.ds_op(f"ds_read_b64_tr_b16 v[{d}:{d+1}], v{ad} offset:{off}", f"w{s}")
            a.ds_op(f"ds_read_b64_tr_b16 v[{d+2}:{d+3}], v{ad} offset:{off+1024}", f"w{s}")
    e(f"s_lshr_b32 s{sT1}, s{sTB}, 1")
    e(f"s_lshl_b32 s{sT1}, s{sT1}, 7")
    e(f"s_add_u32 s{sT1}, s{sT1}, {12*128}")
    e(f"v_mov_b32 v{vCt}, s{sT1}")
    def issue_h(s):
        st = s % 6
        off = (s % 4) * 1024
        a.vm_op(f"buffer_load_dwordx4 v[{HR+8*st}:{HR+8*st+3}], v{vSt}, {S(rWS)}, s{sH0} offen offset:{off}{LD}", f"s{s}")
        a.vm_op(f"buffer_load_dwordx4 v[{HR+8*st+4}:{HR+8*st+7}], v{vSt}, {S(rWS)}, s{sH1} offen offset:{off}{LD}", f"s{s}")
        if s % 4 == 3:
            e(f"s_add_u32 s{sH0}, s{sH0}, 4096")
            e(f"s_add_u32 s{sH1}, s{sH1}, 4096")
    e(f"s_cmp_lg_u32 s{sWq}, 0")
    e(f"s_cbranch_scc1 L_hw")
    poll(vCt, T + 1, 16, opt.get("hsleep", 4))
    lds_arrive(8, T, T + 1)
    a.label("L_hw")
    lds_spin(2, 4, T, T + 1, 3)
    lds_spin(8, 1, T, T + 1, 3)
    e(f"s_waitcnt vmcnt(0)")
    sp.stamp("hrdy")
    for s in range(DP): issue_h(s)
    e(f"s_setprio {opt.get('gprio', 0)}")
    def mm(s, w, h):
        for ct in range(2):
            for tt in range(2):
                d = ACCG + (2*ct+tt) * 16
                c = "0" if s == 0 else f"v[{d}:{d+15}]"
                e(f"v_mfma_f32_32x32x16_bf16 v[{d}:{d+15}], v[{w+4*ct}:{w+4*ct+3}], v[{h+4*tt}:{h+4*tt+3}], {c}")
    wr(0, WFR, 0)
    XG = 144
    late = []
    def wo_first():
        e(f"s_mul_i32 s{sH0}, s{sWq}, 15360")
        e(f"s_mul_i32 s{sWo}, s{sWq}, {112*896}")
        e(f"s_add_u32 s{sWo}, s{sWo}, s{sCB}")
    def wo_dma(i):
        if i == 0: wo_first()
        e(f"s_add_u32 m0, s{sH0}, {WO_LDS + i*1024}")
        if i: e(f"s_add_u32 s{sWo}, s{sWo}, {8*896}")
        a.vm_op(f"buffer_load_dwordx4 v{vD}, {S(rW)}, s{sWo} offen lds", "wo")
    XG = XF + 8
    for i in range(15): late.append(lambda i=i: wo_dma(i))
    for q in range(4):
        late.append(lambda q=q: a.vm_op(f"buffer_load_dwordx2 v[{XG+2*q}:{XG+2*q+1}], v{vIO}, {S(rX)}, s{sI0} offen offset:{16*q}", "xg"))
    TOP = opt.get("gtop", 0)
    for s in range(28):
        if TOP and s > 0:
            if s + 1 < 28: a.vm_wait(f"s{s+1}")
            if 6 <= s + DP - 1 < 28: issue_w(s + DP - 1)
            if s + DP - 1 < 28: issue_h(s + DP - 1)
        if s + 1 < 28: wr(s + 1, WFR + ((s + 1) % 2) * 8, ((s + 1) % 6) * 2048)
        a.ds_wait(f"w{s}")
        if not opt.get("x_nogm") or s == 0: mm(s, WFR + (s % 2) * 8, HR + 8 * (s % 6))
        if opt.get("x_nogl") or TOP: continue
        if 6 <= s + DP < 28: issue_w(s + DP)
        if s + DP < 28: issue_h(s + DP)
        else:
            for _ in range(4):
                if late: late.pop(0)()
    while late: late.pop(0)()
    sp.stamp("w2")
    e(f"s_setprio {opt.get('gprio3', 0)}")
    def exchange(k):
        e(f"v_add_u32 v{T}, s{sLB}, v{vSt}")
        for sl in range(1, 4):
            for q in range(4):
                r = ACCG + 16 * sl + 4 * q
                a.ds_op(f"ds_write_b128 v{T}, v[{r}:{r+3}] offset:{(sl-1)*4096 + q*1024}")
            e(f"s_xor_b32 s{sT1}, s{sWq}, {sl}")
            e(f"s_mul_i32 s{sT1}, s{sT1}, 12288")
            e(f"v_add_u32 v{T+2+sl}, s{sT1}, v{vSt}")
        if k == 6: sp.stamp("wr", lvl=4)
        lds_sync(k, 4, T + 1, T + 2)
        if k == 6: sp.stamp("sy", lvl=4)
        for p in range(3):
            for q in range(4):
                r = ACCG + 16 + 16 * p + 4 * q
                a.ds_op(f"ds_read_b128 v[{r}:{r+3}], v{T+3+p} offset:{p*4096 + q*1024}", f"p{p}")
        for p in range(3):
            a.ds_wait(f"p{p}")
            for kk in range(16): e(f"v_add_f32 v{ACCG+kk}, v{ACCG+kk}, v{ACCG+16+16*p+kk}")
    exchange(4)
    U = ACCG + 16
    for k in range(16): e(f"v_mul_f32 v{U+k}, {hexf(-LOG2E)}, v{ACCG+k}")
    for k in range(16): e(f"v_exp_f32 v{U+k}, v{U+k}")
    for k in range(16): e(f"v_add_f32 v{U+k}, 1.0, v{U+k}")
    for k in range(16): e(f"v_rcp_f32 v{U+k}, v{U+k}")
    for k in range(16): e(f"v_mul_f32 v{GF+k}, v{ACCG+k}, v{U+k}")
    e(f"s_mul_i32 s{sT2}, s{sWq}, 15360 - 12288")
    e(f"s_add_u32 s{sT2}, s{sT2}, {WO_LDS}")
    e(f"v_add_u32 v{vA0}, s{sT2}, v{vA0}")
    e(f"v_add_u32 v{vA1}, s{sT2}, v{vA1}")
    a.vm_wait("xg")
    for s in range(8):
        wr(100 + s, WO_F + 8 * s, (28 * (s // 2) + 16 * (s % 2)) * 128, wait=False)
    for k in range(8):
        if k < 7:
            e(f"v_lshlrev_b32 v{XF+2*k}, 16, v{XG+k}")
            e(f"v_and_b32 v{XF+2*k+1}, 0xffff0000, v{XG+k}")
        else:
            e(f"v_lshlrev_b32 v{XF+14}, 16, v{XG+7}")
            e(f"v_and_b32 v{XF+15}, 0xffff0000, v{XG+7}")
    a.ds_wait_all()
    lds_sync(5, 4, T + 1, T + 2)
    srd(a, rW3, pOUT, X_BYTES)
    e(f"s_and_b32 s{sT1}, s{sWq}, 1")
    e(f"s_lshl1_add_u32 s{sT1}, s{sTB}, s{sT1}")
    e(f"s_lshl_b32 s{sH0}, s{sT1}, 15")
    e(f"s_lshl_b32 s{sT1}, s{sWq}, 13")
    e(f"s_add_u32 s{sH0}, s{sH0}, s{sT1}")
    e(f"s_add_u32 s{sH0}, s{sH0}, {O_OFF}")
    e(f"s_xor_b32 s{sH1}, s{sH0}, 32768")
    e(f"v_min_u32 v{T}, 1, v{vLane}")
    e(f"v_lshlrev_b32 v{T}, 2, v{T}")
    e(f"s_lshl3_add_u32 s{sT1}, s{sTB}, s{sWq}")
    e(f"s_add_u32 s{sT1}, s{sT1}, 28")
    e(f"v_add_lshl_u32 v{vCt}, v{T}, s{sT1}, 7")
    e(f"v_lshrrev_b32 v{T}, 5, v{vLane}")
    e(f"v_lshl_add_u32 v{vIO}, v{T}, 3, v{vIO}")
    sp.stamp("grdy")
    lds_spin(9, 4, T, T + 1, 3)
    e(f"s_setprio 2")
    poll(vCt, T + 1, 4, opt.get("osleep", 1))
    sp.stamp("ordy"); sp.stamp("ordy", lvl=4)
    for s in range(8):
        if s == 4:
            e(f"s_add_u32 s{sH0}, s{sH0}, 4096")
            e(f"s_add_u32 s{sH1}, s{sH1}, 4096")
        a.vm_op(f"buffer_load_dwordx4 v[{OF+8*s}:{OF+8*s+3}], v{vSt}, {S(rWS)}, s{sH0} offen offset:{(s%4)*1024}{LD}", f"o{s}")
        a.vm_op(f"buffer_load_dwordx4 v[{OF+8*s+4}:{OF+8*s+7}], v{vSt}, {S(rWS)}, s{sH1} offen offset:{(s%4)*1024}{LD}", f"o{s}")
    sp.stamp("oiss", lvl=4, nowait=True)
    for s in range(8):
        a.vm_wait(f"o{s}")
        if s in (0, 7): sp.stamp("o", lvl=4, nowait=True)
        mm(s, WO_F + 8 * s, OF + 8 * s)
    exchange(6)
    sp.stamp("ex", lvl=4)
    for k in range(16): e(f"v_fma_f32 v{ACCG+k}, v{ACCG+k}, v{GF+k}, v{XF+k}")
    for k in range(8): e(f"v_cvt_pk_bf16_f32 v{U+k}, v{ACCG+2*k}, v{ACCG+2*k+1}")
    for pr in range(2):
        e(f"v_permlane32_swap_b32 v{U+4*pr}, v{U+4*pr+2}")
        e(f"v_permlane32_swap_b32 v{U+4*pr+1}, v{U+4*pr+3}")
    e(f"buffer_store_dwordx4 v[{U}:{U+3}], v{vIO}, {S(rW3)}, s{sI0} offen{opt.get('ost', '')}")
    e(f"buffer_store_dwordx4 v[{U+4}:{U+7}], v{vIO}, {S(rW3)}, s{sI0} offen offset:32{opt.get('ost', '')}")
    hdiag(1)
    if opt.get("padg"):
        e("v_mov_b32 v0, 0")
        e(f"global_load_dword v0, v0, s[{pDBG}:{pDBG+1}] offset:4 sc1")
        e("s_waitcnt vmcnt(0)")
        e("v_readfirstlane_b32 s76, v0")
        e("s_not_b32 s76, s76")
    if opt.get("pad"):
        a.label("L_pad")
        e("s_memrealtime s[80:81]")
        e("s_waitcnt lgkmcnt(0)")
        e("s_sub_u32 s80, s80, s76")
        e(f"s_cmp_lt_u32 s80, {opt['pad']}")
        e("s_cbranch_scc1 L_pad")
    sp.stamp("end"); sp.stamp("end", lvl=4)
    if sp.on == 4: e("s_waitcnt vmcnt(0)")
    sp.stamp("drain", lvl=4)
    sp.dump(pWS, sW)
    a.label("L_end")
    e("s_endpgm")
    return kd(NAME, 256)

if __name__ == "__main__":
    opt = json.loads(sys.argv[2]) if len(sys.argv) > 2 else {}
    a = Asm()
    a.raw("; one workgroup per CU; workgroups hand data over through d_ws (write-through stores + counters)")
    a.raw("; @launch grid=(256,1,1) block=(512,1,1) lds=163840")
    a.raw('.amdgcn_target "amdgcn-amd-amdhsa--gfx950"')
    a.raw(".text")
    k = gen(a, opt)
    a.raw("L_code_end:")
    a.raw(".fill 64, 4, 0xbf800000")
    a.raw("    s_endpgm")
    a.raw('.section .rodata,"a"')
    a.raw(k)
    open(sys.argv[1], "w").write(a.text())
    print("nops inserted:", a.nops, "lines:", len(a.lines))
```

```python
import sys, json
from common import *
from gemm64 import *
BIAS = 32.0
NAME = "recurrent_scan__softmax_full_mha__glu_gated_swiglu__prompt_kernel"

def gen(a, opt):
    BIAS = float(opt.get("bias", 64))
    ST = opt.get("st", " sc1")
    LD = " sc1"
    NPH = opt.get("nph", 2)
    kernel_head(a, NAME)
    e = a.e
    uid = [0]
    def lab(p):
        uid[0] += 1; return f"L_{p}{uid[0]}"
    pX, pWQ, pWO, pW1, pW3, pW2, pOUT, pDBG, pWS = 4, 6, 8, 12, 14, 16, 18, 20, 22
    rX, rW1, rW3, rA, rB, rWS = 24, 28, 32, 36, 40, 44
    S = lambda r: f"s[{r}:{r+3}]"
    sW, sTT, sG, sRB, sCOL, sTTG = 48, 49, 50, 51, 52, 53
    sSO = [[54, 55], [56, 56], [57, 57]]
    sP64, sM0, sCurA, sCurB, sOnes, sLo, sHi, sHoff, sQKoff, sQKstep = 58, 59, 60, 61, 62, 63, 64, 65, 66, 67
    sT1, sT2, sT3, sStat, sPh, sHoff2 = 68, 69, 70, 71, 72, 73
    X0, AA, AB, WF, T0 = 16, 128, 160, 192, 216
    vLane, vSt, vD0, vD1, vD2B = 1, 2, 3, 4, 250
    vTB = [[5, 6], [7, 8], [9, 243]]
    vTW = [10, 11]
    vXR = [12, 13, 14, 15]
    vK, vC1, vSc, vP6, vP7, vFlag, vV3, vV4 = 232, 233, 234, 236, 237, 238, 239, 235
    vXW = [240, 241]; vStat = 242; vNM = 243; vAcc = [244, 245, 246, 247]; vV1, vV2 = 248, 249
    vDum = 251
    RAW = 128
    SCR = 7 * 16384
    SYNC = 163840 - 256
    e("s_cmp_ge_u32 s2, 256")
    e("s_cbranch_scc1 L_end")
    sp = Stamper(a, opt.get("stamp"), 0); sp.allreal = opt.get("rt")
    sp.stamp("rt", True); sp.stamp("start")
    if opt.get("hdiag") or opt.get("pad") or opt.get("padat"): e("s_memrealtime s[76:77]"); e("s_memtime s[78:79]")
    e("s_load_dwordx16 s[4:19], s[0:1], 0")
    e("s_load_dwordx4 s[20:23], s[0:1], 64")
    RL = opt.get("rl", 3)
    sWR, sXa, sXb, sGS = sStat, sOnes, sLo, sHi
    e(f"v_lshrrev_b32 v22, 6, v0")
    e(f"v_and_b32 v{vLane}, 63, v0")
    e(f"v_readfirstlane_b32 s{sW}, v22")
    e(f"s_and_b32 s{sT1}, s2, {(16 >> RL) - 1}")
    e(f"s_bfe_u32 s{sT2}, s2, {hex((RL << 16) | 3)}")
    e(f"s_lshl{RL}_add_u32 s{sRB}, s{sT1}, s{sT2}")
    e(f"s_bfe_u32 s{sT1}, s2, {hex(((RL - 1) << 16) | (4 - RL))}")
    e(f"s_lshr_b32 s{sT2}, s2, {3 + RL}")
    e(f"s_lshl{5 - RL}_add_u32 s{sCOL}, s{sT1}, s{sT2}")
    e(f"v_bfe_u32 v22, v0, 3, 3")
    e(f"v_and_b32 v23, 7, v0")
    e(f"s_lshl_b32 s{sT1}, s{sT2}, 2")
    e(f"s_and_b32 s{sWR}, s{sT1}, 4")
    e(f"s_xor_b32 s{sWR}, s{sWR}, s{sW}")
    e(f"s_and_b32 s{sGS}, s{sT1}, 8")
    e(f"s_lshl3_add_u32 s{sT1}, s{sRB}, s{sWR}")
    e(f"s_lshl4_add_u32 s{sT2}, s{sT1}, s{sGS}")
    e(f"s_xor_b32 s{sT1}, s{sT2}, 8")
    e(f"s_mulk_i32 s{sT2}, 896")
    e(f"s_mulk_i32 s{sT1}, 896")
    e(f"v_mul_u32_u24 v24, 896, v22")
    e(f"v_lshl_add_u32 v24, v23, 4, v24")
    e(f"s_mov_b32 s{rX+2}, {hex(X_BYTES)}")
    e(f"s_mov_b32 s{rX+3}, 0x20000")
    e(f"s_cmp_ge_u32 s{sW}, 4")
    e("s_waitcnt lgkmcnt(0)")
    e(f"s_mov_b64 s[{rX}:{rX+1}], s[{pX}:{pX+1}]")
    for p in (pWQ, pW1, pW3)[:opt.get("stouch", 3)]: e(f"s_load_dword s{sQKoff}, s[{p}:{p+1}], 0")
    def xloads(lo, hi, sa, sb):
        for k in range(lo, hi):
            gi, i = divmod(k, 7)
            r = RAW + k * 4
            e(f"buffer_load_dwordx4 v[{r}:{r+3}], v24, {S(rX)}, s{sa if gi == 0 else sb} offen offset:{i*128}{opt.get('xnt', '')}")
    def touch():
        sh = opt.get("touchsh", 21)
        e(f"v_min_u32 v25, {(WS_USED >> sh) - 1}, v{vLane}")
        e(f"v_lshlrev_b32 v25, {sh}, v25")
        e(f"global_load_dword v{vDum+1}, v25, s[{pWS}:{pWS+1}]")
        e(f"v_mov_b32 v25, 0")
        for p in (pW1, pW3, pWQ, pW2, pWO, pOUT, pDBG):
            e(f"global_load_dword v{vDum+1}, v25, s[{p}:{p+1}]")
    XE = opt.get("xe", 10)
    e(f"s_cbranch_scc1 L_x0")
    a.skip_begin(); xloads(0, XE, sT2, sT1)
    e(f"s_branch L_x1")
    a.label("L_x0")
    e(f"s_getpc_b64 s[74:75]")
    a.label("L_pc")
    e(f"s_add_u32 s74, s74, {NAME}-L_pc")
    e(f"s_addc_u32 s75, s75, -1")
    e(f"s_lshr_b32 s3, s2, 3")
    e(f"s_lshl_b32 s3, s3, 7")
    e(f"v_and_b32 v20, 255, v0")
    e(f"v_lshl_add_u32 v20, v20, 12, s3")
    e(f"v_min_u32 v{vDum}, L_code_end-{NAME}-4, v20")
    e(f"global_load_dword v{vDum}, v{vDum}, s[74:75]")
    if opt.get("touch") == 1: touch()
    a.skip_end()
    a.label("L_x1")
    sp.stamp("xiss", lvl=3)
    if opt.get("stouch2", 1):
        e(f"s_lshl_b32 s3, s{sW}, 21")
        e(f"s_load_dword s{sQKoff}, s[{pWS}:{pWS+1}], s3")
        e(f"s_mov_b32 s3, {16 << 20}")
        e(f"s_load_dword s{sQKoff}, s[{pWS}:{pWS+1}], s3")
        for p in (pW2, pWO, pOUT, pDBG): e(f"s_load_dword s{sQKoff}, s[{p}:{p+1}], 0")
    e(f"s_mov_b32 s{sXa}, s{sT2}")
    e(f"s_mov_b32 s{sXb}, s{sT1}")
    def padat(nm):
        if opt.get("padat", [None])[0] != nm: return
        l = lab("pa"); a.label(l)
        e("s_memrealtime s[80:81]")
        e("s_waitcnt lgkmcnt(0)"); a.lg = []
        e("s_sub_u32 s80, s80, s76")
        e(f"s_cmp_lt_u32 s80, {opt['padat'][1]}")
        e(f"s_cbranch_scc1 {l}")
    def srd2(d, base, nbytes):
        e(f"s_mov_b64 s[{d}:{d+1}], s[{base}:{base+1}]")
        e(f"s_mov_b32 s{d+2}, {hex(nbytes)}")
        e(f"s_mov_b32 s{d+3}, 0x20000")
    if opt.get("wsoff"):
        e(f"s_add_u32 s{pWS}, s{pWS}, {opt['wsoff'] << 20}")
        e(f"s_addc_u32 s{pWS+1}, s{pWS+1}, 0")
    srd2(rWS, pWS, WS_USED)
    if opt.get("padg"):
        e("s_cmp_ge_u32 s2, 8")
        e("s_cbranch_scc1 L_pg")
        e(f"s_cmp_lg_u32 s{sW}, 7")
        e("s_cbranch_scc1 L_pg")
        e("s_not_b32 s80, s76")
        e("v_mov_b32 v25, 0"); e("v_mov_b32 v26, s80")
        e(f"global_atomic_umax v25, v26, s[{pDBG}:{pDBG+1}] offset:4 sc1")
        a.label("L_pg")
    e(f"s_and_b32 s{sTT}, s{sW}, 3")
    e(f"s_lshr_b32 s{sG}, s{sW}, 2")
    e(f"s_lshl_b32 s{sM0}, s{sW}, 10")
    e(f"s_lshl_b32 s{sPh}, s{sG}, 1")
    sTc0a, sTc0b = sCurA, sCurB
    e(f"s_cmp_ge_u32 s{sCOL}, 12")
    e(f"s_cbranch_scc1 L_r0f")
    srd2(rA, pWQ, WQ_BYTES)
    e(f"s_mov_b64 s[{rB}:{rB+1}], s[{pWQ}:{pWQ+1}]")
    e(f"s_and_b32 s{sT2}, s{sCOL}, 3")
    e(f"s_mul_i32 s{sSO[0][0]}, s{sCOL}, 224")
    e(f"s_cmp_eq_u32 s{sT2}, 3")
    e(f"s_cselect_b32 s{sT3}, 32, 0")
    e(f"s_sub_u32 s{sSO[0][0]}, s{sSO[0][0]}, s{sT3}")
    e(f"s_add_u32 s{sSO[0][1]}, s{sSO[0][0]}, 128")
    e(f"s_mul_i32 s{sTc0a}, s{sG}, 112")
    e(f"s_add_u32 s{sTc0a}, s{sTc0a}, s{sT3}")
    e(f"s_add_u32 s{sTc0b}, s{sTc0a}, 56")
    e(f"s_movk_i32 s{sP64}, 2688")
    e(f"s_branch L_r0j")
    a.label("L_r0f")
    srd2(rA, pW1, W1_BYTES)
    e(f"s_mov_b64 s[{rB}:{rB+1}], s[{pW3}:{pW3+1}]")
    e(f"s_add_u32 s{sT1}, s{sCOL}, 12")
    e(f"s_lshl_b32 s{sSO[0][0]}, s{sT1}, 7")
    e(f"s_mov_b32 s{sSO[0][1]}, s{sSO[0][0]}")
    e(f"s_lshl_b32 s{sTc0a}, s{sG}, 6")
    e(f"s_add_u32 s{sTc0b}, s{sTc0a}, 128")
    e(f"s_movk_i32 s{sP64}, 3584")
    a.label("L_r0j")
    a.reset_hist()
    e(f"s_mov_b32 s{rB+2}, s{rA+2}")
    e(f"s_mov_b32 s{rB+3}, 0x20000")
    e(f"s_and_b32 s{sT3}, s{sRB}, {(1 << RL) - 1}")
    def wpf0():
        e(f"s_cmp_{'lt' if opt.get('wpf0', 2) == 1 else 'ge'}_u32 s{sW}, 4")
        e(f"s_cbranch_scc1 L_w0")
        a.skip_begin()
        e(f"s_mul_i32 s{sT2}, s{sTT}, 112")
        e(f"s_add_u32 s{sT2}, s{sT2}, s{sT3}")
        e(f"v_min_u32 v30, {(112 >> RL) - 1}, v{vLane}")
        e(f"v_lshl_add_u32 v30, v30, {RL}, s{sT2}")
        e(f"v_mul_lo_u32 v30, v30, s{sP64}")
        e(f"buffer_load_dword v{vDum+1}, v30, {S(rA)}, s{sSO[0][0]} offen{opt.get('pnt', '')}")
        e(f"buffer_load_dword v{vDum+1}, v30, {S(rB)}, s{sSO[0][1]} offen{opt.get('pnt', '')}")
        a.skip_end()
        a.label("L_w0")
    if opt.get("w0pos", 0) == 0: wpf0()
    if opt.get("w0pos", 0) == 2:
        e(f"s_mul_i32 s{sT2}, s{sW}, 56")
        e(f"s_add_u32 s{sT2}, s{sT2}, s{sT3}")
        e(f"s_mul_i32 s{sT2}, s{sT2}, s{sP64}")
        e(f"s_add_u32 s{sHoff}, s{sT2}, s{sSO[0][0]}")
        e(f"s_add_u32 s{sHoff2}, s{sT2}, s{sSO[0][1]}")
        e(f"s_lshl_b32 s{sT2}, s{sP64}, {RL}")
        for i in range(56 >> RL):
            e(f"s_load_dword s{sQKoff}, s[{rA}:{rA+1}], s{sHoff}")
            e(f"s_load_dword s{sQKoff}, s[{rB}:{rB+1}], s{sHoff2}")
            if i + 1 < (56 >> RL):
                e(f"s_add_u32 s{sHoff}, s{sHoff}, s{sT2}")
                e(f"s_add_u32 s{sHoff2}, s{sHoff2}, s{sT2}")
    e(f"v_lshrrev_b32 v25, 2, v{vLane}")
    e(f"v_and_b32 v25, 4, v25")
    e(f"v_xor_b32 v25, v25, v23")
    e(f"v_lshl_add_u32 v26, s{sW}, 3, v22")
    e(f"v_mul_lo_u32 v{vD0}, v26, s{sP64}")
    e(f"v_lshl_add_u32 v{vD0}, v25, 4, v{vD0}")
    e(f"v_mul_u32_u24 v{vD1}, 3584, v26")
    e(f"v_lshl_add_u32 v{vD1}, v25, 4, v{vD1}")
    e(f"s_lshl_b32 s{sT1}, s{sP64}, 5")
    e(f"v_subrev_u32 v32, s{sT1}, v{vD0}")
    vRow, vSwz, vCol = vV1, vV2, vV3
    e(f"v_lshrrev_b32 v26, 5, v{vLane}")
    e(f"v_bfe_u32 v27, v{vLane}, 2, 2")
    e(f"v_lshl_add_u32 v27, v26, 3, v27")
    e(f"v_lshlrev_b32 v{vRow}, 7, v27")
    e(f"v_and_b32 v28, 8, v{vLane}")
    e(f"v_lshlrev_b32 v{vSwz}, 3, v28")
    e(f"v_and_b32 v29, 3, v{vLane}")
    e(f"v_and_b32 v30, 16, v{vLane}")
    e(f"v_lshlrev_b32 v30, 1, v30")
    e(f"v_lshl_add_u32 v{vCol}, v29, 3, v30")
    def traddr(d, stc, t0, t1):
        return [f"v_add_u32 v{t0}, s{stc}, v{vCol}", f"v_and_b32 v{t1}, 127, v{t0}", f"v_xor_b32 v{t1}, v{t1}, v{vSwz}",
                f"v_and_b32 v{t0}, 128, v{t0}", f"v_lshl_add_u32 v{t0}, v{t0}, 6, v{t1}", f"v_add_u32 v{d}, v{t0}, v{vRow}"]
    for t in traddr(vTB[0][0], sTc0a, 30, 31) + traddr(vTB[0][1], sTc0b, 30, 31): e(t)
    e(f"s_and_b32 s{sT1}, s{sWR}, 1")
    e(f"s_lshl4_add_u32 s{sT1}, s{sT1}, s{sGS}")
    e(f"v_add_u32 v30, s{sT1}, v22")
    e(f"v_xor_b32 v30, v30, v23")
    e(f"v_lshlrev_b32 v30, 4, v30")
    e(f"v_lshrrev_b32 v31, 1, v23")
    e(f"v_lshl_add_u32 v30, v31, 12, v30")
    e(f"v_and_b32 v31, 1, v23")
    e(f"v_lshl_add_u32 v30, v31, 9, v30")
    e(f"s_lshr_b32 s{sT1}, s{sWR}, 1")
    e(f"v_lshl_add_u32 v{vXW[0]}, s{sT1}, 10, v30")
    e(f"v_add_u32 v{vXW[1]}, 0x10000, v{vXW[0]}")
    e(f"v_and_b32 v30, 31, v{vLane}")
    e(f"v_xor_b32 v30, v30, v26")
    e(f"v_lshlrev_b32 v30, 4, v30")
    e(f"v_lshl_add_u32 v30, v26, 9, v30")
    e(f"v_lshl_add_u32 v{vXR[0]}, s{sTT}, 10, v30")
    for q in range(1, 4):
        e(f"v_xor_b32 v{vXR[q]}, {q*4096 + q*32}, v{vXR[0]}")
    e(f"s_lshl4_add_u32 s{sT1}, s{sWR}, s{sGS}")
    e(f"v_add_lshl_u32 v{vStat}, v22, s{sT1}, 2")
    e(f"s_mul_i32 s{sT2}, s{sTT}, 112")
    e(f"s_add_u32 s{sT1}, s{sT3}, s{sT2}")
    e(f"v_min_u32 v30, {(112 >> RL) - 1}, v{vLane}")
    e(f"v_lshl_add_u32 v30, v30, {RL}, s{sT1}")
    e(f"v_mul_u32_u24 v{vDum+3}, 3584, v30")
    e(f"s_lshl_b32 s{sP64}, s{sP64}, 6")
    srd2(rW1, pW1, W1_BYTES)
    srd2(rW3, pW3, W1_BYTES)
    e(f"s_lshl_b32 s{sSO[1][0]}, s{sCOL}, 7")
    e(f"s_lshr_b32 s{sT1}, s{sCOL}, 1")
    e(f"s_add_u32 s{sT1}, s{sT1}, 16")
    e(f"s_lshl_b32 s{sSO[2][0]}, s{sT1}, 7")
    e(f"s_cmp_lt_u32 s{sW}, 4")
    e(f"s_cbranch_scc1 L_x2")
    a.skip_begin(); xloads(0, XE, sXa, sXb); a.skip_end()
    a.label("L_x2")
    xloads(XE, 14, sXa, sXb)
    if opt.get("w0pos", 0) == 1:
        e(f"s_lshr_b32 s{sP64}, s{sP64}, 6"); wpf0(); e(f"s_lshl_b32 s{sP64}, s{sP64}, 6")
    e(f"s_lshl_b32 s{sStat}, s2, 9")
    e(f"s_add_u32 s{sStat}, s{sStat}, {ST_OFF}")
    e(f"s_mov_b32 s{sOnes}, 0x3f803f80")
    e(f"s_movk_i32 s{sLo}, 0x3f80")
    e(f"s_mov_b32 s{sHi}, 1.0")
    def slot(c):
        if c < 3: return 7 + c
        if c < 10: return c - 3
        if c == 20: return 7
        return slot(c - 9)
    dma_next = [3]
    def dma(c, track=True):
        r, cc = divmod(c, 7)
        if cc == 0:
            e(f"s_mov_b32 s{sCurA}, s{sSO[r][0]}")
            if r == 0: e(f"s_mov_b32 s{sCurB}, s{sSO[r][1]}")
        va, vb = [(vD0, vD0), (vD1, vD1), (vD1, vD2B)][r]
        sa, sb = (rA, rB) if r == 0 else (rW1, rW3)
        inc = f"s{sP64}" if r == 0 else f"{64*3584}"
        e(f"s_add_u32 m0, s{sM0}, {slot(c)*16384}")
        if cc: e(f"s_add_u32 s{sCurA}, s{sCurA}, {inc}")
        e(f"buffer_load_dwordx4 v{va}, {S(sa)}, s{sCurA} offen lds")
        e(f"s_add_u32 m0, s{sM0}, {slot(c)*16384+8192}")
        if cc and r == 0: e(f"s_add_u32 s{sCurB}, s{sCurB}, {inc}")
        e(f"buffer_load_dwordx4 v{vb}, {S(sb)}, s{sCurB if r == 0 else sCurA} offen lds")
        if track: a.vm += [f"c{c}", f"c{c}"]
    for q in range(8): e(f"v_mov_b32 v{T0+8+q}, 0")
    e(f"s_cmp_lt_u32 s{sW}, 4")
    e(f"s_cbranch_scc1 L_lnA")
    e(f"s_waitcnt vmcnt(0)")
    def dma4(c):
        dma(c, track=False)
        e(f"s_add_u32 m0, s{sM0}, {slot(c)*16384 - 4096}")
        e(f"buffer_load_dwordx4 v32, {S(rA)}, s{sCurA} offen lds")
        e(f"s_add_u32 m0, s{sM0}, {slot(c)*16384 + 8192 - 4096}")
        e(f"buffer_load_dwordx4 v32, {S(rB)}, s{sCurB} offen lds")
        a.vm += [f"c{c}"] * 4
    C2 = opt.get("c2pos", 1)
    for c in range(3 if C2 == 0 else 2): dma4(c)
    e(f"s_branch L_lnB")
    a.label("L_lnA")
    e(f"s_lshl1_add_u32 s{sCurA}, s{sP64}, s{sSO[0][0]}")
    e(f"s_lshl1_add_u32 s{sCurB}, s{sP64}, s{sSO[0][1]}")
    e(f"s_waitcnt vmcnt({2 if opt.get('w0pos', 0) == 1 else 0})")
    a.label("L_lnB")
    a.reset_hist()
    padat("x0")
    sp.stamp("x0", nowait=True); sp.stamp("x0", lvl=3, nowait=True)
    def wpf():
        for r in (1, 2):
            e(f"buffer_load_dword v{vDum+1}, v{vDum+3}, {S(rW1)}, s{sSO[r][0]} offen{opt.get('pnt', '')}")
            e(f"buffer_load_dword v{vDum+1}, v{vDum+3}, {S(rW3)}, s{sSO[r][0]} offen{opt.get('pnt', '')}")
        if opt.get("w2pf", 3) == 3:
            e(f"s_lshl2_add_u32 s{sT1}, s2, s{sW}")
            e(f"s_mul_i32 s{sT2}, s{sT1}, {13*128}")
            e(f"s_lshl_b32 s{sT1}, s{sT1}, 9")
            e(f"v_min_u32 v{vDum+2}, 12, v{vLane}")
            e(f"v_lshl_add_u32 v{vDum+2}, v{vDum+2}, 7, s{sT2}")
            e(f"v_min_u32 v{vDum+2}, {W2_BYTES-4}, v{vDum+2}")
            e(f"v_min_u32 v{vDum+3}, 3, v{vLane}")
            e(f"v_lshl_add_u32 v{vDum+3}, v{vDum+3}, 7, s{sT1}")
            e(f"v_min_u32 v{vDum+3}, {WO_BYTES-4}, v{vDum+3}")
            e(f"global_load_dword v{vDum+1}, v{vDum+2}, s[{pW2}:{pW2+1}]{opt.get('p2nt', '')}")
            e(f"global_load_dword v{vDum+1}, v{vDum+3}, s[{pWO}:{pWO+1}]")
    AC = T0 + 8
    def reduce2(d0, d1):
        for g in range(2): e(f"v_add_f32 v{AC+4*g}, v{AC+4*g}, v{AC+4*g+1}")
        for g in range(2): e(f"v_add_f32 v{AC+4*g+2}, v{AC+4*g+2}, v{AC+4*g+3}")
        for g, d in enumerate((d0, d1)): e(f"v_add_f32 v{d}, v{AC+4*g}, v{AC+4*g+2}")
        for m in ("quad_perm:[1,0,3,2]", "quad_perm:[2,3,0,1]", "row_half_mirror"):
            for d in (d0, d1): e(f"v_add_f32_dpp v{d}, v{d}, v{d} {m} row_mask:0xf bank_mask:0xf")
    for i in range(28):
        for g in range(2): e(f"v_dot2c_f32_bf16 v{AC+4*g+i%4}, s{sOnes}, v{RAW+g*28+i}")
    reduce2(vAcc[0], vAcc[1])
    for q in range(8): e(f"v_mov_b32 v{AC+q}, 0")
    for g in range(2): e(f"v_mul_f32 v{vAcc[g]}, {hexf(-1.0/448)}, v{vAcc[g]}")
    if C2 == 1:
        e(f"s_cmp_lt_u32 s{sW}, 4")
        e(f"s_cbranch_scc1 L_c2")
        a.skip_begin(); dma4(2)
        a.skip_end()
        a.label("L_c2")
    sp.stamp("pre", lvl=3, nowait=True)
    pend = None
    for gi in range(2):
        for i in range(7):
            r = RAW + gi * 28 + i * 4
            for k in range(4):
                e(f"v_dot2_f32_bf16 v{T0+2*k}, v{r+k}, s{sLo}, v{vAcc[gi]}")
                e(f"v_dot2_f32_bf16 v{T0+2*k+1}, v{r+k}, s{sHi}, v{vAcc[gi]}")
            if pend: pend()
            for k in range(4):
                e(f"v_cvt_pk_bf16_f32 v{r+k}, v{T0+2*k}, v{T0+2*k+1}")
            def pend(r=r, gi=gi, i=i):
                off = i * 16384
                a.ds_op(f"ds_write_b128 v{vXW[off >> 16]}, v[{r}:{r+3}] offset:{off & 0xffff}", "xw")
                if i == 6 and gi == 0:
                    e(f"v_xor_b32 v{vXW[0]}, 128, v{vXW[0]}")
                    e(f"v_xor_b32 v{vXW[1]}, 128, v{vXW[1]}")
    pend()
    if opt.get("wpf", 1) == 3:
        e(f"s_cmp_ge_u32 s{sW}, 4")
        e(f"s_cbranch_scc1 L_wp3")
        a.skip_begin(); wpf(); a.skip_end()
        a.label("L_wp3")
    if C2 == 2:
        e(f"s_cmp_lt_u32 s{sW}, 4")
        e(f"s_cbranch_scc1 L_c2")
        a.skip_begin(); dma4(2); a.skip_end()
        a.label("L_c2")
    sp.stamp("post", lvl=3, nowait=True)
    for i in range(28):
        for g in range(2): e(f"v_dot2c_f32_bf16 v{AC+4*g+i%4}, v{RAW+g*28+i}, v{RAW+g*28+i}")
    e(f"v_mov_b32 v{T0}, {hexf(1e-5)}")
    e(f"v_mov_b32 v{T0+1}, {hexf(1e-5)}")
    e(f"v_xor_b32 v{T0+2}, 32, v{vStat}")
    reduce2(vAcc[0], vAcc[1])
    for g in range(2): e(f"v_fmac_f32 v{T0+g}, {hexf(1.0/448)}, v{vAcc[g]}")
    e(f"s_cmp_ge_u32 s{sW}, 4")
    e(f"s_cbranch_scc1 L_lnD")
    a.skip_begin()
    e(f"s_lshl3_add_u32 s{sT3}, s2, s{sW}")
    e(f"s_cmp_lg_u32 s{sT3}, 0")
    e(f"s_cbranch_scc1 L_noinit")
    e(f"v_lshlrev_b32 v25, 7, v{vLane}")
    e(f"v_mov_b32 v26, 0")
    e(f"s_mov_b32 s3, {CNT_OFF}")
    for q in range(5):
        if q: e(f"s_add_u32 s3, s3, 8192")
        e(f"buffer_store_dword v26, v25, {S(rWS)}, s3 offen sc1")
    a.label("L_noinit")
    if opt.get("touch") == 2: touch()
    if opt.get("wpf", 1) == 1: wpf()
    e(f"s_branch L_lnE")
    a.skip_end()
    a.label("L_lnD")
    sp.stamp("ln", lvl=3, nowait=True)
    a.vm_wait("c1")
    a.label("L_lnE")
    a.ds_wait_all()
    sp.stamp("ln")
    sp.stamp("c1", lvl=3)
    e("s_barrier")
    padat("b1")
    sp.stamp("b1"); sp.stamp("b1", lvl=3)
    def deferred():
        t0, t1, t2 = AB, AB + 1, AB + 2
        G = lambda *ins: (lambda: [e(x) for x in ins], sum(2 if x.startswith("s_") else 4 for x in ins))
        L = []
        L.append(G(f"v_xor_b32 v{vD2B}, 32, v{vD1}", f"v_lshlrev_b32 v{vSt}, 4, v{vLane}", f"s_mov_b32 vcc_lo, -1", f"s_mov_b32 vcc_hi, 0"))
        L.append(G(f"s_lshl2_add_u32 s{sTTG}, s{sRB}, s{sTT}", f"s_lshl_b32 s{sHoff}, s{sG}, 6"))
        L += [G(x) for x in traddr(vTB[1][0], sHoff, t0, t1)]
        L.append(G(f"v_add_u32 v{vTB[1][1]}, 8192, v{vTB[1][0]}"))
        L.append(G(f"s_and_b32 s{sHoff}, s{sCOL}, 1", f"s_lshl_b32 s{sHoff2}, s{sHoff}, 1", f"s_lshl_b32 s{sHoff}, s{sHoff2}, 5",
                   f"v_xor_b32 v{t0}, s{sHoff}, v{vCol}"))
        L.append(G(f"v_xor_b32 v{t0}, v{t0}, v{vSwz}", f"v_and_b32 v{t1}, 16, v{vLane}"))
        L.append(G(f"v_lshl_add_u32 v{t0}, v{t1}, 9, v{t0}", f"v_add_u32 v{vTB[2][0]}, v{t0}, v{vRow}", f"v_xor_b32 v{vTB[2][1]}, 32, v{vTB[2][0]}"))
        L.append(G(f"s_mul_i32 s{sHoff}, s{sTTG}, 112", f"s_add_u32 s{sHoff2}, s{sHoff2}, s{sHoff}", f"s_lshr_b32 s{sQKoff}, s{sSO[2][0]}, 5",
                   f"s_add_u32 s{sHoff2}, s{sHoff2}, s{sQKoff}", f"s_lshl_b32 s{sHoff2}, s{sHoff2}, 10", f"s_add_u32 s{sHoff2}, s{sHoff2}, {H_OFF}"))
        L.append(G(f"s_lshl1_add_u32 s{sHoff}, s{sG}, s{sHoff}", f"s_lshl2_add_u32 s{sHoff}, s{sCOL}, s{sHoff}", f"s_lshl_b32 s{sHoff}, s{sHoff}, 10",
                   f"s_add_u32 s{sHoff}, s{sHoff}, {H_OFF}"))
        L.append(G(f"s_lshl1_add_u32 s{sQKoff}, s{sCOL}, s{sG}", f"s_lshl_b32 s{sQKoff}, s{sQKoff}, 7", f"s_add_u32 s{sQKoff}, s{sQKoff}, s{sTTG}",
                   f"s_lshl_b32 s{sQKoff}, s{sQKoff}, 11", f"s_add_u32 s{sQKstep}, s{sHoff}, {12*4096}", f"s_cmp_ge_u32 s{sCOL}, 12",
                   f"s_cselect_b32 s{sQKoff}, s{sQKstep}, s{sQKoff}"))
        L.append(G(f"s_lshr_b32 s{sQKstep}, s{sCOL}, 2", f"s_cmp_eq_u32 s{sQKstep}, 1", f"s_cselect_b32 s{sOnes}, s{sOnes}, 0", f"s_cselect_b32 s{sHi}, s{sLo}, 0",
                   f"s_cmp_eq_u32 s{sQKstep}, 2", f"s_cselect_b32 s{sOnes}, s{sLo}, s{sOnes}"))
        L.append(G(f"v_mov_b32 v{vP6}, s{sOnes}", f"v_mov_b32 v{vP7}, s{sHi}"))
        L.append(G(f"v_lshrrev_b32 v{t2}, 5, v{vLane}", f"v_bfe_u32 v{t0}, v{vLane}, 2, 2", f"v_lshl_add_u32 v{t0}, v{t2}, 2, v{t0}"))
        L.append(G(f"v_lshrrev_b32 v{t1}, 1, v{t0}", f"v_lshlrev_b32 v{t1}, 3, v{t1}", f"v_xor_b32 v{t1}, v{t1}, v{vCol}"))
        L.append(G(f"s_lshl_b32 s{sQKstep}, s{sW}, 11", f"s_add_u32 s{sQKstep}, s{sQKstep}, {SCR}", f"v_lshl_add_u32 v{t0}, v{t0}, 6, v{t1}",
                   f"v_add_u32 v{vV2}, s{sQKstep}, v{t0}"))
        L.append(G(f"v_xor_b32 v{vV3}, 32, v{vV2}", f"v_bfe_u32 v{t0}, v{vLane}, 1, 3", f"v_xor_b32 v{t0}, v{t0}, v{t2}"))
        L.append(G(f"v_and_b32 v{t1}, 31, v{vLane}", f"v_lshlrev_b32 v{t1}, 6, v{t1}", f"v_lshl_add_u32 v{t0}, v{t0}, 3, v{t1}"))
        L.append(G(f"v_add_u32 v{vV1}, s{sQKstep}, v{t0}"))
        return L
    def hdiag(k):
        if not opt.get("hdiag"): return
        if k == 0: return
        e("s_cmp_ge_u32 s2, 7")
        e("s_cbranch_scc1 L_end")
        e(f"s_cmp_lg_u32 s{sW}, 4")
        e("s_cbranch_scc1 L_end")
        e("s_memrealtime s[80:81]"); e("s_memtime s[82:83]")
        e("s_waitcnt vmcnt(0) lgkmcnt(0)")
        e("s_mov_b64 exec, 1")
        e("s_lshl_b32 s3, s2, 3")
        e("v_mov_b32 v0, s3")
        e("s_sub_u32 s84, s82, s78")
        e("s_sub_u32 s80, s80, s76")
        e("s_and_b32 s76, s76, 0xffff")
        e("s_lshl_b32 s80, s80, 16")
        e("s_or_b32 s76, s76, s80")
        e("v_mov_b32 v2, s76"); e("v_mov_b32 v3, s84")
        e(f"global_store_dword v0, v2, s[{pDBG}:{pDBG+1}] offset:4")
        e(f"global_store_dword v0, v3, s[{pDBG}:{pDBG+1}] offset:8")
    def check_flag(vtmp):
        done = lab("fl")
        e(f"v_readfirstlane_b32 s{sT1}, v{vFlag}")
        e(f"s_cmp_lg_u32 s{sT1}, 0")
        e(f"s_cbranch_scc1 {done}")
        e(f"s_mov_b32 s{sT2}, 0x40000")
        lp = lab("fs"); a.label(lp)
        e(f"v_mov_b32 v{vtmp}, 0")
        e(f"global_load_dword v{vFlag}, v{vtmp}, s[{pDBG}:{pDBG+1}] sc1")
        e(f"s_waitcnt vmcnt(0)")
        e(f"v_readfirstlane_b32 s{sT1}, v{vFlag}")
        e(f"s_sub_u32 s{sT2}, s{sT2}, 1")
        e(f"s_cselect_b32 s{sT1}, 1, s{sT1}")
        e(f"s_cmp_eq_u32 s{sT1}, 0")
        e(f"s_cbranch_scc1 {lp}")
        a.label(done)
    def signal(sIdx, add, va, vb):
        e(f"s_add_u32 s{sT1}, s{sIdx}, {add}")
        e(f"s_lshl_b32 s{sT1}, s{sT1}, 7")
        e(f"s_add_u32 s{sT1}, s{sT1}, {CNT_OFF}")
        e(f"v_mov_b32 v{va}, 0")
        e(f"v_mov_b32 v{vb}, 1")
        e(f"s_mov_b64 exec, 1")
        e(f"buffer_atomic_add v{vb}, v{va}, {S(rWS)}, s{sT1} offen sc1")
        e(f"s_mov_b64 exec, -1")
    def poll(vaddr, vval, target, sleep):
        lp = lab("po"); done = lab("pd")
        e(f"s_mov_b32 s{sT2}, 0x40000")
        e(f"s_mov_b32 s{sT3}, {CNT_OFF}")
        a.label(lp)
        e(f"buffer_load_dword v{vval}, v{vaddr}, {S(rWS)}, s{sT3} offen sc1")
        e(f"s_waitcnt vmcnt(0)")
        e(f"v_cmp_gt_u32 s[74:75], {target}, v{vval}")
        e(f"s_cmp_eq_u64 s[74:75], 0")
        e(f"s_cbranch_scc1 {done}")
        e(f"s_sleep {sleep}")
        e(f"s_sub_u32 s{sT2}, s{sT2}, 1")
        e(f"s_cbranch_scc0 {lp}")
        a.label(done)
        a.vm = []
    def lds_arrive(k, va, vb, rtn=False):
        e(f"v_mov_b32 v{va}, {SYNC + 4*k}")
        e(f"v_mov_b32 v{vb}, 1")
        e(f"s_mov_b64 exec, 1")
        e(f"ds_add_rtn_u32 v{vb}, v{va}, v{vb}" if rtn else f"ds_add_u32 v{va}, v{vb}")
        e(f"s_mov_b64 exec, -1")
    def lds_sync(k, n, va, vb, meanwhile=None):
        a.ds_wait_all()
        lds_arrive(k, va, vb)
        if meanwhile:
            e("s_nop 3"); meanwhile()
        lp = lab("ls")
        e(f"s_mov_b32 s{sT2}, 0x400000")
        a.label(lp)
        e(f"ds_read_b32 v{vb}, v{va}")
        e(f"s_waitcnt lgkmcnt(0)")
        e(f"v_readfirstlane_b32 s{sT1}, v{vb}")
        e(f"s_sub_u32 s{sT2}, s{sT2}, 1")
        e(f"s_cselect_b32 s{sT1}, {n}, s{sT1}")
        e(f"s_cmp_lt_u32 s{sT1}, {n}")
        e(f"s_cbranch_scc1 {lp}")
    def lds_spin(k, n, va, vb, sleep):
        lp = lab("ls"); ok = lab("lk")
        e(f"v_mov_b32 v{va}, {SYNC + 4*k}")
        e(f"s_mov_b32 s{sT2}, 0x100000")
        a.label(lp)
        e(f"ds_read_b32 v{vb}, v{va}")
        e(f"s_waitcnt lgkmcnt(0)")
        e(f"v_readfirstlane_b32 s{sT1}, v{vb}")
        e(f"s_cmp_ge_u32 s{sT1}, {n}")
        e(f"s_cbranch_scc1 {ok}")
        e(f"s_sleep {sleep}")
        e(f"s_sub_u32 s{sT2}, s{sT2}, 1")
        e(f"s_cbranch_scc0 {lp}")
        a.label(ok)
    def lds_check(k, n, va, vb):
        lp = lab("lc"); ok = lab("ld")
        e(f"s_mov_b32 s{sT2}, 0x400000")
        a.label(lp)
        e(f"s_waitcnt lgkmcnt(0)"); a.lg = []
        e(f"v_readfirstlane_b32 s{sT1}, v{vb}")
        e(f"s_cmp_ge_u32 s{sT1}, {n}")
        e(f"s_cbranch_scc1 {ok}")
        a.skip_begin()
        e(f"ds_read_b32 v{vb}, v{va}")
        e(f"s_sub_u32 s{sT2}, s{sT2}, 1")
        e(f"s_cbranch_scc0 {lp}")
        a.skip_end()
        a.label(ok)
    def lds_wait(k, n, va, vb, meanwhile):
        lp = lab("lw"); ok = lab("lo")
        e(f"v_mov_b32 v{va}, {SYNC + 4*k}")
        e(f"ds_read_b32 v{vb}, v{va}")
        meanwhile()
        e(f"s_mov_b32 s{sT2}, 0x400000")
        a.label(lp)
        e(f"s_waitcnt lgkmcnt(0)")
        e(f"v_readfirstlane_b32 s{sT1}, v{vb}")
        e(f"s_cmp_ge_u32 s{sT1}, {n}")
        e(f"s_cbranch_scc1 {ok}")
        e(f"ds_read_b32 v{vb}, v{va}")
        e(f"s_sub_u32 s{sT2}, s{sT2}, 1")
        e(f"s_cbranch_scc0 {lp}")
        a.label(ok)
    def last_signals(k, n, sIdx, add, va, vb):
        lds_arrive(k, va, vb, rtn=True)
        e(f"s_waitcnt lgkmcnt(0)"); a.lg = []
        e(f"v_readfirstlane_b32 s{sT1}, v{vb}")
        sk = lab("ns")
        e(f"s_cmp_lg_u32 s{sT1}, {n-1}")
        e(f"s_cbranch_scc1 {sk}")
        a.skip_begin()
        signal(sIdx, add, va, vb)
        a.skip_end()
        a.label(sk)
    NT = [2, 2, 2]
    ACC = [AA, AB, AA]
    tw_state = [None, None]
    def wreads(G):
        r, s = divmod(G, 28)
        base = slot(G // 4) * 16384 + (s % 4) * 2048
        hi, lo = base >> 16, base & 0xffff
        L = []
        for t in range(NT[r]):
            d = WF + (G % 3) * 8 + t * 4
            def f0(t=t, d=d):
                if tw_state[t] != (r, hi):
                    e(f"v_add_u32 v{vTW[t]}, {hex(hi << 16)}, v{vTB[r][t]}")
                    tw_state[t] = (r, hi)
                a.ds_op(f"ds_read_b64_tr_b16 v[{d}:{d+1}], v{vTW[t]} offset:{lo}", f"w{G}")
            def f1(t=t, d=d):
                a.ds_op(f"ds_read_b64_tr_b16 v[{d+2}:{d+3}], v{vTW[t]} offset:{lo+512}", f"w{G}")
            L += [f0, f1]
        return L
    xr_next = [0]
    def xread(n):
        for _ in range(n):
            s = xr_next[0]
            if s >= 28: return
            xr_next[0] += 1
            if s == 16:
                for q in range(4): e(f"v_add_u32 v{vXR[q]}, 0x10000, v{vXR[q]}")
            off = ((s // 4) * 16384) & 0xffff
            a.ds_op(f"ds_read_b128 v[{X0+4*s}:{X0+4*s+3}], v{vXR[s%4]} offset:{off}", f"x{s}")
    BARS = opt.get("bars", [0, 1, 2, 3, 5, 7, 9, 11, 13, 15])
    PQ = opt.get("pq", 11)
    PZ = opt.get("pz", 13)
    L2P = {int(k): v for k, v in opt.get("l2p", {}).items()}
    VEND = PQ
    window = []; pending = []
    def period_barrier(i):
        for c in window: a.vm.extend([f"c{c}", f"c{c}"])
        assert not pending, pending
        window.clear()
        nxt = min([b for b in BARS if b > i] + [20])
        a.vm_wait(f"c{nxt}")
        assert dma_next[0] > nxt, (i, nxt, dma_next[0])
        if i == 3: a.vm_wait("stat")
        if i == PQ: a.vm_wait("st"); a.vm_wait("fl")
        if i in opt.get("sb", []): sp.stamp("pre", lvl=2, nowait=True)
        e("s_barrier")
        if i in opt.get("sb", []): sp.stamp("post", lvl=2, nowait=True)
        if i == 3:
            e(f"v_and_b32 v{vK}, 31, v{vLane}")
            e(f"v_lshlrev_b32 v{vK}, 2, v{vK}")
            e(f"s_lshl_b32 s{sT1}, s{sTT}, 7")
            e(f"s_add_u32 s{sT1}, s{sT1}, s{sStat}")
            a.vm_op(f"buffer_load_dword v{vK}, v{vK}, {S(rWS)}, s{sT1} offen sc1", "kld")
        if i == 3:
            e(f"s_lshl3_add_u32 s{sT1}, s2, s{sW}")
            e(f"s_cmp_lg_u32 s{sT1}, 0")
            e(f"s_cbranch_scc1 L_nofl")
            a.skip_begin()
            e(f"v_mov_b32 v{vDum+2}, 0")
            e(f"v_mov_b32 v{vDum+3}, 1")
            e(f"global_store_dword v{vDum+2}, v{vDum+3}, s[{pDBG}:{pDBG+1}] sc1")
            a.skip_end()
            a.label("L_nofl")
        if i == 7:
            e(f"v_mov_b32 v{vFlag}, 0")
            a.vm_op(f"global_load_dword v{vFlag}, v{vFlag}, s[{pDBG}:{pDBG+1}] sc1", "fl")
        if i in L2P:
            for k in L2P[i]:
                sk = lab("pf")
                e(f"s_cmp_lg_u32 s{sW}, {k}")
                e(f"s_cbranch_scc1 {sk}")
                a.skip_begin()
                e(f"s_lshr_b32 s{sT1}, s2, 3")
                nl, ptr, nb = (56, pW2, W2_BYTES) if k < 7 else (98, pWO, WO_BYTES)
                if k < 7:
                    e(f"s_mul_i32 s{sT1}, s{sT1}, {7*56*128}")
                    e(f"s_add_u32 s{sT1}, s{sT1}, {k*56*128}")
                else:
                    e(f"s_mul_i32 s{sT1}, s{sT1}, {98*128}")
                e(f"v_min_u32 v{vDum+2}, {min(nl, 64) - 1 if k < 7 else 48}, v{vLane}")
                e(f"v_lshl_add_u32 v{vDum+2}, v{vDum+2}, 7, s{sT1}")
                e(f"global_load_dword v{vDum+1}, v{vDum+2}, s[{ptr}:{ptr+1}]")
                if k == 7:
                    e(f"v_add_u32 v{vDum+2}, {49*128}, v{vDum+2}")
                    e(f"global_load_dword v{vDum+1}, v{vDum+2}, s[{ptr}:{ptr+1}]")
                a.skip_end()
                a.label(sk)
        if i == PZ:
            e(f"v_lshrrev_b32 v{vDum+2}, 2, v{vSt}")
            e(f"v_add_u32 v{vDum+2}, {SYNC}, v{vDum+2}")
            e(f"v_mov_b32 v{vDum+3}, 0")
            a.ds_op(f"ds_write_b32 v{vDum+2}, v{vDum+3}", "z")
        if i == PQ and sigq[0]:
            sk = lab("q")
            e(f"s_cmp_lg_u32 s{sW}, 0")
            e(f"s_cbranch_scc1 {sk}")
            a.skip_begin()
            check_flag(vDum + 2)
            signal(sCOL, 0, vDum + 2, vDum + 3)
            a.skip_end()
            a.label(sk)
        while dma_next[0] <= 20:
            c = dma_next[0]
            if c < 10:
                sl = slot(c)
                if not all(xr_next[0] > s and a.ds_done(f"x{s}") for s in range(4*sl, 4*sl+4)): break
            elif c == 20:
                if i < 13: break
            elif c - 9 > i - 1: break
            window.append(c); dma_next[0] += 1
        nq = nxt - i
        per = -(-len(window) // nq)
        pending[:] = [window[k*per:(k+1)*per] for k in range(nq)]
    sigq = [False]
    XR = opt.get("xrate", 2)
    def kloop(r, extra, budget, hooks={}):
        extra = list(extra)
        if opt.get("x_noepi"): extra = [x for x in extra if x[1] == 0]
        gap = 0
        for s in range(28):
            G = r * 28 + s
            Gn = G + 2
            rd = wreads(Gn) if Gn < 84 else []
            a.ds_wait(f"w{G}")
            if r == 0: a.ds_wait(f"x{s}")
            ph = Gn % 4
            for t in range(NT[r]):
                d = ACC[r] + 16 * t
                w = WF + (G % 3) * 8 + t * 4
                c = "0" if s == 0 else f"v[{d}:{d+15}]"
                e(f"v_mfma_f32_32x32x16_bf16 v[{d}:{d+15}], v[{w}:{w+3}], v[{X0+4*s}:{X0+4*s+3}], {c}")
                gap += 1
                if t == 0 and Gn < 84 and ph == 0 and (Gn // 4 - 1) in BARS: period_barrier(Gn // 4 - 1)
                n = -(-len(rd) // (NT[r] - t))
                for f in rd[:n]: f()
                rd = rd[n:]
                if r == 0: xread((XR + 1 - t) // 2)
                left = budget
                if t == NT[r] - 1 and pending and pending[0] and ph % 2 == 0:
                    sk = lab("d")
                    e(f"s_cmp_lg_u32 s{sPh}, {ph}")
                    e(f"s_cbranch_scc1 {sk}")
                    a.skip_begin()
                    for c in pending[0]: dma(c, track=False)
                    a.skip_end()
                    a.label(sk)
                    left = opt.get("dmabud", 4)
                if t == NT[r] - 1 and s in hooks: hooks[s](); left = 0
                while extra and gap > 3 and extra[0][1] <= left:
                    f, cst = extra.pop(0); f(); left -= cst
            if ph == 3 and pending: pending.pop(0)
        return extra
    def I(t):
        op = t.split()[0]
        return (lambda: e(t), 8 if op.startswith(TRANS) else (2 if op.startswith("s_") else 4))
    def consts():
        def sel():
            e(f"s_cmp_lt_u32 s{sCOL}, 4")
            e(f"s_cselect_b32 s{sT1}, {hexf(28**-0.5*LOG2E)}, 1.0")
            e(f"v_mul_f32 v{vSc}, s{sT1}, v{vSc}")
        return [(lambda: a.vm_wait("kld"), 0), I(f"v_rsq_f32 v{vSc}, v{vK}"),
                I(f"v_mul_f32 v{vC1}, {hexf(-LOG2E)}, v{vSc}"), (sel, 8)]
    def silu4(Gt, U, t, p):
        L = []
        for k in range(4): L.append(I(f"v_mul_f32 v{t+k}, v{vC1}, v{Gt+k}"))
        for k in range(4):
            L.append(I(f"v_exp_f32 v{t+k}, v{t+k}"))
            L.append(I(f"v_mul_f32 v{Gt+k}, v{Gt+k}, v{U+k}"))
        for k in range(4): L.append(I(f"v_fma_f32 v{t+k}, v{t+k}, v{vK}, v{vK}"))
        for k in range(4): L.append(I(f"v_rcp_f32 v{t+k}, v{t+k}"))
        for k in range(4): L.append(I(f"v_mul_f32 v{Gt+k}, v{Gt+k}, v{t+k}"))
        for k in range(2): L.append(I(f"v_cvt_pk_bf16_f32 v{p+k}, v{Gt+2*k}, v{Gt+2*k+1}"))
        return L
    def store(r, soff, off):
        if opt.get("x_nost"): return (lambda: None, 8)
        return (lambda: a.vm_op(f"buffer_store_dwordx4 v[{r}:{r+3}], v{vSt}, {S(rWS)}, s{soff} offen offset:{off}{ST}", "st"), 8)
    def epiF(acc, soff):
        Gt, U = acc, acc + 16
        L = []
        for q in range(4):
            L += silu4(Gt + 4*q, U + 4*q, T0 + (q % 2) * 4, U + (q // 2) * 8 + (q % 2) * 2)
            if q % 2 == 1: L.append(store(U + (q // 2) * 8, soff, (q // 2) * 1024))
        return L
    def epiQKV(acc, isv):
        L = []
        P = T0 + 8
        for q in range(4):
            for k in range(4): L.append(I(f"v_mul_f32 v{acc+4*q+k}, v{vSc}, v{acc+4*q+k}"))
            for k in range(2): L.append(I(f"v_cvt_pk_bf16_f32 v{P+2*q+k}, v{acc+4*q+2*k}, v{acc+4*q+2*k+1}"))
            if q == 1 and not isv: L.append(store(P, sQKoff, 0))
        L.append(I(f"v_cndmask_b32 v{P+6}, v{vP6}, v{P+6}, vcc"))
        L.append(I(f"v_cndmask_b32 v{P+7}, v{vP7}, v{P+7}, vcc"))
        if not isv: L.append(store(P + 4, sQKoff, 1024))
        else:
            for q in range(4):
                if q: L.append(I(f"v_xor_b32 v{vV4}, {16*q}, v{vV1}"))
                L.append((lambda q=q: a.ds_op(f"ds_write_b64 v{vV4 if q else vV1}, v[{P+2*q}:{P+2*q+1}]", "vw"), 4))
            L += [(lambda: None, 8)] * 2
            L.append((lambda: a.ds_wait("vw"), 0))
            for q in range(4):
                L.append((lambda q=q: a.ds_op(f"ds_read_b64_tr_b16 v[{acc+2*q}:{acc+2*q+1}], v{vV3 if q % 2 else vV2} offset:{512*q}", "vr"), 4))
            L += [(lambda: None, 8)] * 2
            L.append((lambda: a.ds_wait("vr"), 0))
            L.append(store(acc, sQKoff, 0))
            L.append(store(acc + 4, sQKoff, 1024))
        L.append(I(f"s_add_u32 s{sQKoff}, s{sQKoff}, {64*2048}"))
        return L
    B1, B2 = opt.get("b1", 12), opt.get("b2", 12)
    if opt.get("yprio"):
        e(f"s_cmp_lt_u32 s{sW}, 4")
        e(f"s_cbranch_scc1 L_yp")
        e(f"s_setprio 1")
        a.label("L_yp")
    xread(4)
    for f in wreads(0) + wreads(1): f()
    if opt.get("wpf", 1) == 2:
        e(f"s_cmp_ge_u32 s{sW}, 4")
        e(f"s_cbranch_scc1 L_wp")
        a.skip_begin(); wpf(); a.skip_end()
        a.label("L_wp")
    a.vm_op(f"buffer_store_dword v{T0}, v{vStat}, {S(rWS)}, s{sStat} offen", "stat")
    a.vm_op(f"buffer_store_dword v{T0+1}, v{T0+2}, {S(rWS)}, s{sStat} offen", "stat")
    assert not kloop(0, deferred(), 16)
    padat("r0")
    sp.stamp("r0")
    e(f"s_cmp_lt_u32 s{sCOL}, 8")
    e(f"s_cbranch_scc1 L_pqk")
    e(f"s_cmp_lt_u32 s{sCOL}, 12")
    e(f"s_cbranch_scc1 L_pv")
    saved = (list(a.vm), list(a.lg), list(tw_state), dma_next[0], list(a.hist), list(window), [list(p) for p in pending], sp.n)
    ends = []
    for nm, ex in (("f", lambda: epiF(AA, sQKoff)), ("L_pqk", lambda: epiQKV(AA, False) + epiQKV(AA + 16, False)),
                   ("L_pv", lambda: epiQKV(AA, True) + epiQKV(AA + 16, True))):
        if nm != "f": a.label(nm)
        a.vm, a.lg = list(saved[0]), list(saved[1]); tw_state[:] = saved[2]; dma_next[0] = saved[3]; a.hist = list(saved[4])
        window[:] = saved[5]; pending[:] = [list(p) for p in saved[6]]; sp.set(saved[7])
        sigq[0] = nm != "f"
        nst0 = [0]
        exl = consts() + ex()
        if nm != "f":
            exl.append((lambda: nst0.__setitem__(0, 1), 0))
            _pb = period_barrier
        rest = kloop(1, exl, {"f": B1, "L_pqk": opt.get("b1q", 32), "L_pv": opt.get("b1v", 32)}[nm], hooks={(VEND + 1) * 4 - 2 - 28 - 1: (lambda: None) if nm == "f" else (lambda: (_ for _ in ()).throw(AssertionError("qkv epilogue too late")) if not nst0[0] else None)})
        for f, c in rest: f()
        ends.append(([t for t in a.vm if t != "st"], list(a.lg), list(tw_state), dma_next[0], list(window), [list(p) for p in pending]))
        if nm != "L_pv": e("s_branch L_r2")
    assert ends[0][1:] == ends[1][1:] == ends[2][1:], ends
    a.vm = min((x[0] for x in ends), key=len)
    assert all(x[0][len(x[0])-len(a.vm):] == a.vm for x in ends)
    a.label("L_r2")
    e("s_nop 1")
    padat("r1")
    sp.stamp("r1"); sp.stamp("r1", lvl=5, nowait=True)
    K0, Q, KV, O, Sx, P, T = 16, 24, 56, 128, 192, 224, 240
    ATT_LDS, WO_LDS = 49152, 98304
    sX, sJ = 54, 55
    sHead, sQB, sKV, sRun = 62, 63, 64, 58
    sWq, sTB, sCB, sWo, sLB = 62, 63, 64, 58, 66
    vD, vPoll, vStV = vD0, vDum + 4, vD0
    rW = rA
    rK, rV = rA, rB
    NE = 3
    QX = 147456
    def kvload(i):
        for k in range(4):
            r = KV + 16 * i + 4 * k
            a.vm_op(f"buffer_load_dwordx4 v[{r}:{r+3}], v{vSt}, {S(rK if k < 2 else rV)}, s{sRun} offen offset:{1024*(k%2)}{LD}", f"kv{i}")
        e(f"s_add_u32 s{sRun}, s{sRun}, 2048")
        e(f"s_and_b32 s{sRun}, s{sRun}, 0x1ffff")
    e(f"s_and_b32 s{sX}, s2, 7")
    e(f"s_lshr_b32 s{sJ}, s2, 3")
    check_flag(vDum + 2)
    e(f"s_cmp_lt_u32 s{sW}, 4")
    e(f"s_cbranch_scc1 L_att")
    join = (list(a.vm), list(a.lg), list(a.hist), list(window), sp.n)
    e(f"s_setprio {opt.get('r2prio', 2)}")
    rest = kloop(2, epiF(AB, sHoff), B2)
    sp.stamp("r2")
    for f, c in rest: f()
    for t in range(2):
        for q in range(2):
            for f, c in silu4(AA + 16*t + 4*q, AA + 16*t + 8 + 4*q, T0 + 4*q, T0 + 8 + 4*t + 2*q): f()
        store(T0 + 8 + 4*t, sHoff2, 1024*t)[0]()
    e(f"s_branch L_gemm")
    nst = sp.n
    a.label("L_att")
    a.vm, a.lg, a.hist = list(join[0]), list(join[1]), list(join[2]); sp.set(join[4])
    for c in join[3]: a.vm.extend([f"c{c}", f"c{c}"])
    e(f"s_setprio {opt.get('attprio0', 3)}")
    e(f"s_and_b32 s{sT1}, s{sJ}, 1")
    e(f"s_lshl1_add_u32 s{sHead}, s{sX}, s{sT1}")
    e(f"v_min_u32 v{vPoll}, 2, v{vLane}")
    e(f"v_lshlrev_b32 v{vPoll}, 9, v{vPoll}")
    e(f"s_lshr_b32 s{sT1}, s{sHead}, 2")
    e(f"v_lshl_add_u32 v{vPoll}, s{sT1}, 7, v{vPoll}")
    e(f"s_mov_b32 s{sT3}, {CNT_OFF}")
    a.vm_op(f"buffer_load_dword v{vDum+3}, v{vPoll}, {S(rWS)}, s{sT3} offen sc1", "poll")
    def qload():
        e(f"s_lshl_b32 s{sT1}, s{sHead}, 6")
        e(f"s_lshl2_add_u32 s{sT1}, s{sQB}, s{sT1}")
        e(f"s_add_u32 s{sT1}, s{sT1}, s{sW}")
        e(f"s_lshl_b32 s{sT1}, s{sT1}, 11")
        a.vm_op(f"buffer_load_dwordx4 v[{Q}:{Q+3}], v{vSt}, {S(rWS)}, s{sT1} offen{LD}", "q")
        a.vm_op(f"buffer_load_dwordx4 v[{Q+4}:{Q+7}], v{vSt}, {S(rWS)}, s{sT1} offen offset:1024{LD}", "q")
        kvload(0)
    e(f"s_lshr_b32 s{sQB}, s{sJ}, 1")
    e(f"s_lshl_b32 s{sKV}, s{sHead}, 17")
    e(f"s_add_u32 s{sKV}, s{sKV}, {KV_OFF}")
    e(f"s_and_b32 s{sT1}, s{sQB}, {opt.get('rot', 0)}")
    e(f"s_lshl_b32 s{sT1}, s{sT1}, {opt.get('rotsh', 0)}")
    e(f"s_lshl3_add_u32 s{sT1}, s{sW}, s{sT1}")
    e(f"s_lshl1_add_u32 s{sT1}, s{sT1}, 1")
    e(f"s_lshl_b32 s{sRun}, s{sT1}, 11")
    e(f"s_add_u32 s{rK}, s{pWS}, s{sKV}")
    e(f"s_addc_u32 s{rK+1}, s{pWS+1}, 0")
    e(f"s_mov_b32 s{rK+2}, 0x20000")
    e(f"s_mov_b32 s{rK+3}, 0x20000")
    e(f"s_add_u32 s{rV}, s{rK}, {2 << 20}")
    e(f"s_addc_u32 s{rV+1}, s{rK+1}, 0")
    e(f"s_mov_b32 s{rV+2}, 0x20000")
    e(f"s_mov_b32 s{rV+3}, 0x20000")
    ep = epiF(AB, sHoff)
    n1 = opt.get("ep1", 26)
    a.ds_wait_all()
    for f, c in ep[:n1]: f()
    sp.stamp("ep", lvl=5, nowait=True)
    a.vm_wait("poll")
    sp.stamp("pl", lvl=5, nowait=True)
    e(f"v_cmp_gt_u32 s[74:75], 16, v{vDum+3}")
    e(f"s_cmp_eq_u64 s[74:75], 0")
    e(f"s_cbranch_scc1 L_e2ok")
    sv = (list(a.vm), list(a.hist))
    for f, c in ep[n1:]: f()
    e("s_barrier")
    poll(vPoll, vDum + 3, 16, 1)
    qload(); e("s_waitcnt vmcnt(0)"); e(f"s_branch L_e2j")
    a.label("L_e2ok")
    a.vm, a.hist = sv
    sp.stamp("r2"); sp.stamp("ok", lvl=5, nowait=True)
    qload()
    for f, c in ep[n1:]: f()
    sp.stamp("ep2", lvl=5, nowait=True)
    e("s_barrier")
    a.label("L_e2j")
    kvload(1); kvload(2)
    sFlag, sIt, sOoff = 59, 60, 61
    e(f"s_mov_b32 s{sFlag}, 0")
    e(f"s_lshl2_add_u32 s{sOoff}, s{sQB}, s{sW}")
    e(f"s_lshl4_add_u32 s{sOoff}, s{sOoff}, s{sHead}")
    e(f"s_lshl_b32 s{sOoff}, s{sOoff}, 11")
    e(f"s_add_u32 s{sOoff}, s{sOoff}, {O_OFF}")
    for jj in range(4):
        e(f"s_add_u32 s{sT1}, s{sW}, {jj}")
        e(f"s_and_b32 s{sT1}, s{sT1}, 3")
        e(f"s_lshl_b32 s{sT1}, s{sT1}, 11")
        e(f"s_add_u32 s{sT1}, s{sT1}, {QX}")
        e(f"v_add_u32 v{T+2+jj}, s{sT1}, v{vSt}")
    zl = [] if opt.get("full", 0) else [O + r for r in range(64)] + [P + 8 + r for r in range(8)] + [KV + 56 + r for r in range(8)]
    def zero(n):
        for _ in range(n):
            if zl: e(f"v_mov_b32 v{zl.pop(0)}, 0")
    sp.stamp("pre", lvl=5, nowait=True)
    a.vm_wait("kv0")
    sp.stamp("kv0", lvl=5, nowait=True)
    e(f"v_mfma_f32_32x32x16_bf16 v[{Sx}:{Sx+15}], v[{KV}:{KV+3}], v[{Q}:{Q+3}], 0")
    e(f"v_mfma_f32_32x32x16_bf16 v[{Sx}:{Sx+15}], v[{KV+4}:{KV+7}], v[{Q+4}:{Q+7}], v[{Sx}:{Sx+15}]")
    zero(14)
    sp.stamp("qkv")
    def qk(n, half):
        i, j = (n // 4) % 4, n % 4
        d = Sx + 16 * (n % 2); k = KV + 16 * i + 4 * half; q = Q + 8 * j + 4 * half
        c = "0" if half == 0 else f"v[{d}:{d+15}]"
        e(f"v_mfma_f32_32x32x16_bf16 v[{d}:{d+15}], v[{k}:{k+3}], v[{q}:{q+3}], {c}")
    def pv(n, half):
        i, j = (n // 4) % 4, n % 4
        d = O + 16 * j; v = KV + 16 * i + 8 + 4 * half; p = P + 8 * (n % 2) + 4 * half
        e(f"v_mfma_f32_32x32x16_bf16 v[{d}:{d+15}], v[{v}:{v+3}], v[{p}:{p+3}], v[{d}:{d+15}]")
    def sm(n, g):
        s = Sx + 16 * (n % 2) + 4 * g; p = P + 8 * (n % 2) + 2 * g
        for k in range(4): e(f"v_exp_f32 v{s+k}, v{s+k}")
        e(f"v_cvt_pk_bf16_f32 v{p}, v{s}, v{s+1}")
        e(f"v_cvt_pk_bf16_f32 v{p+1}, v{s+2}, v{s+3}")
    M = T + 8
    def patch(jjs, bias):
        U = M + 4
        for jj in jjs: e(f"v_mov_b32 v{U+jj}, v{M+jj}")
        for jj in jjs: e(f"v_permlane32_swap_b32 v{M+jj}, v{U+jj}")
        for jj in jjs: e(f"v_max_f32 v{M+jj}, v{M+jj}, v{U+jj}")
        for jj in jjs: e(f"v_sub_f32 v{M+jj}, {hexf(-bias) if bias else 0}, v{M+jj}")
        for jj in jjs: e(f"v_cvt_pk_bf16_f32 v{U+jj}, v{M+jj}, v{M+jj}")
        for jj in jjs: e(f"v_and_b32 v{U+jj}, 0xffff0000, v{U+jj}")
        for jj in jjs: e(f"v_sub_f32 v{U+jj}, v{M+jj}, v{U+jj}")
        for jj in jjs: e(f"v_cvt_pk_bf16_f32 v{M+jj}, v{M+jj}, v{U+jj}")
        for jj in jjs: e(f"v_cndmask_b32 v{Q+8*jj+6}, v{M+jj}, v{Q+8*jj+6}, vcc")
        for jj in jjs: e(f"v_and_b32 v{M+jj}, 0xffff0000, v{M+jj}")
        for jj in jjs: e(f"v_sub_f32 v{U+jj}, v{U+jj}, v{M+jj}")
        for jj in jjs: e(f"v_cvt_pk_bf16_f32 v{U+jj}, v{U+jj}, 0")
        for jj in jjs: e(f"v_cndmask_b32 v{Q+8*jj+7}, v{U+jj}, v{Q+8*jj+7}, vcc")
    for k in range(4): e(f"v_max3_f32 v{M+4+k}, v{Sx+4*k}, v{Sx+4*k+1}, v{Sx+4*k+2}")
    for k in range(2): e(f"v_max3_f32 v{M+4+2*k}, v{M+4+2*k}, v{M+5+2*k}, v{Sx+8*k+3}")
    e(f"v_max3_f32 v{M}, v{Sx+7}, v{Sx+15}, v{M+4}")
    e(f"v_max_f32 v{M}, v{M}, v{M+6}")
    patch([0], BIAS)
    a.ds_op(f"ds_write_b128 v{T+2}, v[{Q}:{Q+3}]")
    a.ds_op(f"ds_write_b128 v{T+2}, v[{Q+4}:{Q+7}] offset:1024")
    zero(16)
    lds_sync(1, 4, T, T + 1, lambda: (qk(0, 0), qk(0, 1), zero(24)))
    for jj in range(1, 4):
        a.ds_op(f"ds_read_b128 v[{Q+8*jj}:{Q+8*jj+3}], v{T+2+jj}")
        a.ds_op(f"ds_read_b128 v[{Q+8*jj+4}:{Q+8*jj+7}], v{T+2+jj} offset:1024")
    zero(99)
    e("s_waitcnt vmcnt(8)")
    last_signals(0, 8, sRB, 12, T, T + 1)
    lds_arrive(2, T, T + 1)
    e(f"s_setprio {opt.get('attprio', 1)}")
    a.vm = []
    padat("preloop")
    sp.stamp("preloop"); sp.stamp("preloop", lvl=5)
    def pv0(n, half):
        i, j = (n // 4) % 4, n % 4
        d = O + 16 * j; v = KV + 16 * i + 8 + 4 * half; p = P + 8 * (n % 2) + 4 * half
        c = "0" if (n < 4 and half == 0) else f"v[{d}:{d+15}]"
        e(f"v_mfma_f32_32x32x16_bf16 v[{d}:{d+15}], v[{v}:{v+3}], v[{p}:{p+3}], {c}")
    def owrite(jj):
        for q in range(4):
            r = O + 16 * jj + 4 * q
            a.ds_op(f"ds_write_b128 v{T+jj}, v[{r}:{r+3}] offset:{(jj-1)*4096 + q*1024}")
    for jj in range(4):
        e(f"s_add_u32 s{sT1}, s{sW}, {jj}")
        e(f"s_and_b32 s{sT1}, s{sT1}, 3")
        e(f"s_mul_i32 s{sT1}, s{sT1}, 12288")
        e(f"s_add_u32 s{sT1}, s{sT1}, {ATT_LDS}")
        e(f"v_add_u32 v{T+jj}, s{sT1}, v{vSt}")
    FULL = opt.get("full", 0)
    PAT = opt.get("pat", "D")
    def slot_code(n, first):
        ti, j = divmod(n, 4)
        sb = Sx + 16 * (n % 2); pb = P + 8 * (n % 2)
        E = [f"v_exp_f32 v{sb+k}, v{sb+k}" for k in range(16)]
        Cv = [f"v_cvt_pk_bf16_f32 v{pb+k}, v{sb+2*k}, v{sb+2*k+1}" for k in range(8)]
        sq = {"A": [E[0:4] + Cv[0:2], E[4:8] + Cv[2:4], E[8:12] + Cv[4:6], E[12:16] + Cv[6:8]],
              "D": [E[0:3], E[3:6], E[6:9], E[9:16] + Cv],
              "E": [E[0:3], E[3:5] + Cv[0:2], E[5:8], E[8:16] + Cv[2:]],
              "B": [E[0:3], E[3:8] + Cv[0:4], E[8:11], E[11:16] + Cv[4:]],
              "F": [E[0:3] + [], E[3:6] + Cv[0:2], E[6:10] + Cv[2:4], E[10:16] + Cv[4:]]}[PAT]
        run = lambda L: [e(x) for x in L]
        if j == 3 and ti < 15: e(f"s_waitcnt vmcnt({4 * min(2, 14 - ti)})")
        if n + 1 < 64: qk(n + 1, 0)
        run(sq[0])
        if n + 1 < 64: qk(n + 1, 1)
        run(sq[1])
        if n or not first: (pv0 if first else pv)(n + 15 if n == 0 else n - 1, 0)
        run(sq[2])
        if n or not first: (pv0 if first else pv)(n + 15 if n == 0 else n - 1, 1)
        LP = opt.get("ldpos", 3)
        run(sq[3][:LP])
        if j == 0 and ti + 3 < 16:
            for k in range(4):
                r = KV + 16 * ((ti + 3) % 4) + 4 * k
                e(f"buffer_load_dwordx4 v[{r}:{r+3}], v{vSt}, {S(rK if k < 2 else rV)}, s{sRun} offen offset:{2048*(ti%2) + 1024*(k%2)}{LD}")
            if ti % 2:
                e(f"s_add_u32 s{sRun}, s{sRun}, 4096")
                e(f"s_and_b32 s{sRun}, s{sRun}, 0x1ffff")
        if n == 60:
            e(f"v_mov_b32 v{T+4}, {SYNC}")
            a.ds_op(f"ds_read_b32 v{T+5}, v{T+4}", "chk")
        if n == 63:
            lds_check(0, 8, T + 4, T + 5)
            owrite(1)
        run(sq[3][LP:])
    if FULL:
        a.raw(".p2align 6")
        for n in range(64): slot_code(n, True)
    else:
        e(f"s_mov_b32 s{sIt}, 2")
        a.raw(".p2align 6")
        a.label("L_loop")
        start = len(a.lines)
        for n in range(16): slot_code(n, False)
        e(f"s_sub_u32 s{sIt}, s{sIt}, 1")
        e("s_cbranch_scc0 L_loop")
        check_loop(a.lines[start:])
        for n in range(48, 64): slot_code(n, False)
    pv0(63, 0); pv0(63, 1)
    if opt.get("kdefer", 99) < 28: lds_arrive(13, T + 4, T + 5)
    owrite(2)
    padat("loop")
    sp.stamp("loop"); sp.stamp("loop", lvl=4)
    a.vm = []
    owrite(3)
    sp.stamp("wr", lvl=4)
    lds_sync(7, 4, T + 4, T + 5)
    sp.stamp("sy", lvl=4)
    for p in range(3):
        for q in range(4):
            r = O + 16 + 16 * p + 4 * q
            a.ds_op(f"ds_read_b128 v[{r}:{r+3}], v{T} offset:{p*4096 + q*1024}", f"p{p}")
    for p in range(3):
        a.ds_wait(f"p{p}")
        for k in range(16): e(f"v_add_f32 v{O+k}, v{O+k}, v{O+16+16*p+k}")
    sp.stamp("rd", lvl=4)
    a.label("L_norm")
    e(f"v_mov_b32 v{T}, v{O+12}")
    e(f"v_mov_b32 v{T+1}, v{O+12}")
    e(f"v_permlane32_swap_b32 v{T}, v{T+1}")
    e(f"v_rcp_f32 v{T}, v{T+1}")
    e(f"v_mov_b32 v{T+2}, 0")
    for k in range(16): e(f"v_mul_f32 v{O+k}, v{O+k}, v{T}")
    for k in range(8): e(f"v_cvt_pk_bf16_f32 v{P+k}, v{O+2*k}, v{O+2*k+1}")
    e(f"v_cndmask_b32 v{P+6}, 0, v{P+6}, vcc")
    e(f"v_cndmask_b32 v{P+7}, 0, v{P+7}, vcc")
    e(f"buffer_store_dwordx4 v[{P}:{P+3}], v{vSt}, {S(rWS)}, s{sOoff} offen{ST}")
    e(f"buffer_store_dwordx4 v[{P+4}:{P+7}], v{vSt}, {S(rWS)}, s{sOoff} offen offset:1024{ST}")
    for k in range(16): e(f"v_fmac_f32 v{T+2}, 0, v{O+k}")
    e(f"v_mov_b32 v{T+3}, {hexf(2.0**-(BIAS+8))}")
    e(f"v_cmp_u_f32 s[66:67], v{T+2}, v{T+2}")
    e(f"v_cmp_lt_f32 s[74:75], v{T+1}, v{T+3}")
    e(f"s_or_b64 s[66:67], s[66:67], s[74:75]")
    e(f"s_cmp_eq_u64 s[66:67], 0")
    e(f"s_cselect_b32 s{sT1}, 1, s{sFlag}")
    e(f"s_cmp_eq_u32 s{sT1}, 0")
    e(f"s_cbranch_scc1 L_slow")
    sp.stamp("chk", lvl=4)
    e(f"s_waitcnt vmcnt(0)")
    sp.stamp("ost"); sp.stamp("ost", lvl=4)
    e(f"s_lshl2_add_u32 s{sT2}, s{sQB}, s{sW}")
    e(f"s_lshr_b32 s{sT3}, s{sHead}, 2")
    e(f"s_lshl2_add_u32 s{sT2}, s{sT2}, s{sT3}")
    signal(sT2, 28, T + 4, T + 5)
    lds_arrive(9, T + 6, T + 7)
    hdiag(0)
    sp.dump(pWS, sW)
    e("s_endpgm")
    a.label("L_slow")
    a.reset_hist()
    e(f"s_waitcnt vmcnt(0)")
    e(f"s_mov_b32 s{sFlag}, 1")
    e(f"s_mov_b32 s{rK+2}, 0x20000")
    e(f"s_mov_b32 s{rV+2}, 0x20000")
    e(f"v_cndmask_b32 v{Q+6}, 0, v{Q+6}, vcc")
    e(f"v_cndmask_b32 v{Q+7}, 0, v{Q+7}, vcc")
    e(f"v_mov_b32 v{M}, 0xff800000")
    e(f"s_mov_b32 s{sRun}, 0")
    e(f"s_mov_b32 s{sIt}, 64")
    a.label("L_s1")
    start = len(a.lines)
    e(f"buffer_load_dwordx4 v[{KV}:{KV+3}], v{vSt}, {S(rK)}, s{sRun} offen{LD}")
    e(f"buffer_load_dwordx4 v[{KV+4}:{KV+7}], v{vSt}, {S(rK)}, s{sRun} offen offset:1024{LD}")
    e("s_waitcnt vmcnt(0)")
    e(f"v_mfma_f32_32x32x16_bf16 v[{Sx}:{Sx+15}], v[{KV}:{KV+3}], v[{Q}:{Q+3}], 0")
    e(f"v_mfma_f32_32x32x16_bf16 v[{Sx}:{Sx+15}], v[{KV+4}:{KV+7}], v[{Q+4}:{Q+7}], v[{Sx}:{Sx+15}]")
    for k in range(8): e(f"v_max3_f32 v{M}, v{M}, v{Sx+2*k}, v{Sx+2*k+1}")
    e(f"s_add_u32 s{sRun}, s{sRun}, 2048")
    e(f"s_sub_u32 s{sIt}, s{sIt}, 1")
    e(f"s_cmp_lg_u32 s{sIt}, 0")
    e("s_cbranch_scc1 L_s1")
    check_loop(a.lines[start:])
    patch([0], 0.0)
    for r in range(16): e(f"v_mov_b32 v{O+r}, 0")
    e(f"s_mov_b32 s{sRun}, 0")
    e(f"s_mov_b32 s{sIt}, 64")
    a.label("L_s2")
    start = len(a.lines)
    for k in range(4):
        e(f"buffer_load_dwordx4 v[{KV+4*k}:{KV+4*k+3}], v{vSt}, {S(rK if k < 2 else rV)}, s{sRun} offen offset:{1024*(k%2)}{LD}")
    e("s_waitcnt vmcnt(0)")
    qk(0, 0); qk(0, 1)
    for g in range(4): sm(0, g)
    pv(0, 0); pv(0, 1)
    e(f"s_add_u32 s{sRun}, s{sRun}, 2048")
    e(f"s_sub_u32 s{sIt}, s{sIt}, 1")
    e(f"s_cmp_lg_u32 s{sIt}, 0")
    e("s_nop 11")
    e("s_cbranch_scc1 L_s2")
    check_loop(a.lines[start:])
    e("s_branch L_norm")
    a.label("L_gemm")
    a.reset_hist(); a.vm = []; a.lg = []; sp.set(nst)
    ACCG, HR, WFR, T, WO_F, XF, GF = 16, 80, 136, 152, 160, 224, 136
    OF = HR
    GF = 240
    vA0, vA1, vIO, vCt = 4, 5, 6, 7
    sH0, sH1, sI0 = 59, 60, 61
    DP = opt.get("gdepth", 5)
    PACE = opt.get("pace", 4)
    def pace():
        nonlocal PACE
        if PACE and len(a.vm) > PACE:
            e(f"s_waitcnt vmcnt({PACE})"); a.vm = a.vm[-PACE:]
    e(f"s_setprio 2")
    e(f"s_waitcnt vmcnt(0)")
    last_signals(0, 8, sRB, 12, T, T + 1)
    e(f"s_cmp_ge_u32 s{sJ}, 28")
    e(f"s_cbranch_scc1 L_end")
    e(f"s_setprio {opt.get('gprio0', 2)}")
    lds_sync(3, 4, T, T + 1)
    srd(a, rW, pWO, WO_BYTES)
    e(f"s_sub_u32 s{sWq}, s{sW}, 4")
    e(f"s_mul_i32 s{sT1}, s{sJ}, 37")
    e(f"s_lshr_b32 s{sT1}, s{sT1}, 8")
    e(f"s_mul_i32 s{sT2}, s{sT1}, 7")
    e(f"s_sub_u32 s{sCB}, s{sJ}, s{sT2}")
    e(f"s_lshl2_add_u32 s{sTB}, s{sX}, s{sT1}")
    e(f"s_lshl_b32 s{sCB}, s{sCB}, 7")
    e(f"s_mul_i32 s{sLB}, s{sWq}, 12288")
    dma_voff(a, vLane, vD, T, T + 1)
    e(f"v_and_b32 v{T}, 31, v{vLane}")
    e(f"v_mul_u32_u24 v{T}, 896, v{T}")
    e(f"v_lshrrev_b32 v{T+1}, 5, v{vLane}")
    e(f"v_lshl_add_u32 v{vIO}, v{T+1}, 3, v{T}")
    e(f"s_and_b32 s{sT1}, s{sWq}, 1")
    e(f"s_lshl1_add_u32 s{sT3}, s{sTB}, s{sT1}")
    e(f"s_mul_i32 s{sI0}, s{sT3}, {32*896}")
    e(f"s_add_u32 s{sI0}, s{sI0}, s{sCB}")
    e(f"s_lshr_b32 s{sT2}, s{sWq}, 1")
    e(f"s_lshl_b32 s{sT2}, s{sT2}, 6")
    e(f"s_add_u32 s{sI0}, s{sI0}, s{sT2}")
    def issue_w(s):
        st = s % 6
        e(f"s_add_u32 m0, s{sLB}, {st*2048}")
        e(f"s_add_u32 s{sT1}, s{sWo}, {8*896}")
        a.vm_op(f"buffer_load_dwordx4 v{vD}, {S(rB)}, s{sWo} offen lds", f"s{s}")
        e(f"s_add_u32 m0, s{sLB}, {st*2048+1024}")
        e(f"s_add_u32 s{sWo}, s{sWo}, {16*896}")
        a.vm_op(f"buffer_load_dwordx4 v{vD}, {S(rB)}, s{sT1} offen lds", f"s{s}")
    srd(a, rB, pW2, W2_BYTES)
    e(f"s_mul_i32 s{sWo}, s{sWq}, {448*896}")
    e(f"s_add_u32 s{sWo}, s{sWo}, s{sCB}")
    for s in range(6): issue_w(s); pace()
    e(f"s_mul_i32 s{sH0}, s{sT3}, 112")
    e(f"s_xor_b32 s{sT3}, s{sT3}, 1")
    e(f"s_mul_i32 s{sH1}, s{sT3}, 112")
    e(f"s_mul_i32 s{sT1}, s{sWq}, 28")
    e(f"s_add_u32 s{sT1}, s{sT1}, {H_OFF >> 10}")
    e(f"s_add_u32 s{sH0}, s{sH0}, s{sT1}")
    e(f"s_add_u32 s{sH1}, s{sH1}, s{sT1}")
    e(f"s_lshl_b32 s{sH0}, s{sH0}, 10")
    e(f"s_lshl_b32 s{sH1}, s{sH1}, 10")
    e(f"s_xor_b32 s{sT2}, s{sT2}, s{sLB}")
    tr_addr(a, vLane, vA0, vA1, T, T + 1, T + 2, sT2, xor=True)
    def wr(s, d0, off, wait=True):
        if wait: a.vm_wait(f"s{s}")
        for ct in range(2):
            d = d0 + ct * 4
            ad = vA0 if ct == 0 else vA1
            a.ds_op(f"ds_read_b64_tr_b16 v[{d}:{d+1}], v{ad} offset:{off}", f"w{s}")
            a.ds_op(f"ds_read_b64_tr_b16 v[{d+2}:{d+3}], v{ad} offset:{off+1024}", f"w{s}")
    e(f"s_lshr_b32 s{sT1}, s{sTB}, 1")
    e(f"s_lshl_b32 s{sT1}, s{sT1}, 7")
    e(f"s_add_u32 s{sT1}, s{sT1}, {12*128}")
    e(f"v_mov_b32 v{vCt}, s{sT1}")
    def issue_h(s):
        st = s % 6
        off = (s % 4) * 1024
        a.vm_op(f"buffer_load_dwordx4 v[{HR+8*st}:{HR+8*st+3}], v{vSt}, {S(rWS)}, s{sH0} offen offset:{off}{LD}", f"s{s}")
        a.vm_op(f"buffer_load_dwordx4 v[{HR+8*st+4}:{HR+8*st+7}], v{vSt}, {S(rWS)}, s{sH1} offen offset:{off}{LD}", f"s{s}")
        if s % 4 == 3:
            e(f"s_add_u32 s{sH0}, s{sH0}, 4096")
            e(f"s_add_u32 s{sH1}, s{sH1}, 4096")
    e(f"s_cmp_lg_u32 s{sWq}, 0")
    e(f"s_cbranch_scc1 L_hw")
    poll(vCt, T + 1, 16, opt.get("hsleep", 4))
    lds_arrive(8, T, T + 1)
    a.label("L_hw")
    lds_spin(2, 4, T, T + 1, 3)
    lds_spin(8, 1, T, T + 1, 3)
    e(f"s_waitcnt vmcnt(0)")
    sp.stamp("hrdy")
    for s in range(DP): issue_h(s)
    e(f"s_setprio {opt.get('gprio', 0)}")
    def mm(s, w, h):
        for ct in range(2):
            for tt in range(2):
                d = ACCG + (2*ct+tt) * 16
                c = "0" if s == 0 else f"v[{d}:{d+15}]"
                e(f"v_mfma_f32_32x32x16_bf16 v[{d}:{d+15}], v[{w+4*ct}:{w+4*ct+3}], v[{h+4*tt}:{h+4*tt+3}], {c}")
    wr(0, WFR, 0)
    XG = 144
    late = []
    def wo_first():
        e(f"s_mul_i32 s{sH0}, s{sWq}, 15360")
        e(f"s_mul_i32 s{sWo}, s{sWq}, {112*896}")
        e(f"s_add_u32 s{sWo}, s{sWo}, s{sCB}")
    def wo_dma(i):
        if i == 0: wo_first()
        e(f"s_add_u32 m0, s{sH0}, {WO_LDS + i*1024}")
        if i: e(f"s_add_u32 s{sWo}, s{sWo}, {8*896}")
        a.vm_op(f"buffer_load_dwordx4 v{vD}, {S(rW)}, s{sWo} offen lds", "wo")
    XG = XF + 8
    for i in range(15): late.append(lambda i=i: wo_dma(i))
    for q in range(4):
        late.append(lambda q=q: a.vm_op(f"buffer_load_dwordx2 v[{XG+2*q}:{XG+2*q+1}], v{vIO}, {S(rX)}, s{sI0} offen offset:{16*q}", "xg"))
    TOP = opt.get("gtop", 0)
    KD = opt.get("kdefer", 99)
    for s in range(28):
        if s == KD:
            for _ in range(opt.get("lateN", 19)):
                if late: late.pop(0)(); pace()
            lds_spin(13, opt.get("kdn", 4), T, T + 1, 2)
            e(f"s_setprio {opt.get('gprio4', 2)}")
        if TOP and s > 0:
            if s + 1 < 28: a.vm_wait(f"s{s+1}")
            if 6 <= s + DP - 1 < 28: issue_w(s + DP - 1)
            if s + DP - 1 < 28: issue_h(s + DP - 1)
        if s + 1 < 28: wr(s + 1, WFR + ((s + 1) % 2) * 8, ((s + 1) % 6) * 2048)
        a.ds_wait(f"w{s}")
        if not opt.get("x_nogm") or s == 0: mm(s, WFR + (s % 2) * 8, HR + 8 * (s % 6))
        if opt.get("x_nogl") or TOP: continue
        if 6 <= s + DP < 28: issue_w(s + DP)
        if s + DP < 28: issue_h(s + DP)
        else:
            for _ in range(4):
                if late: late.pop(0)()
    while late: late.pop(0)()
    sp.stamp("w2")
    e(f"s_setprio {opt.get('gprio3', 0)}")
    def exchange(k):
        e(f"v_add_u32 v{T}, s{sLB}, v{vSt}")
        for sl in range(1, 4):
            for q in range(4):
                r = ACCG + 16 * sl + 4 * q
                a.ds_op(f"ds_write_b128 v{T}, v[{r}:{r+3}] offset:{(sl-1)*4096 + q*1024}")
            e(f"s_xor_b32 s{sT1}, s{sWq}, {sl}")
            e(f"s_mul_i32 s{sT1}, s{sT1}, 12288")
            e(f"v_add_u32 v{T+2+sl}, s{sT1}, v{vSt}")
        if k == 6: sp.stamp("wr", lvl=4)
        lds_sync(k, 4, T + 1, T + 2)
        if k == 6: sp.stamp("sy", lvl=4)
        for p in range(3):
            for q in range(4):
                r = ACCG + 16 + 16 * p + 4 * q
                a.ds_op(f"ds_read_b128 v[{r}:{r+3}], v{T+3+p} offset:{p*4096 + q*1024}", f"p{p}")
        for p in range(3):
            a.ds_wait(f"p{p}")
            for kk in range(16): e(f"v_add_f32 v{ACCG+kk}, v{ACCG+kk}, v{ACCG+16+16*p+kk}")
    exchange(4)
    U = ACCG + 16
    for k in range(16): e(f"v_mul_f32 v{U+k}, {hexf(-LOG2E)}, v{ACCG+k}")
    for k in range(16): e(f"v_exp_f32 v{U+k}, v{U+k}")
    for k in range(16): e(f"v_add_f32 v{U+k}, 1.0, v{U+k}")
    for k in range(16): e(f"v_rcp_f32 v{U+k}, v{U+k}")
    for k in range(16): e(f"v_mul_f32 v{GF+k}, v{ACCG+k}, v{U+k}")
    e(f"s_mul_i32 s{sT2}, s{sWq}, 15360 - 12288")
    e(f"s_add_u32 s{sT2}, s{sT2}, {WO_LDS}")
    e(f"v_add_u32 v{vA0}, s{sT2}, v{vA0}")
    e(f"v_add_u32 v{vA1}, s{sT2}, v{vA1}")
    a.vm_wait("xg")
    for s in range(8):
        wr(100 + s, WO_F + 8 * s, (28 * (s // 2) + 16 * (s % 2)) * 128, wait=False)
    for k in range(8):
        if k < 7:
            e(f"v_lshlrev_b32 v{XF+2*k}, 16, v{XG+k}")
            e(f"v_and_b32 v{XF+2*k+1}, 0xffff0000, v{XG+k}")
        else:
            e(f"v_lshlrev_b32 v{XF+14}, 16, v{XG+7}")
            e(f"v_and_b32 v{XF+15}, 0xffff0000, v{XG+7}")
    a.ds_wait_all()
    lds_sync(5, 4, T + 1, T + 2)
    srd(a, rW3, pOUT, X_BYTES)
    e(f"s_and_b32 s{sT1}, s{sWq}, 1")
    e(f"s_lshl1_add_u32 s{sT1}, s{sTB}, s{sT1}")
    e(f"s_lshl_b32 s{sH0}, s{sT1}, 15")
    e(f"s_lshl_b32 s{sT1}, s{sWq}, 13")
    e(f"s_add_u32 s{sH0}, s{sH0}, s{sT1}")
    e(f"s_add_u32 s{sH0}, s{sH0}, {O_OFF}")
    e(f"s_xor_b32 s{sH1}, s{sH0}, 32768")
    e(f"v_min_u32 v{T}, 1, v{vLane}")
    e(f"v_lshlrev_b32 v{T}, 2, v{T}")
    e(f"s_lshl3_add_u32 s{sT1}, s{sTB}, s{sWq}")
    e(f"s_add_u32 s{sT1}, s{sT1}, 28")
    e(f"v_add_lshl_u32 v{vCt}, v{T}, s{sT1}, 7")
    e(f"v_lshrrev_b32 v{T}, 5, v{vLane}")
    e(f"v_lshl_add_u32 v{vIO}, v{T}, 3, v{vIO}")
    sp.stamp("grdy")
    lds_spin(9, 4, T, T + 1, 3)
    e(f"s_setprio 2")
    poll(vCt, T + 1, 4, opt.get("osleep", 1))
    sp.stamp("ordy"); sp.stamp("ordy", lvl=4)
    for s in range(8):
        if s == 4:
            e(f"s_add_u32 s{sH0}, s{sH0}, 4096")
            e(f"s_add_u32 s{sH1}, s{sH1}, 4096")
        a.vm_op(f"buffer_load_dwordx4 v[{OF+8*s}:{OF+8*s+3}], v{vSt}, {S(rWS)}, s{sH0} offen offset:{(s%4)*1024}{LD}", f"o{s}")
        a.vm_op(f"buffer_load_dwordx4 v[{OF+8*s+4}:{OF+8*s+7}], v{vSt}, {S(rWS)}, s{sH1} offen offset:{(s%4)*1024}{LD}", f"o{s}")
    sp.stamp("oiss", lvl=4, nowait=True)
    for s in range(8):
        a.vm_wait(f"o{s}")
        if s in (0, 7): sp.stamp("o", lvl=4, nowait=True)
        mm(s, WO_F + 8 * s, OF + 8 * s)
    exchange(6)
    sp.stamp("ex", lvl=4)
    for k in range(16): e(f"v_fma_f32 v{ACCG+k}, v{ACCG+k}, v{GF+k}, v{XF+k}")
    for k in range(8): e(f"v_cvt_pk_bf16_f32 v{U+k}, v{ACCG+2*k}, v{ACCG+2*k+1}")
    for pr in range(2):
        e(f"v_permlane32_swap_b32 v{U+4*pr}, v{U+4*pr+2}")
        e(f"v_permlane32_swap_b32 v{U+4*pr+1}, v{U+4*pr+3}")
    e(f"buffer_store_dwordx4 v[{U}:{U+3}], v{vIO}, {S(rW3)}, s{sI0} offen{opt.get('ost', '')}")
    e(f"buffer_store_dwordx4 v[{U+4}:{U+7}], v{vIO}, {S(rW3)}, s{sI0} offen offset:32{opt.get('ost', '')}")
    hdiag(1)
    if opt.get("padg"):
        e("v_mov_b32 v0, 0")
        e(f"global_load_dword v0, v0, s[{pDBG}:{pDBG+1}] offset:4 sc1")
        e("s_waitcnt vmcnt(0)")
        e("v_readfirstlane_b32 s76, v0")
        e("s_not_b32 s76, s76")
    if opt.get("pad"):
        a.label("L_pad")
        e("s_memrealtime s[80:81]")
        e("s_waitcnt lgkmcnt(0)")
        e("s_sub_u32 s80, s80, s76")
        e(f"s_cmp_lt_u32 s80, {opt['pad']}")
        e("s_cbranch_scc1 L_pad")
    sp.stamp("end"); sp.stamp("end", lvl=4)
    if sp.on == 4: e("s_waitcnt vmcnt(0)")
    sp.stamp("drain", lvl=4)
    sp.dump(pWS, sW)
    a.label("L_end")
    e("s_endpgm")
    return kd(NAME, 256)

if __name__ == "__main__":
    opt = json.loads(sys.argv[2]) if len(sys.argv) > 2 else {}
    a = Asm()
    a.raw("; one workgroup per CU; workgroups hand data over through d_ws (write-through stores + counters)")
    a.raw("; @launch grid=(256,1,1) block=(512,1,1) lds=163840")
    a.raw('.amdgcn_target "amdgcn-amd-amdhsa--gfx950"')
    a.raw(".text")
    k = gen(a, opt)
    a.raw("L_code_end:")
    a.raw(".fill 64, 4, 0xbf800000")
    a.raw("    s_endpgm")
    a.raw('.section .rodata,"a"')
    a.raw(k)
    open(sys.argv[1], "w").write(a.text())
    print("nops inserted:", a.nops, "lines:", len(a.lines))
```

```python
import sys, json
from common import *
from gemm64 import *
BIAS = 32.0
NAME = "recurrent_scan__softmax_full_mha__glu_gated_swiglu__prompt_kernel"

def gen(a, opt):
    BIAS = float(opt.get("bias", 64))
    ST = opt.get("st", " sc1")
    LD = " sc1"
    NPH = opt.get("nph", 2)
    kernel_head(a, NAME)
    e = a.e
    uid = [0]
    def lab(p):
        uid[0] += 1; return f"L_{p}{uid[0]}"
    pX, pWQ, pWO, pW1, pW3, pW2, pOUT, pDBG, pWS = 4, 6, 8, 12, 14, 16, 18, 20, 22
    rX, rW1, rW3, rA, rB, rWS = 24, 28, 32, 36, 40, 44
    S = lambda r: f"s[{r}:{r+3}]"
    sW, sTT, sG, sRB, sCOL, sTTG = 48, 49, 50, 51, 52, 53
    sSO = [[54, 55], [56, 56], [57, 57]]
    sP64, sM0, sCurA, sCurB, sOnes, sLo, sHi, sHoff, sQKoff, sQKstep = 58, 59, 60, 61, 62, 63, 64, 65, 66, 67
    sT1, sT2, sT3, sStat, sPh, sHoff2 = 68, 69, 70, 71, 72, 73
    X0, AA, AB, WF, T0 = 16, 128, 160, 192, 216
    vLane, vSt, vD0, vD1, vD2B = 1, 2, 3, 4, 250
    vTB = [[5, 6], [7, 8], [9, 243]]
    vTW = [10, 11]
    vXR = [12, 13, 14, 15]
    vK, vC1, vSc, vP6, vP7, vFlag, vV3, vV4 = 232, 233, 234, 236, 237, 238, 239, 235
    vXW = [240, 241]; vStat = 242; vNM = 243; vAcc = [244, 245, 246, 247]; vV1, vV2 = 248, 249
    vDum = 251
    RAW = 128
    SCR = 7 * 16384
    SYNC = 163840 - 256
    e("s_cmp_ge_u32 s2, 256")
    e("s_cbranch_scc1 L_end")
    sp = Stamper(a, opt.get("stamp"), 0); sp.allreal = opt.get("rt")
    sp.stamp("rt", True); sp.stamp("start")
    if opt.get("hdiag") or opt.get("pad") or opt.get("padat"): e("s_memrealtime s[76:77]"); e("s_memtime s[78:79]")
    e("s_load_dwordx16 s[4:19], s[0:1], 0")
    e("s_load_dwordx4 s[20:23], s[0:1], 64")
    RL = opt.get("rl", 3)
    sWR, sXa, sXb, sGS = sStat, sOnes, sLo, sHi
    e(f"v_lshrrev_b32 v22, 6, v0")
    e(f"v_and_b32 v{vLane}, 63, v0")
    e(f"v_readfirstlane_b32 s{sW}, v22")
    e(f"s_and_b32 s{sT1}, s2, {(16 >> RL) - 1}")
    e(f"s_bfe_u32 s{sT2}, s2, {hex((RL << 16) | 3)}")
    e(f"s_lshl{RL}_add_u32 s{sRB}, s{sT1}, s{sT2}")
    e(f"s_bfe_u32 s{sT1}, s2, {hex(((RL - 1) << 16) | (4 - RL))}")
    e(f"s_lshr_b32 s{sT2}, s2, {3 + RL}")
    e(f"s_lshl2_add_u32 s{sSO[1][0]}, s{sT1}, s{sT2}")
    if opt.get("mix", 1): e(f"s_lshl2_add_u32 s{sCOL}, s{sT2}, s{sT1}")
    else: e(f"s_mov_b32 s{sCOL}, s{sSO[1][0]}")
    e(f"v_bfe_u32 v22, v0, 3, 3")
    e(f"v_and_b32 v23, 7, v0")
    e(f"s_lshl_b32 s{sT1}, s{sT2}, 2")
    e(f"s_and_b32 s{sWR}, s{sT1}, 4")
    e(f"s_xor_b32 s{sWR}, s{sWR}, s{sW}")
    e(f"s_and_b32 s{sGS}, s{sT1}, 8")
    e(f"s_lshl3_add_u32 s{sT1}, s{sRB}, s{sWR}")
    e(f"s_lshl4_add_u32 s{sT2}, s{sT1}, s{sGS}")
    e(f"s_xor_b32 s{sT1}, s{sT2}, 8")
    e(f"s_mulk_i32 s{sT2}, 896")
    e(f"s_mulk_i32 s{sT1}, 896")
    e(f"v_mul_u32_u24 v24, 896, v22")
    e(f"v_lshl_add_u32 v24, v23, 4, v24")
    e(f"s_mov_b32 s{rX+2}, {hex(X_BYTES)}")
    e(f"s_mov_b32 s{rX+3}, 0x20000")
    e(f"s_cmp_ge_u32 s{sW}, 4")
    e("s_waitcnt lgkmcnt(0)")
    e(f"s_mov_b64 s[{rX}:{rX+1}], s[{pX}:{pX+1}]")
    for p in (pWQ, pW1, pW3)[:opt.get("stouch", 3)]: e(f"s_load_dword s{sQKoff}, s[{p}:{p+1}], 0")
    def xloads(lo, hi, sa, sb):
        for k in range(lo, hi):
            gi, i = divmod(k, 7)
            r = RAW + k * 4
            e(f"buffer_load_dwordx4 v[{r}:{r+3}], v24, {S(rX)}, s{sa if gi == 0 else sb} offen offset:{i*128}{opt.get('xnt', '')}")
    def touch():
        sh = opt.get("touchsh", 21)
        e(f"v_min_u32 v25, {(WS_USED >> sh) - 1}, v{vLane}")
        e(f"v_lshlrev_b32 v25, {sh}, v25")
        e(f"global_load_dword v{vDum+1}, v25, s[{pWS}:{pWS+1}]")
        e(f"v_mov_b32 v25, 0")
        for p in (pW1, pW3, pWQ, pW2, pWO, pOUT, pDBG):
            e(f"global_load_dword v{vDum+1}, v25, s[{p}:{p+1}]")
    XE = opt.get("xe", 10)
    e(f"s_cbranch_scc1 L_x0")
    a.skip_begin(); xloads(0, XE, sT2, sT1)
    e(f"s_branch L_x1")
    a.label("L_x0")
    e(f"s_getpc_b64 s[74:75]")
    a.label("L_pc")
    e(f"s_add_u32 s74, s74, {NAME}-L_pc")
    e(f"s_addc_u32 s75, s75, -1")
    e(f"s_lshr_b32 s3, s2, 3")
    e(f"s_lshl_b32 s3, s3, 7")
    e(f"v_and_b32 v20, 255, v0")
    e(f"v_lshl_add_u32 v20, v20, 12, s3")
    e(f"v_min_u32 v{vDum}, L_code_end-{NAME}-4, v20")
    e(f"global_load_dword v{vDum}, v{vDum}, s[74:75]")
    if opt.get("touch") == 1: touch()
    a.skip_end()
    a.label("L_x1")
    sp.stamp("xiss", lvl=3)
    if opt.get("stouch2", 0):
        e(f"s_lshl_b32 s3, s{sW}, 21")
        e(f"s_load_dword s{sQKoff}, s[{pWS}:{pWS+1}], s3")
        e(f"s_mov_b32 s3, {16 << 20}")
        e(f"s_load_dword s{sQKoff}, s[{pWS}:{pWS+1}], s3")
        for p in (pW2, pWO, pOUT, pDBG): e(f"s_load_dword s{sQKoff}, s[{p}:{p+1}], 0")
    e(f"s_mov_b32 s{sXa}, s{sT2}")
    e(f"s_mov_b32 s{sXb}, s{sT1}")
    def padat(nm):
        if opt.get("padat", [None])[0] != nm: return
        l = lab("pa"); a.label(l)
        e("s_memrealtime s[80:81]")
        e("s_waitcnt lgkmcnt(0)"); a.lg = []
        e("s_sub_u32 s80, s80, s76")
        e(f"s_cmp_lt_u32 s80, {opt['padat'][1]}")
        e(f"s_cbranch_scc1 {l}")
    def srd2(d, base, nbytes):
        e(f"s_mov_b64 s[{d}:{d+1}], s[{base}:{base+1}]")
        e(f"s_mov_b32 s{d+2}, {hex(nbytes)}")
        e(f"s_mov_b32 s{d+3}, 0x20000")
    if opt.get("wsoff"):
        e(f"s_add_u32 s{pWS}, s{pWS}, {opt['wsoff'] << 20}")
        e(f"s_addc_u32 s{pWS+1}, s{pWS+1}, 0")
    srd2(rWS, pWS, WS_USED)
    if opt.get("padg"):
        e("s_cmp_ge_u32 s2, 8")
        e("s_cbranch_scc1 L_pg")
        e(f"s_cmp_lg_u32 s{sW}, 7")
        e("s_cbranch_scc1 L_pg")
        e("s_not_b32 s80, s76")
        e("v_mov_b32 v25, 0"); e("v_mov_b32 v26, s80")
        e(f"global_atomic_umax v25, v26, s[{pDBG}:{pDBG+1}] offset:4 sc1")
        a.label("L_pg")
    e(f"s_and_b32 s{sTT}, s{sW}, 3")
    e(f"s_lshr_b32 s{sG}, s{sW}, 2")
    e(f"s_lshl_b32 s{sM0}, s{sW}, 10")
    e(f"s_lshl_b32 s{sPh}, s{sG}, 1")
    sTc0a, sTc0b = sCurA, sCurB
    e(f"s_cmp_ge_u32 s{sCOL}, 12")
    e(f"s_cbranch_scc1 L_r0f")
    srd2(rA, pWQ, WQ_BYTES)
    e(f"s_mov_b64 s[{rB}:{rB+1}], s[{pWQ}:{pWQ+1}]")
    e(f"s_and_b32 s{sT2}, s{sCOL}, 3")
    e(f"s_mul_i32 s{sSO[0][0]}, s{sCOL}, 224")
    e(f"s_cmp_eq_u32 s{sT2}, 3")
    e(f"s_cselect_b32 s{sT3}, 32, 0")
    e(f"s_sub_u32 s{sSO[0][0]}, s{sSO[0][0]}, s{sT3}")
    e(f"s_add_u32 s{sSO[0][1]}, s{sSO[0][0]}, 128")
    e(f"s_mul_i32 s{sTc0a}, s{sG}, 112")
    e(f"s_add_u32 s{sTc0a}, s{sTc0a}, s{sT3}")
    e(f"s_add_u32 s{sTc0b}, s{sTc0a}, 56")
    e(f"s_movk_i32 s{sP64}, 2688")
    e(f"s_branch L_r0j")
    a.label("L_r0f")
    srd2(rA, pW1, W1_BYTES)
    e(f"s_mov_b64 s[{rB}:{rB+1}], s[{pW3}:{pW3+1}]")
    e(f"s_add_u32 s{sT1}, s{sCOL}, 12")
    e(f"s_lshl_b32 s{sSO[0][0]}, s{sT1}, 7")
    e(f"s_mov_b32 s{sSO[0][1]}, s{sSO[0][0]}")
    e(f"s_lshl_b32 s{sTc0a}, s{sG}, 6")
    e(f"s_add_u32 s{sTc0b}, s{sTc0a}, 128")
    e(f"s_movk_i32 s{sP64}, 3584")
    a.label("L_r0j")
    a.reset_hist()
    e(f"s_mov_b32 s{rB+2}, s{rA+2}")
    e(f"s_mov_b32 s{rB+3}, 0x20000")
    e(f"s_and_b32 s{sT3}, s{sRB}, {(1 << RL) - 1}")
    def wpf0():
        e(f"s_cmp_{'lt' if opt.get('wpf0', 2) == 1 else 'ge'}_u32 s{sW}, 4")
        e(f"s_cbranch_scc1 L_w0")
        a.skip_begin()
        e(f"s_mul_i32 s{sT2}, s{sTT}, 112")
        e(f"s_add_u32 s{sT2}, s{sT2}, s{sT3}")
        e(f"v_min_u32 v30, {(112 >> RL) - 1}, v{vLane}")
        e(f"v_lshl_add_u32 v30, v30, {RL}, s{sT2}")
        e(f"v_mul_lo_u32 v30, v30, s{sP64}")
        e(f"buffer_load_dword v{vDum+1}, v30, {S(rA)}, s{sSO[0][0]} offen{opt.get('pnt', '')}")
        e(f"buffer_load_dword v{vDum+1}, v30, {S(rB)}, s{sSO[0][1]} offen{opt.get('pnt', '')}")
        a.skip_end()
        a.label("L_w0")
    if opt.get("w0pos", 0) == 0: wpf0()
    if opt.get("w0pos", 0) == 2:
        e(f"s_mul_i32 s{sT2}, s{sW}, 56")
        e(f"s_add_u32 s{sT2}, s{sT2}, s{sT3}")
        e(f"s_mul_i32 s{sT2}, s{sT2}, s{sP64}")
        e(f"s_add_u32 s{sHoff}, s{sT2}, s{sSO[0][0]}")
        e(f"s_add_u32 s{sHoff2}, s{sT2}, s{sSO[0][1]}")
        e(f"s_lshl_b32 s{sT2}, s{sP64}, {RL}")
        for i in range(56 >> RL):
            e(f"s_load_dword s{sQKoff}, s[{rA}:{rA+1}], s{sHoff}")
            e(f"s_load_dword s{sQKoff}, s[{rB}:{rB+1}], s{sHoff2}")
            if i + 1 < (56 >> RL):
                e(f"s_add_u32 s{sHoff}, s{sHoff}, s{sT2}")
                e(f"s_add_u32 s{sHoff2}, s{sHoff2}, s{sT2}")
    e(f"v_lshrrev_b32 v25, 2, v{vLane}")
    e(f"v_and_b32 v25, 4, v25")
    e(f"v_xor_b32 v25, v25, v23")
    e(f"v_lshl_add_u32 v26, s{sW}, 3, v22")
    e(f"v_mul_lo_u32 v{vD0}, v26, s{sP64}")
    e(f"v_lshl_add_u32 v{vD0}, v25, 4, v{vD0}")
    e(f"v_mul_u32_u24 v{vD1}, 3584, v26")
    e(f"v_lshl_add_u32 v{vD1}, v25, 4, v{vD1}")
    e(f"s_lshl_b32 s{sT1}, s{sP64}, 5")
    e(f"v_subrev_u32 v32, s{sT1}, v{vD0}")
    vRow, vSwz, vCol = vV1, vV2, vV3
    e(f"v_lshrrev_b32 v26, 5, v{vLane}")
    e(f"v_bfe_u32 v27, v{vLane}, 2, 2")
    e(f"v_lshl_add_u32 v27, v26, 3, v27")
    e(f"v_lshlrev_b32 v{vRow}, 7, v27")
    e(f"v_and_b32 v28, 8, v{vLane}")
    e(f"v_lshlrev_b32 v{vSwz}, 3, v28")
    e(f"v_and_b32 v29, 3, v{vLane}")
    e(f"v_and_b32 v30, 16, v{vLane}")
    e(f"v_lshlrev_b32 v30, 1, v30")
    e(f"v_lshl_add_u32 v{vCol}, v29, 3, v30")
    def traddr(d, stc, t0, t1):
        return [f"v_add_u32 v{t0}, s{stc}, v{vCol}", f"v_and_b32 v{t1}, 127, v{t0}", f"v_xor_b32 v{t1}, v{t1}, v{vSwz}",
                f"v_and_b32 v{t0}, 128, v{t0}", f"v_lshl_add_u32 v{t0}, v{t0}, 6, v{t1}", f"v_add_u32 v{d}, v{t0}, v{vRow}"]
    for t in traddr(vTB[0][0], sTc0a, 30, 31) + traddr(vTB[0][1], sTc0b, 30, 31): e(t)
    e(f"s_and_b32 s{sT1}, s{sWR}, 1")
    e(f"s_lshl4_add_u32 s{sT1}, s{sT1}, s{sGS}")
    e(f"v_add_u32 v30, s{sT1}, v22")
    e(f"v_xor_b32 v30, v30, v23")
    e(f"v_lshlrev_b32 v30, 4, v30")
    e(f"v_lshrrev_b32 v31, 1, v23")
    e(f"v_lshl_add_u32 v30, v31, 12, v30")
    e(f"v_and_b32 v31, 1, v23")
    e(f"v_lshl_add_u32 v30, v31, 9, v30")
    e(f"s_lshr_b32 s{sT1}, s{sWR}, 1")
    e(f"v_lshl_add_u32 v{vXW[0]}, s{sT1}, 10, v30")
    e(f"v_add_u32 v{vXW[1]}, 0x10000, v{vXW[0]}")
    e(f"v_and_b32 v30, 31, v{vLane}")
    e(f"v_xor_b32 v30, v30, v26")
    e(f"v_lshlrev_b32 v30, 4, v30")
    e(f"v_lshl_add_u32 v30, v26, 9, v30")
    e(f"v_lshl_add_u32 v{vXR[0]}, s{sTT}, 10, v30")
    for q in range(1, 4):
        e(f"v_xor_b32 v{vXR[q]}, {q*4096 + q*32}, v{vXR[0]}")
    e(f"s_lshl4_add_u32 s{sT1}, s{sWR}, s{sGS}")
    e(f"v_add_lshl_u32 v{vStat}, v22, s{sT1}, 2")
    e(f"s_mul_i32 s{sT2}, s{sTT}, 112")
    e(f"s_add_u32 s{sT1}, s{sT3}, s{sT2}")
    e(f"v_min_u32 v30, {(112 >> RL) - 1}, v{vLane}")
    e(f"v_lshl_add_u32 v30, v30, {RL}, s{sT1}")
    e(f"v_mul_u32_u24 v{vDum+3}, 3584, v30")
    e(f"s_lshl_b32 s{sP64}, s{sP64}, 6")
    srd2(rW1, pW1, W1_BYTES)
    srd2(rW3, pW3, W1_BYTES)
    e(f"s_lshr_b32 s{sT1}, s{sSO[1][0]}, 1")
    e(f"s_lshl_b32 s{sSO[1][0]}, s{sSO[1][0]}, 7")
    e(f"s_add_u32 s{sT1}, s{sT1}, 16")
    e(f"s_lshl_b32 s{sSO[2][0]}, s{sT1}, 7")
    e(f"s_cmp_lt_u32 s{sW}, 4")
    e(f"s_cbranch_scc1 L_x2")
    a.skip_begin(); xloads(0, XE, sXa, sXb); a.skip_end()
    a.label("L_x2")
    xloads(XE, 14, sXa, sXb)
    if opt.get("w0pos", 0) == 1:
        e(f"s_lshr_b32 s{sP64}, s{sP64}, 6"); wpf0(); e(f"s_lshl_b32 s{sP64}, s{sP64}, 6")
    e(f"s_lshl_b32 s{sStat}, s2, 9")
    e(f"s_add_u32 s{sStat}, s{sStat}, {ST_OFF}")
    e(f"s_mov_b32 s{sOnes}, 0x3f803f80")
    e(f"s_movk_i32 s{sLo}, 0x3f80")
    e(f"s_mov_b32 s{sHi}, 1.0")
    def slot(c):
        if c < 3: return 7 + c
        if c < 10: return c - 3
        if c == 20: return 7
        return slot(c - 9)
    dma_next = [3]
    def dma(c, track=True):
        r, cc = divmod(c, 7)
        if cc == 0:
            e(f"s_mov_b32 s{sCurA}, s{sSO[r][0]}")
            if r == 0: e(f"s_mov_b32 s{sCurB}, s{sSO[r][1]}")
        va, vb = [(vD0, vD0), (vD1, vD1), (vD1, vD2B)][r]
        sa, sb = (rA, rB) if r == 0 else (rW1, rW3)
        inc = f"s{sP64}" if r == 0 else f"{64*3584}"
        e(f"s_add_u32 m0, s{sM0}, {slot(c)*16384}")
        if cc: e(f"s_add_u32 s{sCurA}, s{sCurA}, {inc}")
        e(f"buffer_load_dwordx4 v{va}, {S(sa)}, s{sCurA} offen lds")
        e(f"s_add_u32 m0, s{sM0}, {slot(c)*16384+8192}")
        if cc and r == 0: e(f"s_add_u32 s{sCurB}, s{sCurB}, {inc}")
        e(f"buffer_load_dwordx4 v{vb}, {S(sb)}, s{sCurB if r == 0 else sCurA} offen lds")
        if track: a.vm += [f"c{c}", f"c{c}"]
    for q in range(8): e(f"v_mov_b32 v{T0+8+q}, 0")
    e(f"s_cmp_lt_u32 s{sW}, 4")
    e(f"s_cbranch_scc1 L_lnA")
    e(f"s_waitcnt vmcnt(0)")
    def dma4(c):
        dma(c, track=False)
        e(f"s_add_u32 m0, s{sM0}, {slot(c)*16384 - 4096}")
        e(f"buffer_load_dwordx4 v32, {S(rA)}, s{sCurA} offen lds")
        e(f"s_add_u32 m0, s{sM0}, {slot(c)*16384 + 8192 - 4096}")
        e(f"buffer_load_dwordx4 v32, {S(rB)}, s{sCurB} offen lds")
        a.vm += [f"c{c}"] * 4
    C2 = opt.get("c2pos", 1)
    for c in range(3 if C2 == 0 else 2): dma4(c)
    e(f"s_branch L_lnB")
    a.label("L_lnA")
    e(f"s_lshl1_add_u32 s{sCurA}, s{sP64}, s{sSO[0][0]}")
    e(f"s_lshl1_add_u32 s{sCurB}, s{sP64}, s{sSO[0][1]}")
    e(f"s_waitcnt vmcnt({2 if opt.get('w0pos', 0) == 1 else 0})")
    a.label("L_lnB")
    a.reset_hist()
    padat("x0")
    sp.stamp("x0", nowait=True); sp.stamp("x0", lvl=3, nowait=True)
    def wpf():
        for r in (1, 2):
            e(f"buffer_load_dword v{vDum+1}, v{vDum+3}, {S(rW1)}, s{sSO[r][0]} offen{opt.get('pnt', '')}")
            e(f"buffer_load_dword v{vDum+1}, v{vDum+3}, {S(rW3)}, s{sSO[r][0]} offen{opt.get('pnt', '')}")
        if opt.get("w2pf", 3) == 3:
            e(f"s_lshl2_add_u32 s{sT1}, s2, s{sW}")
            e(f"s_mul_i32 s{sT2}, s{sT1}, {13*128}")
            e(f"s_lshl_b32 s{sT1}, s{sT1}, 9")
            e(f"v_min_u32 v{vDum+2}, 12, v{vLane}")
            e(f"v_lshl_add_u32 v{vDum+2}, v{vDum+2}, 7, s{sT2}")
            e(f"v_min_u32 v{vDum+2}, {W2_BYTES-4}, v{vDum+2}")
            e(f"v_min_u32 v{vDum+3}, 3, v{vLane}")
            e(f"v_lshl_add_u32 v{vDum+3}, v{vDum+3}, 7, s{sT1}")
            e(f"v_min_u32 v{vDum+3}, {WO_BYTES-4}, v{vDum+3}")
            e(f"global_load_dword v{vDum+1}, v{vDum+2}, s[{pW2}:{pW2+1}]{opt.get('p2nt', '')}")
            e(f"global_load_dword v{vDum+1}, v{vDum+3}, s[{pWO}:{pWO+1}]")
    AC = T0 + 8
    def reduce2(d0, d1):
        for g in range(2): e(f"v_add_f32 v{AC+4*g}, v{AC+4*g}, v{AC+4*g+1}")
        for g in range(2): e(f"v_add_f32 v{AC+4*g+2}, v{AC+4*g+2}, v{AC+4*g+3}")
        for g, d in enumerate((d0, d1)): e(f"v_add_f32 v{d}, v{AC+4*g}, v{AC+4*g+2}")
        for m in ("quad_perm:[1,0,3,2]", "quad_perm:[2,3,0,1]", "row_half_mirror"):
            for d in (d0, d1): e(f"v_add_f32_dpp v{d}, v{d}, v{d} {m} row_mask:0xf bank_mask:0xf")
    for i in range(28):
        for g in range(2): e(f"v_dot2c_f32_bf16 v{AC+4*g+i%4}, s{sOnes}, v{RAW+g*28+i}")
    reduce2(vAcc[0], vAcc[1])
    for q in range(8): e(f"v_mov_b32 v{AC+q}, 0")
    for g in range(2): e(f"v_mul_f32 v{vAcc[g]}, {hexf(-1.0/448)}, v{vAcc[g]}")
    if C2 == 1:
        e(f"s_cmp_lt_u32 s{sW}, 4")
        e(f"s_cbranch_scc1 L_c2")
        a.skip_begin(); dma4(2)
        a.skip_end()
        a.label("L_c2")
    sp.stamp("pre", lvl=3, nowait=True)
    pend = None
    for gi in range(2):
        for i in range(7):
            r = RAW + gi * 28 + i * 4
            for k in range(4):
                e(f"v_dot2_f32_bf16 v{T0+2*k}, v{r+k}, s{sLo}, v{vAcc[gi]}")
                e(f"v_dot2_f32_bf16 v{T0+2*k+1}, v{r+k}, s{sHi}, v{vAcc[gi]}")
            if pend: pend()
            for k in range(4):
                e(f"v_cvt_pk_bf16_f32 v{r+k}, v{T0+2*k}, v{T0+2*k+1}")
            def pend(r=r, gi=gi, i=i):
                off = i * 16384
                a.ds_op(f"ds_write_b128 v{vXW[off >> 16]}, v[{r}:{r+3}] offset:{off & 0xffff}", "xw")
                if i == 6 and gi == 0:
                    e(f"v_xor_b32 v{vXW[0]}, 128, v{vXW[0]}")
                    e(f"v_xor_b32 v{vXW[1]}, 128, v{vXW[1]}")
    pend()
    if opt.get("wpf", 1) == 3:
        e(f"s_cmp_ge_u32 s{sW}, 4")
        e(f"s_cbranch_scc1 L_wp3")
        a.skip_begin(); wpf(); a.skip_end()
        a.label("L_wp3")
    if C2 == 2:
        e(f"s_cmp_lt_u32 s{sW}, 4")
        e(f"s_cbranch_scc1 L_c2")
        a.skip_begin(); dma4(2); a.skip_end()
        a.label("L_c2")
    sp.stamp("post", lvl=3, nowait=True)
    for i in range(28):
        for g in range(2): e(f"v_dot2c_f32_bf16 v{AC+4*g+i%4}, v{RAW+g*28+i}, v{RAW+g*28+i}")
    e(f"v_mov_b32 v{T0}, {hexf(1e-5)}")
    e(f"v_mov_b32 v{T0+1}, {hexf(1e-5)}")
    e(f"v_xor_b32 v{T0+2}, 32, v{vStat}")
    reduce2(vAcc[0], vAcc[1])
    for g in range(2): e(f"v_fmac_f32 v{T0+g}, {hexf(1.0/448)}, v{vAcc[g]}")
    e(f"s_cmp_ge_u32 s{sW}, 4")
    e(f"s_cbranch_scc1 L_lnD")
    a.skip_begin()
    e(f"s_lshl3_add_u32 s{sT3}, s2, s{sW}")
    e(f"s_cmp_lg_u32 s{sT3}, 0")
    e(f"s_cbranch_scc1 L_noinit")
    e(f"v_lshlrev_b32 v25, 7, v{vLane}")
    e(f"v_mov_b32 v26, 0")
    e(f"s_mov_b32 s3, {CNT_OFF}")
    for q in range(5):
        if q: e(f"s_add_u32 s3, s3, 8192")
        e(f"buffer_store_dword v26, v25, {S(rWS)}, s3 offen sc1")
    a.label("L_noinit")
    if opt.get("touch") == 2: touch()
    if opt.get("wpf", 1) == 1: wpf()
    e(f"s_branch L_lnE")
    a.skip_end()
    a.label("L_lnD")
    sp.stamp("ln", lvl=3, nowait=True)
    a.vm_wait("c1")
    a.label("L_lnE")
    a.ds_wait_all()
    sp.stamp("ln")
    sp.stamp("c1", lvl=3)
    e("s_barrier")
    padat("b1")
    sp.stamp("b1"); sp.stamp("b1", lvl=3)
    def deferred():
        t0, t1, t2 = AB, AB + 1, AB + 2
        G = lambda *ins: (lambda: [e(x) for x in ins], sum(2 if x.startswith("s_") else 4 for x in ins))
        L = []
        L.append(G(f"v_xor_b32 v{vD2B}, 32, v{vD1}", f"v_lshlrev_b32 v{vSt}, 4, v{vLane}", f"s_mov_b32 vcc_lo, -1", f"s_mov_b32 vcc_hi, 0"))
        L.append(G(f"s_lshl2_add_u32 s{sTTG}, s{sRB}, s{sTT}", f"s_lshl_b32 s{sHoff}, s{sG}, 6"))
        L += [G(x) for x in traddr(vTB[1][0], sHoff, t0, t1)]
        L.append(G(f"v_add_u32 v{vTB[1][1]}, 8192, v{vTB[1][0]}"))
        L.append(G(f"s_bfe_u32 s{sHoff}, s{sSO[1][0]}, 0x10007", f"s_lshl_b32 s{sHoff2}, s{sHoff}, 1", f"s_lshl_b32 s{sHoff}, s{sHoff2}, 5",
                   f"v_xor_b32 v{t0}, s{sHoff}, v{vCol}"))
        L.append(G(f"v_xor_b32 v{t0}, v{t0}, v{vSwz}", f"v_and_b32 v{t1}, 16, v{vLane}"))
        L.append(G(f"v_lshl_add_u32 v{t0}, v{t1}, 9, v{t0}", f"v_add_u32 v{vTB[2][0]}, v{t0}, v{vRow}", f"v_xor_b32 v{vTB[2][1]}, 32, v{vTB[2][0]}"))
        L.append(G(f"s_mul_i32 s{sHoff}, s{sTTG}, 112", f"s_add_u32 s{sHoff2}, s{sHoff2}, s{sHoff}", f"s_lshr_b32 s{sQKoff}, s{sSO[2][0]}, 5",
                   f"s_add_u32 s{sHoff2}, s{sHoff2}, s{sQKoff}", f"s_lshl_b32 s{sHoff2}, s{sHoff2}, 10", f"s_add_u32 s{sHoff2}, s{sHoff2}, {H_OFF}"))
        L.append(G(f"s_lshl1_add_u32 s{sHoff}, s{sG}, s{sHoff}", f"s_lshl2_add_u32 s{sQKstep}, s{sCOL}, s{sHoff}", f"s_lshl_b32 s{sQKstep}, s{sQKstep}, 10",
                   f"s_add_u32 s{sQKstep}, s{sQKstep}, {H_OFF + 12*4096}"))
        L.append(G(f"s_lshr_b32 s{sQKoff}, s{sSO[1][0]}, 5", f"s_add_u32 s{sHoff}, s{sHoff}, s{sQKoff}", f"s_lshl_b32 s{sHoff}, s{sHoff}, 10",
                   f"s_add_u32 s{sHoff}, s{sHoff}, {H_OFF}"))
        L.append(G(f"s_lshl1_add_u32 s{sQKoff}, s{sCOL}, s{sG}", f"s_lshl_b32 s{sQKoff}, s{sQKoff}, 7", f"s_add_u32 s{sQKoff}, s{sQKoff}, s{sTTG}",
                   f"s_lshl_b32 s{sQKoff}, s{sQKoff}, 11", f"s_cmp_ge_u32 s{sCOL}, 12",
                   f"s_cselect_b32 s{sQKoff}, s{sQKstep}, s{sQKoff}"))
        L.append(G(f"s_lshr_b32 s{sQKstep}, s{sCOL}, 2", f"s_cmp_eq_u32 s{sQKstep}, 1", f"s_cselect_b32 s{sOnes}, s{sOnes}, 0", f"s_cselect_b32 s{sHi}, s{sLo}, 0",
                   f"s_cmp_eq_u32 s{sQKstep}, 2", f"s_cselect_b32 s{sOnes}, s{sLo}, s{sOnes}"))
        L.append(G(f"v_mov_b32 v{vP6}, s{sOnes}", f"v_mov_b32 v{vP7}, s{sHi}"))
        L.append(G(f"v_lshrrev_b32 v{t2}, 5, v{vLane}", f"v_bfe_u32 v{t0}, v{vLane}, 2, 2", f"v_lshl_add_u32 v{t0}, v{t2}, 2, v{t0}"))
        L.append(G(f"v_lshrrev_b32 v{t1}, 1, v{t0}", f"v_lshlrev_b32 v{t1}, 3, v{t1}", f"v_xor_b32 v{t1}, v{t1}, v{vCol}"))
        L.append(G(f"s_lshl_b32 s{sQKstep}, s{sW}, 11", f"s_add_u32 s{sQKstep}, s{sQKstep}, {SCR}", f"v_lshl_add_u32 v{t0}, v{t0}, 6, v{t1}",
                   f"v_add_u32 v{vV2}, s{sQKstep}, v{t0}"))
        L.append(G(f"v_xor_b32 v{vV3}, 32, v{vV2}", f"v_bfe_u32 v{t0}, v{vLane}, 1, 3", f"v_xor_b32 v{t0}, v{t0}, v{t2}"))
        L.append(G(f"v_and_b32 v{t1}, 31, v{vLane}", f"v_lshlrev_b32 v{t1}, 6, v{t1}", f"v_lshl_add_u32 v{t0}, v{t0}, 3, v{t1}"))
        L.append(G(f"v_add_u32 v{vV1}, s{sQKstep}, v{t0}"))
        return L
    def hdiag(k):
        if not opt.get("hdiag"): return
        if k == 0: return
        e("s_cmp_ge_u32 s2, 7")
        e("s_cbranch_scc1 L_end")
        e(f"s_cmp_lg_u32 s{sW}, 4")
        e("s_cbranch_scc1 L_end")
        e("s_memrealtime s[80:81]"); e("s_memtime s[82:83]")
        e("s_waitcnt vmcnt(0) lgkmcnt(0)")
        e("s_mov_b64 exec, 1")
        e("s_lshl_b32 s3, s2, 3")
        e("v_mov_b32 v0, s3")
        e("s_sub_u32 s84, s82, s78")
        e("s_sub_u32 s80, s80, s76")
        e("s_and_b32 s76, s76, 0xffff")
        e("s_lshl_b32 s80, s80, 16")
        e("s_or_b32 s76, s76, s80")
        e("v_mov_b32 v2, s76"); e("v_mov_b32 v3, s84")
        e(f"global_store_dword v0, v2, s[{pDBG}:{pDBG+1}] offset:4")
        e(f"global_store_dword v0, v3, s[{pDBG}:{pDBG+1}] offset:8")
    def check_flag(vtmp):
        done = lab("fl")
        e(f"v_readfirstlane_b32 s{sT1}, v{vFlag}")
        e(f"s_cmp_lg_u32 s{sT1}, 0")
        e(f"s_cbranch_scc1 {done}")
        e(f"s_mov_b32 s{sT2}, 0x40000")
        lp = lab("fs"); a.label(lp)
        e(f"v_mov_b32 v{vtmp}, 0")
        e(f"global_load_dword v{vFlag}, v{vtmp}, s[{pDBG}:{pDBG+1}] sc1")
        e(f"s_waitcnt vmcnt(0)")
        e(f"v_readfirstlane_b32 s{sT1}, v{vFlag}")
        e(f"s_sub_u32 s{sT2}, s{sT2}, 1")
        e(f"s_cselect_b32 s{sT1}, 1, s{sT1}")
        e(f"s_cmp_eq_u32 s{sT1}, 0")
        e(f"s_cbranch_scc1 {lp}")
        a.label(done)
    def signal(sIdx, add, va, vb):
        e(f"s_add_u32 s{sT1}, s{sIdx}, {add}")
        e(f"s_lshl_b32 s{sT1}, s{sT1}, 7")
        e(f"s_add_u32 s{sT1}, s{sT1}, {CNT_OFF}")
        e(f"v_mov_b32 v{va}, 0")
        e(f"v_mov_b32 v{vb}, 1")
        e(f"s_mov_b64 exec, 1")
        e(f"buffer_atomic_add v{vb}, v{va}, {S(rWS)}, s{sT1} offen sc1")
        e(f"s_mov_b64 exec, -1")
    def poll(vaddr, vval, target, sleep):
        lp = lab("po"); done = lab("pd")
        e(f"s_mov_b32 s{sT2}, 0x40000")
        e(f"s_mov_b32 s{sT3}, {CNT_OFF}")
        a.label(lp)
        e(f"buffer_load_dword v{vval}, v{vaddr}, {S(rWS)}, s{sT3} offen sc1")
        e(f"s_waitcnt vmcnt(0)")
        e(f"v_cmp_gt_u32 s[74:75], {target}, v{vval}")
        e(f"s_cmp_eq_u64 s[74:75], 0")
        e(f"s_cbranch_scc1 {done}")
        e(f"s_sleep {sleep}")
        e(f"s_sub_u32 s{sT2}, s{sT2}, 1")
        e(f"s_cbranch_scc0 {lp}")
        a.label(done)
        a.vm = []
    def lds_arrive(k, va, vb, rtn=False):
        e(f"v_mov_b32 v{va}, {SYNC + 4*k}")
        e(f"v_mov_b32 v{vb}, 1")
        e(f"s_mov_b64 exec, 1")
        e(f"ds_add_rtn_u32 v{vb}, v{va}, v{vb}" if rtn else f"ds_add_u32 v{va}, v{vb}")
        e(f"s_mov_b64 exec, -1")
    def lds_sync(k, n, va, vb, meanwhile=None):
        a.ds_wait_all()
        lds_arrive(k, va, vb)
        if meanwhile:
            e("s_nop 3"); meanwhile()
        lp = lab("ls")
        e(f"s_mov_b32 s{sT2}, 0x400000")
        a.label(lp)
        e(f"ds_read_b32 v{vb}, v{va}")
        e(f"s_waitcnt lgkmcnt(0)")
        e(f"v_readfirstlane_b32 s{sT1}, v{vb}")
        e(f"s_sub_u32 s{sT2}, s{sT2}, 1")
        e(f"s_cselect_b32 s{sT1}, {n}, s{sT1}")
        e(f"s_cmp_lt_u32 s{sT1}, {n}")
        e(f"s_cbranch_scc1 {lp}")
    def lds_spin(k, n, va, vb, sleep):
        lp = lab("ls"); ok = lab("lk")
        e(f"v_mov_b32 v{va}, {SYNC + 4*k}")
        e(f"s_mov_b32 s{sT2}, 0x100000")
        a.label(lp)
        e(f"ds_read_b32 v{vb}, v{va}")
        e(f"s_waitcnt lgkmcnt(0)")
        e(f"v_readfirstlane_b32 s{sT1}, v{vb}")
        e(f"s_cmp_ge_u32 s{sT1}, {n}")
        e(f"s_cbranch_scc1 {ok}")
        e(f"s_sleep {sleep}")
        e(f"s_sub_u32 s{sT2}, s{sT2}, 1")
        e(f"s_cbranch_scc0 {lp}")
        a.label(ok)
    def lds_check(k, n, va, vb):
        lp = lab("lc"); ok = lab("ld")
        e(f"s_mov_b32 s{sT2}, 0x400000")
        a.label(lp)
        e(f"s_waitcnt lgkmcnt(0)"); a.lg = []
        e(f"v_readfirstlane_b32 s{sT1}, v{vb}")
        e(f"s_cmp_ge_u32 s{sT1}, {n}")
        e(f"s_cbranch_scc1 {ok}")
        a.skip_begin()
        e(f"ds_read_b32 v{vb}, v{va}")
        e(f"s_sub_u32 s{sT2}, s{sT2}, 1")
        e(f"s_cbranch_scc0 {lp}")
        a.skip_end()
        a.label(ok)
    def lds_wait(k, n, va, vb, meanwhile):
        lp = lab("lw"); ok = lab("lo")
        e(f"v_mov_b32 v{va}, {SYNC + 4*k}")
        e(f"ds_read_b32 v{vb}, v{va}")
        meanwhile()
        e(f"s_mov_b32 s{sT2}, 0x400000")
        a.label(lp)
        e(f"s_waitcnt lgkmcnt(0)")
        e(f"v_readfirstlane_b32 s{sT1}, v{vb}")
        e(f"s_cmp_ge_u32 s{sT1}, {n}")
        e(f"s_cbranch_scc1 {ok}")
        e(f"ds_read_b32 v{vb}, v{va}")
        e(f"s_sub_u32 s{sT2}, s{sT2}, 1")
        e(f"s_cbranch_scc0 {lp}")
        a.label(ok)
    def last_signals(k, n, sIdx, add, va, vb):
        lds_arrive(k, va, vb, rtn=True)
        e(f"s_waitcnt lgkmcnt(0)"); a.lg = []
        e(f"v_readfirstlane_b32 s{sT1}, v{vb}")
        sk = lab("ns")
        e(f"s_cmp_lg_u32 s{sT1}, {n-1}")
        e(f"s_cbranch_scc1 {sk}")
        a.skip_begin()
        signal(sIdx, add, va, vb)
        a.skip_end()
        a.label(sk)
    NT = [2, 2, 2]
    ACC = [AA, AB, AA]
    tw_state = [None, None]
    def wreads(G):
        r, s = divmod(G, 28)
        base = slot(G // 4) * 16384 + (s % 4) * 2048
        hi, lo = base >> 16, base & 0xffff
        L = []
        for t in range(NT[r]):
            d = WF + (G % 3) * 8 + t * 4
            def f0(t=t, d=d):
                if tw_state[t] != (r, hi):
                    e(f"v_add_u32 v{vTW[t]}, {hex(hi << 16)}, v{vTB[r][t]}")
                    tw_state[t] = (r, hi)
                a.ds_op(f"ds_read_b64_tr_b16 v[{d}:{d+1}], v{vTW[t]} offset:{lo}", f"w{G}")
            def f1(t=t, d=d):
                a.ds_op(f"ds_read_b64_tr_b16 v[{d+2}:{d+3}], v{vTW[t]} offset:{lo+512}", f"w{G}")
            L += [f0, f1]
        return L
    xr_next = [0]
    def xread(n):
        for _ in range(n):
            s = xr_next[0]
            if s >= 28: return
            xr_next[0] += 1
            if s == 16:
                for q in range(4): e(f"v_add_u32 v{vXR[q]}, 0x10000, v{vXR[q]}")
            off = ((s // 4) * 16384) & 0xffff
            a.ds_op(f"ds_read_b128 v[{X0+4*s}:{X0+4*s+3}], v{vXR[s%4]} offset:{off}", f"x{s}")
    BARS = opt.get("bars", [0, 1, 2, 3, 5, 7, 9, 11, 13, 15])
    PQ = opt.get("pq", 11)
    PZ = opt.get("pz", 13)
    L2P = {int(k): v for k, v in opt.get("l2p", {}).items()}
    VEND = PQ
    window = []; pending = []
    def period_barrier(i):
        for c in window: a.vm.extend([f"c{c}", f"c{c}"])
        assert not pending, pending
        window.clear()
        nxt = min([b for b in BARS if b > i] + [20])
        if nxt <= 2 and f"c{nxt}" in a.vm:
            sk = lab("nb")
            e(f"s_cmp_lt_u32 s{sW}, 4")
            e(f"s_cbranch_scc1 {sk}")
            a.skip_begin(); a.vm_wait(f"c{nxt}"); a.skip_end()
            a.label(sk)
        a.vm_wait(f"c{nxt}")
        assert dma_next[0] > nxt, (i, nxt, dma_next[0])
        if i == 3: a.vm_wait("stat")
        if i == PQ: a.vm_wait("st"); a.vm_wait("fl")
        if i in opt.get("sb", []): sp.stamp("pre", lvl=2, nowait=True)
        if i not in opt.get("x_nb", []): e("s_barrier")
        if i in opt.get("sb", []): sp.stamp("post", lvl=2, nowait=True)
        if i == 3:
            e(f"v_and_b32 v{vK}, 31, v{vLane}")
            e(f"v_lshlrev_b32 v{vK}, 2, v{vK}")
            e(f"s_lshl_b32 s{sT1}, s{sTT}, 7")
            e(f"s_add_u32 s{sT1}, s{sT1}, s{sStat}")
            a.vm_op(f"buffer_load_dword v{vK}, v{vK}, {S(rWS)}, s{sT1} offen sc1", "kld")
        if i == 3:
            e(f"s_lshl3_add_u32 s{sT1}, s2, s{sW}")
            e(f"s_cmp_lg_u32 s{sT1}, 0")
            e(f"s_cbranch_scc1 L_nofl")
            a.skip_begin()
            e(f"v_mov_b32 v{vDum+2}, 0")
            e(f"v_mov_b32 v{vDum+3}, 1")
            e(f"global_store_dword v{vDum+2}, v{vDum+3}, s[{pDBG}:{pDBG+1}] sc1")
            a.skip_end()
            a.label("L_nofl")
        if i == 7:
            e(f"v_mov_b32 v{vFlag}, 0")
            a.vm_op(f"global_load_dword v{vFlag}, v{vFlag}, s[{pDBG}:{pDBG+1}] sc1", "fl")
        if i in L2P:
            for k in L2P[i]:
                sk = lab("pf")
                e(f"s_cmp_lg_u32 s{sW}, {k}")
                e(f"s_cbranch_scc1 {sk}")
                a.skip_begin()
                e(f"s_lshr_b32 s{sT1}, s2, 3")
                nl, ptr, nb = (56, pW2, W2_BYTES) if k < 7 else (98, pWO, WO_BYTES)
                if k < 7:
                    e(f"s_mul_i32 s{sT1}, s{sT1}, {7*56*128}")
                    e(f"s_add_u32 s{sT1}, s{sT1}, {k*56*128}")
                else:
                    e(f"s_mul_i32 s{sT1}, s{sT1}, {98*128}")
                e(f"v_min_u32 v{vDum+2}, {min(nl, 64) - 1 if k < 7 else 48}, v{vLane}")
                e(f"v_lshl_add_u32 v{vDum+2}, v{vDum+2}, 7, s{sT1}")
                e(f"global_load_dword v{vDum+1}, v{vDum+2}, s[{ptr}:{ptr+1}]")
                if k == 7:
                    e(f"v_add_u32 v{vDum+2}, {49*128}, v{vDum+2}")
                    e(f"global_load_dword v{vDum+1}, v{vDum+2}, s[{ptr}:{ptr+1}]")
                a.skip_end()
                a.label(sk)
        if i == PZ:
            e(f"v_lshrrev_b32 v{vDum+2}, 2, v{vSt}")
            e(f"v_add_u32 v{vDum+2}, {SYNC}, v{vDum+2}")
            e(f"v_mov_b32 v{vDum+3}, 0")
            a.ds_op(f"ds_write_b32 v{vDum+2}, v{vDum+3}", "z")
        if i == PQ and sigq[0]:
            sk = lab("q")
            e(f"s_cmp_lg_u32 s{sW}, 0")
            e(f"s_cbranch_scc1 {sk}")
            a.skip_begin()
            check_flag(vDum + 2)
            signal(sCOL, 0, vDum + 2, vDum + 3)
            a.skip_end()
            a.label(sk)
        while dma_next[0] <= 20:
            c = dma_next[0]
            if c < 10:
                sl = slot(c)
                if not all(xr_next[0] > s and a.ds_done(f"x{s}") for s in range(4*sl, 4*sl+4)): break
            elif c == 20:
                if i < 13: break
            elif c - 9 > i - 1: break
            window.append(c); dma_next[0] += 1
        nq = nxt - i
        per = -(-len(window) // nq)
        pending[:] = [window[k*per:(k+1)*per] for k in range(nq)]
    sigq = [False]
    XR = opt.get("xrate", 2)
    def kloop(r, extra, budget, hooks={}):
        extra = list(extra)
        if opt.get("x_noepi"): extra = [x for x in extra if x[1] == 0]
        gap = 0
        for s in range(28):
            G = r * 28 + s
            Gn = G + 2
            rd = wreads(Gn) if Gn < 84 else []
            a.ds_wait(f"w{G}")
            if r == 0: a.ds_wait(f"x{s}")
            ph = Gn % 4
            for t in range(NT[r]):
                d = ACC[r] + 16 * t
                w = WF + (G % 3) * 8 + t * 4
                c = "0" if s == 0 else f"v[{d}:{d+15}]"
                e(f"v_mfma_f32_32x32x16_bf16 v[{d}:{d+15}], v[{w}:{w+3}], v[{X0+4*s}:{X0+4*s+3}], {c}")
                gap += 1
                if t == 0 and Gn < 84 and ph == 0 and (Gn // 4 - 1) in BARS: period_barrier(Gn // 4 - 1)
                n = -(-len(rd) // (NT[r] - t))
                for f in rd[:n]: f()
                rd = rd[n:]
                if r == 0: xread((XR + 1 - t) // 2)
                left = budget
                if t == NT[r] - 1 and pending and pending[0] and ph % 2 == 0:
                    sk = lab("d")
                    e(f"s_cmp_lg_u32 s{sPh}, {ph}")
                    e(f"s_cbranch_scc1 {sk}")
                    a.skip_begin()
                    for c in pending[0]: dma(c, track=False)
                    a.skip_end()
                    a.label(sk)
                    left = opt.get("dmabud", 4)
                if t == NT[r] - 1 and s in hooks: hooks[s](); left = 0
                while extra and gap > 3 and extra[0][1] <= left:
                    f, cst = extra.pop(0); f(); left -= cst
            if ph == 3 and pending: pending.pop(0)
        return extra
    def I(t):
        op = t.split()[0]
        return (lambda: e(t), 8 if op.startswith(TRANS) else (2 if op.startswith("s_") else 4))
    def consts():
        def sel():
            e(f"s_cmp_lt_u32 s{sCOL}, 4")
            e(f"s_cselect_b32 s{sT1}, {hexf(28**-0.5*LOG2E)}, 1.0")
            e(f"v_mul_f32 v{vSc}, s{sT1}, v{vSc}")
        return [(lambda: a.vm_wait("kld"), 0), I(f"v_rsq_f32 v{vSc}, v{vK}"),
                I(f"v_mul_f32 v{vC1}, {hexf(-LOG2E)}, v{vSc}"), (sel, 8)]
    def silu4(Gt, U, t, p):
        L = []
        for k in range(4): L.append(I(f"v_mul_f32 v{t+k}, v{vC1}, v{Gt+k}"))
        for k in range(4):
            L.append(I(f"v_exp_f32 v{t+k}, v{t+k}"))
            L.append(I(f"v_mul_f32 v{Gt+k}, v{Gt+k}, v{U+k}"))
        for k in range(4): L.append(I(f"v_fma_f32 v{t+k}, v{t+k}, v{vK}, v{vK}"))
        for k in range(4): L.append(I(f"v_rcp_f32 v{t+k}, v{t+k}"))
        for k in range(4): L.append(I(f"v_mul_f32 v{Gt+k}, v{Gt+k}, v{t+k}"))
        for k in range(2): L.append(I(f"v_cvt_pk_bf16_f32 v{p+k}, v{Gt+2*k}, v{Gt+2*k+1}"))
        return L
    def store(r, soff, off):
        if opt.get("x_nost"): return (lambda: None, 8)
        return (lambda: a.vm_op(f"buffer_store_dwordx4 v[{r}:{r+3}], v{vSt}, {S(rWS)}, s{soff} offen offset:{off}{ST}", "st"), 8)
    def epiF(acc, soff):
        Gt, U = acc, acc + 16
        L = []
        for q in range(4):
            L += silu4(Gt + 4*q, U + 4*q, T0 + (q % 2) * 4, U + (q // 2) * 8 + (q % 2) * 2)
            if q % 2 == 1: L.append(store(U + (q // 2) * 8, soff, (q // 2) * 1024))
        return L
    def epiQKV(acc, isv):
        L = []
        P = T0 + 8
        for q in range(4):
            for k in range(4): L.append(I(f"v_mul_f32 v{acc+4*q+k}, v{vSc}, v{acc+4*q+k}"))
            for k in range(2): L.append(I(f"v_cvt_pk_bf16_f32 v{P+2*q+k}, v{acc+4*q+2*k}, v{acc+4*q+2*k+1}"))
            if q == 1 and not isv: L.append(store(P, sQKoff, 0))
        L.append(I(f"v_cndmask_b32 v{P+6}, v{vP6}, v{P+6}, vcc"))
        L.append(I(f"v_cndmask_b32 v{P+7}, v{vP7}, v{P+7}, vcc"))
        if not isv: L.append(store(P + 4, sQKoff, 1024))
        else:
            for q in range(4):
                if q: L.append(I(f"v_xor_b32 v{vV4}, {16*q}, v{vV1}"))
                L.append((lambda q=q: a.ds_op(f"ds_write_b64 v{vV4 if q else vV1}, v[{P+2*q}:{P+2*q+1}]", "vw"), 4))
            L += [(lambda: None, 8)] * 2
            L.append((lambda: a.ds_wait("vw"), 0))
            for q in range(4):
                L.append((lambda q=q: a.ds_op(f"ds_read_b64_tr_b16 v[{acc+2*q}:{acc+2*q+1}], v{vV3 if q % 2 else vV2} offset:{512*q}", "vr"), 4))
            L += [(lambda: None, 8)] * 2
            L.append((lambda: a.ds_wait("vr"), 0))
            L.append(store(acc, sQKoff, 0))
            L.append(store(acc + 4, sQKoff, 1024))
        L.append(I(f"s_add_u32 s{sQKoff}, s{sQKoff}, {64*2048}"))
        return L
    B1, B2 = opt.get("b1", 4), opt.get("b2", 12)
    if opt.get("yprio"):
        e(f"s_cmp_lt_u32 s{sW}, 4")
        e(f"s_cbranch_scc1 L_yp")
        e(f"s_setprio 1")
        a.label("L_yp")
    xread(4)
    for f in wreads(0) + wreads(1): f()
    if opt.get("wpf", 1) == 2:
        e(f"s_cmp_ge_u32 s{sW}, 4")
        e(f"s_cbranch_scc1 L_wp")
        a.skip_begin(); wpf(); a.skip_end()
        a.label("L_wp")
    a.vm_op(f"buffer_store_dword v{T0}, v{vStat}, {S(rWS)}, s{sStat} offen", "stat")
    a.vm_op(f"buffer_store_dword v{T0+1}, v{T0+2}, {S(rWS)}, s{sStat} offen", "stat")
    assert not kloop(0, deferred(), 16)
    padat("r0")
    sp.stamp("r0")
    e(f"s_cmp_lt_u32 s{sCOL}, 8")
    e(f"s_cbranch_scc1 L_pqk")
    e(f"s_cmp_lt_u32 s{sCOL}, 12")
    e(f"s_cbranch_scc1 L_pv")
    saved = (list(a.vm), list(a.lg), list(tw_state), dma_next[0], list(a.hist), list(window), [list(p) for p in pending], sp.n)
    ends = []
    for nm, ex in (("f", lambda: epiF(AA, sQKoff)), ("L_pqk", lambda: epiQKV(AA, False) + epiQKV(AA + 16, False)),
                   ("L_pv", lambda: epiQKV(AA, True) + epiQKV(AA + 16, True))):
        if nm != "f": a.label(nm)
        a.vm, a.lg = list(saved[0]), list(saved[1]); tw_state[:] = saved[2]; dma_next[0] = saved[3]; a.hist = list(saved[4])
        window[:] = saved[5]; pending[:] = [list(p) for p in saved[6]]; sp.set(saved[7])
        sigq[0] = nm != "f"
        nst0 = [0]
        exl = consts() + ex()
        if nm != "f":
            exl.append((lambda: nst0.__setitem__(0, 1), 0))
            _pb = period_barrier
        rest = kloop(1, exl, {"f": B1, "L_pqk": opt.get("b1q", 32), "L_pv": opt.get("b1v", 32)}[nm], hooks={(VEND + 1) * 4 - 2 - 28 - 1: (lambda: None) if nm == "f" else (lambda: (_ for _ in ()).throw(AssertionError("qkv epilogue too late")) if not nst0[0] else None)})
        for f, c in rest: f()
        ends.append(([t for t in a.vm if t != "st"], list(a.lg), list(tw_state), dma_next[0], list(window), [list(p) for p in pending]))
        if nm != "L_pv": e("s_branch L_r2")
    assert ends[0][1:] == ends[1][1:] == ends[2][1:], ends
    a.vm = min((x[0] for x in ends), key=len)
    assert all(x[0][len(x[0])-len(a.vm):] == a.vm for x in ends)
    a.label("L_r2")
    e("s_nop 1")
    padat("r1")
    sp.stamp("r1"); sp.stamp("r1", lvl=5, nowait=True)
    K0, Q, KV, O, Sx, P, T = 16, 24, 56, 128, 192, 224, 240
    ATT_LDS, WO_LDS = 49152, 98304
    sX, sJ = 54, 55
    sHead, sQB, sKV, sRun = 62, 63, 64, 58
    sWq, sTB, sCB, sWo, sLB = 62, 63, 64, 58, 66
    vD, vPoll, vStV = vD0, vDum + 4, vD0
    rW = rA
    rK, rV = rA, rB
    NE = 3
    QX = 147456
    def kvload(i):
        for k in range(4):
            r = KV + 16 * i + 4 * k
            a.vm_op(f"buffer_load_dwordx4 v[{r}:{r+3}], v{vSt}, {S(rK if k < 2 else rV)}, s{sRun} offen offset:{1024*(k%2)}{LD}", f"kv{i}")
        e(f"s_add_u32 s{sRun}, s{sRun}, 2048")
        e(f"s_and_b32 s{sRun}, s{sRun}, 0x1ffff")
    e(f"s_and_b32 s{sX}, s2, 7")
    e(f"s_lshr_b32 s{sJ}, s2, 3")
    check_flag(vDum + 2)
    e(f"s_cmp_lt_u32 s{sW}, 4")
    e(f"s_cbranch_scc1 L_att")
    join = (list(a.vm), list(a.lg), list(a.hist), list(window), sp.n)
    e(f"s_setprio {opt.get('r2prio', 2)}")
    rest = kloop(2, epiF(AB, sHoff), B2)
    sp.stamp("r2")
    for f, c in rest: f()
    for t in range(2):
        for q in range(2):
            for f, c in silu4(AA + 16*t + 4*q, AA + 16*t + 8 + 4*q, T0 + 4*q, T0 + 8 + 4*t + 2*q): f()
        store(T0 + 8 + 4*t, sHoff2, 1024*t)[0]()
    e(f"s_branch L_gemm")
    nst = sp.n
    a.label("L_att")
    a.vm, a.lg, a.hist = list(join[0]), list(join[1]), list(join[2]); sp.set(join[4])
    for c in join[3]: a.vm.extend([f"c{c}", f"c{c}"])
    e(f"s_setprio {opt.get('attprio0', 3)}")
    e(f"s_and_b32 s{sT1}, s{sJ}, 1")
    e(f"s_lshl1_add_u32 s{sHead}, s{sX}, s{sT1}")
    e(f"v_min_u32 v{vPoll}, 2, v{vLane}")
    e(f"v_lshlrev_b32 v{vPoll}, 9, v{vPoll}")
    e(f"s_lshr_b32 s{sT1}, s{sHead}, 2")
    e(f"v_lshl_add_u32 v{vPoll}, s{sT1}, 7, v{vPoll}")
    e(f"s_mov_b32 s{sT3}, {CNT_OFF}")
    a.vm_op(f"buffer_load_dword v{vDum+3}, v{vPoll}, {S(rWS)}, s{sT3} offen sc1", "poll")
    def qload():
        e(f"s_lshl_b32 s{sT1}, s{sHead}, 6")
        e(f"s_lshl2_add_u32 s{sT1}, s{sQB}, s{sT1}")
        e(f"s_add_u32 s{sT1}, s{sT1}, s{sW}")
        e(f"s_lshl_b32 s{sT1}, s{sT1}, 11")
        a.vm_op(f"buffer_load_dwordx4 v[{Q}:{Q+3}], v{vSt}, {S(rWS)}, s{sT1} offen{LD}", "q")
        a.vm_op(f"buffer_load_dwordx4 v[{Q+4}:{Q+7}], v{vSt}, {S(rWS)}, s{sT1} offen offset:1024{LD}", "q")
        kvload(0)
    e(f"s_lshr_b32 s{sQB}, s{sJ}, 1")
    e(f"s_lshl_b32 s{sKV}, s{sHead}, 17")
    e(f"s_add_u32 s{sKV}, s{sKV}, {KV_OFF}")
    e(f"s_and_b32 s{sT1}, s{sQB}, {opt.get('rot', 0)}")
    e(f"s_lshl_b32 s{sT1}, s{sT1}, {opt.get('rotsh', 0)}")
    e(f"s_lshl3_add_u32 s{sT1}, s{sW}, s{sT1}")
    e(f"s_lshl1_add_u32 s{sT1}, s{sT1}, 1")
    e(f"s_lshl_b32 s{sRun}, s{sT1}, 11")
    e(f"s_add_u32 s{rK}, s{pWS}, s{sKV}")
    e(f"s_addc_u32 s{rK+1}, s{pWS+1}, 0")
    e(f"s_mov_b32 s{rK+2}, 0x20000")
    e(f"s_mov_b32 s{rK+3}, 0x20000")
    e(f"s_add_u32 s{rV}, s{rK}, {2 << 20}")
    e(f"s_addc_u32 s{rV+1}, s{rK+1}, 0")
    e(f"s_mov_b32 s{rV+2}, 0x20000")
    e(f"s_mov_b32 s{rV+3}, 0x20000")
    ep = epiF(AB, sHoff)
    n1 = opt.get("ep1", 26)
    a.ds_wait_all()
    for f, c in ep[:n1]: f()
    sp.stamp("ep", lvl=5, nowait=True)
    a.vm_wait("poll")
    sp.stamp("pl", lvl=5, nowait=True)
    e(f"v_cmp_gt_u32 s[74:75], 16, v{vDum+3}")
    e(f"s_cmp_eq_u64 s[74:75], 0")
    e(f"s_cbranch_scc1 L_e2ok")
    sv = (list(a.vm), list(a.hist))
    for f, c in ep[n1:]: f()
    e("s_barrier")
    poll(vPoll, vDum + 3, 16, 1)
    qload(); e("s_waitcnt vmcnt(0)"); e(f"s_branch L_e2j")
    a.label("L_e2ok")
    a.vm, a.hist = sv
    sp.stamp("r2"); sp.stamp("ok", lvl=5, nowait=True)
    qload()
    for f, c in ep[n1:]: f()
    sp.stamp("ep2", lvl=5, nowait=True)
    e("s_barrier")
    a.label("L_e2j")
    kvload(1); kvload(2)
    sFlag, sIt, sOoff = 59, 60, 61
    e(f"s_mov_b32 s{sFlag}, 0")
    e(f"s_lshl2_add_u32 s{sOoff}, s{sQB}, s{sW}")
    e(f"s_lshl4_add_u32 s{sOoff}, s{sOoff}, s{sHead}")
    e(f"s_lshl_b32 s{sOoff}, s{sOoff}, 11")
    e(f"s_add_u32 s{sOoff}, s{sOoff}, {O_OFF}")
    for jj in range(4):
        e(f"s_add_u32 s{sT1}, s{sW}, {jj}")
        e(f"s_and_b32 s{sT1}, s{sT1}, 3")
        e(f"s_lshl_b32 s{sT1}, s{sT1}, 11")
        e(f"s_add_u32 s{sT1}, s{sT1}, {QX}")
        e(f"v_add_u32 v{T+2+jj}, s{sT1}, v{vSt}")
    zl = [] if opt.get("full", 0) else [O + r for r in range(64)] + [P + 8 + r for r in range(8)] + [KV + 56 + r for r in range(8)]
    def zero(n):
        for _ in range(n):
            if zl: e(f"v_mov_b32 v{zl.pop(0)}, 0")
    sp.stamp("pre", lvl=5, nowait=True)
    a.vm_wait("kv0")
    sp.stamp("kv0", lvl=5, nowait=True)
    e(f"v_mfma_f32_32x32x16_bf16 v[{Sx}:{Sx+15}], v[{KV}:{KV+3}], v[{Q}:{Q+3}], 0")
    e(f"v_mfma_f32_32x32x16_bf16 v[{Sx}:{Sx+15}], v[{KV+4}:{KV+7}], v[{Q+4}:{Q+7}], v[{Sx}:{Sx+15}]")
    zero(14)
    sp.stamp("qkv")
    def qk(n, half):
        i, j = (n // 4) % 4, n % 4
        d = Sx + 16 * (n % 2); k = KV + 16 * i + 4 * half; q = Q + 8 * j + 4 * half
        c = "0" if half == 0 else f"v[{d}:{d+15}]"
        e(f"v_mfma_f32_32x32x16_bf16 v[{d}:{d+15}], v[{k}:{k+3}], v[{q}:{q+3}], {c}")
    def pv(n, half):
        i, j = (n // 4) % 4, n % 4
        d = O + 16 * j; v = KV + 16 * i + 8 + 4 * half; p = P + 8 * (n % 2) + 4 * half
        e(f"v_mfma_f32_32x32x16_bf16 v[{d}:{d+15}], v[{v}:{v+3}], v[{p}:{p+3}], v[{d}:{d+15}]")
    def sm(n, g):
        s = Sx + 16 * (n % 2) + 4 * g; p = P + 8 * (n % 2) + 2 * g
        for k in range(4): e(f"v_exp_f32 v{s+k}, v{s+k}")
        e(f"v_cvt_pk_bf16_f32 v{p}, v{s}, v{s+1}")
        e(f"v_cvt_pk_bf16_f32 v{p+1}, v{s+2}, v{s+3}")
    M = T + 8
    def patch(jjs, bias):
        U = M + 4
        for jj in jjs: e(f"v_mov_b32 v{U+jj}, v{M+jj}")
        for jj in jjs: e(f"v_permlane32_swap_b32 v{M+jj}, v{U+jj}")
        for jj in jjs: e(f"v_max_f32 v{M+jj}, v{M+jj}, v{U+jj}")
        for jj in jjs: e(f"v_sub_f32 v{M+jj}, {hexf(-bias) if bias else 0}, v{M+jj}")
        for jj in jjs: e(f"v_cvt_pk_bf16_f32 v{U+jj}, v{M+jj}, v{M+jj}")
        for jj in jjs: e(f"v_and_b32 v{U+jj}, 0xffff0000, v{U+jj}")
        for jj in jjs: e(f"v_sub_f32 v{U+jj}, v{M+jj}, v{U+jj}")
        for jj in jjs: e(f"v_cvt_pk_bf16_f32 v{M+jj}, v{M+jj}, v{U+jj}")
        for jj in jjs: e(f"v_cndmask_b32 v{Q+8*jj+6}, v{M+jj}, v{Q+8*jj+6}, vcc")
        for jj in jjs: e(f"v_and_b32 v{M+jj}, 0xffff0000, v{M+jj}")
        for jj in jjs: e(f"v_sub_f32 v{U+jj}, v{U+jj}, v{M+jj}")
        for jj in jjs: e(f"v_cvt_pk_bf16_f32 v{U+jj}, v{U+jj}, 0")
        for jj in jjs: e(f"v_cndmask_b32 v{Q+8*jj+7}, v{U+jj}, v{Q+8*jj+7}, vcc")
    for k in range(4): e(f"v_max3_f32 v{M+4+k}, v{Sx+4*k}, v{Sx+4*k+1}, v{Sx+4*k+2}")
    for k in range(2): e(f"v_max3_f32 v{M+4+2*k}, v{M+4+2*k}, v{M+5+2*k}, v{Sx+8*k+3}")
    e(f"v_max3_f32 v{M}, v{Sx+7}, v{Sx+15}, v{M+4}")
    e(f"v_max_f32 v{M}, v{M}, v{M+6}")
    patch([0], BIAS)
    a.ds_op(f"ds_write_b128 v{T+2}, v[{Q}:{Q+3}]")
    a.ds_op(f"ds_write_b128 v{T+2}, v[{Q+4}:{Q+7}] offset:1024")
    zero(16)
    lds_sync(1, 4, T, T + 1, lambda: (qk(0, 0), qk(0, 1), zero(24)))
    for jj in range(1, 4):
        a.ds_op(f"ds_read_b128 v[{Q+8*jj}:{Q+8*jj+3}], v{T+2+jj}")
        a.ds_op(f"ds_read_b128 v[{Q+8*jj+4}:{Q+8*jj+7}], v{T+2+jj} offset:1024")
    zero(99)
    e("s_waitcnt vmcnt(8)")
    last_signals(0, 8, sRB, 12, T, T + 1)
    lds_arrive(2, T, T + 1)
    e(f"s_setprio {opt.get('attprio', 1)}")
    a.vm = []
    padat("preloop")
    sp.stamp("preloop"); sp.stamp("preloop", lvl=5)
    def pv0(n, half):
        i, j = (n // 4) % 4, n % 4
        d = O + 16 * j; v = KV + 16 * i + 8 + 4 * half; p = P + 8 * (n % 2) + 4 * half
        c = "0" if (n < 4 and half == 0) else f"v[{d}:{d+15}]"
        e(f"v_mfma_f32_32x32x16_bf16 v[{d}:{d+15}], v[{v}:{v+3}], v[{p}:{p+3}], {c}")
    def owrite(jj):
        for q in range(4):
            r = O + 16 * jj + 4 * q
            a.ds_op(f"ds_write_b128 v{T+jj}, v[{r}:{r+3}] offset:{(jj-1)*4096 + q*1024}")
    for jj in range(4):
        e(f"s_add_u32 s{sT1}, s{sW}, {jj}")
        e(f"s_and_b32 s{sT1}, s{sT1}, 3")
        e(f"s_mul_i32 s{sT1}, s{sT1}, 12288")
        e(f"s_add_u32 s{sT1}, s{sT1}, {ATT_LDS}")
        e(f"v_add_u32 v{T+jj}, s{sT1}, v{vSt}")
    FULL = opt.get("full", 0)
    PAT = opt.get("pat", "D")
    def slot_code(n, first):
        ti, j = divmod(n, 4)
        sb = Sx + 16 * (n % 2); pb = P + 8 * (n % 2)
        E = [f"v_exp_f32 v{sb+k}, v{sb+k}" for k in range(16)]
        Cv = [f"v_cvt_pk_bf16_f32 v{pb+k}, v{sb+2*k}, v{sb+2*k+1}" for k in range(8)]
        sq = {"A": [E[0:4] + Cv[0:2], E[4:8] + Cv[2:4], E[8:12] + Cv[4:6], E[12:16] + Cv[6:8]],
              "D": [E[0:3], E[3:6], E[6:9], E[9:16] + Cv],
              "E": [E[0:3], E[3:5] + Cv[0:2], E[5:8], E[8:16] + Cv[2:]],
              "B": [E[0:3], E[3:8] + Cv[0:4], E[8:11], E[11:16] + Cv[4:]],
              "F": [E[0:3] + [], E[3:6] + Cv[0:2], E[6:10] + Cv[2:4], E[10:16] + Cv[4:]]}[PAT]
        run = lambda L: [e(x) for x in L]
        if j == 3 and ti < 15: e(f"s_waitcnt vmcnt({4 * min(2, 14 - ti)})")
        if n + 1 < 64: qk(n + 1, 0)
        run(sq[0])
        if n + 1 < 64: qk(n + 1, 1)
        run(sq[1])
        if n or not first: (pv0 if first else pv)(n + 15 if n == 0 else n - 1, 0)
        run(sq[2])
        if n or not first: (pv0 if first else pv)(n + 15 if n == 0 else n - 1, 1)
        LP = opt.get("ldpos", 3)
        run(sq[3][:LP])
        if j == 0 and ti + 3 < 16:
            for k in range(4):
                r = KV + 16 * ((ti + 3) % 4) + 4 * k
                e(f"buffer_load_dwordx4 v[{r}:{r+3}], v{vSt}, {S(rK if k < 2 else rV)}, s{sRun} offen offset:{2048*(ti%2) + 1024*(k%2)}{LD}")
            if ti % 2:
                e(f"s_add_u32 s{sRun}, s{sRun}, 4096")
                e(f"s_and_b32 s{sRun}, s{sRun}, 0x1ffff")
        if n == 60:
            e(f"v_mov_b32 v{T+4}, {SYNC}")
            a.ds_op(f"ds_read_b32 v{T+5}, v{T+4}", "chk")
        if n == 63:
            lds_check(0, 8, T + 4, T + 5)
            owrite(1)
        run(sq[3][LP:])
    if FULL:
        a.raw(".p2align 6")
        for n in range(64): slot_code(n, True)
    else:
        e(f"s_mov_b32 s{sIt}, 2")
        a.raw(".p2align 6")
        a.label("L_loop")
        start = len(a.lines)
        for n in range(16): slot_code(n, False)
        e(f"s_sub_u32 s{sIt}, s{sIt}, 1")
        e("s_cbranch_scc0 L_loop")
        check_loop(a.lines[start:])
        for n in range(48, 64): slot_code(n, False)
    pv0(63, 0); pv0(63, 1)
    if opt.get("kdefer", 99) < 28: lds_arrive(13, T + 4, T + 5)
    owrite(2)
    padat("loop")
    sp.stamp("loop"); sp.stamp("loop", lvl=4)
    a.vm = []
    owrite(3)
    sp.stamp("wr", lvl=4)
    lds_sync(7, 4, T + 4, T + 5)
    sp.stamp("sy", lvl=4)
    for p in range(3):
        for q in range(4):
            r = O + 16 + 16 * p + 4 * q
            a.ds_op(f"ds_read_b128 v[{r}:{r+3}], v{T} offset:{p*4096 + q*1024}", f"p{p}")
    for p in range(3):
        a.ds_wait(f"p{p}")
        for k in range(16): e(f"v_add_f32 v{O+k}, v{O+k}, v{O+16+16*p+k}")
    sp.stamp("rd", lvl=4)
    a.label("L_norm")
    e(f"v_mov_b32 v{T}, v{O+12}")
    e(f"v_mov_b32 v{T+1}, v{O+12}")
    e(f"v_permlane32_swap_b32 v{T}, v{T+1}")
    e(f"v_rcp_f32 v{T}, v{T+1}")
    e(f"v_mov_b32 v{T+2}, 0")
    for k in range(16): e(f"v_mul_f32 v{O+k}, v{O+k}, v{T}")
    for k in range(8): e(f"v_cvt_pk_bf16_f32 v{P+k}, v{O+2*k}, v{O+2*k+1}")
    e(f"v_cndmask_b32 v{P+6}, 0, v{P+6}, vcc")
    e(f"v_cndmask_b32 v{P+7}, 0, v{P+7}, vcc")
    e(f"buffer_store_dwordx4 v[{P}:{P+3}], v{vSt}, {S(rWS)}, s{sOoff} offen{ST}")
    e(f"buffer_store_dwordx4 v[{P+4}:{P+7}], v{vSt}, {S(rWS)}, s{sOoff} offen offset:1024{ST}")
    for k in range(16): e(f"v_fmac_f32 v{T+2}, 0, v{O+k}")
    e(f"v_mov_b32 v{T+3}, {hexf(2.0**-(BIAS+8))}")
    e(f"v_cmp_u_f32 s[66:67], v{T+2}, v{T+2}")
    e(f"v_cmp_lt_f32 s[74:75], v{T+1}, v{T+3}")
    e(f"s_or_b64 s[66:67], s[66:67], s[74:75]")
    e(f"s_cmp_eq_u64 s[66:67], 0")
    e(f"s_cselect_b32 s{sT1}, 1, s{sFlag}")
    e(f"s_cmp_eq_u32 s{sT1}, 0")
    e(f"s_cbranch_scc1 L_slow")
    sp.stamp("chk", lvl=4)
    e(f"s_waitcnt vmcnt(0)")
    sp.stamp("ost"); sp.stamp("ost", lvl=4); sp.stamp("ost", lvl=7)
    e(f"s_lshl2_add_u32 s{sT2}, s{sQB}, s{sW}")
    e(f"s_lshr_b32 s{sT3}, s{sHead}, 2")
    e(f"s_lshl2_add_u32 s{sT2}, s{sT2}, s{sT3}")
    signal(sT2, 28, T + 4, T + 5)
    lds_arrive(9, T + 6, T + 7)
    hdiag(0)
    sp.dump(pWS, sW)
    e("s_endpgm")
    a.label("L_slow")
    a.reset_hist()
    e(f"s_waitcnt vmcnt(0)")
    e(f"s_mov_b32 s{sFlag}, 1")
    e(f"s_mov_b32 s{rK+2}, 0x20000")
    e(f"s_mov_b32 s{rV+2}, 0x20000")
    e(f"v_cndmask_b32 v{Q+6}, 0, v{Q+6}, vcc")
    e(f"v_cndmask_b32 v{Q+7}, 0, v{Q+7}, vcc")
    e(f"v_mov_b32 v{M}, 0xff800000")
    e(f"s_mov_b32 s{sRun}, 0")
    e(f"s_mov_b32 s{sIt}, 64")
    a.label("L_s1")
    start = len(a.lines)
    e(f"buffer_load_dwordx4 v[{KV}:{KV+3}], v{vSt}, {S(rK)}, s{sRun} offen{LD}")
    e(f"buffer_load_dwordx4 v[{KV+4}:{KV+7}], v{vSt}, {S(rK)}, s{sRun} offen offset:1024{LD}")
    e("s_waitcnt vmcnt(0)")
    e(f"v_mfma_f32_32x32x16_bf16 v[{Sx}:{Sx+15}], v[{KV}:{KV+3}], v[{Q}:{Q+3}], 0")
    e(f"v_mfma_f32_32x32x16_bf16 v[{Sx}:{Sx+15}], v[{KV+4}:{KV+7}], v[{Q+4}:{Q+7}], v[{Sx}:{Sx+15}]")
    for k in range(8): e(f"v_max3_f32 v{M}, v{M}, v{Sx+2*k}, v{Sx+2*k+1}")
    e(f"s_add_u32 s{sRun}, s{sRun}, 2048")
    e(f"s_sub_u32 s{sIt}, s{sIt}, 1")
    e(f"s_cmp_lg_u32 s{sIt}, 0")
    e("s_cbranch_scc1 L_s1")
    check_loop(a.lines[start:])
    patch([0], 0.0)
    for r in range(16): e(f"v_mov_b32 v{O+r}, 0")
    e(f"s_mov_b32 s{sRun}, 0")
    e(f"s_mov_b32 s{sIt}, 64")
    a.label("L_s2")
    start = len(a.lines)
    for k in range(4):
        e(f"buffer_load_dwordx4 v[{KV+4*k}:{KV+4*k+3}], v{vSt}, {S(rK if k < 2 else rV)}, s{sRun} offen offset:{1024*(k%2)}{LD}")
    e("s_waitcnt vmcnt(0)")
    qk(0, 0); qk(0, 1)
    for g in range(4): sm(0, g)
    pv(0, 0); pv(0, 1)
    e(f"s_add_u32 s{sRun}, s{sRun}, 2048")
    e(f"s_sub_u32 s{sIt}, s{sIt}, 1")
    e(f"s_cmp_lg_u32 s{sIt}, 0")
    e("s_nop 11")
    e("s_cbranch_scc1 L_s2")
    check_loop(a.lines[start:])
    e("s_branch L_norm")
    a.label("L_gemm")
    a.reset_hist(); a.vm = []; a.lg = []; sp.set(nst)
    ACCG, HR, WFR, T, WO_F, XF, GF = 16, 80, 136, 152, 160, 224, 136
    OF = HR
    GF = 240
    vA0, vA1, vIO, vCt = 4, 5, 6, 7
    sH0, sH1, sI0 = 59, 60, 61
    DP = opt.get("gdepth", 5)
    PACE = opt.get("pace", 4)
    def pace():
        nonlocal PACE
        if PACE and len(a.vm) > PACE:
            e(f"s_waitcnt vmcnt({PACE})"); a.vm = a.vm[-PACE:]
    e(f"s_setprio {opt.get('gprio0', 2)}")
    e(f"s_cmp_lt_u32 s{sJ}, 28")
    e(f"s_cbranch_scc1 L_gemm2")
    e(f"s_waitcnt vmcnt(0)")
    last_signals(0, 8, sRB, 12, T, T + 1)
    e("s_endpgm")
    a.label("L_gemm2")
    a.vm_mark("hst")
    lds_sync(3, 4, T, T + 1)
    srd(a, rW, pWO, WO_BYTES)
    e(f"s_sub_u32 s{sWq}, s{sW}, 4")
    e(f"s_mul_i32 s{sT1}, s{sJ}, 37")
    e(f"s_lshr_b32 s{sT1}, s{sT1}, 8")
    e(f"s_mul_i32 s{sT2}, s{sT1}, 7")
    e(f"s_sub_u32 s{sCB}, s{sJ}, s{sT2}")
    e(f"s_lshl2_add_u32 s{sTB}, s{sX}, s{sT1}")
    e(f"s_lshl_b32 s{sCB}, s{sCB}, 7")
    e(f"s_mul_i32 s{sLB}, s{sWq}, 12288")
    dma_voff(a, vLane, vD, T, T + 1)
    e(f"v_and_b32 v{T}, 31, v{vLane}")
    e(f"v_mul_u32_u24 v{T}, 896, v{T}")
    e(f"v_lshrrev_b32 v{T+1}, 5, v{vLane}")
    e(f"v_lshl_add_u32 v{vIO}, v{T+1}, 3, v{T}")
    e(f"s_and_b32 s{sT1}, s{sWq}, 1")
    e(f"s_lshl1_add_u32 s{sT3}, s{sTB}, s{sT1}")
    e(f"s_mul_i32 s{sI0}, s{sT3}, {32*896}")
    e(f"s_add_u32 s{sI0}, s{sI0}, s{sCB}")
    e(f"s_lshr_b32 s{sT2}, s{sWq}, 1")
    e(f"s_lshl_b32 s{sT2}, s{sT2}, 6")
    e(f"s_add_u32 s{sI0}, s{sI0}, s{sT2}")
    def issue_w(s):
        st = s % 6
        e(f"s_add_u32 m0, s{sLB}, {st*2048}")
        e(f"s_add_u32 s{sT1}, s{sWo}, {8*896}")
        a.vm_op(f"buffer_load_dwordx4 v{vD}, {S(rB)}, s{sWo} offen lds", f"s{s}")
        e(f"s_add_u32 m0, s{sLB}, {st*2048+1024}")
        e(f"s_add_u32 s{sWo}, s{sWo}, {16*896}")
        a.vm_op(f"buffer_load_dwordx4 v{vD}, {S(rB)}, s{sT1} offen lds", f"s{s}")
    srd(a, rB, pW2, W2_BYTES)
    e(f"s_mul_i32 s{sWo}, s{sWq}, {448*896}")
    e(f"s_add_u32 s{sWo}, s{sWo}, s{sCB}")
    NW0 = opt.get("nw0", 2)
    for s in range(NW0): issue_w(s)
    e(f"s_mul_i32 s{sH0}, s{sT3}, 112")
    e(f"s_xor_b32 s{sT3}, s{sT3}, 1")
    e(f"s_mul_i32 s{sH1}, s{sT3}, 112")
    e(f"s_mul_i32 s{sT1}, s{sWq}, 28")
    e(f"s_add_u32 s{sT1}, s{sT1}, {H_OFF >> 10}")
    e(f"s_add_u32 s{sH0}, s{sH0}, s{sT1}")
    e(f"s_add_u32 s{sH1}, s{sH1}, s{sT1}")
    e(f"s_lshl_b32 s{sH0}, s{sH0}, 10")
    e(f"s_lshl_b32 s{sH1}, s{sH1}, 10")
    e(f"s_xor_b32 s{sT2}, s{sT2}, s{sLB}")
    tr_addr(a, vLane, vA0, vA1, T, T + 1, T + 2, sT2, xor=True)
    def wr(s, d0, off, wait=True):
        if wait: a.vm_wait(f"s{s}")
        for ct in range(2):
            d = d0 + ct * 4
            ad = vA0 if ct == 0 else vA1
            a.ds_op(f"ds_read_b64_tr_b16 v[{d}:{d+1}], v{ad} offset:{off}", f"w{s}")
            a.ds_op(f"ds_read_b64_tr_b16 v[{d+2}:{d+3}], v{ad} offset:{off+1024}", f"w{s}")
    e(f"s_lshr_b32 s{sT1}, s{sTB}, 1")
    e(f"s_lshl_b32 s{sT1}, s{sT1}, 7")
    e(f"s_add_u32 s{sT1}, s{sT1}, {12*128}")
    e(f"v_mov_b32 v{vCt}, s{sT1}")
    def issue_h(s):
        st = s % 6
        off = (s % 4) * 1024
        a.vm_op(f"buffer_load_dwordx4 v[{HR+8*st}:{HR+8*st+3}], v{vSt}, {S(rWS)}, s{sH0} offen offset:{off}{LD}", f"s{s}")
        a.vm_op(f"buffer_load_dwordx4 v[{HR+8*st+4}:{HR+8*st+7}], v{vSt}, {S(rWS)}, s{sH1} offen offset:{off}{LD}", f"s{s}")
        if s % 4 == 3:
            e(f"s_add_u32 s{sH0}, s{sH0}, 4096")
            e(f"s_add_u32 s{sH1}, s{sH1}, 4096")
    a.vm_wait("hst")
    last_signals(0, 8, sRB, 12, T, T + 1)
    for s in range(NW0, 6): issue_w(s); pace()
    e(f"s_cmp_lg_u32 s{sWq}, 0")
    e(f"s_cbranch_scc1 L_hw")
    poll(vCt, T + 1, 16, opt.get("hsleep", 4))
    lds_arrive(8, T, T + 1)
    a.label("L_hw")
    lds_spin(2, 4, T, T + 1, 3)
    lds_spin(8, 1, T, T + 1, 3)
    e(f"s_waitcnt vmcnt(0)")
    sp.stamp("hrdy")
    for s in range(DP): issue_h(s)
    e(f"s_setprio {opt.get('gprio', 0)}")
    def mm(s, w, h):
        for ct in range(2):
            for tt in range(2):
                d = ACCG + (2*ct+tt) * 16
                c = "0" if s == 0 else f"v[{d}:{d+15}]"
                e(f"v_mfma_f32_32x32x16_bf16 v[{d}:{d+15}], v[{w+4*ct}:{w+4*ct+3}], v[{h+4*tt}:{h+4*tt+3}], {c}")
    wr(0, WFR, 0)
    XG = 144
    late = []
    def wo_first():
        e(f"s_mul_i32 s{sH0}, s{sWq}, 15360")
        e(f"s_mul_i32 s{sWo}, s{sWq}, {112*896}")
        e(f"s_add_u32 s{sWo}, s{sWo}, s{sCB}")
    def wo_dma(i):
        if i == 0: wo_first()
        e(f"s_add_u32 m0, s{sH0}, {WO_LDS + i*1024}")
        if i: e(f"s_add_u32 s{sWo}, s{sWo}, {8*896}")
        a.vm_op(f"buffer_load_dwordx4 v{vD}, {S(rW)}, s{sWo} offen lds", "wo")
    XG = XF + 8
    for i in range(15): late.append(lambda i=i: wo_dma(i))
    for q in range(4):
        late.append(lambda q=q: a.vm_op(f"buffer_load_dwordx2 v[{XG+2*q}:{XG+2*q+1}], v{vIO}, {S(rX)}, s{sI0} offen offset:{16*q}", "xg"))
    TOP = opt.get("gtop", 0)
    KD = opt.get("kdefer", 99)
    for s in range(28):
        if s == KD:
            for _ in range(opt.get("lateN", 19)):
                if late: late.pop(0)(); pace()
            lds_spin(13, opt.get("kdn", 4), T, T + 1, 2)
            e(f"s_setprio {opt.get('gprio4', 2)}")
        if s == opt.get("kp2", 99): e(f"s_setprio {opt.get('kp2v', 2)}")
        if TOP and s > 0:
            if s + 1 < 28: a.vm_wait(f"s{s+1}")
            if 6 <= s + DP - 1 < 28: issue_w(s + DP - 1)
            if s + DP - 1 < 28: issue_h(s + DP - 1)
        if s + 1 < 28: wr(s + 1, WFR + ((s + 1) % 2) * 8, ((s + 1) % 6) * 2048)
        a.ds_wait(f"w{s}")
        if not opt.get("x_nogm") or s == 0: mm(s, WFR + (s % 2) * 8, HR + 8 * (s % 6))
        if opt.get("x_nogl") or TOP: continue
        if 6 <= s + DP < 28: issue_w(s + DP)
        if s + DP < 28: issue_h(s + DP)
        else:
            for _ in range(4):
                if late: late.pop(0)()
    while late: late.pop(0)()
    sp.stamp("w2")
    e(f"s_setprio {opt.get('gprio3', 0)}")
    def exchange(k):
        e(f"v_add_u32 v{T}, s{sLB}, v{vSt}")
        for sl in range(1, 4):
            for q in range(4):
                r = ACCG + 16 * sl + 4 * q
                a.ds_op(f"ds_write_b128 v{T}, v[{r}:{r+3}] offset:{(sl-1)*4096 + q*1024}")
            e(f"s_xor_b32 s{sT1}, s{sWq}, {sl}")
            e(f"s_mul_i32 s{sT1}, s{sT1}, 12288")
            e(f"v_add_u32 v{T+2+sl}, s{sT1}, v{vSt}")
        if k == 6: sp.stamp("wr", lvl=4)
        lds_sync(k, 4, T + 1, T + 2)
        if k == 6: sp.stamp("sy", lvl=4)
        for p in range(3):
            for q in range(4):
                r = ACCG + 16 + 16 * p + 4 * q
                a.ds_op(f"ds_read_b128 v[{r}:{r+3}], v{T+3+p} offset:{p*4096 + q*1024}", f"p{p}")
        for p in range(3):
            a.ds_wait(f"p{p}")
            for kk in range(16): e(f"v_add_f32 v{ACCG+kk}, v{ACCG+kk}, v{ACCG+16+16*p+kk}")
    exchange(4)
    U = ACCG + 16
    for k in range(16): e(f"v_mul_f32 v{U+k}, {hexf(-LOG2E)}, v{ACCG+k}")
    for k in range(16): e(f"v_exp_f32 v{U+k}, v{U+k}")
    for k in range(16): e(f"v_add_f32 v{U+k}, 1.0, v{U+k}")
    for k in range(16): e(f"v_rcp_f32 v{U+k}, v{U+k}")
    for k in range(16): e(f"v_mul_f32 v{GF+k}, v{ACCG+k}, v{U+k}")
    e(f"s_mul_i32 s{sT2}, s{sWq}, 15360 - 12288")
    e(f"s_add_u32 s{sT2}, s{sT2}, {WO_LDS}")
    e(f"v_add_u32 v{vA0}, s{sT2}, v{vA0}")
    e(f"v_add_u32 v{vA1}, s{sT2}, v{vA1}")
    a.vm_wait("xg")
    for s in range(8):
        wr(100 + s, WO_F + 8 * s, (28 * (s // 2) + 16 * (s % 2)) * 128, wait=False)
    for k in range(8):
        if k < 7:
            e(f"v_lshlrev_b32 v{XF+2*k}, 16, v{XG+k}")
            e(f"v_and_b32 v{XF+2*k+1}, 0xffff0000, v{XG+k}")
        else:
            e(f"v_lshlrev_b32 v{XF+14}, 16, v{XG+7}")
            e(f"v_and_b32 v{XF+15}, 0xffff0000, v{XG+7}")
    a.ds_wait_all()
    lds_sync(5, 4, T + 1, T + 2)
    srd(a, rW3, pOUT, X_BYTES)
    e(f"s_and_b32 s{sT1}, s{sWq}, 1")
    e(f"s_lshl1_add_u32 s{sT1}, s{sTB}, s{sT1}")
    e(f"s_lshl_b32 s{sH0}, s{sT1}, 15")
    e(f"s_lshl_b32 s{sT1}, s{sWq}, 13")
    e(f"s_add_u32 s{sH0}, s{sH0}, s{sT1}")
    e(f"s_add_u32 s{sH0}, s{sH0}, {O_OFF}")
    e(f"s_xor_b32 s{sH1}, s{sH0}, 32768")
    e(f"v_min_u32 v{T}, 1, v{vLane}")
    e(f"v_lshlrev_b32 v{T}, 2, v{T}")
    e(f"s_lshl3_add_u32 s{sT1}, s{sTB}, s{sWq}")
    e(f"s_add_u32 s{sT1}, s{sT1}, 28")
    e(f"v_add_lshl_u32 v{vCt}, v{T}, s{sT1}, 7")
    e(f"v_lshrrev_b32 v{T}, 5, v{vLane}")
    e(f"v_lshl_add_u32 v{vIO}, v{T}, 3, v{vIO}")
    sp.stamp("grdy")
    lds_spin(9, 4, T, T + 1, 3)
    e(f"s_setprio 2")
    poll(vCt, T + 1, 4, opt.get("osleep", 1))
    sp.stamp("ordy"); sp.stamp("ordy", lvl=4)
    for s in range(8):
        if s == 4:
            e(f"s_add_u32 s{sH0}, s{sH0}, 4096")
            e(f"s_add_u32 s{sH1}, s{sH1}, 4096")
        a.vm_op(f"buffer_load_dwordx4 v[{OF+8*s}:{OF+8*s+3}], v{vSt}, {S(rWS)}, s{sH0} offen offset:{(s%4)*1024}{LD}", f"o{s}")
        a.vm_op(f"buffer_load_dwordx4 v[{OF+8*s+4}:{OF+8*s+7}], v{vSt}, {S(rWS)}, s{sH1} offen offset:{(s%4)*1024}{LD}", f"o{s}")
    sp.stamp("oiss", lvl=4, nowait=True)
    for s in range(8):
        a.vm_wait(f"o{s}")
        if s in (0, 7): sp.stamp("o", lvl=4, nowait=True)
        mm(s, WO_F + 8 * s, OF + 8 * s)
    exchange(6)
    sp.stamp("ex", lvl=4)
    for k in range(16): e(f"v_fma_f32 v{ACCG+k}, v{ACCG+k}, v{GF+k}, v{XF+k}")
    for k in range(8): e(f"v_cvt_pk_bf16_f32 v{U+k}, v{ACCG+2*k}, v{ACCG+2*k+1}")
    for pr in range(2):
        e(f"v_permlane32_swap_b32 v{U+4*pr}, v{U+4*pr+2}")
        e(f"v_permlane32_swap_b32 v{U+4*pr+1}, v{U+4*pr+3}")
    e(f"buffer_store_dwordx4 v[{U}:{U+3}], v{vIO}, {S(rW3)}, s{sI0} offen{opt.get('ost', '')}")
    e(f"buffer_store_dwordx4 v[{U+4}:{U+7}], v{vIO}, {S(rW3)}, s{sI0} offen offset:32{opt.get('ost', '')}")
    hdiag(1)
    if opt.get("padg"):
        e("v_mov_b32 v0, 0")
        e(f"global_load_dword v0, v0, s[{pDBG}:{pDBG+1}] offset:4 sc1")
        e("s_waitcnt vmcnt(0)")
        e("v_readfirstlane_b32 s76, v0")
        e("s_not_b32 s76, s76")
    if opt.get("pad"):
        a.label("L_pad")
        e("s_memrealtime s[80:81]")
        e("s_waitcnt lgkmcnt(0)")
        e("s_sub_u32 s80, s80, s76")
        e(f"s_cmp_lt_u32 s80, {opt['pad']}")
        e("s_cbranch_scc1 L_pad")
    sp.stamp("end"); sp.stamp("end", lvl=4); sp.stamp("end", lvl=7)
    if sp.on == 4: e("s_waitcnt vmcnt(0)")
    sp.stamp("drain", lvl=4)
    sp.dump(pWS, sW)
    a.label("L_end")
    e("s_endpgm")
    return kd(NAME, 256)

if __name__ == "__main__":
    opt = json.loads(sys.argv[2]) if len(sys.argv) > 2 else {}
    a = Asm()
    a.raw("; one workgroup per CU; workgroups hand data over through d_ws (write-through stores + counters)")
    a.raw("; @launch grid=(256,1,1) block=(512,1,1) lds=163840")
    a.raw('.amdgcn_target "amdgcn-amd-amdhsa--gfx950"')
    a.raw(".text")
    k = gen(a, opt)
    a.raw("L_code_end:")
    a.raw(".fill 64, 4, 0xbf800000")
    a.raw("    s_endpgm")
    a.raw('.section .rodata,"a"')
    a.raw(k)
    open(sys.argv[1], "w").write(a.text())
    print("nops inserted:", a.nops, "lines:", len(a.lines))
```

```python
import sys, json
from common import *
from gemm64 import *
BIAS = 32.0
NAME = "recurrent_scan__softmax_full_mha__glu_gated_swiglu__prompt_kernel"

def gen(a, opt):
    BIAS = float(opt.get("bias", 64))
    ST = opt.get("st", " sc1")
    LD = " sc1"
    NPH = opt.get("nph", 2)
    kernel_head(a, NAME)
    e = a.e
    uid = [0]
    def lab(p):
        uid[0] += 1; return f"L_{p}{uid[0]}"
    pX, pWQ, pWO, pW1, pW3, pW2, pOUT, pDBG, pWS = 4, 6, 8, 12, 14, 16, 18, 20, 22
    rX, rW1, rW3, rA, rB, rWS = 24, 28, 32, 36, 40, 44
    S = lambda r: f"s[{r}:{r+3}]"
    sW, sTT, sG, sRB, sCOL, sTTG = 48, 49, 50, 51, 52, 53
    sSO = [[54, 55], [56, 56], [57, 57]]
    sP64, sM0, sCurA, sCurB, sOnes, sLo, sHi, sHoff, sQKoff, sQKstep = 58, 59, 60, 61, 62, 63, 64, 65, 66, 67
    sT1, sT2, sT3, sStat, sPh, sHoff2 = 68, 69, 70, 71, 72, 73
    X0, AA, AB, WF, T0 = 16, 128, 160, 192, 216
    vLane, vSt, vD0, vD1, vD2B = 1, 2, 3, 4, 250
    vTB = [[5, 6], [7, 8], [9, 243]]
    vTW = [10, 11]
    vXR = [12, 13, 14, 15]
    vK, vC1, vSc, vP6, vP7, vFlag, vV3, vV4 = 232, 233, 234, 236, 237, 238, 239, 235
    vXW = [240, 241]; vStat = 242; vNM = 243; vAcc = [244, 245, 246, 247]; vV1, vV2 = 248, 249
    vDum = 251
    RAW = 128
    SCR = 7 * 16384
    SYNC = 163840 - 256
    e("s_cmp_ge_u32 s2, 256")
    e("s_cbranch_scc1 L_end")
    sp = Stamper(a, opt.get("stamp"), 0); sp.allreal = opt.get("rt")
    sp.stamp("rt", True); sp.stamp("start")
    if opt.get("hdiag") or opt.get("pad") or opt.get("padat"): e("s_memrealtime s[76:77]"); e("s_memtime s[78:79]")
    e("s_load_dwordx16 s[4:19], s[0:1], 0")
    e("s_load_dwordx4 s[20:23], s[0:1], 64")
    RL = 3
    sWR, sXa, sXb, sGS = sStat, sOnes, sLo, sHi
    e(f"v_lshrrev_b32 v22, 6, v0")
    e(f"v_and_b32 v{vLane}, 63, v0")
    e(f"v_readfirstlane_b32 s{sW}, v22")
    e(f"s_and_b32 s{sT1}, s2, 1")
    e(f"s_bfe_u32 s{sT2}, s2, 0x30003")
    e(f"s_lshl3_add_u32 s{sRB}, s{sT1}, s{sT2}")
    e(f"s_bfe_u32 s{sT1}, s2, 0x20001")
    e(f"s_lshr_b32 s{sT2}, s2, 6")
    e(f"s_lshl2_add_u32 s{sCOL}, s{sT1}, s{sT2}")
    e(f"v_bfe_u32 v22, v0, 3, 3")
    e(f"v_and_b32 v23, 7, v0")
    e(f"s_lshl_b32 s{sT1}, s{sT2}, 2")
    e(f"s_and_b32 s{sWR}, s{sT1}, 4")
    e(f"s_xor_b32 s{sWR}, s{sWR}, s{sW}")
    e(f"s_and_b32 s{sGS}, s{sT1}, 8")
    e(f"s_lshl3_add_u32 s{sT1}, s{sRB}, s{sWR}")
    e(f"s_lshl4_add_u32 s{sT2}, s{sT1}, s{sGS}")
    e(f"s_xor_b32 s{sT1}, s{sT2}, 8")
    e(f"s_mulk_i32 s{sT2}, 896")
    e(f"s_mulk_i32 s{sT1}, 896")
    e(f"v_mul_u32_u24 v24, 896, v22")
    e(f"v_lshl_add_u32 v24, v23, 4, v24")
    e(f"s_mov_b32 s{rX+2}, {hex(X_BYTES)}")
    e(f"s_mov_b32 s{rX+3}, 0x20000")
    e(f"s_cmp_ge_u32 s{sW}, 4")
    e("s_waitcnt lgkmcnt(0)")
    e(f"s_mov_b64 s[{rX}:{rX+1}], s[{pX}:{pX+1}]")
    def xloads(lo, hi, sa, sb):
        for k in range(lo, hi):
            gi, i = divmod(k, 7)
            r = RAW + k * 4
            e(f"buffer_load_dwordx4 v[{r}:{r+3}], v24, {S(rX)}, s{sa if gi == 0 else sb} offen offset:{i*128}{opt.get('xnt', '')}")
    def touch():
        sh = opt.get("touchsh", 21)
        e(f"v_min_u32 v25, {(WS_USED >> sh) - 1}, v{vLane}")
        e(f"v_lshlrev_b32 v25, {sh}, v25")
        e(f"global_load_dword v{vDum+1}, v25, s[{pWS}:{pWS+1}]")
        e(f"v_mov_b32 v25, 0")
        for p in (pW1, pW3, pWQ, pW2, pWO, pOUT, pDBG):
            e(f"global_load_dword v{vDum+1}, v25, s[{p}:{p+1}]")
    XE = opt.get("xe", 10)
    e(f"s_cbranch_scc1 L_x0")
    a.skip_begin(); xloads(0, XE, sT2, sT1)
    e(f"s_branch L_x1")
    a.label("L_x0")
    e(f"s_getpc_b64 s[74:75]")
    a.label("L_pc")
    e(f"s_add_u32 s74, s74, {NAME}-L_pc")
    e(f"s_addc_u32 s75, s75, -1")
    e(f"s_lshr_b32 s3, s2, 3")
    e(f"s_lshl_b32 s3, s3, 7")
    e(f"v_and_b32 v20, 255, v0")
    e(f"v_lshl_add_u32 v20, v20, 12, s3")
    e(f"v_min_u32 v{vDum}, L_code_end-{NAME}-4, v20")
    e(f"global_load_dword v{vDum}, v{vDum}, s[74:75]")
    if opt.get("touch") == 1: touch()
    a.skip_end()
    a.label("L_x1")
    sp.stamp("xiss", lvl=3)
    e(f"s_mov_b32 s{sXa}, s{sT2}")
    e(f"s_mov_b32 s{sXb}, s{sT1}")
    def padat(nm):
        if opt.get("padat", [None])[0] != nm: return
        l = lab("pa"); a.label(l)
        e("s_memrealtime s[80:81]")
        e("s_waitcnt lgkmcnt(0)"); a.lg = []
        e("s_sub_u32 s80, s80, s76")
        e(f"s_cmp_lt_u32 s80, {opt['padat'][1]}")
        e(f"s_cbranch_scc1 {l}")
    def srd2(d, base, nbytes):
        e(f"s_mov_b64 s[{d}:{d+1}], s[{base}:{base+1}]")
        e(f"s_mov_b32 s{d+2}, {hex(nbytes)}")
        e(f"s_mov_b32 s{d+3}, 0x20000")
    if opt.get("wsoff"):
        e(f"s_add_u32 s{pWS}, s{pWS}, {opt['wsoff'] << 20}")
        e(f"s_addc_u32 s{pWS+1}, s{pWS+1}, 0")
    srd2(rWS, pWS, WS_USED)
    if opt.get("padg"):
        e("s_cmp_ge_u32 s2, 8")
        e("s_cbranch_scc1 L_pg")
        e(f"s_cmp_lg_u32 s{sW}, 7")
        e("s_cbranch_scc1 L_pg")
        e("s_not_b32 s80, s76")
        e("v_mov_b32 v25, 0"); e("v_mov_b32 v26, s80")
        e(f"global_atomic_umax v25, v26, s[{pDBG}:{pDBG+1}] offset:4 sc1")
        a.label("L_pg")
    e(f"s_and_b32 s{sTT}, s{sW}, 3")
    e(f"s_lshr_b32 s{sG}, s{sW}, 2")
    e(f"s_lshl_b32 s{sM0}, s{sW}, 10")
    e(f"s_lshl_b32 s{sPh}, s{sG}, 1")
    sTc0a, sTc0b = sCurA, sCurB
    e(f"s_cmp_ge_u32 s{sCOL}, 12")
    e(f"s_cbranch_scc1 L_r0f")
    srd2(rA, pWQ, WQ_BYTES)
    e(f"s_mov_b64 s[{rB}:{rB+1}], s[{pWQ}:{pWQ+1}]")
    e(f"s_and_b32 s{sT2}, s{sCOL}, 3")
    e(f"s_mul_i32 s{sSO[0][0]}, s{sCOL}, 224")
    e(f"s_cmp_eq_u32 s{sT2}, 3")
    e(f"s_cselect_b32 s{sT3}, 32, 0")
    e(f"s_sub_u32 s{sSO[0][0]}, s{sSO[0][0]}, s{sT3}")
    e(f"s_add_u32 s{sSO[0][1]}, s{sSO[0][0]}, 128")
    e(f"s_mul_i32 s{sTc0a}, s{sG}, 112")
    e(f"s_add_u32 s{sTc0a}, s{sTc0a}, s{sT3}")
    e(f"s_add_u32 s{sTc0b}, s{sTc0a}, 56")
    e(f"s_movk_i32 s{sP64}, 2688")
    e(f"s_branch L_r0j")
    a.label("L_r0f")
    srd2(rA, pW1, W1_BYTES)
    e(f"s_mov_b64 s[{rB}:{rB+1}], s[{pW3}:{pW3+1}]")
    e(f"s_add_u32 s{sT1}, s{sCOL}, 12")
    e(f"s_lshl_b32 s{sSO[0][0]}, s{sT1}, 7")
    e(f"s_mov_b32 s{sSO[0][1]}, s{sSO[0][0]}")
    e(f"s_lshl_b32 s{sTc0a}, s{sG}, 6")
    e(f"s_add_u32 s{sTc0b}, s{sTc0a}, 128")
    e(f"s_movk_i32 s{sP64}, 3584")
    a.label("L_r0j")
    a.reset_hist()
    e(f"s_mov_b32 s{rB+2}, s{rA+2}")
    e(f"s_mov_b32 s{rB+3}, 0x20000")
    e(f"s_and_b32 s{sT3}, s{sRB}, 7")
    if opt.get("wpf0", 1):
        e(f"s_cmp_{'lt' if opt.get('wpf0', 2) == 1 else 'ge'}_u32 s{sW}, 4")
        e(f"s_cbranch_scc1 L_w0")
        a.skip_begin()
        W0R = opt.get("w0r", 14)
        e(f"s_mul_i32 s{sT2}, s{sTT}, {8*W0R}")
        e(f"s_add_u32 s{sT2}, s{sT2}, s{sT3}")
        e(f"v_min_u32 v30, {W0R-1}, v{vLane}")
        e(f"v_lshl_add_u32 v30, v30, 3, s{sT2}")
        e(f"v_mul_lo_u32 v30, v30, s{sP64}")
        e(f"buffer_load_dword v{vDum+1}, v30, {S(rA)}, s{sSO[0][0]} offen{opt.get('pnt', '')}")
        e(f"buffer_load_dword v{vDum+1}, v30, {S(rB)}, s{sSO[0][1]} offen{opt.get('pnt', '')}")
        a.skip_end()
        a.label("L_w0")
    e(f"v_lshrrev_b32 v25, 2, v{vLane}")
    e(f"v_and_b32 v25, 4, v25")
    e(f"v_xor_b32 v25, v25, v23")
    e(f"v_lshl_add_u32 v26, s{sW}, 3, v22")
    e(f"v_mul_lo_u32 v{vD0}, v26, s{sP64}")
    e(f"v_lshl_add_u32 v{vD0}, v25, 4, v{vD0}")
    e(f"v_mul_u32_u24 v{vD1}, 3584, v26")
    e(f"v_lshl_add_u32 v{vD1}, v25, 4, v{vD1}")
    e(f"s_lshl_b32 s{sT1}, s{sP64}, 5")
    e(f"v_subrev_u32 v32, s{sT1}, v{vD0}")
    vRow, vSwz, vCol = vV1, vV2, vV3
    e(f"v_lshrrev_b32 v26, 5, v{vLane}")
    e(f"v_bfe_u32 v27, v{vLane}, 2, 2")
    e(f"v_lshl_add_u32 v27, v26, 3, v27")
    e(f"v_lshlrev_b32 v{vRow}, 7, v27")
    e(f"v_and_b32 v28, 8, v{vLane}")
    e(f"v_lshlrev_b32 v{vSwz}, 3, v28")
    e(f"v_and_b32 v29, 3, v{vLane}")
    e(f"v_and_b32 v30, 16, v{vLane}")
    e(f"v_lshlrev_b32 v30, 1, v30")
    e(f"v_lshl_add_u32 v{vCol}, v29, 3, v30")
    def traddr(d, stc, t0, t1):
        return [f"v_add_u32 v{t0}, s{stc}, v{vCol}", f"v_and_b32 v{t1}, 127, v{t0}", f"v_xor_b32 v{t1}, v{t1}, v{vSwz}",
                f"v_and_b32 v{t0}, 128, v{t0}", f"v_lshl_add_u32 v{t0}, v{t0}, 6, v{t1}", f"v_add_u32 v{d}, v{t0}, v{vRow}"]
    for t in traddr(vTB[0][0], sTc0a, 30, 31) + traddr(vTB[0][1], sTc0b, 30, 31): e(t)
    e(f"s_and_b32 s{sT1}, s{sWR}, 1")
    e(f"s_lshl4_add_u32 s{sT1}, s{sT1}, s{sGS}")
    e(f"v_add_u32 v30, s{sT1}, v22")
    e(f"v_xor_b32 v30, v30, v23")
    e(f"v_lshlrev_b32 v30, 4, v30")
    e(f"v_lshrrev_b32 v31, 1, v23")
    e(f"v_lshl_add_u32 v30, v31, 12, v30")
    e(f"v_and_b32 v31, 1, v23")
    e(f"v_lshl_add_u32 v30, v31, 9, v30")
    e(f"s_lshr_b32 s{sT1}, s{sWR}, 1")
    e(f"v_lshl_add_u32 v{vXW[0]}, s{sT1}, 10, v30")
    e(f"v_add_u32 v{vXW[1]}, 0x10000, v{vXW[0]}")
    e(f"v_and_b32 v30, 31, v{vLane}")
    e(f"v_xor_b32 v30, v30, v26")
    e(f"v_lshlrev_b32 v30, 4, v30")
    e(f"v_lshl_add_u32 v30, v26, 9, v30")
    e(f"v_lshl_add_u32 v{vXR[0]}, s{sTT}, 10, v30")
    for q in range(1, 4):
        e(f"v_xor_b32 v{vXR[q]}, {q*4096 + q*32}, v{vXR[0]}")
    e(f"s_lshl4_add_u32 s{sT1}, s{sWR}, s{sGS}")
    e(f"v_add_lshl_u32 v{vStat}, v22, s{sT1}, 2")
    e(f"s_mul_i32 s{sT2}, s{sTT}, 112")
    e(f"s_add_u32 s{sT1}, s{sT3}, s{sT2}")
    e(f"v_min_u32 v30, 13, v{vLane}")
    e(f"v_lshl_add_u32 v30, v30, 3, s{sT1}")
    e(f"v_mul_u32_u24 v{vDum+3}, 3584, v30")
    e(f"s_lshl_b32 s{sT2}, s{sTT}, 6")
    e(f"s_add_u32 s{sT1}, s{sT3}, s{sT2}")
    e(f"s_add_u32 s{sT1}, s{sT1}, 192")
    e(f"v_min_u32 v31, 7, v{vLane}")
    e(f"v_lshl_add_u32 v31, v31, 3, s{sT1}")
    e(f"v_mul_lo_u32 v{vDum+2}, v31, s{sP64}")
    e(f"s_lshl_b32 s{sP64}, s{sP64}, 6")
    srd2(rW1, pW1, W1_BYTES)
    srd2(rW3, pW3, W1_BYTES)
    e(f"s_lshl_b32 s{sSO[1][0]}, s{sCOL}, 7")
    e(f"s_lshr_b32 s{sT1}, s{sCOL}, 1")
    e(f"s_add_u32 s{sT1}, s{sT1}, 16")
    e(f"s_lshl_b32 s{sSO[2][0]}, s{sT1}, 7")
    e(f"s_cmp_lt_u32 s{sW}, 4")
    e(f"s_cbranch_scc1 L_x2")
    a.skip_begin(); xloads(0, XE, sXa, sXb); a.skip_end()
    a.label("L_x2")
    xloads(XE, 14, sXa, sXb)
    e(f"s_lshl_b32 s{sStat}, s2, 9")
    e(f"s_add_u32 s{sStat}, s{sStat}, {ST_OFF}")
    e(f"s_mov_b32 s{sOnes}, 0x3f803f80")
    e(f"s_movk_i32 s{sLo}, 0x3f80")
    e(f"s_mov_b32 s{sHi}, 1.0")
    def slot(c):
        if c < 3: return 7 + c
        if c < 10: return c - 3
        if c == 20: return 7
        return slot(c - 9)
    dma_next = [3]
    def dma(c, track=True):
        r, cc = divmod(c, 7)
        if cc == 0:
            e(f"s_mov_b32 s{sCurA}, s{sSO[r][0]}")
            if r == 0: e(f"s_mov_b32 s{sCurB}, s{sSO[r][1]}")
        va, vb = [(vD0, vD0), (vD1, vD1), (vD1, vD2B)][r]
        sa, sb = (rA, rB) if r == 0 else (rW1, rW3)
        inc = f"s{sP64}" if r == 0 else f"{64*3584}"
        e(f"s_add_u32 m0, s{sM0}, {slot(c)*16384}")
        if cc: e(f"s_add_u32 s{sCurA}, s{sCurA}, {inc}")
        e(f"buffer_load_dwordx4 v{va}, {S(sa)}, s{sCurA} offen lds")
        e(f"s_add_u32 m0, s{sM0}, {slot(c)*16384+8192}")
        if cc and r == 0: e(f"s_add_u32 s{sCurB}, s{sCurB}, {inc}")
        e(f"buffer_load_dwordx4 v{vb}, {S(sb)}, s{sCurB if r == 0 else sCurA} offen lds")
        if track: a.vm += [f"c{c}", f"c{c}"]
    for q in range(8): e(f"v_mov_b32 v{T0+8+q}, 0")
    e(f"s_cmp_lt_u32 s{sW}, 4")
    e(f"s_cbranch_scc1 L_lnA")
    e(f"s_waitcnt vmcnt(0)")
    def dma4(c):
        dma(c, track=False)
        e(f"s_add_u32 m0, s{sM0}, {slot(c)*16384 - 4096}")
        e(f"buffer_load_dwordx4 v32, {S(rA)}, s{sCurA} offen lds")
        e(f"s_add_u32 m0, s{sM0}, {slot(c)*16384 + 8192 - 4096}")
        e(f"buffer_load_dwordx4 v32, {S(rB)}, s{sCurB} offen lds")
        a.vm += [f"c{c}"] * 4
    C2 = opt.get("c2pos", 1)
    for c in range(3 if C2 == 0 else 2): dma4(c)
    e(f"s_branch L_lnB")
    a.label("L_lnA")
    e(f"s_lshl1_add_u32 s{sCurA}, s{sP64}, s{sSO[0][0]}")
    e(f"s_lshl1_add_u32 s{sCurB}, s{sP64}, s{sSO[0][1]}")
    e(f"s_waitcnt vmcnt(0)")
    a.label("L_lnB")
    a.reset_hist()
    padat("x0")
    sp.stamp("x0"); sp.stamp("x0", lvl=3)
    def wpf():
        if opt.get("w0r", 14) < 14:
            e(f"buffer_load_dword v{vDum+1}, v{vDum+2}, {S(rA)}, s{sSO[0][0]} offen{opt.get('pnt', '')}")
            e(f"buffer_load_dword v{vDum+1}, v{vDum+2}, {S(rB)}, s{sSO[0][1]} offen{opt.get('pnt', '')}")
        for r in (1, 2):
            e(f"buffer_load_dword v{vDum+1}, v{vDum+3}, {S(rW1)}, s{sSO[r][0]} offen{opt.get('pnt', '')}")
            e(f"buffer_load_dword v{vDum+1}, v{vDum+3}, {S(rW3)}, s{sSO[r][0]} offen{opt.get('pnt', '')}")
        if opt.get("w2pf", 3) == 3:
            e(f"s_lshl2_add_u32 s{sT1}, s2, s{sW}")
            e(f"s_mul_i32 s{sT2}, s{sT1}, {13*128}")
            e(f"s_lshl_b32 s{sT1}, s{sT1}, 9")
            e(f"v_min_u32 v{vDum+2}, 12, v{vLane}")
            e(f"v_lshl_add_u32 v{vDum+2}, v{vDum+2}, 7, s{sT2}")
            e(f"v_min_u32 v{vDum+2}, {W2_BYTES-4}, v{vDum+2}")
            e(f"v_min_u32 v{vDum+3}, 3, v{vLane}")
            e(f"v_lshl_add_u32 v{vDum+3}, v{vDum+3}, 7, s{sT1}")
            e(f"v_min_u32 v{vDum+3}, {WO_BYTES-4}, v{vDum+3}")
            e(f"global_load_dword v{vDum+1}, v{vDum+2}, s[{pW2}:{pW2+1}]{opt.get('p2nt', '')}")
            e(f"global_load_dword v{vDum+1}, v{vDum+3}, s[{pWO}:{pWO+1}]")
    AC = T0 + 8
    def reduce2(d0, d1):
        for g in range(2): e(f"v_add_f32 v{AC+4*g}, v{AC+4*g}, v{AC+4*g+1}")
        for g in range(2): e(f"v_add_f32 v{AC+4*g+2}, v{AC+4*g+2}, v{AC+4*g+3}")
        for g, d in enumerate((d0, d1)): e(f"v_add_f32 v{d}, v{AC+4*g}, v{AC+4*g+2}")
        for m in ("quad_perm:[1,0,3,2]", "quad_perm:[2,3,0,1]", "row_half_mirror"):
            for d in (d0, d1): e(f"v_add_f32_dpp v{d}, v{d}, v{d} {m} row_mask:0xf bank_mask:0xf")
    for i in range(28):
        for g in range(2): e(f"v_dot2c_f32_bf16 v{AC+4*g+i%4}, s{sOnes}, v{RAW+g*28+i}")
    reduce2(vAcc[0], vAcc[1])
    for q in range(8): e(f"v_mov_b32 v{AC+q}, 0")
    for g in range(2): e(f"v_mul_f32 v{vAcc[g]}, {hexf(-1.0/448)}, v{vAcc[g]}")
    if C2 == 1:
        e(f"s_cmp_lt_u32 s{sW}, 4")
        e(f"s_cbranch_scc1 L_c2")
        a.skip_begin(); dma4(2)
        a.skip_end()
        a.label("L_c2")
    sp.stamp("pre", lvl=3)
    pend = None
    for gi in range(2):
        for i in range(7):
            r = RAW + gi * 28 + i * 4
            for k in range(4):
                e(f"v_dot2_f32_bf16 v{T0+2*k}, v{r+k}, s{sLo}, v{vAcc[gi]}")
                e(f"v_dot2_f32_bf16 v{T0+2*k+1}, v{r+k}, s{sHi}, v{vAcc[gi]}")
            if pend: pend()
            for k in range(4):
                e(f"v_cvt_pk_bf16_f32 v{r+k}, v{T0+2*k}, v{T0+2*k+1}")
            def pend(r=r, gi=gi, i=i):
                off = i * 16384
                a.ds_op(f"ds_write_b128 v{vXW[off >> 16]}, v[{r}:{r+3}] offset:{off & 0xffff}", "xw")
                if i == 6 and gi == 0:
                    e(f"v_xor_b32 v{vXW[0]}, 128, v{vXW[0]}")
                    e(f"v_xor_b32 v{vXW[1]}, 128, v{vXW[1]}")
    pend()
    if opt.get("wpf", 1) == 3:
        e(f"s_cmp_ge_u32 s{sW}, 4")
        e(f"s_cbranch_scc1 L_wp3")
        a.skip_begin(); wpf(); a.skip_end()
        a.label("L_wp3")
    if C2 == 2:
        e(f"s_cmp_lt_u32 s{sW}, 4")
        e(f"s_cbranch_scc1 L_c2")
        a.skip_begin(); dma4(2); a.skip_end()
        a.label("L_c2")
    sp.stamp("post", lvl=3)
    for i in range(28):
        for g in range(2): e(f"v_dot2c_f32_bf16 v{AC+4*g+i%4}, v{RAW+g*28+i}, v{RAW+g*28+i}")
    e(f"v_mov_b32 v{T0}, {hexf(1e-5)}")
    e(f"v_mov_b32 v{T0+1}, {hexf(1e-5)}")
    e(f"v_xor_b32 v{T0+2}, 32, v{vStat}")
    reduce2(vAcc[0], vAcc[1])
    for g in range(2): e(f"v_fmac_f32 v{T0+g}, {hexf(1.0/448)}, v{vAcc[g]}")
    e(f"s_cmp_ge_u32 s{sW}, 4")
    e(f"s_cbranch_scc1 L_lnD")
    a.skip_begin()
    e(f"s_lshl3_add_u32 s{sT3}, s2, s{sW}")
    e(f"s_cmp_lg_u32 s{sT3}, 0")
    e(f"s_cbranch_scc1 L_noinit")
    e(f"v_lshlrev_b32 v25, 7, v{vLane}")
    e(f"v_mov_b32 v26, 0")
    e(f"s_mov_b32 s3, {CNT_OFF}")
    for q in range(5):
        if q: e(f"s_add_u32 s3, s3, 8192")
        e(f"buffer_store_dword v26, v25, {S(rWS)}, s3 offen sc1")
    a.label("L_noinit")
    if opt.get("touch") == 2: touch()
    if opt.get("wpf", 1) == 1: wpf()
    e(f"s_branch L_lnE")
    a.skip_end()
    a.label("L_lnD")
    sp.stamp("ln", lvl=3, nowait=True)
    a.vm_wait("c1")
    a.label("L_lnE")
    a.ds_wait_all()
    sp.stamp("ln")
    sp.stamp("c1", lvl=3)
    e("s_barrier")
    padat("b1")
    sp.stamp("b1"); sp.stamp("b1", lvl=3)
    def deferred():
        t0, t1, t2 = AB, AB + 1, AB + 2
        G = lambda *ins: (lambda: [e(x) for x in ins], sum(2 if x.startswith("s_") else 4 for x in ins))
        L = []
        L.append(G(f"v_xor_b32 v{vD2B}, 32, v{vD1}", f"v_lshlrev_b32 v{vSt}, 4, v{vLane}", f"s_mov_b32 vcc_lo, -1", f"s_mov_b32 vcc_hi, 0"))
        L.append(G(f"s_lshl2_add_u32 s{sTTG}, s{sRB}, s{sTT}", f"s_lshl_b32 s{sHoff}, s{sG}, 6"))
        L += [G(x) for x in traddr(vTB[1][0], sHoff, t0, t1)]
        L.append(G(f"v_add_u32 v{vTB[1][1]}, 8192, v{vTB[1][0]}"))
        L.append(G(f"s_and_b32 s{sHoff}, s{sCOL}, 1", f"s_lshl_b32 s{sHoff2}, s{sHoff}, 1", f"s_lshl_b32 s{sHoff}, s{sHoff2}, 5",
                   f"v_xor_b32 v{t0}, s{sHoff}, v{vCol}"))
        L.append(G(f"v_xor_b32 v{t0}, v{t0}, v{vSwz}", f"v_and_b32 v{t1}, 16, v{vLane}"))
        L.append(G(f"v_lshl_add_u32 v{t0}, v{t1}, 9, v{t0}", f"v_add_u32 v{vTB[2][0]}, v{t0}, v{vRow}", f"v_xor_b32 v{vTB[2][1]}, 32, v{vTB[2][0]}"))
        L.append(G(f"s_mul_i32 s{sHoff}, s{sTTG}, 112", f"s_add_u32 s{sHoff2}, s{sHoff2}, s{sHoff}", f"s_lshr_b32 s{sQKoff}, s{sSO[2][0]}, 5",
                   f"s_add_u32 s{sHoff2}, s{sHoff2}, s{sQKoff}", f"s_lshl_b32 s{sHoff2}, s{sHoff2}, 10", f"s_add_u32 s{sHoff2}, s{sHoff2}, {H_OFF}"))
        L.append(G(f"s_lshl1_add_u32 s{sHoff}, s{sG}, s{sHoff}", f"s_lshl2_add_u32 s{sHoff}, s{sCOL}, s{sHoff}", f"s_lshl_b32 s{sHoff}, s{sHoff}, 10",
                   f"s_add_u32 s{sHoff}, s{sHoff}, {H_OFF}"))
        L.append(G(f"s_lshl1_add_u32 s{sQKoff}, s{sCOL}, s{sG}", f"s_lshl_b32 s{sQKoff}, s{sQKoff}, 7", f"s_add_u32 s{sQKoff}, s{sQKoff}, s{sTTG}",
                   f"s_lshl_b32 s{sQKoff}, s{sQKoff}, 11", f"s_add_u32 s{sQKstep}, s{sHoff}, {12*4096}", f"s_cmp_ge_u32 s{sCOL}, 12",
                   f"s_cselect_b32 s{sQKoff}, s{sQKstep}, s{sQKoff}"))
        L.append(G(f"s_lshr_b32 s{sQKstep}, s{sCOL}, 2", f"s_cmp_eq_u32 s{sQKstep}, 1", f"s_cselect_b32 s{sOnes}, s{sOnes}, 0", f"s_cselect_b32 s{sHi}, s{sLo}, 0",
                   f"s_cmp_eq_u32 s{sQKstep}, 2", f"s_cselect_b32 s{sOnes}, s{sLo}, s{sOnes}"))
        L.append(G(f"v_mov_b32 v{vP6}, s{sOnes}", f"v_mov_b32 v{vP7}, s{sHi}"))
        L.append(G(f"v_lshrrev_b32 v{t2}, 5, v{vLane}", f"v_bfe_u32 v{t0}, v{vLane}, 2, 2", f"v_lshl_add_u32 v{t0}, v{t2}, 2, v{t0}"))
        L.append(G(f"v_lshrrev_b32 v{t1}, 1, v{t0}", f"v_lshlrev_b32 v{t1}, 3, v{t1}", f"v_xor_b32 v{t1}, v{t1}, v{vCol}"))
        L.append(G(f"s_lshl_b32 s{sQKstep}, s{sW}, 11", f"s_add_u32 s{sQKstep}, s{sQKstep}, {SCR}", f"v_lshl_add_u32 v{t0}, v{t0}, 6, v{t1}",
                   f"v_add_u32 v{vV2}, s{sQKstep}, v{t0}"))
        L.append(G(f"v_xor_b32 v{vV3}, 32, v{vV2}", f"v_bfe_u32 v{t0}, v{vLane}, 1, 3", f"v_xor_b32 v{t0}, v{t0}, v{t2}"))
        L.append(G(f"v_and_b32 v{t1}, 31, v{vLane}", f"v_lshlrev_b32 v{t1}, 6, v{t1}", f"v_lshl_add_u32 v{t0}, v{t0}, 3, v{t1}"))
        L.append(G(f"v_add_u32 v{vV1}, s{sQKstep}, v{t0}"))
        return L
    def hdiag(k):
        if not opt.get("hdiag"): return
        if k == 0: return
        e("s_cmp_ge_u32 s2, 7")
        e("s_cbranch_scc1 L_end")
        e(f"s_cmp_lg_u32 s{sW}, 4")
        e("s_cbranch_scc1 L_end")
        e("s_memrealtime s[80:81]"); e("s_memtime s[82:83]")
        e("s_waitcnt vmcnt(0) lgkmcnt(0)")
        e("s_mov_b64 exec, 1")
        e("s_lshl_b32 s3, s2, 3")
        e("v_mov_b32 v0, s3")
        e("s_sub_u32 s84, s82, s78")
        e("s_sub_u32 s80, s80, s76")
        e("s_and_b32 s76, s76, 0xffff")
        e("s_lshl_b32 s80, s80, 16")
        e("s_or_b32 s76, s76, s80")
        e("v_mov_b32 v2, s76"); e("v_mov_b32 v3, s84")
        e(f"global_store_dword v0, v2, s[{pDBG}:{pDBG+1}] offset:4")
        e(f"global_store_dword v0, v3, s[{pDBG}:{pDBG+1}] offset:8")
    def check_flag(vtmp):
        done = lab("fl")
        e(f"v_readfirstlane_b32 s{sT1}, v{vFlag}")
        e(f"s_cmp_lg_u32 s{sT1}, 0")
        e(f"s_cbranch_scc1 {done}")
        e(f"s_mov_b32 s{sT2}, 0x40000")
        lp = lab("fs"); a.label(lp)
        e(f"v_mov_b32 v{vtmp}, 0")
        e(f"global_load_dword v{vFlag}, v{vtmp}, s[{pDBG}:{pDBG+1}] sc1")
        e(f"s_waitcnt vmcnt(0)")
        e(f"v_readfirstlane_b32 s{sT1}, v{vFlag}")
        e(f"s_sub_u32 s{sT2}, s{sT2}, 1")
        e(f"s_cselect_b32 s{sT1}, 1, s{sT1}")
        e(f"s_cmp_eq_u32 s{sT1}, 0")
        e(f"s_cbranch_scc1 {lp}")
        a.label(done)
    def signal(sIdx, add, va, vb):
        e(f"s_add_u32 s{sT1}, s{sIdx}, {add}")
        e(f"s_lshl_b32 s{sT1}, s{sT1}, 7")
        e(f"s_add_u32 s{sT1}, s{sT1}, {CNT_OFF}")
        e(f"v_mov_b32 v{va}, 0")
        e(f"v_mov_b32 v{vb}, 1")
        e(f"s_mov_b64 exec, 1")
        e(f"buffer_atomic_add v{vb}, v{va}, {S(rWS)}, s{sT1} offen sc1")
        e(f"s_mov_b64 exec, -1")
    def poll(vaddr, vval, target, sleep):
        lp = lab("po"); done = lab("pd")
        e(f"s_mov_b32 s{sT2}, 0x40000")
        e(f"s_mov_b32 s{sT3}, {CNT_OFF}")
        a.label(lp)
        e(f"buffer_load_dword v{vval}, v{vaddr}, {S(rWS)}, s{sT3} offen sc1")
        e(f"s_waitcnt vmcnt(0)")
        e(f"v_cmp_gt_u32 s[74:75], {target}, v{vval}")
        e(f"s_cmp_eq_u64 s[74:75], 0")
        e(f"s_cbranch_scc1 {done}")
        e(f"s_sleep {sleep}")
        e(f"s_sub_u32 s{sT2}, s{sT2}, 1")
        e(f"s_cbranch_scc0 {lp}")
        a.label(done)
        a.vm = []
    def lds_arrive(k, va, vb, rtn=False):
        e(f"v_mov_b32 v{va}, {SYNC + 4*k}")
        e(f"v_mov_b32 v{vb}, 1")
        e(f"s_mov_b64 exec, 1")
        e(f"ds_add_rtn_u32 v{vb}, v{va}, v{vb}" if rtn else f"ds_add_u32 v{va}, v{vb}")
        e(f"s_mov_b64 exec, -1")
    def lds_sync(k, n, va, vb, meanwhile=None):
        a.ds_wait_all()
        lds_arrive(k, va, vb)
        if meanwhile:
            e("s_nop 3"); meanwhile()
        lp = lab("ls")
        e(f"s_mov_b32 s{sT2}, 0x400000")
        a.label(lp)
        e(f"ds_read_b32 v{vb}, v{va}")
        e(f"s_waitcnt lgkmcnt(0)")
        e(f"v_readfirstlane_b32 s{sT1}, v{vb}")
        e(f"s_sub_u32 s{sT2}, s{sT2}, 1")
        e(f"s_cselect_b32 s{sT1}, {n}, s{sT1}")
        e(f"s_cmp_lt_u32 s{sT1}, {n}")
        e(f"s_cbranch_scc1 {lp}")
    def lds_spin(k, n, va, vb, sleep):
        lp = lab("ls"); ok = lab("lk")
        e(f"v_mov_b32 v{va}, {SYNC + 4*k}")
        e(f"s_mov_b32 s{sT2}, 0x100000")
        a.label(lp)
        e(f"ds_read_b32 v{vb}, v{va}")
        e(f"s_waitcnt lgkmcnt(0)")
        e(f"v_readfirstlane_b32 s{sT1}, v{vb}")
        e(f"s_cmp_ge_u32 s{sT1}, {n}")
        e(f"s_cbranch_scc1 {ok}")
        e(f"s_sleep {sleep}")
        e(f"s_sub_u32 s{sT2}, s{sT2}, 1")
        e(f"s_cbranch_scc0 {lp}")
        a.label(ok)
    def lds_check(k, n, va, vb):
        lp = lab("lc"); ok = lab("ld")
        e(f"s_mov_b32 s{sT2}, 0x400000")
        a.label(lp)
        e(f"s_waitcnt lgkmcnt(0)"); a.lg = []
        e(f"v_readfirstlane_b32 s{sT1}, v{vb}")
        e(f"s_cmp_ge_u32 s{sT1}, {n}")
        e(f"s_cbranch_scc1 {ok}")
        a.skip_begin()
        e(f"ds_read_b32 v{vb}, v{va}")
        e(f"s_sub_u32 s{sT2}, s{sT2}, 1")
        e(f"s_cbranch_scc0 {lp}")
        a.skip_end()
        a.label(ok)
    def lds_wait(k, n, va, vb, meanwhile):
        lp = lab("lw"); ok = lab("lo")
        e(f"v_mov_b32 v{va}, {SYNC + 4*k}")
        e(f"ds_read_b32 v{vb}, v{va}")
        meanwhile()
        e(f"s_mov_b32 s{sT2}, 0x400000")
        a.label(lp)
        e(f"s_waitcnt lgkmcnt(0)")
        e(f"v_readfirstlane_b32 s{sT1}, v{vb}")
        e(f"s_cmp_ge_u32 s{sT1}, {n}")
        e(f"s_cbranch_scc1 {ok}")
        e(f"ds_read_b32 v{vb}, v{va}")
        e(f"s_sub_u32 s{sT2}, s{sT2}, 1")
        e(f"s_cbranch_scc0 {lp}")
        a.label(ok)
    def last_signals(k, n, sIdx, add, va, vb):
        lds_arrive(k, va, vb, rtn=True)
        e(f"s_waitcnt lgkmcnt(0)"); a.lg = []
        e(f"v_readfirstlane_b32 s{sT1}, v{vb}")
        sk = lab("ns")
        e(f"s_cmp_lg_u32 s{sT1}, {n-1}")
        e(f"s_cbranch_scc1 {sk}")
        a.skip_begin()
        signal(sIdx, add, va, vb)
        a.skip_end()
        a.label(sk)
    NT = [2, 2, 2]
    ACC = [AA, AB, AA]
    tw_state = [None, None]
    def wreads(G):
        r, s = divmod(G, 28)
        base = slot(G // 4) * 16384 + (s % 4) * 2048
        hi, lo = base >> 16, base & 0xffff
        L = []
        for t in range(NT[r]):
            d = WF + (G % 3) * 8 + t * 4
            def f0(t=t, d=d):
                if tw_state[t] != (r, hi):
                    e(f"v_add_u32 v{vTW[t]}, {hex(hi << 16)}, v{vTB[r][t]}")
                    tw_state[t] = (r, hi)
                a.ds_op(f"ds_read_b64_tr_b16 v[{d}:{d+1}], v{vTW[t]} offset:{lo}", f"w{G}")
            def f1(t=t, d=d):
                a.ds_op(f"ds_read_b64_tr_b16 v[{d+2}:{d+3}], v{vTW[t]} offset:{lo+512}", f"w{G}")
            L += [f0, f1]
        return L
    xr_next = [0]
    def xread(n):
        for _ in range(n):
            s = xr_next[0]
            if s >= 28: return
            xr_next[0] += 1
            if s == 16:
                for q in range(4): e(f"v_add_u32 v{vXR[q]}, 0x10000, v{vXR[q]}")
            off = ((s // 4) * 16384) & 0xffff
            a.ds_op(f"ds_read_b128 v[{X0+4*s}:{X0+4*s+3}], v{vXR[s%4]} offset:{off}", f"x{s}")
    BARS = opt.get("bars", [0, 1, 2, 3, 5, 7, 9, 11, 13, 15])
    PQ = opt.get("pq", 11)
    PZ = opt.get("pz", 13)
    L2P = {int(k): v for k, v in opt.get("l2p", {}).items()}
    VEND = PQ
    window = []; pending = []
    def period_barrier(i):
        for c in window: a.vm.extend([f"c{c}", f"c{c}"])
        assert not pending, pending
        window.clear()
        nxt = min([b for b in BARS if b > i] + [20])
        a.vm_wait(f"c{nxt}")
        assert dma_next[0] > nxt, (i, nxt, dma_next[0])
        if i == 3: a.vm_wait("stat")
        if i == PQ: a.vm_wait("st"); a.vm_wait("fl")
        if i in opt.get("sb", []): sp.stamp("pre", lvl=2, nowait=True)
        e("s_barrier")
        if i in opt.get("sb", []): sp.stamp("post", lvl=2, nowait=True)
        if i == 3:
            e(f"v_and_b32 v{vK}, 31, v{vLane}")
            e(f"v_lshlrev_b32 v{vK}, 2, v{vK}")
            e(f"s_lshl_b32 s{sT1}, s{sTT}, 7")
            e(f"s_add_u32 s{sT1}, s{sT1}, s{sStat}")
            a.vm_op(f"buffer_load_dword v{vK}, v{vK}, {S(rWS)}, s{sT1} offen sc1", "kld")
        if i == 3:
            e(f"s_lshl3_add_u32 s{sT1}, s2, s{sW}")
            e(f"s_cmp_lg_u32 s{sT1}, 0")
            e(f"s_cbranch_scc1 L_nofl")
            a.skip_begin()
            e(f"v_mov_b32 v{vDum+2}, 0")
            e(f"v_mov_b32 v{vDum+3}, 1")
            e(f"global_store_dword v{vDum+2}, v{vDum+3}, s[{pDBG}:{pDBG+1}] sc1")
            a.skip_end()
            a.label("L_nofl")
        if i == 7:
            e(f"v_mov_b32 v{vFlag}, 0")
            a.vm_op(f"global_load_dword v{vFlag}, v{vFlag}, s[{pDBG}:{pDBG+1}] sc1", "fl")
        if i in L2P:
            for k in L2P[i]:
                sk = lab("pf")
                e(f"s_cmp_lg_u32 s{sW}, {k}")
                e(f"s_cbranch_scc1 {sk}")
                a.skip_begin()
                e(f"s_lshr_b32 s{sT1}, s2, 3")
                nl, ptr, nb = (56, pW2, W2_BYTES) if k < 7 else (98, pWO, WO_BYTES)
                if k < 7:
                    e(f"s_mul_i32 s{sT1}, s{sT1}, {7*56*128}")
                    e(f"s_add_u32 s{sT1}, s{sT1}, {k*56*128}")
                else:
                    e(f"s_mul_i32 s{sT1}, s{sT1}, {98*128}")
                e(f"v_min_u32 v{vDum+2}, {min(nl, 64) - 1 if k < 7 else 48}, v{vLane}")
                e(f"v_lshl_add_u32 v{vDum+2}, v{vDum+2}, 7, s{sT1}")
                e(f"global_load_dword v{vDum+1}, v{vDum+2}, s[{ptr}:{ptr+1}]")
                if k == 7:
                    e(f"v_add_u32 v{vDum+2}, {49*128}, v{vDum+2}")
                    e(f"global_load_dword v{vDum+1}, v{vDum+2}, s[{ptr}:{ptr+1}]")
                a.skip_end()
                a.label(sk)
        if i == PZ:
            e(f"v_lshrrev_b32 v{vDum+2}, 2, v{vSt}")
            e(f"v_add_u32 v{vDum+2}, {SYNC}, v{vDum+2}")
            e(f"v_mov_b32 v{vDum+3}, 0")
            a.ds_op(f"ds_write_b32 v{vDum+2}, v{vDum+3}", "z")
        if i == PQ and sigq[0]:
            sk = lab("q")
            e(f"s_cmp_lg_u32 s{sW}, 0")
            e(f"s_cbranch_scc1 {sk}")
            a.skip_begin()
            check_flag(vDum + 2)
            signal(sCOL, 0, vDum + 2, vDum + 3)
            a.skip_end()
            a.label(sk)
        while dma_next[0] <= 20:
            c = dma_next[0]
            if c < 10:
                sl = slot(c)
                if not all(xr_next[0] > s and a.ds_done(f"x{s}") for s in range(4*sl, 4*sl+4)): break
            elif c == 20:
                if i < 13: break
            elif c - 9 > i - 1: break
            window.append(c); dma_next[0] += 1
        nq = nxt - i
        per = -(-len(window) // nq)
        pending[:] = [window[k*per:(k+1)*per] for k in range(nq)]
    sigq = [False]
    XR = opt.get("xrate", 2)
    def kloop(r, extra, budget, hooks={}):
        extra = list(extra)
        if opt.get("x_noepi"): extra = [x for x in extra if x[1] == 0]
        gap = 0
        for s in range(28):
            G = r * 28 + s
            Gn = G + 2
            rd = wreads(Gn) if Gn < 84 else []
            a.ds_wait(f"w{G}")
            if r == 0: a.ds_wait(f"x{s}")
            ph = Gn % 4
            for t in range(NT[r]):
                d = ACC[r] + 16 * t
                w = WF + (G % 3) * 8 + t * 4
                c = "0" if s == 0 else f"v[{d}:{d+15}]"
                e(f"v_mfma_f32_32x32x16_bf16 v[{d}:{d+15}], v[{w}:{w+3}], v[{X0+4*s}:{X0+4*s+3}], {c}")
                gap += 1
                if t == 0 and Gn < 84 and ph == 0 and (Gn // 4 - 1) in BARS: period_barrier(Gn // 4 - 1)
                n = -(-len(rd) // (NT[r] - t))
                for f in rd[:n]: f()
                rd = rd[n:]
                if r == 0: xread((XR + 1 - t) // 2)
                left = budget
                if t == NT[r] - 1 and pending and pending[0] and ph % 2 == 0:
                    sk = lab("d")
                    e(f"s_cmp_lg_u32 s{sPh}, {ph}")
                    e(f"s_cbranch_scc1 {sk}")
                    a.skip_begin()
                    for c in pending[0]: dma(c, track=False)
                    a.skip_end()
                    a.label(sk)
                    left = opt.get("dmabud", 4)
                if t == NT[r] - 1 and s in hooks: hooks[s](); left = 0
                while extra and gap > 3 and extra[0][1] <= left:
                    f, cst = extra.pop(0); f(); left -= cst
            if ph == 3 and pending: pending.pop(0)
        return extra
    def I(t):
        op = t.split()[0]
        return (lambda: e(t), 8 if op.startswith(TRANS) else (2 if op.startswith("s_") else 4))
    def consts():
        def sel():
            e(f"s_cmp_lt_u32 s{sCOL}, 4")
            e(f"s_cselect_b32 s{sT1}, {hexf(28**-0.5*LOG2E)}, 1.0")
            e(f"v_mul_f32 v{vSc}, s{sT1}, v{vSc}")
        return [(lambda: a.vm_wait("kld"), 0), I(f"v_rsq_f32 v{vSc}, v{vK}"),
                I(f"v_mul_f32 v{vC1}, {hexf(-LOG2E)}, v{vSc}"), (sel, 8)]
    def silu4(Gt, U, t, p):
        L = []
        for k in range(4): L.append(I(f"v_mul_f32 v{t+k}, v{vC1}, v{Gt+k}"))
        for k in range(4):
            L.append(I(f"v_exp_f32 v{t+k}, v{t+k}"))
            L.append(I(f"v_mul_f32 v{Gt+k}, v{Gt+k}, v{U+k}"))
        for k in range(4): L.append(I(f"v_fma_f32 v{t+k}, v{t+k}, v{vK}, v{vK}"))
        for k in range(4): L.append(I(f"v_rcp_f32 v{t+k}, v{t+k}"))
        for k in range(4): L.append(I(f"v_mul_f32 v{Gt+k}, v{Gt+k}, v{t+k}"))
        for k in range(2): L.append(I(f"v_cvt_pk_bf16_f32 v{p+k}, v{Gt+2*k}, v{Gt+2*k+1}"))
        return L
    def store(r, soff, off):
        if opt.get("x_nost"): return (lambda: None, 8)
        return (lambda: a.vm_op(f"buffer_store_dwordx4 v[{r}:{r+3}], v{vSt}, {S(rWS)}, s{soff} offen offset:{off}{ST}", "st"), 8)
    def epiF(acc, soff):
        Gt, U = acc, acc + 16
        L = []
        for q in range(4):
            L += silu4(Gt + 4*q, U + 4*q, T0 + (q % 2) * 4, U + (q // 2) * 8 + (q % 2) * 2)
            if q % 2 == 1: L.append(store(U + (q // 2) * 8, soff, (q // 2) * 1024))
        return L
    def epiQKV(acc, isv):
        L = []
        P = T0 + 8
        for q in range(4):
            for k in range(4): L.append(I(f"v_mul_f32 v{acc+4*q+k}, v{vSc}, v{acc+4*q+k}"))
            for k in range(2): L.append(I(f"v_cvt_pk_bf16_f32 v{P+2*q+k}, v{acc+4*q+2*k}, v{acc+4*q+2*k+1}"))
            if q == 1 and not isv: L.append(store(P, sQKoff, 0))
        L.append(I(f"v_cndmask_b32 v{P+6}, v{vP6}, v{P+6}, vcc"))
        L.append(I(f"v_cndmask_b32 v{P+7}, v{vP7}, v{P+7}, vcc"))
        if not isv: L.append(store(P + 4, sQKoff, 1024))
        else:
            for q in range(4):
                if q: L.append(I(f"v_xor_b32 v{vV4}, {16*q}, v{vV1}"))
                L.append((lambda q=q: a.ds_op(f"ds_write_b64 v{vV4 if q else vV1}, v[{P+2*q}:{P+2*q+1}]", "vw"), 4))
            L += [(lambda: None, 8)] * 2
            L.append((lambda: a.ds_wait("vw"), 0))
            for q in range(4):
                L.append((lambda q=q: a.ds_op(f"ds_read_b64_tr_b16 v[{acc+2*q}:{acc+2*q+1}], v{vV3 if q % 2 else vV2} offset:{512*q}", "vr"), 4))
            L += [(lambda: None, 8)] * 2
            L.append((lambda: a.ds_wait("vr"), 0))
            L.append(store(acc, sQKoff, 0))
            L.append(store(acc + 4, sQKoff, 1024))
        L.append(I(f"s_add_u32 s{sQKoff}, s{sQKoff}, {64*2048}"))
        return L
    B1, B2 = opt.get("b1", 12), opt.get("b2", 12)
    if opt.get("yprio"):
        e(f"s_cmp_lt_u32 s{sW}, 4")
        e(f"s_cbranch_scc1 L_yp")
        e(f"s_setprio 1")
        a.label("L_yp")
    xread(4)
    for f in wreads(0) + wreads(1): f()
    if opt.get("wpf", 1) == 2:
        e(f"s_cmp_ge_u32 s{sW}, 4")
        e(f"s_cbranch_scc1 L_wp")
        a.skip_begin(); wpf(); a.skip_end()
        a.label("L_wp")
    a.vm_op(f"buffer_store_dword v{T0}, v{vStat}, {S(rWS)}, s{sStat} offen", "stat")
    a.vm_op(f"buffer_store_dword v{T0+1}, v{T0+2}, {S(rWS)}, s{sStat} offen", "stat")
    assert not kloop(0, deferred(), 16)
    padat("r0")
    sp.stamp("r0")
    e(f"s_cmp_lt_u32 s{sCOL}, 8")
    e(f"s_cbranch_scc1 L_pqk")
    e(f"s_cmp_lt_u32 s{sCOL}, 12")
    e(f"s_cbranch_scc1 L_pv")
    saved = (list(a.vm), list(a.lg), list(tw_state), dma_next[0], list(a.hist), list(window), [list(p) for p in pending], sp.n)
    ends = []
    for nm, ex in (("f", lambda: epiF(AA, sQKoff)), ("L_pqk", lambda: epiQKV(AA, False) + epiQKV(AA + 16, False)),
                   ("L_pv", lambda: epiQKV(AA, True) + epiQKV(AA + 16, True))):
        if nm != "f": a.label(nm)
        a.vm, a.lg = list(saved[0]), list(saved[1]); tw_state[:] = saved[2]; dma_next[0] = saved[3]; a.hist = list(saved[4])
        window[:] = saved[5]; pending[:] = [list(p) for p in saved[6]]; sp.set(saved[7])
        sigq[0] = nm != "f"
        nst0 = [0]
        exl = consts() + ex()
        if nm != "f":
            exl.append((lambda: nst0.__setitem__(0, 1), 0))
            _pb = period_barrier
        rest = kloop(1, exl, {"f": B1, "L_pqk": opt.get("b1q", 32), "L_pv": opt.get("b1v", 32)}[nm], hooks={(VEND + 1) * 4 - 2 - 28 - 1: (lambda: None) if nm == "f" else (lambda: (_ for _ in ()).throw(AssertionError("qkv epilogue too late")) if not nst0[0] else None)})
        for f, c in rest: f()
        ends.append(([t for t in a.vm if t != "st"], list(a.lg), list(tw_state), dma_next[0], list(window), [list(p) for p in pending]))
        if nm != "L_pv": e("s_branch L_r2")
    assert ends[0][1:] == ends[1][1:] == ends[2][1:], ends
    a.vm = min((x[0] for x in ends), key=len)
    assert all(x[0][len(x[0])-len(a.vm):] == a.vm for x in ends)
    a.label("L_r2")
    e("s_nop 1")
    padat("r1")
    sp.stamp("r1"); sp.stamp("r1", lvl=5, nowait=True)
    K0, Q, KV, O, Sx, P, T = 16, 24, 56, 128, 192, 224, 240
    ATT_LDS, WO_LDS = 49152, 98304
    sX, sJ = 54, 55
    sHead, sQB, sKV, sRun = 62, 63, 64, 58
    sWq, sTB, sCB, sWo, sLB = 62, 63, 64, 58, 66
    vD, vPoll, vStV = vD0, vDum + 4, vD0
    rW = rA
    rK, rV = rA, rB
    NE = 3
    QX = 147456
    def kvload(i):
        for k in range(4):
            r = KV + 16 * i + 4 * k
            a.vm_op(f"buffer_load_dwordx4 v[{r}:{r+3}], v{vSt}, {S(rK if k < 2 else rV)}, s{sRun} offen offset:{1024*(k%2)}{LD}", f"kv{i}")
        e(f"s_add_u32 s{sRun}, s{sRun}, 2048")
        e(f"s_and_b32 s{sRun}, s{sRun}, 0x1ffff")
    e(f"s_and_b32 s{sX}, s2, 7")
    e(f"s_lshr_b32 s{sJ}, s2, 3")
    check_flag(vDum + 2)
    e(f"s_cmp_lt_u32 s{sW}, 4")
    e(f"s_cbranch_scc1 L_att")
    join = (list(a.vm), list(a.lg), list(a.hist), list(window), sp.n)
    e(f"s_setprio {opt.get('r2prio', 2)}")
    rest = kloop(2, epiF(AB, sHoff), B2)
    sp.stamp("r2")
    for f, c in rest: f()
    for t in range(2):
        for q in range(2):
            for f, c in silu4(AA + 16*t + 4*q, AA + 16*t + 8 + 4*q, T0 + 4*q, T0 + 8 + 4*t + 2*q): f()
        store(T0 + 8 + 4*t, sHoff2, 1024*t)[0]()
    e(f"s_branch L_gemm")
    nst = sp.n
    a.label("L_att")
    a.vm, a.lg, a.hist = list(join[0]), list(join[1]), list(join[2]); sp.set(join[4])
    for c in join[3]: a.vm.extend([f"c{c}", f"c{c}"])
    e(f"s_setprio {opt.get('attprio0', 3)}")
    e(f"s_and_b32 s{sT1}, s{sJ}, 1")
    e(f"s_lshl1_add_u32 s{sHead}, s{sX}, s{sT1}")
    e(f"v_min_u32 v{vPoll}, 2, v{vLane}")
    e(f"v_lshlrev_b32 v{vPoll}, 9, v{vPoll}")
    e(f"s_lshr_b32 s{sT1}, s{sHead}, 2")
    e(f"v_lshl_add_u32 v{vPoll}, s{sT1}, 7, v{vPoll}")
    e(f"s_mov_b32 s{sT3}, {CNT_OFF}")
    a.vm_op(f"buffer_load_dword v{vDum+3}, v{vPoll}, {S(rWS)}, s{sT3} offen sc1", "poll")
    def qload():
        e(f"s_lshl_b32 s{sT1}, s{sHead}, 6")
        e(f"s_lshl2_add_u32 s{sT1}, s{sQB}, s{sT1}")
        e(f"s_add_u32 s{sT1}, s{sT1}, s{sW}")
        e(f"s_lshl_b32 s{sT1}, s{sT1}, 11")
        a.vm_op(f"buffer_load_dwordx4 v[{Q}:{Q+3}], v{vSt}, {S(rWS)}, s{sT1} offen{LD}", "q")
        a.vm_op(f"buffer_load_dwordx4 v[{Q+4}:{Q+7}], v{vSt}, {S(rWS)}, s{sT1} offen offset:1024{LD}", "q")
        kvload(0)
    e(f"s_lshr_b32 s{sQB}, s{sJ}, 1")
    e(f"s_lshl_b32 s{sKV}, s{sHead}, 17")
    e(f"s_add_u32 s{sKV}, s{sKV}, {KV_OFF}")
    e(f"s_and_b32 s{sT1}, s{sQB}, {opt.get('rot', 0)}")
    e(f"s_lshl_b32 s{sT1}, s{sT1}, {opt.get('rotsh', 0)}")
    e(f"s_lshl3_add_u32 s{sT1}, s{sW}, s{sT1}")
    e(f"s_lshl1_add_u32 s{sT1}, s{sT1}, 1")
    e(f"s_lshl_b32 s{sRun}, s{sT1}, 11")
    e(f"s_add_u32 s{rK}, s{pWS}, s{sKV}")
    e(f"s_addc_u32 s{rK+1}, s{pWS+1}, 0")
    e(f"s_mov_b32 s{rK+2}, 0x20000")
    e(f"s_mov_b32 s{rK+3}, 0x20000")
    e(f"s_add_u32 s{rV}, s{rK}, {2 << 20}")
    e(f"s_addc_u32 s{rV+1}, s{rK+1}, 0")
    e(f"s_mov_b32 s{rV+2}, 0x20000")
    e(f"s_mov_b32 s{rV+3}, 0x20000")
    ep = epiF(AB, sHoff)
    n1 = opt.get("ep1", 26)
    a.ds_wait_all()
    for f, c in ep[:n1]: f()
    sp.stamp("ep", lvl=5, nowait=True)
    a.vm_wait("poll")
    sp.stamp("pl", lvl=5, nowait=True)
    e(f"v_cmp_gt_u32 s[74:75], 16, v{vDum+3}")
    e(f"s_cmp_eq_u64 s[74:75], 0")
    e(f"s_cbranch_scc1 L_e2ok")
    sv = (list(a.vm), list(a.hist))
    for f, c in ep[n1:]: f()
    e("s_barrier")
    poll(vPoll, vDum + 3, 16, 1)
    qload(); e("s_waitcnt vmcnt(0)"); e(f"s_branch L_e2j")
    a.label("L_e2ok")
    a.vm, a.hist = sv
    sp.stamp("r2"); sp.stamp("ok", lvl=5, nowait=True)
    qload()
    for f, c in ep[n1:]: f()
    sp.stamp("ep2", lvl=5, nowait=True)
    e("s_barrier")
    a.label("L_e2j")
    kvload(1); kvload(2)
    sFlag, sIt, sOoff = 59, 60, 61
    e(f"s_mov_b32 s{sFlag}, 0")
    e(f"s_lshl2_add_u32 s{sOoff}, s{sQB}, s{sW}")
    e(f"s_lshl4_add_u32 s{sOoff}, s{sOoff}, s{sHead}")
    e(f"s_lshl_b32 s{sOoff}, s{sOoff}, 11")
    e(f"s_add_u32 s{sOoff}, s{sOoff}, {O_OFF}")
    for jj in range(4):
        e(f"s_add_u32 s{sT1}, s{sW}, {jj}")
        e(f"s_and_b32 s{sT1}, s{sT1}, 3")
        e(f"s_lshl_b32 s{sT1}, s{sT1}, 11")
        e(f"s_add_u32 s{sT1}, s{sT1}, {QX}")
        e(f"v_add_u32 v{T+2+jj}, s{sT1}, v{vSt}")
    zl = [] if opt.get("full", 0) else [O + r for r in range(64)] + [P + 8 + r for r in range(8)] + [KV + 56 + r for r in range(8)]
    def zero(n):
        for _ in range(n):
            if zl: e(f"v_mov_b32 v{zl.pop(0)}, 0")
    sp.stamp("pre", lvl=5, nowait=True)
    a.vm_wait("kv0")
    sp.stamp("kv0", lvl=5, nowait=True)
    e(f"v_mfma_f32_32x32x16_bf16 v[{Sx}:{Sx+15}], v[{KV}:{KV+3}], v[{Q}:{Q+3}], 0")
    e(f"v_mfma_f32_32x32x16_bf16 v[{Sx}:{Sx+15}], v[{KV+4}:{KV+7}], v[{Q+4}:{Q+7}], v[{Sx}:{Sx+15}]")
    zero(14)
    sp.stamp("qkv")
    def qk(n, half):
        i, j = (n // 4) % 4, n % 4
        d = Sx + 16 * (n % 2); k = KV + 16 * i + 4 * half; q = Q + 8 * j + 4 * half
        c = "0" if half == 0 else f"v[{d}:{d+15}]"
        e(f"v_mfma_f32_32x32x16_bf16 v[{d}:{d+15}], v[{k}:{k+3}], v[{q}:{q+3}], {c}")
    def pv(n, half):
        i, j = (n // 4) % 4, n % 4
        d = O + 16 * j; v = KV + 16 * i + 8 + 4 * half; p = P + 8 * (n % 2) + 4 * half
        e(f"v_mfma_f32_32x32x16_bf16 v[{d}:{d+15}], v[{v}:{v+3}], v[{p}:{p+3}], v[{d}:{d+15}]")
    def sm(n, g):
        s = Sx + 16 * (n % 2) + 4 * g; p = P + 8 * (n % 2) + 2 * g
        for k in range(4): e(f"v_exp_f32 v{s+k}, v{s+k}")
        e(f"v_cvt_pk_bf16_f32 v{p}, v{s}, v{s+1}")
        e(f"v_cvt_pk_bf16_f32 v{p+1}, v{s+2}, v{s+3}")
    M = T + 8
    def patch(jjs, bias):
        U = M + 4
        for jj in jjs: e(f"v_mov_b32 v{U+jj}, v{M+jj}")
        for jj in jjs: e(f"v_permlane32_swap_b32 v{M+jj}, v{U+jj}")
        for jj in jjs: e(f"v_max_f32 v{M+jj}, v{M+jj}, v{U+jj}")
        for jj in jjs: e(f"v_sub_f32 v{M+jj}, {hexf(-bias) if bias else 0}, v{M+jj}")
        for jj in jjs: e(f"v_cvt_pk_bf16_f32 v{U+jj}, v{M+jj}, v{M+jj}")
        for jj in jjs: e(f"v_and_b32 v{U+jj}, 0xffff0000, v{U+jj}")
        for jj in jjs: e(f"v_sub_f32 v{U+jj}, v{M+jj}, v{U+jj}")
        for jj in jjs: e(f"v_cvt_pk_bf16_f32 v{M+jj}, v{M+jj}, v{U+jj}")
        for jj in jjs: e(f"v_cndmask_b32 v{Q+8*jj+6}, v{M+jj}, v{Q+8*jj+6}, vcc")
        for jj in jjs: e(f"v_and_b32 v{M+jj}, 0xffff0000, v{M+jj}")
        for jj in jjs: e(f"v_sub_f32 v{U+jj}, v{U+jj}, v{M+jj}")
        for jj in jjs: e(f"v_cvt_pk_bf16_f32 v{U+jj}, v{U+jj}, 0")
        for jj in jjs: e(f"v_cndmask_b32 v{Q+8*jj+7}, v{U+jj}, v{Q+8*jj+7}, vcc")
    for k in range(4): e(f"v_max3_f32 v{M+4+k}, v{Sx+4*k}, v{Sx+4*k+1}, v{Sx+4*k+2}")
    for k in range(2): e(f"v_max3_f32 v{M+4+2*k}, v{M+4+2*k}, v{M+5+2*k}, v{Sx+8*k+3}")
    e(f"v_max3_f32 v{M}, v{Sx+7}, v{Sx+15}, v{M+4}")
    e(f"v_max_f32 v{M}, v{M}, v{M+6}")
    patch([0], BIAS)
    a.ds_op(f"ds_write_b128 v{T+2}, v[{Q}:{Q+3}]")
    a.ds_op(f"ds_write_b128 v{T+2}, v[{Q+4}:{Q+7}] offset:1024")
    zero(16)
    lds_sync(1, 4, T, T + 1, lambda: (qk(0, 0), qk(0, 1), zero(24)))
    for jj in range(1, 4):
        a.ds_op(f"ds_read_b128 v[{Q+8*jj}:{Q+8*jj+3}], v{T+2+jj}")
        a.ds_op(f"ds_read_b128 v[{Q+8*jj+4}:{Q+8*jj+7}], v{T+2+jj} offset:1024")
    zero(99)
    e("s_waitcnt vmcnt(8)")
    last_signals(0, 8, sRB, 12, T, T + 1)
    lds_arrive(2, T, T + 1)
    e(f"s_setprio {opt.get('attprio', 1)}")
    a.vm = []
    padat("preloop")
    sp.stamp("preloop"); sp.stamp("preloop", lvl=5)
    def pv0(n, half):
        i, j = (n // 4) % 4, n % 4
        d = O + 16 * j; v = KV + 16 * i + 8 + 4 * half; p = P + 8 * (n % 2) + 4 * half
        c = "0" if (n < 4 and half == 0) else f"v[{d}:{d+15}]"
        e(f"v_mfma_f32_32x32x16_bf16 v[{d}:{d+15}], v[{v}:{v+3}], v[{p}:{p+3}], {c}")
    def owrite(jj):
        for q in range(4):
            r = O + 16 * jj + 4 * q
            a.ds_op(f"ds_write_b128 v{T+jj}, v[{r}:{r+3}] offset:{(jj-1)*4096 + q*1024}")
    for jj in range(4):
        e(f"s_add_u32 s{sT1}, s{sW}, {jj}")
        e(f"s_and_b32 s{sT1}, s{sT1}, 3")
        e(f"s_mul_i32 s{sT1}, s{sT1}, 12288")
        e(f"s_add_u32 s{sT1}, s{sT1}, {ATT_LDS}")
        e(f"v_add_u32 v{T+jj}, s{sT1}, v{vSt}")
    FULL = opt.get("full", 0)
    def slot_code(n, first):
        ti, j = divmod(n, 4)
        if j == 3 and ti < 15: e(f"s_waitcnt vmcnt({4 * min(2, 14 - ti)})")
        if n + 1 < 64: qk(n + 1, 0)
        sm(n, 0)
        if n + 1 < 64: qk(n + 1, 1)
        sm(n, 1)
        if n or not first: (pv0 if first else pv)(n + 15 if n == 0 else n - 1, 0)
        sm(n, 2)
        if n or not first: (pv0 if first else pv)(n + 15 if n == 0 else n - 1, 1)
        if j == 0 and ti + 3 < 16:
            for k in range(4):
                r = KV + 16 * ((ti + 3) % 4) + 4 * k
                e(f"buffer_load_dwordx4 v[{r}:{r+3}], v{vSt}, {S(rK if k < 2 else rV)}, s{sRun} offen offset:{2048*(ti%2) + 1024*(k%2)}{LD}")
            if ti % 2:
                e(f"s_add_u32 s{sRun}, s{sRun}, 4096")
                e(f"s_and_b32 s{sRun}, s{sRun}, 0x1ffff")
        if n == 60:
            e(f"v_mov_b32 v{T+4}, {SYNC}")
            a.ds_op(f"ds_read_b32 v{T+5}, v{T+4}", "chk")
        if n == 63:
            lds_check(0, 8, T + 4, T + 5)
            owrite(1)
        sm(n, 3)
    if FULL:
        a.raw(".p2align 6")
        for n in range(64): slot_code(n, True)
    else:
        e(f"s_mov_b32 s{sIt}, 2")
        a.raw(".p2align 6")
        a.label("L_loop")
        start = len(a.lines)
        for n in range(16): slot_code(n, False)
        e(f"s_sub_u32 s{sIt}, s{sIt}, 1")
        e("s_cbranch_scc0 L_loop")
        check_loop(a.lines[start:])
        for n in range(48, 64): slot_code(n, False)
    pv0(63, 0); pv0(63, 1)
    owrite(2)
    padat("loop")
    sp.stamp("loop"); sp.stamp("loop", lvl=4)
    a.vm = []
    owrite(3)
    sp.stamp("wr", lvl=4)
    lds_sync(7, 4, T + 4, T + 5)
    sp.stamp("sy", lvl=4)
    for p in range(3):
        for q in range(4):
            r = O + 16 + 16 * p + 4 * q
            a.ds_op(f"ds_read_b128 v[{r}:{r+3}], v{T} offset:{p*4096 + q*1024}", f"p{p}")
    for p in range(3):
        a.ds_wait(f"p{p}")
        for k in range(16): e(f"v_add_f32 v{O+k}, v{O+k}, v{O+16+16*p+k}")
    sp.stamp("rd", lvl=4)
    a.label("L_norm")
    e(f"v_mov_b32 v{T}, v{O+12}")
    e(f"v_mov_b32 v{T+1}, v{O+12}")
    e(f"v_permlane32_swap_b32 v{T}, v{T+1}")
    e(f"v_rcp_f32 v{T}, v{T+1}")
    e(f"v_mov_b32 v{T+2}, 0")
    for k in range(16): e(f"v_mul_f32 v{O+k}, v{O+k}, v{T}")
    for k in range(8): e(f"v_cvt_pk_bf16_f32 v{P+k}, v{O+2*k}, v{O+2*k+1}")
    e(f"v_cndmask_b32 v{P+6}, 0, v{P+6}, vcc")
    e(f"v_cndmask_b32 v{P+7}, 0, v{P+7}, vcc")
    e(f"buffer_store_dwordx4 v[{P}:{P+3}], v{vSt}, {S(rWS)}, s{sOoff} offen{ST}")
    e(f"buffer_store_dwordx4 v[{P+4}:{P+7}], v{vSt}, {S(rWS)}, s{sOoff} offen offset:1024{ST}")
    for k in range(16): e(f"v_fmac_f32 v{T+2}, 0, v{O+k}")
    e(f"v_mov_b32 v{T+3}, {hexf(2.0**-(BIAS+8))}")
    e(f"v_cmp_u_f32 s[66:67], v{T+2}, v{T+2}")
    e(f"v_cmp_lt_f32 s[74:75], v{T+1}, v{T+3}")
    e(f"s_or_b64 s[66:67], s[66:67], s[74:75]")
    e(f"s_cmp_eq_u64 s[66:67], 0")
    e(f"s_cselect_b32 s{sT1}, 1, s{sFlag}")
    e(f"s_cmp_eq_u32 s{sT1}, 0")
    e(f"s_cbranch_scc1 L_slow")
    sp.stamp("chk", lvl=4)
    e(f"s_waitcnt vmcnt(0)")
    sp.stamp("ost"); sp.stamp("ost", lvl=4)
    e(f"s_lshl2_add_u32 s{sT2}, s{sQB}, s{sW}")
    e(f"s_lshr_b32 s{sT3}, s{sHead}, 2")
    e(f"s_lshl2_add_u32 s{sT2}, s{sT2}, s{sT3}")
    signal(sT2, 28, T + 4, T + 5)
    lds_arrive(9, T + 6, T + 7)
    hdiag(0)
    sp.dump(pWS, sW)
    e("s_endpgm")
    a.label("L_slow")
    a.reset_hist()
    e(f"s_waitcnt vmcnt(0)")
    e(f"s_mov_b32 s{sFlag}, 1")
    e(f"s_mov_b32 s{rK+2}, 0x20000")
    e(f"s_mov_b32 s{rV+2}, 0x20000")
    e(f"v_cndmask_b32 v{Q+6}, 0, v{Q+6}, vcc")
    e(f"v_cndmask_b32 v{Q+7}, 0, v{Q+7}, vcc")
    e(f"v_mov_b32 v{M}, 0xff800000")
    e(f"s_mov_b32 s{sRun}, 0")
    e(f"s_mov_b32 s{sIt}, 64")
    a.label("L_s1")
    start = len(a.lines)
    e(f"buffer_load_dwordx4 v[{KV}:{KV+3}], v{vSt}, {S(rK)}, s{sRun} offen{LD}")
    e(f"buffer_load_dwordx4 v[{KV+4}:{KV+7}], v{vSt}, {S(rK)}, s{sRun} offen offset:1024{LD}")
    e("s_waitcnt vmcnt(0)")
    e(f"v_mfma_f32_32x32x16_bf16 v[{Sx}:{Sx+15}], v[{KV}:{KV+3}], v[{Q}:{Q+3}], 0")
    e(f"v_mfma_f32_32x32x16_bf16 v[{Sx}:{Sx+15}], v[{KV+4}:{KV+7}], v[{Q+4}:{Q+7}], v[{Sx}:{Sx+15}]")
    for k in range(8): e(f"v_max3_f32 v{M}, v{M}, v{Sx+2*k}, v{Sx+2*k+1}")
    e(f"s_add_u32 s{sRun}, s{sRun}, 2048")
    e(f"s_sub_u32 s{sIt}, s{sIt}, 1")
    e(f"s_cmp_lg_u32 s{sIt}, 0")
    e("s_cbranch_scc1 L_s1")
    check_loop(a.lines[start:])
    patch([0], 0.0)
    for r in range(16): e(f"v_mov_b32 v{O+r}, 0")
    e(f"s_mov_b32 s{sRun}, 0")
    e(f"s_mov_b32 s{sIt}, 64")
    a.label("L_s2")
    start = len(a.lines)
    for k in range(4):
        e(f"buffer_load_dwordx4 v[{KV+4*k}:{KV+4*k+3}], v{vSt}, {S(rK if k < 2 else rV)}, s{sRun} offen offset:{1024*(k%2)}{LD}")
    e("s_waitcnt vmcnt(0)")
    qk(0, 0); qk(0, 1)
    for g in range(4): sm(0, g)
    pv(0, 0); pv(0, 1)
    e(f"s_add_u32 s{sRun}, s{sRun}, 2048")
    e(f"s_sub_u32 s{sIt}, s{sIt}, 1")
    e(f"s_cmp_lg_u32 s{sIt}, 0")
    e("s_nop 11")
    e("s_cbranch_scc1 L_s2")
    check_loop(a.lines[start:])
    e("s_branch L_norm")
    a.label("L_gemm")
    a.reset_hist(); a.vm = []; a.lg = []; sp.set(nst)
    ACCG, HR, WFR, T, WO_F, XF, GF = 16, 80, 136, 152, 160, 224, 136
    OF = HR
    GF = 240
    vA0, vA1, vIO, vCt = 4, 5, 6, 7
    sH0, sH1, sI0 = 59, 60, 61
    DP = opt.get("gdepth", 5)
    PACE = opt.get("pace", 4)
    def pace():
        nonlocal PACE
        if PACE and len(a.vm) > PACE:
            e(f"s_waitcnt vmcnt({PACE})"); a.vm = a.vm[-PACE:]
    e(f"s_setprio 2")
    e(f"s_waitcnt vmcnt(0)")
    last_signals(0, 8, sRB, 12, T, T + 1)
    e(f"s_cmp_ge_u32 s{sJ}, 28")
    e(f"s_cbranch_scc1 L_end")
    e(f"s_setprio {opt.get('gprio0', 2)}")
    lds_sync(3, 4, T, T + 1)
    srd(a, rW, pWO, WO_BYTES)
    e(f"s_sub_u32 s{sWq}, s{sW}, 4")
    e(f"s_mul_i32 s{sT1}, s{sJ}, 37")
    e(f"s_lshr_b32 s{sT1}, s{sT1}, 8")
    e(f"s_mul_i32 s{sT2}, s{sT1}, 7")
    e(f"s_sub_u32 s{sCB}, s{sJ}, s{sT2}")
    e(f"s_lshl2_add_u32 s{sTB}, s{sX}, s{sT1}")
    e(f"s_lshl_b32 s{sCB}, s{sCB}, 7")
    e(f"s_mul_i32 s{sLB}, s{sWq}, 12288")
    dma_voff(a, vLane, vD, T, T + 1)
    e(f"v_and_b32 v{T}, 31, v{vLane}")
    e(f"v_mul_u32_u24 v{T}, 896, v{T}")
    e(f"v_lshrrev_b32 v{T+1}, 5, v{vLane}")
    e(f"v_lshl_add_u32 v{vIO}, v{T+1}, 3, v{T}")
    e(f"s_and_b32 s{sT1}, s{sWq}, 1")
    e(f"s_lshl1_add_u32 s{sT3}, s{sTB}, s{sT1}")
    e(f"s_mul_i32 s{sI0}, s{sT3}, {32*896}")
    e(f"s_add_u32 s{sI0}, s{sI0}, s{sCB}")
    e(f"s_lshr_b32 s{sT2}, s{sWq}, 1")
    e(f"s_lshl_b32 s{sT2}, s{sT2}, 6")
    e(f"s_add_u32 s{sI0}, s{sI0}, s{sT2}")
    def issue_w(s):
        st = s % 6
        e(f"s_add_u32 m0, s{sLB}, {st*2048}")
        e(f"s_add_u32 s{sT1}, s{sWo}, {8*896}")
        a.vm_op(f"buffer_load_dwordx4 v{vD}, {S(rB)}, s{sWo} offen lds", f"s{s}")
        e(f"s_add_u32 m0, s{sLB}, {st*2048+1024}")
        e(f"s_add_u32 s{sWo}, s{sWo}, {16*896}")
        a.vm_op(f"buffer_load_dwordx4 v{vD}, {S(rB)}, s{sT1} offen lds", f"s{s}")
    srd(a, rB, pW2, W2_BYTES)
    e(f"s_mul_i32 s{sWo}, s{sWq}, {448*896}")
    e(f"s_add_u32 s{sWo}, s{sWo}, s{sCB}")
    for s in range(6): issue_w(s); pace()
    e(f"s_mul_i32 s{sH0}, s{sT3}, 112")
    e(f"s_xor_b32 s{sT3}, s{sT3}, 1")
    e(f"s_mul_i32 s{sH1}, s{sT3}, 112")
    e(f"s_mul_i32 s{sT1}, s{sWq}, 28")
    e(f"s_add_u32 s{sT1}, s{sT1}, {H_OFF >> 10}")
    e(f"s_add_u32 s{sH0}, s{sH0}, s{sT1}")
    e(f"s_add_u32 s{sH1}, s{sH1}, s{sT1}")
    e(f"s_lshl_b32 s{sH0}, s{sH0}, 10")
    e(f"s_lshl_b32 s{sH1}, s{sH1}, 10")
    e(f"s_xor_b32 s{sT2}, s{sT2}, s{sLB}")
    tr_addr(a, vLane, vA0, vA1, T, T + 1, T + 2, sT2, xor=True)
    def wr(s, d0, off, wait=True):
        if wait: a.vm_wait(f"s{s}")
        for ct in range(2):
            d = d0 + ct * 4
            ad = vA0 if ct == 0 else vA1
            a.ds_op(f"ds_read_b64_tr_b16 v[{d}:{d+1}], v{ad} offset:{off}", f"w{s}")
            a.ds_op(f"ds_read_b64_tr_b16 v[{d+2}:{d+3}], v{ad} offset:{off+1024}", f"w{s}")
    e(f"s_lshr_b32 s{sT1}, s{sTB}, 1")
    e(f"s_lshl_b32 s{sT1}, s{sT1}, 7")
    e(f"s_add_u32 s{sT1}, s{sT1}, {12*128}")
    e(f"v_mov_b32 v{vCt}, s{sT1}")
    def issue_h(s):
        st = s % 6
        off = (s % 4) * 1024
        a.vm_op(f"buffer_load_dwordx4 v[{HR+8*st}:{HR+8*st+3}], v{vSt}, {S(rWS)}, s{sH0} offen offset:{off}{LD}", f"s{s}")
        a.vm_op(f"buffer_load_dwordx4 v[{HR+8*st+4}:{HR+8*st+7}], v{vSt}, {S(rWS)}, s{sH1} offen offset:{off}{LD}", f"s{s}")
        if s % 4 == 3:
            e(f"s_add_u32 s{sH0}, s{sH0}, 4096")
            e(f"s_add_u32 s{sH1}, s{sH1}, 4096")
    e(f"s_cmp_lg_u32 s{sWq}, 0")
    e(f"s_cbranch_scc1 L_hw")
    poll(vCt, T + 1, 16, opt.get("hsleep", 4))
    lds_arrive(8, T, T + 1)
    a.label("L_hw")
    lds_spin(2, 4, T, T + 1, 3)
    lds_spin(8, 1, T, T + 1, 3)
    e(f"s_waitcnt vmcnt(0)")
    sp.stamp("hrdy")
    for s in range(DP): issue_h(s)
    e(f"s_setprio {opt.get('gprio', 0)}")
    def mm(s, w, h):
        for ct in range(2):
            for tt in range(2):
                d = ACCG + (2*ct+tt) * 16
                c = "0" if s == 0 else f"v[{d}:{d+15}]"
                e(f"v_mfma_f32_32x32x16_bf16 v[{d}:{d+15}], v[{w+4*ct}:{w+4*ct+3}], v[{h+4*tt}:{h+4*tt+3}], {c}")
    wr(0, WFR, 0)
    XG = 144
    late = []
    def wo_first():
        e(f"s_mul_i32 s{sH0}, s{sWq}, 15360")
        e(f"s_mul_i32 s{sWo}, s{sWq}, {112*896}")
        e(f"s_add_u32 s{sWo}, s{sWo}, s{sCB}")
    def wo_dma(i):
        if i == 0: wo_first()
        e(f"s_add_u32 m0, s{sH0}, {WO_LDS + i*1024}")
        if i: e(f"s_add_u32 s{sWo}, s{sWo}, {8*896}")
        a.vm_op(f"buffer_load_dwordx4 v{vD}, {S(rW)}, s{sWo} offen lds", "wo")
    XG = XF + 8
    for i in range(15): late.append(lambda i=i: wo_dma(i))
    for q in range(4):
        late.append(lambda q=q: a.vm_op(f"buffer_load_dwordx2 v[{XG+2*q}:{XG+2*q+1}], v{vIO}, {S(rX)}, s{sI0} offen offset:{16*q}", "xg"))
    TOP = opt.get("gtop", 0)
    for s in range(28):
        if TOP and s > 0:
            if s + 1 < 28: a.vm_wait(f"s{s+1}")
            if 6 <= s + DP - 1 < 28: issue_w(s + DP - 1)
            if s + DP - 1 < 28: issue_h(s + DP - 1)
        if s + 1 < 28: wr(s + 1, WFR + ((s + 1) % 2) * 8, ((s + 1) % 6) * 2048)
        a.ds_wait(f"w{s}")
        if not opt.get("x_nogm") or s == 0: mm(s, WFR + (s % 2) * 8, HR + 8 * (s % 6))
        if opt.get("x_nogl") or TOP: continue
        if 6 <= s + DP < 28: issue_w(s + DP)
        if s + DP < 28: issue_h(s + DP)
        else:
            for _ in range(4):
                if late: late.pop(0)()
    while late: late.pop(0)()
    sp.stamp("w2")
    e(f"s_setprio {opt.get('gprio3', 0)}")
    def exchange(k):
        e(f"v_add_u32 v{T}, s{sLB}, v{vSt}")
        for sl in range(1, 4):
            for q in range(4):
                r = ACCG + 16 * sl + 4 * q
                a.ds_op(f"ds_write_b128 v{T}, v[{r}:{r+3}] offset:{(sl-1)*4096 + q*1024}")
            e(f"s_xor_b32 s{sT1}, s{sWq}, {sl}")
            e(f"s_mul_i32 s{sT1}, s{sT1}, 12288")
            e(f"v_add_u32 v{T+2+sl}, s{sT1}, v{vSt}")
        if k == 6: sp.stamp("wr", lvl=4)
        lds_sync(k, 4, T + 1, T + 2)
        if k == 6: sp.stamp("sy", lvl=4)
        for p in range(3):
            for q in range(4):
                r = ACCG + 16 + 16 * p + 4 * q
                a.ds_op(f"ds_read_b128 v[{r}:{r+3}], v{T+3+p} offset:{p*4096 + q*1024}", f"p{p}")
        for p in range(3):
            a.ds_wait(f"p{p}")
            for kk in range(16): e(f"v_add_f32 v{ACCG+kk}, v{ACCG+kk}, v{ACCG+16+16*p+kk}")
    exchange(4)
    U = ACCG + 16
    for k in range(16): e(f"v_mul_f32 v{U+k}, {hexf(-LOG2E)}, v{ACCG+k}")
    for k in range(16): e(f"v_exp_f32 v{U+k}, v{U+k}")
    for k in range(16): e(f"v_add_f32 v{U+k}, 1.0, v{U+k}")
    for k in range(16): e(f"v_rcp_f32 v{U+k}, v{U+k}")
    for k in range(16): e(f"v_mul_f32 v{GF+k}, v{ACCG+k}, v{U+k}")
    e(f"s_mul_i32 s{sT2}, s{sWq}, 15360 - 12288")
    e(f"s_add_u32 s{sT2}, s{sT2}, {WO_LDS}")
    e(f"v_add_u32 v{vA0}, s{sT2}, v{vA0}")
    e(f"v_add_u32 v{vA1}, s{sT2}, v{vA1}")
    a.vm_wait("xg")
    for s in range(8):
        wr(100 + s, WO_F + 8 * s, (28 * (s // 2) + 16 * (s % 2)) * 128, wait=False)
    for k in range(8):
        if k < 7:
            e(f"v_lshlrev_b32 v{XF+2*k}, 16, v{XG+k}")
            e(f"v_and_b32 v{XF+2*k+1}, 0xffff0000, v{XG+k}")
        else:
            e(f"v_lshlrev_b32 v{XF+14}, 16, v{XG+7}")
            e(f"v_and_b32 v{XF+15}, 0xffff0000, v{XG+7}")
    a.ds_wait_all()
    lds_sync(5, 4, T + 1, T + 2)
    srd(a, rW3, pOUT, X_BYTES)
    e(f"s_and_b32 s{sT1}, s{sWq}, 1")
    e(f"s_lshl1_add_u32 s{sT1}, s{sTB}, s{sT1}")
    e(f"s_lshl_b32 s{sH0}, s{sT1}, 15")
    e(f"s_lshl_b32 s{sT1}, s{sWq}, 13")
    e(f"s_add_u32 s{sH0}, s{sH0}, s{sT1}")
    e(f"s_add_u32 s{sH0}, s{sH0}, {O_OFF}")
    e(f"s_xor_b32 s{sH1}, s{sH0}, 32768")
    e(f"v_min_u32 v{T}, 1, v{vLane}")
    e(f"v_lshlrev_b32 v{T}, 2, v{T}")
    e(f"s_lshl3_add_u32 s{sT1}, s{sTB}, s{sWq}")
    e(f"s_add_u32 s{sT1}, s{sT1}, 28")
    e(f"v_add_lshl_u32 v{vCt}, v{T}, s{sT1}, 7")
    e(f"v_lshrrev_b32 v{T}, 5, v{vLane}")
    e(f"v_lshl_add_u32 v{vIO}, v{T}, 3, v{vIO}")
    sp.stamp("grdy")
    lds_spin(9, 4, T, T + 1, 3)
    e(f"s_setprio 2")
    poll(vCt, T + 1, 4, opt.get("osleep", 1))
    sp.stamp("ordy"); sp.stamp("ordy", lvl=4)
    for s in range(8):
        if s == 4:
            e(f"s_add_u32 s{sH0}, s{sH0}, 4096")
            e(f"s_add_u32 s{sH1}, s{sH1}, 4096")
        a.vm_op(f"buffer_load_dwordx4 v[{OF+8*s}:{OF+8*s+3}], v{vSt}, {S(rWS)}, s{sH0} offen offset:{(s%4)*1024}{LD}", f"o{s}")
        a.vm_op(f"buffer_load_dwordx4 v[{OF+8*s+4}:{OF+8*s+7}], v{vSt}, {S(rWS)}, s{sH1} offen offset:{(s%4)*1024}{LD}", f"o{s}")
    sp.stamp("oiss", lvl=4, nowait=True)
    for s in range(8):
        a.vm_wait(f"o{s}")
        if s in (0, 7): sp.stamp("o", lvl=4, nowait=True)
        mm(s, WO_F + 8 * s, OF + 8 * s)
    exchange(6)
    sp.stamp("ex", lvl=4)
    for k in range(16): e(f"v_fma_f32 v{ACCG+k}, v{ACCG+k}, v{GF+k}, v{XF+k}")
    for k in range(8): e(f"v_cvt_pk_bf16_f32 v{U+k}, v{ACCG+2*k}, v{ACCG+2*k+1}")
    for pr in range(2):
        e(f"v_permlane32_swap_b32 v{U+4*pr}, v{U+4*pr+2}")
        e(f"v_permlane32_swap_b32 v{U+4*pr+1}, v{U+4*pr+3}")
    e(f"buffer_store_dwordx4 v[{U}:{U+3}], v{vIO}, {S(rW3)}, s{sI0} offen{opt.get('ost', '')}")
    e(f"buffer_store_dwordx4 v[{U+4}:{U+7}], v{vIO}, {S(rW3)}, s{sI0} offen offset:32{opt.get('ost', '')}")
    hdiag(1)
    if opt.get("padg"):
        e("v_mov_b32 v0, 0")
        e(f"global_load_dword v0, v0, s[{pDBG}:{pDBG+1}] offset:4 sc1")
        e("s_waitcnt vmcnt(0)")
        e("v_readfirstlane_b32 s76, v0")
        e("s_not_b32 s76, s76")
    if opt.get("pad"):
        a.label("L_pad")
        e("s_memrealtime s[80:81]")
        e("s_waitcnt lgkmcnt(0)")
        e("s_sub_u32 s80, s80, s76")
        e(f"s_cmp_lt_u32 s80, {opt['pad']}")
        e("s_cbranch_scc1 L_pad")
    sp.stamp("end"); sp.stamp("end", lvl=4)
    if sp.on == 4: e("s_waitcnt vmcnt(0)")
    sp.stamp("drain", lvl=4)
    sp.dump(pWS, sW)
    a.label("L_end")
    e("s_endpgm")
    return kd(NAME, 256)

if __name__ == "__main__":
    opt = json.loads(sys.argv[2]) if len(sys.argv) > 2 else {}
    a = Asm()
    a.raw("; one workgroup per CU; workgroups hand data over through d_ws (write-through stores + counters)")
    a.raw("; @launch grid=(256,1,1) block=(512,1,1) lds=163840")
    a.raw('.amdgcn_target "amdgcn-amd-amdhsa--gfx950"')
    a.raw(".text")
    k = gen(a, opt)
    a.raw("L_code_end:")
    a.raw(".fill 64, 4, 0xbf800000")
    a.raw("    s_endpgm")
    a.raw('.section .rodata,"a"')
    a.raw(k)
    open(sys.argv[1], "w").write(a.text())
    print("nops inserted:", a.nops, "lines:", len(a.lines))
```

```python
import sys, json
from common import *
from gemm64 import *
BIAS = 32.0
NAME = "recurrent_scan__softmax_full_mha__glu_gated_swiglu__prompt_kernel"

def gen(a, opt):
    BIAS = float(opt.get("bias", 64))
    ST = opt.get("st", " sc1")
    LD = " sc1"
    NPH = opt.get("nph", 2)
    kernel_head(a, NAME)
    e = a.e
    uid = [0]
    def lab(p):
        uid[0] += 1; return f"L_{p}{uid[0]}"
    pX, pWQ, pWO, pW1, pW3, pW2, pOUT, pDBG, pWS = 4, 6, 8, 12, 14, 16, 18, 20, 22
    rX, rW1, rW3, rA, rB, rWS = 24, 28, 32, 36, 40, 44
    S = lambda r: f"s[{r}:{r+3}]"
    sW, sTT, sG, sRB, sCOL, sTTG = 48, 49, 50, 51, 52, 53
    sSO = [[54, 55], [56, 56], [57, 57]]
    sP64, sM0, sCurA, sCurB, sOnes, sLo, sHi, sHoff, sQKoff, sQKstep = 58, 59, 60, 61, 62, 63, 64, 65, 66, 67
    sT1, sT2, sT3, sStat, sPh, sHoff2 = 68, 69, 70, 71, 72, 73
    X0, AA, AB, WF, T0 = 16, 128, 160, 192, 216
    vLane, vSt, vD0, vD1, vD2B = 1, 2, 3, 4, 250
    vTB = [[5, 6], [7, 8], [9, 243]]
    vTW = [10, 11]
    vXR = [12, 13, 14, 15]
    vK, vC1, vSc, vP6, vP7, vFlag, vV3, vV4 = 232, 233, 234, 236, 237, 238, 239, 235
    vXW = [240, 241]; vStat = 242; vNM = 243; vAcc = [244, 245, 246, 247]; vV1, vV2 = 248, 249
    vDum = 251
    RAW = 128
    SCR = 7 * 16384
    SYNC = 163840 - 256
    e("s_cmp_ge_u32 s2, 256")
    e("s_cbranch_scc1 L_end")
    sp = Stamper(a, opt.get("stamp"), 0); sp.allreal = opt.get("rt")
    sp.stamp("rt", True); sp.stamp("start")
    if opt.get("hdiag") or opt.get("pad") or opt.get("padat"): e("s_memrealtime s[76:77]"); e("s_memtime s[78:79]")
    e("s_load_dwordx16 s[4:19], s[0:1], 0")
    e("s_load_dwordx4 s[20:23], s[0:1], 64")
    RL = opt.get("rl", 3)
    sWR, sXa, sXb, sGS = sStat, sOnes, sLo, sHi
    e(f"v_lshrrev_b32 v22, 6, v0")
    e(f"v_and_b32 v{vLane}, 63, v0")
    e(f"v_readfirstlane_b32 s{sW}, v22")
    e(f"s_and_b32 s{sT1}, s2, {(16 >> RL) - 1}")
    e(f"s_bfe_u32 s{sT2}, s2, {hex((RL << 16) | 3)}")
    e(f"s_lshl{RL}_add_u32 s{sRB}, s{sT1}, s{sT2}")
    e(f"s_bfe_u32 s{sT1}, s2, {hex(((RL - 1) << 16) | (4 - RL))}")
    e(f"s_lshr_b32 s{sT2}, s2, {3 + RL}")
    e(f"s_lshl2_add_u32 s{sSO[1][0]}, s{sT1}, s{sT2}")
    if opt.get("mix", 1): e(f"s_lshl2_add_u32 s{sCOL}, s{sT2}, s{sT1}")
    else: e(f"s_mov_b32 s{sCOL}, s{sSO[1][0]}")
    e(f"v_bfe_u32 v22, v0, 3, 3")
    e(f"v_and_b32 v23, 7, v0")
    e(f"s_lshl_b32 s{sT1}, s{sT2}, 2")
    e(f"s_and_b32 s{sWR}, s{sT1}, 4")
    e(f"s_xor_b32 s{sWR}, s{sWR}, s{sW}")
    e(f"s_and_b32 s{sGS}, s{sT1}, 8")
    e(f"s_lshl3_add_u32 s{sT1}, s{sRB}, s{sWR}")
    e(f"s_lshl4_add_u32 s{sT2}, s{sT1}, s{sGS}")
    e(f"s_xor_b32 s{sT1}, s{sT2}, 8")
    e(f"s_mulk_i32 s{sT2}, 896")
    e(f"s_mulk_i32 s{sT1}, 896")
    e(f"v_mul_u32_u24 v24, 896, v22")
    e(f"v_lshl_add_u32 v24, v23, 4, v24")
    e(f"s_mov_b32 s{rX+2}, {hex(X_BYTES)}")
    e(f"s_mov_b32 s{rX+3}, 0x20000")
    e(f"s_cmp_ge_u32 s{sW}, 4")
    e("s_waitcnt lgkmcnt(0)")
    e(f"s_mov_b64 s[{rX}:{rX+1}], s[{pX}:{pX+1}]")
    for p in (pWQ, pW1, pW3)[:opt.get("stouch", 3)]: e(f"s_load_dword s{sQKoff}, s[{p}:{p+1}], 0")
    def xloads(lo, hi, sa, sb):
        for k in range(lo, hi):
            gi, i = divmod(k, 7)
            r = RAW + k * 4
            e(f"buffer_load_dwordx4 v[{r}:{r+3}], v24, {S(rX)}, s{sa if gi == 0 else sb} offen offset:{i*128}{opt.get('xnt', '')}")
    def touch():
        sh = opt.get("touchsh", 21)
        e(f"v_min_u32 v25, {(WS_USED >> sh) - 1}, v{vLane}")
        e(f"v_lshlrev_b32 v25, {sh}, v25")
        e(f"global_load_dword v{vDum+1}, v25, s[{pWS}:{pWS+1}]")
        e(f"v_mov_b32 v25, 0")
        for p in (pW1, pW3, pWQ, pW2, pWO, pOUT, pDBG):
            e(f"global_load_dword v{vDum+1}, v25, s[{p}:{p+1}]")
    XE = opt.get("xe", 10)
    e(f"s_cbranch_scc1 L_x0")
    a.skip_begin(); xloads(0, XE, sT2, sT1)
    e(f"s_branch L_x1")
    a.label("L_x0")
    e(f"s_getpc_b64 s[74:75]")
    a.label("L_pc")
    e(f"s_add_u32 s74, s74, {NAME}-L_pc")
    e(f"s_addc_u32 s75, s75, -1")
    e(f"s_lshr_b32 s3, s2, 3")
    e(f"s_lshl_b32 s3, s3, 7")
    e(f"v_and_b32 v20, 255, v0")
    e(f"v_lshl_add_u32 v20, v20, 12, s3")
    e(f"v_min_u32 v{vDum}, L_code_end-{NAME}-4, v20")
    e(f"global_load_dword v{vDum}, v{vDum}, s[74:75]")
    if opt.get("touch") == 1: touch()
    a.skip_end()
    a.label("L_x1")
    sp.stamp("xiss", lvl=3)
    if opt.get("stouch2", 0):
        e(f"s_lshl_b32 s3, s{sW}, 21")
        e(f"s_load_dword s{sQKoff}, s[{pWS}:{pWS+1}], s3")
        e(f"s_mov_b32 s3, {16 << 20}")
        e(f"s_load_dword s{sQKoff}, s[{pWS}:{pWS+1}], s3")
        for p in (pW2, pWO, pOUT, pDBG): e(f"s_load_dword s{sQKoff}, s[{p}:{p+1}], 0")
    e(f"s_mov_b32 s{sXa}, s{sT2}")
    e(f"s_mov_b32 s{sXb}, s{sT1}")
    def padat(nm):
        if opt.get("padat", [None])[0] != nm: return
        l = lab("pa"); a.label(l)
        e("s_memrealtime s[80:81]")
        e("s_waitcnt lgkmcnt(0)"); a.lg = []
        e("s_sub_u32 s80, s80, s76")
        e(f"s_cmp_lt_u32 s80, {opt['padat'][1]}")
        e(f"s_cbranch_scc1 {l}")
    def srd2(d, base, nbytes):
        e(f"s_mov_b64 s[{d}:{d+1}], s[{base}:{base+1}]")
        e(f"s_mov_b32 s{d+2}, {hex(nbytes)}")
        e(f"s_mov_b32 s{d+3}, 0x20000")
    if opt.get("wsoff"):
        e(f"s_add_u32 s{pWS}, s{pWS}, {opt['wsoff'] << 20}")
        e(f"s_addc_u32 s{pWS+1}, s{pWS+1}, 0")
    srd2(rWS, pWS, WS_USED)
    if opt.get("padg"):
        e("s_cmp_ge_u32 s2, 8")
        e("s_cbranch_scc1 L_pg")
        e(f"s_cmp_lg_u32 s{sW}, 7")
        e("s_cbranch_scc1 L_pg")
        e("s_not_b32 s80, s76")
        e("v_mov_b32 v25, 0"); e("v_mov_b32 v26, s80")
        e(f"global_atomic_umax v25, v26, s[{pDBG}:{pDBG+1}] offset:4 sc1")
        a.label("L_pg")
    e(f"s_and_b32 s{sTT}, s{sW}, 3")
    e(f"s_lshr_b32 s{sG}, s{sW}, 2")
    e(f"s_lshl_b32 s{sM0}, s{sW}, 10")
    e(f"s_lshl_b32 s{sPh}, s{sG}, 1")
    sTc0a, sTc0b = sCurA, sCurB
    e(f"s_cmp_ge_u32 s{sCOL}, 12")
    e(f"s_cbranch_scc1 L_r0f")
    srd2(rA, pWQ, WQ_BYTES)
    e(f"s_mov_b64 s[{rB}:{rB+1}], s[{pWQ}:{pWQ+1}]")
    e(f"s_and_b32 s{sT2}, s{sCOL}, 3")
    e(f"s_mul_i32 s{sSO[0][0]}, s{sCOL}, 224")
    e(f"s_cmp_eq_u32 s{sT2}, 3")
    e(f"s_cselect_b32 s{sT3}, 32, 0")
    e(f"s_sub_u32 s{sSO[0][0]}, s{sSO[0][0]}, s{sT3}")
    e(f"s_add_u32 s{sSO[0][1]}, s{sSO[0][0]}, 128")
    e(f"s_mul_i32 s{sTc0a}, s{sG}, 112")
    e(f"s_add_u32 s{sTc0a}, s{sTc0a}, s{sT3}")
    e(f"s_add_u32 s{sTc0b}, s{sTc0a}, 56")
    e(f"s_movk_i32 s{sP64}, 2688")
    e(f"s_branch L_r0j")
    a.label("L_r0f")
    srd2(rA, pW1, W1_BYTES)
    e(f"s_mov_b64 s[{rB}:{rB+1}], s[{pW3}:{pW3+1}]")
    e(f"s_add_u32 s{sT1}, s{sCOL}, 12")
    e(f"s_lshl_b32 s{sSO[0][0]}, s{sT1}, 7")
    e(f"s_mov_b32 s{sSO[0][1]}, s{sSO[0][0]}")
    e(f"s_lshl_b32 s{sTc0a}, s{sG}, 6")
    e(f"s_add_u32 s{sTc0b}, s{sTc0a}, 128")
    e(f"s_movk_i32 s{sP64}, 3584")
    a.label("L_r0j")
    a.reset_hist()
    e(f"s_mov_b32 s{rB+2}, s{rA+2}")
    e(f"s_mov_b32 s{rB+3}, 0x20000")
    e(f"s_and_b32 s{sT3}, s{sRB}, {(1 << RL) - 1}")
    ER = opt.get("erows", 448)
    def wpf0():
        e(f"s_cmp_ge_u32 s{sW}, 4")
        e(f"s_cselect_b32 s{sT1}, {ER}, 0")
        e(f"s_cselect_b32 s{sT2}, {(448 - ER) // 4}, {ER // 4}")
        e(f"s_mul_i32 s{sQKstep}, s{sTT}, s{sT2}")
        e(f"s_add_u32 s{sT1}, s{sT1}, s{sQKstep}")
        e(f"s_add_u32 s{sT1}, s{sT1}, s{sT3}")
        e(f"s_lshr_b32 s{sT2}, s{sT2}, {RL}")
        e(f"s_sub_u32 s{sT2}, s{sT2}, 1")
        e(f"v_min_u32 v33, s{sT2}, v{vLane}")
        e(f"v_lshl_add_u32 v33, v33, {RL}, s{sT1}")
        e(f"v_mul_lo_u32 v33, v33, s{sP64}")
        e(f"s_cmp_ge_u32 s{sW}, 4")
        e(f"s_cbranch_scc1 L_w0")
        a.skip_begin()
        e(f"buffer_load_dword v{vDum+1}, v33, {S(rA)}, s{sSO[0][0]} offen")
        e(f"buffer_load_dword v{vDum+1}, v33, {S(rB)}, s{sSO[0][1]} offen")
        if opt.get("xrpos") == 1: xloads(XE, 14, sXa, sXb)
        a.skip_end()
        a.label("L_w0")
    if opt.get("w0pos", 0) == 0: wpf0()
    if opt.get("w0pos", 0) == 2:
        e(f"s_mul_i32 s{sT2}, s{sW}, 56")
        e(f"s_add_u32 s{sT2}, s{sT2}, s{sT3}")
        e(f"s_mul_i32 s{sT2}, s{sT2}, s{sP64}")
        e(f"s_add_u32 s{sHoff}, s{sT2}, s{sSO[0][0]}")
        e(f"s_add_u32 s{sHoff2}, s{sT2}, s{sSO[0][1]}")
        e(f"s_lshl_b32 s{sT2}, s{sP64}, {RL}")
        for i in range(56 >> RL):
            e(f"s_load_dword s{sQKoff}, s[{rA}:{rA+1}], s{sHoff}")
            e(f"s_load_dword s{sQKoff}, s[{rB}:{rB+1}], s{sHoff2}")
            if i + 1 < (56 >> RL):
                e(f"s_add_u32 s{sHoff}, s{sHoff}, s{sT2}")
                e(f"s_add_u32 s{sHoff2}, s{sHoff2}, s{sT2}")
    e(f"v_lshrrev_b32 v25, 2, v{vLane}")
    e(f"v_and_b32 v25, 4, v25")
    e(f"v_xor_b32 v25, v25, v23")
    e(f"v_lshl_add_u32 v26, s{sW}, 3, v22")
    e(f"v_mul_lo_u32 v{vD0}, v26, s{sP64}")
    e(f"v_lshl_add_u32 v{vD0}, v25, 4, v{vD0}")
    e(f"v_mul_u32_u24 v{vD1}, 3584, v26")
    e(f"v_lshl_add_u32 v{vD1}, v25, 4, v{vD1}")
    e(f"s_lshl_b32 s{sT1}, s{sP64}, 5")
    e(f"v_subrev_u32 v32, s{sT1}, v{vD0}")
    vRow, vSwz, vCol = vV1, vV2, vV3
    e(f"v_lshrrev_b32 v26, 5, v{vLane}")
    e(f"v_bfe_u32 v27, v{vLane}, 2, 2")
    e(f"v_lshl_add_u32 v27, v26, 3, v27")
    e(f"v_lshlrev_b32 v{vRow}, 7, v27")
    e(f"v_and_b32 v28, 8, v{vLane}")
    e(f"v_lshlrev_b32 v{vSwz}, 3, v28")
    e(f"v_and_b32 v29, 3, v{vLane}")
    e(f"v_and_b32 v30, 16, v{vLane}")
    e(f"v_lshlrev_b32 v30, 1, v30")
    e(f"v_lshl_add_u32 v{vCol}, v29, 3, v30")
    def traddr(d, stc, t0, t1):
        return [f"v_add_u32 v{t0}, s{stc}, v{vCol}", f"v_and_b32 v{t1}, 127, v{t0}", f"v_xor_b32 v{t1}, v{t1}, v{vSwz}",
                f"v_and_b32 v{t0}, 128, v{t0}", f"v_lshl_add_u32 v{t0}, v{t0}, 6, v{t1}", f"v_add_u32 v{d}, v{t0}, v{vRow}"]
    for t in traddr(vTB[0][0], sTc0a, 30, 31) + traddr(vTB[0][1], sTc0b, 30, 31): e(t)
    e(f"s_and_b32 s{sT1}, s{sWR}, 1")
    e(f"s_lshl4_add_u32 s{sT1}, s{sT1}, s{sGS}")
    e(f"v_add_u32 v30, s{sT1}, v22")
    e(f"v_xor_b32 v30, v30, v23")
    e(f"v_lshlrev_b32 v30, 4, v30")
    e(f"v_lshrrev_b32 v31, 1, v23")
    e(f"v_lshl_add_u32 v30, v31, 12, v30")
    e(f"v_and_b32 v31, 1, v23")
    e(f"v_lshl_add_u32 v30, v31, 9, v30")
    e(f"s_lshr_b32 s{sT1}, s{sWR}, 1")
    e(f"v_lshl_add_u32 v{vXW[0]}, s{sT1}, 10, v30")
    e(f"v_add_u32 v{vXW[1]}, 0x10000, v{vXW[0]}")
    e(f"v_and_b32 v30, 31, v{vLane}")
    e(f"v_xor_b32 v30, v30, v26")
    e(f"v_lshlrev_b32 v30, 4, v30")
    e(f"v_lshl_add_u32 v30, v26, 9, v30")
    e(f"v_lshl_add_u32 v{vXR[0]}, s{sTT}, 10, v30")
    for q in range(1, 4):
        e(f"v_xor_b32 v{vXR[q]}, {q*4096 + q*32}, v{vXR[0]}")
    e(f"s_lshl4_add_u32 s{sT1}, s{sWR}, s{sGS}")
    e(f"v_add_lshl_u32 v{vStat}, v22, s{sT1}, 2")
    e(f"s_mul_i32 s{sT2}, s{sTT}, 112")
    e(f"s_add_u32 s{sT1}, s{sT3}, s{sT2}")
    e(f"v_min_u32 v30, {(112 >> RL) - 1}, v{vLane}")
    e(f"v_lshl_add_u32 v30, v30, {RL}, s{sT1}")
    e(f"v_mul_u32_u24 v{vDum+3}, 3584, v30")
    e(f"s_lshl_b32 s{sP64}, s{sP64}, 6")
    srd2(rW1, pW1, W1_BYTES)
    srd2(rW3, pW3, W1_BYTES)
    e(f"s_lshr_b32 s{sT1}, s{sSO[1][0]}, 1")
    e(f"s_lshl_b32 s{sSO[1][0]}, s{sSO[1][0]}, 7")
    e(f"s_add_u32 s{sT1}, s{sT1}, 16")
    e(f"s_lshl_b32 s{sSO[2][0]}, s{sT1}, 7")
    e(f"s_cmp_lt_u32 s{sW}, 4")
    e(f"s_cbranch_scc1 L_x2")
    a.skip_begin(); xloads(0, 14 if opt.get("xrpos") else XE, sXa, sXb); a.skip_end()
    a.label("L_x2")
    if not opt.get("xrpos"): xloads(XE, 14, sXa, sXb)
    if opt.get("w0pos", 0) == 1:
        e(f"s_lshr_b32 s{sP64}, s{sP64}, 6"); wpf0(); e(f"s_lshl_b32 s{sP64}, s{sP64}, 6")
    e(f"s_lshl_b32 s{sStat}, s2, 9")
    e(f"s_add_u32 s{sStat}, s{sStat}, {ST_OFF}")
    e(f"s_mov_b32 s{sOnes}, 0x3f803f80")
    e(f"s_movk_i32 s{sLo}, 0x3f80")
    e(f"s_mov_b32 s{sHi}, 1.0")
    def slot(c):
        if c < 3: return 7 + c
        if c < 10: return c - 3
        if c == 20: return 7
        return slot(c - 9)
    dma_next = [3]
    def dma(c, track=True, part=3):
        r, cc = divmod(c, 7)
        if cc == 0 and part & 1:
            e(f"s_mov_b32 s{sCurA}, s{sSO[r][0]}")
            if r == 0: e(f"s_mov_b32 s{sCurB}, s{sSO[r][1]}")
        va, vb = [(vD0, vD0), (vD1, vD1), (vD1, vD2B)][r]
        sa, sb = (rA, rB) if r == 0 else (rW1, rW3)
        inc = f"s{sP64}" if r == 0 else f"{64*3584}"
        if part & 1:
            e(f"s_add_u32 m0, s{sM0}, {slot(c)*16384}")
            if cc: e(f"s_add_u32 s{sCurA}, s{sCurA}, {inc}")
            e(f"buffer_load_dwordx4 v{va}, {S(sa)}, s{sCurA} offen lds")
        if part & 2:
            e(f"s_add_u32 m0, s{sM0}, {slot(c)*16384+8192}")
            if cc and r == 0: e(f"s_add_u32 s{sCurB}, s{sCurB}, {inc}")
            e(f"buffer_load_dwordx4 v{vb}, {S(sb)}, s{sCurB if r == 0 else sCurA} offen lds")
        if track: a.vm += [f"c{c}", f"c{c}"]
    for q in range(8): e(f"v_mov_b32 v{T0+8+q}, 0")
    e(f"s_cmp_lt_u32 s{sW}, 4")
    e(f"s_cbranch_scc1 L_lnA")
    e(f"s_waitcnt vmcnt(0)")
    def dma4(c):
        dma(c, track=False)
        e(f"s_add_u32 m0, s{sM0}, {slot(c)*16384 - 4096}")
        e(f"buffer_load_dwordx4 v32, {S(rA)}, s{sCurA} offen lds")
        e(f"s_add_u32 m0, s{sM0}, {slot(c)*16384 + 8192 - 4096}")
        e(f"buffer_load_dwordx4 v32, {S(rB)}, s{sCurB} offen lds")
        a.vm += [f"c{c}"] * 4
    C2 = opt.get("c2pos", 1)
    for c in range(3 if C2 == 0 else 2): dma4(c)
    if opt.get("erpos", 0) == 0:
        if ER < 448:
            e(f"buffer_load_dword v{vDum+1}, v33, {S(rA)}, s{sSO[0][0]} offen")
            e(f"buffer_load_dword v{vDum+1}, v33, {S(rB)}, s{sSO[0][1]} offen")
            a.vm += ["pf", "pf"]
    e(f"s_branch L_lnB")
    a.label("L_lnA")
    e(f"s_lshl1_add_u32 s{sCurA}, s{sP64}, s{sSO[0][0]}")
    e(f"s_lshl1_add_u32 s{sCurB}, s{sP64}, s{sSO[0][1]}")
    e(f"s_waitcnt vmcnt({2 if opt.get('w0pos', 0) == 1 else 0})")
    a.label("L_lnB")
    a.reset_hist()
    padat("x0")
    sp.stamp("x0", nowait=True); sp.stamp("x0", lvl=3, nowait=True)
    def wpf():
        for r in (1, 2):
            e(f"buffer_load_dword v{vDum+1}, v{vDum+3}, {S(rW1)}, s{sSO[r][0]} offen{opt.get('pnt', '')}")
            e(f"buffer_load_dword v{vDum+1}, v{vDum+3}, {S(rW3)}, s{sSO[r][0]} offen{opt.get('pnt', '')}")
        if opt.get("w2pf", 3) == 3:
            e(f"s_lshl2_add_u32 s{sT1}, s2, s{sW}")
            e(f"s_mul_i32 s{sT2}, s{sT1}, {13*128}")
            e(f"s_lshl_b32 s{sT1}, s{sT1}, 9")
            e(f"v_min_u32 v{vDum+2}, 12, v{vLane}")
            e(f"v_lshl_add_u32 v{vDum+2}, v{vDum+2}, 7, s{sT2}")
            e(f"v_min_u32 v{vDum+2}, {W2_BYTES-4}, v{vDum+2}")
            e(f"v_min_u32 v{vDum+3}, 3, v{vLane}")
            e(f"v_lshl_add_u32 v{vDum+3}, v{vDum+3}, 7, s{sT1}")
            e(f"v_min_u32 v{vDum+3}, {WO_BYTES-4}, v{vDum+3}")
            e(f"global_load_dword v{vDum+1}, v{vDum+2}, s[{pW2}:{pW2+1}]{opt.get('p2nt', '')}")
            e(f"global_load_dword v{vDum+1}, v{vDum+3}, s[{pWO}:{pWO+1}]")
    AC = T0 + 8
    def reduce2(d0, d1):
        for g in range(2): e(f"v_add_f32 v{AC+4*g}, v{AC+4*g}, v{AC+4*g+1}")
        for g in range(2): e(f"v_add_f32 v{AC+4*g+2}, v{AC+4*g+2}, v{AC+4*g+3}")
        for g, d in enumerate((d0, d1)): e(f"v_add_f32 v{d}, v{AC+4*g}, v{AC+4*g+2}")
        for m in ("quad_perm:[1,0,3,2]", "quad_perm:[2,3,0,1]", "row_half_mirror"):
            for d in (d0, d1): e(f"v_add_f32_dpp v{d}, v{d}, v{d} {m} row_mask:0xf bank_mask:0xf")
    for i in range(28):
        for g in range(2): e(f"v_dot2c_f32_bf16 v{AC+4*g+i%4}, s{sOnes}, v{RAW+g*28+i}")
    reduce2(vAcc[0], vAcc[1])
    for q in range(8): e(f"v_mov_b32 v{AC+q}, 0")
    for g in range(2): e(f"v_mul_f32 v{vAcc[g]}, {hexf(-1.0/448)}, v{vAcc[g]}")
    if C2 == 1:
        e(f"s_cmp_lt_u32 s{sW}, 4")
        e(f"s_cbranch_scc1 L_c2")
        a.skip_begin(); dma4(2)
        a.skip_end()
        a.label("L_c2")
    sp.stamp("pre", lvl=3, nowait=True)
    pend = None
    for gi in range(2):
        for i in range(7):
            r = RAW + gi * 28 + i * 4
            for k in range(4):
                e(f"v_dot2_f32_bf16 v{T0+2*k}, v{r+k}, s{sLo}, v{vAcc[gi]}")
                e(f"v_dot2_f32_bf16 v{T0+2*k+1}, v{r+k}, s{sHi}, v{vAcc[gi]}")
            if pend: pend()
            for k in range(4):
                e(f"v_cvt_pk_bf16_f32 v{r+k}, v{T0+2*k}, v{T0+2*k+1}")
            def pend(r=r, gi=gi, i=i):
                off = i * 16384
                a.ds_op(f"ds_write_b128 v{vXW[off >> 16]}, v[{r}:{r+3}] offset:{off & 0xffff}", "xw")
                if i == 6 and gi == 0:
                    e(f"v_xor_b32 v{vXW[0]}, 128, v{vXW[0]}")
                    e(f"v_xor_b32 v{vXW[1]}, 128, v{vXW[1]}")
    pend()
    if opt.get("wpf", 1) == 3:
        e(f"s_cmp_ge_u32 s{sW}, 4")
        e(f"s_cbranch_scc1 L_wp3")
        a.skip_begin(); wpf(); a.skip_end()
        a.label("L_wp3")
    if C2 == 2:
        e(f"s_cmp_lt_u32 s{sW}, 4")
        e(f"s_cbranch_scc1 L_c2")
        a.skip_begin(); dma4(2); a.skip_end()
        a.label("L_c2")
    sp.stamp("post", lvl=3, nowait=True)
    for i in range(28):
        for g in range(2): e(f"v_dot2c_f32_bf16 v{AC+4*g+i%4}, v{RAW+g*28+i}, v{RAW+g*28+i}")
    e(f"v_mov_b32 v{T0}, {hexf(1e-5)}")
    e(f"v_mov_b32 v{T0+1}, {hexf(1e-5)}")
    e(f"v_xor_b32 v{T0+2}, 32, v{vStat}")
    reduce2(vAcc[0], vAcc[1])
    for g in range(2): e(f"v_fmac_f32 v{T0+g}, {hexf(1.0/448)}, v{vAcc[g]}")
    e(f"s_cmp_ge_u32 s{sW}, 4")
    e(f"s_cbranch_scc1 L_lnD")
    a.skip_begin()
    e(f"s_lshl3_add_u32 s{sT3}, s2, s{sW}")
    e(f"s_cmp_lg_u32 s{sT3}, 0")
    e(f"s_cbranch_scc1 L_noinit")
    e(f"v_lshlrev_b32 v25, 7, v{vLane}")
    e(f"v_mov_b32 v26, 0")
    e(f"s_mov_b32 s3, {CNT_OFF}")
    for q in range(5):
        if q: e(f"s_add_u32 s3, s3, 8192")
        e(f"buffer_store_dword v26, v25, {S(rWS)}, s3 offen sc1")
    a.label("L_noinit")
    if opt.get("touch") == 2: touch()
    if opt.get("wpf", 1) == 1: wpf()
    e(f"s_branch L_lnE")
    a.skip_end()
    a.label("L_lnD")
    sp.stamp("ln", lvl=3, nowait=True)
    a.vm_wait("c1")
    a.label("L_lnE")
    a.ds_wait_all()
    sp.stamp("ln")
    sp.stamp("c1", lvl=3)
    e("s_barrier")
    padat("b1")
    sp.stamp("b1"); sp.stamp("b1", lvl=3)
    def deferred():
        t0, t1, t2 = AB, AB + 1, AB + 2
        G = lambda *ins: (lambda: [e(x) for x in ins], sum(2 if x.startswith("s_") else 4 for x in ins))
        L = []
        L.append(G(f"v_xor_b32 v{vD2B}, 32, v{vD1}", f"v_lshlrev_b32 v{vSt}, 4, v{vLane}", f"s_mov_b32 vcc_lo, -1", f"s_mov_b32 vcc_hi, 0"))
        L.append(G(f"s_lshl2_add_u32 s{sTTG}, s{sRB}, s{sTT}", f"s_lshl_b32 s{sHoff}, s{sG}, 6"))
        L += [G(x) for x in traddr(vTB[1][0], sHoff, t0, t1)]
        L.append(G(f"v_add_u32 v{vTB[1][1]}, 8192, v{vTB[1][0]}"))
        L.append(G(f"s_bfe_u32 s{sHoff}, s{sSO[1][0]}, 0x10007", f"s_lshl_b32 s{sHoff2}, s{sHoff}, 1", f"s_lshl_b32 s{sHoff}, s{sHoff2}, 5",
                   f"v_xor_b32 v{t0}, s{sHoff}, v{vCol}"))
        L.append(G(f"v_xor_b32 v{t0}, v{t0}, v{vSwz}", f"v_and_b32 v{t1}, 16, v{vLane}"))
        L.append(G(f"v_lshl_add_u32 v{t0}, v{t1}, 9, v{t0}", f"v_add_u32 v{vTB[2][0]}, v{t0}, v{vRow}", f"v_xor_b32 v{vTB[2][1]}, 32, v{vTB[2][0]}"))
        L.append(G(f"s_mul_i32 s{sHoff}, s{sTTG}, 112", f"s_add_u32 s{sHoff2}, s{sHoff2}, s{sHoff}", f"s_lshr_b32 s{sQKoff}, s{sSO[2][0]}, 5",
                   f"s_add_u32 s{sHoff2}, s{sHoff2}, s{sQKoff}", f"s_lshl_b32 s{sHoff2}, s{sHoff2}, 10", f"s_add_u32 s{sHoff2}, s{sHoff2}, {H_OFF}"))
        L.append(G(f"s_lshl1_add_u32 s{sHoff}, s{sG}, s{sHoff}", f"s_lshl2_add_u32 s{sQKstep}, s{sCOL}, s{sHoff}", f"s_lshl_b32 s{sQKstep}, s{sQKstep}, 10",
                   f"s_add_u32 s{sQKstep}, s{sQKstep}, {H_OFF + 12*4096}"))
        L.append(G(f"s_lshr_b32 s{sQKoff}, s{sSO[1][0]}, 5", f"s_add_u32 s{sHoff}, s{sHoff}, s{sQKoff}", f"s_lshl_b32 s{sHoff}, s{sHoff}, 10",
                   f"s_add_u32 s{sHoff}, s{sHoff}, {H_OFF}"))
        L.append(G(f"s_lshl1_add_u32 s{sQKoff}, s{sCOL}, s{sG}", f"s_lshl_b32 s{sQKoff}, s{sQKoff}, 7", f"s_add_u32 s{sQKoff}, s{sQKoff}, s{sTTG}",
                   f"s_lshl_b32 s{sQKoff}, s{sQKoff}, 11", f"s_cmp_ge_u32 s{sCOL}, 12",
                   f"s_cselect_b32 s{sQKoff}, s{sQKstep}, s{sQKoff}"))
        L.append(G(f"s_lshr_b32 s{sQKstep}, s{sCOL}, 2", f"s_cmp_eq_u32 s{sQKstep}, 1", f"s_cselect_b32 s{sOnes}, s{sOnes}, 0", f"s_cselect_b32 s{sHi}, s{sLo}, 0",
                   f"s_cmp_eq_u32 s{sQKstep}, 2", f"s_cselect_b32 s{sOnes}, s{sLo}, s{sOnes}"))
        L.append(G(f"v_mov_b32 v{vP6}, s{sOnes}", f"v_mov_b32 v{vP7}, s{sHi}"))
        L.append(G(f"v_lshrrev_b32 v{t2}, 5, v{vLane}", f"v_bfe_u32 v{t0}, v{vLane}, 2, 2", f"v_lshl_add_u32 v{t0}, v{t2}, 2, v{t0}"))
        L.append(G(f"v_lshrrev_b32 v{t1}, 1, v{t0}", f"v_lshlrev_b32 v{t1}, 3, v{t1}", f"v_xor_b32 v{t1}, v{t1}, v{vCol}"))
        L.append(G(f"s_lshl_b32 s{sQKstep}, s{sW}, 11", f"s_add_u32 s{sQKstep}, s{sQKstep}, {SCR}", f"v_lshl_add_u32 v{t0}, v{t0}, 6, v{t1}",
                   f"v_add_u32 v{vV2}, s{sQKstep}, v{t0}"))
        L.append(G(f"v_xor_b32 v{vV3}, 32, v{vV2}", f"v_bfe_u32 v{t0}, v{vLane}, 1, 3", f"v_xor_b32 v{t0}, v{t0}, v{t2}"))
        L.append(G(f"v_and_b32 v{t1}, 31, v{vLane}", f"v_lshlrev_b32 v{t1}, 6, v{t1}", f"v_lshl_add_u32 v{t0}, v{t0}, 3, v{t1}"))
        L.append(G(f"v_add_u32 v{vV1}, s{sQKstep}, v{t0}"))
        return L
    def hdiag(k):
        if not opt.get("hdiag"): return
        if k == 0: return
        e("s_cmp_ge_u32 s2, 7")
        e("s_cbranch_scc1 L_end")
        e(f"s_cmp_lg_u32 s{sW}, 4")
        e("s_cbranch_scc1 L_end")
        e("s_memrealtime s[80:81]"); e("s_memtime s[82:83]")
        e("s_waitcnt vmcnt(0) lgkmcnt(0)")
        e("s_mov_b64 exec, 1")
        e("s_lshl_b32 s3, s2, 3")
        e("v_mov_b32 v0, s3")
        e("s_sub_u32 s84, s82, s78")
        e("s_sub_u32 s80, s80, s76")
        e("s_and_b32 s76, s76, 0xffff")
        e("s_lshl_b32 s80, s80, 16")
        e("s_or_b32 s76, s76, s80")
        e("v_mov_b32 v2, s76"); e("v_mov_b32 v3, s84")
        e(f"global_store_dword v0, v2, s[{pDBG}:{pDBG+1}] offset:4")
        e(f"global_store_dword v0, v3, s[{pDBG}:{pDBG+1}] offset:8")
    def check_flag(vtmp):
        done = lab("fl")
        e(f"v_readfirstlane_b32 s{sT1}, v{vFlag}")
        e(f"s_cmp_lg_u32 s{sT1}, 0")
        e(f"s_cbranch_scc1 {done}")
        e(f"s_mov_b32 s{sT2}, 0x40000")
        lp = lab("fs"); a.label(lp)
        e(f"v_mov_b32 v{vtmp}, 0")
        e(f"global_load_dword v{vFlag}, v{vtmp}, s[{pDBG}:{pDBG+1}] sc1")
        e(f"s_waitcnt vmcnt(0)")
        e(f"v_readfirstlane_b32 s{sT1}, v{vFlag}")
        e(f"s_sub_u32 s{sT2}, s{sT2}, 1")
        e(f"s_cselect_b32 s{sT1}, 1, s{sT1}")
        e(f"s_cmp_eq_u32 s{sT1}, 0")
        e(f"s_cbranch_scc1 {lp}")
        a.label(done)
    def signal(sIdx, add, va, vb):
        e(f"s_add_u32 s{sT1}, s{sIdx}, {add}")
        e(f"s_lshl_b32 s{sT1}, s{sT1}, 7")
        e(f"s_add_u32 s{sT1}, s{sT1}, {CNT_OFF}")
        e(f"v_mov_b32 v{va}, 0")
        e(f"v_mov_b32 v{vb}, 1")
        e(f"s_mov_b64 exec, 1")
        e(f"buffer_atomic_add v{vb}, v{va}, {S(rWS)}, s{sT1} offen sc1")
        e(f"s_mov_b64 exec, -1")
    def poll(vaddr, vval, target, sleep):
        lp = lab("po"); done = lab("pd")
        e(f"s_mov_b32 s{sT2}, 0x40000")
        e(f"s_mov_b32 s{sT3}, {CNT_OFF}")
        a.label(lp)
        e(f"buffer_load_dword v{vval}, v{vaddr}, {S(rWS)}, s{sT3} offen sc1")
        e(f"s_waitcnt vmcnt(0)")
        e(f"v_cmp_gt_u32 s[74:75], {target}, v{vval}")
        e(f"s_cmp_eq_u64 s[74:75], 0")
        e(f"s_cbranch_scc1 {done}")
        e(f"s_sleep {sleep}")
        e(f"s_sub_u32 s{sT2}, s{sT2}, 1")
        e(f"s_cbranch_scc0 {lp}")
        a.label(done)
        a.vm = []
    def lds_arrive(k, va, vb, rtn=False):
        e(f"v_mov_b32 v{va}, {SYNC + 4*k}")
        e(f"v_mov_b32 v{vb}, 1")
        e(f"s_mov_b64 exec, 1")
        e(f"ds_add_rtn_u32 v{vb}, v{va}, v{vb}" if rtn else f"ds_add_u32 v{va}, v{vb}")
        e(f"s_mov_b64 exec, -1")
    def lds_sync(k, n, va, vb, meanwhile=None):
        a.ds_wait_all()
        lds_arrive(k, va, vb)
        if meanwhile:
            e("s_nop 3"); meanwhile()
        lp = lab("ls")
        e(f"s_mov_b32 s{sT2}, 0x400000")
        a.label(lp)
        e(f"ds_read_b32 v{vb}, v{va}")
        e(f"s_waitcnt lgkmcnt(0)")
        e(f"v_readfirstlane_b32 s{sT1}, v{vb}")
        e(f"s_sub_u32 s{sT2}, s{sT2}, 1")
        e(f"s_cselect_b32 s{sT1}, {n}, s{sT1}")
        e(f"s_cmp_lt_u32 s{sT1}, {n}")
        e(f"s_cbranch_scc1 {lp}")
    def lds_spin(k, n, va, vb, sleep):
        lp = lab("ls"); ok = lab("lk")
        e(f"v_mov_b32 v{va}, {SYNC + 4*k}")
        e(f"s_mov_b32 s{sT2}, 0x100000")
        a.label(lp)
        e(f"ds_read_b32 v{vb}, v{va}")
        e(f"s_waitcnt lgkmcnt(0)")
        e(f"v_readfirstlane_b32 s{sT1}, v{vb}")
        e(f"s_cmp_ge_u32 s{sT1}, {n}")
        e(f"s_cbranch_scc1 {ok}")
        e(f"s_sleep {sleep}")
        e(f"s_sub_u32 s{sT2}, s{sT2}, 1")
        e(f"s_cbranch_scc0 {lp}")
        a.label(ok)
    def lds_check(k, n, va, vb):
        lp = lab("lc"); ok = lab("ld")
        e(f"s_mov_b32 s{sT2}, 0x400000")
        a.label(lp)
        e(f"s_waitcnt lgkmcnt(0)"); a.lg = []
        e(f"v_readfirstlane_b32 s{sT1}, v{vb}")
        e(f"s_cmp_ge_u32 s{sT1}, {n}")
        e(f"s_cbranch_scc1 {ok}")
        a.skip_begin()
        e(f"ds_read_b32 v{vb}, v{va}")
        e(f"s_sub_u32 s{sT2}, s{sT2}, 1")
        e(f"s_cbranch_scc0 {lp}")
        a.skip_end()
        a.label(ok)
    def lds_wait(k, n, va, vb, meanwhile):
        lp = lab("lw"); ok = lab("lo")
        e(f"v_mov_b32 v{va}, {SYNC + 4*k}")
        e(f"ds_read_b32 v{vb}, v{va}")
        meanwhile()
        e(f"s_mov_b32 s{sT2}, 0x400000")
        a.label(lp)
        e(f"s_waitcnt lgkmcnt(0)")
        e(f"v_readfirstlane_b32 s{sT1}, v{vb}")
        e(f"s_cmp_ge_u32 s{sT1}, {n}")
        e(f"s_cbranch_scc1 {ok}")
        e(f"ds_read_b32 v{vb}, v{va}")
        e(f"s_sub_u32 s{sT2}, s{sT2}, 1")
        e(f"s_cbranch_scc0 {lp}")
        a.label(ok)
    def last_signals(k, n, sIdx, add, va, vb):
        lds_arrive(k, va, vb, rtn=True)
        e(f"s_waitcnt lgkmcnt(0)"); a.lg = []
        e(f"v_readfirstlane_b32 s{sT1}, v{vb}")
        sk = lab("ns")
        e(f"s_cmp_lg_u32 s{sT1}, {n-1}")
        e(f"s_cbranch_scc1 {sk}")
        a.skip_begin()
        signal(sIdx, add, va, vb)
        a.skip_end()
        a.label(sk)
    NT = [2, 2, 2]
    ACC = [AA, AB, AA]
    tw_state = [None, None]
    def wreads(G):
        r, s = divmod(G, 28)
        base = slot(G // 4) * 16384 + (s % 4) * 2048
        hi, lo = base >> 16, base & 0xffff
        L = []
        for t in range(NT[r]):
            d = WF + (G % 3) * 8 + t * 4
            def f0(t=t, d=d):
                if tw_state[t] != (r, hi):
                    e(f"v_add_u32 v{vTW[t]}, {hex(hi << 16)}, v{vTB[r][t]}")
                    tw_state[t] = (r, hi)
                a.ds_op(f"ds_read_b64_tr_b16 v[{d}:{d+1}], v{vTW[t]} offset:{lo}", f"w{G}")
            def f1(t=t, d=d):
                a.ds_op(f"ds_read_b64_tr_b16 v[{d+2}:{d+3}], v{vTW[t]} offset:{lo+512}", f"w{G}")
            L += [f0, f1]
        return L
    xr_next = [0]
    def xread(n):
        for _ in range(n):
            s = xr_next[0]
            if s >= 28: return
            xr_next[0] += 1
            if s == 16:
                for q in range(4): e(f"v_add_u32 v{vXR[q]}, 0x10000, v{vXR[q]}")
            off = ((s // 4) * 16384) & 0xffff
            a.ds_op(f"ds_read_b128 v[{X0+4*s}:{X0+4*s+3}], v{vXR[s%4]} offset:{off}", f"x{s}")
    BARS = opt.get("bars", [0, 1, 2, 3, 5, 7, 9, 11, 13, 15])
    PQ = opt.get("pq", 11)
    PZ = opt.get("pz", 13)
    L2P = {int(k): v for k, v in opt.get("l2p", {}).items()}
    VEND = PQ
    window = []; pending = []
    def period_barrier(i):
        for c in window: a.vm.extend([f"c{c}", f"c{c}"])
        assert not pending, pending
        window.clear()
        nxt = min([b for b in BARS if b > i] + [20])
        if nxt <= 2 and f"c{nxt}" in a.vm:
            sk = lab("nb")
            e(f"s_cmp_lt_u32 s{sW}, 4")
            e(f"s_cbranch_scc1 {sk}")
            a.skip_begin(); a.vm_wait(f"c{nxt}"); a.skip_end()
            a.label(sk)
        a.vm_wait(f"c{nxt}")
        assert dma_next[0] > nxt, (i, nxt, dma_next[0])
        if i == 3: a.vm_wait("stat")
        if i == PQ: a.vm_wait("st"); a.vm_wait("fl")
        if i in opt.get("sb", []): sp.stamp("pre", lvl=2, nowait=True)
        if i not in opt.get("x_nb", []): e("s_barrier")
        if i in opt.get("sb", []): sp.stamp("post", lvl=2, nowait=True)
        if i == 3:
            e(f"v_and_b32 v{vK}, 31, v{vLane}")
            e(f"v_lshlrev_b32 v{vK}, 2, v{vK}")
            e(f"s_lshl_b32 s{sT1}, s{sTT}, 7")
            e(f"s_add_u32 s{sT1}, s{sT1}, s{sStat}")
            a.vm_op(f"buffer_load_dword v{vK}, v{vK}, {S(rWS)}, s{sT1} offen sc1", "kld")
        if i == 3:
            e(f"s_lshl3_add_u32 s{sT1}, s2, s{sW}")
            e(f"s_cmp_lg_u32 s{sT1}, 0")
            e(f"s_cbranch_scc1 L_nofl")
            a.skip_begin()
            e(f"v_mov_b32 v{vDum+2}, 0")
            e(f"v_mov_b32 v{vDum+3}, 1")
            e(f"global_store_dword v{vDum+2}, v{vDum+3}, s[{pDBG}:{pDBG+1}] sc1")
            a.skip_end()
            a.label("L_nofl")
        if i == 7:
            e(f"v_mov_b32 v{vFlag}, 0")
            a.vm_op(f"global_load_dword v{vFlag}, v{vFlag}, s[{pDBG}:{pDBG+1}] sc1", "fl")
        if i in L2P:
            for k in L2P[i]:
                sk = lab("pf")
                e(f"s_cmp_lg_u32 s{sW}, {k}")
                e(f"s_cbranch_scc1 {sk}")
                a.skip_begin()
                e(f"s_lshr_b32 s{sT1}, s2, 3")
                nl, ptr, nb = (56, pW2, W2_BYTES) if k < 7 else (98, pWO, WO_BYTES)
                if k < 7:
                    e(f"s_mul_i32 s{sT1}, s{sT1}, {7*56*128}")
                    e(f"s_add_u32 s{sT1}, s{sT1}, {k*56*128}")
                else:
                    e(f"s_mul_i32 s{sT1}, s{sT1}, {98*128}")
                e(f"v_min_u32 v{vDum+2}, {min(nl, 64) - 1 if k < 7 else 48}, v{vLane}")
                e(f"v_lshl_add_u32 v{vDum+2}, v{vDum+2}, 7, s{sT1}")
                e(f"global_load_dword v{vDum+1}, v{vDum+2}, s[{ptr}:{ptr+1}]")
                if k == 7:
                    e(f"v_add_u32 v{vDum+2}, {49*128}, v{vDum+2}")
                    e(f"global_load_dword v{vDum+1}, v{vDum+2}, s[{ptr}:{ptr+1}]")
                a.skip_end()
                a.label(sk)
        if i == PZ:
            e(f"v_lshrrev_b32 v{vDum+2}, 2, v{vSt}")
            e(f"v_add_u32 v{vDum+2}, {SYNC}, v{vDum+2}")
            e(f"v_mov_b32 v{vDum+3}, 0")
            a.ds_op(f"ds_write_b32 v{vDum+2}, v{vDum+3}", "z")
        if i == PQ and sigq[0]:
            sk = lab("q")
            e(f"s_cmp_lg_u32 s{sW}, 0")
            e(f"s_cbranch_scc1 {sk}")
            a.skip_begin()
            check_flag(vDum + 2)
            signal(sCOL, 0, vDum + 2, vDum + 3)
            a.skip_end()
            a.label(sk)
        while dma_next[0] <= 20:
            c = dma_next[0]
            if c < 10:
                sl = slot(c)
                if not all(xr_next[0] > s and a.ds_done(f"x{s}") for s in range(4*sl, 4*sl+4)): break
            elif c == 20:
                if i < 13: break
            elif c - 9 > i - 1: break
            if c > opt.get("cmax", {"3": 9, "5": 12, "7": 13, "9": 16, "11": 19}).get(str(i), 99): break
            window.append(c); dma_next[0] += 1
        nq = nxt - i if i < 13 else 1
        per = -(-len(window) // nq)
        pending[:] = [window[k*per:(k+1)*per] for k in range(nq)]
    sigq = [False]
    XR = opt.get("xrate", 2)
    def kloop(r, extra, budget, hooks={}):
        extra = list(extra)
        if opt.get("x_noepi"): extra = [x for x in extra if x[1] == 0]
        gap = 0
        for s in range(28):
            G = r * 28 + s
            Gn = G + 2
            rd = wreads(Gn) if Gn < 84 else []
            a.ds_wait(f"w{G}")
            if r == 0: a.ds_wait(f"x{s}")
            ph = Gn % 4
            for t in range(NT[r]):
                d = ACC[r] + 16 * t
                w = WF + (G % 3) * 8 + t * 4
                c = "0" if s == 0 else f"v[{d}:{d+15}]"
                e(f"v_mfma_f32_32x32x16_bf16 v[{d}:{d+15}], v[{w}:{w+3}], v[{X0+4*s}:{X0+4*s+3}], {c}")
                gap += 1
                if t == 0 and Gn < 84 and ph == 0 and (Gn // 4 - 1) in BARS: period_barrier(Gn // 4 - 1)
                n = -(-len(rd) // (NT[r] - t))
                for f in rd[:n]: f()
                rd = rd[n:]
                if r == 0: xread((XR + 1 - t) // 2)
                left = budget
                DS = opt.get("dsplit", 1) and pending and len(pending[0]) == 1 and not (Gn // 4 - 1 == 13)
                if DS and t == NT[r] - 1:
                    sk = lab("d")
                    e(f"s_cmp_lg_u32 s{sPh}, {ph & 2}")
                    e(f"s_cbranch_scc1 {sk}")
                    a.skip_begin()
                    dma(pending[0][0], track=False, part=1 + (ph & 1))
                    a.skip_end()
                    a.label(sk)
                    left = opt.get("dmabud2", 8)
                elif t == NT[r] - 1 and pending and pending[0] and ph % 2 == 0:
                    sk = lab("d")
                    e(f"s_cmp_lg_u32 s{sPh}, {ph}")
                    e(f"s_cbranch_scc1 {sk}")
                    a.skip_begin()
                    for c in pending[0]: dma(c, track=False)
                    a.skip_end()
                    a.label(sk)
                    left = opt.get("dmabud", 4)
                if t == NT[r] - 1 and s in hooks: hooks[s](); left = 0
                while extra and gap > 3 and extra[0][1] <= left:
                    f, cst = extra.pop(0); f(); left -= cst
            if ph == 3 and pending: pending.pop(0)
        return extra
    def I(t):
        op = t.split()[0]
        return (lambda: e(t), 8 if op.startswith(TRANS) else (2 if op.startswith("s_") else 4))
    def consts():
        def sel():
            e(f"s_cmp_lt_u32 s{sCOL}, 4")
            e(f"s_cselect_b32 s{sT1}, {hexf(28**-0.5*LOG2E)}, 1.0")
            e(f"v_mul_f32 v{vSc}, s{sT1}, v{vSc}")
        return [(lambda: a.vm_wait("kld"), 0), I(f"v_rsq_f32 v{vSc}, v{vK}"),
                I(f"v_mul_f32 v{vC1}, {hexf(-LOG2E)}, v{vSc}"), (sel, 8)]
    def silu4(Gt, U, t, p):
        L = []
        for k in range(4): L.append(I(f"v_mul_f32 v{t+k}, v{vC1}, v{Gt+k}"))
        for k in range(4):
            L.append(I(f"v_exp_f32 v{t+k}, v{t+k}"))
            L.append(I(f"v_mul_f32 v{Gt+k}, v{Gt+k}, v{U+k}"))
        for k in range(4): L.append(I(f"v_fma_f32 v{t+k}, v{t+k}, v{vK}, v{vK}"))
        for k in range(4): L.append(I(f"v_rcp_f32 v{t+k}, v{t+k}"))
        for k in range(4): L.append(I(f"v_mul_f32 v{Gt+k}, v{Gt+k}, v{t+k}"))
        for k in range(2): L.append(I(f"v_cvt_pk_bf16_f32 v{p+k}, v{Gt+2*k}, v{Gt+2*k+1}"))
        return L
    def store(r, soff, off):
        if opt.get("x_nost"): return (lambda: None, 8)
        return (lambda: a.vm_op(f"buffer_store_dwordx4 v[{r}:{r+3}], v{vSt}, {S(rWS)}, s{soff} offen offset:{off}{ST}", "st"), 8)
    def epiF(acc, soff):
        Gt, U = acc, acc + 16
        L = []
        for q in range(4):
            L += silu4(Gt + 4*q, U + 4*q, T0 + (q % 2) * 4, U + (q // 2) * 8 + (q % 2) * 2)
            if q % 2 == 1: L.append(store(U + (q // 2) * 8, soff, (q // 2) * 1024))
        return L
    def epiQKV(acc, isv):
        L = []
        P = T0 + 8
        for q in range(4):
            for k in range(4): L.append(I(f"v_mul_f32 v{acc+4*q+k}, v{vSc}, v{acc+4*q+k}"))
            for k in range(2): L.append(I(f"v_cvt_pk_bf16_f32 v{P+2*q+k}, v{acc+4*q+2*k}, v{acc+4*q+2*k+1}"))
            if q == 1 and not isv: L.append(store(P, sQKoff, 0))
        L.append(I(f"v_cndmask_b32 v{P+6}, v{vP6}, v{P+6}, vcc"))
        L.append(I(f"v_cndmask_b32 v{P+7}, v{vP7}, v{P+7}, vcc"))
        if not isv: L.append(store(P + 4, sQKoff, 1024))
        else:
            for q in range(4):
                if q: L.append(I(f"v_xor_b32 v{vV4}, {16*q}, v{vV1}"))
                L.append((lambda q=q: a.ds_op(f"ds_write_b64 v{vV4 if q else vV1}, v[{P+2*q}:{P+2*q+1}]", "vw"), 4))
            L += [(lambda: None, 8)] * 2
            L.append((lambda: a.ds_wait("vw"), 0))
            for q in range(4):
                L.append((lambda q=q: a.ds_op(f"ds_read_b64_tr_b16 v[{acc+2*q}:{acc+2*q+1}], v{vV3 if q % 2 else vV2} offset:{512*q}", "vr"), 4))
            L += [(lambda: None, 8)] * 2
            L.append((lambda: a.ds_wait("vr"), 0))
            L.append(store(acc, sQKoff, 0))
            L.append(store(acc + 4, sQKoff, 1024))
        L.append(I(f"s_add_u32 s{sQKoff}, s{sQKoff}, {64*2048}"))
        return L
    B1, B2 = opt.get("b1", 4), opt.get("b2", 12)
    if opt.get("yprio"):
        e(f"s_cmp_lt_u32 s{sW}, 4")
        e(f"s_cbranch_scc1 L_yp")
        e(f"s_setprio 1")
        a.label("L_yp")
    xread(4)
    for f in wreads(0) + wreads(1): f()
    if opt.get("wpf", 1) == 2:
        e(f"s_cmp_ge_u32 s{sW}, 4")
        e(f"s_cbranch_scc1 L_wp")
        a.skip_begin(); wpf(); a.skip_end()
        a.label("L_wp")
    a.vm_op(f"buffer_store_dword v{T0}, v{vStat}, {S(rWS)}, s{sStat} offen", "stat")
    a.vm_op(f"buffer_store_dword v{T0+1}, v{T0+2}, {S(rWS)}, s{sStat} offen", "stat")
    assert not kloop(0, deferred(), 16)
    padat("r0")
    sp.stamp("r0")
    e(f"s_cmp_lt_u32 s{sCOL}, 8")
    e(f"s_cbranch_scc1 L_pqk")
    e(f"s_cmp_lt_u32 s{sCOL}, 12")
    e(f"s_cbranch_scc1 L_pv")
    saved = (list(a.vm), list(a.lg), list(tw_state), dma_next[0], list(a.hist), list(window), [list(p) for p in pending], sp.n)
    ends = []
    for nm, ex in (("f", lambda: epiF(AA, sQKoff)), ("L_pqk", lambda: epiQKV(AA, False) + epiQKV(AA + 16, False)),
                   ("L_pv", lambda: epiQKV(AA, True) + epiQKV(AA + 16, True))):
        if nm != "f": a.label(nm)
        a.vm, a.lg = list(saved[0]), list(saved[1]); tw_state[:] = saved[2]; dma_next[0] = saved[3]; a.hist = list(saved[4])
        window[:] = saved[5]; pending[:] = [list(p) for p in saved[6]]; sp.set(saved[7])
        sigq[0] = nm != "f"
        nst0 = [0]
        exl = consts() + ex()
        if nm != "f":
            exl.append((lambda: nst0.__setitem__(0, 1), 0))
            _pb = period_barrier
        rest = kloop(1, exl, {"f": B1, "L_pqk": opt.get("b1q", 32), "L_pv": opt.get("b1v", 32)}[nm], hooks={(VEND + 1) * 4 - 2 - 28 - 1: (lambda: None) if nm == "f" else (lambda: (_ for _ in ()).throw(AssertionError("qkv epilogue too late")) if not nst0[0] else None)})
        for f, c in rest: f()
        ends.append(([t for t in a.vm if t != "st"], list(a.lg), list(tw_state), dma_next[0], list(window), [list(p) for p in pending]))
        if nm != "L_pv": e("s_branch L_r2")
    assert ends[0][1:] == ends[1][1:] == ends[2][1:], ends
    a.vm = min((x[0] for x in ends), key=len)
    assert all(x[0][len(x[0])-len(a.vm):] == a.vm for x in ends)
    a.label("L_r2")
    e("s_nop 1")
    padat("r1")
    sp.stamp("r1"); sp.stamp("r1", lvl=5, nowait=True)
    K0, Q, KV, O, Sx, P, T = 16, 24, 56, 128, 192, 224, 240
    ATT_LDS, WO_LDS = 49152, 98304
    sX, sJ = 54, 55
    sHead, sQB, sKV, sRun = 62, 63, 64, 58
    sWq, sTB, sCB, sWo, sLB = 62, 63, 64, 58, 66
    vD, vPoll, vStV = vD0, vDum + 4, vD0
    rW = rA
    rK, rV = rA, rB
    NE = 3
    QX = 147456
    def kvload(i):
        for k in range(4):
            r = KV + 16 * i + 4 * k
            a.vm_op(f"buffer_load_dwordx4 v[{r}:{r+3}], v{vSt}, {S(rK if k < 2 else rV)}, s{sRun} offen offset:{1024*(k%2)}{LD}", f"kv{i}")
        e(f"s_add_u32 s{sRun}, s{sRun}, 2048")
        e(f"s_and_b32 s{sRun}, s{sRun}, 0x1ffff")
    e(f"s_and_b32 s{sX}, s2, 7")
    e(f"s_lshr_b32 s{sJ}, s2, 3")
    check_flag(vDum + 2)
    e(f"s_cmp_lt_u32 s{sW}, 4")
    e(f"s_cbranch_scc1 L_att")
    join = (list(a.vm), list(a.lg), list(a.hist), list(window), sp.n)
    e(f"s_setprio {opt.get('r2prio', 2)}")
    rest = kloop(2, epiF(AB, sHoff), B2)
    sp.stamp("r2")
    for f, c in rest: f()
    for t in range(2):
        for q in range(2):
            for f, c in silu4(AA + 16*t + 4*q, AA + 16*t + 8 + 4*q, T0 + 4*q, T0 + 8 + 4*t + 2*q): f()
        store(T0 + 8 + 4*t, sHoff2, 1024*t)[0]()
    e(f"s_branch L_gemm")
    nst = sp.n
    a.label("L_att")
    a.vm, a.lg, a.hist = list(join[0]), list(join[1]), list(join[2]); sp.set(join[4])
    for c in join[3]: a.vm.extend([f"c{c}", f"c{c}"])
    e(f"s_setprio {opt.get('attprio0', 3)}")
    e(f"s_and_b32 s{sT1}, s{sJ}, 1")
    e(f"s_lshl1_add_u32 s{sHead}, s{sX}, s{sT1}")
    e(f"v_min_u32 v{vPoll}, 2, v{vLane}")
    e(f"v_lshlrev_b32 v{vPoll}, 9, v{vPoll}")
    e(f"s_lshr_b32 s{sT1}, s{sHead}, 2")
    e(f"v_lshl_add_u32 v{vPoll}, s{sT1}, 7, v{vPoll}")
    e(f"s_mov_b32 s{sT3}, {CNT_OFF}")
    a.vm_op(f"buffer_load_dword v{vDum+3}, v{vPoll}, {S(rWS)}, s{sT3} offen sc1", "poll")
    def qload():
        e(f"s_lshl_b32 s{sT1}, s{sHead}, 6")
        e(f"s_lshl2_add_u32 s{sT1}, s{sQB}, s{sT1}")
        e(f"s_add_u32 s{sT1}, s{sT1}, s{sW}")
        e(f"s_lshl_b32 s{sT1}, s{sT1}, 11")
        a.vm_op(f"buffer_load_dwordx4 v[{Q}:{Q+3}], v{vSt}, {S(rWS)}, s{sT1} offen{LD}", "q")
        a.vm_op(f"buffer_load_dwordx4 v[{Q+4}:{Q+7}], v{vSt}, {S(rWS)}, s{sT1} offen offset:1024{LD}", "q")
        kvload(0)
    e(f"s_lshr_b32 s{sQB}, s{sJ}, 1")
    e(f"s_lshl_b32 s{sKV}, s{sHead}, 17")
    e(f"s_add_u32 s{sKV}, s{sKV}, {KV_OFF}")
    e(f"s_and_b32 s{sT1}, s{sQB}, {opt.get('rot', 0)}")
    e(f"s_lshl_b32 s{sT1}, s{sT1}, {opt.get('rotsh', 0)}")
    e(f"s_lshl3_add_u32 s{sT1}, s{sW}, s{sT1}")
    e(f"s_lshl1_add_u32 s{sT1}, s{sT1}, 1")
    e(f"s_lshl_b32 s{sRun}, s{sT1}, 11")
    e(f"s_add_u32 s{rK}, s{pWS}, s{sKV}")
    e(f"s_addc_u32 s{rK+1}, s{pWS+1}, 0")
    e(f"s_mov_b32 s{rK+2}, 0x20000")
    e(f"s_mov_b32 s{rK+3}, 0x20000")
    e(f"s_add_u32 s{rV}, s{rK}, {2 << 20}")
    e(f"s_addc_u32 s{rV+1}, s{rK+1}, 0")
    e(f"s_mov_b32 s{rV+2}, 0x20000")
    e(f"s_mov_b32 s{rV+3}, 0x20000")
    ep = epiF(AB, sHoff)
    n1 = opt.get("ep1", 26)
    a.ds_wait_all()
    for f, c in ep[:n1]: f()
    sp.stamp("ep", lvl=5, nowait=True)
    a.vm_wait("poll")
    sp.stamp("pl", lvl=5, nowait=True)
    e(f"v_cmp_gt_u32 s[74:75], 16, v{vDum+3}")
    e(f"s_cmp_eq_u64 s[74:75], 0")
    e(f"s_cbranch_scc1 L_e2ok")
    sv = (list(a.vm), list(a.hist))
    for f, c in ep[n1:]: f()
    e("s_barrier")
    poll(vPoll, vDum + 3, 16, 1)
    qload(); e("s_waitcnt vmcnt(0)"); e(f"s_branch L_e2j")
    a.label("L_e2ok")
    a.vm, a.hist = sv
    sp.stamp("r2"); sp.stamp("ok", lvl=5, nowait=True)
    qload()
    for f, c in ep[n1:]: f()
    sp.stamp("ep2", lvl=5, nowait=True)
    e("s_barrier")
    a.label("L_e2j")
    kvload(1); kvload(2)
    sFlag, sIt, sOoff = 59, 60, 61
    e(f"s_mov_b32 s{sFlag}, 0")
    e(f"s_lshl2_add_u32 s{sOoff}, s{sQB}, s{sW}")
    e(f"s_lshl4_add_u32 s{sOoff}, s{sOoff}, s{sHead}")
    e(f"s_lshl_b32 s{sOoff}, s{sOoff}, 11")
    e(f"s_add_u32 s{sOoff}, s{sOoff}, {O_OFF}")
    for jj in range(4):
        e(f"s_add_u32 s{sT1}, s{sW}, {jj}")
        e(f"s_and_b32 s{sT1}, s{sT1}, 3")
        e(f"s_lshl_b32 s{sT1}, s{sT1}, 11")
        e(f"s_add_u32 s{sT1}, s{sT1}, {QX}")
        e(f"v_add_u32 v{T+2+jj}, s{sT1}, v{vSt}")
    zl = [] if opt.get("full", 0) else [O + r for r in range(64)] + [P + 8 + r for r in range(8)] + [KV + 56 + r for r in range(8)]
    def zero(n):
        for _ in range(n):
            if zl: e(f"v_mov_b32 v{zl.pop(0)}, 0")
    sp.stamp("pre", lvl=5, nowait=True)
    a.vm_wait("kv0")
    sp.stamp("kv0", lvl=5, nowait=True)
    e(f"v_mfma_f32_32x32x16_bf16 v[{Sx}:{Sx+15}], v[{KV}:{KV+3}], v[{Q}:{Q+3}], 0")
    e(f"v_mfma_f32_32x32x16_bf16 v[{Sx}:{Sx+15}], v[{KV+4}:{KV+7}], v[{Q+4}:{Q+7}], v[{Sx}:{Sx+15}]")
    zero(14)
    sp.stamp("qkv")
    jmap = lambda n: (n + 1) % 4 if n >= 60 else n % 4
    def qk(n, half):
        i, j = (n // 4) % 4, jmap(n)
        d = Sx + 16 * (n % 2); k = KV + 16 * i + 4 * half; q = Q + 8 * j + 4 * half
        c = "0" if half == 0 else f"v[{d}:{d+15}]"
        e(f"v_mfma_f32_32x32x16_bf16 v[{d}:{d+15}], v[{k}:{k+3}], v[{q}:{q+3}], {c}")
    def pv(n, half):
        i, j = (n // 4) % 4, jmap(n)
        d = O + 16 * j; v = KV + 16 * i + 8 + 4 * half; p = P + 8 * (n % 2) + 4 * half
        e(f"v_mfma_f32_32x32x16_bf16 v[{d}:{d+15}], v[{v}:{v+3}], v[{p}:{p+3}], v[{d}:{d+15}]")
    def sm(n, g):
        s = Sx + 16 * (n % 2) + 4 * g; p = P + 8 * (n % 2) + 2 * g
        for k in range(4): e(f"v_exp_f32 v{s+k}, v{s+k}")
        e(f"v_cvt_pk_bf16_f32 v{p}, v{s}, v{s+1}")
        e(f"v_cvt_pk_bf16_f32 v{p+1}, v{s+2}, v{s+3}")
    M = T + 8
    def patch(jjs, bias):
        U = M + 4
        for jj in jjs: e(f"v_mov_b32 v{U+jj}, v{M+jj}")
        for jj in jjs: e(f"v_permlane32_swap_b32 v{M+jj}, v{U+jj}")
        for jj in jjs: e(f"v_max_f32 v{M+jj}, v{M+jj}, v{U+jj}")
        for jj in jjs: e(f"v_sub_f32 v{M+jj}, {hexf(-bias) if bias else 0}, v{M+jj}")
        for jj in jjs: e(f"v_cvt_pk_bf16_f32 v{U+jj}, v{M+jj}, v{M+jj}")
        for jj in jjs: e(f"v_and_b32 v{U+jj}, 0xffff0000, v{U+jj}")
        for jj in jjs: e(f"v_sub_f32 v{U+jj}, v{M+jj}, v{U+jj}")
        for jj in jjs: e(f"v_cvt_pk_bf16_f32 v{M+jj}, v{M+jj}, v{U+jj}")
        for jj in jjs: e(f"v_cndmask_b32 v{Q+8*jj+6}, v{M+jj}, v{Q+8*jj+6}, vcc")
        for jj in jjs: e(f"v_and_b32 v{M+jj}, 0xffff0000, v{M+jj}")
        for jj in jjs: e(f"v_sub_f32 v{U+jj}, v{U+jj}, v{M+jj}")
        for jj in jjs: e(f"v_cvt_pk_bf16_f32 v{U+jj}, v{U+jj}, 0")
        for jj in jjs: e(f"v_cndmask_b32 v{Q+8*jj+7}, v{U+jj}, v{Q+8*jj+7}, vcc")
    for k in range(4): e(f"v_max3_f32 v{M+4+k}, v{Sx+4*k}, v{Sx+4*k+1}, v{Sx+4*k+2}")
    for k in range(2): e(f"v_max3_f32 v{M+4+2*k}, v{M+4+2*k}, v{M+5+2*k}, v{Sx+8*k+3}")
    e(f"v_max3_f32 v{M}, v{Sx+7}, v{Sx+15}, v{M+4}")
    e(f"v_max_f32 v{M}, v{M}, v{M+6}")
    patch([0], BIAS)
    a.ds_op(f"ds_write_b128 v{T+2}, v[{Q}:{Q+3}]")
    a.ds_op(f"ds_write_b128 v{T+2}, v[{Q+4}:{Q+7}] offset:1024")
    zero(16)
    lds_sync(1, 4, T, T + 1, lambda: (qk(0, 0), qk(0, 1), zero(24)))
    for jj in range(1, 4):
        a.ds_op(f"ds_read_b128 v[{Q+8*jj}:{Q+8*jj+3}], v{T+2+jj}")
        a.ds_op(f"ds_read_b128 v[{Q+8*jj+4}:{Q+8*jj+7}], v{T+2+jj} offset:1024")
    zero(99)
    e("s_waitcnt vmcnt(8)")
    last_signals(0, 8, sRB, 12, T, T + 1)
    lds_arrive(2, T, T + 1)
    e(f"s_setprio {opt.get('attprio', 1)}")
    a.vm = []
    padat("preloop")
    sp.stamp("preloop"); sp.stamp("preloop", lvl=5)
    def pv0(n, half):
        i, j = (n // 4) % 4, jmap(n)
        d = O + 16 * j; v = KV + 16 * i + 8 + 4 * half; p = P + 8 * (n % 2) + 4 * half
        c = "0" if (n < 4 and half == 0) else f"v[{d}:{d+15}]"
        e(f"v_mfma_f32_32x32x16_bf16 v[{d}:{d+15}], v[{v}:{v+3}], v[{p}:{p+3}], {c}")
    def owrite(jj):
        for q in range(4):
            r = O + 16 * jj + 4 * q
            a.ds_op(f"ds_write_b128 v{T+jj}, v[{r}:{r+3}] offset:{(jj-1)*4096 + q*1024}")
    for jj in range(4):
        e(f"s_add_u32 s{sT1}, s{sW}, {jj}")
        e(f"s_and_b32 s{sT1}, s{sT1}, 3")
        e(f"s_mul_i32 s{sT1}, s{sT1}, 12288")
        e(f"s_add_u32 s{sT1}, s{sT1}, {ATT_LDS}")
        e(f"v_add_u32 v{T+jj}, s{sT1}, v{vSt}")
    FULL = opt.get("full", 0)
    PAT = opt.get("pat", "D")
    def slot_code(n, first):
        ti, j = divmod(n, 4)
        sb = Sx + 16 * (n % 2); pb = P + 8 * (n % 2)
        E = [f"v_exp_f32 v{sb+k}, v{sb+k}" for k in range(16)]
        Cv = [f"v_cvt_pk_bf16_f32 v{pb+k}, v{sb+2*k}, v{sb+2*k+1}" for k in range(8)]
        sq = {"A": [E[0:4] + Cv[0:2], E[4:8] + Cv[2:4], E[8:12] + Cv[4:6], E[12:16] + Cv[6:8]],
              "D": [E[0:3], E[3:6], E[6:9], E[9:16] + Cv],
              "E": [E[0:3], E[3:5] + Cv[0:2], E[5:8], E[8:16] + Cv[2:]],
              "B": [E[0:3], E[3:8] + Cv[0:4], E[8:11], E[11:16] + Cv[4:]],
              "F": [E[0:3] + [], E[3:6] + Cv[0:2], E[6:10] + Cv[2:4], E[10:16] + Cv[4:]]}[PAT]
        run = lambda L: [e(x) for x in L]
        if j == 3 and ti < 15: e(f"s_waitcnt vmcnt({4 * min(2, 14 - ti)})")
        if n + 1 < 64: qk(n + 1, 0)
        run(sq[0])
        if n + 1 < 64: qk(n + 1, 1)
        run(sq[1])
        if n or not first: (pv0 if first else pv)(n + 15 if n == 0 else n - 1, 0)
        run(sq[2])
        if n or not first: (pv0 if first else pv)(n + 15 if n == 0 else n - 1, 1)
        LP = opt.get("ldpos", 3)
        run(sq[3][:LP])
        if j == 0 and ti + 3 < 16:
            for k in range(4):
                r = KV + 16 * ((ti + 3) % 4) + 4 * k
                e(f"buffer_load_dwordx4 v[{r}:{r+3}], v{vSt}, {S(rK if k < 2 else rV)}, s{sRun} offen offset:{2048*(ti%2) + 1024*(k%2)}{LD}")
            if ti % 2:
                e(f"s_add_u32 s{sRun}, s{sRun}, 4096")
                e(f"s_and_b32 s{sRun}, s{sRun}, 0x1ffff")
        if n == 59:
            e(f"v_mov_b32 v{T+4}, {SYNC}")
            a.ds_op(f"ds_read_b32 v{T+5}, v{T+4}", "chk")
        if n == 62:
            lds_check(0, 8, T + 4, T + 5)
            owrite(1)
        if n == 63: owrite(2)
        run(sq[3][LP:])
    if FULL:
        a.raw(".p2align 6")
        for n in range(64): slot_code(n, True)
    else:
        e(f"s_mov_b32 s{sIt}, 2")
        a.raw(".p2align 6")
        a.label("L_loop")
        start = len(a.lines)
        for n in range(16): slot_code(n, False)
        e(f"s_sub_u32 s{sIt}, s{sIt}, 1")
        e("s_cbranch_scc0 L_loop")
        check_loop(a.lines[start:])
        for n in range(48, 64): slot_code(n, False)
    pv0(63, 0); pv0(63, 1)
    if opt.get("kdefer", 99) < 28: lds_arrive(13, T + 4, T + 5)
    padat("loop")
    sp.stamp("loop"); sp.stamp("loop", lvl=4)
    a.vm = []
    owrite(3)
    sp.stamp("wr", lvl=4)
    lds_sync(7, 4, T + 4, T + 5)
    sp.stamp("sy", lvl=4)
    for p in range(3):
        for q in range(4):
            r = O + 16 + 16 * p + 4 * q
            a.ds_op(f"ds_read_b128 v[{r}:{r+3}], v{T} offset:{p*4096 + q*1024}", f"p{p}")
    for p in range(3):
        a.ds_wait(f"p{p}")
        for k in range(16): e(f"v_add_f32 v{O+k}, v{O+k}, v{O+16+16*p+k}")
    sp.stamp("rd", lvl=4)
    a.label("L_norm")
    e(f"v_mov_b32 v{T}, v{O+12}")
    e(f"v_mov_b32 v{T+1}, v{O+12}")
    e(f"v_permlane32_swap_b32 v{T}, v{T+1}")
    e(f"v_rcp_f32 v{T}, v{T+1}")
    e(f"v_mov_b32 v{T+2}, 0")
    for k in range(16): e(f"v_mul_f32 v{O+k}, v{O+k}, v{T}")
    for k in range(8): e(f"v_cvt_pk_bf16_f32 v{P+k}, v{O+2*k}, v{O+2*k+1}")
    e(f"v_cndmask_b32 v{P+6}, 0, v{P+6}, vcc")
    e(f"v_cndmask_b32 v{P+7}, 0, v{P+7}, vcc")
    e(f"buffer_store_dwordx4 v[{P}:{P+3}], v{vSt}, {S(rWS)}, s{sOoff} offen{ST}")
    e(f"buffer_store_dwordx4 v[{P+4}:{P+7}], v{vSt}, {S(rWS)}, s{sOoff} offen offset:1024{ST}")
    for k in range(16): e(f"v_fmac_f32 v{T+2}, 0, v{O+k}")
    e(f"v_mov_b32 v{T+3}, {hexf(2.0**-(BIAS+8))}")
    e(f"v_cmp_u_f32 s[66:67], v{T+2}, v{T+2}")
    e(f"v_cmp_lt_f32 s[74:75], v{T+1}, v{T+3}")
    e(f"s_or_b64 s[66:67], s[66:67], s[74:75]")
    e(f"s_cmp_eq_u64 s[66:67], 0")
    e(f"s_cselect_b32 s{sT1}, 1, s{sFlag}")
    e(f"s_cmp_eq_u32 s{sT1}, 0")
    e(f"s_cbranch_scc1 L_slow")
    sp.stamp("chk", lvl=4)
    e(f"s_waitcnt vmcnt(0)")
    sp.stamp("ost"); sp.stamp("ost", lvl=4); sp.stamp("ost", lvl=7)
    e(f"s_lshl2_add_u32 s{sT2}, s{sQB}, s{sW}")
    e(f"s_lshr_b32 s{sT3}, s{sHead}, 2")
    e(f"s_lshl2_add_u32 s{sT2}, s{sT2}, s{sT3}")
    signal(sT2, 28, T + 4, T + 5)
    lds_arrive(9, T + 6, T + 7)
    hdiag(0)
    sp.dump(pWS, sW)
    e("s_endpgm")
    a.label("L_slow")
    a.reset_hist()
    e(f"s_waitcnt vmcnt(0)")
    e(f"s_mov_b32 s{sFlag}, 1")
    e(f"s_mov_b32 s{rK+2}, 0x20000")
    e(f"s_mov_b32 s{rV+2}, 0x20000")
    e(f"v_cndmask_b32 v{Q+6}, 0, v{Q+6}, vcc")
    e(f"v_cndmask_b32 v{Q+7}, 0, v{Q+7}, vcc")
    e(f"v_mov_b32 v{M}, 0xff800000")
    e(f"s_mov_b32 s{sRun}, 0")
    e(f"s_mov_b32 s{sIt}, 64")
    a.label("L_s1")
    start = len(a.lines)
    e(f"buffer_load_dwordx4 v[{KV}:{KV+3}], v{vSt}, {S(rK)}, s{sRun} offen{LD}")
    e(f"buffer_load_dwordx4 v[{KV+4}:{KV+7}], v{vSt}, {S(rK)}, s{sRun} offen offset:1024{LD}")
    e("s_waitcnt vmcnt(0)")
    e(f"v_mfma_f32_32x32x16_bf16 v[{Sx}:{Sx+15}], v[{KV}:{KV+3}], v[{Q}:{Q+3}], 0")
    e(f"v_mfma_f32_32x32x16_bf16 v[{Sx}:{Sx+15}], v[{KV+4}:{KV+7}], v[{Q+4}:{Q+7}], v[{Sx}:{Sx+15}]")
    for k in range(8): e(f"v_max3_f32 v{M}, v{M}, v{Sx+2*k}, v{Sx+2*k+1}")
    e(f"s_add_u32 s{sRun}, s{sRun}, 2048")
    e(f"s_sub_u32 s{sIt}, s{sIt}, 1")
    e(f"s_cmp_lg_u32 s{sIt}, 0")
    e("s_cbranch_scc1 L_s1")
    check_loop(a.lines[start:])
    patch([0], 0.0)
    for r in range(16): e(f"v_mov_b32 v{O+r}, 0")
    e(f"s_mov_b32 s{sRun}, 0")
    e(f"s_mov_b32 s{sIt}, 64")
    a.label("L_s2")
    start = len(a.lines)
    for k in range(4):
        e(f"buffer_load_dwordx4 v[{KV+4*k}:{KV+4*k+3}], v{vSt}, {S(rK if k < 2 else rV)}, s{sRun} offen offset:{1024*(k%2)}{LD}")
    e("s_waitcnt vmcnt(0)")
    qk(0, 0); qk(0, 1)
    for g in range(4): sm(0, g)
    pv(0, 0); pv(0, 1)
    e(f"s_add_u32 s{sRun}, s{sRun}, 2048")
    e(f"s_sub_u32 s{sIt}, s{sIt}, 1")
    e(f"s_cmp_lg_u32 s{sIt}, 0")
    e("s_nop 11")
    e("s_cbranch_scc1 L_s2")
    check_loop(a.lines[start:])
    e("s_branch L_norm")
    a.label("L_gemm")
    a.reset_hist(); a.vm = []; a.lg = []; sp.set(nst)
    ACCG, HR, WFR, T, WO_F, XF, GF = 16, 80, 136, 152, 160, 224, 136
    OF = HR
    GF = 240
    vA0, vA1, vIO, vCt = 4, 5, 6, 7
    sH0, sH1, sI0 = 59, 60, 61
    DP = opt.get("gdepth", 5)
    PACE = opt.get("pace", 4)
    def pace():
        nonlocal PACE
        if PACE and len(a.vm) > PACE:
            e(f"s_waitcnt vmcnt({PACE})"); a.vm = a.vm[-PACE:]
    e(f"s_setprio {opt.get('gprio0', 2)}")
    e(f"s_cmp_lt_u32 s{sJ}, 28")
    e(f"s_cbranch_scc1 L_gemm2")
    e(f"s_waitcnt vmcnt(0)")
    last_signals(0, 8, sRB, 12, T, T + 1)
    e("s_endpgm")
    a.label("L_gemm2")
    a.vm_mark("hst")
    lds_sync(3, 4, T, T + 1)
    srd(a, rW, pWO, WO_BYTES)
    e(f"s_sub_u32 s{sWq}, s{sW}, 4")
    e(f"s_mul_i32 s{sT1}, s{sJ}, 37")
    e(f"s_lshr_b32 s{sT1}, s{sT1}, 8")
    e(f"s_mul_i32 s{sT2}, s{sT1}, 7")
    e(f"s_sub_u32 s{sCB}, s{sJ}, s{sT2}")
    e(f"s_lshl2_add_u32 s{sTB}, s{sX}, s{sT1}")
    e(f"s_lshl_b32 s{sCB}, s{sCB}, 7")
    e(f"s_mul_i32 s{sLB}, s{sWq}, 12288")
    dma_voff(a, vLane, vD, T, T + 1)
    e(f"v_and_b32 v{T}, 31, v{vLane}")
    e(f"v_mul_u32_u24 v{T}, 896, v{T}")
    e(f"v_lshrrev_b32 v{T+1}, 5, v{vLane}")
    e(f"v_lshl_add_u32 v{vIO}, v{T+1}, 3, v{T}")
    e(f"s_and_b32 s{sT1}, s{sWq}, 1")
    e(f"s_lshl1_add_u32 s{sT3}, s{sTB}, s{sT1}")
    e(f"s_mul_i32 s{sI0}, s{sT3}, {32*896}")
    e(f"s_add_u32 s{sI0}, s{sI0}, s{sCB}")
    e(f"s_lshr_b32 s{sT2}, s{sWq}, 1")
    e(f"s_lshl_b32 s{sT2}, s{sT2}, 6")
    e(f"s_add_u32 s{sI0}, s{sI0}, s{sT2}")
    def issue_w(s):
        st = s % 6
        e(f"s_add_u32 m0, s{sLB}, {st*2048}")
        e(f"s_add_u32 s{sT1}, s{sWo}, {8*896}")
        a.vm_op(f"buffer_load_dwordx4 v{vD}, {S(rB)}, s{sWo} offen lds", f"s{s}")
        e(f"s_add_u32 m0, s{sLB}, {st*2048+1024}")
        e(f"s_add_u32 s{sWo}, s{sWo}, {16*896}")
        a.vm_op(f"buffer_load_dwordx4 v{vD}, {S(rB)}, s{sT1} offen lds", f"s{s}")
    srd(a, rB, pW2, W2_BYTES)
    e(f"s_mul_i32 s{sWo}, s{sWq}, {448*896}")
    e(f"s_add_u32 s{sWo}, s{sWo}, s{sCB}")
    NW0 = opt.get("nw0", 2)
    for s in range(NW0): issue_w(s)
    e(f"s_mul_i32 s{sH0}, s{sT3}, 112")
    e(f"s_xor_b32 s{sT3}, s{sT3}, 1")
    e(f"s_mul_i32 s{sH1}, s{sT3}, 112")
    e(f"s_mul_i32 s{sT1}, s{sWq}, 28")
    e(f"s_add_u32 s{sT1}, s{sT1}, {H_OFF >> 10}")
    e(f"s_add_u32 s{sH0}, s{sH0}, s{sT1}")
    e(f"s_add_u32 s{sH1}, s{sH1}, s{sT1}")
    e(f"s_lshl_b32 s{sH0}, s{sH0}, 10")
    e(f"s_lshl_b32 s{sH1}, s{sH1}, 10")
    e(f"s_xor_b32 s{sT2}, s{sT2}, s{sLB}")
    tr_addr(a, vLane, vA0, vA1, T, T + 1, T + 2, sT2, xor=True)
    def wr(s, d0, off, wait=True):
        if wait: a.vm_wait(f"s{s}")
        for ct in range(2):
            d = d0 + ct * 4
            ad = vA0 if ct == 0 else vA1
            a.ds_op(f"ds_read_b64_tr_b16 v[{d}:{d+1}], v{ad} offset:{off}", f"w{s}")
            a.ds_op(f"ds_read_b64_tr_b16 v[{d+2}:{d+3}], v{ad} offset:{off+1024}", f"w{s}")
    e(f"s_lshr_b32 s{sT1}, s{sTB}, 1")
    e(f"s_lshl_b32 s{sT1}, s{sT1}, 7")
    e(f"s_add_u32 s{sT1}, s{sT1}, {12*128}")
    e(f"v_mov_b32 v{vCt}, s{sT1}")
    def issue_h(s):
        st = s % 6
        off = (s % 4) * 1024
        a.vm_op(f"buffer_load_dwordx4 v[{HR+8*st}:{HR+8*st+3}], v{vSt}, {S(rWS)}, s{sH0} offen offset:{off}{LD}", f"s{s}")
        a.vm_op(f"buffer_load_dwordx4 v[{HR+8*st+4}:{HR+8*st+7}], v{vSt}, {S(rWS)}, s{sH1} offen offset:{off}{LD}", f"s{s}")
        if s % 4 == 3:
            e(f"s_add_u32 s{sH0}, s{sH0}, 4096")
            e(f"s_add_u32 s{sH1}, s{sH1}, 4096")
    a.vm_wait("hst")
    last_signals(0, 8, sRB, 12, T, T + 1)
    for s in range(NW0, 6): issue_w(s); pace()
    e(f"s_cmp_lg_u32 s{sWq}, 0")
    e(f"s_cbranch_scc1 L_hw")
    poll(vCt, T + 1, 16, opt.get("hsleep", 4))
    lds_arrive(8, T, T + 1)
    a.label("L_hw")
    lds_spin(2, 4, T, T + 1, 3)
    lds_spin(8, 1, T, T + 1, 3)
    e(f"s_waitcnt vmcnt(0)")
    sp.stamp("hrdy")
    for s in range(DP): issue_h(s)
    e(f"s_setprio {opt.get('gprio', 0)}")
    def mm(s, w, h):
        for ct in range(2):
            for tt in range(2):
                d = ACCG + (2*ct+tt) * 16
                c = "0" if s == 0 else f"v[{d}:{d+15}]"
                e(f"v_mfma_f32_32x32x16_bf16 v[{d}:{d+15}], v[{w+4*ct}:{w+4*ct+3}], v[{h+4*tt}:{h+4*tt+3}], {c}")
    wr(0, WFR, 0)
    XG = 144
    late = []
    def wo_first():
        e(f"s_mul_i32 s{sH0}, s{sWq}, 15360")
        e(f"s_mul_i32 s{sWo}, s{sWq}, {112*896}")
        e(f"s_add_u32 s{sWo}, s{sWo}, s{sCB}")
    def wo_dma(i):
        if i == 0: wo_first()
        e(f"s_add_u32 m0, s{sH0}, {WO_LDS + i*1024}")
        if i: e(f"s_add_u32 s{sWo}, s{sWo}, {8*896}")
        a.vm_op(f"buffer_load_dwordx4 v{vD}, {S(rW)}, s{sWo} offen lds", "wo")
    XG = XF + 8
    for i in range(15): late.append(lambda i=i: wo_dma(i))
    for q in range(4):
        late.append(lambda q=q: a.vm_op(f"buffer_load_dwordx2 v[{XG+2*q}:{XG+2*q+1}], v{vIO}, {S(rX)}, s{sI0} offen offset:{16*q}", "xg"))
    TOP = opt.get("gtop", 0)
    KD = opt.get("kdefer", 99)
    for s in range(28):
        if s == KD:
            for _ in range(opt.get("lateN", 19)):
                if late: late.pop(0)(); pace()
            lds_spin(13, opt.get("kdn", 4), T, T + 1, 2)
            e(f"s_setprio {opt.get('gprio4', 2)}")
        if s == opt.get("kp2", 99): e(f"s_setprio {opt.get('kp2v', 2)}")
        if TOP and s > 0:
            if s + 1 < 28: a.vm_wait(f"s{s+1}")
            if 6 <= s + DP - 1 < 28: issue_w(s + DP - 1)
            if s + DP - 1 < 28: issue_h(s + DP - 1)
        if s + 1 < 28: wr(s + 1, WFR + ((s + 1) % 2) * 8, ((s + 1) % 6) * 2048)
        a.ds_wait(f"w{s}")
        if not opt.get("x_nogm") or s == 0: mm(s, WFR + (s % 2) * 8, HR + 8 * (s % 6))
        if opt.get("x_nogl") or TOP: continue
        if 6 <= s + DP < 28: issue_w(s + DP)
        if s + DP < 28: issue_h(s + DP)
        else:
            for _ in range(4):
                if late: late.pop(0)()
    while late: late.pop(0)()
    sp.stamp("w2")
    e(f"s_setprio {opt.get('gprio3', 0)}")
    def exchange(k):
        e(f"v_add_u32 v{T}, s{sLB}, v{vSt}")
        for sl in range(1, 4):
            for q in range(4):
                r = ACCG + 16 * sl + 4 * q
                a.ds_op(f"ds_write_b128 v{T}, v[{r}:{r+3}] offset:{(sl-1)*4096 + q*1024}")
            e(f"s_xor_b32 s{sT1}, s{sWq}, {sl}")
            e(f"s_mul_i32 s{sT1}, s{sT1}, 12288")
            e(f"v_add_u32 v{T+2+sl}, s{sT1}, v{vSt}")
        if k == 6: sp.stamp("wr", lvl=4)
        lds_sync(k, 4, T + 1, T + 2)
        if k == 6: sp.stamp("sy", lvl=4)
        for p in range(3):
            for q in range(4):
                r = ACCG + 16 + 16 * p + 4 * q
                a.ds_op(f"ds_read_b128 v[{r}:{r+3}], v{T+3+p} offset:{p*4096 + q*1024}", f"p{p}")
        for p in range(3):
            a.ds_wait(f"p{p}")
            for kk in range(16): e(f"v_add_f32 v{ACCG+kk}, v{ACCG+kk}, v{ACCG+16+16*p+kk}")
    exchange(4)
    U = ACCG + 16
    for k in range(16): e(f"v_mul_f32 v{U+k}, {hexf(-LOG2E)}, v{ACCG+k}")
    for k in range(16): e(f"v_exp_f32 v{U+k}, v{U+k}")
    for k in range(16): e(f"v_add_f32 v{U+k}, 1.0, v{U+k}")
    for k in range(16): e(f"v_rcp_f32 v{U+k}, v{U+k}")
    for k in range(16): e(f"v_mul_f32 v{GF+k}, v{ACCG+k}, v{U+k}")
    e(f"s_mul_i32 s{sT2}, s{sWq}, 15360 - 12288")
    e(f"s_add_u32 s{sT2}, s{sT2}, {WO_LDS}")
    e(f"v_add_u32 v{vA0}, s{sT2}, v{vA0}")
    e(f"v_add_u32 v{vA1}, s{sT2}, v{vA1}")
    a.vm_wait("xg")
    for s in range(8):
        wr(100 + s, WO_F + 8 * s, (28 * (s // 2) + 16 * (s % 2)) * 128, wait=False)
    for k in range(8):
        if k < 7:
            e(f"v_lshlrev_b32 v{XF+2*k}, 16, v{XG+k}")
            e(f"v_and_b32 v{XF+2*k+1}, 0xffff0000, v{XG+k}")
        else:
            e(f"v_lshlrev_b32 v{XF+14}, 16, v{XG+7}")
            e(f"v_and_b32 v{XF+15}, 0xffff0000, v{XG+7}")
    a.ds_wait_all()
    lds_sync(5, 4, T + 1, T + 2)
    srd(a, rW3, pOUT, X_BYTES)
    e(f"s_and_b32 s{sT1}, s{sWq}, 1")
    e(f"s_lshl1_add_u32 s{sT1}, s{sTB}, s{sT1}")
    e(f"s_lshl_b32 s{sH0}, s{sT1}, 15")
    e(f"s_lshl_b32 s{sT1}, s{sWq}, 13")
    e(f"s_add_u32 s{sH0}, s{sH0}, s{sT1}")
    e(f"s_add_u32 s{sH0}, s{sH0}, {O_OFF}")
    e(f"s_xor_b32 s{sH1}, s{sH0}, 32768")
    e(f"v_min_u32 v{T}, 1, v{vLane}")
    e(f"v_lshlrev_b32 v{T}, 2, v{T}")
    e(f"s_lshl3_add_u32 s{sT1}, s{sTB}, s{sWq}")
    e(f"s_add_u32 s{sT1}, s{sT1}, 28")
    e(f"v_add_lshl_u32 v{vCt}, v{T}, s{sT1}, 7")
    e(f"v_lshrrev_b32 v{T}, 5, v{vLane}")
    e(f"v_lshl_add_u32 v{vIO}, v{T}, 3, v{vIO}")
    sp.stamp("grdy")
    lds_spin(9, 4, T, T + 1, 3)
    e(f"s_setprio 2")
    poll(vCt, T + 1, 4, opt.get("osleep", 1))
    sp.stamp("ordy"); sp.stamp("ordy", lvl=4)
    for s in range(8):
        if s == 4:
            e(f"s_add_u32 s{sH0}, s{sH0}, 4096")
            e(f"s_add_u32 s{sH1}, s{sH1}, 4096")
        a.vm_op(f"buffer_load_dwordx4 v[{OF+8*s}:{OF+8*s+3}], v{vSt}, {S(rWS)}, s{sH0} offen offset:{(s%4)*1024}{LD}", f"o{s}")
        a.vm_op(f"buffer_load_dwordx4 v[{OF+8*s+4}:{OF+8*s+7}], v{vSt}, {S(rWS)}, s{sH1} offen offset:{(s%4)*1024}{LD}", f"o{s}")
    sp.stamp("oiss", lvl=4, nowait=True)
    for s in range(8):
        a.vm_wait(f"o{s}")
        if s in (0, 7): sp.stamp("o", lvl=4, nowait=True)
        mm(s, WO_F + 8 * s, OF + 8 * s)
    exchange(6)
    sp.stamp("ex", lvl=4)
    for k in range(16): e(f"v_fma_f32 v{ACCG+k}, v{ACCG+k}, v{GF+k}, v{XF+k}")
    for k in range(8): e(f"v_cvt_pk_bf16_f32 v{U+k}, v{ACCG+2*k}, v{ACCG+2*k+1}")
    for pr in range(2):
        e(f"v_permlane32_swap_b32 v{U+4*pr}, v{U+4*pr+2}")
        e(f"v_permlane32_swap_b32 v{U+4*pr+1}, v{U+4*pr+3}")
    e(f"buffer_store_dwordx4 v[{U}:{U+3}], v{vIO}, {S(rW3)}, s{sI0} offen{opt.get('ost', '')}")
    e(f"buffer_store_dwordx4 v[{U+4}:{U+7}], v{vIO}, {S(rW3)}, s{sI0} offen offset:32{opt.get('ost', '')}")
    hdiag(1)
    if opt.get("padg"):
        e("v_mov_b32 v0, 0")
        e(f"global_load_dword v0, v0, s[{pDBG}:{pDBG+1}] offset:4 sc1")
        e("s_waitcnt vmcnt(0)")
        e("v_readfirstlane_b32 s76, v0")
        e("s_not_b32 s76, s76")
    if opt.get("pad"):
        a.label("L_pad")
        e("s_memrealtime s[80:81]")
        e("s_waitcnt lgkmcnt(0)")
        e("s_sub_u32 s80, s80, s76")
        e(f"s_cmp_lt_u32 s80, {opt['pad']}")
        e("s_cbranch_scc1 L_pad")
    sp.stamp("end"); sp.stamp("end", lvl=4); sp.stamp("end", lvl=7)
    if sp.on == 4: e("s_waitcnt vmcnt(0)")
    sp.stamp("drain", lvl=4)
    sp.dump(pWS, sW)
    a.label("L_end")
    e("s_endpgm")
    return kd(NAME, 256)

if __name__ == "__main__":
    opt = json.loads(sys.argv[2]) if len(sys.argv) > 2 else {}
    a = Asm()
    for l in """; out = x + (softmax(q k^T / sqrt(28)) v @ wo) * silu((silu(xn w1) * (xn w3)) @ w2),  xn = layernorm(x),  q|k|v = xn wqkv
; One persistent launch, one 8-wave workgroup per CU; workgroups hand data over through d_ws (write-through stores,
; counters cleared by workgroup 0 and released through d_debug[0], consumers poll with bounded loops).
;  phase A (all waves): centre 128 rows of x (1/std is applied to the results), three rounds of 32x32 tiles against
;          weight tiles that stream through LDS: q/k/v (heads padded 28 -> 32) and h = silu(gate) * up, stored as MFMA fragments
;  phase B waves 0-3: attention for one head and 128 queries, keys split over the waves.  The softmax shift of a row is
;          its true maximum over a first key tile plus 64 (in log2 units), folded into the q k^T MFMA through the spare k slots;
;          the row sum comes from a column of ones in v.  If that shift turns out unsafe (non-finite result or a row
;          sum below 2^-72) the wave redoes its q tile with the true maximum over all keys (L_slow).
;          waves 4-7: h @ w2 for a 64x64 tile (k split over the waves), gate = silu(.)
;  phase C waves 4-7: o @ wo for the same tile, out = x + s * gate
; @launch grid=(256,1,1) block=(512,1,1) lds=163840""".split("\n"): a.raw(l)
    a.raw('.amdgcn_target "amdgcn-amd-amdhsa--gfx950"')
    a.raw(".text")
    k = gen(a, opt)
    a.raw("L_code_end:")
    a.raw(".fill 64, 4, 0xbf800000")
    a.raw("    s_endpgm")
    a.raw('.section .rodata,"a"')
    a.raw(k)
    open(sys.argv[1], "w").write(a.text())
    print("nops inserted:", a.nops, "lines:", len(a.lines))
```

```python
import sys, json
from common import *
from gemm64 import *
BIAS = 32.0
NAME = "recurrent_scan__softmax_full_mha__glu_gated_swiglu__prompt_kernel"

def gen(a, opt):
    BIAS = float(opt.get("bias", 64))
    ST = opt.get("st", " sc1")
    LD = " sc1"
    NPH = opt.get("nph", 2)
    kernel_head(a, NAME)
    e = a.e
    uid = [0]
    def lab(p):
        uid[0] += 1; return f"L_{p}{uid[0]}"
    pX, pWQ, pWO, pW1, pW3, pW2, pOUT, pDBG, pWS = 4, 6, 8, 12, 14, 16, 18, 20, 22
    rX, rW1, rW3, rA, rB, rWS = 24, 28, 32, 36, 40, 44
    S = lambda r: f"s[{r}:{r+3}]"
    sW, sTT, sG, sRB, sCOL, sTTG = 48, 49, 50, 51, 52, 53
    sSO = [[54, 55], [56, 56], [57, 57]]
    sP64, sM0, sCurA, sCurB, sOnes, sLo, sHi, sHoff, sQKoff, sQKstep = 58, 59, 60, 61, 62, 63, 64, 65, 66, 67
    sT1, sT2, sT3, sStat, sPh, sHoff2 = 68, 69, 70, 71, 72, 73
    X0, AA, AB, WF, T0 = 16, 128, 160, 192, 216
    vLane, vSt, vD0, vD1, vD2B = 1, 2, 3, 4, 250
    vTB = [[5, 6], [7, 8], [9, 243]]
    vTW = [10, 11]
    vXR = [12, 13, 14, 15]
    vK, vC1, vSc, vP6, vP7, vFlag, vV3, vV4 = 232, 233, 234, 236, 237, 238, 239, 235
    vXW = [240, 241]; vStat = 242; vNM = 243; vAcc = [244, 245, 246, 247]; vV1, vV2 = 248, 249
    vDum = 251
    RAW = 128
    SCR = 7 * 16384
    SYNC = 163840 - 256
    e("s_cmp_ge_u32 s2, 256")
    e("s_cbranch_scc1 L_end")
    sp = Stamper(a, opt.get("stamp"), 0); sp.allreal = opt.get("rt")
    sp.stamp("rt", True); sp.stamp("start")
    if opt.get("hdiag") or opt.get("pad") or opt.get("padat"): e("s_memrealtime s[76:77]"); e("s_memtime s[78:79]")
    e("s_load_dwordx16 s[4:19], s[0:1], 0")
    e("s_load_dwordx4 s[20:23], s[0:1], 64")
    RL = opt.get("rl", 3)
    sWR, sXa, sXb, sGS = sStat, sOnes, sLo, sHi
    e(f"v_lshrrev_b32 v22, 6, v0")
    e(f"v_and_b32 v{vLane}, 63, v0")
    e(f"v_readfirstlane_b32 s{sW}, v22")
    e(f"s_and_b32 s{sT1}, s2, {(16 >> RL) - 1}")
    e(f"s_bfe_u32 s{sT2}, s2, {hex((RL << 16) | 3)}")
    e(f"s_lshl{RL}_add_u32 s{sRB}, s{sT1}, s{sT2}")
    e(f"s_bfe_u32 s{sT1}, s2, {hex(((RL - 1) << 16) | (4 - RL))}")
    e(f"s_lshr_b32 s{sT2}, s2, {3 + RL}")
    e(f"s_lshl2_add_u32 s{sSO[1][0]}, s{sT1}, s{sT2}")
    if opt.get("mix", 1): e(f"s_lshl2_add_u32 s{sCOL}, s{sT2}, s{sT1}")
    else: e(f"s_mov_b32 s{sCOL}, s{sSO[1][0]}")
    e(f"v_bfe_u32 v22, v0, 3, 3")
    e(f"v_and_b32 v23, 7, v0")
    e(f"s_lshl_b32 s{sT1}, s{sT2}, 2")
    e(f"s_and_b32 s{sWR}, s{sT1}, 4")
    e(f"s_xor_b32 s{sWR}, s{sWR}, s{sW}")
    e(f"s_and_b32 s{sGS}, s{sT1}, 8")
    e(f"s_lshl3_add_u32 s{sT1}, s{sRB}, s{sWR}")
    e(f"s_lshl4_add_u32 s{sT2}, s{sT1}, s{sGS}")
    e(f"s_xor_b32 s{sT1}, s{sT2}, 8")
    e(f"s_mulk_i32 s{sT2}, 896")
    e(f"s_mulk_i32 s{sT1}, 896")
    e(f"v_mul_u32_u24 v24, 896, v22")
    e(f"v_lshl_add_u32 v24, v23, 4, v24")
    e(f"s_mov_b32 s{rX+2}, {hex(X_BYTES)}")
    e(f"s_mov_b32 s{rX+3}, 0x20000")
    e(f"s_cmp_ge_u32 s{sW}, 4")
    e("s_waitcnt lgkmcnt(0)")
    e(f"s_mov_b64 s[{rX}:{rX+1}], s[{pX}:{pX+1}]")
    for p in (pWQ, pW1, pW3)[:opt.get("stouch", 3)]: e(f"s_load_dword s{sQKoff}, s[{p}:{p+1}], 0")
    def xloads(lo, hi, sa, sb):
        for k in range(lo, hi):
            gi, i = divmod(k, 7)
            r = RAW + k * 4
            e(f"buffer_load_dwordx4 v[{r}:{r+3}], v24, {S(rX)}, s{sa if gi == 0 else sb} offen offset:{i*128}{opt.get('xnt', '')}")
    def touch():
        sh = opt.get("touchsh", 21)
        e(f"v_min_u32 v25, {(WS_USED >> sh) - 1}, v{vLane}")
        e(f"v_lshlrev_b32 v25, {sh}, v25")
        e(f"global_load_dword v{vDum+1}, v25, s[{pWS}:{pWS+1}]")
        e(f"v_mov_b32 v25, 0")
        for p in (pW1, pW3, pWQ, pW2, pWO, pOUT, pDBG):
            e(f"global_load_dword v{vDum+1}, v25, s[{p}:{p+1}]")
    XE = opt.get("xe", 10)
    e(f"s_cbranch_scc1 L_x0")
    a.skip_begin(); xloads(0, XE, sT2, sT1)
    e(f"s_branch L_x1")
    a.label("L_x0")
    e(f"s_getpc_b64 s[74:75]")
    a.label("L_pc")
    e(f"s_add_u32 s74, s74, {NAME}-L_pc")
    e(f"s_addc_u32 s75, s75, -1")
    e(f"s_lshr_b32 s3, s2, 3")
    e(f"s_lshl_b32 s3, s3, 7")
    e(f"v_and_b32 v20, 255, v0")
    e(f"v_lshl_add_u32 v20, v20, 12, s3")
    e(f"v_min_u32 v{vDum}, L_code_end-{NAME}-4, v20")
    e(f"global_load_dword v{vDum}, v{vDum}, s[74:75]")
    if opt.get("touch") == 1: touch()
    a.skip_end()
    a.label("L_x1")
    sp.stamp("xiss", lvl=3)
    if opt.get("stouch2", 0):
        e(f"s_lshl_b32 s3, s{sW}, 21")
        e(f"s_load_dword s{sQKoff}, s[{pWS}:{pWS+1}], s3")
        e(f"s_mov_b32 s3, {16 << 20}")
        e(f"s_load_dword s{sQKoff}, s[{pWS}:{pWS+1}], s3")
        for p in (pW2, pWO, pOUT, pDBG): e(f"s_load_dword s{sQKoff}, s[{p}:{p+1}], 0")
    e(f"s_mov_b32 s{sXa}, s{sT2}")
    e(f"s_mov_b32 s{sXb}, s{sT1}")
    def padat(nm):
        if opt.get("padat", [None])[0] != nm: return
        l = lab("pa"); a.label(l)
        e("s_memrealtime s[80:81]")
        e("s_waitcnt lgkmcnt(0)"); a.lg = []
        e("s_sub_u32 s80, s80, s76")
        e(f"s_cmp_lt_u32 s80, {opt['padat'][1]}")
        e(f"s_cbranch_scc1 {l}")
    def srd2(d, base, nbytes):
        e(f"s_mov_b64 s[{d}:{d+1}], s[{base}:{base+1}]")
        e(f"s_mov_b32 s{d+2}, {hex(nbytes)}")
        e(f"s_mov_b32 s{d+3}, 0x20000")
    if opt.get("wsoff"):
        e(f"s_add_u32 s{pWS}, s{pWS}, {opt['wsoff'] << 20}")
        e(f"s_addc_u32 s{pWS+1}, s{pWS+1}, 0")
    srd2(rWS, pWS, WS_USED)
    if opt.get("padg"):
        e("s_cmp_ge_u32 s2, 8")
        e("s_cbranch_scc1 L_pg")
        e(f"s_cmp_lg_u32 s{sW}, 7")
        e("s_cbranch_scc1 L_pg")
        e("s_not_b32 s80, s76")
        e("v_mov_b32 v25, 0"); e("v_mov_b32 v26, s80")
        e(f"global_atomic_umax v25, v26, s[{pDBG}:{pDBG+1}] offset:4 sc1")
        a.label("L_pg")
    e(f"s_and_b32 s{sTT}, s{sW}, 3")
    e(f"s_lshr_b32 s{sG}, s{sW}, 2")
    e(f"s_lshl_b32 s{sM0}, s{sW}, 10")
    e(f"s_lshl_b32 s{sPh}, s{sG}, 1")
    sTc0a, sTc0b = sCurA, sCurB
    e(f"s_cmp_ge_u32 s{sCOL}, 12")
    e(f"s_cbranch_scc1 L_r0f")
    srd2(rA, pWQ, WQ_BYTES)
    e(f"s_mov_b64 s[{rB}:{rB+1}], s[{pWQ}:{pWQ+1}]")
    e(f"s_and_b32 s{sT2}, s{sCOL}, 3")
    e(f"s_mul_i32 s{sSO[0][0]}, s{sCOL}, 224")
    e(f"s_cmp_eq_u32 s{sT2}, 3")
    e(f"s_cselect_b32 s{sT3}, 32, 0")
    e(f"s_sub_u32 s{sSO[0][0]}, s{sSO[0][0]}, s{sT3}")
    e(f"s_add_u32 s{sSO[0][1]}, s{sSO[0][0]}, 128")
    e(f"s_mul_i32 s{sTc0a}, s{sG}, 112")
    e(f"s_add_u32 s{sTc0a}, s{sTc0a}, s{sT3}")
    e(f"s_add_u32 s{sTc0b}, s{sTc0a}, 56")
    e(f"s_movk_i32 s{sP64}, 2688")
    e(f"s_branch L_r0j")
    a.label("L_r0f")
    srd2(rA, pW1, W1_BYTES)
    e(f"s_mov_b64 s[{rB}:{rB+1}], s[{pW3}:{pW3+1}]")
    e(f"s_add_u32 s{sT1}, s{sCOL}, 12")
    e(f"s_lshl_b32 s{sSO[0][0]}, s{sT1}, 7")
    e(f"s_mov_b32 s{sSO[0][1]}, s{sSO[0][0]}")
    e(f"s_lshl_b32 s{sTc0a}, s{sG}, 6")
    e(f"s_add_u32 s{sTc0b}, s{sTc0a}, 128")
    e(f"s_movk_i32 s{sP64}, 3584")
    a.label("L_r0j")
    a.reset_hist()
    e(f"s_mov_b32 s{rB+2}, s{rA+2}")
    e(f"s_mov_b32 s{rB+3}, 0x20000")
    e(f"s_and_b32 s{sT3}, s{sRB}, {(1 << RL) - 1}")
    ER = opt.get("erows", 448)
    def wpf0():
        e(f"s_cmp_ge_u32 s{sW}, 4")
        e(f"s_cselect_b32 s{sT1}, {ER}, 0")
        e(f"s_cselect_b32 s{sT2}, {(448 - ER) // 4}, {ER // 4}")
        e(f"s_mul_i32 s{sQKstep}, s{sTT}, s{sT2}")
        e(f"s_add_u32 s{sT1}, s{sT1}, s{sQKstep}")
        e(f"s_add_u32 s{sT1}, s{sT1}, s{sT3}")
        e(f"s_lshr_b32 s{sT2}, s{sT2}, {RL}")
        e(f"s_sub_u32 s{sT2}, s{sT2}, 1")
        e(f"v_min_u32 v33, s{sT2}, v{vLane}")
        e(f"v_lshl_add_u32 v33, v33, {RL}, s{sT1}")
        e(f"v_mul_lo_u32 v33, v33, s{sP64}")
        e(f"s_cmp_ge_u32 s{sW}, 4")
        e(f"s_cbranch_scc1 L_w0")
        a.skip_begin()
        e(f"buffer_load_dword v{vDum+1}, v33, {S(rA)}, s{sSO[0][0]} offen")
        e(f"buffer_load_dword v{vDum+1}, v33, {S(rB)}, s{sSO[0][1]} offen")
        if opt.get("xrpos") == 1: xloads(XE, 14, sXa, sXb)
        a.skip_end()
        a.label("L_w0")
    if opt.get("w0pos", 0) == 0: wpf0()
    if opt.get("w0pos", 0) == 2:
        e(f"s_mul_i32 s{sT2}, s{sW}, 56")
        e(f"s_add_u32 s{sT2}, s{sT2}, s{sT3}")
        e(f"s_mul_i32 s{sT2}, s{sT2}, s{sP64}")
        e(f"s_add_u32 s{sHoff}, s{sT2}, s{sSO[0][0]}")
        e(f"s_add_u32 s{sHoff2}, s{sT2}, s{sSO[0][1]}")
        e(f"s_lshl_b32 s{sT2}, s{sP64}, {RL}")
        for i in range(56 >> RL):
            e(f"s_load_dword s{sQKoff}, s[{rA}:{rA+1}], s{sHoff}")
            e(f"s_load_dword s{sQKoff}, s[{rB}:{rB+1}], s{sHoff2}")
            if i + 1 < (56 >> RL):
                e(f"s_add_u32 s{sHoff}, s{sHoff}, s{sT2}")
                e(f"s_add_u32 s{sHoff2}, s{sHoff2}, s{sT2}")
    e(f"v_lshrrev_b32 v25, 2, v{vLane}")
    e(f"v_and_b32 v25, 4, v25")
    e(f"v_xor_b32 v25, v25, v23")
    e(f"v_lshl_add_u32 v26, s{sW}, 3, v22")
    e(f"v_mul_lo_u32 v{vD0}, v26, s{sP64}")
    e(f"v_lshl_add_u32 v{vD0}, v25, 4, v{vD0}")
    e(f"v_mul_u32_u24 v{vD1}, 3584, v26")
    e(f"v_lshl_add_u32 v{vD1}, v25, 4, v{vD1}")
    e(f"s_lshl_b32 s{sT1}, s{sP64}, 5")
    e(f"v_subrev_u32 v32, s{sT1}, v{vD0}")
    vRow, vSwz, vCol = vV1, vV2, vV3
    e(f"v_lshrrev_b32 v26, 5, v{vLane}")
    e(f"v_bfe_u32 v27, v{vLane}, 2, 2")
    e(f"v_lshl_add_u32 v27, v26, 3, v27")
    e(f"v_lshlrev_b32 v{vRow}, 7, v27")
    e(f"v_and_b32 v28, 8, v{vLane}")
    e(f"v_lshlrev_b32 v{vSwz}, 3, v28")
    e(f"v_and_b32 v29, 3, v{vLane}")
    e(f"v_and_b32 v30, 16, v{vLane}")
    e(f"v_lshlrev_b32 v30, 1, v30")
    e(f"v_lshl_add_u32 v{vCol}, v29, 3, v30")
    def traddr(d, stc, t0, t1):
        return [f"v_add_u32 v{t0}, s{stc}, v{vCol}", f"v_and_b32 v{t1}, 127, v{t0}", f"v_xor_b32 v{t1}, v{t1}, v{vSwz}",
                f"v_and_b32 v{t0}, 128, v{t0}", f"v_lshl_add_u32 v{t0}, v{t0}, 6, v{t1}", f"v_add_u32 v{d}, v{t0}, v{vRow}"]
    for t in traddr(vTB[0][0], sTc0a, 30, 31) + traddr(vTB[0][1], sTc0b, 30, 31): e(t)
    e(f"s_and_b32 s{sT1}, s{sWR}, 1")
    e(f"s_lshl4_add_u32 s{sT1}, s{sT1}, s{sGS}")
    e(f"v_add_u32 v30, s{sT1}, v22")
    e(f"v_xor_b32 v30, v30, v23")
    e(f"v_lshlrev_b32 v30, 4, v30")
    e(f"v_lshrrev_b32 v31, 1, v23")
    e(f"v_lshl_add_u32 v30, v31, 12, v30")
    e(f"v_and_b32 v31, 1, v23")
    e(f"v_lshl_add_u32 v30, v31, 9, v30")
    e(f"s_lshr_b32 s{sT1}, s{sWR}, 1")
    e(f"v_lshl_add_u32 v{vXW[0]}, s{sT1}, 10, v30")
    e(f"v_add_u32 v{vXW[1]}, 0x10000, v{vXW[0]}")
    e(f"v_and_b32 v30, 31, v{vLane}")
    e(f"v_xor_b32 v30, v30, v26")
    e(f"v_lshlrev_b32 v30, 4, v30")
    e(f"v_lshl_add_u32 v30, v26, 9, v30")
    e(f"v_lshl_add_u32 v{vXR[0]}, s{sTT}, 10, v30")
    for q in range(1, 4):
        e(f"v_xor_b32 v{vXR[q]}, {q*4096 + q*32}, v{vXR[0]}")
    e(f"s_lshl4_add_u32 s{sT1}, s{sWR}, s{sGS}")
    e(f"v_add_lshl_u32 v{vStat}, v22, s{sT1}, 2")
    e(f"s_mul_i32 s{sT2}, s{sTT}, 112")
    e(f"s_add_u32 s{sT1}, s{sT3}, s{sT2}")
    e(f"v_min_u32 v30, {(112 >> RL) - 1}, v{vLane}")
    e(f"v_lshl_add_u32 v30, v30, {RL}, s{sT1}")
    e(f"v_mul_u32_u24 v{vDum+3}, 3584, v30")
    e(f"s_lshl_b32 s{sP64}, s{sP64}, 6")
    srd2(rW1, pW1, W1_BYTES)
    srd2(rW3, pW3, W1_BYTES)
    e(f"s_lshr_b32 s{sT1}, s{sSO[1][0]}, 1")
    e(f"s_lshl_b32 s{sSO[1][0]}, s{sSO[1][0]}, 7")
    e(f"s_add_u32 s{sT1}, s{sT1}, 16")
    e(f"s_lshl_b32 s{sSO[2][0]}, s{sT1}, 7")
    e(f"s_cmp_lt_u32 s{sW}, 4")
    e(f"s_cbranch_scc1 L_x2")
    a.skip_begin(); xloads(0, 14 if opt.get("xrpos") else XE, sXa, sXb); a.skip_end()
    a.label("L_x2")
    if not opt.get("xrpos"): xloads(XE, 14, sXa, sXb)
    if opt.get("w0pos", 0) == 1:
        e(f"s_lshr_b32 s{sP64}, s{sP64}, 6"); wpf0(); e(f"s_lshl_b32 s{sP64}, s{sP64}, 6")
    e(f"s_lshl_b32 s{sStat}, s2, 9")
    e(f"s_add_u32 s{sStat}, s{sStat}, {ST_OFF}")
    e(f"s_mov_b32 s{sOnes}, 0x3f803f80")
    e(f"s_movk_i32 s{sLo}, 0x3f80")
    e(f"s_mov_b32 s{sHi}, 1.0")
    def slot(c):
        if c < 3: return 7 + c
        if c < 10: return c - 3
        if c == 20: return 7
        return slot(c - 9)
    dma_next = [3]
    def dma(c, track=True, part=3):
        r, cc = divmod(c, 7)
        if cc == 0 and part & 1:
            e(f"s_mov_b32 s{sCurA}, s{sSO[r][0]}")
            if r == 0: e(f"s_mov_b32 s{sCurB}, s{sSO[r][1]}")
        va, vb = [(vD0, vD0), (vD1, vD1), (vD1, vD2B)][r]
        sa, sb = (rA, rB) if r == 0 else (rW1, rW3)
        inc = f"s{sP64}" if r == 0 else f"{64*3584}"
        if part & 1:
            e(f"s_add_u32 m0, s{sM0}, {slot(c)*16384}")
            if cc: e(f"s_add_u32 s{sCurA}, s{sCurA}, {inc}")
            e(f"buffer_load_dwordx4 v{va}, {S(sa)}, s{sCurA} offen lds")
        if part & 2:
            e(f"s_add_u32 m0, s{sM0}, {slot(c)*16384+8192}")
            if cc and r == 0: e(f"s_add_u32 s{sCurB}, s{sCurB}, {inc}")
            e(f"buffer_load_dwordx4 v{vb}, {S(sb)}, s{sCurB if r == 0 else sCurA} offen lds")
        if track: a.vm += [f"c{c}", f"c{c}"]
    for q in range(8): e(f"v_mov_b32 v{T0+8+q}, 0")
    e(f"s_cmp_lt_u32 s{sW}, 4")
    e(f"s_cbranch_scc1 L_lnA")
    e(f"s_waitcnt vmcnt(0)")
    def dma4(c):
        dma(c, track=False)
        e(f"s_add_u32 m0, s{sM0}, {slot(c)*16384 - 4096}")
        e(f"buffer_load_dwordx4 v32, {S(rA)}, s{sCurA} offen lds")
        e(f"s_add_u32 m0, s{sM0}, {slot(c)*16384 + 8192 - 4096}")
        e(f"buffer_load_dwordx4 v32, {S(rB)}, s{sCurB} offen lds")
        a.vm += [f"c{c}"] * 4
    C2 = opt.get("c2pos", 1)
    for c in range(3 if C2 == 0 else 2): dma4(c)
    if opt.get("erpos", 0) == 0:
        if ER < 448:
            e(f"buffer_load_dword v{vDum+1}, v33, {S(rA)}, s{sSO[0][0]} offen")
            e(f"buffer_load_dword v{vDum+1}, v33, {S(rB)}, s{sSO[0][1]} offen")
            a.vm += ["pf", "pf"]
    e(f"s_branch L_lnB")
    a.label("L_lnA")
    e(f"s_lshl1_add_u32 s{sCurA}, s{sP64}, s{sSO[0][0]}")
    e(f"s_lshl1_add_u32 s{sCurB}, s{sP64}, s{sSO[0][1]}")
    e(f"s_waitcnt vmcnt({2 if opt.get('w0pos', 0) == 1 else 0})")
    a.label("L_lnB")
    a.reset_hist()
    padat("x0")
    sp.stamp("x0", nowait=True); sp.stamp("x0", lvl=3, nowait=True)
    def wpf():
        for r in (1, 2):
            e(f"buffer_load_dword v{vDum+1}, v{vDum+3}, {S(rW1)}, s{sSO[r][0]} offen{opt.get('pnt', '')}")
            e(f"buffer_load_dword v{vDum+1}, v{vDum+3}, {S(rW3)}, s{sSO[r][0]} offen{opt.get('pnt', '')}")
        if opt.get("w2pf", 3) == 3:
            e(f"s_lshl2_add_u32 s{sT1}, s2, s{sW}")
            e(f"s_mul_i32 s{sT2}, s{sT1}, {13*128}")
            e(f"s_lshl_b32 s{sT1}, s{sT1}, 9")
            e(f"v_min_u32 v{vDum+2}, 12, v{vLane}")
            e(f"v_lshl_add_u32 v{vDum+2}, v{vDum+2}, 7, s{sT2}")
            e(f"v_min_u32 v{vDum+2}, {W2_BYTES-4}, v{vDum+2}")
            e(f"v_min_u32 v{vDum+3}, 3, v{vLane}")
            e(f"v_lshl_add_u32 v{vDum+3}, v{vDum+3}, 7, s{sT1}")
            e(f"v_min_u32 v{vDum+3}, {WO_BYTES-4}, v{vDum+3}")
            e(f"global_load_dword v{vDum+1}, v{vDum+2}, s[{pW2}:{pW2+1}]{opt.get('p2nt', '')}")
            e(f"global_load_dword v{vDum+1}, v{vDum+3}, s[{pWO}:{pWO+1}]")
    AC = T0 + 8
    def reduce2(d0, d1):
        for g in range(2): e(f"v_add_f32 v{AC+4*g}, v{AC+4*g}, v{AC+4*g+1}")
        for g in range(2): e(f"v_add_f32 v{AC+4*g+2}, v{AC+4*g+2}, v{AC+4*g+3}")
        for g, d in enumerate((d0, d1)): e(f"v_add_f32 v{d}, v{AC+4*g}, v{AC+4*g+2}")
        for m in ("quad_perm:[1,0,3,2]", "quad_perm:[2,3,0,1]", "row_half_mirror"):
            for d in (d0, d1): e(f"v_add_f32_dpp v{d}, v{d}, v{d} {m} row_mask:0xf bank_mask:0xf")
    for i in range(28):
        for g in range(2): e(f"v_dot2c_f32_bf16 v{AC+4*g+i%4}, s{sOnes}, v{RAW+g*28+i}")
    reduce2(vAcc[0], vAcc[1])
    for q in range(8): e(f"v_mov_b32 v{AC+q}, 0")
    for g in range(2): e(f"v_mul_f32 v{vAcc[g]}, {hexf(-1.0/448)}, v{vAcc[g]}")
    if C2 == 1:
        e(f"s_cmp_lt_u32 s{sW}, 4")
        e(f"s_cbranch_scc1 L_c2")
        a.skip_begin(); dma4(2)
        a.skip_end()
        a.label("L_c2")
    sp.stamp("pre", lvl=3, nowait=True)
    pend = None
    for gi in range(2):
        for i in range(7):
            r = RAW + gi * 28 + i * 4
            for k in range(4):
                e(f"v_dot2_f32_bf16 v{T0+2*k}, v{r+k}, s{sLo}, v{vAcc[gi]}")
                e(f"v_dot2_f32_bf16 v{T0+2*k+1}, v{r+k}, s{sHi}, v{vAcc[gi]}")
            if pend: pend()
            for k in range(4):
                e(f"v_cvt_pk_bf16_f32 v{r+k}, v{T0+2*k}, v{T0+2*k+1}")
            def pend(r=r, gi=gi, i=i):
                off = i * 16384
                a.ds_op(f"ds_write_b128 v{vXW[off >> 16]}, v[{r}:{r+3}] offset:{off & 0xffff}", "xw")
                if i == 6 and gi == 0:
                    e(f"v_xor_b32 v{vXW[0]}, 128, v{vXW[0]}")
                    e(f"v_xor_b32 v{vXW[1]}, 128, v{vXW[1]}")
    pend()
    if opt.get("wpf", 1) == 3:
        e(f"s_cmp_ge_u32 s{sW}, 4")
        e(f"s_cbranch_scc1 L_wp3")
        a.skip_begin(); wpf(); a.skip_end()
        a.label("L_wp3")
    if C2 == 2:
        e(f"s_cmp_lt_u32 s{sW}, 4")
        e(f"s_cbranch_scc1 L_c2")
        a.skip_begin(); dma4(2); a.skip_end()
        a.label("L_c2")
    sp.stamp("post", lvl=3, nowait=True)
    for i in range(28):
        for g in range(2): e(f"v_dot2c_f32_bf16 v{AC+4*g+i%4}, v{RAW+g*28+i}, v{RAW+g*28+i}")
    e(f"v_mov_b32 v{T0}, {hexf(1e-5)}")
    e(f"v_mov_b32 v{T0+1}, {hexf(1e-5)}")
    e(f"v_xor_b32 v{T0+2}, 32, v{vStat}")
    reduce2(vAcc[0], vAcc[1])
    for g in range(2): e(f"v_fmac_f32 v{T0+g}, {hexf(1.0/448)}, v{vAcc[g]}")
    e(f"s_cmp_ge_u32 s{sW}, 4")
    e(f"s_cbranch_scc1 L_lnD")
    a.skip_begin()
    e(f"s_lshl3_add_u32 s{sT3}, s2, s{sW}")
    e(f"s_cmp_lg_u32 s{sT3}, 0")
    e(f"s_cbranch_scc1 L_noinit")
    e(f"v_lshlrev_b32 v25, 7, v{vLane}")
    e(f"v_mov_b32 v26, 0")
    e(f"s_mov_b32 s3, {CNT_OFF}")
    for q in range(5):
        if q: e(f"s_add_u32 s3, s3, 8192")
        e(f"buffer_store_dword v26, v25, {S(rWS)}, s3 offen sc1")
    a.label("L_noinit")
    if opt.get("touch") == 2: touch()
    if opt.get("wpf", 1) == 1: wpf()
    e(f"s_branch L_lnE")
    a.skip_end()
    a.label("L_lnD")
    sp.stamp("ln", lvl=3, nowait=True)
    a.vm_wait("c1")
    a.label("L_lnE")
    a.ds_wait_all()
    sp.stamp("ln")
    sp.stamp("c1", lvl=3)
    e("s_barrier")
    padat("b1")
    sp.stamp("b1"); sp.stamp("b1", lvl=3)
    def deferred():
        t0, t1, t2 = AB, AB + 1, AB + 2
        G = lambda *ins: (lambda: [e(x) for x in ins], sum(2 if x.startswith("s_") else 4 for x in ins))
        L = []
        L.append(G(f"v_xor_b32 v{vD2B}, 32, v{vD1}", f"v_lshlrev_b32 v{vSt}, 4, v{vLane}", f"s_mov_b32 vcc_lo, -1", f"s_mov_b32 vcc_hi, 0"))
        L.append(G(f"s_lshl2_add_u32 s{sTTG}, s{sRB}, s{sTT}", f"s_lshl_b32 s{sHoff}, s{sG}, 6"))
        L += [G(x) for x in traddr(vTB[1][0], sHoff, t0, t1)]
        L.append(G(f"v_add_u32 v{vTB[1][1]}, 8192, v{vTB[1][0]}"))
        L.append(G(f"s_bfe_u32 s{sHoff}, s{sSO[1][0]}, 0x10007", f"s_lshl_b32 s{sHoff2}, s{sHoff}, 1", f"s_lshl_b32 s{sHoff}, s{sHoff2}, 5",
                   f"v_xor_b32 v{t0}, s{sHoff}, v{vCol}"))
        L.append(G(f"v_xor_b32 v{t0}, v{t0}, v{vSwz}", f"v_and_b32 v{t1}, 16, v{vLane}"))
        L.append(G(f"v_lshl_add_u32 v{t0}, v{t1}, 9, v{t0}", f"v_add_u32 v{vTB[2][0]}, v{t0}, v{vRow}", f"v_xor_b32 v{vTB[2][1]}, 32, v{vTB[2][0]}"))
        L.append(G(f"s_mul_i32 s{sHoff}, s{sTTG}, 112", f"s_add_u32 s{sHoff2}, s{sHoff2}, s{sHoff}", f"s_lshr_b32 s{sQKoff}, s{sSO[2][0]}, 5",
                   f"s_add_u32 s{sHoff2}, s{sHoff2}, s{sQKoff}", f"s_lshl_b32 s{sHoff2}, s{sHoff2}, 10", f"s_add_u32 s{sHoff2}, s{sHoff2}, {H_OFF}"))
        L.append(G(f"s_lshl1_add_u32 s{sHoff}, s{sG}, s{sHoff}", f"s_lshl2_add_u32 s{sQKstep}, s{sCOL}, s{sHoff}", f"s_lshl_b32 s{sQKstep}, s{sQKstep}, 10",
                   f"s_add_u32 s{sQKstep}, s{sQKstep}, {H_OFF + 12*4096}"))
        L.append(G(f"s_lshr_b32 s{sQKoff}, s{sSO[1][0]}, 5", f"s_add_u32 s{sHoff}, s{sHoff}, s{sQKoff}", f"s_lshl_b32 s{sHoff}, s{sHoff}, 10",
                   f"s_add_u32 s{sHoff}, s{sHoff}, {H_OFF}"))
        L.append(G(f"s_lshl1_add_u32 s{sQKoff}, s{sCOL}, s{sG}", f"s_lshl_b32 s{sQKoff}, s{sQKoff}, 7", f"s_add_u32 s{sQKoff}, s{sQKoff}, s{sTTG}",
                   f"s_lshl_b32 s{sQKoff}, s{sQKoff}, 11", f"s_cmp_ge_u32 s{sCOL}, 12",
                   f"s_cselect_b32 s{sQKoff}, s{sQKstep}, s{sQKoff}"))
        L.append(G(f"s_lshr_b32 s{sQKstep}, s{sCOL}, 2", f"s_cmp_eq_u32 s{sQKstep}, 1", f"s_cselect_b32 s{sOnes}, s{sOnes}, 0", f"s_cselect_b32 s{sHi}, s{sLo}, 0",
                   f"s_cmp_eq_u32 s{sQKstep}, 2", f"s_cselect_b32 s{sOnes}, s{sLo}, s{sOnes}"))
        L.append(G(f"v_mov_b32 v{vP6}, s{sOnes}", f"v_mov_b32 v{vP7}, s{sHi}"))
        L.append(G(f"v_lshrrev_b32 v{t2}, 5, v{vLane}", f"v_bfe_u32 v{t0}, v{vLane}, 2, 2", f"v_lshl_add_u32 v{t0}, v{t2}, 2, v{t0}"))
        L.append(G(f"v_lshrrev_b32 v{t1}, 1, v{t0}", f"v_lshlrev_b32 v{t1}, 3, v{t1}", f"v_xor_b32 v{t1}, v{t1}, v{vCol}"))
        L.append(G(f"s_lshl_b32 s{sQKstep}, s{sW}, 11", f"s_add_u32 s{sQKstep}, s{sQKstep}, {SCR}", f"v_lshl_add_u32 v{t0}, v{t0}, 6, v{t1}",
                   f"v_add_u32 v{vV2}, s{sQKstep}, v{t0}"))
        L.append(G(f"v_xor_b32 v{vV3}, 32, v{vV2}", f"v_bfe_u32 v{t0}, v{vLane}, 1, 3", f"v_xor_b32 v{t0}, v{t0}, v{t2}"))
        L.append(G(f"v_and_b32 v{t1}, 31, v{vLane}", f"v_lshlrev_b32 v{t1}, 6, v{t1}", f"v_lshl_add_u32 v{t0}, v{t0}, 3, v{t1}"))
        L.append(G(f"v_add_u32 v{vV1}, s{sQKstep}, v{t0}"))
        return L
    def hdiag(k):
        if not opt.get("hdiag"): return
        if k == 0: return
        e("s_cmp_ge_u32 s2, 7")
        e("s_cbranch_scc1 L_end")
        e(f"s_cmp_lg_u32 s{sW}, 4")
        e("s_cbranch_scc1 L_end")
        e("s_memrealtime s[80:81]"); e("s_memtime s[82:83]")
        e("s_waitcnt vmcnt(0) lgkmcnt(0)")
        e("s_mov_b64 exec, 1")
        e("s_lshl_b32 s3, s2, 3")
        e("v_mov_b32 v0, s3")
        e("s_sub_u32 s84, s82, s78")
        e("s_sub_u32 s80, s80, s76")
        e("s_and_b32 s76, s76, 0xffff")
        e("s_lshl_b32 s80, s80, 16")
        e("s_or_b32 s76, s76, s80")
        e("v_mov_b32 v2, s76"); e("v_mov_b32 v3, s84")
        e(f"global_store_dword v0, v2, s[{pDBG}:{pDBG+1}] offset:4")
        e(f"global_store_dword v0, v3, s[{pDBG}:{pDBG+1}] offset:8")
    def check_flag(vtmp):
        done = lab("fl")
        e(f"v_readfirstlane_b32 s{sT1}, v{vFlag}")
        e(f"s_cmp_lg_u32 s{sT1}, 0")
        e(f"s_cbranch_scc1 {done}")
        e(f"s_mov_b32 s{sT2}, 0x40000")
        lp = lab("fs"); a.label(lp)
        e(f"v_mov_b32 v{vtmp}, 0")
        e(f"global_load_dword v{vFlag}, v{vtmp}, s[{pDBG}:{pDBG+1}] sc1")
        e(f"s_waitcnt vmcnt(0)")
        e(f"v_readfirstlane_b32 s{sT1}, v{vFlag}")
        e(f"s_sub_u32 s{sT2}, s{sT2}, 1")
        e(f"s_cselect_b32 s{sT1}, 1, s{sT1}")
        e(f"s_cmp_eq_u32 s{sT1}, 0")
        e(f"s_cbranch_scc1 {lp}")
        a.label(done)
    def signal(sIdx, add, va, vb):
        e(f"s_add_u32 s{sT1}, s{sIdx}, {add}")
        e(f"s_lshl_b32 s{sT1}, s{sT1}, 7")
        e(f"s_add_u32 s{sT1}, s{sT1}, {CNT_OFF}")
        e(f"v_mov_b32 v{va}, 0")
        e(f"v_mov_b32 v{vb}, 1")
        e(f"s_mov_b64 exec, 1")
        e(f"buffer_atomic_add v{vb}, v{va}, {S(rWS)}, s{sT1} offen sc1")
        e(f"s_mov_b64 exec, -1")
    def poll(vaddr, vval, target, sleep):
        lp = lab("po"); done = lab("pd")
        e(f"s_mov_b32 s{sT2}, 0x40000")
        e(f"s_mov_b32 s{sT3}, {CNT_OFF}")
        a.label(lp)
        e(f"buffer_load_dword v{vval}, v{vaddr}, {S(rWS)}, s{sT3} offen sc1")
        e(f"s_waitcnt vmcnt(0)")
        e(f"v_cmp_gt_u32 s[74:75], {target}, v{vval}")
        e(f"s_cmp_eq_u64 s[74:75], 0")
        e(f"s_cbranch_scc1 {done}")
        e(f"s_sleep {sleep}")
        e(f"s_sub_u32 s{sT2}, s{sT2}, 1")
        e(f"s_cbranch_scc0 {lp}")
        a.label(done)
        a.vm = []
    def lds_arrive(k, va, vb, rtn=False):
        e(f"v_mov_b32 v{va}, {SYNC + 4*k}")
        e(f"v_mov_b32 v{vb}, 1")
        e(f"s_mov_b64 exec, 1")
        e(f"ds_add_rtn_u32 v{vb}, v{va}, v{vb}" if rtn else f"ds_add_u32 v{va}, v{vb}")
        e(f"s_mov_b64 exec, -1")
    def lds_sync(k, n, va, vb, meanwhile=None):
        a.ds_wait_all()
        lds_arrive(k, va, vb)
        if meanwhile:
            e("s_nop 3"); meanwhile()
        lp = lab("ls")
        e(f"s_mov_b32 s{sT2}, 0x400000")
        a.label(lp)
        e(f"ds_read_b32 v{vb}, v{va}")
        e(f"s_waitcnt lgkmcnt(0)")
        e(f"v_readfirstlane_b32 s{sT1}, v{vb}")
        e(f"s_sub_u32 s{sT2}, s{sT2}, 1")
        e(f"s_cselect_b32 s{sT1}, {n}, s{sT1}")
        e(f"s_cmp_lt_u32 s{sT1}, {n}")
        e(f"s_cbranch_scc1 {lp}")
    def lds_spin(k, n, va, vb, sleep):
        lp = lab("ls"); ok = lab("lk")
        e(f"v_mov_b32 v{va}, {SYNC + 4*k}")
        e(f"s_mov_b32 s{sT2}, 0x100000")
        a.label(lp)
        e(f"ds_read_b32 v{vb}, v{va}")
        e(f"s_waitcnt lgkmcnt(0)")
        e(f"v_readfirstlane_b32 s{sT1}, v{vb}")
        e(f"s_cmp_ge_u32 s{sT1}, {n}")
        e(f"s_cbranch_scc1 {ok}")
        e(f"s_sleep {sleep}")
        e(f"s_sub_u32 s{sT2}, s{sT2}, 1")
        e(f"s_cbranch_scc0 {lp}")
        a.label(ok)
    def lds_check(k, n, va, vb):
        lp = lab("lc"); ok = lab("ld")
        e(f"s_mov_b32 s{sT2}, 0x400000")
        a.label(lp)
        e(f"s_waitcnt lgkmcnt(0)"); a.lg = []
        e(f"v_readfirstlane_b32 s{sT1}, v{vb}")
        e(f"s_cmp_ge_u32 s{sT1}, {n}")
        e(f"s_cbranch_scc1 {ok}")
        a.skip_begin()
        e(f"ds_read_b32 v{vb}, v{va}")
        e(f"s_sub_u32 s{sT2}, s{sT2}, 1")
        e(f"s_cbranch_scc0 {lp}")
        a.skip_end()
        a.label(ok)
    def lds_wait(k, n, va, vb, meanwhile):
        lp = lab("lw"); ok = lab("lo")
        e(f"v_mov_b32 v{va}, {SYNC + 4*k}")
        e(f"ds_read_b32 v{vb}, v{va}")
        meanwhile()
        e(f"s_mov_b32 s{sT2}, 0x400000")
        a.label(lp)
        e(f"s_waitcnt lgkmcnt(0)")
        e(f"v_readfirstlane_b32 s{sT1}, v{vb}")
        e(f"s_cmp_ge_u32 s{sT1}, {n}")
        e(f"s_cbranch_scc1 {ok}")
        e(f"ds_read_b32 v{vb}, v{va}")
        e(f"s_sub_u32 s{sT2}, s{sT2}, 1")
        e(f"s_cbranch_scc0 {lp}")
        a.label(ok)
    def last_signals(k, n, sIdx, add, va, vb):
        lds_arrive(k, va, vb, rtn=True)
        e(f"s_waitcnt lgkmcnt(0)"); a.lg = []
        e(f"v_readfirstlane_b32 s{sT1}, v{vb}")
        sk = lab("ns")
        e(f"s_cmp_lg_u32 s{sT1}, {n-1}")
        e(f"s_cbranch_scc1 {sk}")
        a.skip_begin()
        signal(sIdx, add, va, vb)
        a.skip_end()
        a.label(sk)
    NT = [2, 2, 2]
    ACC = [AA, AB, AA]
    tw_state = [None, None]
    def wreads(G):
        r, s = divmod(G, 28)
        base = slot(G // 4) * 16384 + (s % 4) * 2048
        hi, lo = base >> 16, base & 0xffff
        L = []
        for t in range(NT[r]):
            d = WF + (G % 3) * 8 + t * 4
            def f0(t=t, d=d):
                if tw_state[t] != (r, hi):
                    e(f"v_add_u32 v{vTW[t]}, {hex(hi << 16)}, v{vTB[r][t]}")
                    tw_state[t] = (r, hi)
                a.ds_op(f"ds_read_b64_tr_b16 v[{d}:{d+1}], v{vTW[t]} offset:{lo}", f"w{G}")
            def f1(t=t, d=d):
                a.ds_op(f"ds_read_b64_tr_b16 v[{d+2}:{d+3}], v{vTW[t]} offset:{lo+512}", f"w{G}")
            L += [f0, f1]
        return L
    xr_next = [0]
    def xread(n):
        for _ in range(n):
            s = xr_next[0]
            if s >= 28: return
            xr_next[0] += 1
            if s == 16:
                for q in range(4): e(f"v_add_u32 v{vXR[q]}, 0x10000, v{vXR[q]}")
            off = ((s // 4) * 16384) & 0xffff
            a.ds_op(f"ds_read_b128 v[{X0+4*s}:{X0+4*s+3}], v{vXR[s%4]} offset:{off}", f"x{s}")
    BARS = opt.get("bars", [0, 1, 2, 3, 5, 7, 9, 11, 13, 15])
    PQ = opt.get("pq", 11)
    PZ = opt.get("pz", 13)
    L2P = {int(k): v for k, v in opt.get("l2p", {}).items()}
    VEND = PQ
    window = []; pending = []
    def period_barrier(i):
        for c in window: a.vm.extend([f"c{c}", f"c{c}"])
        assert not pending, pending
        window.clear()
        nxt = min([b for b in BARS if b > i] + [20])
        if nxt <= 2 and f"c{nxt}" in a.vm:
            sk = lab("nb")
            e(f"s_cmp_lt_u32 s{sW}, 4")
            e(f"s_cbranch_scc1 {sk}")
            a.skip_begin(); a.vm_wait(f"c{nxt}"); a.skip_end()
            a.label(sk)
        a.vm_wait(f"c{nxt}")
        assert dma_next[0] > nxt, (i, nxt, dma_next[0])
        if i == 3: a.vm_wait("stat")
        if i == PQ: a.vm_wait("st"); a.vm_wait("fl")
        if i in opt.get("sb", []): sp.stamp("pre", lvl=2, nowait=True)
        if i not in opt.get("x_nb", []): e("s_barrier")
        if i in opt.get("sb", []): sp.stamp("post", lvl=2, nowait=True)
        if i == 3:
            e(f"v_and_b32 v{vK}, 31, v{vLane}")
            e(f"v_lshlrev_b32 v{vK}, 2, v{vK}")
            e(f"s_lshl_b32 s{sT1}, s{sTT}, 7")
            e(f"s_add_u32 s{sT1}, s{sT1}, s{sStat}")
            a.vm_op(f"buffer_load_dword v{vK}, v{vK}, {S(rWS)}, s{sT1} offen sc1", "kld")
        if i == 3:
            e(f"s_lshl3_add_u32 s{sT1}, s2, s{sW}")
            e(f"s_cmp_lg_u32 s{sT1}, 0")
            e(f"s_cbranch_scc1 L_nofl")
            a.skip_begin()
            e(f"v_mov_b32 v{vDum+2}, 0")
            e(f"v_mov_b32 v{vDum+3}, 1")
            e(f"global_store_dword v{vDum+2}, v{vDum+3}, s[{pDBG}:{pDBG+1}] sc1")
            a.skip_end()
            a.label("L_nofl")
        if i == 7:
            e(f"v_mov_b32 v{vFlag}, 0")
            a.vm_op(f"global_load_dword v{vFlag}, v{vFlag}, s[{pDBG}:{pDBG+1}] sc1", "fl")
        if i in L2P:
            for k in L2P[i]:
                sk = lab("pf")
                e(f"s_cmp_lg_u32 s{sW}, {k}")
                e(f"s_cbranch_scc1 {sk}")
                a.skip_begin()
                e(f"s_lshr_b32 s{sT1}, s2, 3")
                nl, ptr, nb = (56, pW2, W2_BYTES) if k < 7 else (98, pWO, WO_BYTES)
                if k < 7:
                    e(f"s_mul_i32 s{sT1}, s{sT1}, {7*56*128}")
                    e(f"s_add_u32 s{sT1}, s{sT1}, {k*56*128}")
                else:
                    e(f"s_mul_i32 s{sT1}, s{sT1}, {98*128}")
                e(f"v_min_u32 v{vDum+2}, {min(nl, 64) - 1 if k < 7 else 48}, v{vLane}")
                e(f"v_lshl_add_u32 v{vDum+2}, v{vDum+2}, 7, s{sT1}")
                e(f"global_load_dword v{vDum+1}, v{vDum+2}, s[{ptr}:{ptr+1}]")
                if k == 7:
                    e(f"v_add_u32 v{vDum+2}, {49*128}, v{vDum+2}")
                    e(f"global_load_dword v{vDum+1}, v{vDum+2}, s[{ptr}:{ptr+1}]")
                a.skip_end()
                a.label(sk)
        if i == PZ:
            e(f"v_lshrrev_b32 v{vDum+2}, 2, v{vSt}")
            e(f"v_add_u32 v{vDum+2}, {SYNC}, v{vDum+2}")
            e(f"v_mov_b32 v{vDum+3}, 0")
            a.ds_op(f"ds_write_b32 v{vDum+2}, v{vDum+3}", "z")
        if i == PQ and sigq[0]:
            sk = lab("q")
            e(f"s_cmp_lg_u32 s{sW}, 0")
            e(f"s_cbranch_scc1 {sk}")
            a.skip_begin()
            check_flag(vDum + 2)
            signal(sCOL, 0, vDum + 2, vDum + 3)
            a.skip_end()
            a.label(sk)
        while dma_next[0] <= 20:
            c = dma_next[0]
            if c < 10:
                sl = slot(c)
                if not all(xr_next[0] > s and a.ds_done(f"x{s}") for s in range(4*sl, 4*sl+4)): break
            elif c == 20:
                if i < 13: break
            elif c - 9 > i - 1: break
            if c > opt.get("cmax", {"3": 9, "5": 12, "7": 13, "9": 16, "11": 19}).get(str(i), 99): break
            window.append(c); dma_next[0] += 1
        nq = nxt - i if i < 13 else 1
        per = -(-len(window) // nq)
        pending[:] = [window[k*per:(k+1)*per] for k in range(nq)]
    sigq = [False]
    XR = opt.get("xrate", 2)
    def kloop(r, extra, budget, hooks={}):
        extra = list(extra)
        if opt.get("x_noepi"): extra = [x for x in extra if x[1] == 0]
        gap = 0
        for s in range(28):
            G = r * 28 + s
            Gn = G + 2
            rd = wreads(Gn) if Gn < 84 else []
            a.ds_wait(f"w{G}")
            if r == 0: a.ds_wait(f"x{s}")
            ph = Gn % 4
            for t in range(NT[r]):
                d = ACC[r] + 16 * t
                w = WF + (G % 3) * 8 + t * 4
                c = "0" if s == 0 else f"v[{d}:{d+15}]"
                e(f"v_mfma_f32_32x32x16_bf16 v[{d}:{d+15}], v[{w}:{w+3}], v[{X0+4*s}:{X0+4*s+3}], {c}")
                gap += 1
                if t == 0 and Gn < 84 and ph == 0 and (Gn // 4 - 1) in BARS: period_barrier(Gn // 4 - 1)
                n = -(-len(rd) // (NT[r] - t))
                for f in rd[:n]: f()
                rd = rd[n:]
                if r == 0: xread((XR + 1 - t) // 2)
                left = budget
                DS = opt.get("dsplit", 1) and pending and len(pending[0]) == 1 and not (Gn // 4 - 1 == 13)
                if DS and t == NT[r] - 1:
                    sk = lab("d")
                    e(f"s_cmp_lg_u32 s{sPh}, {ph & 2}")
                    e(f"s_cbranch_scc1 {sk}")
                    a.skip_begin()
                    dma(pending[0][0], track=False, part=1 + (ph & 1))
                    a.skip_end()
                    a.label(sk)
                    left = opt.get("dmabud2", 8)
                elif t == NT[r] - 1 and pending and pending[0] and ph % 2 == 0:
                    sk = lab("d")
                    e(f"s_cmp_lg_u32 s{sPh}, {ph}")
                    e(f"s_cbranch_scc1 {sk}")
                    a.skip_begin()
                    for c in pending[0]: dma(c, track=False)
                    a.skip_end()
                    a.label(sk)
                    left = opt.get("dmabud", 4)
                if t == NT[r] - 1 and s in hooks: hooks[s](); left = 0
                while extra and gap > 3 and extra[0][1] <= left:
                    f, cst = extra.pop(0); f(); left -= cst
            if ph == 3 and pending: pending.pop(0)
        return extra
    def I(t):
        op = t.split()[0]
        return (lambda: e(t), 8 if op.startswith(TRANS) else (2 if op.startswith("s_") else 4))
    def consts():
        def sel():
            e(f"s_cmp_lt_u32 s{sCOL}, 4")
            e(f"s_cselect_b32 s{sT1}, {hexf(28**-0.5*LOG2E)}, 1.0")
            e(f"v_mul_f32 v{vSc}, s{sT1}, v{vSc}")
        return [(lambda: a.vm_wait("kld"), 0), I(f"v_rsq_f32 v{vSc}, v{vK}"),
                I(f"v_mul_f32 v{vC1}, {hexf(-LOG2E)}, v{vSc}"), (sel, 8)]
    def silu4(Gt, U, t, p):
        L = []
        for k in range(4): L.append(I(f"v_mul_f32 v{t+k}, v{vC1}, v{Gt+k}"))
        for k in range(4):
            L.append(I(f"v_exp_f32 v{t+k}, v{t+k}"))
            L.append(I(f"v_mul_f32 v{Gt+k}, v{Gt+k}, v{U+k}"))
        for k in range(4): L.append(I(f"v_fma_f32 v{t+k}, v{t+k}, v{vK}, v{vK}"))
        for k in range(4): L.append(I(f"v_rcp_f32 v{t+k}, v{t+k}"))
        for k in range(4): L.append(I(f"v_mul_f32 v{Gt+k}, v{Gt+k}, v{t+k}"))
        for k in range(2): L.append(I(f"v_cvt_pk_bf16_f32 v{p+k}, v{Gt+2*k}, v{Gt+2*k+1}"))
        return L
    def store(r, soff, off):
        if opt.get("x_nost"): return (lambda: None, 8)
        return (lambda: a.vm_op(f"buffer_store_dwordx4 v[{r}:{r+3}], v{vSt}, {S(rWS)}, s{soff} offen offset:{off}{ST}", "st"), 8)
    def epiF(acc, soff):
        Gt, U = acc, acc + 16
        L = []
        for q in range(4):
            L += silu4(Gt + 4*q, U + 4*q, T0 + (q % 2) * 4, U + (q // 2) * 8 + (q % 2) * 2)
            if q % 2 == 1: L.append(store(U + (q // 2) * 8, soff, (q // 2) * 1024))
        return L
    def epiQKV(acc, isv):
        L = []
        P = T0 + 8
        for q in range(4):
            for k in range(4): L.append(I(f"v_mul_f32 v{acc+4*q+k}, v{vSc}, v{acc+4*q+k}"))
            for k in range(2): L.append(I(f"v_cvt_pk_bf16_f32 v{P+2*q+k}, v{acc+4*q+2*k}, v{acc+4*q+2*k+1}"))
            if q == 1 and not isv: L.append(store(P, sQKoff, 0))
        L.append(I(f"v_cndmask_b32 v{P+6}, v{vP6}, v{P+6}, vcc"))
        L.append(I(f"v_cndmask_b32 v{P+7}, v{vP7}, v{P+7}, vcc"))
        if not isv: L.append(store(P + 4, sQKoff, 1024))
        else:
            for q in range(4):
                if q: L.append(I(f"v_xor_b32 v{vV4}, {16*q}, v{vV1}"))
                L.append((lambda q=q: a.ds_op(f"ds_write_b64 v{vV4 if q else vV1}, v[{P+2*q}:{P+2*q+1}]", "vw"), 4))
            L += [(lambda: None, 8)] * 2
            L.append((lambda: a.ds_wait("vw"), 0))
            for q in range(4):
                L.append((lambda q=q: a.ds_op(f"ds_read_b64_tr_b16 v[{acc+2*q}:{acc+2*q+1}], v{vV3 if q % 2 else vV2} offset:{512*q}", "vr"), 4))
            L += [(lambda: None, 8)] * 2
            L.append((lambda: a.ds_wait("vr"), 0))
            L.append(store(acc, sQKoff, 0))
            L.append(store(acc + 4, sQKoff, 1024))
        L.append(I(f"s_add_u32 s{sQKoff}, s{sQKoff}, {64*2048}"))
        return L
    B1, B2 = opt.get("b1", 4), opt.get("b2", 12)
    if opt.get("yprio"):
        e(f"s_cmp_lt_u32 s{sW}, 4")
        e(f"s_cbranch_scc1 L_yp")
        e(f"s_setprio 1")
        a.label("L_yp")
    xread(4)
    for f in wreads(0) + wreads(1): f()
    if opt.get("wpf", 1) == 2:
        e(f"s_cmp_ge_u32 s{sW}, 4")
        e(f"s_cbranch_scc1 L_wp")
        a.skip_begin(); wpf(); a.skip_end()
        a.label("L_wp")
    a.vm_op(f"buffer_store_dword v{T0}, v{vStat}, {S(rWS)}, s{sStat} offen", "stat")
    a.vm_op(f"buffer_store_dword v{T0+1}, v{T0+2}, {S(rWS)}, s{sStat} offen", "stat")
    assert not kloop(0, deferred(), 16)
    padat("r0")
    sp.stamp("r0")
    e(f"s_cmp_lt_u32 s{sCOL}, 8")
    e(f"s_cbranch_scc1 L_pqk")
    e(f"s_cmp_lt_u32 s{sCOL}, 12")
    e(f"s_cbranch_scc1 L_pv")
    saved = (list(a.vm), list(a.lg), list(tw_state), dma_next[0], list(a.hist), list(window), [list(p) for p in pending], sp.n)
    ends = []
    for nm, ex in (("f", lambda: epiF(AA, sQKoff)), ("L_pqk", lambda: epiQKV(AA, False) + epiQKV(AA + 16, False)),
                   ("L_pv", lambda: epiQKV(AA, True) + epiQKV(AA + 16, True))):
        if nm != "f": a.label(nm)
        a.vm, a.lg = list(saved[0]), list(saved[1]); tw_state[:] = saved[2]; dma_next[0] = saved[3]; a.hist = list(saved[4])
        window[:] = saved[5]; pending[:] = [list(p) for p in saved[6]]; sp.set(saved[7])
        sigq[0] = nm != "f"
        nst0 = [0]
        exl = consts() + ex()
        if nm != "f":
            exl.append((lambda: nst0.__setitem__(0, 1), 0))
            _pb = period_barrier
        rest = kloop(1, exl, {"f": B1, "L_pqk": opt.get("b1q", 32), "L_pv": opt.get("b1v", 32)}[nm], hooks={(VEND + 1) * 4 - 2 - 28 - 1: (lambda: None) if nm == "f" else (lambda: (_ for _ in ()).throw(AssertionError("qkv epilogue too late")) if not nst0[0] else None)})
        for f, c in rest: f()
        ends.append(([t for t in a.vm if t != "st"], list(a.lg), list(tw_state), dma_next[0], list(window), [list(p) for p in pending]))
        if nm != "L_pv": e("s_branch L_r2")
    assert ends[0][1:] == ends[1][1:] == ends[2][1:], ends
    a.vm = min((x[0] for x in ends), key=len)
    assert all(x[0][len(x[0])-len(a.vm):] == a.vm for x in ends)
    a.label("L_r2")
    e("s_nop 1")
    padat("r1")
    sp.stamp("r1"); sp.stamp("r1", lvl=5, nowait=True)
    K0, Q, KV, O, Sx, P, T = 16, 24, 56, 128, 192, 224, 240
    ATT_LDS, WO_LDS = 49152, 98304
    sX, sJ = 54, 55
    sHead, sQB, sKV, sRun = 62, 63, 64, 58
    sWq, sTB, sCB, sWo, sLB = 62, 63, 64, 58, 66
    vD, vPoll, vStV = vD0, vDum + 4, vD0
    rW = rA
    rK, rV = rA, rB
    NE = 3
    QX = 147456
    def kvload(i):
        for k in range(4):
            r = KV + 16 * i + 4 * k
            a.vm_op(f"buffer_load_dwordx4 v[{r}:{r+3}], v{vSt}, {S(rK if k < 2 else rV)}, s{sRun} offen offset:{1024*(k%2)}{LD}", f"kv{i}")
        e(f"s_add_u32 s{sRun}, s{sRun}, 2048")
        e(f"s_and_b32 s{sRun}, s{sRun}, 0x1ffff")
    e(f"s_and_b32 s{sX}, s2, 7")
    e(f"s_lshr_b32 s{sJ}, s2, 3")
    check_flag(vDum + 2)
    e(f"s_cmp_lt_u32 s{sW}, 4")
    e(f"s_cbranch_scc1 L_att")
    join = (list(a.vm), list(a.lg), list(a.hist), list(window), sp.n)
    e(f"s_setprio {opt.get('r2prio', 2)}")
    rest = kloop(2, epiF(AB, sHoff), B2)
    sp.stamp("r2")
    for f, c in rest: f()
    for t in range(2):
        for q in range(2):
            for f, c in silu4(AA + 16*t + 4*q, AA + 16*t + 8 + 4*q, T0 + 4*q, T0 + 8 + 4*t + 2*q): f()
        store(T0 + 8 + 4*t, sHoff2, 1024*t)[0]()
    e(f"s_branch L_gemm")
    nst = sp.n
    a.label("L_att")
    a.vm, a.lg, a.hist = list(join[0]), list(join[1]), list(join[2]); sp.set(join[4])
    for c in join[3]: a.vm.extend([f"c{c}", f"c{c}"])
    e(f"s_setprio {opt.get('attprio0', 3)}")
    e(f"s_and_b32 s{sT1}, s{sJ}, 1")
    e(f"s_lshl1_add_u32 s{sHead}, s{sX}, s{sT1}")
    e(f"v_min_u32 v{vPoll}, 2, v{vLane}")
    e(f"v_lshlrev_b32 v{vPoll}, 9, v{vPoll}")
    e(f"s_lshr_b32 s{sT1}, s{sHead}, 2")
    e(f"v_lshl_add_u32 v{vPoll}, s{sT1}, 7, v{vPoll}")
    e(f"s_mov_b32 s{sT3}, {CNT_OFF}")
    a.vm_op(f"buffer_load_dword v{vDum+3}, v{vPoll}, {S(rWS)}, s{sT3} offen sc1", "poll")
    def qload():
        e(f"s_lshl_b32 s{sT1}, s{sHead}, 6")
        e(f"s_lshl2_add_u32 s{sT1}, s{sQB}, s{sT1}")
        e(f"s_add_u32 s{sT1}, s{sT1}, s{sW}")
        e(f"s_lshl_b32 s{sT1}, s{sT1}, 11")
        a.vm_op(f"buffer_load_dwordx4 v[{Q}:{Q+3}], v{vSt}, {S(rWS)}, s{sT1} offen{LD}", "q")
        a.vm_op(f"buffer_load_dwordx4 v[{Q+4}:{Q+7}], v{vSt}, {S(rWS)}, s{sT1} offen offset:1024{LD}", "q")
        kvload(0)
    e(f"s_lshr_b32 s{sQB}, s{sJ}, 1")
    e(f"s_lshl_b32 s{sKV}, s{sHead}, 17")
    e(f"s_add_u32 s{sKV}, s{sKV}, {KV_OFF}")
    e(f"s_and_b32 s{sT1}, s{sQB}, {opt.get('rot', 0)}")
    e(f"s_lshl_b32 s{sT1}, s{sT1}, {opt.get('rotsh', 0)}")
    e(f"s_lshl3_add_u32 s{sT1}, s{sW}, s{sT1}")
    e(f"s_lshl1_add_u32 s{sT1}, s{sT1}, 1")
    e(f"s_lshl_b32 s{sRun}, s{sT1}, 11")
    e(f"s_add_u32 s{rK}, s{pWS}, s{sKV}")
    e(f"s_addc_u32 s{rK+1}, s{pWS+1}, 0")
    e(f"s_mov_b32 s{rK+2}, 0x20000")
    e(f"s_mov_b32 s{rK+3}, 0x20000")
    e(f"s_add_u32 s{rV}, s{rK}, {2 << 20}")
    e(f"s_addc_u32 s{rV+1}, s{rK+1}, 0")
    e(f"s_mov_b32 s{rV+2}, 0x20000")
    e(f"s_mov_b32 s{rV+3}, 0x20000")
    ep = epiF(AB, sHoff)
    n1 = opt.get("ep1", 26)
    a.ds_wait_all()
    for f, c in ep[:n1]: f()
    sp.stamp("ep", lvl=5, nowait=True)
    a.vm_wait("poll")
    sp.stamp("pl", lvl=5, nowait=True)
    e(f"v_cmp_gt_u32 s[74:75], 16, v{vDum+3}")
    e(f"s_cmp_eq_u64 s[74:75], 0")
    e(f"s_cbranch_scc1 L_e2ok")
    sv = (list(a.vm), list(a.hist))
    for f, c in ep[n1:]: f()
    e("s_barrier")
    poll(vPoll, vDum + 3, 16, 1)
    qload(); e("s_waitcnt vmcnt(0)"); e(f"s_branch L_e2j")
    a.label("L_e2ok")
    a.vm, a.hist = sv
    sp.stamp("r2"); sp.stamp("ok", lvl=5, nowait=True)
    qload()
    for f, c in ep[n1:]: f()
    sp.stamp("ep2", lvl=5, nowait=True)
    e("s_barrier")
    a.label("L_e2j")
    kvload(1); kvload(2)
    sFlag, sIt, sOoff = 59, 60, 61
    e(f"s_mov_b32 s{sFlag}, 0")
    e(f"s_lshl2_add_u32 s{sOoff}, s{sQB}, s{sW}")
    e(f"s_lshl4_add_u32 s{sOoff}, s{sOoff}, s{sHead}")
    e(f"s_lshl_b32 s{sOoff}, s{sOoff}, 11")
    e(f"s_add_u32 s{sOoff}, s{sOoff}, {O_OFF}")
    for jj in range(4):
        e(f"s_add_u32 s{sT1}, s{sW}, {jj}")
        e(f"s_and_b32 s{sT1}, s{sT1}, 3")
        e(f"s_lshl_b32 s{sT1}, s{sT1}, 11")
        e(f"s_add_u32 s{sT1}, s{sT1}, {QX}")
        e(f"v_add_u32 v{T+2+jj}, s{sT1}, v{vSt}")
    zl = [] if opt.get("full", 0) else [O + r for r in range(64)] + [P + 8 + r for r in range(8)] + [KV + 56 + r for r in range(8)]
    def zero(n):
        for _ in range(n):
            if zl: e(f"v_mov_b32 v{zl.pop(0)}, 0")
    sp.stamp("pre", lvl=5, nowait=True)
    a.vm_wait("kv0")
    sp.stamp("kv0", lvl=5, nowait=True)
    e(f"v_mfma_f32_32x32x16_bf16 v[{Sx}:{Sx+15}], v[{KV}:{KV+3}], v[{Q}:{Q+3}], 0")
    e(f"v_mfma_f32_32x32x16_bf16 v[{Sx}:{Sx+15}], v[{KV+4}:{KV+7}], v[{Q+4}:{Q+7}], v[{Sx}:{Sx+15}]")
    zero(14)
    sp.stamp("qkv")
    jmap = lambda n: (n + 1) % 4 if n >= 60 else n % 4
    def qk(n, half):
        i, j = (n // 4) % 4, jmap(n)
        d = Sx + 16 * (n % 2); k = KV + 16 * i + 4 * half; q = Q + 8 * j + 4 * half
        c = "0" if half == 0 else f"v[{d}:{d+15}]"
        e(f"v_mfma_f32_32x32x16_bf16 v[{d}:{d+15}], v[{k}:{k+3}], v[{q}:{q+3}], {c}")
    def pv(n, half):
        i, j = (n // 4) % 4, jmap(n)
        d = O + 16 * j; v = KV + 16 * i + 8 + 4 * half; p = P + 8 * (n % 2) + 4 * half
        e(f"v_mfma_f32_32x32x16_bf16 v[{d}:{d+15}], v[{v}:{v+3}], v[{p}:{p+3}], v[{d}:{d+15}]")
    def sm(n, g):
        s = Sx + 16 * (n % 2) + 4 * g; p = P + 8 * (n % 2) + 2 * g
        for k in range(4): e(f"v_exp_f32 v{s+k}, v{s+k}")
        e(f"v_cvt_pk_bf16_f32 v{p}, v{s}, v{s+1}")
        e(f"v_cvt_pk_bf16_f32 v{p+1}, v{s+2}, v{s+3}")
    M = T + 8
    def patch(jjs, bias):
        U = M + 4
        for jj in jjs: e(f"v_mov_b32 v{U+jj}, v{M+jj}")
        for jj in jjs: e(f"v_permlane32_swap_b32 v{M+jj}, v{U+jj}")
        for jj in jjs: e(f"v_max_f32 v{M+jj}, v{M+jj}, v{U+jj}")
        for jj in jjs: e(f"v_sub_f32 v{M+jj}, {hexf(-bias) if bias else 0}, v{M+jj}")
        for jj in jjs: e(f"v_cvt_pk_bf16_f32 v{U+jj}, v{M+jj}, v{M+jj}")
        for jj in jjs: e(f"v_and_b32 v{U+jj}, 0xffff0000, v{U+jj}")
        for jj in jjs: e(f"v_sub_f32 v{U+jj}, v{M+jj}, v{U+jj}")
        for jj in jjs: e(f"v_cvt_pk_bf16_f32 v{M+jj}, v{M+jj}, v{U+jj}")
        for jj in jjs: e(f"v_cndmask_b32 v{Q+8*jj+6}, v{M+jj}, v{Q+8*jj+6}, vcc")
        for jj in jjs: e(f"v_and_b32 v{M+jj}, 0xffff0000, v{M+jj}")
        for jj in jjs: e(f"v_sub_f32 v{U+jj}, v{U+jj}, v{M+jj}")
        for jj in jjs: e(f"v_cvt_pk_bf16_f32 v{U+jj}, v{U+jj}, 0")
        for jj in jjs: e(f"v_cndmask_b32 v{Q+8*jj+7}, v{U+jj}, v{Q+8*jj+7}, vcc")
    for k in range(4): e(f"v_max3_f32 v{M+4+k}, v{Sx+4*k}, v{Sx+4*k+1}, v{Sx+4*k+2}")
    for k in range(2): e(f"v_max3_f32 v{M+4+2*k}, v{M+4+2*k}, v{M+5+2*k}, v{Sx+8*k+3}")
    e(f"v_max3_f32 v{M}, v{Sx+7}, v{Sx+15}, v{M+4}")
    e(f"v_max_f32 v{M}, v{M}, v{M+6}")
    patch([0], BIAS)
    a.ds_op(f"ds_write_b128 v{T+2}, v[{Q}:{Q+3}]")
    a.ds_op(f"ds_write_b128 v{T+2}, v[{Q+4}:{Q+7}] offset:1024")
    zero(16)
    lds_sync(1, 4, T, T + 1, lambda: (qk(0, 0), qk(0, 1), zero(24)))
    for jj in range(1, 4):
        a.ds_op(f"ds_read_b128 v[{Q+8*jj}:{Q+8*jj+3}], v{T+2+jj}")
        a.ds_op(f"ds_read_b128 v[{Q+8*jj+4}:{Q+8*jj+7}], v{T+2+jj} offset:1024")
    zero(99)
    e("s_waitcnt vmcnt(8)")
    last_signals(0, 8, sRB, 12, T, T + 1)
    lds_arrive(2, T, T + 1)
    e(f"s_setprio {opt.get('attprio', 1)}")
    a.vm = []
    padat("preloop")
    sp.stamp("preloop"); sp.stamp("preloop", lvl=5)
    def pv0(n, half):
        i, j = (n // 4) % 4, jmap(n)
        d = O + 16 * j; v = KV + 16 * i + 8 + 4 * half; p = P + 8 * (n % 2) + 4 * half
        c = "0" if (n < 4 and half == 0) else f"v[{d}:{d+15}]"
        e(f"v_mfma_f32_32x32x16_bf16 v[{d}:{d+15}], v[{v}:{v+3}], v[{p}:{p+3}], {c}")
    def owrite(jj):
        for q in range(4):
            r = O + 16 * jj + 4 * q
            a.ds_op(f"ds_write_b128 v{T+jj}, v[{r}:{r+3}] offset:{(jj-1)*4096 + q*1024}")
    for jj in range(4):
        e(f"s_add_u32 s{sT1}, s{sW}, {jj}")
        e(f"s_and_b32 s{sT1}, s{sT1}, 3")
        e(f"s_mul_i32 s{sT1}, s{sT1}, 12288")
        e(f"s_add_u32 s{sT1}, s{sT1}, {ATT_LDS}")
        e(f"v_add_u32 v{T+jj}, s{sT1}, v{vSt}")
    FULL = opt.get("full", 0)
    PAT = opt.get("pat", "D")
    def slot_code(n, first):
        ti, j = divmod(n, 4)
        sb = Sx + 16 * (n % 2); pb = P + 8 * (n % 2)
        E = [f"v_exp_f32 v{sb+k}, v{sb+k}" for k in range(16)]
        Cv = [f"v_cvt_pk_bf16_f32 v{pb+k}, v{sb+2*k}, v{sb+2*k+1}" for k in range(8)]
        sq = {"A": [E[0:4] + Cv[0:2], E[4:8] + Cv[2:4], E[8:12] + Cv[4:6], E[12:16] + Cv[6:8]],
              "D": [E[0:3], E[3:6], E[6:9], E[9:16] + Cv],
              "E": [E[0:3], E[3:5] + Cv[0:2], E[5:8], E[8:16] + Cv[2:]],
              "B": [E[0:3], E[3:8] + Cv[0:4], E[8:11], E[11:16] + Cv[4:]],
              "F": [E[0:3] + [], E[3:6] + Cv[0:2], E[6:10] + Cv[2:4], E[10:16] + Cv[4:]]}[PAT]
        run = lambda L: [e(x) for x in L]
        if j == 3 and ti < 15: e(f"s_waitcnt vmcnt({4 * min(2, 14 - ti)})")
        if n + 1 < 64: qk(n + 1, 0)
        run(sq[0])
        if n + 1 < 64: qk(n + 1, 1)
        run(sq[1])
        if n or not first: (pv0 if first else pv)(n + 15 if n == 0 else n - 1, 0)
        run(sq[2])
        if n or not first: (pv0 if first else pv)(n + 15 if n == 0 else n - 1, 1)
        LP = opt.get("ldpos", 3)
        run(sq[3][:LP])
        if j == 0 and ti + 3 < 16:
            for k in range(4):
                r = KV + 16 * ((ti + 3) % 4) + 4 * k
                e(f"buffer_load_dwordx4 v[{r}:{r+3}], v{vSt}, {S(rK if k < 2 else rV)}, s{sRun} offen offset:{2048*(ti%2) + 1024*(k%2)}{LD}")
            if ti % 2:
                e(f"s_add_u32 s{sRun}, s{sRun}, 4096")
                e(f"s_and_b32 s{sRun}, s{sRun}, 0x1ffff")
        if n == 59:
            e(f"v_mov_b32 v{T+4}, {SYNC}")
            a.ds_op(f"ds_read_b32 v{T+5}, v{T+4}", "chk")
        if n == 62:
            lds_check(0, 8, T + 4, T + 5)
            owrite(1)
        if n == 63: owrite(2)
        run(sq[3][LP:])
    if FULL:
        a.raw(".p2align 6")
        for n in range(64): slot_code(n, True)
    else:
        e(f"s_mov_b32 s{sIt}, 2")
        a.raw(".p2align 6")
        a.label("L_loop")
        start = len(a.lines)
        for n in range(16): slot_code(n, False)
        e(f"s_sub_u32 s{sIt}, s{sIt}, 1")
        e("s_cbranch_scc0 L_loop")
        check_loop(a.lines[start:])
        for n in range(48, 64): slot_code(n, False)
    pv0(63, 0); pv0(63, 1)
    if opt.get("kdefer", 99) < 28: lds_arrive(13, T + 4, T + 5)
    padat("loop")
    sp.stamp("loop"); sp.stamp("loop", lvl=4)
    a.vm = []
    owrite(3)
    sp.stamp("wr", lvl=4)
    lds_sync(7, 4, T + 4, T + 5)
    sp.stamp("sy", lvl=4)
    for p in range(3):
        for q in range(4):
            r = O + 16 + 16 * p + 4 * q
            a.ds_op(f"ds_read_b128 v[{r}:{r+3}], v{T} offset:{p*4096 + q*1024}", f"p{p}")
    for p in range(3):
        a.ds_wait(f"p{p}")
        for k in range(16): e(f"v_add_f32 v{O+k}, v{O+k}, v{O+16+16*p+k}")
    sp.stamp("rd", lvl=4)
    a.label("L_norm")
    e(f"v_mov_b32 v{T}, v{O+12}")
    e(f"v_mov_b32 v{T+1}, v{O+12}")
    e(f"v_permlane32_swap_b32 v{T}, v{T+1}")
    e(f"v_rcp_f32 v{T}, v{T+1}")
    e(f"v_mov_b32 v{T+2}, 0")
    for k in range(16): e(f"v_mul_f32 v{O+k}, v{O+k}, v{T}")
    for k in range(8): e(f"v_cvt_pk_bf16_f32 v{P+k}, v{O+2*k}, v{O+2*k+1}")
    e(f"v_cndmask_b32 v{P+6}, 0, v{P+6}, vcc")
    e(f"v_cndmask_b32 v{P+7}, 0, v{P+7}, vcc")
    e(f"buffer_store_dwordx4 v[{P}:{P+3}], v{vSt}, {S(rWS)}, s{sOoff} offen{ST}")
    e(f"buffer_store_dwordx4 v[{P+4}:{P+7}], v{vSt}, {S(rWS)}, s{sOoff} offen offset:1024{ST}")
    for k in range(16): e(f"v_fmac_f32 v{T+2}, 0, v{O+k}")
    e(f"v_mov_b32 v{T+3}, {hexf(2.0**-(BIAS+8))}")
    e(f"v_cmp_u_f32 s[66:67], v{T+2}, v{T+2}")
    e(f"v_cmp_lt_f32 s[74:75], v{T+1}, v{T+3}")
    e(f"s_or_b64 s[66:67], s[66:67], s[74:75]")
    e(f"s_cmp_eq_u64 s[66:67], 0")
    e(f"s_cselect_b32 s{sT1}, 1, s{sFlag}")
    e(f"s_cmp_eq_u32 s{sT1}, 0")
    e(f"s_cbranch_scc1 L_slow")
    sp.stamp("chk", lvl=4)
    e(f"s_waitcnt vmcnt(0)")
    sp.stamp("ost"); sp.stamp("ost", lvl=4); sp.stamp("ost", lvl=7)
    e(f"s_lshl2_add_u32 s{sT2}, s{sQB}, s{sW}")
    e(f"s_lshr_b32 s{sT3}, s{sHead}, 2")
    e(f"s_lshl2_add_u32 s{sT2}, s{sT2}, s{sT3}")
    signal(sT2, 28, T + 4, T + 5)
    hdiag(0)
    sp.dump(pWS, sW)
    e("s_endpgm")
    a.label("L_slow")
    a.reset_hist()
    e(f"s_waitcnt vmcnt(0)")
    e(f"s_mov_b32 s{sFlag}, 1")
    e(f"s_mov_b32 s{rK+2}, 0x20000")
    e(f"s_mov_b32 s{rV+2}, 0x20000")
    e(f"v_cndmask_b32 v{Q+6}, 0, v{Q+6}, vcc")
    e(f"v_cndmask_b32 v{Q+7}, 0, v{Q+7}, vcc")
    e(f"v_mov_b32 v{M}, 0xff800000")
    e(f"s_mov_b32 s{sRun}, 0")
    e(f"s_mov_b32 s{sIt}, 64")
    a.label("L_s1")
    start = len(a.lines)
    e(f"buffer_load_dwordx4 v[{KV}:{KV+3}], v{vSt}, {S(rK)}, s{sRun} offen{LD}")
    e(f"buffer_load_dwordx4 v[{KV+4}:{KV+7}], v{vSt}, {S(rK)}, s{sRun} offen offset:1024{LD}")
    e("s_waitcnt vmcnt(0)")
    e(f"v_mfma_f32_32x32x16_bf16 v[{Sx}:{Sx+15}], v[{KV}:{KV+3}], v[{Q}:{Q+3}], 0")
    e(f"v_mfma_f32_32x32x16_bf16 v[{Sx}:{Sx+15}], v[{KV+4}:{KV+7}], v[{Q+4}:{Q+7}], v[{Sx}:{Sx+15}]")
    for k in range(8): e(f"v_max3_f32 v{M}, v{M}, v{Sx+2*k}, v{Sx+2*k+1}")
    e(f"s_add_u32 s{sRun}, s{sRun}, 2048")
    e(f"s_sub_u32 s{sIt}, s{sIt}, 1")
    e(f"s_cmp_lg_u32 s{sIt}, 0")
    e("s_cbranch_scc1 L_s1")
    check_loop(a.lines[start:])
    patch([0], 0.0)
    for r in range(16): e(f"v_mov_b32 v{O+r}, 0")
    e(f"s_mov_b32 s{sRun}, 0")
    e(f"s_mov_b32 s{sIt}, 64")
    a.label("L_s2")
    start = len(a.lines)
    for k in range(4):
        e(f"buffer_load_dwordx4 v[{KV+4*k}:{KV+4*k+3}], v{vSt}, {S(rK if k < 2 else rV)}, s{sRun} offen offset:{1024*(k%2)}{LD}")
    e("s_waitcnt vmcnt(0)")
    qk(0, 0); qk(0, 1)
    for g in range(4): sm(0, g)
    pv(0, 0); pv(0, 1)
    e(f"s_add_u32 s{sRun}, s{sRun}, 2048")
    e(f"s_sub_u32 s{sIt}, s{sIt}, 1")
    e(f"s_cmp_lg_u32 s{sIt}, 0")
    e("s_nop 11")
    e("s_cbranch_scc1 L_s2")
    check_loop(a.lines[start:])
    e("s_branch L_norm")
    a.label("L_gemm")
    a.reset_hist(); a.vm = []; a.lg = []; sp.set(nst)
    ACCG, HR, WFR, T, WO_F, XF, GF = 16, 80, 136, 152, 160, 224, 136
    OF = HR
    GF = 240
    vA0, vA1, vIO, vCt = 4, 5, 6, 7
    sH0, sH1, sI0 = 59, 60, 61
    DP = opt.get("gdepth", 5)
    PACE = opt.get("pace", 4)
    def pace():
        nonlocal PACE
        if PACE and len(a.vm) > PACE:
            e(f"s_waitcnt vmcnt({PACE})"); a.vm = a.vm[-PACE:]
    e(f"s_setprio {opt.get('gprio0', 2)}")
    e(f"s_cmp_lt_u32 s{sJ}, 28")
    e(f"s_cbranch_scc1 L_gemm2")
    e(f"s_waitcnt vmcnt(0)")
    last_signals(0, 8, sRB, 12, T, T + 1)
    e("s_endpgm")
    a.label("L_gemm2")
    a.vm_mark("hst")
    lds_sync(3, 4, T, T + 1)
    srd(a, rW, pWO, WO_BYTES)
    e(f"s_sub_u32 s{sWq}, s{sW}, 4")
    e(f"s_mul_i32 s{sT1}, s{sJ}, 37")
    e(f"s_lshr_b32 s{sT1}, s{sT1}, 8")
    e(f"s_mul_i32 s{sT2}, s{sT1}, 7")
    e(f"s_sub_u32 s{sCB}, s{sJ}, s{sT2}")
    e(f"s_lshl2_add_u32 s{sTB}, s{sX}, s{sT1}")
    e(f"s_lshl_b32 s{sCB}, s{sCB}, 7")
    e(f"s_mul_i32 s{sLB}, s{sWq}, 12288")
    dma_voff(a, vLane, vD, T, T + 1)
    e(f"v_and_b32 v{T}, 31, v{vLane}")
    e(f"v_mul_u32_u24 v{T}, 896, v{T}")
    e(f"v_lshrrev_b32 v{T+1}, 5, v{vLane}")
    e(f"v_lshl_add_u32 v{vIO}, v{T+1}, 3, v{T}")
    e(f"s_and_b32 s{sT1}, s{sWq}, 1")
    e(f"s_lshl1_add_u32 s{sT3}, s{sTB}, s{sT1}")
    e(f"s_mul_i32 s{sI0}, s{sT3}, {32*896}")
    e(f"s_add_u32 s{sI0}, s{sI0}, s{sCB}")
    e(f"s_lshr_b32 s{sT2}, s{sWq}, 1")
    e(f"s_lshl_b32 s{sT2}, s{sT2}, 6")
    e(f"s_add_u32 s{sI0}, s{sI0}, s{sT2}")
    def issue_w(s):
        st = s % 6
        e(f"s_add_u32 m0, s{sLB}, {st*2048}")
        e(f"s_add_u32 s{sT1}, s{sWo}, {8*896}")
        a.vm_op(f"buffer_load_dwordx4 v{vD}, {S(rB)}, s{sWo} offen lds", f"s{s}")
        e(f"s_add_u32 m0, s{sLB}, {st*2048+1024}")
        e(f"s_add_u32 s{sWo}, s{sWo}, {16*896}")
        a.vm_op(f"buffer_load_dwordx4 v{vD}, {S(rB)}, s{sT1} offen lds", f"s{s}")
    srd(a, rB, pW2, W2_BYTES)
    e(f"s_mul_i32 s{sWo}, s{sWq}, {448*896}")
    e(f"s_add_u32 s{sWo}, s{sWo}, s{sCB}")
    NW0 = opt.get("nw0", 2)
    for s in range(NW0): issue_w(s)
    e(f"s_mul_i32 s{sH0}, s{sT3}, 112")
    e(f"s_xor_b32 s{sT3}, s{sT3}, 1")
    e(f"s_mul_i32 s{sH1}, s{sT3}, 112")
    e(f"s_mul_i32 s{sT1}, s{sWq}, 28")
    e(f"s_add_u32 s{sT1}, s{sT1}, {H_OFF >> 10}")
    e(f"s_add_u32 s{sH0}, s{sH0}, s{sT1}")
    e(f"s_add_u32 s{sH1}, s{sH1}, s{sT1}")
    e(f"s_lshl_b32 s{sH0}, s{sH0}, 10")
    e(f"s_lshl_b32 s{sH1}, s{sH1}, 10")
    e(f"s_xor_b32 s{sT2}, s{sT2}, s{sLB}")
    tr_addr(a, vLane, vA0, vA1, T, T + 1, T + 2, sT2, xor=True)
    def wr(s, d0, off, wait=True):
        if wait: a.vm_wait(f"s{s}")
        for ct in range(2):
            d = d0 + ct * 4
            ad = vA0 if ct == 0 else vA1
            a.ds_op(f"ds_read_b64_tr_b16 v[{d}:{d+1}], v{ad} offset:{off}", f"w{s}")
            a.ds_op(f"ds_read_b64_tr_b16 v[{d+2}:{d+3}], v{ad} offset:{off+1024}", f"w{s}")
    e(f"s_lshr_b32 s{sT1}, s{sTB}, 1")
    e(f"s_lshl_b32 s{sT1}, s{sT1}, 7")
    e(f"s_add_u32 s{sT1}, s{sT1}, {12*128}")
    e(f"v_mov_b32 v{vCt}, s{sT1}")
    def issue_h(s):
        st = s % 6
        off = (s % 4) * 1024
        a.vm_op(f"buffer_load_dwordx4 v[{HR+8*st}:{HR+8*st+3}], v{vSt}, {S(rWS)}, s{sH0} offen offset:{off}{LD}", f"s{s}")
        a.vm_op(f"buffer_load_dwordx4 v[{HR+8*st+4}:{HR+8*st+7}], v{vSt}, {S(rWS)}, s{sH1} offen offset:{off}{LD}", f"s{s}")
        if s % 4 == 3:
            e(f"s_add_u32 s{sH0}, s{sH0}, 4096")
            e(f"s_add_u32 s{sH1}, s{sH1}, 4096")
    a.vm_wait("hst")
    last_signals(0, 8, sRB, 12, T, T + 1)
    for s in range(NW0, 6): issue_w(s); pace()
    e(f"s_cmp_lg_u32 s{sWq}, 0")
    e(f"s_cbranch_scc1 L_hw")
    poll(vCt, T + 1, 16, opt.get("hsleep", 4))
    lds_arrive(8, T, T + 1)
    a.label("L_hw")
    lds_spin(2, 4, T, T + 1, 3)
    lds_spin(8, 1, T, T + 1, 3)
    e(f"s_waitcnt vmcnt(0)")
    sp.stamp("hrdy")
    for s in range(DP): issue_h(s)
    e(f"s_setprio {opt.get('gprio', 0)}")
    def mm(s, w, h):
        for ct in range(2):
            for tt in range(2):
                d = ACCG + (2*ct+tt) * 16
                c = "0" if s == 0 else f"v[{d}:{d+15}]"
                e(f"v_mfma_f32_32x32x16_bf16 v[{d}:{d+15}], v[{w+4*ct}:{w+4*ct+3}], v[{h+4*tt}:{h+4*tt+3}], {c}")
    wr(0, WFR, 0)
    XG = 144
    late = []
    def wo_first():
        e(f"s_mul_i32 s{sH0}, s{sWq}, 15360")
        e(f"s_mul_i32 s{sWo}, s{sWq}, {112*896}")
        e(f"s_add_u32 s{sWo}, s{sWo}, s{sCB}")
    def wo_dma(i):
        if i == 0: wo_first()
        e(f"s_add_u32 m0, s{sH0}, {WO_LDS + i*1024}")
        if i: e(f"s_add_u32 s{sWo}, s{sWo}, {8*896}")
        a.vm_op(f"buffer_load_dwordx4 v{vD}, {S(rW)}, s{sWo} offen lds", "wo")
    XG = XF + 8
    for i in range(15): late.append(lambda i=i: wo_dma(i))
    for q in range(4):
        late.append(lambda q=q: a.vm_op(f"buffer_load_dwordx2 v[{XG+2*q}:{XG+2*q+1}], v{vIO}, {S(rX)}, s{sI0} offen offset:{16*q}", "xg"))
    TOP = opt.get("gtop", 0)
    KD = opt.get("kdefer", 99)
    for s in range(28):
        if s == KD:
            for _ in range(opt.get("lateN", 19)):
                if late: late.pop(0)(); pace()
            lds_spin(13, opt.get("kdn", 4), T, T + 1, 2)
            e(f"s_setprio {opt.get('gprio4', 2)}")
        if s == opt.get("kp2", 99): e(f"s_setprio {opt.get('kp2v', 2)}")
        if TOP and s > 0:
            if s + 1 < 28: a.vm_wait(f"s{s+1}")
            if 6 <= s + DP - 1 < 28: issue_w(s + DP - 1)
            if s + DP - 1 < 28: issue_h(s + DP - 1)
        if s + 1 < 28: wr(s + 1, WFR + ((s + 1) % 2) * 8, ((s + 1) % 6) * 2048)
        a.ds_wait(f"w{s}")
        if not opt.get("x_nogm") or s == 0: mm(s, WFR + (s % 2) * 8, HR + 8 * (s % 6))
        if opt.get("x_nogl") or TOP: continue
        if 6 <= s + DP < 28: issue_w(s + DP)
        if s + DP < 28: issue_h(s + DP)
        else:
            for _ in range(4):
                if late: late.pop(0)()
    while late: late.pop(0)()
    sp.stamp("w2")
    e(f"s_setprio {opt.get('gprio3', 0)}")
    def exchange(k):
        e(f"v_add_u32 v{T}, s{sLB}, v{vSt}")
        for sl in range(1, 4):
            for q in range(4):
                r = ACCG + 16 * sl + 4 * q
                a.ds_op(f"ds_write_b128 v{T}, v[{r}:{r+3}] offset:{(sl-1)*4096 + q*1024}")
            e(f"s_xor_b32 s{sT1}, s{sWq}, {sl}")
            e(f"s_mul_i32 s{sT1}, s{sT1}, 12288")
            e(f"v_add_u32 v{T+2+sl}, s{sT1}, v{vSt}")
        if k == 6: sp.stamp("wr", lvl=4)
        lds_sync(k, 4, T + 1, T + 2)
        if k == 6: sp.stamp("sy", lvl=4)
        for p in range(3):
            for q in range(4):
                r = ACCG + 16 + 16 * p + 4 * q
                a.ds_op(f"ds_read_b128 v[{r}:{r+3}], v{T+3+p} offset:{p*4096 + q*1024}", f"p{p}")
        for p in range(3):
            a.ds_wait(f"p{p}")
            for kk in range(16): e(f"v_add_f32 v{ACCG+kk}, v{ACCG+kk}, v{ACCG+16+16*p+kk}")
    sEarly = 67
    e(f"s_mul_i32 s{sT3}, s{sWq}, 15360 - 12288")
    e(f"s_add_u32 s{sT3}, s{sT3}, {WO_LDS}")
    e(f"v_add_u32 v{vA0}, s{sT3}, v{vA0}")
    e(f"v_add_u32 v{vA1}, s{sT3}, v{vA1}")
    e(f"s_and_b32 s{sT1}, s{sWq}, 1")
    e(f"s_lshl1_add_u32 s{sT1}, s{sTB}, s{sT1}")
    e(f"s_lshl_b32 s{sH0}, s{sT1}, 15")
    e(f"s_lshl_b32 s{sT1}, s{sWq}, 13")
    e(f"s_add_u32 s{sH0}, s{sH0}, s{sT1}")
    e(f"s_add_u32 s{sH0}, s{sH0}, {O_OFF}")
    e(f"s_xor_b32 s{sH1}, s{sH0}, 32768")
    e(f"v_min_u32 v8, 1, v{vLane}")
    e(f"v_lshlrev_b32 v8, 2, v8")
    e(f"s_lshl3_add_u32 s{sT1}, s{sTB}, s{sWq}")
    e(f"s_add_u32 s{sT1}, s{sT1}, 28")
    e(f"v_add_lshl_u32 v{vCt}, v8, s{sT1}, 7")
    srd(a, rW3, pOUT, X_BYTES)
    def opoll():
        e(f"s_mov_b32 s{sT3}, {CNT_OFF}")
        a.vm_op(f"buffer_load_dword v9, v{vCt}, {S(rWS)}, s{sT3} offen sc1", "op")
    EP = opt.get("epoll", 0)
    if EP == 0: opoll()
    exchange(4)
    lds_arrive(5, T + 1, T + 2)
    if EP == 1: opoll()
    U = ACCG + 16
    for k in range(16): e(f"v_mul_f32 v{U+k}, {hexf(-LOG2E)}, v{ACCG+k}")
    for k in range(16): e(f"v_exp_f32 v{U+k}, v{U+k}")
    for k in range(16): e(f"v_add_f32 v{U+k}, 1.0, v{U+k}")
    for k in range(16): e(f"v_rcp_f32 v{U+k}, v{U+k}")
    for k in range(16): e(f"v_mul_f32 v{GF+k}, v{ACCG+k}, v{U+k}")
    a.vm_wait("xg")
    for s in range(8):
        wr(100 + s, WO_F + 8 * s, (28 * (s // 2) + 16 * (s % 2)) * 128, wait=False)
    for k in range(8):
        e(f"v_lshlrev_b32 v{XF+2*k}, 16, v{XG+k}")
        e(f"v_and_b32 v{XF+2*k+1}, 0xffff0000, v{XG+k}")
    e(f"v_lshrrev_b32 v8, 5, v{vLane}")
    e(f"v_lshl_add_u32 v{vIO}, v8, 3, v{vIO}")
    def oloads(track):
        for s in range(8):
            if s == 4:
                e(f"s_add_u32 s{sH0}, s{sH0}, 4096")
                e(f"s_add_u32 s{sH1}, s{sH1}, 4096")
            for t, so in enumerate((sH0, sH1)):
                e(f"buffer_load_dwordx4 v[{OF+8*s+4*t}:{OF+8*s+4*t+3}], v{vSt}, {S(rWS)}, s{so} offen offset:{(s%4)*1024}{LD}")
            if track: a.vm += [f"o{s}", f"o{s}"]
    a.vm_wait("op")
    e(f"s_setprio 2")
    e(f"v_cmp_gt_u32 s[74:75], 4, v9")
    e(f"s_cmp_eq_u64 s[74:75], 0")
    e(f"s_cbranch_scc1 L_oe")
    sp.stamp("grdy"); sp.set(sp.n - 1) if sp.on == 1 else None
    poll(vCt, 9, 4, opt.get("osleep", 1))
    a.label("L_oe")
    sp.stamp("grdy")
    oloads(True)
    a.ds_wait_all()
    e(f"v_mov_b32 v10, {SYNC + 20}")
    e(f"ds_read_b32 v11, v10")
    sp.stamp("ordy"); sp.stamp("ordy", lvl=4)
    sp.stamp("oiss", lvl=4, nowait=True)
    for s in range(8):
        a.vm_wait(f"o{s}")
        if s in (0, 7): sp.stamp("o", lvl=4, nowait=True)
        mm(s, WO_F + 8 * s, OF + 8 * s)
    lds_check(5, 4, 10, 11)
    exchange(6)
    sp.stamp("ex", lvl=4)
    for k in range(16): e(f"v_fma_f32 v{ACCG+k}, v{ACCG+k}, v{GF+k}, v{XF+k}")
    for k in range(8): e(f"v_cvt_pk_bf16_f32 v{U+k}, v{ACCG+2*k}, v{ACCG+2*k+1}")
    for pr in range(2):
        e(f"v_permlane32_swap_b32 v{U+4*pr}, v{U+4*pr+2}")
        e(f"v_permlane32_swap_b32 v{U+4*pr+1}, v{U+4*pr+3}")
    e(f"buffer_store_dwordx4 v[{U}:{U+3}], v{vIO}, {S(rW3)}, s{sI0} offen{opt.get('ost', '')}")
    e(f"buffer_store_dwordx4 v[{U+4}:{U+7}], v{vIO}, {S(rW3)}, s{sI0} offen offset:32{opt.get('ost', '')}")
    hdiag(1)
    if opt.get("padg"):
        e("v_mov_b32 v0, 0")
        e(f"global_load_dword v0, v0, s[{pDBG}:{pDBG+1}] offset:4 sc1")
        e("s_waitcnt vmcnt(0)")
        e("v_readfirstlane_b32 s76, v0")
        e("s_not_b32 s76, s76")
    if opt.get("pad"):
        a.label("L_pad")
        e("s_memrealtime s[80:81]")
        e("s_waitcnt lgkmcnt(0)")
        e("s_sub_u32 s80, s80, s76")
        e(f"s_cmp_lt_u32 s80, {opt['pad']}")
        e("s_cbranch_scc1 L_pad")
    sp.stamp("end"); sp.stamp("end", lvl=4); sp.stamp("end", lvl=7)
    if sp.on == 4: e("s_waitcnt vmcnt(0)")
    sp.stamp("drain", lvl=4)
    sp.dump(pWS, sW)
    a.label("L_end")
    e("s_endpgm")
    return kd(NAME, 256)

if __name__ == "__main__":
    opt = json.loads(sys.argv[2]) if len(sys.argv) > 2 else {}
    a = Asm()
    for l in """; out = x + (softmax(q k^T / sqrt(28)) v @ wo) * silu((silu(xn w1) * (xn w3)) @ w2),  xn = layernorm(x),  q|k|v = xn wqkv
; One persistent launch, one 8-wave workgroup per CU; workgroups hand data over through d_ws (write-through stores,
; counters cleared by workgroup 0 and released through d_debug[0], consumers poll with bounded loops).
;  phase A (all waves): centre 128 rows of x (1/std is applied to the results), three rounds of 32x32 tiles against
;          weight tiles that stream through LDS: q/k/v (heads padded 28 -> 32) and h = silu(gate) * up, stored as MFMA fragments
;  phase B waves 0-3: attention for one head and 128 queries, keys split over the waves.  The softmax shift of a row is
;          its true maximum over a first key tile plus 64 (in log2 units), folded into the q k^T MFMA through the spare k slots;
;          the row sum comes from a column of ones in v.  If that shift turns out unsafe (non-finite result or a row
;          sum below 2^-72) the wave redoes its q tile with the true maximum over all keys (L_slow).
;          waves 4-7: h @ w2 for a 64x64 tile (k split over the waves), gate = silu(.)
;  phase C waves 4-7: o @ wo for the same tile, out = x + s * gate
; @launch grid=(256,1,1) block=(512,1,1) lds=163840""".split("\n"): a.raw(l)
    a.raw('.amdgcn_target "amdgcn-amd-amdhsa--gfx950"')
    a.raw(".text")
    k = gen(a, opt)
    a.raw("L_code_end:")
    a.raw(".fill 64, 4, 0xbf800000")
    a.raw("    s_endpgm")
    a.raw('.section .rodata,"a"')
    a.raw(k)
    open(sys.argv[1], "w").write(a.text())
    print("nops inserted:", a.nops, "lines:", len(a.lines))
```

```python
import sys, json
from common import *
from gemm64 import *
BIAS = 32.0
NAME = "recurrent_scan__softmax_full_mha__glu_gated_swiglu__prompt_kernel"

def gen(a, opt):
    BIAS = float(opt.get("bias", 64))
    ST = opt.get("st", " sc1")
    LD = " sc1"
    NPH = opt.get("nph", 2)
    kernel_head(a, NAME)
    e = a.e
    uid = [0]
    def lab(p):
        uid[0] += 1; return f"L_{p}{uid[0]}"
    pX, pWQ, pWO, pW1, pW3, pW2, pOUT, pDBG, pWS = 4, 6, 8, 12, 14, 16, 18, 20, 22
    rX, rW1, rW3, rA, rB, rWS = 24, 28, 32, 36, 40, 44
    S = lambda r: f"s[{r}:{r+3}]"
    sW, sTT, sG, sRB, sCOL, sTTG = 48, 49, 50, 51, 52, 53
    sSO = [[54, 55], [56, 56], [57, 57]]
    sP64, sM0, sCurA, sCurB, sOnes, sLo, sHi, sHoff, sQKoff, sQKstep = 58, 59, 60, 61, 62, 63, 64, 65, 66, 67
    sT1, sT2, sT3, sStat, sPh, sHoff2 = 68, 69, 70, 71, 72, 73
    X0, AA, AB, WF, T0 = 16, 128, 160, 192, 216
    vLane, vSt, vD0, vD1, vD2B = 1, 2, 3, 4, 250
    vTB = [[5, 6], [7, 8], [9, 243]]
    vTW = [10, 11]
    vXR = [12, 13, 14, 15]
    vK, vC1, vSc, vP6, vP7, vFlag, vV3, vV4 = 232, 233, 234, 236, 237, 238, 239, 235
    vXW = [240, 241]; vStat = 242; vNM = 243; vAcc = [244, 245, 246, 247]; vV1, vV2 = 248, 249
    vDum = 251
    RAW = 128
    SCR = 7 * 16384
    SYNC = 163840 - 256
    e("s_cmp_ge_u32 s2, 256")
    e("s_cbranch_scc1 L_end")
    sp = Stamper(a, opt.get("stamp"), 0); sp.allreal = opt.get("rt")
    sp.stamp("rt", True); sp.stamp("start")
    if opt.get("hdiag") or opt.get("pad") or opt.get("padat"): e("s_memrealtime s[76:77]"); e("s_memtime s[78:79]")
    e("s_load_dwordx16 s[4:19], s[0:1], 0")
    e("s_load_dwordx4 s[20:23], s[0:1], 64")
    RL = opt.get("rl", 3)
    sWR, sXa, sXb, sGS = sStat, sOnes, sLo, sHi
    e(f"v_lshrrev_b32 v22, 6, v0")
    e(f"v_and_b32 v{vLane}, 63, v0")
    e(f"v_readfirstlane_b32 s{sW}, v22")
    e(f"s_and_b32 s{sT1}, s2, {(16 >> RL) - 1}")
    e(f"s_bfe_u32 s{sT2}, s2, {hex((RL << 16) | 3)}")
    e(f"s_lshl{RL}_add_u32 s{sRB}, s{sT1}, s{sT2}")
    e(f"s_bfe_u32 s{sT1}, s2, {hex(((RL - 1) << 16) | (4 - RL))}")
    e(f"s_lshr_b32 s{sT2}, s2, {3 + RL}")
    e(f"s_lshl2_add_u32 s{sSO[1][0]}, s{sT1}, s{sT2}")
    if opt.get("mix", 1): e(f"s_lshl2_add_u32 s{sCOL}, s{sT2}, s{sT1}")
    else: e(f"s_mov_b32 s{sCOL}, s{sSO[1][0]}")
    e(f"v_bfe_u32 v22, v0, 3, 3")
    e(f"v_and_b32 v23, 7, v0")
    e(f"s_lshl_b32 s{sT1}, s{sT2}, 2")
    e(f"s_and_b32 s{sWR}, s{sT1}, 4")
    e(f"s_xor_b32 s{sWR}, s{sWR}, s{sW}")
    e(f"s_and_b32 s{sGS}, s{sT1}, 8")
    e(f"s_lshl3_add_u32 s{sT1}, s{sRB}, s{sWR}")
    e(f"s_lshl4_add_u32 s{sT2}, s{sT1}, s{sGS}")
    e(f"s_xor_b32 s{sT1}, s{sT2}, 8")
    e(f"s_mulk_i32 s{sT2}, 896")
    e(f"s_mulk_i32 s{sT1}, 896")
    e(f"v_mul_u32_u24 v24, 896, v22")
    e(f"v_lshl_add_u32 v24, v23, 4, v24")
    e(f"s_mov_b32 s{rX+2}, {hex(X_BYTES)}")
    e(f"s_mov_b32 s{rX+3}, 0x20000")
    e(f"s_cmp_ge_u32 s{sW}, 4")
    e("s_waitcnt lgkmcnt(0)")
    e(f"s_mov_b64 s[{rX}:{rX+1}], s[{pX}:{pX+1}]")
    for p in (pWQ, pW1, pW3)[:opt.get("stouch", 3)]: e(f"s_load_dword s{sQKoff}, s[{p}:{p+1}], 0")
    def xloads(lo, hi, sa, sb):
        for k in range(lo, hi):
            gi, i = divmod(k, 7)
            r = RAW + k * 4
            e(f"buffer_load_dwordx4 v[{r}:{r+3}], v24, {S(rX)}, s{sa if gi == 0 else sb} offen offset:{i*128}{opt.get('xnt', '')}")
    def touch():
        sh = opt.get("touchsh", 21)
        e(f"v_min_u32 v25, {(WS_USED >> sh) - 1}, v{vLane}")
        e(f"v_lshlrev_b32 v25, {sh}, v25")
        e(f"global_load_dword v{vDum+1}, v25, s[{pWS}:{pWS+1}]")
        e(f"v_mov_b32 v25, 0")
        for p in (pW1, pW3, pWQ, pW2, pWO, pOUT, pDBG):
            e(f"global_load_dword v{vDum+1}, v25, s[{p}:{p+1}]")
    XE = opt.get("xe", 10)
    e(f"s_cbranch_scc1 L_x0")
    a.skip_begin(); xloads(0, XE, sT2, sT1)
    e(f"s_branch L_x1")
    a.label("L_x0")
    e(f"s_getpc_b64 s[74:75]")
    a.label("L_pc")
    e(f"s_add_u32 s74, s74, {NAME}-L_pc")
    e(f"s_addc_u32 s75, s75, -1")
    e(f"s_lshr_b32 s3, s2, 3")
    e(f"s_lshl_b32 s3, s3, 7")
    e(f"v_and_b32 v20, 255, v0")
    e(f"v_lshl_add_u32 v20, v20, 12, s3")
    e(f"v_min_u32 v{vDum}, L_code_end-{NAME}-4, v20")
    e(f"global_load_dword v{vDum}, v{vDum}, s[74:75]")
    if opt.get("touch") == 1: touch()
    a.skip_end()
    a.label("L_x1")
    sp.stamp("xiss", lvl=3)
    if opt.get("stouch2", 0):
        e(f"s_lshl_b32 s3, s{sW}, 21")
        e(f"s_load_dword s{sQKoff}, s[{pWS}:{pWS+1}], s3")
        e(f"s_mov_b32 s3, {16 << 20}")
        e(f"s_load_dword s{sQKoff}, s[{pWS}:{pWS+1}], s3")
        for p in (pW2, pWO, pOUT, pDBG): e(f"s_load_dword s{sQKoff}, s[{p}:{p+1}], 0")
    e(f"s_mov_b32 s{sXa}, s{sT2}")
    e(f"s_mov_b32 s{sXb}, s{sT1}")
    def padat(nm):
        if opt.get("padat", [None])[0] != nm: return
        l = lab("pa"); a.label(l)
        e("s_memrealtime s[80:81]")
        e("s_waitcnt lgkmcnt(0)"); a.lg = []
        e("s_sub_u32 s80, s80, s76")
        e(f"s_cmp_lt_u32 s80, {opt['padat'][1]}")
        e(f"s_cbranch_scc1 {l}")
    def srd2(d, base, nbytes):
        e(f"s_mov_b64 s[{d}:{d+1}], s[{base}:{base+1}]")
        e(f"s_mov_b32 s{d+2}, {hex(nbytes)}")
        e(f"s_mov_b32 s{d+3}, 0x20000")
    if opt.get("wsoff"):
        e(f"s_add_u32 s{pWS}, s{pWS}, {opt['wsoff'] << 20}")
        e(f"s_addc_u32 s{pWS+1}, s{pWS+1}, 0")
    srd2(rWS, pWS, WS_USED)
    if opt.get("padg"):
        e("s_cmp_ge_u32 s2, 8")
        e("s_cbranch_scc1 L_pg")
        e(f"s_cmp_lg_u32 s{sW}, 7")
        e("s_cbranch_scc1 L_pg")
        e("s_not_b32 s80, s76")
        e("v_mov_b32 v25, 0"); e("v_mov_b32 v26, s80")
        e(f"global_atomic_umax v25, v26, s[{pDBG}:{pDBG+1}] offset:4 sc1")
        a.label("L_pg")
    e(f"s_and_b32 s{sTT}, s{sW}, 3")
    e(f"s_lshr_b32 s{sG}, s{sW}, 2")
    e(f"s_lshl_b32 s{sM0}, s{sW}, 10")
    e(f"s_lshl_b32 s{sPh}, s{sG}, 1")
    sTc0a, sTc0b = sCurA, sCurB
    e(f"s_cmp_ge_u32 s{sCOL}, 12")
    e(f"s_cbranch_scc1 L_r0f")
    srd2(rA, pWQ, WQ_BYTES)
    e(f"s_mov_b64 s[{rB}:{rB+1}], s[{pWQ}:{pWQ+1}]")
    e(f"s_and_b32 s{sT2}, s{sCOL}, 3")
    e(f"s_mul_i32 s{sSO[0][0]}, s{sCOL}, 224")
    e(f"s_cmp_eq_u32 s{sT2}, 3")
    e(f"s_cselect_b32 s{sT3}, 32, 0")
    e(f"s_sub_u32 s{sSO[0][0]}, s{sSO[0][0]}, s{sT3}")
    e(f"s_add_u32 s{sSO[0][1]}, s{sSO[0][0]}, 128")
    e(f"s_mul_i32 s{sTc0a}, s{sG}, 112")
    e(f"s_add_u32 s{sTc0a}, s{sTc0a}, s{sT3}")
    e(f"s_add_u32 s{sTc0b}, s{sTc0a}, 56")
    e(f"s_movk_i32 s{sP64}, 2688")
    e(f"s_branch L_r0j")
    a.label("L_r0f")
    srd2(rA, pW1, W1_BYTES)
    e(f"s_mov_b64 s[{rB}:{rB+1}], s[{pW3}:{pW3+1}]")
    e(f"s_add_u32 s{sT1}, s{sCOL}, 12")
    e(f"s_lshl_b32 s{sSO[0][0]}, s{sT1}, 7")
    e(f"s_mov_b32 s{sSO[0][1]}, s{sSO[0][0]}")
    e(f"s_lshl_b32 s{sTc0a}, s{sG}, 6")
    e(f"s_add_u32 s{sTc0b}, s{sTc0a}, 128")
    e(f"s_movk_i32 s{sP64}, 3584")
    a.label("L_r0j")
    a.reset_hist()
    e(f"s_mov_b32 s{rB+2}, s{rA+2}")
    e(f"s_mov_b32 s{rB+3}, 0x20000")
    e(f"s_and_b32 s{sT3}, s{sRB}, {(1 << RL) - 1}")
    ER = opt.get("erows", 448)
    def wpf0():
        e(f"s_cmp_ge_u32 s{sW}, 4")
        e(f"s_cselect_b32 s{sT1}, {ER}, 0")
        e(f"s_cselect_b32 s{sT2}, {(448 - ER) // 4}, {ER // 4}")
        e(f"s_mul_i32 s{sQKstep}, s{sTT}, s{sT2}")
        e(f"s_add_u32 s{sT1}, s{sT1}, s{sQKstep}")
        e(f"s_add_u32 s{sT1}, s{sT1}, s{sT3}")
        e(f"s_lshr_b32 s{sT2}, s{sT2}, {RL}")
        e(f"s_sub_u32 s{sT2}, s{sT2}, 1")
        e(f"v_min_u32 v33, s{sT2}, v{vLane}")
        e(f"v_lshl_add_u32 v33, v33, {RL}, s{sT1}")
        e(f"v_mul_lo_u32 v33, v33, s{sP64}")
        e(f"s_cmp_ge_u32 s{sW}, 4")
        e(f"s_cbranch_scc1 L_w0")
        a.skip_begin()
        e(f"buffer_load_dword v{vDum+1}, v33, {S(rA)}, s{sSO[0][0]} offen")
        e(f"buffer_load_dword v{vDum+1}, v33, {S(rB)}, s{sSO[0][1]} offen")
        if opt.get("xrpos") == 1: xloads(XE, 14, sXa, sXb)
        a.skip_end()
        a.label("L_w0")
    if opt.get("w0pos", 0) == 0: wpf0()
    if opt.get("w0pos", 0) == 2:
        e(f"s_mul_i32 s{sT2}, s{sW}, 56")
        e(f"s_add_u32 s{sT2}, s{sT2}, s{sT3}")
        e(f"s_mul_i32 s{sT2}, s{sT2}, s{sP64}")
        e(f"s_add_u32 s{sHoff}, s{sT2}, s{sSO[0][0]}")
        e(f"s_add_u32 s{sHoff2}, s{sT2}, s{sSO[0][1]}")
        e(f"s_lshl_b32 s{sT2}, s{sP64}, {RL}")
        for i in range(56 >> RL):
            e(f"s_load_dword s{sQKoff}, s[{rA}:{rA+1}], s{sHoff}")
            e(f"s_load_dword s{sQKoff}, s[{rB}:{rB+1}], s{sHoff2}")
            if i + 1 < (56 >> RL):
                e(f"s_add_u32 s{sHoff}, s{sHoff}, s{sT2}")
                e(f"s_add_u32 s{sHoff2}, s{sHoff2}, s{sT2}")
    e(f"v_lshrrev_b32 v25, 2, v{vLane}")
    e(f"v_and_b32 v25, 4, v25")
    e(f"v_xor_b32 v25, v25, v23")
    e(f"v_lshl_add_u32 v26, s{sW}, 3, v22")
    e(f"v_mul_lo_u32 v{vD0}, v26, s{sP64}")
    e(f"v_lshl_add_u32 v{vD0}, v25, 4, v{vD0}")
    e(f"v_mul_u32_u24 v{vD1}, 3584, v26")
    e(f"v_lshl_add_u32 v{vD1}, v25, 4, v{vD1}")
    e(f"s_lshl_b32 s{sT1}, s{sP64}, 5")
    e(f"v_subrev_u32 v32, s{sT1}, v{vD0}")
    vRow, vSwz, vCol = vV1, vV2, vV3
    e(f"v_lshrrev_b32 v26, 5, v{vLane}")
    e(f"v_bfe_u32 v27, v{vLane}, 2, 2")
    e(f"v_lshl_add_u32 v27, v26, 3, v27")
    e(f"v_lshlrev_b32 v{vRow}, 7, v27")
    e(f"v_and_b32 v28, 8, v{vLane}")
    e(f"v_lshlrev_b32 v{vSwz}, 3, v28")
    e(f"v_and_b32 v29, 3, v{vLane}")
    e(f"v_and_b32 v30, 16, v{vLane}")
    e(f"v_lshlrev_b32 v30, 1, v30")
    e(f"v_lshl_add_u32 v{vCol}, v29, 3, v30")
    def traddr(d, stc, t0, t1):
        return [f"v_add_u32 v{t0}, s{stc}, v{vCol}", f"v_and_b32 v{t1}, 127, v{t0}", f"v_xor_b32 v{t1}, v{t1}, v{vSwz}",
                f"v_and_b32 v{t0}, 128, v{t0}", f"v_lshl_add_u32 v{t0}, v{t0}, 6, v{t1}", f"v_add_u32 v{d}, v{t0}, v{vRow}"]
    for t in traddr(vTB[0][0], sTc0a, 30, 31) + traddr(vTB[0][1], sTc0b, 30, 31): e(t)
    e(f"s_and_b32 s{sT1}, s{sWR}, 1")
    e(f"s_lshl4_add_u32 s{sT1}, s{sT1}, s{sGS}")
    e(f"v_add_u32 v30, s{sT1}, v22")
    e(f"v_xor_b32 v30, v30, v23")
    e(f"v_lshlrev_b32 v30, 4, v30")
    e(f"v_lshrrev_b32 v31, 1, v23")
    e(f"v_lshl_add_u32 v30, v31, 12, v30")
    e(f"v_and_b32 v31, 1, v23")
    e(f"v_lshl_add_u32 v30, v31, 9, v30")
    e(f"s_lshr_b32 s{sT1}, s{sWR}, 1")
    e(f"v_lshl_add_u32 v{vXW[0]}, s{sT1}, 10, v30")
    e(f"v_add_u32 v{vXW[1]}, 0x10000, v{vXW[0]}")
    e(f"v_and_b32 v30, 31, v{vLane}")
    e(f"v_xor_b32 v30, v30, v26")
    e(f"v_lshlrev_b32 v30, 4, v30")
    e(f"v_lshl_add_u32 v30, v26, 9, v30")
    e(f"v_lshl_add_u32 v{vXR[0]}, s{sTT}, 10, v30")
    for q in range(1, 4):
        e(f"v_xor_b32 v{vXR[q]}, {q*4096 + q*32}, v{vXR[0]}")
    e(f"s_lshl4_add_u32 s{sT1}, s{sWR}, s{sGS}")
    e(f"v_add_lshl_u32 v{vStat}, v22, s{sT1}, 2")
    e(f"s_mul_i32 s{sT2}, s{sTT}, 112")
    e(f"s_add_u32 s{sT1}, s{sT3}, s{sT2}")
    e(f"v_min_u32 v30, {(112 >> RL) - 1}, v{vLane}")
    e(f"v_lshl_add_u32 v30, v30, {RL}, s{sT1}")
    e(f"v_mul_u32_u24 v{vDum+3}, 3584, v30")
    e(f"s_lshl_b32 s{sP64}, s{sP64}, 6")
    srd2(rW1, pW1, W1_BYTES)
    srd2(rW3, pW3, W1_BYTES)
    e(f"s_lshr_b32 s{sT1}, s{sSO[1][0]}, 1")
    e(f"s_lshl_b32 s{sSO[1][0]}, s{sSO[1][0]}, 7")
    e(f"s_add_u32 s{sT1}, s{sT1}, 16")
    e(f"s_lshl_b32 s{sSO[2][0]}, s{sT1}, 7")
    e(f"s_cmp_lt_u32 s{sW}, 4")
    e(f"s_cbranch_scc1 L_x2")
    a.skip_begin(); xloads(0, 14 if opt.get("xrpos") else XE, sXa, sXb); a.skip_end()
    a.label("L_x2")
    if not opt.get("xrpos"): xloads(XE, 14, sXa, sXb)
    if opt.get("w0pos", 0) == 1:
        e(f"s_lshr_b32 s{sP64}, s{sP64}, 6"); wpf0(); e(f"s_lshl_b32 s{sP64}, s{sP64}, 6")
    e(f"s_lshl_b32 s{sStat}, s2, 9")
    e(f"s_add_u32 s{sStat}, s{sStat}, {ST_OFF}")
    e(f"s_mov_b32 s{sOnes}, 0x3f803f80")
    e(f"s_movk_i32 s{sLo}, 0x3f80")
    e(f"s_mov_b32 s{sHi}, 1.0")
    def slot(c):
        if c < 3: return 7 + c
        if c < 10: return c - 3
        if c == 20: return 7
        return slot(c - 9)
    dma_next = [3]
    def dma(c, track=True, part=3):
        r, cc = divmod(c, 7)
        if cc == 0 and part & 1:
            e(f"s_mov_b32 s{sCurA}, s{sSO[r][0]}")
            if r == 0: e(f"s_mov_b32 s{sCurB}, s{sSO[r][1]}")
        va, vb = [(vD0, vD0), (vD1, vD1), (vD1, vD2B)][r]
        sa, sb = (rA, rB) if r == 0 else (rW1, rW3)
        inc = f"s{sP64}" if r == 0 else f"{64*3584}"
        if part & 1:
            e(f"s_add_u32 m0, s{sM0}, {slot(c)*16384}")
            if cc: e(f"s_add_u32 s{sCurA}, s{sCurA}, {inc}")
            e(f"buffer_load_dwordx4 v{va}, {S(sa)}, s{sCurA} offen lds")
        if part & 2:
            e(f"s_add_u32 m0, s{sM0}, {slot(c)*16384+8192}")
            if cc and r == 0: e(f"s_add_u32 s{sCurB}, s{sCurB}, {inc}")
            e(f"buffer_load_dwordx4 v{vb}, {S(sb)}, s{sCurB if r == 0 else sCurA} offen lds")
        if track: a.vm += [f"c{c}", f"c{c}"]
    for q in range(8): e(f"v_mov_b32 v{T0+8+q}, 0")
    e(f"s_cmp_lt_u32 s{sW}, 4")
    e(f"s_cbranch_scc1 L_lnA")
    e(f"s_waitcnt vmcnt(0)")
    def dma4(c):
        dma(c, track=False)
        e(f"s_add_u32 m0, s{sM0}, {slot(c)*16384 - 4096}")
        e(f"buffer_load_dwordx4 v32, {S(rA)}, s{sCurA} offen lds")
        e(f"s_add_u32 m0, s{sM0}, {slot(c)*16384 + 8192 - 4096}")
        e(f"buffer_load_dwordx4 v32, {S(rB)}, s{sCurB} offen lds")
        a.vm += [f"c{c}"] * 4
    C2 = opt.get("c2pos", 1)
    for c in range(3 if C2 == 0 else 2): dma4(c)
    if opt.get("erpos", 0) == 0:
        if ER < 448:
            e(f"buffer_load_dword v{vDum+1}, v33, {S(rA)}, s{sSO[0][0]} offen")
            e(f"buffer_load_dword v{vDum+1}, v33, {S(rB)}, s{sSO[0][1]} offen")
            a.vm += ["pf", "pf"]
    e(f"s_branch L_lnB")
    a.label("L_lnA")
    e(f"s_lshl1_add_u32 s{sCurA}, s{sP64}, s{sSO[0][0]}")
    e(f"s_lshl1_add_u32 s{sCurB}, s{sP64}, s{sSO[0][1]}")
    e(f"s_waitcnt vmcnt({2 if opt.get('w0pos', 0) == 1 else 0})")
    a.label("L_lnB")
    a.reset_hist()
    padat("x0")
    sp.stamp("x0", nowait=True); sp.stamp("x0", lvl=3, nowait=True)
    def wpf():
        for r in (1, 2):
            e(f"buffer_load_dword v{vDum+1}, v{vDum+3}, {S(rW1)}, s{sSO[r][0]} offen{opt.get('pnt', '')}")
            e(f"buffer_load_dword v{vDum+1}, v{vDum+3}, {S(rW3)}, s{sSO[r][0]} offen{opt.get('pnt', '')}")
        if opt.get("w2pf", 3) == 3:
            e(f"s_lshl2_add_u32 s{sT1}, s2, s{sW}")
            e(f"s_mul_i32 s{sT2}, s{sT1}, {13*128}")
            e(f"s_lshl_b32 s{sT1}, s{sT1}, 9")
            e(f"v_min_u32 v{vDum+2}, 12, v{vLane}")
            e(f"v_lshl_add_u32 v{vDum+2}, v{vDum+2}, 7, s{sT2}")
            e(f"v_min_u32 v{vDum+2}, {W2_BYTES-4}, v{vDum+2}")
            e(f"v_min_u32 v{vDum+3}, 3, v{vLane}")
            e(f"v_lshl_add_u32 v{vDum+3}, v{vDum+3}, 7, s{sT1}")
            e(f"v_min_u32 v{vDum+3}, {WO_BYTES-4}, v{vDum+3}")
            e(f"global_load_dword v{vDum+1}, v{vDum+2}, s[{pW2}:{pW2+1}]{opt.get('p2nt', '')}")
            e(f"global_load_dword v{vDum+1}, v{vDum+3}, s[{pWO}:{pWO+1}]")
    AC = T0 + 8
    def reduce2(d0, d1):
        for g in range(2): e(f"v_add_f32 v{AC+4*g}, v{AC+4*g}, v{AC+4*g+1}")
        for g in range(2): e(f"v_add_f32 v{AC+4*g+2}, v{AC+4*g+2}, v{AC+4*g+3}")
        for g, d in enumerate((d0, d1)): e(f"v_add_f32 v{d}, v{AC+4*g}, v{AC+4*g+2}")
        for m in ("quad_perm:[1,0,3,2]", "quad_perm:[2,3,0,1]", "row_half_mirror"):
            for d in (d0, d1): e(f"v_add_f32_dpp v{d}, v{d}, v{d} {m} row_mask:0xf bank_mask:0xf")
    for i in range(28):
        for g in range(2): e(f"v_dot2c_f32_bf16 v{AC+4*g+i%4}, s{sOnes}, v{RAW+g*28+i}")
    reduce2(vAcc[0], vAcc[1])
    for q in range(8): e(f"v_mov_b32 v{AC+q}, 0")
    for g in range(2): e(f"v_mul_f32 v{vAcc[g]}, {hexf(-1.0/448)}, v{vAcc[g]}")
    if C2 == 1:
        e(f"s_cmp_lt_u32 s{sW}, 4")
        e(f"s_cbranch_scc1 L_c2")
        a.skip_begin(); dma4(2)
        a.skip_end()
        a.label("L_c2")
    sp.stamp("pre", lvl=3, nowait=True)
    pend = None
    for gi in range(2):
        for i in range(7):
            r = RAW + gi * 28 + i * 4
            for k in range(4):
                e(f"v_dot2_f32_bf16 v{T0+2*k}, v{r+k}, s{sLo}, v{vAcc[gi]}")
                e(f"v_dot2_f32_bf16 v{T0+2*k+1}, v{r+k}, s{sHi}, v{vAcc[gi]}")
            if pend: pend()
            for k in range(4):
                e(f"v_cvt_pk_bf16_f32 v{r+k}, v{T0+2*k}, v{T0+2*k+1}")
            def pend(r=r, gi=gi, i=i):
                off = i * 16384
                a.ds_op(f"ds_write_b128 v{vXW[off >> 16]}, v[{r}:{r+3}] offset:{off & 0xffff}", "xw")
                if i == 6 and gi == 0:
                    e(f"v_xor_b32 v{vXW[0]}, 128, v{vXW[0]}")
                    e(f"v_xor_b32 v{vXW[1]}, 128, v{vXW[1]}")
    pend()
    if opt.get("wpf", 1) == 3:
        e(f"s_cmp_ge_u32 s{sW}, 4")
        e(f"s_cbranch_scc1 L_wp3")
        a.skip_begin(); wpf(); a.skip_end()
        a.label("L_wp3")
    if C2 == 2:
        e(f"s_cmp_lt_u32 s{sW}, 4")
        e(f"s_cbranch_scc1 L_c2")
        a.skip_begin(); dma4(2); a.skip_end()
        a.label("L_c2")
    sp.stamp("post", lvl=3, nowait=True)
    for i in range(28):
        for g in range(2): e(f"v_dot2c_f32_bf16 v{AC+4*g+i%4}, v{RAW+g*28+i}, v{RAW+g*28+i}")
    e(f"v_mov_b32 v{T0}, {hexf(1e-5)}")
    e(f"v_mov_b32 v{T0+1}, {hexf(1e-5)}")
    e(f"v_xor_b32 v{T0+2}, 32, v{vStat}")
    reduce2(vAcc[0], vAcc[1])
    for g in range(2): e(f"v_fmac_f32 v{T0+g}, {hexf(1.0/448)}, v{vAcc[g]}")
    e(f"s_cmp_ge_u32 s{sW}, 4")
    e(f"s_cbranch_scc1 L_lnD")
    a.skip_begin()
    e(f"s_lshl3_add_u32 s{sT3}, s2, s{sW}")
    e(f"s_cmp_lg_u32 s{sT3}, 0")
    e(f"s_cbranch_scc1 L_noinit")
    e(f"v_lshlrev_b32 v25, 7, v{vLane}")
    e(f"v_mov_b32 v26, 0")
    e(f"s_mov_b32 s3, {CNT_OFF}")
    for q in range(5):
        if q: e(f"s_add_u32 s3, s3, 8192")
        e(f"buffer_store_dword v26, v25, {S(rWS)}, s3 offen sc1")
    a.label("L_noinit")
    if opt.get("touch") == 2: touch()
    if opt.get("wpf", 1) == 1: wpf()
    e(f"s_branch L_lnE")
    a.skip_end()
    a.label("L_lnD")
    sp.stamp("ln", lvl=3, nowait=True)
    a.vm_wait("c1")
    a.label("L_lnE")
    a.ds_wait_all()
    sp.stamp("ln")
    sp.stamp("c1", lvl=3)
    e("s_barrier")
    padat("b1")
    sp.stamp("b1"); sp.stamp("b1", lvl=3)
    def deferred():
        t0, t1, t2 = AB, AB + 1, AB + 2
        G = lambda *ins: (lambda: [e(x) for x in ins], sum(2 if x.startswith("s_") else 4 for x in ins))
        L = []
        L.append(G(f"v_xor_b32 v{vD2B}, 32, v{vD1}", f"v_lshlrev_b32 v{vSt}, 4, v{vLane}", f"s_mov_b32 vcc_lo, -1", f"s_mov_b32 vcc_hi, 0"))
        L.append(G(f"s_lshl2_add_u32 s{sTTG}, s{sRB}, s{sTT}", f"s_lshl_b32 s{sHoff}, s{sG}, 6"))
        L += [G(x) for x in traddr(vTB[1][0], sHoff, t0, t1)]
        L.append(G(f"v_add_u32 v{vTB[1][1]}, 8192, v{vTB[1][0]}"))
        L.append(G(f"s_bfe_u32 s{sHoff}, s{sSO[1][0]}, 0x10007", f"s_lshl_b32 s{sHoff2}, s{sHoff}, 1", f"s_lshl_b32 s{sHoff}, s{sHoff2}, 5",
                   f"v_xor_b32 v{t0}, s{sHoff}, v{vCol}"))
        L.append(G(f"v_xor_b32 v{t0}, v{t0}, v{vSwz}", f"v_and_b32 v{t1}, 16, v{vLane}"))
        L.append(G(f"v_lshl_add_u32 v{t0}, v{t1}, 9, v{t0}", f"v_add_u32 v{vTB[2][0]}, v{t0}, v{vRow}", f"v_xor_b32 v{vTB[2][1]}, 32, v{vTB[2][0]}"))
        L.append(G(f"s_mul_i32 s{sHoff}, s{sTTG}, 112", f"s_add_u32 s{sHoff2}, s{sHoff2}, s{sHoff}", f"s_lshr_b32 s{sQKoff}, s{sSO[2][0]}, 5",
                   f"s_add_u32 s{sHoff2}, s{sHoff2}, s{sQKoff}", f"s_lshl_b32 s{sHoff2}, s{sHoff2}, 10", f"s_add_u32 s{sHoff2}, s{sHoff2}, {H_OFF}"))
        L.append(G(f"s_lshl1_add_u32 s{sHoff}, s{sG}, s{sHoff}", f"s_lshl2_add_u32 s{sQKstep}, s{sCOL}, s{sHoff}", f"s_lshl_b32 s{sQKstep}, s{sQKstep}, 10",
                   f"s_add_u32 s{sQKstep}, s{sQKstep}, {H_OFF + 12*4096}"))
        L.append(G(f"s_lshr_b32 s{sQKoff}, s{sSO[1][0]}, 5", f"s_add_u32 s{sHoff}, s{sHoff}, s{sQKoff}", f"s_lshl_b32 s{sHoff}, s{sHoff}, 10",
                   f"s_add_u32 s{sHoff}, s{sHoff}, {H_OFF}"))
        L.append(G(f"s_lshl1_add_u32 s{sQKoff}, s{sCOL}, s{sG}", f"s_lshl_b32 s{sQKoff}, s{sQKoff}, 7", f"s_add_u32 s{sQKoff}, s{sQKoff}, s{sTTG}",
                   f"s_lshl_b32 s{sQKoff}, s{sQKoff}, 11", f"s_cmp_ge_u32 s{sCOL}, 12",
                   f"s_cselect_b32 s{sQKoff}, s{sQKstep}, s{sQKoff}"))
        L.append(G(f"s_lshr_b32 s{sQKstep}, s{sCOL}, 2", f"s_cmp_eq_u32 s{sQKstep}, 1", f"s_cselect_b32 s{sOnes}, s{sOnes}, 0", f"s_cselect_b32 s{sHi}, s{sLo}, 0",
                   f"s_cmp_eq_u32 s{sQKstep}, 2", f"s_cselect_b32 s{sOnes}, s{sLo}, s{sOnes}"))
        L.append(G(f"v_mov_b32 v{vP6}, s{sOnes}", f"v_mov_b32 v{vP7}, s{sHi}"))
        L.append(G(f"v_lshrrev_b32 v{t2}, 5, v{vLane}", f"v_bfe_u32 v{t0}, v{vLane}, 2, 2", f"v_lshl_add_u32 v{t0}, v{t2}, 2, v{t0}"))
        L.append(G(f"v_lshrrev_b32 v{t1}, 1, v{t0}", f"v_lshlrev_b32 v{t1}, 3, v{t1}", f"v_xor_b32 v{t1}, v{t1}, v{vCol}"))
        L.append(G(f"s_lshl_b32 s{sQKstep}, s{sW}, 11", f"s_add_u32 s{sQKstep}, s{sQKstep}, {SCR}", f"v_lshl_add_u32 v{t0}, v{t0}, 6, v{t1}",
                   f"v_add_u32 v{vV2}, s{sQKstep}, v{t0}"))
        L.append(G(f"v_xor_b32 v{vV3}, 32, v{vV2}", f"v_bfe_u32 v{t0}, v{vLane}, 1, 3", f"v_xor_b32 v{t0}, v{t0}, v{t2}"))
        L.append(G(f"v_and_b32 v{t1}, 31, v{vLane}", f"v_lshlrev_b32 v{t1}, 6, v{t1}", f"v_lshl_add_u32 v{t0}, v{t0}, 3, v{t1}"))
        L.append(G(f"v_add_u32 v{vV1}, s{sQKstep}, v{t0}"))
        return L
    def hdiag(k):
        if not opt.get("hdiag"): return
        if k == 0: return
        e("s_cmp_ge_u32 s2, 7")
        e("s_cbranch_scc1 L_end")
        e(f"s_cmp_lg_u32 s{sW}, 4")
        e("s_cbranch_scc1 L_end")
        e("s_memrealtime s[80:81]"); e("s_memtime s[82:83]")
        e("s_waitcnt vmcnt(0) lgkmcnt(0)")
        e("s_mov_b64 exec, 1")
        e("s_lshl_b32 s3, s2, 3")
        e("v_mov_b32 v0, s3")
        e("s_sub_u32 s84, s82, s78")
        e("s_sub_u32 s80, s80, s76")
        e("s_and_b32 s76, s76, 0xffff")
        e("s_lshl_b32 s80, s80, 16")
        e("s_or_b32 s76, s76, s80")
        e("v_mov_b32 v2, s76"); e("v_mov_b32 v3, s84")
        e(f"global_store_dword v0, v2, s[{pDBG}:{pDBG+1}] offset:4")
        e(f"global_store_dword v0, v3, s[{pDBG}:{pDBG+1}] offset:8")
    def check_flag(vtmp):
        done = lab("fl")
        e(f"v_readfirstlane_b32 s{sT1}, v{vFlag}")
        e(f"s_cmp_lg_u32 s{sT1}, 0")
        e(f"s_cbranch_scc1 {done}")
        e(f"s_mov_b32 s{sT2}, 0x40000")
        lp = lab("fs"); a.label(lp)
        e(f"v_mov_b32 v{vtmp}, 0")
        e(f"global_load_dword v{vFlag}, v{vtmp}, s[{pDBG}:{pDBG+1}] sc1")
        e(f"s_waitcnt vmcnt(0)")
        e(f"v_readfirstlane_b32 s{sT1}, v{vFlag}")
        e(f"s_sub_u32 s{sT2}, s{sT2}, 1")
        e(f"s_cselect_b32 s{sT1}, 1, s{sT1}")
        e(f"s_cmp_eq_u32 s{sT1}, 0")
        e(f"s_cbranch_scc1 {lp}")
        a.label(done)
    def signal(sIdx, add, va, vb):
        e(f"s_add_u32 s{sT1}, s{sIdx}, {add}")
        e(f"s_lshl_b32 s{sT1}, s{sT1}, 7")
        e(f"s_add_u32 s{sT1}, s{sT1}, {CNT_OFF}")
        e(f"v_mov_b32 v{va}, 0")
        e(f"v_mov_b32 v{vb}, 1")
        e(f"s_mov_b64 exec, 1")
        e(f"buffer_atomic_add v{vb}, v{va}, {S(rWS)}, s{sT1} offen sc1")
        e(f"s_mov_b64 exec, -1")
    def poll(vaddr, vval, target, sleep):
        lp = lab("po"); done = lab("pd")
        e(f"s_mov_b32 s{sT2}, 0x40000")
        e(f"s_mov_b32 s{sT3}, {CNT_OFF}")
        a.label(lp)
        e(f"buffer_load_dword v{vval}, v{vaddr}, {S(rWS)}, s{sT3} offen sc1")
        e(f"s_waitcnt vmcnt(0)")
        e(f"v_cmp_gt_u32 s[74:75], {target}, v{vval}")
        e(f"s_cmp_eq_u64 s[74:75], 0")
        e(f"s_cbranch_scc1 {done}")
        e(f"s_sleep {sleep}")
        e(f"s_sub_u32 s{sT2}, s{sT2}, 1")
        e(f"s_cbranch_scc0 {lp}")
        a.label(done)
        a.vm = []
    def lds_arrive(k, va, vb, rtn=False):
        e(f"v_mov_b32 v{va}, {SYNC + 4*k}")
        e(f"v_mov_b32 v{vb}, 1")
        e(f"s_mov_b64 exec, 1")
        e(f"ds_add_rtn_u32 v{vb}, v{va}, v{vb}" if rtn else f"ds_add_u32 v{va}, v{vb}")
        e(f"s_mov_b64 exec, -1")
    def lds_sync(k, n, va, vb, meanwhile=None):
        a.ds_wait_all()
        lds_arrive(k, va, vb)
        if meanwhile:
            e("s_nop 3"); meanwhile()
        lp = lab("ls")
        e(f"s_mov_b32 s{sT2}, 0x400000")
        a.label(lp)
        e(f"ds_read_b32 v{vb}, v{va}")
        e(f"s_waitcnt lgkmcnt(0)")
        e(f"v_readfirstlane_b32 s{sT1}, v{vb}")
        e(f"s_sub_u32 s{sT2}, s{sT2}, 1")
        e(f"s_cselect_b32 s{sT1}, {n}, s{sT1}")
        e(f"s_cmp_lt_u32 s{sT1}, {n}")
        e(f"s_cbranch_scc1 {lp}")
    def lds_spin(k, n, va, vb, sleep):
        lp = lab("ls"); ok = lab("lk")
        e(f"v_mov_b32 v{va}, {SYNC + 4*k}")
        e(f"s_mov_b32 s{sT2}, 0x100000")
        a.label(lp)
        e(f"ds_read_b32 v{vb}, v{va}")
        e(f"s_waitcnt lgkmcnt(0)")
        e(f"v_readfirstlane_b32 s{sT1}, v{vb}")
        e(f"s_cmp_ge_u32 s{sT1}, {n}")
        e(f"s_cbranch_scc1 {ok}")
        e(f"s_sleep {sleep}")
        e(f"s_sub_u32 s{sT2}, s{sT2}, 1")
        e(f"s_cbranch_scc0 {lp}")
        a.label(ok)
    def lds_check(k, n, va, vb):
        lp = lab("lc"); ok = lab("ld")
        e(f"s_mov_b32 s{sT2}, 0x400000")
        a.label(lp)
        e(f"s_waitcnt lgkmcnt(0)"); a.lg = []
        e(f"v_readfirstlane_b32 s{sT1}, v{vb}")
        e(f"s_cmp_ge_u32 s{sT1}, {n}")
        e(f"s_cbranch_scc1 {ok}")
        a.skip_begin()
        e(f"ds_read_b32 v{vb}, v{va}")
        e(f"s_sub_u32 s{sT2}, s{sT2}, 1")
        e(f"s_cbranch_scc0 {lp}")
        a.skip_end()
        a.label(ok)
    def lds_wait(k, n, va, vb, meanwhile):
        lp = lab("lw"); ok = lab("lo")
        e(f"v_mov_b32 v{va}, {SYNC + 4*k}")
        e(f"ds_read_b32 v{vb}, v{va}")
        meanwhile()
        e(f"s_mov_b32 s{sT2}, 0x400000")
        a.label(lp)
        e(f"s_waitcnt lgkmcnt(0)")
        e(f"v_readfirstlane_b32 s{sT1}, v{vb}")
        e(f"s_cmp_ge_u32 s{sT1}, {n}")
        e(f"s_cbranch_scc1 {ok}")
        e(f"ds_read_b32 v{vb}, v{va}")
        e(f"s_sub_u32 s{sT2}, s{sT2}, 1")
        e(f"s_cbranch_scc0 {lp}")
        a.label(ok)
    def last_signals(k, n, sIdx, add, va, vb):
        lds_arrive(k, va, vb, rtn=True)
        e(f"s_waitcnt lgkmcnt(0)"); a.lg = []
        e(f"v_readfirstlane_b32 s{sT1}, v{vb}")
        sk = lab("ns")
        e(f"s_cmp_lg_u32 s{sT1}, {n-1}")
        e(f"s_cbranch_scc1 {sk}")
        a.skip_begin()
        signal(sIdx, add, va, vb)
        a.skip_end()
        a.label(sk)
    NT = [2, 2, 2]
    ACC = [AA, AB, AA]
    tw_state = [None, None]
    def wreads(G):
        r, s = divmod(G, 28)
        base = slot(G // 4) * 16384 + (s % 4) * 2048
        hi, lo = base >> 16, base & 0xffff
        L = []
        for t in range(NT[r]):
            d = WF + (G % 3) * 8 + t * 4
            def f0(t=t, d=d):
                if tw_state[t] != (r, hi):
                    e(f"v_add_u32 v{vTW[t]}, {hex(hi << 16)}, v{vTB[r][t]}")
                    tw_state[t] = (r, hi)
                a.ds_op(f"ds_read_b64_tr_b16 v[{d}:{d+1}], v{vTW[t]} offset:{lo}", f"w{G}")
            def f1(t=t, d=d):
                a.ds_op(f"ds_read_b64_tr_b16 v[{d+2}:{d+3}], v{vTW[t]} offset:{lo+512}", f"w{G}")
            L += [f0, f1]
        return L
    xr_next = [0]
    def xread(n):
        for _ in range(n):
            s = xr_next[0]
            if s >= 28: return
            xr_next[0] += 1
            if s == 16:
                for q in range(4): e(f"v_add_u32 v{vXR[q]}, 0x10000, v{vXR[q]}")
            off = ((s // 4) * 16384) & 0xffff
            a.ds_op(f"ds_read_b128 v[{X0+4*s}:{X0+4*s+3}], v{vXR[s%4]} offset:{off}", f"x{s}")
    BARS = opt.get("bars", [0, 1, 2, 3, 5, 7, 9, 11, 13, 15])
    PQ = opt.get("pq", 11)
    PZ = opt.get("pz", 13)
    L2P = {int(k): v for k, v in opt.get("l2p", {}).items()}
    VEND = PQ
    window = []; pending = []
    def period_barrier(i):
        for c in window: a.vm.extend([f"c{c}", f"c{c}"])
        assert not pending, pending
        window.clear()
        nxt = min([b for b in BARS if b > i] + [20])
        if nxt <= 2 and f"c{nxt}" in a.vm:
            sk = lab("nb")
            e(f"s_cmp_lt_u32 s{sW}, 4")
            e(f"s_cbranch_scc1 {sk}")
            a.skip_begin(); a.vm_wait(f"c{nxt}"); a.skip_end()
            a.label(sk)
        a.vm_wait(f"c{nxt}")
        assert dma_next[0] > nxt, (i, nxt, dma_next[0])
        if i == 3: a.vm_wait("stat")
        if i == PQ: a.vm_wait("st"); a.vm_wait("fl")
        if i in opt.get("sb", []): sp.stamp("pre", lvl=2, nowait=True)
        if i not in opt.get("x_nb", []): e("s_barrier")
        if i in opt.get("sb", []): sp.stamp("post", lvl=2, nowait=True)
        if i == 3:
            e(f"v_and_b32 v{vK}, 31, v{vLane}")
            e(f"v_lshlrev_b32 v{vK}, 2, v{vK}")
            e(f"s_lshl_b32 s{sT1}, s{sTT}, 7")
            e(f"s_add_u32 s{sT1}, s{sT1}, s{sStat}")
            a.vm_op(f"buffer_load_dword v{vK}, v{vK}, {S(rWS)}, s{sT1} offen sc1", "kld")
        if i == 3:
            e(f"s_lshl3_add_u32 s{sT1}, s2, s{sW}")
            e(f"s_cmp_lg_u32 s{sT1}, 0")
            e(f"s_cbranch_scc1 L_nofl")
            a.skip_begin()
            e(f"v_mov_b32 v{vDum+2}, 0")
            e(f"v_mov_b32 v{vDum+3}, 1")
            e(f"global_store_dword v{vDum+2}, v{vDum+3}, s[{pDBG}:{pDBG+1}] sc1")
            a.skip_end()
            a.label("L_nofl")
        if i == 7:
            e(f"v_mov_b32 v{vFlag}, 0")
            a.vm_op(f"global_load_dword v{vFlag}, v{vFlag}, s[{pDBG}:{pDBG+1}] sc1", "fl")
        if i in L2P:
            for k in L2P[i]:
                sk = lab("pf")
                e(f"s_cmp_lg_u32 s{sW}, {k}")
                e(f"s_cbranch_scc1 {sk}")
                a.skip_begin()
                e(f"s_lshr_b32 s{sT1}, s2, 3")
                nl, ptr, nb = (56, pW2, W2_BYTES) if k < 7 else (98, pWO, WO_BYTES)
                if k < 7:
                    e(f"s_mul_i32 s{sT1}, s{sT1}, {7*56*128}")
                    e(f"s_add_u32 s{sT1}, s{sT1}, {k*56*128}")
                else:
                    e(f"s_mul_i32 s{sT1}, s{sT1}, {98*128}")
                e(f"v_min_u32 v{vDum+2}, {min(nl, 64) - 1 if k < 7 else 48}, v{vLane}")
                e(f"v_lshl_add_u32 v{vDum+2}, v{vDum+2}, 7, s{sT1}")
                e(f"global_load_dword v{vDum+1}, v{vDum+2}, s[{ptr}:{ptr+1}]")
                if k == 7:
                    e(f"v_add_u32 v{vDum+2}, {49*128}, v{vDum+2}")
                    e(f"global_load_dword v{vDum+1}, v{vDum+2}, s[{ptr}:{ptr+1}]")
                a.skip_end()
                a.label(sk)
        if i == PZ:
            e(f"v_lshrrev_b32 v{vDum+2}, 2, v{vSt}")
            e(f"v_add_u32 v{vDum+2}, {SYNC}, v{vDum+2}")
            e(f"v_mov_b32 v{vDum+3}, 0")
            a.ds_op(f"ds_write_b32 v{vDum+2}, v{vDum+3}", "z")
        if i == PQ and sigq[0]:
            sk = lab("q")
            e(f"s_cmp_lg_u32 s{sW}, 0")
            e(f"s_cbranch_scc1 {sk}")
            a.skip_begin()
            check_flag(vDum + 2)
            signal(sCOL, 0, vDum + 2, vDum + 3)
            a.skip_end()
            a.label(sk)
        while dma_next[0] <= 20:
            c = dma_next[0]
            if c < 10:
                sl = slot(c)
                if not all(xr_next[0] > s and a.ds_done(f"x{s}") for s in range(4*sl, 4*sl+4)): break
            elif c == 20:
                if i < 13: break
            elif c - 9 > i - 1: break
            if c > opt.get("cmax", {"3": 9, "5": 12, "7": 13, "9": 16, "11": 19}).get(str(i), 99): break
            window.append(c); dma_next[0] += 1
        nq = nxt - i if i < 13 else 1
        per = -(-len(window) // nq)
        pending[:] = [window[k*per:(k+1)*per] for k in range(nq)]
    sigq = [False]
    XR = opt.get("xrate", 2)
    def kloop(r, extra, budget, hooks={}):
        extra = list(extra)
        if opt.get("x_noepi"): extra = [x for x in extra if x[1] == 0]
        gap = 0
        for s in range(28):
            G = r * 28 + s
            Gn = G + 2
            rd = wreads(Gn) if Gn < 84 else []
            a.ds_wait(f"w{G}")
            if r == 0: a.ds_wait(f"x{s}")
            ph = Gn % 4
            for t in range(NT[r]):
                d = ACC[r] + 16 * t
                w = WF + (G % 3) * 8 + t * 4
                c = "0" if s == 0 else f"v[{d}:{d+15}]"
                e(f"v_mfma_f32_32x32x16_bf16 v[{d}:{d+15}], v[{w}:{w+3}], v[{X0+4*s}:{X0+4*s+3}], {c}")
                gap += 1
                if t == 0 and Gn < 84 and ph == 0 and (Gn // 4 - 1) in BARS: period_barrier(Gn // 4 - 1)
                n = -(-len(rd) // (NT[r] - t))
                for f in rd[:n]: f()
                rd = rd[n:]
                if r == 0: xread((XR + 1 - t) // 2)
                left = budget
                DS = opt.get("dsplit", 1) and pending and len(pending[0]) == 1 and not (Gn // 4 - 1 == 13)
                if DS and t == NT[r] - 1:
                    sk = lab("d")
                    e(f"s_cmp_lg_u32 s{sPh}, {ph & 2}")
                    e(f"s_cbranch_scc1 {sk}")
                    a.skip_begin()
                    dma(pending[0][0], track=False, part=1 + (ph & 1))
                    a.skip_end()
                    a.label(sk)
                    left = opt.get("dmabud2", 8)
                elif t == NT[r] - 1 and pending and pending[0] and ph % 2 == 0:
                    sk = lab("d")
                    e(f"s_cmp_lg_u32 s{sPh}, {ph}")
                    e(f"s_cbranch_scc1 {sk}")
                    a.skip_begin()
                    for c in pending[0]: dma(c, track=False)
                    a.skip_end()
                    a.label(sk)
                    left = opt.get("dmabud", 4)
                if t == NT[r] - 1 and s in hooks: hooks[s](); left = 0
                while extra and gap > 3 and extra[0][1] <= left:
                    f, cst = extra.pop(0); f(); left -= cst
            if ph == 3 and pending: pending.pop(0)
        return extra
    def I(t):
        op = t.split()[0]
        return (lambda: e(t), 8 if op.startswith(TRANS) else (2 if op.startswith("s_") else 4))
    def consts():
        def sel():
            e(f"s_cmp_lt_u32 s{sCOL}, 4")
            e(f"s_cselect_b32 s{sT1}, {hexf(28**-0.5*LOG2E)}, 1.0")
            e(f"v_mul_f32 v{vSc}, s{sT1}, v{vSc}")
        return [(lambda: a.vm_wait("kld"), 0), I(f"v_rsq_f32 v{vSc}, v{vK}"),
                I(f"v_mul_f32 v{vC1}, {hexf(-LOG2E)}, v{vSc}"), (sel, 8)]
    def silu4(Gt, U, t, p):
        L = []
        for k in range(4): L.append(I(f"v_mul_f32 v{t+k}, v{vC1}, v{Gt+k}"))
        for k in range(4):
            L.append(I(f"v_exp_f32 v{t+k}, v{t+k}"))
            L.append(I(f"v_mul_f32 v{Gt+k}, v{Gt+k}, v{U+k}"))
        for k in range(4): L.append(I(f"v_fma_f32 v{t+k}, v{t+k}, v{vK}, v{vK}"))
        for k in range(4): L.append(I(f"v_rcp_f32 v{t+k}, v{t+k}"))
        for k in range(4): L.append(I(f"v_mul_f32 v{Gt+k}, v{Gt+k}, v{t+k}"))
        for k in range(2): L.append(I(f"v_cvt_pk_bf16_f32 v{p+k}, v{Gt+2*k}, v{Gt+2*k+1}"))
        return L
    def store(r, soff, off):
        if opt.get("x_nost"): return (lambda: None, 8)
        return (lambda: a.vm_op(f"buffer_store_dwordx4 v[{r}:{r+3}], v{vSt}, {S(rWS)}, s{soff} offen offset:{off}{ST}", "st"), 8)
    def epiF(acc, soff):
        Gt, U = acc, acc + 16
        L = []
        for q in range(4):
            L += silu4(Gt + 4*q, U + 4*q, T0 + (q % 2) * 4, U + (q // 2) * 8 + (q % 2) * 2)
            if q % 2 == 1: L.append(store(U + (q // 2) * 8, soff, (q // 2) * 1024))
        return L
    def epiQKV(acc, isv):
        L = []
        P = T0 + 8
        for q in range(4):
            for k in range(4): L.append(I(f"v_mul_f32 v{acc+4*q+k}, v{vSc}, v{acc+4*q+k}"))
            for k in range(2): L.append(I(f"v_cvt_pk_bf16_f32 v{P+2*q+k}, v{acc+4*q+2*k}, v{acc+4*q+2*k+1}"))
            if q == 1 and not isv: L.append(store(P, sQKoff, 0))
        L.append(I(f"v_cndmask_b32 v{P+6}, v{vP6}, v{P+6}, vcc"))
        L.append(I(f"v_cndmask_b32 v{P+7}, v{vP7}, v{P+7}, vcc"))
        if not isv: L.append(store(P + 4, sQKoff, 1024))
        else:
            for q in range(4):
                if q: L.append(I(f"v_xor_b32 v{vV4}, {16*q}, v{vV1}"))
                L.append((lambda q=q: a.ds_op(f"ds_write_b64 v{vV4 if q else vV1}, v[{P+2*q}:{P+2*q+1}]", "vw"), 4))
            L += [(lambda: None, 8)] * 2
            L.append((lambda: a.ds_wait("vw"), 0))
            for q in range(4):
                L.append((lambda q=q: a.ds_op(f"ds_read_b64_tr_b16 v[{acc+2*q}:{acc+2*q+1}], v{vV3 if q % 2 else vV2} offset:{512*q}", "vr"), 4))
            L += [(lambda: None, 8)] * 2
            L.append((lambda: a.ds_wait("vr"), 0))
            L.append(store(acc, sQKoff, 0))
            L.append(store(acc + 4, sQKoff, 1024))
        L.append(I(f"s_add_u32 s{sQKoff}, s{sQKoff}, {64*2048}"))
        return L
    B1, B2 = opt.get("b1", 4), opt.get("b2", 12)
    if opt.get("yprio"):
        e(f"s_cmp_lt_u32 s{sW}, 4")
        e(f"s_cbranch_scc1 L_yp")
        e(f"s_setprio 1")
        a.label("L_yp")
    xread(4)
    for f in wreads(0) + wreads(1): f()
    if opt.get("wpf", 1) == 2:
        e(f"s_cmp_ge_u32 s{sW}, 4")
        e(f"s_cbranch_scc1 L_wp")
        a.skip_begin(); wpf(); a.skip_end()
        a.label("L_wp")
    a.vm_op(f"buffer_store_dword v{T0}, v{vStat}, {S(rWS)}, s{sStat} offen", "stat")
    a.vm_op(f"buffer_store_dword v{T0+1}, v{T0+2}, {S(rWS)}, s{sStat} offen", "stat")
    assert not kloop(0, deferred(), 16)
    padat("r0")
    sp.stamp("r0")
    e(f"s_cmp_lt_u32 s{sCOL}, 8")
    e(f"s_cbranch_scc1 L_pqk")
    e(f"s_cmp_lt_u32 s{sCOL}, 12")
    e(f"s_cbranch_scc1 L_pv")
    saved = (list(a.vm), list(a.lg), list(tw_state), dma_next[0], list(a.hist), list(window), [list(p) for p in pending], sp.n)
    ends = []
    for nm, ex in (("f", lambda: epiF(AA, sQKoff)), ("L_pqk", lambda: epiQKV(AA, False) + epiQKV(AA + 16, False)),
                   ("L_pv", lambda: epiQKV(AA, True) + epiQKV(AA + 16, True))):
        if nm != "f": a.label(nm)
        a.vm, a.lg = list(saved[0]), list(saved[1]); tw_state[:] = saved[2]; dma_next[0] = saved[3]; a.hist = list(saved[4])
        window[:] = saved[5]; pending[:] = [list(p) for p in saved[6]]; sp.set(saved[7])
        sigq[0] = nm != "f"
        nst0 = [0]
        exl = consts() + ex()
        if nm != "f":
            exl.append((lambda: nst0.__setitem__(0, 1), 0))
            _pb = period_barrier
        rest = kloop(1, exl, {"f": B1, "L_pqk": opt.get("b1q", 32), "L_pv": opt.get("b1v", 32)}[nm], hooks={(VEND + 1) * 4 - 2 - 28 - 1: (lambda: None) if nm == "f" else (lambda: (_ for _ in ()).throw(AssertionError("qkv epilogue too late")) if not nst0[0] else None)})
        for f, c in rest: f()
        ends.append(([t for t in a.vm if t != "st"], list(a.lg), list(tw_state), dma_next[0], list(window), [list(p) for p in pending]))
        if nm != "L_pv": e("s_branch L_r2")
    assert ends[0][1:] == ends[1][1:] == ends[2][1:], ends
    a.vm = min((x[0] for x in ends), key=len)
    assert all(x[0][len(x[0])-len(a.vm):] == a.vm for x in ends)
    a.label("L_r2")
    e("s_nop 1")
    padat("r1")
    sp.stamp("r1"); sp.stamp("r1", lvl=5, nowait=True)
    K0, Q, KV, O, Sx, P, T = 16, 24, 56, 128, 192, 224, 240
    ATT_LDS, WO_LDS = 49152, 98304
    sX, sJ = 54, 55
    sHead, sQB, sKV, sRun = 62, 63, 64, 58
    sWq, sTB, sCB, sWo, sLB = 62, 63, 64, 58, 66
    vD, vPoll, vStV = vD0, vDum + 4, vD0
    rW = rA
    rK, rV = rA, rB
    NE = 3
    QX = 147456
    def kvload(i):
        for k in range(4):
            r = KV + 16 * i + 4 * k
            a.vm_op(f"buffer_load_dwordx4 v[{r}:{r+3}], v{vSt}, {S(rK if k < 2 else rV)}, s{sRun} offen offset:{1024*(k%2)}{LD}", f"kv{i}")
        e(f"s_add_u32 s{sRun}, s{sRun}, 2048")
        e(f"s_and_b32 s{sRun}, s{sRun}, 0x1ffff")
    e(f"s_and_b32 s{sX}, s2, 7")
    e(f"s_lshr_b32 s{sJ}, s2, 3")
    check_flag(vDum + 2)
    e(f"s_cmp_lt_u32 s{sW}, 4")
    e(f"s_cbranch_scc1 L_att")
    join = (list(a.vm), list(a.lg), list(a.hist), list(window), sp.n)
    e(f"s_setprio {opt.get('r2prio', 2)}")
    rest = kloop(2, epiF(AB, sHoff), B2)
    sp.stamp("r2")
    for f, c in rest: f()
    for t in range(2):
        for q in range(2):
            for f, c in silu4(AA + 16*t + 4*q, AA + 16*t + 8 + 4*q, T0 + 4*q, T0 + 8 + 4*t + 2*q): f()
        store(T0 + 8 + 4*t, sHoff2, 1024*t)[0]()
    e(f"s_branch L_gemm")
    nst = sp.n
    a.label("L_att")
    a.vm, a.lg, a.hist = list(join[0]), list(join[1]), list(join[2]); sp.set(join[4])
    for c in join[3]: a.vm.extend([f"c{c}", f"c{c}"])
    e(f"s_setprio {opt.get('attprio0', 3)}")
    e(f"s_and_b32 s{sT1}, s{sJ}, 1")
    e(f"s_lshl1_add_u32 s{sHead}, s{sX}, s{sT1}")
    e(f"v_min_u32 v{vPoll}, 2, v{vLane}")
    e(f"v_lshlrev_b32 v{vPoll}, 9, v{vPoll}")
    e(f"s_lshr_b32 s{sT1}, s{sHead}, 2")
    e(f"v_lshl_add_u32 v{vPoll}, s{sT1}, 7, v{vPoll}")
    e(f"s_mov_b32 s{sT3}, {CNT_OFF}")
    a.vm_op(f"buffer_load_dword v{vDum+3}, v{vPoll}, {S(rWS)}, s{sT3} offen sc1", "poll")
    def qload():
        e(f"s_lshl_b32 s{sT1}, s{sHead}, 6")
        e(f"s_lshl2_add_u32 s{sT1}, s{sQB}, s{sT1}")
        e(f"s_add_u32 s{sT1}, s{sT1}, s{sW}")
        e(f"s_lshl_b32 s{sT1}, s{sT1}, 11")
        a.vm_op(f"buffer_load_dwordx4 v[{Q}:{Q+3}], v{vSt}, {S(rWS)}, s{sT1} offen{LD}", "q")
        a.vm_op(f"buffer_load_dwordx4 v[{Q+4}:{Q+7}], v{vSt}, {S(rWS)}, s{sT1} offen offset:1024{LD}", "q")
        kvload(0)
    e(f"s_lshr_b32 s{sQB}, s{sJ}, 1")
    e(f"s_lshl_b32 s{sKV}, s{sHead}, 17")
    e(f"s_add_u32 s{sKV}, s{sKV}, {KV_OFF}")
    e(f"s_and_b32 s{sT1}, s{sQB}, {opt.get('rot', 0)}")
    e(f"s_lshl_b32 s{sT1}, s{sT1}, {opt.get('rotsh', 0)}")
    e(f"s_lshl3_add_u32 s{sT1}, s{sW}, s{sT1}")
    e(f"s_lshl1_add_u32 s{sT1}, s{sT1}, 1")
    e(f"s_lshl_b32 s{sRun}, s{sT1}, 11")
    e(f"s_add_u32 s{rK}, s{pWS}, s{sKV}")
    e(f"s_addc_u32 s{rK+1}, s{pWS+1}, 0")
    e(f"s_mov_b32 s{rK+2}, 0x20000")
    e(f"s_mov_b32 s{rK+3}, 0x20000")
    e(f"s_add_u32 s{rV}, s{rK}, {2 << 20}")
    e(f"s_addc_u32 s{rV+1}, s{rK+1}, 0")
    e(f"s_mov_b32 s{rV+2}, 0x20000")
    e(f"s_mov_b32 s{rV+3}, 0x20000")
    ep = epiF(AB, sHoff)
    n1 = opt.get("ep1", 26)
    a.ds_wait_all()
    for f, c in ep[:n1]: f()
    sp.stamp("ep", lvl=5, nowait=True)
    a.vm_wait("poll")
    sp.stamp("pl", lvl=5, nowait=True)
    e(f"v_cmp_gt_u32 s[74:75], 16, v{vDum+3}")
    e(f"s_cmp_eq_u64 s[74:75], 0")
    e(f"s_cbranch_scc1 L_e2ok")
    sv = (list(a.vm), list(a.hist))
    for f, c in ep[n1:]: f()
    e("s_barrier")
    poll(vPoll, vDum + 3, 16, 1)
    qload(); e("s_waitcnt vmcnt(0)"); e(f"s_branch L_e2j")
    a.label("L_e2ok")
    a.vm, a.hist = sv
    sp.stamp("r2"); sp.stamp("ok", lvl=5, nowait=True)
    qload()
    for f, c in ep[n1:]: f()
    sp.stamp("ep2", lvl=5, nowait=True)
    e("s_barrier")
    a.label("L_e2j")
    kvload(1); kvload(2)
    sFlag, sIt, sOoff = 59, 60, 61
    e(f"s_mov_b32 s{sFlag}, 0")
    e(f"s_lshl2_add_u32 s{sOoff}, s{sQB}, s{sW}")
    e(f"s_lshl4_add_u32 s{sOoff}, s{sOoff}, s{sHead}")
    e(f"s_lshl_b32 s{sOoff}, s{sOoff}, 11")
    e(f"s_add_u32 s{sOoff}, s{sOoff}, {O_OFF}")
    for jj in range(4):
        e(f"s_add_u32 s{sT1}, s{sW}, {jj}")
        e(f"s_and_b32 s{sT1}, s{sT1}, 3")
        e(f"s_lshl_b32 s{sT1}, s{sT1}, 11")
        e(f"s_add_u32 s{sT1}, s{sT1}, {QX}")
        e(f"v_add_u32 v{T+2+jj}, s{sT1}, v{vSt}")
    zl = [] if opt.get("full", 0) else [O + r for r in range(64)] + [P + 8 + r for r in range(8)] + [KV + 56 + r for r in range(8)]
    def zero(n):
        for _ in range(n):
            if zl: e(f"v_mov_b32 v{zl.pop(0)}, 0")
    sp.stamp("pre", lvl=5, nowait=True)
    a.vm_wait("kv0")
    sp.stamp("kv0", lvl=5, nowait=True)
    e(f"v_mfma_f32_32x32x16_bf16 v[{Sx}:{Sx+15}], v[{KV}:{KV+3}], v[{Q}:{Q+3}], 0")
    e(f"v_mfma_f32_32x32x16_bf16 v[{Sx}:{Sx+15}], v[{KV+4}:{KV+7}], v[{Q+4}:{Q+7}], v[{Sx}:{Sx+15}]")
    zero(14)
    sp.stamp("qkv")
    jmap = lambda n: (n + 1) % 4 if n >= 60 else n % 4
    def qk(n, half):
        i, j = (n // 4) % 4, jmap(n)
        d = Sx + 16 * (n % 2); k = KV + 16 * i + 4 * half; q = Q + 8 * j + 4 * half
        c = "0" if half == 0 else f"v[{d}:{d+15}]"
        e(f"v_mfma_f32_32x32x16_bf16 v[{d}:{d+15}], v[{k}:{k+3}], v[{q}:{q+3}], {c}")
    def pv(n, half):
        i, j = (n // 4) % 4, jmap(n)
        d = O + 16 * j; v = KV + 16 * i + 8 + 4 * half; p = P + 8 * (n % 2) + 4 * half
        e(f"v_mfma_f32_32x32x16_bf16 v[{d}:{d+15}], v[{v}:{v+3}], v[{p}:{p+3}], v[{d}:{d+15}]")
    def sm(n, g):
        s = Sx + 16 * (n % 2) + 4 * g; p = P + 8 * (n % 2) + 2 * g
        for k in range(4): e(f"v_exp_f32 v{s+k}, v{s+k}")
        e(f"v_cvt_pk_bf16_f32 v{p}, v{s}, v{s+1}")
        e(f"v_cvt_pk_bf16_f32 v{p+1}, v{s+2}, v{s+3}")
    M = T + 8
    def patch(jjs, bias):
        U = M + 4
        for jj in jjs: e(f"v_mov_b32 v{U+jj}, v{M+jj}")
        for jj in jjs: e(f"v_permlane32_swap_b32 v{M+jj}, v{U+jj}")
        for jj in jjs: e(f"v_max_f32 v{M+jj}, v{M+jj}, v{U+jj}")
        for jj in jjs: e(f"v_sub_f32 v{M+jj}, {hexf(-bias) if bias else 0}, v{M+jj}")
        for jj in jjs: e(f"v_cvt_pk_bf16_f32 v{U+jj}, v{M+jj}, v{M+jj}")
        for jj in jjs: e(f"v_and_b32 v{U+jj}, 0xffff0000, v{U+jj}")
        for jj in jjs: e(f"v_sub_f32 v{U+jj}, v{M+jj}, v{U+jj}")
        for jj in jjs: e(f"v_cvt_pk_bf16_f32 v{M+jj}, v{M+jj}, v{U+jj}")
        for jj in jjs: e(f"v_cndmask_b32 v{Q+8*jj+6}, v{M+jj}, v{Q+8*jj+6}, vcc")
        for jj in jjs: e(f"v_and_b32 v{M+jj}, 0xffff0000, v{M+jj}")
        for jj in jjs: e(f"v_sub_f32 v{U+jj}, v{U+jj}, v{M+jj}")
        for jj in jjs: e(f"v_cvt_pk_bf16_f32 v{U+jj}, v{U+jj}, 0")
        for jj in jjs: e(f"v_cndmask_b32 v{Q+8*jj+7}, v{U+jj}, v{Q+8*jj+7}, vcc")
    for k in range(4): e(f"v_max3_f32 v{M+4+k}, v{Sx+4*k}, v{Sx+4*k+1}, v{Sx+4*k+2}")
    for k in range(2): e(f"v_max3_f32 v{M+4+2*k}, v{M+4+2*k}, v{M+5+2*k}, v{Sx+8*k+3}")
    e(f"v_max3_f32 v{M}, v{Sx+7}, v{Sx+15}, v{M+4}")
    e(f"v_max_f32 v{M}, v{M}, v{M+6}")
    patch([0], BIAS)
    a.ds_op(f"ds_write_b128 v{T+2}, v[{Q}:{Q+3}]")
    a.ds_op(f"ds_write_b128 v{T+2}, v[{Q+4}:{Q+7}] offset:1024")
    zero(16)
    lds_sync(1, 4, T, T + 1, lambda: (qk(0, 0), qk(0, 1), zero(24)))
    for jj in range(1, 4):
        a.ds_op(f"ds_read_b128 v[{Q+8*jj}:{Q+8*jj+3}], v{T+2+jj}")
        a.ds_op(f"ds_read_b128 v[{Q+8*jj+4}:{Q+8*jj+7}], v{T+2+jj} offset:1024")
    zero(99)
    e("s_waitcnt vmcnt(8)")
    last_signals(0, 8, sRB, 12, T, T + 1)
    lds_arrive(2, T, T + 1)
    e(f"s_setprio {opt.get('attprio', 1)}")
    a.vm = []
    padat("preloop")
    sp.stamp("preloop"); sp.stamp("preloop", lvl=5)
    def pv0(n, half):
        i, j = (n // 4) % 4, jmap(n)
        d = O + 16 * j; v = KV + 16 * i + 8 + 4 * half; p = P + 8 * (n % 2) + 4 * half
        c = "0" if (n < 4 and half == 0) else f"v[{d}:{d+15}]"
        e(f"v_mfma_f32_32x32x16_bf16 v[{d}:{d+15}], v[{v}:{v+3}], v[{p}:{p+3}], {c}")
    def owrite(jj):
        for q in range(4):
            r = O + 16 * jj + 4 * q
            a.ds_op(f"ds_write_b128 v{T+jj}, v[{r}:{r+3}] offset:{(jj-1)*4096 + q*1024}")
    for jj in range(4):
        e(f"s_add_u32 s{sT1}, s{sW}, {jj}")
        e(f"s_and_b32 s{sT1}, s{sT1}, 3")
        e(f"s_mul_i32 s{sT1}, s{sT1}, 12288")
        e(f"s_add_u32 s{sT1}, s{sT1}, {ATT_LDS}")
        e(f"v_add_u32 v{T+jj}, s{sT1}, v{vSt}")
    FULL = opt.get("full", 0)
    PAT = opt.get("pat", "D")
    def slot_code(n, first):
        ti, j = divmod(n, 4)
        sb = Sx + 16 * (n % 2); pb = P + 8 * (n % 2)
        E = [f"v_exp_f32 v{sb+k}, v{sb+k}" for k in range(16)]
        Cv = [f"v_cvt_pk_bf16_f32 v{pb+k}, v{sb+2*k}, v{sb+2*k+1}" for k in range(8)]
        sq = {"A": [E[0:4] + Cv[0:2], E[4:8] + Cv[2:4], E[8:12] + Cv[4:6], E[12:16] + Cv[6:8]],
              "D": [E[0:3], E[3:6], E[6:9], E[9:16] + Cv],
              "E": [E[0:3], E[3:5] + Cv[0:2], E[5:8], E[8:16] + Cv[2:]],
              "B": [E[0:3], E[3:8] + Cv[0:4], E[8:11], E[11:16] + Cv[4:]],
              "F": [E[0:3] + [], E[3:6] + Cv[0:2], E[6:10] + Cv[2:4], E[10:16] + Cv[4:]]}[PAT]
        run = lambda L: [e(x) for x in L]
        if j == 3 and ti < 15: e(f"s_waitcnt vmcnt({4 * min(2, 14 - ti)})")
        if n + 1 < 64: qk(n + 1, 0)
        run(sq[0])
        if n + 1 < 64: qk(n + 1, 1)
        run(sq[1])
        if n or not first: (pv0 if first else pv)(n + 15 if n == 0 else n - 1, 0)
        run(sq[2])
        if n or not first: (pv0 if first else pv)(n + 15 if n == 0 else n - 1, 1)
        LP = opt.get("ldpos", 3)
        run(sq[3][:LP])
        if j == 0 and ti + 3 < 16:
            for k in range(4):
                r = KV + 16 * ((ti + 3) % 4) + 4 * k
                e(f"buffer_load_dwordx4 v[{r}:{r+3}], v{vSt}, {S(rK if k < 2 else rV)}, s{sRun} offen offset:{2048*(ti%2) + 1024*(k%2)}{LD}")
            if ti % 2:
                e(f"s_add_u32 s{sRun}, s{sRun}, 4096")
                e(f"s_and_b32 s{sRun}, s{sRun}, 0x1ffff")
        if n == 59:
            e(f"v_mov_b32 v{T+4}, {SYNC}")
            a.ds_op(f"ds_read_b32 v{T+5}, v{T+4}", "chk")
        if n == 62:
            lds_check(0, 8, T + 4, T + 5)
            owrite(1)
        if n == 63: owrite(2)
        run(sq[3][LP:])
    if FULL:
        a.raw(".p2align 6")
        for n in range(64): slot_code(n, True)
    else:
        e(f"s_mov_b32 s{sIt}, 2")
        a.raw(".p2align 6")
        a.label("L_loop")
        start = len(a.lines)
        for n in range(16): slot_code(n, False)
        e(f"s_sub_u32 s{sIt}, s{sIt}, 1")
        e("s_cbranch_scc0 L_loop")
        check_loop(a.lines[start:])
        for n in range(48, 64): slot_code(n, False)
    pv0(63, 0); pv0(63, 1)
    if opt.get("kdefer", 99) < 28: lds_arrive(13, T + 4, T + 5)
    padat("loop")
    sp.stamp("loop"); sp.stamp("loop", lvl=4)
    a.vm = []
    owrite(3)
    sp.stamp("wr", lvl=4)
    lds_sync(7, 4, T + 4, T + 5)
    sp.stamp("sy", lvl=4)
    for p in range(3):
        for q in range(4):
            r = O + 16 + 16 * p + 4 * q
            a.ds_op(f"ds_read_b128 v[{r}:{r+3}], v{T} offset:{p*4096 + q*1024}", f"p{p}")
    for p in range(3):
        a.ds_wait(f"p{p}")
        for k in range(16): e(f"v_add_f32 v{O+k}, v{O+k}, v{O+16+16*p+k}")
    sp.stamp("rd", lvl=4)
    a.label("L_norm")
    e(f"v_mov_b32 v{T}, v{O+12}")
    e(f"v_mov_b32 v{T+1}, v{O+12}")
    e(f"v_permlane32_swap_b32 v{T}, v{T+1}")
    e(f"v_rcp_f32 v{T}, v{T+1}")
    e(f"v_mov_b32 v{T+2}, 0")
    for k in range(16): e(f"v_mul_f32 v{O+k}, v{O+k}, v{T}")
    for k in range(8): e(f"v_cvt_pk_bf16_f32 v{P+k}, v{O+2*k}, v{O+2*k+1}")
    e(f"v_cndmask_b32 v{P+6}, 0, v{P+6}, vcc")
    e(f"v_cndmask_b32 v{P+7}, 0, v{P+7}, vcc")
    e(f"buffer_store_dwordx4 v[{P}:{P+3}], v{vSt}, {S(rWS)}, s{sOoff} offen{ST}")
    e(f"buffer_store_dwordx4 v[{P+4}:{P+7}], v{vSt}, {S(rWS)}, s{sOoff} offen offset:1024{ST}")
    for k in range(16): e(f"v_fmac_f32 v{T+2}, 0, v{O+k}")
    e(f"v_mov_b32 v{T+3}, {hexf(2.0**-(BIAS+8))}")
    e(f"v_cmp_u_f32 s[66:67], v{T+2}, v{T+2}")
    e(f"v_cmp_lt_f32 s[74:75], v{T+1}, v{T+3}")
    e(f"s_or_b64 s[66:67], s[66:67], s[74:75]")
    e(f"s_cmp_eq_u64 s[66:67], 0")
    e(f"s_cselect_b32 s{sT1}, 1, s{sFlag}")
    e(f"s_cmp_eq_u32 s{sT1}, 0")
    e(f"s_cbranch_scc1 L_slow")
    sp.stamp("chk", lvl=4)
    e(f"s_waitcnt vmcnt(0)")
    sp.stamp("ost"); sp.stamp("ost", lvl=4); sp.stamp("ost", lvl=7)
    e(f"s_lshl2_add_u32 s{sT2}, s{sQB}, s{sW}")
    e(f"s_lshr_b32 s{sT3}, s{sHead}, 2")
    e(f"s_lshl2_add_u32 s{sT2}, s{sT2}, s{sT3}")
    signal(sT2, 28, T + 4, T + 5)
    hdiag(0)
    sp.dump(pWS, sW)
    e("s_endpgm")
    a.label("L_slow")
    a.reset_hist()
    e(f"s_waitcnt vmcnt(0)")
    e(f"s_mov_b32 s{sFlag}, 1")
    e(f"s_mov_b32 s{rK+2}, 0x20000")
    e(f"s_mov_b32 s{rV+2}, 0x20000")
    e(f"v_cndmask_b32 v{Q+6}, 0, v{Q+6}, vcc")
    e(f"v_cndmask_b32 v{Q+7}, 0, v{Q+7}, vcc")
    e(f"v_mov_b32 v{M}, 0xff800000")
    e(f"s_mov_b32 s{sRun}, 0")
    e(f"s_mov_b32 s{sIt}, 64")
    a.label("L_s1")
    start = len(a.lines)
    e(f"buffer_load_dwordx4 v[{KV}:{KV+3}], v{vSt}, {S(rK)}, s{sRun} offen{LD}")
    e(f"buffer_load_dwordx4 v[{KV+4}:{KV+7}], v{vSt}, {S(rK)}, s{sRun} offen offset:1024{LD}")
    e("s_waitcnt vmcnt(0)")
    e(f"v_mfma_f32_32x32x16_bf16 v[{Sx}:{Sx+15}], v[{KV}:{KV+3}], v[{Q}:{Q+3}], 0")
    e(f"v_mfma_f32_32x32x16_bf16 v[{Sx}:{Sx+15}], v[{KV+4}:{KV+7}], v[{Q+4}:{Q+7}], v[{Sx}:{Sx+15}]")
    for k in range(8): e(f"v_max3_f32 v{M}, v{M}, v{Sx+2*k}, v{Sx+2*k+1}")
    e(f"s_add_u32 s{sRun}, s{sRun}, 2048")
    e(f"s_sub_u32 s{sIt}, s{sIt}, 1")
    e(f"s_cmp_lg_u32 s{sIt}, 0")
    e("s_cbranch_scc1 L_s1")
    check_loop(a.lines[start:])
    patch([0], 0.0)
    for r in range(16): e(f"v_mov_b32 v{O+r}, 0")
    e(f"s_mov_b32 s{sRun}, 0")
    e(f"s_mov_b32 s{sIt}, 64")
    a.label("L_s2")
    start = len(a.lines)
    for k in range(4):
        e(f"buffer_load_dwordx4 v[{KV+4*k}:{KV+4*k+3}], v{vSt}, {S(rK if k < 2 else rV)}, s{sRun} offen offset:{1024*(k%2)}{LD}")
    e("s_waitcnt vmcnt(0)")
    qk(0, 0); qk(0, 1)
    for g in range(4): sm(0, g)
    pv(0, 0); pv(0, 1)
    e(f"s_add_u32 s{sRun}, s{sRun}, 2048")
    e(f"s_sub_u32 s{sIt}, s{sIt}, 1")
    e(f"s_cmp_lg_u32 s{sIt}, 0")
    e("s_nop 11")
    e("s_cbranch_scc1 L_s2")
    check_loop(a.lines[start:])
    e("s_branch L_norm")
    a.label("L_gemm")
    a.reset_hist(); a.vm = []; a.lg = []; sp.set(nst)
    ACCG, HR, WFR, T, WO_F, XF, GF = 16, 80, 136, 152, 160, 224, 136
    OF = HR
    GF = 240
    vA0, vA1, vIO, vCt = 4, 5, 6, 7
    sH0, sH1, sI0 = 59, 60, 61
    DP = opt.get("gdepth", 5)
    PACE = opt.get("pace", 4)
    def pace():
        nonlocal PACE
        if PACE and len(a.vm) > PACE:
            e(f"s_waitcnt vmcnt({PACE})"); a.vm = a.vm[-PACE:]
    e(f"s_setprio {opt.get('gprio0', 2)}")
    e(f"s_cmp_lt_u32 s{sJ}, 28")
    e(f"s_cbranch_scc1 L_gemm2")
    e(f"s_waitcnt vmcnt(0)")
    last_signals(0, 8, sRB, 12, T, T + 1)
    e("s_endpgm")
    a.label("L_gemm2")
    a.vm_mark("hst")
    lds_sync(3, 4, T, T + 1)
    srd(a, rW, pWO, WO_BYTES)
    e(f"s_sub_u32 s{sWq}, s{sW}, 4")
    e(f"s_mul_i32 s{sT1}, s{sJ}, 37")
    e(f"s_lshr_b32 s{sT1}, s{sT1}, 8")
    e(f"s_mul_i32 s{sT2}, s{sT1}, 7")
    e(f"s_sub_u32 s{sCB}, s{sJ}, s{sT2}")
    e(f"s_lshl2_add_u32 s{sTB}, s{sX}, s{sT1}")
    e(f"s_lshl_b32 s{sCB}, s{sCB}, 7")
    e(f"s_mul_i32 s{sLB}, s{sWq}, 12288")
    dma_voff(a, vLane, vD, T, T + 1)
    e(f"v_and_b32 v{T}, 31, v{vLane}")
    e(f"v_mul_u32_u24 v{T}, 896, v{T}")
    e(f"v_lshrrev_b32 v{T+1}, 5, v{vLane}")
    e(f"v_lshl_add_u32 v{vIO}, v{T+1}, 3, v{T}")
    e(f"s_and_b32 s{sT1}, s{sWq}, 1")
    e(f"s_lshl1_add_u32 s{sT3}, s{sTB}, s{sT1}")
    e(f"s_mul_i32 s{sI0}, s{sT3}, {32*896}")
    e(f"s_add_u32 s{sI0}, s{sI0}, s{sCB}")
    e(f"s_lshr_b32 s{sT2}, s{sWq}, 1")
    e(f"s_lshl_b32 s{sT2}, s{sT2}, 6")
    e(f"s_add_u32 s{sI0}, s{sI0}, s{sT2}")
    def issue_w(s):
        st = s % 6
        e(f"s_add_u32 m0, s{sLB}, {st*2048}")
        e(f"s_add_u32 s{sT1}, s{sWo}, {8*896}")
        a.vm_op(f"buffer_load_dwordx4 v{vD}, {S(rB)}, s{sWo} offen lds", f"s{s}")
        e(f"s_add_u32 m0, s{sLB}, {st*2048+1024}")
        e(f"s_add_u32 s{sWo}, s{sWo}, {16*896}")
        a.vm_op(f"buffer_load_dwordx4 v{vD}, {S(rB)}, s{sT1} offen lds", f"s{s}")
    srd(a, rB, pW2, W2_BYTES)
    e(f"s_mul_i32 s{sWo}, s{sWq}, {448*896}")
    e(f"s_add_u32 s{sWo}, s{sWo}, s{sCB}")
    NW0 = opt.get("nw0", 2)
    for s in range(NW0): issue_w(s)
    e(f"s_mul_i32 s{sH0}, s{sT3}, 112")
    e(f"s_xor_b32 s{sT3}, s{sT3}, 1")
    e(f"s_mul_i32 s{sH1}, s{sT3}, 112")
    e(f"s_mul_i32 s{sT1}, s{sWq}, 28")
    e(f"s_add_u32 s{sT1}, s{sT1}, {H_OFF >> 10}")
    e(f"s_add_u32 s{sH0}, s{sH0}, s{sT1}")
    e(f"s_add_u32 s{sH1}, s{sH1}, s{sT1}")
    e(f"s_lshl_b32 s{sH0}, s{sH0}, 10")
    e(f"s_lshl_b32 s{sH1}, s{sH1}, 10")
    e(f"s_xor_b32 s{sT2}, s{sT2}, s{sLB}")
    tr_addr(a, vLane, vA0, vA1, T, T + 1, T + 2, sT2, xor=True)
    def wr(s, d0, off, wait=True):
        if wait: a.vm_wait(f"s{s}")
        for ct in range(2):
            d = d0 + ct * 4
            ad = vA0 if ct == 0 else vA1
            a.ds_op(f"ds_read_b64_tr_b16 v[{d}:{d+1}], v{ad} offset:{off}", f"w{s}")
            a.ds_op(f"ds_read_b64_tr_b16 v[{d+2}:{d+3}], v{ad} offset:{off+1024}", f"w{s}")
    e(f"s_lshr_b32 s{sT1}, s{sTB}, 1")
    e(f"s_lshl_b32 s{sT1}, s{sT1}, 7")
    e(f"s_add_u32 s{sT1}, s{sT1}, {12*128}")
    e(f"v_mov_b32 v{vCt}, s{sT1}")
    def issue_h(s):
        st = s % 6
        off = (s % 4) * 1024
        a.vm_op(f"buffer_load_dwordx4 v[{HR+8*st}:{HR+8*st+3}], v{vSt}, {S(rWS)}, s{sH0} offen offset:{off}{LD}", f"s{s}")
        a.vm_op(f"buffer_load_dwordx4 v[{HR+8*st+4}:{HR+8*st+7}], v{vSt}, {S(rWS)}, s{sH1} offen offset:{off}{LD}", f"s{s}")
        if s % 4 == 3:
            e(f"s_add_u32 s{sH0}, s{sH0}, 4096")
            e(f"s_add_u32 s{sH1}, s{sH1}, 4096")
    a.vm_wait("hst")
    last_signals(0, 8, sRB, 12, T, T + 1)
    for s in range(NW0, 6): issue_w(s); pace()
    e(f"s_cmp_lg_u32 s{sWq}, 0")
    e(f"s_cbranch_scc1 L_hw")
    poll(vCt, T + 1, 16, opt.get("hsleep", 4))
    lds_arrive(8, T, T + 1)
    a.label("L_hw")
    lds_spin(2, 4, T, T + 1, 3)
    lds_spin(8, 1, T, T + 1, 3)
    e(f"s_waitcnt vmcnt(0)")
    sp.stamp("hrdy")
    for s in range(DP): issue_h(s)
    e(f"s_setprio {opt.get('gprio', 0)}")
    def mm(s, w, h):
        for ct in range(2):
            for tt in range(2):
                d = ACCG + (2*ct+tt) * 16
                c = "0" if s == 0 else f"v[{d}:{d+15}]"
                e(f"v_mfma_f32_32x32x16_bf16 v[{d}:{d+15}], v[{w+4*ct}:{w+4*ct+3}], v[{h+4*tt}:{h+4*tt+3}], {c}")
    wr(0, WFR, 0)
    XG = 144
    late = []
    def wo_first():
        e(f"s_mul_i32 s{sH0}, s{sWq}, 15360")
        e(f"s_mul_i32 s{sWo}, s{sWq}, {112*896}")
        e(f"s_add_u32 s{sWo}, s{sWo}, s{sCB}")
    def wo_dma(i):
        if i == 0: wo_first()
        e(f"s_add_u32 m0, s{sH0}, {WO_LDS + i*1024}")
        if i: e(f"s_add_u32 s{sWo}, s{sWo}, {8*896}")
        a.vm_op(f"buffer_load_dwordx4 v{vD}, {S(rW)}, s{sWo} offen lds", "wo")
    XG = XF + 8
    for i in range(15): late.append(lambda i=i: wo_dma(i))
    for q in range(4):
        late.append(lambda q=q: a.vm_op(f"buffer_load_dwordx2 v[{XG+2*q}:{XG+2*q+1}], v{vIO}, {S(rX)}, s{sI0} offen offset:{16*q}", "xg"))
    TOP = opt.get("gtop", 0)
    KD = opt.get("kdefer", 99)
    for s in range(28):
        if s == KD:
            for _ in range(opt.get("lateN", 19)):
                if late: late.pop(0)(); pace()
            lds_spin(13, opt.get("kdn", 4), T, T + 1, 2)
            e(f"s_setprio {opt.get('gprio4', 2)}")
        if s == opt.get("kp2", 99): e(f"s_setprio {opt.get('kp2v', 2)}")
        if TOP and s > 0:
            if s + 1 < 28: a.vm_wait(f"s{s+1}")
            if 6 <= s + DP - 1 < 28: issue_w(s + DP - 1)
            if s + DP - 1 < 28: issue_h(s + DP - 1)
        if s + 1 < 28: wr(s + 1, WFR + ((s + 1) % 2) * 8, ((s + 1) % 6) * 2048)
        a.ds_wait(f"w{s}")
        if not opt.get("x_nogm") or s == 0: mm(s, WFR + (s % 2) * 8, HR + 8 * (s % 6))
        if opt.get("x_nogl") or TOP: continue
        if 6 <= s + DP < 28: issue_w(s + DP)
        if s + DP < 28: issue_h(s + DP)
        else:
            for _ in range(4):
                if late: late.pop(0)()
    while late: late.pop(0)()
    sp.stamp("w2")
    e(f"s_setprio {opt.get('gprio3', 0)}")
    def exchange(k):
        e(f"v_add_u32 v{T}, s{sLB}, v{vSt}")
        for sl in range(1, 4):
            for q in range(4):
                r = ACCG + 16 * sl + 4 * q
                a.ds_op(f"ds_write_b128 v{T}, v[{r}:{r+3}] offset:{(sl-1)*4096 + q*1024}")
            e(f"s_xor_b32 s{sT1}, s{sWq}, {sl}")
            e(f"s_mul_i32 s{sT1}, s{sT1}, 12288")
            e(f"v_add_u32 v{T+2+sl}, s{sT1}, v{vSt}")
        if k == 6: sp.stamp("wr", lvl=4)
        lds_sync(k, 4, T + 1, T + 2)
        if k == 6: sp.stamp("sy", lvl=4)
        for p in range(3):
            for q in range(4):
                r = ACCG + 16 + 16 * p + 4 * q
                a.ds_op(f"ds_read_b128 v[{r}:{r+3}], v{T+3+p} offset:{p*4096 + q*1024}", f"p{p}")
        for p in range(3):
            a.ds_wait(f"p{p}")
            for kk in range(16): e(f"v_add_f32 v{ACCG+kk}, v{ACCG+kk}, v{ACCG+16+16*p+kk}")
    e(f"s_and_b32 s{sT1}, s{sWq}, 2")
    e(f"s_mul_i32 s{sT3}, s{sT1}, 15360")
    e(f"s_add_u32 s{sT3}, s{sT3}, {WO_LDS}")
    e(f"s_sub_u32 s{sT3}, s{sT3}, s{sLB}")
    e(f"v_add_u32 v{vA0}, s{sT3}, v{vA0}")
    e(f"v_add_u32 v{vA1}, s{sT3}, v{vA1}")
    e(f"s_and_b32 s{sT2}, s{sWq}, 1")
    e(f"s_lshl1_add_u32 s{sT2}, s{sTB}, s{sT2}")
    e(f"s_lshl2_add_u32 s{sT2}, s{sT2}, s{sT1}")
    e(f"s_lshl_b32 s{sH0}, s{sT2}, 13")
    e(f"s_add_u32 s{sH0}, s{sH0}, {O_OFF}")
    e(f"v_min_u32 v8, 1, v{vLane}")
    e(f"s_add_u32 s{sT2}, s{sT2}, 28")
    e(f"v_add_lshl_u32 v{vCt}, v8, s{sT2}, 7")
    srd(a, rW3, pOUT, X_BYTES)
    a.vm_wait("xg")
    e(f"s_mov_b32 s{sT3}, {CNT_OFF}")
    a.vm_op(f"buffer_load_dword v9, v{vCt}, {S(rWS)}, s{sT3} offen sc1", "op")
    exchange(4)
    lds_arrive(5, T + 1, T + 2)
    U = ACCG + 16
    WR = lambda s: WO_F + 8 * s if s < 8 else (48 + 8 * (s - 8) if s < 12 else WO_F + 8 * (s - 12))
    woff = lambda s: (s // 8) * 15360 + (28 * ((s % 8) // 2) + 16 * (s % 2)) * 128
    for s in range(12): wr(100 + s, WR(s), woff(s), wait=False)
    for k in range(16): e(f"v_mul_f32 v{U+k}, {hexf(-LOG2E)}, v{ACCG+k}")
    for k in range(16): e(f"v_exp_f32 v{U+k}, v{U+k}")
    for k in range(16): e(f"v_add_f32 v{U+k}, 1.0, v{U+k}")
    for k in range(16): e(f"v_rcp_f32 v{U+k}, v{U+k}")
    for k in range(16): e(f"v_mul_f32 v{GF+k}, v{ACCG+k}, v{U+k}")
    for k in range(8):
        e(f"v_lshlrev_b32 v{XF+2*k}, 16, v{XG+k}")
        e(f"v_and_b32 v{XF+2*k+1}, 0xffff0000, v{XG+k}")
    e(f"v_lshrrev_b32 v8, 5, v{vLane}")
    e(f"v_lshl_add_u32 v{vIO}, v8, 3, v{vIO}")
    e(f"s_xor_b32 s{sT1}, s{sWq}, 2")
    e(f"s_mul_i32 s{sT1}, s{sT1}, 12288")
    e(f"v_add_u32 v12, s{sLB}, v{vSt}")
    e(f"v_add_u32 v13, s{sT1}, v{vSt}")
    e(f"s_and_b32 s{sT1}, s{sWq}, 1")
    e(f"s_lshl2_add_u32 s{sT1}, s{sT1}, {SYNC + 64}")
    e(f"v_mov_b32 v14, s{sT1}")
    a.vm_wait("op")
    e(f"s_setprio 2")
    e(f"v_cmp_gt_u32 s[74:75], 4, v9")
    e(f"s_cmp_eq_u64 s[74:75], 0")
    e(f"s_cbranch_scc1 L_oe")
    poll(vCt, 9, 4, opt.get("osleep", 1))
    a.label("L_oe")
    sp.stamp("grdy")
    for s in range(16):
        if s and s % 4 == 0: e(f"s_add_u32 s{sH0}, s{sH0}, 4096")
        a.vm_op(f"buffer_load_dwordx4 v[{OF+4*s}:{OF+4*s+3}], v{vSt}, {S(rWS)}, s{sH0} offen offset:{(s%4)*1024}{LD}", f"o{s}")
    a.ds_wait_all()
    e(f"v_mov_b32 v10, {SYNC + 20}")
    a.ds_op(f"ds_read_b32 v11, v10", "c5")
    sp.stamp("ordy"); sp.stamp("ordy", lvl=4)
    for s in range(16):
        a.vm_wait(f"o{s}")
        if s >= 12: a.ds_wait(f"w{100+s}")
        for ct in (1, 0):
            d = ACCG + 16 * ct
            c = "0" if s == 0 else f"v[{d}:{d+15}]"
            e(f"v_mfma_f32_32x32x16_bf16 v[{d}:{d+15}], v[{WR(s)+4*ct}:{WR(s)+4*ct+3}], v[{OF+4*s}:{OF+4*s+3}], {c}")
        if 1 <= s <= 4: wr(100 + s + 11, WR(s + 11), woff(s + 11), wait=False)
    lds_check(5, 4, 10, 11)
    for q in range(4): a.ds_op(f"ds_write_b128 v12, v[{U+4*q}:{U+4*q+3}] offset:{q*1024}")
    if opt.get("pair", 1):
        a.ds_wait_all()
        e(f"v_mov_b32 v15, 1")
        e(f"s_mov_b64 exec, 1")
        e(f"ds_add_u32 v14, v15")
        e(f"s_mov_b64 exec, -1")
        e(f"ds_read_b32 v15, v14")
        lds_check(16, 2, 14, 15)
    else: lds_sync(6, 4, T + 1, T + 2)
    for q in range(4): a.ds_op(f"ds_read_b128 v[{U+4*q}:{U+4*q+3}], v13 offset:{q*1024}", f"p{q}")
    for q in range(4):
        a.ds_wait(f"p{q}")
        for k in range(4): e(f"v_add_f32 v{ACCG+4*q+k}, v{ACCG+4*q+k}, v{U+4*q+k}")
    sp.stamp("ex", lvl=4)
    for k in range(16): e(f"v_fma_f32 v{ACCG+k}, v{ACCG+k}, v{GF+k}, v{XF+k}")
    for k in range(8): e(f"v_cvt_pk_bf16_f32 v{U+k}, v{ACCG+2*k}, v{ACCG+2*k+1}")
    for pr in range(2):
        e(f"v_permlane32_swap_b32 v{U+4*pr}, v{U+4*pr+2}")
        e(f"v_permlane32_swap_b32 v{U+4*pr+1}, v{U+4*pr+3}")
    e(f"buffer_store_dwordx4 v[{U}:{U+3}], v{vIO}, {S(rW3)}, s{sI0} offen{opt.get('ost', '')}")
    e(f"buffer_store_dwordx4 v[{U+4}:{U+7}], v{vIO}, {S(rW3)}, s{sI0} offen offset:32{opt.get('ost', '')}")
    hdiag(1)
    if opt.get("padg"):
        e("v_mov_b32 v0, 0")
        e(f"global_load_dword v0, v0, s[{pDBG}:{pDBG+1}] offset:4 sc1")
        e("s_waitcnt vmcnt(0)")
        e("v_readfirstlane_b32 s76, v0")
        e("s_not_b32 s76, s76")
    if opt.get("pad"):
        a.label("L_pad")
        e("s_memrealtime s[80:81]")
        e("s_waitcnt lgkmcnt(0)")
        e("s_sub_u32 s80, s80, s76")
        e(f"s_cmp_lt_u32 s80, {opt['pad']}")
        e("s_cbranch_scc1 L_pad")
    sp.stamp("end"); sp.stamp("end", lvl=4); sp.stamp("end", lvl=7)
    if sp.on == 4: e("s_waitcnt vmcnt(0)")
    sp.stamp("drain", lvl=4)
    sp.dump(pWS, sW)
    a.label("L_end")
    e("s_endpgm")
    return kd(NAME, 256)

if __name__ == "__main__":
    opt = json.loads(sys.argv[2]) if len(sys.argv) > 2 else {}
    a = Asm()
    for l in """; out = x + (softmax(q k^T / sqrt(28)) v @ wo) * silu((silu(xn w1) * (xn w3)) @ w2),  xn = layernorm(x),  q|k|v = xn wqkv
; One persistent launch, one 8-wave workgroup per CU; workgroups hand data over through d_ws (write-through stores,
; counters cleared by workgroup 0 and released through d_debug[0], consumers poll with bounded loops).
;  phase A (all waves): centre 128 rows of x (1/std is applied to the results), three rounds of 32x32 tiles against
;          weight tiles that stream through LDS: q/k/v (heads padded 28 -> 32) and h = silu(gate) * up, stored as MFMA fragments
;  phase B waves 0-3: attention for one head and 128 queries, keys split over the waves.  The softmax shift of a row is
;          its true maximum over a first key tile plus 64 (in log2 units), folded into the q k^T MFMA through the spare k slots;
;          the row sum comes from a column of ones in v.  If that shift turns out unsafe (non-finite result or a row
;          sum below 2^-72) the wave redoes its q tile with the true maximum over all keys (L_slow).
;          waves 4-7: h @ w2 for a 64x64 tile (k split over the waves), gate = silu(.)
;  phase C waves 4-7: o @ wo for the same tile, out = x + s * gate
; @launch grid=(256,1,1) block=(512,1,1) lds=163840""".split("\n"): a.raw(l)
    a.raw('.amdgcn_target "amdgcn-amd-amdhsa--gfx950"')
    a.raw(".text")
    k = gen(a, opt)
    a.raw("L_code_end:")
    a.raw(".fill 64, 4, 0xbf800000")
    a.raw("    s_endpgm")
    a.raw('.section .rodata,"a"')
    a.raw(k)
    open(sys.argv[1], "w").write(a.text())
    print("nops inserted:", a.nops, "lines:", len(a.lines))
```
